```python
import torch

def _softmax(x, axis=-1):
    return torch.softmax(x, dim=axis)
def _gelu(x):
    return torch.nn.functional.gelu(x, approximate="tanh")
def _silu(x):
    return torch.nn.functional.silu(x)
def _sigmoid(x):
    return torch.sigmoid(x)
def _layernorm(x, axis=-1, eps=1e-5):
    m = x.mean(dim=axis, keepdim=True)
    v = x.var(dim=axis, keepdim=True, unbiased=False)
    return (x - m) / torch.sqrt(v + eps)
def _scatter_add(tgt, idx, src, axis=0):
    return tgt.clone().index_add_(axis, idx, src)
def _segment_sum(src, seg, n):
    out = torch.zeros((n,) + src.shape[1:], dtype=src.dtype)
    return out.index_add_(0, seg, src)
def _pad(x, pw):
    flat = tuple(v for pair in reversed(pw) for v in pair)
    return torch.nn.functional.pad(x, flat)

kernel_name = 'sequential_preLN__grouped_kv_mqa__moe_arch_mod__prompt'

def setup_inputs():

    _w = (lambda a: (lambda t: t.to(torch.bfloat16) if t.is_floating_point() else t)(torch.as_tensor(a)))
    def _A_setup():
        B, S, D, H = 1, 2048, 512, 32
        Dh = D // H
        return {
            "x": _w((lambda *s: torch.randn(*s, dtype=torch.bfloat16) * 0.05)(B, S, D)),
            "wq": _w((lambda *s: torch.randn(*s, dtype=torch.bfloat16) * 0.2)(D, H * Dh)),
            "wk": _w((lambda *s: torch.randn(*s, dtype=torch.bfloat16) * 0.2)(D, Dh)),
            "wv": _w((lambda *s: torch.randn(*s, dtype=torch.bfloat16) * 0.2)(D, Dh)),
            "wo": _w((lambda *s: torch.randn(*s, dtype=torch.bfloat16) * 0.2)(H * Dh, D)),
        }
    _A_in = _A_setup()

    def _B_setup():
        B, S, D, F, C = 1, 2048, 512, 1376, 2
        return {
            "x": _w((lambda *s: torch.randn(*s, dtype=torch.bfloat16) * 0.05)(B, S, D)),
            "w_r": _w((lambda *s: torch.randn(*s, dtype=torch.bfloat16) * 0.2)(D)),
            "w_gate": _w((lambda *s: torch.randn(*s, dtype=torch.bfloat16) * 0.2)(D, F)),
            "w_up": _w((lambda *s: torch.randn(*s, dtype=torch.bfloat16) * 0.2)(D, F)),
            "w_down": _w((lambda *s: torch.randn(*s, dtype=torch.bfloat16) * 0.2)(F, D)),
        }
    _B_in = _B_setup()

    return {
        "A_x": _A_in["x"],
        "A_wq": _A_in["wq"],
        "A_wk": _A_in["wk"],
        "A_wv": _A_in["wv"],
        "A_wo": _A_in["wo"],
        "B_x": _B_in["x"],
        "B_w_r": _B_in["w_r"],
        "B_w_gate": _B_in["w_gate"],
        "B_w_up": _B_in["w_up"],
        "B_w_down": _B_in["w_down"],
    }

def reference(A_x, A_wq, A_wk, A_wv, A_wo, B_x, B_w_r, B_w_gate, B_w_up, B_w_down):
    def _A_ref(x, wq, wk, wv, wo):
        B, S, D = x.shape
        H = 32
        Dh = D // H
        q = (lambda x, *d: x.permute(*d))((x @ wq).reshape(B, S, H, Dh), 0, 2, 1, 3)
        k = x @ wk
        v = x @ wv
        scores = torch.einsum("bhqd,bkd->bhqk", q, k) * (Dh ** -0.5)
        p = _softmax(scores, axis=-1)
        o = torch.einsum("bhqk,bkd->bhqd", p, v)
        return (lambda x, *d: x.permute(*d))(o, 0, 2, 1, 3).reshape(B, S, H * Dh) @ wo

    def _B_ref(x, w_r, w_gate, w_up, w_down):
        B, S, D = x.shape
        C = 2
        r = x @ w_r
        idx = torch.argsort(-r, axis=-1)[:, :C]
        idx_e = (lambda x, n, axis: torch.repeat_interleave(x, n, dim=axis))(idx.reshape(B, C, 1), D, axis=2)
        x_sel = (lambda x, i, axis: torch.take_along_dim(x, i, dim=axis))(x, idx_e, axis=1)
        g = _silu(x_sel @ w_gate)
        u = x_sel @ w_up
        y = (g * u) @ w_down
        r_sel = _sigmoid((lambda x, i, axis: torch.take_along_dim(x, i, dim=axis))(r, idx, axis=1))
        y = y * r_sel.reshape(B, C, 1)
        b_off = (torch.arange(B) * S).reshape(B, 1)
        flat_idx = (idx + b_off).reshape(B * C)
        zero = (x * 0.0).reshape(B * S, D)
        upd = _scatter_add(zero, flat_idx, y.reshape(B * C, D), axis=0)
        return x + upd.reshape(B, S, D)

    x = A_x
    h = x + _A_ref(_layernorm(x, axis=-1), A_wq, A_wk, A_wv, A_wo)
    h2 = h + _B_ref(_layernorm(h, axis=-1), B_w_r, B_w_gate, B_w_up, B_w_down)
    return h2
```

```python
import sys, struct
def f2u(x): return struct.unpack("<I", struct.pack("<f", x))[0]

WS_Q   = 0
WS_KV  = 2 << 20
WS_WO  = 3 << 20
WS_H   = 4 << 20
WS_KEY = 6 << 20
WS_ST  = (6 << 20) + 0x10000
WS_ACT = (6 << 20) + 0x20000
WS_SIZE = 8 << 20
TILE = 2112
QSCALE = 0.25 * 1.4426950408889634
EPS = 1e-5
SHIFT = 96.0

class Asm:
    def __init__(self): self.l = []
    def __call__(self, s):
        for x in s.split("\n"):
            x = x.strip()
            if x: self.l.append(("" if x.endswith(":") else "    ") + x)
    def text(self): return "\n".join(self.l) + "\n"

def srd(a, d, p, size):
    a(f"s_mov_b32 s{d}, s{p}\ns_and_b32 s{d+1}, s{p+1}, 0xffff\ns_mov_b32 s{d+2}, {size}\ns_mov_b32 s{d+3}, 0x20000")
def vr(b, n): return f"v[{b}:{b+n-1}]"
def head(a, name):
    a(f".globl {name}\n.p2align 8\n.type {name},@function\n{name}:")
def desc(name, nv, ns):
    return f""".p2align 6
.amdhsa_kernel {name}
  .amdhsa_next_free_vgpr {nv}
  .amdhsa_next_free_sgpr {ns}
  .amdhsa_accum_offset {(nv+3)//4*4}
  .amdhsa_group_segment_fixed_size 0
  .amdhsa_kernarg_size 104
  .amdhsa_user_sgpr_count 2
  .amdhsa_user_sgpr_kernarg_segment_ptr 1
  .amdhsa_system_sgpr_workgroup_id_x 1
.end_amdhsa_kernel
"""
MF32 = "v_mfma_f32_32x32x16_bf16"
MF16 = "v_mfma_f32_16x16x32_bf16"

def k1(a):
    X, WQ, WK, WV, WO, WS = 16, 20, 24, 28, 32, 36
    sW, sTG, sCG = 40, 41, 42
    D1, D2 = 16, 96
    XR, WR = 32, 48
    XA, WA = 64, 72
    SX, SXX, CS, ONES = 73, 74, 75, 76
    WOD = 112
    VX, VW = 84, 88
    head(a, "proj_kernel")
    a(f"""
    s_cmp_ge_u32 s2, 256
    s_cbranch_scc1 L1_end
    s_load_dwordx8 s[4:11], s[0:1], 0
    s_load_dwordx2 s[12:13], s[0:1], 32
    s_load_dwordx2 s[14:15], s[0:1], 96
    v_lshrrev_b32 v1, 6, v0
    v_and_b32 v2, 63, v0
    v_readfirstlane_b32 s{sW}, v1
    s_and_b32 s43, s2, 7
    s_lshr_b32 s44, s2, 3
    s_and_b32 s45, s44, 3
    s_lshl_b32 s{sTG}, s43, 2
    s_add_u32 s{sTG}, s{sTG}, s45
    s_lshr_b32 s{sCG}, s44, 2
    v_and_b32 v3, 15, v2
    v_lshrrev_b32 v4, 4, v2
    v_and_b32 v5, 31, v2
    v_lshrrev_b32 v6, 5, v2
    v_mov_b32 v{ONES}, 0x3f803f80
    v_mov_b32 v{SX}, 0
    v_mov_b32 v{SXX}, 0
    v_mov_b32 v{CS}, 0
    """)
    a("s_waitcnt lgkmcnt(0)")
    srd(a, X, 4, 2 << 20); srd(a, WQ, 6, 512 << 10); srd(a, WK, 8, 16 << 10); srd(a, WV, 10, 16 << 10)
    srd(a, WO, 12, 512 << 10); srd(a, WS, 14, WS_SIZE)
    a(f"s_cmp_eq_u32 s{sW}, 4\ns_cbranch_scc1 L1_kv")
    a(f"""
    s_and_b32 s43, s{sW}, 1
    s_lshl_b32 s46, s2, 1
    s_add_u32 s46, s46, s43
    s_lshr_b32 s43, s46, 6
    s_lshr_b32 s44, s46, 2
    s_and_b32 s44, s44, 15
    s_and_b32 s45, s46, 3
    s_lshl_b32 s44, s44, 15
    s_lshl_b32 s43, s43, 7
    s_lshl_b32 s45, s45, 3
    s_add_u32 s47, s44, s43
    s_add_u32 s47, s47, s45
    v_lshrrev_b32 v7, 2, v3
    v_lshlrev_b32 v7, 5, v7
    v_and_b32 v8, 3, v3
    v_lshl_add_u32 v7, v8, 1, v7
    v_lshl_add_u32 v7, v4, 13, v7
    v_add_u32 v8, 4096, v7
    """)
    for j in range(8):
        a(f"buffer_load_ushort v{WOD + j}, v{7 + j//4}, s[{WO}:{WO+3}], s47 offen offset:{(j & 3) * 1024}")
    a(f"""
    s_cmp_lg_u32 s{sW}, 2
    s_cbranch_scc1 L1_noz
    s_cmp_ge_u32 s2, 11
    s_cbranch_scc1 L1_noz
    v_mov_b32 v12, 0
    v_mov_b32 v13, 0
    v_mov_b32 v14, 0
    v_mov_b32 v15, 0
    v_lshlrev_b32 v9, 4, v2
    s_lshl_b32 s43, s2, 10
    s_add_u32 s43, s43, {WS_ACT}
    buffer_store_dwordx4 v[12:15], v9, s[{WS}:{WS+3}], s43 offen
    L1_noz:
    """)
    for i in range(4):
        a(f"""
        v_add_u32 v9, {4*i}, v4
        v_xor_b32 v10, v9, v3
        v_lshlrev_b32 v10, 4, v10
        v_lshl_add_u32 v{VX+i}, v9, 10, v10
        """)
    a(f"""
    v_lshrrev_b32 v9, 3, v2
    v_and_b32 v10, 1, v4
    v_lshlrev_b32 v10, 2, v10
    v_and_b32 v11, 7, v2
    v_xor_b32 v10, v10, v11
    v_lshlrev_b32 v10, 4, v10
    v_lshl_add_u32 v{VW}, v9, 10, v10
    s_lshl_b32 s48, s{sTG}, 16
    s_lshl_b32 s43, s{sW}, 14
    s_add_u32 s48, s48, s43
    s_lshl_b32 s49, s{sW}, 15
    s_lshl_b32 s43, s{sCG}, 7
    s_add_u32 s49, s49, s43
    s_lshl_b32 s50, s{sW}, 12
    """)
    for kc in range(4):
        a(f"s_add_u32 s51, s48, {kc*256}")
        for i in range(4):
            a(f"s_add_u32 m0, s50, {kc*16384 + i*1024}\ns_nop 0\nbuffer_load_dwordx4 v{VX+i}, s[{X}:{X+3}], s51 offen lds")
        for i in range(4):
            a(f"s_add_u32 s52, s49, {(128*kc + 8*i) * 1024}")
            a(f"s_add_u32 m0, s50, {65536 + kc*16384 + i*1024}\ns_nop 0\nbuffer_load_dwordx4 v{VW}, s[{WQ}:{WQ+3}], s52 offen lds")
    def xaddr(sTile):
        a(f"""
        s_lshl_b32 s43, s{sTile}, 13
        v_lshlrev_b32 v9, 8, v5
        v_add_u32 v9, s43, v9
        """)
        for j in range(8):
            a(f"""
            v_add_u32 v10, {2*j}, v6
            v_xor_b32 v10, v10, v3
            v_lshl_add_u32 v{XA+j}, v10, 4, v9
            """)
    a(f"s_and_b32 s53, s{sW}, 1\ns_lshr_b32 s54, s{sW}, 1")
    xaddr(53)
    a(f"""
    v_lshrrev_b32 v9, 2, v3
    v_lshl_add_u32 v10, v6, 3, v9
    v_lshlrev_b32 v10, 7, v10
    v_lshrrev_b32 v11, 1, v9
    v_xor_b32 v11, s54, v11
    v_lshl_add_u32 v10, v11, 6, v10
    v_and_b32 v11, 1, v4
    v_lshl_add_u32 v10, v11, 5, v10
    v_and_b32 v11, 3, v3
    v_lshl_add_u32 v10, v11, 3, v10
    v_add_u32 v{WA}, 0x10000, v10
    """)
    def mainloop(kv):
        wstep, wsec = (512, 128) if kv else (2048, 512)
        first = True
        def reads(ks):
            s = ks & 3
            a(f"ds_read_b128 {vr(XR+4*s,4)}, v{XA + (ks & 7)} offset:{(ks >> 3) * 16384}")
            a(f"ds_read_b64_tr_b16 {vr(WR+4*s,2)}, v{WA} offset:{ks*wstep}")
            a(f"ds_read_b64_tr_b16 {vr(WR+4*s+2,2)}, v{WA} offset:{ks*wstep + wsec}")
        for kc in range(4):
            a(f"s_waitcnt vmcnt({24 - 8*kc})\ns_barrier")
            for u in range(4): reads(8*kc + u)
            for u in range(8):
                ks = 8*kc + u; s = ks & 3
                a(f"s_waitcnt lgkmcnt({min(9, 3*(7-u))})")
                c1 = "0" if first else vr(D1, 16)
                a(f"{MF32} {vr(D1,16)}, {vr(WR+4*s,4)}, {vr(XR+4*s,4)}, {c1}")
                for q in range(4):
                    a(f"v_dot2c_f32_bf16 v{SX}, v{XR+4*s+q}, v{ONES}")
                    a(f"v_dot2c_f32_bf16 v{SXX}, v{XR+4*s+q}, v{XR+4*s+q}")
                    a(f"v_dot2c_f32_bf16 v{CS}, v{WR+4*s+q}, v{ONES}")
                    if kv and q == 1:
                        c2 = "0" if first else vr(D2, 16)
                        a(f"{MF32} {vr(D2,16)}, {vr(XR+4*s,4)}, {vr(WR+4*s,4)}, {c2}")
                first = False
                if u < 4: reads(ks + 4)
    def stats(kv):
        a(f"""
        s_nop 2
        v_mov_b32 v9, v{SX}
        v_mov_b32 v10, v{SXX}
        s_nop 1
        v_permlane32_swap_b32 v{SX}, v9
        v_permlane32_swap_b32 v{SXX}, v10
        v_add_f32 v{SX}, v{SX}, v9
        v_add_f32 v{SXX}, v{SXX}, v10
        v_mul_f32 v9, {hex(f2u(-1.0/512))}, v{SX}
        v_mul_f32 v10, {hex(f2u(1.0/512))}, v{SXX}
        v_fma_f32 v10, -v9, v9, v10
        v_max_f32 v10, 0, v10
        v_add_f32 v10, {hex(f2u(EPS))}, v10
        v_rsq_f32 v10, v10
        v_and_b32 v11, 0xffff0000, v9
        v_sub_f32 v12, v9, v11
        v_cvt_pk_bf16_f32 v{XR}, v11, v12
        v_cvt_pk_bf16_f32 v{XR+1}, v11, 0
        v_mov_b32 v{XR+2}, 0
        v_mov_b32 v{XR+3}, 0
        v_and_b32 v11, 0xffff0000, v{CS}
        v_sub_f32 v12, v{CS}, v11
        v_cvt_pk_bf16_f32 v{WR}, v11, v11
        v_cvt_pk_bf16_f32 v{WR+1}, v12, 0
        v_mov_b32 v{WR+2}, 0
        v_mov_b32 v{WR+3}, 0
        s_nop 1
        {MF32} {vr(D1,16)}, {vr(WR,4)}, {vr(XR,4)}, {vr(D1,16)}
        """)
        if kv: a(f"{MF32} {vr(D2,16)}, {vr(XR,4)}, {vr(WR,4)}, {vr(D2,16)}")
    mainloop(False)
    stats(False)
    a(f"""
    v_mul_f32 v10, {hex(f2u(QSCALE))}, v10
    v_lshrrev_b32 v11, 3, v5
    v_lshlrev_b32 v11, 13, v11
    v_and_b32 v12, 7, v5
    v_lshl_add_u32 v11, v12, 4, v11
    v_lshl_add_u32 v11, v6, 9, v11
    s_lshl_b32 s43, s{sTG}, 16
    s_lshl_b32 s44, s53, 15
    s_add_u32 s43, s43, s44
    s_lshl_b32 s44, s{sCG}, 10
    s_add_u32 s43, s43, s44
    s_lshl_b32 s44, s54, 8
    s_add_u32 s43, s43, s44
    s_add_u32 s43, s43, {WS_Q}
    s_nop 3
    """)
    for r in range(16): a(f"v_mul_f32 v{D1+r}, v10, v{D1+r}")
    for r in range(8): a(f"v_cvt_pk_bf16_f32 v{XR+r}, v{D1+2*r}, v{D1+2*r+1}")
    a(f"""
    buffer_store_dwordx4 {vr(XR,4)}, v11, s[{WS}:{WS+3}], s43 offen
    buffer_store_dwordx4 {vr(XR+4,4)}, v11, s[{WS}:{WS+3}], s43 offen offset:128
    s_cmp_ge_u32 s{sW}, 2
    s_cbranch_scc1 L1_end
    v_lshlrev_b32 v9, 4, v2
    s_lshl_b32 s46, s46, 10
    s_add_u32 s46, s46, {WS_WO}
    v_lshl_or_b32 v{WOD}, v{WOD+1}, 16, v{WOD}
    v_lshl_or_b32 v{WOD+1}, v{WOD+3}, 16, v{WOD+2}
    v_lshl_or_b32 v{WOD+2}, v{WOD+5}, 16, v{WOD+4}
    v_lshl_or_b32 v{WOD+3}, v{WOD+7}, 16, v{WOD+6}
    buffer_store_dwordx4 {vr(WOD,4)}, v9, s[{WS}:{WS+3}], s46 offen
    s_endpgm
    """)
    a(f"""
    L1_kv:
    s_cmp_ge_u32 s{sCG}, 2
    s_cbranch_scc1 L1_end
    v_lshlrev_b32 v{VX}, 4, v2
    """)
    for kc in range(4):
        a(f"s_mov_b32 s51, {kc*4096}\ns_mov_b32 m0, {131072 + kc*4096}\ns_nop 0")
        for i in range(4): a(f"buffer_load_dwordx4 v{VX}, s[{WK}:{WK+3}], s51 offen offset:{i*1024} lds")
        a(f"s_mov_b32 m0, {147456 + kc*4096}\ns_nop 0")
        for i in range(4): a(f"buffer_load_dwordx4 v{VX}, s[{WV}:{WV+3}], s51 offen offset:{i*1024} lds")
    xaddr(sCG)
    a(f"""
    v_lshrrev_b32 v9, 2, v3
    v_lshl_add_u32 v10, v6, 3, v9
    v_lshlrev_b32 v10, 5, v10
    v_and_b32 v11, 1, v4
    v_lshl_add_u32 v10, v11, 14, v10
    v_and_b32 v11, 3, v3
    v_lshl_add_u32 v10, v11, 3, v10
    v_add_u32 v{WA}, 0x20000, v10
    """)
    mainloop(True)
    stats(True)
    a(f"""
    v_lshlrev_b32 v11, 2, v5
    v_add_u32 v11, 0x20000, v11
    ds_write_b32 v11, v10
    v_lshlrev_b32 v12, 4, v6
    v_add_u32 v12, 0x20000, v12
    s_waitcnt lgkmcnt(0)
    ds_read_b128 {vr(XR,4)}, v12 offset:0
    ds_read_b128 {vr(XR+4,4)}, v12 offset:32
    ds_read_b128 {vr(XR+8,4)}, v12 offset:64
    ds_read_b128 {vr(XR+12,4)}, v12 offset:96
    s_lshl_b32 s43, s{sTG}, 1
    s_add_u32 s43, s43, s{sCG}
    s_mul_i32 s43, s43, {TILE}
    s_add_u32 s43, s43, {WS_KV}
    s_nop 4
    """)
    for r in range(8): a(f"v_mul_f32 v{D1+r}, v10, v{D1+r}")
    for r in range(4): a(f"v_cvt_pk_bf16_f32 v{WR+r}, v{D1+2*r}, v{D1+2*r+1}")
    a(f"buffer_store_dwordx4 {vr(WR,4)}, v{VX}, s[{WS}:{WS+3}], s43 offen")
    a("s_waitcnt lgkmcnt(0)")
    for r in range(16): a(f"v_mul_f32 v{D2+r}, v{XR+r}, v{D2+r}")
    for r in range(8): a(f"v_cvt_pk_bf16_f32 v{WR+4+r}, v{D2+2*r}, v{D2+2*r+1}")
    a(f"""
    v_cmp_eq_u32 vcc, 0, v2
    v_lshlrev_b32 v11, 8, v6
    v_lshl_add_u32 v11, v3, 4, v11
    v_cndmask_b32 v12, 0, v{ONES}, vcc
    v_cmp_gt_u32 vcc, 2, v2
    v_lshlrev_b32 v13, 4, v2
    v_add_u32 v13, 512, v13
    v_cndmask_b32 v11, v11, v13, vcc
    """)
    for r in range(8): a(f"v_cndmask_b32 v{WR+4+r}, v{WR+4+r}, v12, vcc")
    a(f"""
    s_mov_b32 s44, 0xffff0003
    s_mov_b32 s45, 0xffff0000
    s_mov_b64 exec, s[44:45]
    buffer_store_dwordx4 {vr(WR+4,4)}, v11, s[{WS}:{WS+3}], s43 offen offset:1024
    buffer_store_dwordx4 {vr(WR+8,4)}, v11, s[{WS}:{WS+3}], s43 offen offset:{1024+544}
    L1_end:
    s_endpgm
    """)
    return desc("proj_kernel", 120, 64)

KV_PAD = 139264
OB = KV_PAD
RED = OB + 8 * 1040
K2_LDS = RED + 1024
def k2(a):
    X, WR_, OUT, WS = 16, 20, 24, 28
    sW, sIT, sMODE, sN = 40, 41, 42, 43
    Q, C, KF, VF, S, P, O = 8, 12, 28, 36, 52, 84, 92
    KA, VA, KA0, VA0, M = 108, 109, 110, 111, 112
    XRES, WRV = 116, 120
    LN16 = 113
    WO = 128
    head(a, "attn_kernel")
    a(f"""
    s_cmp_ge_u32 s2, 256
    s_cbranch_scc1 L2_end
    s_load_dwordx2 s[4:5], s[0:1], 0
    s_load_dwordx2 s[6:7], s[0:1], 48
    s_load_dwordx2 s[8:9], s[0:1], 80
    s_load_dwordx2 s[10:11], s[0:1], 96
    v_lshrrev_b32 v1, 6, v0
    v_and_b32 v2, 63, v0
    v_readfirstlane_b32 s{sW}, v1
    v_lshlrev_b32 v{LN16}, 4, v2
    v_and_b32 v5, 31, v2
    v_lshrrev_b32 v6, 5, v2
    s_lshl_b32 s44, s2, 13
    s_lshl_b32 s45, s{sW}, 10
    s_add_u32 s46, s44, s45
    s_add_u32 s47, s45, {WS_KV}
    s_waitcnt lgkmcnt(0)
    """)
    srd(a, WS, 10, WS_SIZE)
    a(f"buffer_load_dwordx4 {vr(Q,4)}, v{LN16}, s[{WS}:{WS+3}], s46 offen")
    for i in range(17):
        a(f"s_add_u32 m0, s45, {i*8192}\ns_add_u32 s48, s47, {i*8192}\nbuffer_load_dwordx4 v{LN16}, s[{WS}:{WS+3}], s48 offen lds")
    srd(a, X, 4, 2 << 20); srd(a, WR_, 6, 1024); srd(a, OUT, 8, 2 << 20)
    a(f"""
    v_lshlrev_b32 v3, 8, v6
    v_lshl_add_u32 v3, v5, 4, v3
    v_and_b32 v4, 27, v5
    v_cmp_eq_u32 vcc, 16, v4
    v_mov_b32 v4, 528
    v_mov_b32 v7, 512
    v_cndmask_b32 v4, v4, v7, vcc
    v_cmp_gt_u32 vcc, 16, v5
    v_mov_b32 v{KA0}, v{LN16}
    s_mov_b32 s{sMODE}, 0
    v_cndmask_b32 v3, v4, v3, vcc
    v_add_u32 v{VA0}, 1024, v3
    s_mov_b32 s{sN}, 2
    v_lshrrev_b32 v3, 3, v2
    v_lshlrev_b32 v3, 4, v3
    s_lshl_b32 s49, s{sW}, 7
    v_add_u32 v125, s49, v3
    v_and_b32 v4, 7, v2
    v_lshl_add_u32 v124, v4, 10, v125
    s_waitcnt vmcnt(14)
    s_barrier
    L2_max:
    v_mov_b32 v{KA}, v{KA0}
    v_mov_b32 v{M}, 0xff7fffff
    L2_maxloop:
    ds_read_b128 {vr(KF,4)}, v{KA}
    v_add_u32 v{KA}, {TILE}, v{KA}
    s_waitcnt lgkmcnt(0)
    {MF32} {vr(S,16)}, {vr(KF,4)}, {vr(Q,4)}, 0
    s_sub_u32 s{sN}, s{sN}, 1
    s_nop 10
    """)
    for r in range(8): a(f"v_max3_f32 v{M}, v{S+2*r}, v{S+2*r+1}, v{M}")
    a(f"""
    s_cmp_lg_u32 s{sN}, 0
    s_cbranch_scc1 L2_maxloop
    ds_read_b128 {vr(KF,4)}, v{KA0}
    ds_read_b128 {vr(KF+4,4)}, v{KA0} offset:{TILE}
    ds_read_b128 {vr(VF,4)}, v{VA0}
    ds_read_b128 {vr(VF+4,4)}, v{VA0} offset:544
    v_mov_b32 v3, v{M}
    s_cmp_eq_u32 s{sMODE}, 0
    s_cselect_b32 s48, {hex(f2u(SHIFT))}, 0
    v_permlane32_swap_b32 v{M}, v3
    v_max_f32 v{M}, v{M}, v3
    v_add_f32 v{M}, s48, v{M}
    """)
    for r in range(16): a(f"v_sub_f32 v{C+r}, 0, v{M}")
    for r in range(16): a(f"v_mov_b32 v{O+r}, 0")
    for r in range(4): a(f"v_mov_b32 v{P+4+r}, 0\nv_mov_b32 v{VF+12+r}, 0")
    a(f"""
    v_mov_b32 v{KA}, v{KA0}
    v_mov_b32 v{VA}, v{VA0}
    s_mov_b32 s{sIT}, 0
    s_waitcnt lgkmcnt(0)
    {MF32} {vr(S,16)}, {vr(KF,4)}, {vr(Q,4)}, {vr(C,16)}
    s_nop 8
    L2_loop:
    """)
    for tt in range(8):
        cur, nxt = tt & 1, (tt + 1) & 1
        Sc, Sn = S + 16*cur, S + 16*nxt
        e = [f"v_exp_f32 v{Sc+i}, v{Sc+i}" for i in range(16)]
        c = [f"v_cvt_pk_bf16_f32 v{P+i}, v{Sc+2*i}, v{Sc+2*i+1}" for i in range(8)]
        a("s_waitcnt lgkmcnt(0)")
        a(f"{MF32} {vr(Sn,16)}, {vr(KF+4*nxt,4)}, {vr(Q,4)}, {vr(C,16)}")
        a(f"ds_read_b128 {vr(KF+4*cur,4)}, v{KA} offset:{(tt+2)*TILE}")
        for x in e[0:6]: a(x)
        a(f"{MF32} {vr(O,16)}, {vr(VF+8*nxt+4,4)}, {vr(P+4,4)}, {vr(O,16)}")
        a(f"ds_read_b128 {vr(VF+8*nxt,4)}, v{VA} offset:{(tt+1)*TILE}")
        a(f"ds_read_b128 {vr(VF+8*nxt+4,4)}, v{VA} offset:{(tt+1)*TILE+544}")
        for x in e[6:8] + c[0:4] + e[8:10]: a(x)
        a(f"{MF32} {vr(O,16)}, {vr(VF+8*cur,4)}, {vr(P,4)}, {vr(O,16)}")
        for x in e[10:16] + c[4:8]: a(x)
    a(f"""
    v_add_u32 v{KA}, {8*TILE}, v{KA}
    v_add_u32 v{VA}, {8*TILE}, v{VA}
    s_add_u32 s{sIT}, s{sIT}, 1
    s_or_b32 s48, s{sIT}, s{sMODE}
    s_cmp_eq_u32 s48, 1
    s_cbranch_scc1 L2_fill
    s_cmp_lt_u32 s{sIT}, 8
    s_cbranch_scc1 L2_loop
    s_branch L2_done
    L2_fill:
    s_waitcnt vmcnt(0)
    s_barrier
    s_lshl_b32 s48, s{sW}, 16
    s_add_u32 s48, s48, {WS_WO}
    """)
    for ks in range(8):
        if ks: a(f"s_add_u32 s48, s48, 4096")
        for i in range(4):
            a(f"buffer_load_dwordx4 {vr(WO + 16*ks + 4*i, 4)}, v{LN16}, s[{WS}:{WS+3}], s48 offen offset:{i*1024}")
    a(f"""
    buffer_load_dwordx4 {vr(XRES,4)}, v124, s[{X}:{X+3}], s44 offen
    buffer_load_dwordx4 {vr(WRV,4)}, v125, s[{WR_}:{WR_+3}], 0 offen
    s_branch L2_loop
    L2_done:
    {MF32} {vr(O,16)}, {vr(VF+12,4)}, {vr(P+4,4)}, {vr(O,16)}
    s_cmp_lg_u32 s{sMODE}, 0
    s_waitcnt lgkmcnt(0)
    s_nop 9
    s_cbranch_scc1 L2_epi
    v_mul_f32 v3, 0, v{O}
    """)
    for r in range(1, 8): a(f"v_fma_f32 v3, v{O+r}, 0, v3")
    a(f"""
    s_mov_b32 s48, {hex(f2u(2.0**110))}
    v_add_f32 v3, v3, v{O+8}
    v_cmp_ngt_f32 vcc, s48, v3
    s_cmp_eq_u64 vcc, 0
    s_cbranch_scc1 L2_epi
    s_mov_b32 s{sMODE}, 2
    s_mov_b32 s{sN}, 64
    s_branch L2_max
    L2_epi:
    """)
    a(f"s_lshl_b32 s48, s{sW}, 16\ns_add_u32 s48, s48, {WS_WO + 8*4096}")
    W2 = 12
    for ks in range(8, 13):
        if ks > 8: a(f"s_add_u32 s48, s48, 4096")
        for i in range(4):
            a(f"buffer_load_dwordx4 {vr(W2 + 16*(ks-8) + 4*i, 4)}, v{LN16}, s[{WS}:{WS+3}], s48 offen offset:{i*1024}")
    a(f"""
    v_rcp_f32 v3, v{O+8}
    v_and_b32 v4, 7, v5
    v_mul_u32_u24 v4, 1040, v4
    v_lshrrev_b32 v7, 3, v5
    v_lshl_add_u32 v4, v7, 5, v4
    v_lshl_add_u32 v4, v6, 3, v4
    s_lshl_b32 s49, s{sW}, 7
    s_add_u32 s49, s49, {OB}
    v_add_u32 v4, s49, v4
    """)
    for r in range(8): a(f"v_mul_f32 v{O+r}, v3, v{O+r}")
    for r in range(4): a(f"v_cvt_pk_bf16_f32 v{O+r}, v{O+2*r}, v{O+2*r+1}")
    a(f"""
    ds_write_b64 v4, {vr(O,2)}
    ds_write_b64 v4, {vr(O+2,2)} offset:16
    v_and_b32 v4, 7, v2
    v_mul_u32_u24 v4, 1040, v4
    v_lshrrev_b32 v7, 4, v2
    v_lshl_add_u32 v4, v7, 4, v4
    v_add_u32 v4, {OB}, v4
    s_waitcnt lgkmcnt(0)
    s_barrier
    """)
    ACC = O
    BF = [Q, 108]
    a(f"ds_read_b128 {vr(BF[0],4)}, v4 offset:0")
    for ks in range(16):
        if ks < 15: a(f"ds_read_b128 {vr(BF[(ks+1)&1],4)}, v4 offset:{(ks+1)*64}")
        if ks < 8: base = WO + 16*ks
        elif ks < 13: base = W2 + 16*(ks-8)
        else: base = WO + 16*(ks-13)
        w = f"lgkmcnt({1 if ks < 15 else 0})"
        if ks == 0: w += " vmcnt(20)"
        elif 8 <= ks < 13: w += f" vmcnt({12 + 4*(12-ks)})"
        elif ks >= 13: w += f" vmcnt({4*(15-ks)})"
        a(f"s_waitcnt {w}")
        for i in range(4):
            cc = "0" if ks == 0 else vr(ACC+4*i, 4)
            a(f"{MF16} {vr(ACC+4*i,4)}, {vr(base+4*i,4)}, {vr(BF[ks&1],4)}, {cc}")
        if ks == 2:
            for k2_ in range(13, 16):
                a(f"s_add_u32 s48, s48, 4096")
                for i in range(4):
                    a(f"buffer_load_dwordx4 {vr(WO + 16*(k2_-13) + 4*i, 4)}, v{LN16}, s[{WS}:{WS+3}], s48 offen offset:{i*1024}")
    A8, HB, HF, T = 12, 20, 24, 32
    a(f"""
    v_and_b32 v3, 8, v2
    v_cmp_ne_u32 vcc, 0, v3
    v_mov_b32 v7, 0x3f803f80
    s_nop 5
    """)
    for j in range(8): a(f"v_cndmask_b32 v{A8+j}, v{ACC+j}, v{ACC+8+j}, vcc")
    for j in range(4): a(f"v_cvt_pk_bf16_f32 v{HB+j}, v{A8+2*j}, v{A8+2*j+1}")
    for j in range(4):
        a(f"""
        v_lshlrev_b32 v{A8+2*j}, 16, v{HB+j}
        v_and_b32 v{A8+2*j+1}, 0xffff0000, v{HB+j}
        v_lshlrev_b32 v{HF+2*j}, 16, v{XRES+j}
        v_and_b32 v{HF+2*j+1}, 0xffff0000, v{XRES+j}
        """)
    for j in range(8): a(f"v_add_f32 v{HF+j}, v{HF+j}, v{A8+j}")
    for j in range(4): a(f"v_cvt_pk_bf16_f32 v{HB+j}, v{HF+2*j}, v{HF+2*j+1}")
    a(f"s_add_u32 s49, s44, {WS_H}\nbuffer_store_dwordx4 {vr(HB,4)}, v124, s[{WS}:{WS+3}], s49 offen")
    for q in range(4): a(f"v_mov_b32 v{T+q}, 0")
    for j in range(4):
        a(f"""
        v_dot2c_f32_bf16 v{T}, v{HB+j}, v7
        v_dot2c_f32_bf16 v{T+1}, v{HB+j}, v{HB+j}
        v_dot2c_f32_bf16 v{T+2}, v{HB+j}, v{WRV+j}
        v_dot2c_f32_bf16 v{T+3}, v{WRV+j}, v7
        """)
    for j in range(4):
        a(f"v_lshlrev_b32 v{HF+2*j}, 16, v{HB+j}\nv_and_b32 v{HF+2*j+1}, 0xffff0000, v{HB+j}")
    a(f"""
    v_permlane32_swap_b32 v{T}, v{T+1}
    v_permlane32_swap_b32 v{T+2}, v{T+3}
    v_add_f32 v{T}, v{T}, v{T+1}
    v_add_f32 v{T+2}, v{T+2}, v{T+3}
    v_lshrrev_b32 v3, 4, v2
    v_and_b32 v4, 7, v2
    v_permlane16_swap_b32 v{T}, v{T+2}
    v_add_f32 v{T}, v{T}, v{T+2}
    v_lshlrev_b32 v3, 8, v3
    v_lshl_add_u32 v3, v4, 5, v3
    v_add_f32_dpp v{T}, v{T}, v{T} row_ror:8 row_mask:0xf bank_mask:0xf
    s_lshl_b32 s49, s{sW}, 2
    s_add_u32 s49, s49, {RED}
    v_add_u32 v3, s49, v3
    ds_write_b32 v3, v{T}
    v_lshlrev_b32 v4, 5, v4
    v_add_u32 v4, {RED}, v4
    s_waitcnt lgkmcnt(0)
    s_barrier
    """)
    R_ = 40
    for q in range(4):
        a(f"ds_read_b128 {vr(R_+8*q,4)}, v4 offset:{q*256}\nds_read_b128 {vr(R_+8*q+4,4)}, v4 offset:{q*256+16}")
    a("s_waitcnt lgkmcnt(0)")
    for q in range(4):
        b = R_ + 8*q
        a(f"""
        v_add_f32 v{b}, v{b}, v{b+1}
        v_add_f32 v{b+2}, v{b+2}, v{b+3}
        v_add_f32 v{b+4}, v{b+4}, v{b+5}
        v_add_f32 v{b+6}, v{b+6}, v{b+7}
        v_add_f32 v{b}, v{b}, v{b+2}
        v_add_f32 v{b+4}, v{b+4}, v{b+6}
        v_add_f32 v{b}, v{b}, v{b+4}
        """)
    s1, s3, s2, s4 = R_, R_+8, R_+16, R_+24
    ST = 76
    a(f"""
    v_mul_f32 v{ST}, {hex(f2u(1.0/512))}, v{s1}
    v_mul_f32 v{s2}, {hex(f2u(1.0/512))}, v{s2}
    v_fma_f32 v{s2}, -v{ST}, v{ST}, v{s2}
    v_max_f32 v{s2}, 0, v{s2}
    v_add_f32 v{s2}, {hex(f2u(EPS))}, v{s2}
    v_rsq_f32 v{ST+1}, v{s2}
    v_fma_f32 v{s3}, -v{ST}, v{s4}, v{s3}
    v_mul_f32 v{ST+2}, v{ST+1}, v{s3}
    """)
    for j in range(8): a(f"v_sub_f32 v{A8+j}, v{HF+j}, v{ST}")
    for j in range(8): a(f"v_mul_f32 v{A8+j}, v{A8+j}, v{ST+1}")
    for j in range(4): a(f"v_cvt_pk_bf16_f32 v{T+j}, v{A8+2*j}, v{A8+2*j+1}")
    for j in range(4):
        a(f"v_lshlrev_b32 v{A8+2*j}, 16, v{T+j}\nv_and_b32 v{A8+2*j+1}, 0xffff0000, v{T+j}")
    for j in range(8): a(f"v_add_f32 v{A8+j}, v{A8+j}, v{HF+j}")
    for j in range(4): a(f"v_cvt_pk_bf16_f32 v{T+j}, v{A8+2*j}, v{A8+2*j+1}")
    a(f"""
    buffer_store_dwordx4 {vr(T,4)}, v124, s[{OUT}:{OUT+3}], s44 offen
    s_cmp_lg_u32 s{sW}, 0
    s_cbranch_scc1 L2_end
    v_ashrrev_i32 v3, 31, v{ST+2}
    v_or_b32 v3, 0x80000000, v3
    v_xor_b32 v3, v3, v{ST+2}
    v_and_b32 v3, 0xfffff800, v3
    s_lshl_b32 s48, s2, 3
    v_add_u32 v4, s48, v2
    v_sub_u32 v7, 2047, v4
    v_or_b32 v{ST+3}, v3, v7
    v_lshlrev_b32 v3, 4, v4
    v_lshlrev_b32 v4, 2, v4
    s_mov_b32 s48, {WS_ST}
    s_mov_b32 s49, {WS_KEY}
    s_mov_b64 exec, 0xff
    buffer_store_dwordx4 {vr(ST,4)}, v3, s[{WS}:{WS+3}], s48 offen
    buffer_store_dword v{ST+3}, v4, s[{WS}:{WS+3}], s49 offen
    L2_end:
    s_endpgm
    """)
    return desc("attn_kernel", 256, 64)

def k3(a):
    WG_, WU_, WD_, OUT, WS = 16, 20, 24, 28, 32
    sW = 40
    KEY = 16
    head(a, "ffn_kernel")
    a(f"""
    s_cmp_ge_u32 s2, 240
    s_cbranch_scc1 L3_end
    s_load_dwordx4 s[4:7], s[0:1], 56
    s_load_dwordx4 s[8:11], s[0:1], 72
    s_load_dwordx2 s[12:13], s[0:1], 96
    v_lshrrev_b32 v1, 6, v0
    v_and_b32 v2, 63, v0
    v_readfirstlane_b32 s{sW}, v1
    v_lshlrev_b32 v3, 4, v2
    s_waitcnt lgkmcnt(0)
    """)
    srd(a, WS, 12, WS_SIZE)
    a(f"s_mov_b32 s41, {WS_KEY}\ns_mov_b32 s42, {WS_KEY + 4096}")
    for i in range(8):
        a(f"buffer_load_dwordx4 {vr(KEY+4*i,4)}, v3, s[{WS}:{WS+3}], s{41 + i//4} offen offset:{(i&3)*1024}")
    srd(a, WG_, 4, 512*2752); srd(a, WU_, 6, 512*2752); srd(a, WD_, 8, 1376*1024); srd(a, OUT, 10, 2 << 20)
    def top2(nwait):
        a(f"s_waitcnt vmcnt({nwait})")
        a(f"v_max_u32 v4, v{KEY}, v{KEY+1}\nv_min_u32 v5, v{KEY}, v{KEY+1}")
        for i in range(2, 32):
            a(f"v_med3_u32 v5, v4, v5, v{KEY+i}\nv_max_u32 v4, v4, v{KEY+i}")
        for dpp in ("quad_perm:[1,0,3,2]", "quad_perm:[2,3,0,1]", "row_half_mirror", "row_mirror"):
            a(f"""
            s_nop 1
            v_mov_b32_dpp v6, v4 {dpp} row_mask:0xf bank_mask:0xf
            v_mov_b32_dpp v7, v5 {dpp} row_mask:0xf bank_mask:0xf
            v_med3_u32 v5, v4, v5, v6
            v_max_u32 v4, v4, v6
            v_max_u32 v5, v5, v7
            """)
        a("s_nop 0")
        for q in range(4):
            a(f"v_readlane_b32 s{48+2*q}, v4, {16*q}\nv_readlane_b32 s{49+2*q}, v5, {16*q}")
        a("s_nop 3")
        for q in range(1, 4):
            a(f"""
            s_min_u32 s56, s48, s{48+2*q}
            s_max_u32 s48, s48, s{48+2*q}
            s_max_u32 s49, s49, s{49+2*q}
            s_max_u32 s49, s49, s56
            """)
        a(f"""
        s_and_b32 s46, s48, 0x7ff
        s_and_b32 s47, s49, 0x7ff
        s_sub_u32 s46, 2047, s46
        s_sub_u32 s47, 2047, s47
        """)
    a("s_cmp_ge_u32 s2, 176\ns_cbranch_scc1 L3_st2")
    a(f"""
    s_and_b32 s43, s2, 7
    s_mul_i32 s43, s43, 22
    s_lshr_b32 s44, s2, 3
    s_add_u32 s43, s43, s44
    s_cmp_ge_u32 s43, 172
    s_cbranch_scc1 L3_end
    v_mul_u32_u24 v8, 2752, v2
    s_mul_i32 s44, s{sW}, {128*2752}
    s_lshl_b32 s45, s43, 4
    s_add_u32 s44, s44, s45
    s_add_u32 s45, s44, {64*2752}
    s_lshl_b32 s57, s{sW}, 12
    s_mov_b32 m0, s57
    s_nop 0
    buffer_load_dwordx4 v8, s[{WG_}:{WG_+3}], s44 offen lds
    s_add_u32 m0, s57, 1024
    s_nop 0
    buffer_load_dwordx4 v8, s[{WG_}:{WG_+3}], s45 offen lds
    s_add_u32 m0, s57, 2048
    s_nop 0
    buffer_load_dwordx4 v8, s[{WU_}:{WU_+3}], s44 offen lds
    s_add_u32 m0, s57, 3072
    s_nop 0
    buffer_load_dwordx4 v8, s[{WU_}:{WU_+3}], s45 offen lds
    """)
    top2(4)
    HR, STT, AF, BFR, D = 16, 32, 36, 52, 68
    a(f"""
    v_and_b32 v4, 1, v2
    v_cmp_eq_u32 vcc, 1, v4
    v_mov_b32 v5, s46
    v_mov_b32 v6, s47
    v_cndmask_b32 v5, v5, v6, vcc
    v_lshrrev_b32 v7, 4, v2
    v_lshlrev_b32 v6, 10, v5
    v_lshl_add_u32 v6, v7, 4, v6
    v_lshlrev_b32 v5, 4, v5
    s_lshl_b32 s44, s{sW}, 8
    s_add_u32 s44, s44, {WS_H}
    s_mov_b32 s45, {WS_ST}
    buffer_load_dwordx4 {vr(STT,4)}, v5, s[{WS}:{WS+3}], s45 offen
    """)
    for ks in range(4):
        a(f"buffer_load_dwordx4 {vr(HR+4*ks,4)}, v6, s[{WS}:{WS+3}], s44 offen offset:{ks*64}")
    a(f"""
    v_and_b32 v9, 15, v2
    v_lshrrev_b32 v10, 2, v9
    v_lshl_add_u32 v10, v7, 3, v10
    v_lshlrev_b32 v10, 4, v10
    v_and_b32 v11, 2, v9
    v_lshl_add_u32 v10, v11, 10, v10
    v_and_b32 v11, 1, v9
    v_lshl_add_u32 v10, v11, 3, v10
    v_add_u32 v10, s57, v10
    s_waitcnt vmcnt(5)
    """)
    for ks in range(4):
        a(f"ds_read_b64_tr_b16 {vr(AF+4*ks,2)}, v10 offset:{ks*512}\nds_read_b64_tr_b16 {vr(AF+4*ks+2,2)}, v10 offset:{ks*512+64}")
    a("s_waitcnt vmcnt(0)")
    for q in range(16):
        a(f"""
        v_lshlrev_b32 v12, 16, v{HR+q}
        v_and_b32 v13, 0xffff0000, v{HR+q}
        v_sub_f32 v12, v12, v{STT}
        v_sub_f32 v13, v13, v{STT}
        v_mul_f32 v12, v12, v{STT+1}
        v_mul_f32 v13, v13, v{STT+1}
        v_cvt_pk_bf16_f32 v{BFR+q}, v12, v13
        """)
    a("s_waitcnt lgkmcnt(0)\ns_nop 0")
    for ks in range(4):
        cc = "0" if ks == 0 else vr(D, 4)
        a(f"{MF16} {vr(D,4)}, {vr(AF+4*ks,4)}, {vr(BFR+4*ks,4)}, {cc}")
    RD = 16384
    a(f"""
    v_lshlrev_b32 v11, 6, v4
    v_lshl_add_u32 v11, v7, 4, v11
    s_lshl_b32 s44, s{sW}, 7
    s_add_u32 s44, s44, {RD}
    v_add_u32 v11, s44, v11
    s_nop 3
    ds_write_b128 v11, {vr(D,4)}
    s_waitcnt lgkmcnt(0)
    s_barrier
    s_cmp_lg_u32 s{sW}, 0
    s_cbranch_scc1 L3_end
    v_lshrrev_b32 v9, 1, v2
    v_and_b32 v9, 7, v9
    v_lshlrev_b32 v11, 6, v4
    v_lshl_add_u32 v11, v9, 2, v11
    v_add_u32 v11, {RD}, v11
    """)
    for w in range(4):
        a(f"ds_read2_b32 {vr(16+2*w,2)}, v11 offset0:{w*32} offset1:{w*32+8}")
    a(f"""
    s_waitcnt lgkmcnt(0)
    v_add_f32 v16, v16, v18
    v_add_f32 v20, v20, v22
    v_add_f32 v17, v17, v19
    v_add_f32 v21, v21, v23
    v_add_f32 v16, v16, v20
    v_add_f32 v17, v17, v21
    v_cvt_pk_bf16_f32 v16, v16, v17
    v_lshlrev_b32 v18, 16, v16
    v_and_b32 v17, 0xffff0000, v16
    v_mul_f32 v19, {hex(f2u(-1.4426950408889634))}, v18
    v_exp_f32 v19, v19
    s_nop 0
    v_add_f32 v19, 1.0, v19
    v_rcp_f32 v19, v19
    s_nop 0
    v_mul_f32 v18, v18, v19
    v_cvt_pk_bf16_f32 v18, v18, v18
    v_lshlrev_b32 v18, 16, v18
    v_mul_f32 v18, v18, v17
    s_nop 1
    v_mov_b32_dpp v19, v18 quad_perm:[1,1,3,3] row_mask:0xf bank_mask:0xf
    v_cvt_pk_bf16_f32 v20, v18, v19
    v_mov_b32 v21, 1
    v_lshlrev_b32 v9, 3, v9
    s_lshl_b32 s44, s43, 6
    s_add_u32 s44, s44, {WS_ACT}
    s_mov_b64 exec, 0x5555
    buffer_store_dwordx2 v[20:21], v9, s[{WS}:{WS+3}], s44 offen sc0 sc1
    s_endpgm
    """)
    WDR, G, Y = 48, 72, 84
    a(f"""
    L3_st2:
    s_sub_u32 s43, s2, 176
    s_and_b32 s44, s43, 7
    s_lshl_b32 s44, s44, 3
    s_lshr_b32 s43, s43, 3
    s_add_u32 s43, s43, s44
    s_lshl_b32 s44, s43, 4
    v_lshlrev_b32 v8, 10, v0
    """)
    for i in range(6):
        if i: a(f"s_add_u32 s44, s44, {256*1024}")
        a(f"buffer_load_dwordx4 {vr(WDR+4*i,4)}, v8, s[{WD_}:{WD_+3}], s44 offen")
    top2(6)
    a(f"""
    v_and_b32 v4, 8, v2
    v_cmp_ne_u32 vcc, 0, v4
    v_mov_b32 v5, s46
    v_mov_b32 v6, s47
    v_cndmask_b32 v5, v5, v6, vcc
    v_and_b32 v7, 7, v2
    v_lshlrev_b32 v6, 10, v5
    v_lshl_add_u32 v6, v7, 1, v6
    s_lshl_b32 s44, s43, 4
    v_add_u32 v6, s44, v6
    v_lshlrev_b32 v5, 4, v5
    s_mov_b32 s44, {WS_H}
    s_mov_b32 s45, {WS_ST}
    buffer_load_dwordx4 v[16:19], v5, s[{WS}:{WS+3}], s45 offen
    buffer_load_ushort v20, v6, s[{WS}:{WS+3}], s44 offen
    v_lshlrev_b32 v9, 3, v0
    s_mov_b32 s44, {WS_ACT}
    s_mov_b32 s45, {WS_ACT + 4096}
    s_mov_b32 s58, {WS_ACT + 8192}
    s_mov_b32 s59, 96
    s_mov_b32 s62, 0
    v_cmp_gt_u32 s[60:61], s59, v0
    L3_poll:
    """)
    for i in range(6):
        so = ("s44", "s45", "s58")[i // 2]
        a(f"buffer_load_dwordx2 {vr(G+2*i,2)}, v9, s[{WS}:{WS+3}], {so} offen offset:{(i&1)*2048} sc1")
    a(f"""
    s_waitcnt vmcnt(0)
    v_cndmask_b32 v{G+11}, 1, v{G+11}, s[60:61]
    v_and_b32 v10, v{G+1}, v{G+3}
    v_and_b32 v11, v{G+5}, v{G+7}
    v_and_b32 v10, v10, v{G+9}
    v_and_b32 v11, v11, v{G+11}
    v_and_b32 v10, v10, v11
    v_cmp_ne_u32 vcc, 1, v10
    s_cmp_eq_u64 vcc, 0
    s_cbranch_scc1 L3_go
    s_sleep 1
    s_add_u32 s62, s62, 1
    s_cmp_lt_u32 s62, 0x40000
    s_cbranch_scc1 L3_poll
    L3_go:
    v_cndmask_b32 v{G+10}, 0, v{G+10}, s[60:61]
    """)
    for i in range(6):
        a(f"v_lshlrev_b32 v10, 16, v{G+2*i}\nv_and_b32 v11, 0xffff0000, v{G+2*i}")
        for q in range(4):
            a(f"v_lshlrev_b32 v12, 16, v{WDR+4*i+q}\nv_and_b32 v13, 0xffff0000, v{WDR+4*i+q}")
            if i == 0:
                a(f"""
                v_mul_f32 v{Y+2*q}, v10, v12
                v_mul_f32 v{Y+2*q+1}, v10, v13
                v_mul_f32 v{Y+8+2*q}, v11, v12
                v_mul_f32 v{Y+8+2*q+1}, v11, v13
                """)
            else:
                a(f"""
                v_fmac_f32 v{Y+2*q}, v10, v12
                v_fmac_f32 v{Y+2*q+1}, v10, v13
                v_fmac_f32 v{Y+8+2*q}, v11, v12
                v_fmac_f32 v{Y+8+2*q+1}, v11, v13
                """)
    a("s_nop 1")
    for i in range(8): a(f"v_permlane32_swap_b32 v{Y+i}, v{Y+8+i}")
    for i in range(8): a(f"v_add_f32 v{Y+i}, v{Y+i}, v{Y+8+i}")
    a("s_nop 1")
    for i in range(4): a(f"v_permlane16_swap_b32 v{Y+i}, v{Y+4+i}")
    for i in range(4): a(f"v_add_f32 v{Y+i}, v{Y+i}, v{Y+4+i}")
    for rot in (8, 4, 2, 1):
        for i in range(4): a(f"v_add_f32_dpp v{Y+i}, v{Y+i}, v{Y+i} row_ror:{rot} row_mask:0xf bank_mask:0xf")
    a(f"""
    v_lshrrev_b32 v10, 4, v2
    v_lshlrev_b32 v10, 4, v10
    s_lshl_b32 s44, s{sW}, 6
    v_add_u32 v10, s44, v10
    ds_write_b128 v10, {vr(Y,4)}
    s_waitcnt lgkmcnt(0)
    s_barrier
    s_cmp_lg_u32 s{sW}, 0
    s_cbranch_scc1 L3_end
    v_and_b32 v10, 15, v2
    v_lshlrev_b32 v10, 2, v10
    ds_read2_b32 v[22:23], v10 offset0:0 offset1:16
    ds_read2_b32 v[24:25], v10 offset0:32 offset1:48
    v_cvt_pk_bf16_f32 v12, v18, v18
    v_lshlrev_b32 v12, 16, v12
    v_mul_f32 v12, {hex(f2u(-1.4426950408889634))}, v12
    v_exp_f32 v12, v12
    v_lshlrev_b32 v20, 16, v20
    v_add_f32 v12, 1.0, v12
    v_rcp_f32 v12, v12
    v_sub_f32 v13, v20, v16
    v_mul_f32 v13, v13, v17
    v_cvt_pk_bf16_f32 v12, v12, v13
    v_lshlrev_b32 v14, 16, v12
    v_and_b32 v13, 0xffff0000, v12
    s_waitcnt lgkmcnt(0)
    v_add_f32 v22, v22, v23
    v_add_f32 v24, v24, v25
    v_add_f32 v22, v22, v24
    v_cvt_pk_bf16_f32 v22, v22, v22
    v_lshlrev_b32 v22, 16, v22
    v_mul_f32 v22, v22, v14
    v_cvt_pk_bf16_f32 v22, v22, v22
    v_lshlrev_b32 v22, 16, v22
    v_add_f32 v22, v22, v13
    v_cvt_pk_bf16_f32 v22, v22, v22
    v_lshlrev_b32 v22, 16, v22
    v_add_f32 v22, v22, v20
    v_cvt_pk_bf16_f32 v22, v22, v22
    s_mov_b64 exec, 0xffff
    buffer_store_short v22, v6, s[{OUT}:{OUT+3}], 0 offen
    L3_end:
    s_endpgm
    """)
    return desc("ffn_kernel", 104, 64)

def main():
    hdr = open("sequential_preLN__grouped_kv_mqa__moe_arch_mod__prompt.s.ref").read().split("\n")
    top = [l for l in hdr if l.startswith(";") and "@launch" not in l and "Override" not in l and "grid=ceil" not in l]
    a = Asm()
    d = k1(a) + k2(a) + k3(a)
    out = "\n".join(top) + "\n"
    out += "; @launch kernel=proj_kernel grid=(256,1,1) block=(320,1,1) lds=163840\n"
    out += f"; @launch kernel=attn_kernel grid=(256,1,1) block=(512,1,1) lds={K2_LDS}\n"
    out += "; @launch kernel=ffn_kernel grid=(240,1,1) block=(256,1,1) lds=17408\n"
    out += '.amdgcn_target "amdgcn-amd-amdhsa--gfx950"\n.text\n' + a.text() + '.section .rodata,"a"\n' + d
    sys.stdout.write(out)
main()
```

```python
import sys, struct
def f2u(x): return struct.unpack("<I", struct.pack("<f", x))[0]

WS_Q   = 0
WS_KV  = 2 << 20
WS_WO  = 3 << 20
WS_H   = 4 << 20
WS_KEY = 6 << 20
WS_ST  = (6 << 20) + 0x10000
WS_ACT = (6 << 20) + 0x20000
WS_SIZE = 8 << 20
TILE = 2112
QSCALE = 0.25 * 1.4426950408889634
EPS = 1e-5
SHIFT = 96.0
for _x in sys.argv:
    if _x.startswith('--shift='): SHIFT = float(_x.split('=')[1])

class Asm:
    def __init__(self): self.l = []
    def __call__(self, s):
        for x in s.split("\n"):
            x = x.strip()
            if x.startswith("@S"): stamp(self, int(x[2:])); continue
            if x.startswith("@D"): dump(self, *[int(t) for t in x[2:].split()]); continue
            if x: self.l.append(("" if x.endswith(":") else "    ") + x)
    def text(self): return "\n".join(self.l) + "\n"

def srd(a, d, p, size):
    a(f"s_mov_b32 s{d}, s{p}\ns_and_b32 s{d+1}, s{p+1}, 0xffff\ns_mov_b32 s{d+2}, {size}\ns_mov_b32 s{d+3}, 0x20000")
def vr(b, n): return f"v[{b}:{b+n-1}]"
def head(a, name):
    a(f".globl {name}\n.p2align 8\n.type {name},@function\n{name}:")
def desc(name, nv, ns):
    return f""".p2align 6
.amdhsa_kernel {name}
  .amdhsa_next_free_vgpr {nv}
  .amdhsa_next_free_sgpr {100 if DIAG else ns}
  .amdhsa_accum_offset {(nv+3)//4*4}
  .amdhsa_group_segment_fixed_size 0
  .amdhsa_kernarg_size 104
  .amdhsa_user_sgpr_count 2
  .amdhsa_user_sgpr_kernarg_segment_ptr 1
  .amdhsa_system_sgpr_workgroup_id_x 1
.end_amdhsa_kernel
"""
DIAG = "--diag" in sys.argv
WS_DIAG = 16 << 20
if DIAG: WS_SIZE = 32 << 20
def stamp(a, i):
    if DIAG: a(f"{'s_memtime' if i >= 13 else 's_memrealtime'} s[{70+2*i}:{71+2*i}]\ns_waitcnt lgkmcnt(0)")
DIAG2 = "--diag2" in sys.argv
D2SEL = {0: [(0, 1), (2, 0), (8, 0)], 1: [(0, 1), (1, 0), (3, 0), (4, 0), (8, 0), (10, 0), (12, 0)], 2: [(0, 1), (1, 0), (3, 0), (5, 0), (6, 0), (7, 0)]}
_dl = [0]
def dump(a, kidx, n, WS, sW):
    if not DIAG: return
    stamp(a, min(n - 1, 12))
    if DIAG2:
        _dl[0] += 1
        base = sum(len(D2SEL[k]) for k in range(kidx))
        a(f"s_and_b32 s66, s2, 15\ns_cmp_lg_u32 s66, 0\ns_cbranch_scc1 LD_{_dl[0]}\ns_load_dwordx2 s[66:67], s[0:1], 88\ns_mov_b64 exec, 1\nv_mov_b32 v1, 0\ns_waitcnt lgkmcnt(0)\ns_add_u32 s66, s66, {512*(2-kidx)}\ns_addc_u32 s67, s67, 0")
        for j, (i, inv) in enumerate(D2SEL[kidx]):
            a(f"v_mov_b32 v0, s{70+2*i}")
            if inv: a("v_not_b32 v0, v0")
            a(f"global_atomic_umax v1, v0, s[66:67] offset:{4*(base+j)}\ns_nop 1")
        a(f"LD_{_dl[0]}:")
        return
    a(f"s_mov_b64 exec, 1\ns_lshl_b32 s66, s2, 4\ns_add_u32 s66, s66, s{sW}\ns_lshl_b32 s66, s66, 6\ns_add_u32 s66, s66, {WS_DIAG + kidx * (1 << 20)}\nv_mov_b32 v1, 0")
    for i in range(n):
        a(f"v_mov_b32 v0, s{70+2*i}\nbuffer_store_dword v0, v1, s[{WS}:{WS+3}], s66 offen offset:{4*i}")
MF32 = "v_mfma_f32_32x32x16_bf16"
MF16 = "v_mfma_f32_16x16x32_bf16"

def k1(a):
    X, WQ, WK, WV, WO, WS = 16, 20, 24, 28, 32, 36
    sW, sTG, sCG = 40, 41, 42
    D1, D2 = 16, 96
    XR, WR = 32, 48
    XA, WA = 64, 72
    SX, SXX, CS, ONES = 73, 74, 75, 76
    WOD = 112
    VX, VW = 84, 88
    head(a, "proj_kernel")
    a(f"""
    s_cmp_ge_u32 s2, 256
    s_cbranch_scc1 L1_end
    @S0
    s_load_dwordx8 s[4:11], s[0:1], 0
    s_load_dwordx2 s[12:13], s[0:1], 32
    s_load_dwordx2 s[14:15], s[0:1], 96
    v_lshrrev_b32 v1, 6, v0
    v_and_b32 v2, 63, v0
    v_readfirstlane_b32 s{sW}, v1
    s_and_b32 s43, s2, 7
    s_lshr_b32 s44, s2, 3
    s_and_b32 s45, s44, 3
    s_lshl_b32 s{sTG}, s43, 2
    s_add_u32 s{sTG}, s{sTG}, s45
    s_lshr_b32 s{sCG}, s44, 2
    v_and_b32 v3, 15, v2
    v_lshrrev_b32 v4, 4, v2
    v_and_b32 v5, 31, v2
    v_lshrrev_b32 v6, 5, v2
    v_mov_b32 v{ONES}, 0x3f803f80
    v_mov_b32 v{SX}, 0
    v_mov_b32 v{SXX}, 0
    v_mov_b32 v{CS}, 0
    """)
    a("s_waitcnt lgkmcnt(0)\n@S1")
    srd(a, X, 4, 2 << 20); srd(a, WQ, 6, 512 << 10); srd(a, WK, 8, 16 << 10); srd(a, WV, 10, 16 << 10)
    srd(a, WO, 12, 512 << 10); srd(a, WS, 14, WS_SIZE)
    a(f"s_cmp_eq_u32 s{sW}, 4\ns_cbranch_scc1 L1_kv")
    a(f"""
    s_and_b32 s43, s{sW}, 1
    s_lshl_b32 s46, s2, 1
    s_add_u32 s46, s46, s43
    s_lshr_b32 s43, s46, 6
    s_lshr_b32 s44, s46, 2
    s_and_b32 s44, s44, 15
    s_and_b32 s45, s46, 3
    s_lshl_b32 s44, s44, 15
    s_lshl_b32 s43, s43, 7
    s_lshl_b32 s45, s45, 3
    s_add_u32 s47, s44, s43
    s_add_u32 s47, s47, s45
    v_lshrrev_b32 v7, 2, v3
    v_lshlrev_b32 v7, 5, v7
    v_and_b32 v8, 3, v3
    v_lshl_add_u32 v7, v8, 1, v7
    v_lshl_add_u32 v7, v4, 13, v7
    v_add_u32 v8, 4096, v7
    """)
    for j in range(8):
        a(f"buffer_load_ushort v{WOD + j}, v{7 + j//4}, s[{WO}:{WO+3}], s47 offen offset:{(j & 3) * 1024}")
    a(f"""
    s_cmp_lg_u32 s{sW}, 2
    s_cbranch_scc1 L1_noz
    s_cmp_ge_u32 s2, 11
    s_cbranch_scc1 L1_noz
    v_mov_b32 v12, 0
    v_mov_b32 v13, 0
    v_mov_b32 v14, 0
    v_mov_b32 v15, 0
    v_lshlrev_b32 v9, 4, v2
    s_lshl_b32 s43, s2, 10
    s_add_u32 s43, s43, {WS_ACT}
    buffer_store_dwordx4 v[12:15], v9, s[{WS}:{WS+3}], s43 offen
    L1_noz:
    """)
    for i in range(4):
        a(f"""
        v_add_u32 v9, {4*i}, v4
        v_xor_b32 v10, v9, v3
        v_lshlrev_b32 v10, 4, v10
        v_lshl_add_u32 v{VX+i}, v9, 10, v10
        """)
    a(f"""
    v_lshrrev_b32 v9, 3, v2
    v_and_b32 v10, 1, v4
    v_lshlrev_b32 v10, 2, v10
    v_and_b32 v11, 7, v2
    v_xor_b32 v10, v10, v11
    v_lshlrev_b32 v10, 4, v10
    v_lshl_add_u32 v{VW}, v9, 10, v10
    s_lshl_b32 s48, s{sTG}, 16
    s_lshl_b32 s43, s{sW}, 14
    s_add_u32 s48, s48, s43
    s_lshl_b32 s49, s{sW}, 15
    s_lshl_b32 s43, s{sCG}, 7
    s_add_u32 s49, s49, s43
    s_lshl_b32 s50, s{sW}, 12
    """)
    for kc in range(4):
        a(f"s_add_u32 s51, s48, {kc*256}")
        for i in range(4):
            a(f"s_add_u32 m0, s50, {kc*16384 + i*1024}\ns_nop 0\nbuffer_load_dwordx4 v{VX+i}, s[{X}:{X+3}], s51 offen lds")
        for i in range(4):
            a(f"s_add_u32 s52, s49, {(128*kc + 8*i) * 1024}")
            a(f"s_add_u32 m0, s50, {65536 + kc*16384 + i*1024}\ns_nop 0\nbuffer_load_dwordx4 v{VW}, s[{WQ}:{WQ+3}], s52 offen lds")
    def xaddr(sTile):
        a(f"""
        s_lshl_b32 s43, s{sTile}, 13
        v_lshlrev_b32 v9, 8, v5
        v_add_u32 v9, s43, v9
        """)
        for j in range(8):
            a(f"""
            v_add_u32 v10, {2*j}, v6
            v_xor_b32 v10, v10, v3
            v_lshl_add_u32 v{XA+j}, v10, 4, v9
            """)
    a(f"s_and_b32 s53, s{sW}, 1\ns_lshr_b32 s54, s{sW}, 1")
    xaddr(53)
    a(f"""
    v_lshrrev_b32 v9, 2, v3
    v_lshl_add_u32 v10, v6, 3, v9
    v_lshlrev_b32 v10, 7, v10
    v_lshrrev_b32 v11, 1, v9
    v_xor_b32 v11, s54, v11
    v_lshl_add_u32 v10, v11, 6, v10
    v_and_b32 v11, 1, v4
    v_lshl_add_u32 v10, v11, 5, v10
    v_and_b32 v11, 3, v3
    v_lshl_add_u32 v10, v11, 3, v10
    v_add_u32 v{WA}, 0x10000, v10
    """)
    def mainloop(kv):
        wstep, wsec = (512, 128) if kv else (2048, 512)
        first = True
        def reads(ks):
            s = ks & 3
            a(f"ds_read_b128 {vr(XR+4*s,4)}, v{XA + (ks & 7)} offset:{(ks >> 3) * 16384}")
            a(f"ds_read_b64_tr_b16 {vr(WR+4*s,2)}, v{WA} offset:{ks*wstep}")
            a(f"ds_read_b64_tr_b16 {vr(WR+4*s+2,2)}, v{WA} offset:{ks*wstep + wsec}")
        for kc in range(4):
            if kc == 0: a("@S2")
            a(f"s_waitcnt vmcnt({24 - 8*kc})\ns_barrier\n@S{3+kc}")
            for u in range(4): reads(8*kc + u)
            for u in range(8):
                ks = 8*kc + u; s = ks & 3
                a(f"s_waitcnt lgkmcnt({min(9, 3*(7-u))})")
                c1 = "0" if first else vr(D1, 16)
                a(f"{MF32} {vr(D1,16)}, {vr(WR+4*s,4)}, {vr(XR+4*s,4)}, {c1}")
                for q in range(4):
                    a(f"v_dot2c_f32_bf16 v{SX}, v{XR+4*s+q}, v{ONES}")
                    a(f"v_dot2c_f32_bf16 v{SXX}, v{XR+4*s+q}, v{XR+4*s+q}")
                    a(f"v_dot2c_f32_bf16 v{CS}, v{WR+4*s+q}, v{ONES}")
                    if kv and q == 1:
                        c2 = "0" if first else vr(D2, 16)
                        a(f"{MF32} {vr(D2,16)}, {vr(XR+4*s,4)}, {vr(WR+4*s,4)}, {c2}")
                first = False
                if u < 4: reads(ks + 4)
    def stats(kv):
        a(f"""
        @S7
        s_nop 2
        v_mov_b32 v9, v{SX}
        v_mov_b32 v10, v{SXX}
        s_nop 1
        v_permlane32_swap_b32 v{SX}, v9
        v_permlane32_swap_b32 v{SXX}, v10
        v_add_f32 v{SX}, v{SX}, v9
        v_add_f32 v{SXX}, v{SXX}, v10
        v_mul_f32 v9, {hex(f2u(-1.0/512))}, v{SX}
        v_mul_f32 v10, {hex(f2u(1.0/512))}, v{SXX}
        v_fma_f32 v10, -v9, v9, v10
        v_max_f32 v10, 0, v10
        v_add_f32 v10, {hex(f2u(EPS))}, v10
        v_rsq_f32 v10, v10
        v_and_b32 v11, 0xffff0000, v9
        v_sub_f32 v12, v9, v11
        v_cvt_pk_bf16_f32 v{XR}, v11, v12
        v_cvt_pk_bf16_f32 v{XR+1}, v11, 0
        v_mov_b32 v{XR+2}, 0
        v_mov_b32 v{XR+3}, 0
        v_and_b32 v11, 0xffff0000, v{CS}
        v_sub_f32 v12, v{CS}, v11
        v_cvt_pk_bf16_f32 v{WR}, v11, v11
        v_cvt_pk_bf16_f32 v{WR+1}, v12, 0
        v_mov_b32 v{WR+2}, 0
        v_mov_b32 v{WR+3}, 0
        s_nop 1
        {MF32} {vr(D1,16)}, {vr(WR,4)}, {vr(XR,4)}, {vr(D1,16)}
        """)
        if kv: a(f"{MF32} {vr(D2,16)}, {vr(XR,4)}, {vr(WR,4)}, {vr(D2,16)}")
    mainloop(False)
    stats(False)
    a(f"""
    v_mul_f32 v10, {hex(f2u(QSCALE))}, v10
    v_lshrrev_b32 v11, 3, v5
    v_lshlrev_b32 v11, 13, v11
    v_and_b32 v12, 7, v5
    v_lshl_add_u32 v11, v12, 4, v11
    v_lshl_add_u32 v11, v6, 9, v11
    s_lshl_b32 s43, s{sTG}, 16
    s_lshl_b32 s44, s53, 15
    s_add_u32 s43, s43, s44
    s_lshl_b32 s44, s{sCG}, 10
    s_add_u32 s43, s43, s44
    s_lshl_b32 s44, s54, 8
    s_add_u32 s43, s43, s44
    s_add_u32 s43, s43, {WS_Q}
    s_nop 3
    """)
    for r in range(16): a(f"v_mul_f32 v{D1+r}, v10, v{D1+r}")
    for r in range(8): a(f"v_cvt_pk_bf16_f32 v{XR+r}, v{D1+2*r}, v{D1+2*r+1}")
    a(f"""
    buffer_store_dwordx4 {vr(XR,4)}, v11, s[{WS}:{WS+3}], s43 offen
    buffer_store_dwordx4 {vr(XR+4,4)}, v11, s[{WS}:{WS+3}], s43 offen offset:128
    s_cmp_ge_u32 s{sW}, 2
    s_cbranch_scc1 L1_end
    v_lshlrev_b32 v9, 4, v2
    s_lshl_b32 s46, s46, 10
    s_add_u32 s46, s46, {WS_WO}
    v_lshl_or_b32 v{WOD}, v{WOD+1}, 16, v{WOD}
    v_lshl_or_b32 v{WOD+1}, v{WOD+3}, 16, v{WOD+2}
    v_lshl_or_b32 v{WOD+2}, v{WOD+5}, 16, v{WOD+4}
    v_lshl_or_b32 v{WOD+3}, v{WOD+7}, 16, v{WOD+6}
    buffer_store_dwordx4 {vr(WOD,4)}, v9, s[{WS}:{WS+3}], s46 offen
    @D0 9 {WS} {sW}
    s_endpgm
    """)
    a(f"""
    L1_kv:
    s_cmp_ge_u32 s{sCG}, 2
    s_cbranch_scc1 L1_end
    v_lshlrev_b32 v{VX}, 4, v2
    """)
    for kc in range(4):
        a(f"s_mov_b32 s51, {kc*4096}\ns_mov_b32 m0, {131072 + kc*4096}\ns_nop 0")
        for i in range(4): a(f"buffer_load_dwordx4 v{VX}, s[{WK}:{WK+3}], s51 offen offset:{i*1024} lds")
        a(f"s_mov_b32 m0, {147456 + kc*4096}\ns_nop 0")
        for i in range(4): a(f"buffer_load_dwordx4 v{VX}, s[{WV}:{WV+3}], s51 offen offset:{i*1024} lds")
    xaddr(sCG)
    a(f"""
    v_lshrrev_b32 v9, 2, v3
    v_lshl_add_u32 v10, v6, 3, v9
    v_lshlrev_b32 v10, 5, v10
    v_and_b32 v11, 1, v4
    v_lshl_add_u32 v10, v11, 14, v10
    v_and_b32 v11, 3, v3
    v_lshl_add_u32 v10, v11, 3, v10
    v_add_u32 v{WA}, 0x20000, v10
    """)
    mainloop(True)
    stats(True)
    a(f"""
    v_lshlrev_b32 v11, 2, v5
    v_add_u32 v11, 0x20000, v11
    ds_write_b32 v11, v10
    v_lshlrev_b32 v12, 4, v6
    v_add_u32 v12, 0x20000, v12
    s_waitcnt lgkmcnt(0)
    ds_read_b128 {vr(XR,4)}, v12 offset:0
    ds_read_b128 {vr(XR+4,4)}, v12 offset:32
    ds_read_b128 {vr(XR+8,4)}, v12 offset:64
    ds_read_b128 {vr(XR+12,4)}, v12 offset:96
    s_lshl_b32 s43, s{sTG}, 1
    s_add_u32 s43, s43, s{sCG}
    s_mul_i32 s43, s43, {TILE}
    s_add_u32 s43, s43, {WS_KV}
    s_nop 4
    """)
    for r in range(8): a(f"v_mul_f32 v{D1+r}, v10, v{D1+r}")
    for r in range(4): a(f"v_cvt_pk_bf16_f32 v{WR+r}, v{D1+2*r}, v{D1+2*r+1}")
    a(f"buffer_store_dwordx4 {vr(WR,4)}, v{VX}, s[{WS}:{WS+3}], s43 offen")
    a("s_waitcnt lgkmcnt(0)")
    for r in range(16): a(f"v_mul_f32 v{D2+r}, v{XR+r}, v{D2+r}")
    for r in range(8): a(f"v_cvt_pk_bf16_f32 v{WR+4+r}, v{D2+2*r}, v{D2+2*r+1}")
    a(f"""
    v_cmp_eq_u32 vcc, 0, v2
    v_lshlrev_b32 v11, 8, v6
    v_lshl_add_u32 v11, v3, 4, v11
    v_cndmask_b32 v12, 0, v{ONES}, vcc
    v_cmp_gt_u32 vcc, 2, v2
    v_lshlrev_b32 v13, 4, v2
    v_add_u32 v13, 512, v13
    v_cndmask_b32 v11, v11, v13, vcc
    """)
    for r in range(8): a(f"v_cndmask_b32 v{WR+4+r}, v{WR+4+r}, v12, vcc")
    a(f"""
    s_mov_b32 s44, 0xffff0003
    s_mov_b32 s45, 0xffff0000
    s_mov_b64 exec, s[44:45]
    buffer_store_dwordx4 {vr(WR+4,4)}, v11, s[{WS}:{WS+3}], s43 offen offset:1024
    buffer_store_dwordx4 {vr(WR+8,4)}, v11, s[{WS}:{WS+3}], s43 offen offset:{1024+544}
    @D0 9 {WS} {sW}
    L1_end:
    s_endpgm
    """)
    return desc("proj_kernel", 120, 64)

KV_PAD = 139264
OB = KV_PAD
RED = OB + 8 * 1040
K2_LDS = RED + 1024
def k2(a):
    X, WR_, OUT, WS = 16, 20, 24, 28
    sW, sIT, sMODE, sN = 40, 41, 42, 43
    Q, C, KF, VF, S, P, O = 8, 12, 28, 36, 52, 84, 92
    KA, VA, KA0, VA0, M = 108, 109, 110, 111, 112
    XRES, WRV = 116, 120
    LN16 = 113
    WO = 128
    head(a, "attn_kernel")
    a(f"""
    s_cmp_ge_u32 s2, 256
    s_cbranch_scc1 L2_end
    @S0
    s_load_dwordx2 s[4:5], s[0:1], 0
    s_load_dwordx2 s[6:7], s[0:1], 48
    s_load_dwordx2 s[8:9], s[0:1], 80
    s_load_dwordx2 s[10:11], s[0:1], 96
    v_lshrrev_b32 v1, 6, v0
    v_and_b32 v2, 63, v0
    v_readfirstlane_b32 s{sW}, v1
    v_lshlrev_b32 v{LN16}, 4, v2
    v_and_b32 v5, 31, v2
    v_lshrrev_b32 v6, 5, v2
    s_lshl_b32 s44, s2, 13
    s_lshl_b32 s45, s{sW}, 10
    s_add_u32 s46, s44, s45
    s_add_u32 s47, s45, {WS_KV}
    s_waitcnt lgkmcnt(0)
    @S1
    """)
    srd(a, WS, 10, WS_SIZE)
    a(f"buffer_load_dwordx4 {vr(Q,4)}, v{LN16}, s[{WS}:{WS+3}], s46 offen")
    for i in range(17):
        a(f"s_add_u32 m0, s45, {i*8192}\ns_add_u32 s48, s47, {i*8192}\nbuffer_load_dwordx4 v{LN16}, s[{WS}:{WS+3}], s48 offen lds")
    srd(a, X, 4, 2 << 20); srd(a, WR_, 6, 1024); srd(a, OUT, 8, 2 << 20)
    a(f"""
    v_lshlrev_b32 v3, 8, v6
    v_lshl_add_u32 v3, v5, 4, v3
    v_and_b32 v4, 27, v5
    v_cmp_eq_u32 vcc, 16, v4
    v_mov_b32 v4, 528
    v_mov_b32 v7, 512
    v_cndmask_b32 v4, v4, v7, vcc
    v_cmp_gt_u32 vcc, 16, v5
    v_mov_b32 v{KA0}, v{LN16}
    s_mov_b32 s{sMODE}, 0
    v_cndmask_b32 v3, v4, v3, vcc
    v_add_u32 v{VA0}, 1024, v3
    s_mov_b32 s{sN}, 2
    v_lshrrev_b32 v3, 3, v2
    v_lshlrev_b32 v3, 4, v3
    s_lshl_b32 s49, s{sW}, 7
    v_add_u32 v125, s49, v3
    v_and_b32 v4, 7, v2
    v_lshl_add_u32 v124, v4, 10, v125
    @S2
    s_waitcnt vmcnt(14)
    s_barrier
    @S3
    L2_max:
    v_mov_b32 v{KA}, v{KA0}
    v_mov_b32 v{M}, 0xff7fffff
    L2_maxloop:
    ds_read_b128 {vr(KF,4)}, v{KA}
    v_add_u32 v{KA}, {TILE}, v{KA}
    s_waitcnt lgkmcnt(0)
    {MF32} {vr(S,16)}, {vr(KF,4)}, {vr(Q,4)}, 0
    s_sub_u32 s{sN}, s{sN}, 1
    s_nop 10
    """)
    for r in range(8): a(f"v_max3_f32 v{M}, v{S+2*r}, v{S+2*r+1}, v{M}")
    a(f"""
    s_cmp_lg_u32 s{sN}, 0
    s_cbranch_scc1 L2_maxloop
    ds_read_b128 {vr(KF,4)}, v{KA0}
    ds_read_b128 {vr(KF+4,4)}, v{KA0} offset:{TILE}
    ds_read_b128 {vr(VF,4)}, v{VA0}
    ds_read_b128 {vr(VF+4,4)}, v{VA0} offset:544
    v_mov_b32 v3, v{M}
    s_cmp_eq_u32 s{sMODE}, 0
    s_cselect_b32 s48, {hex(f2u(SHIFT))}, 0
    v_permlane32_swap_b32 v{M}, v3
    v_max_f32 v{M}, v{M}, v3
    v_add_f32 v{M}, s48, v{M}
    """)
    for r in range(16): a(f"v_sub_f32 v{C+r}, 0, v{M}")
    for r in range(16): a(f"v_mov_b32 v{O+r}, 0")
    for r in range(4): a(f"v_mov_b32 v{P+4+r}, 0\nv_mov_b32 v{VF+12+r}, 0")
    a(f"""
    v_mov_b32 v{KA}, v{KA0}
    v_mov_b32 v{VA}, v{VA0}
    s_mov_b32 s{sIT}, 0
    @S4
    s_waitcnt lgkmcnt(0)
    {MF32} {vr(S,16)}, {vr(KF,4)}, {vr(Q,4)}, {vr(C,16)}
    s_nop 8
    L2_loop:
    """)
    X_ = [x for x in sys.argv if x.startswith("--x")]
    for tt in range(8):
        cur, nxt = tt & 1, (tt + 1) & 1
        Sc, Sn = S + 16*cur, S + 16*nxt
        e = [f"v_exp_f32 v{Sc+i}, v{Sc+i}" for i in range(16)]
        c = [f"v_cvt_pk_bf16_f32 v{P+i}, v{Sc+2*i}, v{Sc+2*i+1}" for i in range(8)]
        if "--xnoexp" in X_: e = [f"v_mov_b32 v{Sc+i}, v{Sc+i}\nv_mov_b32 v{Sc+i}, v{Sc+i}" for i in range(16)]
        lds = (lambda t: None) if "--xnolds" in X_ else a
        pv = (lambda t: a("s_nop 1")) if "--xnopv" in X_ else a
        qk = (lambda t: a("s_nop 1")) if "--xnoqk" in X_ else a
        a("s_waitcnt lgkmcnt(0)")
        qk(f"{MF32} {vr(Sn,16)}, {vr(KF+4*nxt,4)}, {vr(Q,4)}, {vr(C,16)}")
        lds(f"ds_read_b128 {vr(KF+4*cur,4)}, v{KA} offset:{(tt+2)*TILE}")
        for x in e[0:6]: a(x)
        pv(f"{MF32} {vr(O,16)}, {vr(VF+8*nxt+4,4)}, {vr(P+4,4)}, {vr(O,16)}")
        lds(f"ds_read_b128 {vr(VF+8*nxt,4)}, v{VA} offset:{(tt+1)*TILE}")
        lds(f"ds_read_b128 {vr(VF+8*nxt+4,4)}, v{VA} offset:{(tt+1)*TILE+544}")
        for x in e[6:8] + c[0:4] + e[8:10]: a(x)
        pv(f"{MF32} {vr(O,16)}, {vr(VF+8*cur,4)}, {vr(P,4)}, {vr(O,16)}")
        for x in e[10:16] + c[4:8]: a(x)
    a(f"""
    v_add_u32 v{KA}, {8*TILE}, v{KA}
    v_add_u32 v{VA}, {8*TILE}, v{VA}
    s_add_u32 s{sIT}, s{sIT}, 1
    s_or_b32 s48, s{sIT}, s{sMODE}
    s_cmp_eq_u32 s48, 1
    s_cbranch_scc1 L2_fill
    s_cmp_lt_u32 s{sIT}, 8
    s_cbranch_scc1 L2_loop
    s_branch L2_done
    L2_fill:
    @S5
    s_waitcnt vmcnt(0)
    s_barrier
    @S6
    s_lshl_b32 s48, s{sW}, 16
    s_add_u32 s48, s48, {WS_WO}
    """)
    for ks in range(8):
        if ks: a(f"s_add_u32 s48, s48, 4096")
        for i in range(4):
            a(f"buffer_load_dwordx4 {vr(WO + 16*ks + 4*i, 4)}, v{LN16}, s[{WS}:{WS+3}], s48 offen offset:{i*1024}")
    a(f"""
    buffer_load_dwordx4 {vr(XRES,4)}, v124, s[{X}:{X+3}], s44 offen
    buffer_load_dwordx4 {vr(WRV,4)}, v125, s[{WR_}:{WR_+3}], 0 offen
    @S7
    @S13
    s_branch L2_loop
    L2_done:
    @S8
    @S14
    {MF32} {vr(O,16)}, {vr(VF+12,4)}, {vr(P+4,4)}, {vr(O,16)}
    s_cmp_lg_u32 s{sMODE}, 0
    s_waitcnt lgkmcnt(0)
    s_nop 9
    s_cbranch_scc1 L2_epi
    v_mul_f32 v3, 0, v{O}
    """)
    for r in range(1, 8): a(f"v_fma_f32 v3, v{O+r}, 0, v3")
    a(f"""
    s_mov_b32 s48, {hex(f2u(2.0**110))}
    v_add_f32 v3, v3, v{O+8}
    v_cmp_ngt_f32 vcc, s48, v3
    s_cmp_eq_u64 vcc, 0
    {'s_branch L2_epi' if X_ else 's_cbranch_scc1 L2_epi'}
    s_mov_b32 s{sMODE}, 2
    s_mov_b32 s{sN}, 64
    s_branch L2_max
    L2_epi:
    """)
    a(f"s_lshl_b32 s48, s{sW}, 16\ns_add_u32 s48, s48, {WS_WO + 8*4096}")
    W2 = 12
    for ks in range(8, 13):
        if ks > 8: a(f"s_add_u32 s48, s48, 4096")
        for i in range(4):
            a(f"buffer_load_dwordx4 {vr(W2 + 16*(ks-8) + 4*i, 4)}, v{LN16}, s[{WS}:{WS+3}], s48 offen offset:{i*1024}")
    a(f"""
    v_rcp_f32 v3, v{O+8}
    v_and_b32 v4, 7, v5
    v_mul_u32_u24 v4, 1040, v4
    v_lshrrev_b32 v7, 3, v5
    v_lshl_add_u32 v4, v7, 5, v4
    v_lshl_add_u32 v4, v6, 3, v4
    s_lshl_b32 s49, s{sW}, 7
    s_add_u32 s49, s49, {OB}
    v_add_u32 v4, s49, v4
    """)
    for r in range(8): a(f"v_mul_f32 v{O+r}, v3, v{O+r}")
    for r in range(4): a(f"v_cvt_pk_bf16_f32 v{O+r}, v{O+2*r}, v{O+2*r+1}")
    a(f"""
    ds_write_b64 v4, {vr(O,2)}
    ds_write_b64 v4, {vr(O+2,2)} offset:16
    v_and_b32 v4, 7, v2
    v_mul_u32_u24 v4, 1040, v4
    v_lshrrev_b32 v7, 4, v2
    v_lshl_add_u32 v4, v7, 4, v4
    v_add_u32 v4, {OB}, v4
    s_waitcnt lgkmcnt(0)
    s_barrier
    @S9
    """)
    ACC = O
    BF = [Q, 108]
    a(f"ds_read_b128 {vr(BF[0],4)}, v4 offset:0")
    for ks in range(16):
        if ks < 15: a(f"ds_read_b128 {vr(BF[(ks+1)&1],4)}, v4 offset:{(ks+1)*64}")
        if ks < 8: base = WO + 16*ks
        elif ks < 13: base = W2 + 16*(ks-8)
        else: base = WO + 16*(ks-13)
        w = f"lgkmcnt({1 if ks < 15 else 0})"
        if ks == 0: w += " vmcnt(20)"
        elif 8 <= ks < 13: w += f" vmcnt({12 + 4*(12-ks)})"
        elif ks >= 13: w += f" vmcnt({4*(15-ks)})"
        a(f"s_waitcnt {w}")
        for i in range(4):
            cc = "0" if ks == 0 else vr(ACC+4*i, 4)
            a(f"{MF16} {vr(ACC+4*i,4)}, {vr(base+4*i,4)}, {vr(BF[ks&1],4)}, {cc}")
        if ks == 2:
            for k2_ in range(13, 16):
                a(f"s_add_u32 s48, s48, 4096")
                for i in range(4):
                    a(f"buffer_load_dwordx4 {vr(WO + 16*(k2_-13) + 4*i, 4)}, v{LN16}, s[{WS}:{WS+3}], s48 offen offset:{i*1024}")
    A8, HB, HF, T = 12, 20, 24, 32
    a(f"""
    @S10
    v_and_b32 v3, 8, v2
    v_cmp_ne_u32 vcc, 0, v3
    v_mov_b32 v7, 0x3f803f80
    s_nop 5
    """)
    for j in range(8): a(f"v_cndmask_b32 v{A8+j}, v{ACC+j}, v{ACC+8+j}, vcc")
    for j in range(4): a(f"v_cvt_pk_bf16_f32 v{HB+j}, v{A8+2*j}, v{A8+2*j+1}")
    for j in range(4):
        a(f"""
        v_lshlrev_b32 v{A8+2*j}, 16, v{HB+j}
        v_and_b32 v{A8+2*j+1}, 0xffff0000, v{HB+j}
        v_lshlrev_b32 v{HF+2*j}, 16, v{XRES+j}
        v_and_b32 v{HF+2*j+1}, 0xffff0000, v{XRES+j}
        """)
    for j in range(8): a(f"v_add_f32 v{HF+j}, v{HF+j}, v{A8+j}")
    for j in range(4): a(f"v_cvt_pk_bf16_f32 v{HB+j}, v{HF+2*j}, v{HF+2*j+1}")
    a(f"s_add_u32 s49, s44, {WS_H}\nbuffer_store_dwordx4 {vr(HB,4)}, v124, s[{WS}:{WS+3}], s49 offen")
    for q in range(4): a(f"v_mov_b32 v{T+q}, 0")
    for j in range(4):
        a(f"""
        v_dot2c_f32_bf16 v{T}, v{HB+j}, v7
        v_dot2c_f32_bf16 v{T+1}, v{HB+j}, v{HB+j}
        v_dot2c_f32_bf16 v{T+2}, v{HB+j}, v{WRV+j}
        v_dot2c_f32_bf16 v{T+3}, v{WRV+j}, v7
        """)
    for j in range(4):
        a(f"v_lshlrev_b32 v{HF+2*j}, 16, v{HB+j}\nv_and_b32 v{HF+2*j+1}, 0xffff0000, v{HB+j}")
    a(f"""
    v_permlane32_swap_b32 v{T}, v{T+1}
    v_permlane32_swap_b32 v{T+2}, v{T+3}
    v_add_f32 v{T}, v{T}, v{T+1}
    v_add_f32 v{T+2}, v{T+2}, v{T+3}
    v_lshrrev_b32 v3, 4, v2
    v_and_b32 v4, 7, v2
    v_permlane16_swap_b32 v{T}, v{T+2}
    v_add_f32 v{T}, v{T}, v{T+2}
    v_lshlrev_b32 v3, 8, v3
    v_lshl_add_u32 v3, v4, 5, v3
    v_add_f32_dpp v{T}, v{T}, v{T} row_ror:8 row_mask:0xf bank_mask:0xf
    s_lshl_b32 s49, s{sW}, 2
    s_add_u32 s49, s49, {RED}
    v_add_u32 v3, s49, v3
    ds_write_b32 v3, v{T}
    v_lshlrev_b32 v4, 5, v4
    v_add_u32 v4, {RED}, v4
    s_waitcnt lgkmcnt(0)
    s_barrier
    @S11
    """)
    R_ = 40
    for q in range(4):
        a(f"ds_read_b128 {vr(R_+8*q,4)}, v4 offset:{q*256}\nds_read_b128 {vr(R_+8*q+4,4)}, v4 offset:{q*256+16}")
    a("s_waitcnt lgkmcnt(0)")
    for q in range(4):
        b = R_ + 8*q
        a(f"""
        v_add_f32 v{b}, v{b}, v{b+1}
        v_add_f32 v{b+2}, v{b+2}, v{b+3}
        v_add_f32 v{b+4}, v{b+4}, v{b+5}
        v_add_f32 v{b+6}, v{b+6}, v{b+7}
        v_add_f32 v{b}, v{b}, v{b+2}
        v_add_f32 v{b+4}, v{b+4}, v{b+6}
        v_add_f32 v{b}, v{b}, v{b+4}
        """)
    s1, s3, s2, s4 = R_, R_+8, R_+16, R_+24
    ST = 76
    a(f"""
    v_mul_f32 v{ST}, {hex(f2u(1.0/512))}, v{s1}
    v_mul_f32 v{s2}, {hex(f2u(1.0/512))}, v{s2}
    v_fma_f32 v{s2}, -v{ST}, v{ST}, v{s2}
    v_max_f32 v{s2}, 0, v{s2}
    v_add_f32 v{s2}, {hex(f2u(EPS))}, v{s2}
    v_rsq_f32 v{ST+1}, v{s2}
    v_fma_f32 v{s3}, -v{ST}, v{s4}, v{s3}
    v_mul_f32 v{ST+2}, v{ST+1}, v{s3}
    """)
    for j in range(8): a(f"v_sub_f32 v{A8+j}, v{HF+j}, v{ST}")
    for j in range(8): a(f"v_mul_f32 v{A8+j}, v{A8+j}, v{ST+1}")
    for j in range(4): a(f"v_cvt_pk_bf16_f32 v{T+j}, v{A8+2*j}, v{A8+2*j+1}")
    for j in range(4):
        a(f"v_lshlrev_b32 v{A8+2*j}, 16, v{T+j}\nv_and_b32 v{A8+2*j+1}, 0xffff0000, v{T+j}")
    for j in range(8): a(f"v_add_f32 v{A8+j}, v{A8+j}, v{HF+j}")
    for j in range(4): a(f"v_cvt_pk_bf16_f32 v{T+j}, v{A8+2*j}, v{A8+2*j+1}")
    a(f"""
    buffer_store_dwordx4 {vr(T,4)}, v124, s[{OUT}:{OUT+3}], s44 offen
    s_cmp_lg_u32 s{sW}, 0
    s_cbranch_scc1 L2_fin
    v_ashrrev_i32 v3, 31, v{ST+2}
    v_or_b32 v3, 0x80000000, v3
    v_xor_b32 v3, v3, v{ST+2}
    v_and_b32 v3, 0xfffff800, v3
    s_lshl_b32 s48, s2, 3
    v_add_u32 v4, s48, v2
    v_sub_u32 v7, 2047, v4
    v_or_b32 v{ST+3}, v3, v7
    v_lshlrev_b32 v3, 4, v4
    v_lshlrev_b32 v4, 2, v4
    s_mov_b32 s48, {WS_ST}
    s_mov_b32 s49, {WS_KEY}
    s_mov_b64 exec, 0xff
    buffer_store_dwordx4 {vr(ST,4)}, v3, s[{WS}:{WS+3}], s48 offen
    buffer_store_dword v{ST+3}, v4, s[{WS}:{WS+3}], s49 offen
    L2_fin:
    @D1 15 {WS} {sW}
    L2_end:
    s_endpgm
    """)
    return desc("attn_kernel", 256, 64)

def k3(a):
    WG_, WU_, WD_, OUT, WS = 16, 20, 24, 28, 32
    sW = 40
    KEY = 16
    head(a, "ffn_kernel")
    a(f"""
    s_cmp_ge_u32 s2, 240
    s_cbranch_scc1 L3_end
    @S0
    s_load_dwordx4 s[4:7], s[0:1], 56
    s_load_dwordx4 s[8:11], s[0:1], 72
    s_load_dwordx2 s[12:13], s[0:1], 96
    v_lshrrev_b32 v1, 6, v0
    v_and_b32 v2, 63, v0
    v_readfirstlane_b32 s{sW}, v1
    v_lshlrev_b32 v3, 4, v2
    s_waitcnt lgkmcnt(0)
    @S1
    """)
    srd(a, WS, 12, WS_SIZE)
    a(f"s_mov_b32 s41, {WS_KEY}\ns_mov_b32 s42, {WS_KEY + 4096}")
    for i in range(8):
        a(f"buffer_load_dwordx4 {vr(KEY+4*i,4)}, v3, s[{WS}:{WS+3}], s{41 + i//4} offen offset:{(i&3)*1024}")
    srd(a, WG_, 4, 512*2752); srd(a, WU_, 6, 512*2752); srd(a, WD_, 8, 1376*1024); srd(a, OUT, 10, 2 << 20)
    def top2(nwait):
        a(f"@S2\ns_waitcnt vmcnt({nwait})\n@S3")
        a(f"v_max_u32 v4, v{KEY}, v{KEY+1}\nv_min_u32 v5, v{KEY}, v{KEY+1}")
        for i in range(2, 32):
            a(f"v_med3_u32 v5, v4, v5, v{KEY+i}\nv_max_u32 v4, v4, v{KEY+i}")
        for dpp in ("quad_perm:[1,0,3,2]", "quad_perm:[2,3,0,1]", "row_half_mirror", "row_mirror"):
            a(f"""
            s_nop 1
            v_mov_b32_dpp v6, v4 {dpp} row_mask:0xf bank_mask:0xf
            v_mov_b32_dpp v7, v5 {dpp} row_mask:0xf bank_mask:0xf
            v_med3_u32 v5, v4, v5, v6
            v_max_u32 v4, v4, v6
            v_max_u32 v5, v5, v7
            """)
        a("s_nop 0")
        for q in range(4):
            a(f"v_readlane_b32 s{48+2*q}, v4, {16*q}\nv_readlane_b32 s{49+2*q}, v5, {16*q}")
        a("s_nop 3")
        for q in range(1, 4):
            a(f"""
            s_min_u32 s56, s48, s{48+2*q}
            s_max_u32 s48, s48, s{48+2*q}
            s_max_u32 s49, s49, s{49+2*q}
            s_max_u32 s49, s49, s56
            """)
        a(f"""
        s_and_b32 s46, s48, 0x7ff
        s_and_b32 s47, s49, 0x7ff
        s_sub_u32 s46, 2047, s46
        s_sub_u32 s47, 2047, s47
        @S4
        """)
    a("s_cmp_ge_u32 s2, 176\ns_cbranch_scc1 L3_st2")
    a(f"""
    s_and_b32 s43, s2, 7
    s_mul_i32 s43, s43, 22
    s_lshr_b32 s44, s2, 3
    s_add_u32 s43, s43, s44
    s_cmp_ge_u32 s43, 172
    s_cbranch_scc1 L3_end
    v_mul_u32_u24 v8, 2752, v2
    s_mul_i32 s44, s{sW}, {128*2752}
    s_lshl_b32 s45, s43, 4
    s_add_u32 s44, s44, s45
    s_add_u32 s45, s44, {64*2752}
    s_lshl_b32 s57, s{sW}, 12
    s_mov_b32 m0, s57
    s_nop 0
    buffer_load_dwordx4 v8, s[{WG_}:{WG_+3}], s44 offen lds
    s_add_u32 m0, s57, 1024
    s_nop 0
    buffer_load_dwordx4 v8, s[{WG_}:{WG_+3}], s45 offen lds
    s_add_u32 m0, s57, 2048
    s_nop 0
    buffer_load_dwordx4 v8, s[{WU_}:{WU_+3}], s44 offen lds
    s_add_u32 m0, s57, 3072
    s_nop 0
    buffer_load_dwordx4 v8, s[{WU_}:{WU_+3}], s45 offen lds
    """)
    top2(4)
    HR, STT, AF, BFR, D = 16, 32, 36, 52, 68
    a(f"""
    v_and_b32 v4, 1, v2
    v_cmp_eq_u32 vcc, 1, v4
    v_mov_b32 v5, s46
    v_mov_b32 v6, s47
    v_cndmask_b32 v5, v5, v6, vcc
    v_lshrrev_b32 v7, 4, v2
    v_lshlrev_b32 v6, 10, v5
    v_lshl_add_u32 v6, v7, 4, v6
    v_lshlrev_b32 v5, 4, v5
    s_lshl_b32 s44, s{sW}, 8
    s_add_u32 s44, s44, {WS_H}
    s_mov_b32 s45, {WS_ST}
    buffer_load_dwordx4 {vr(STT,4)}, v5, s[{WS}:{WS+3}], s45 offen
    """)
    for ks in range(4):
        a(f"buffer_load_dwordx4 {vr(HR+4*ks,4)}, v6, s[{WS}:{WS+3}], s44 offen offset:{ks*64}")
    a(f"""
    v_and_b32 v9, 15, v2
    v_lshrrev_b32 v10, 2, v9
    v_lshl_add_u32 v10, v7, 3, v10
    v_lshlrev_b32 v10, 4, v10
    v_and_b32 v11, 2, v9
    v_lshl_add_u32 v10, v11, 10, v10
    v_and_b32 v11, 1, v9
    v_lshl_add_u32 v10, v11, 3, v10
    v_add_u32 v10, s57, v10
    s_waitcnt vmcnt(5)
    """)
    for ks in range(4):
        a(f"ds_read_b64_tr_b16 {vr(AF+4*ks,2)}, v10 offset:{ks*512}\nds_read_b64_tr_b16 {vr(AF+4*ks+2,2)}, v10 offset:{ks*512+64}")
    a("s_waitcnt vmcnt(0)\n@S5")
    for q in range(16):
        a(f"""
        v_lshlrev_b32 v12, 16, v{HR+q}
        v_and_b32 v13, 0xffff0000, v{HR+q}
        v_sub_f32 v12, v12, v{STT}
        v_sub_f32 v13, v13, v{STT}
        v_mul_f32 v12, v12, v{STT+1}
        v_mul_f32 v13, v13, v{STT+1}
        v_cvt_pk_bf16_f32 v{BFR+q}, v12, v13
        """)
    a("s_waitcnt lgkmcnt(0)\ns_nop 0")
    for ks in range(4):
        cc = "0" if ks == 0 else vr(D, 4)
        a(f"{MF16} {vr(D,4)}, {vr(AF+4*ks,4)}, {vr(BFR+4*ks,4)}, {cc}")
    RD = 16384
    a(f"""
    v_lshlrev_b32 v11, 6, v4
    v_lshl_add_u32 v11, v7, 4, v11
    s_lshl_b32 s44, s{sW}, 7
    s_add_u32 s44, s44, {RD}
    v_add_u32 v11, s44, v11
    s_nop 3
    ds_write_b128 v11, {vr(D,4)}
    s_waitcnt lgkmcnt(0)
    s_barrier
    @S6
    s_cmp_lg_u32 s{sW}, 0
    s_cbranch_scc1 L3_end
    v_lshrrev_b32 v9, 1, v2
    v_and_b32 v9, 7, v9
    v_lshlrev_b32 v11, 6, v4
    v_lshl_add_u32 v11, v9, 2, v11
    v_add_u32 v11, {RD}, v11
    """)
    for w in range(4):
        a(f"ds_read2_b32 {vr(16+2*w,2)}, v11 offset0:{w*32} offset1:{w*32+8}")
    a(f"""
    s_waitcnt lgkmcnt(0)
    v_add_f32 v16, v16, v18
    v_add_f32 v20, v20, v22
    v_add_f32 v17, v17, v19
    v_add_f32 v21, v21, v23
    v_add_f32 v16, v16, v20
    v_add_f32 v17, v17, v21
    v_cvt_pk_bf16_f32 v16, v16, v17
    v_lshlrev_b32 v18, 16, v16
    v_and_b32 v17, 0xffff0000, v16
    v_mul_f32 v19, {hex(f2u(-1.4426950408889634))}, v18
    v_exp_f32 v19, v19
    s_nop 0
    v_add_f32 v19, 1.0, v19
    v_rcp_f32 v19, v19
    s_nop 0
    v_mul_f32 v18, v18, v19
    v_cvt_pk_bf16_f32 v18, v18, v18
    v_lshlrev_b32 v18, 16, v18
    v_mul_f32 v18, v18, v17
    s_nop 1
    v_mov_b32_dpp v19, v18 quad_perm:[1,1,3,3] row_mask:0xf bank_mask:0xf
    v_cvt_pk_bf16_f32 v20, v18, v19
    v_mov_b32 v21, 1
    v_lshlrev_b32 v9, 3, v9
    s_lshl_b32 s44, s43, 6
    s_add_u32 s44, s44, {WS_ACT}
    s_mov_b64 exec, 0x5555
    buffer_store_dwordx2 v[20:21], v9, s[{WS}:{WS+3}], s44 offen sc0 sc1
    @D2 8 {WS} {sW}
    s_endpgm
    """)
    WDR, G, Y = 48, 72, 84
    a(f"""
    L3_st2:
    s_sub_u32 s43, s2, 176
    s_and_b32 s44, s43, 7
    s_lshl_b32 s44, s44, 3
    s_lshr_b32 s43, s43, 3
    s_add_u32 s43, s43, s44
    s_lshl_b32 s44, s43, 4
    v_lshlrev_b32 v8, 10, v0
    """)
    for i in range(6):
        if i: a(f"s_add_u32 s44, s44, {256*1024}")
        a(f"buffer_load_dwordx4 {vr(WDR+4*i,4)}, v8, s[{WD_}:{WD_+3}], s44 offen")
    top2(6)
    a(f"""
    v_and_b32 v4, 8, v2
    v_cmp_ne_u32 vcc, 0, v4
    v_mov_b32 v5, s46
    v_mov_b32 v6, s47
    v_cndmask_b32 v5, v5, v6, vcc
    v_and_b32 v7, 7, v2
    v_lshlrev_b32 v6, 10, v5
    v_lshl_add_u32 v6, v7, 1, v6
    s_lshl_b32 s44, s43, 4
    v_add_u32 v6, s44, v6
    v_lshlrev_b32 v5, 4, v5
    s_mov_b32 s44, {WS_H}
    s_mov_b32 s45, {WS_ST}
    buffer_load_dwordx4 v[16:19], v5, s[{WS}:{WS+3}], s45 offen
    buffer_load_ushort v20, v6, s[{WS}:{WS+3}], s44 offen
    v_lshlrev_b32 v9, 3, v0
    s_mov_b32 s44, {WS_ACT}
    s_mov_b32 s45, {WS_ACT + 4096}
    s_mov_b32 s58, {WS_ACT + 8192}
    s_mov_b32 s59, 96
    s_mov_b32 s62, 0
    v_cmp_gt_u32 s[60:61], s59, v0
    L3_poll:
    """)
    for i in range(6):
        so = ("s44", "s45", "s58")[i // 2]
        a(f"buffer_load_dwordx2 {vr(G+2*i,2)}, v9, s[{WS}:{WS+3}], {so} offen offset:{(i&1)*2048} sc1")
    a(f"""
    s_waitcnt vmcnt(0)
    v_cndmask_b32 v{G+11}, 1, v{G+11}, s[60:61]
    v_and_b32 v10, v{G+1}, v{G+3}
    v_and_b32 v11, v{G+5}, v{G+7}
    v_and_b32 v10, v10, v{G+9}
    v_and_b32 v11, v11, v{G+11}
    v_and_b32 v10, v10, v11
    v_cmp_ne_u32 vcc, 1, v10
    s_cmp_eq_u64 vcc, 0
    s_cbranch_scc1 L3_go
    s_sleep 1
    s_add_u32 s62, s62, 1
    s_cmp_lt_u32 s62, 0x40000
    s_cbranch_scc1 L3_poll
    L3_go:
    @S5
    v_cndmask_b32 v{G+10}, 0, v{G+10}, s[60:61]
    """)
    for i in range(6):
        a(f"v_lshlrev_b32 v10, 16, v{G+2*i}\nv_and_b32 v11, 0xffff0000, v{G+2*i}")
        for q in range(4):
            a(f"v_lshlrev_b32 v12, 16, v{WDR+4*i+q}\nv_and_b32 v13, 0xffff0000, v{WDR+4*i+q}")
            if i == 0:
                a(f"""
                v_mul_f32 v{Y+2*q}, v10, v12
                v_mul_f32 v{Y+2*q+1}, v10, v13
                v_mul_f32 v{Y+8+2*q}, v11, v12
                v_mul_f32 v{Y+8+2*q+1}, v11, v13
                """)
            else:
                a(f"""
                v_fmac_f32 v{Y+2*q}, v10, v12
                v_fmac_f32 v{Y+2*q+1}, v10, v13
                v_fmac_f32 v{Y+8+2*q}, v11, v12
                v_fmac_f32 v{Y+8+2*q+1}, v11, v13
                """)
    a("s_nop 1")
    for i in range(8): a(f"v_permlane32_swap_b32 v{Y+i}, v{Y+8+i}")
    for i in range(8): a(f"v_add_f32 v{Y+i}, v{Y+i}, v{Y+8+i}")
    a("s_nop 1")
    for i in range(4): a(f"v_permlane16_swap_b32 v{Y+i}, v{Y+4+i}")
    for i in range(4): a(f"v_add_f32 v{Y+i}, v{Y+i}, v{Y+4+i}")
    for rot in (8, 4, 2, 1):
        for i in range(4): a(f"v_add_f32_dpp v{Y+i}, v{Y+i}, v{Y+i} row_ror:{rot} row_mask:0xf bank_mask:0xf")
    a(f"""
    v_lshrrev_b32 v10, 4, v2
    v_lshlrev_b32 v10, 4, v10
    s_lshl_b32 s44, s{sW}, 6
    v_add_u32 v10, s44, v10
    ds_write_b128 v10, {vr(Y,4)}
    s_waitcnt lgkmcnt(0)
    s_barrier
    @S6
    s_cmp_lg_u32 s{sW}, 0
    s_cbranch_scc1 L3_end
    v_and_b32 v10, 15, v2
    v_lshlrev_b32 v10, 2, v10
    ds_read2_b32 v[22:23], v10 offset0:0 offset1:16
    ds_read2_b32 v[24:25], v10 offset0:32 offset1:48
    v_cvt_pk_bf16_f32 v12, v18, v18
    v_lshlrev_b32 v12, 16, v12
    v_mul_f32 v12, {hex(f2u(-1.4426950408889634))}, v12
    v_exp_f32 v12, v12
    v_lshlrev_b32 v20, 16, v20
    v_add_f32 v12, 1.0, v12
    v_rcp_f32 v12, v12
    v_sub_f32 v13, v20, v16
    v_mul_f32 v13, v13, v17
    v_cvt_pk_bf16_f32 v12, v12, v13
    v_lshlrev_b32 v14, 16, v12
    v_and_b32 v13, 0xffff0000, v12
    s_waitcnt lgkmcnt(0)
    v_add_f32 v22, v22, v23
    v_add_f32 v24, v24, v25
    v_add_f32 v22, v22, v24
    v_cvt_pk_bf16_f32 v22, v22, v22
    v_lshlrev_b32 v22, 16, v22
    v_mul_f32 v22, v22, v14
    v_cvt_pk_bf16_f32 v22, v22, v22
    v_lshlrev_b32 v22, 16, v22
    v_add_f32 v22, v22, v13
    v_cvt_pk_bf16_f32 v22, v22, v22
    v_lshlrev_b32 v22, 16, v22
    v_add_f32 v22, v22, v20
    v_cvt_pk_bf16_f32 v22, v22, v22
    s_mov_b64 exec, 0xffff
    buffer_store_short v22, v6, s[{OUT}:{OUT+3}], 0 offen
    @D2 8 {WS} {sW}
    L3_end:
    s_endpgm
    """)
    return desc("ffn_kernel", 104, 64)

def main():
    hdr = open("sequential_preLN__grouped_kv_mqa__moe_arch_mod__prompt.s.ref").read().split("\n")
    top = [l for l in hdr if l.startswith(";") and "@launch" not in l and "Override" not in l and "grid=ceil" not in l]
    a = Asm()
    d = k1(a) + k2(a) + k3(a)
    out = "\n".join(top) + "\n"
    out += "; @launch kernel=proj_kernel grid=(256,1,1) block=(320,1,1) lds=163840\n"
    out += f"; @launch kernel=attn_kernel grid=(256,1,1) block=(512,1,1) lds={K2_LDS}\n"
    out += "; @launch kernel=ffn_kernel grid=(240,1,1) block=(256,1,1) lds=17408\n"
    out += '.amdgcn_target "amdgcn-amd-amdhsa--gfx950"\n.text\n' + a.text() + '.section .rodata,"a"\n' + d
    sys.stdout.write(out)
main()
```

```python
import sys, struct
def f2u(x): return struct.unpack("<I", struct.pack("<f", x))[0]

WS_Q   = 0
WS_KV  = 2 << 20
WS_WO  = 3 << 20
WS_H   = 4 << 20

WS_ST  = (6 << 20) + 0x10000
WS_ACT = (6 << 20) + 0x20000
WS_KEY = WS_ACT + 6144
WS_SIZE = 8 << 20
TILE = 2112
QSCALE = 0.25 * 1.4426950408889634
EPS = 1e-5
SHIFT = 96.0
for _x in sys.argv:
    if _x.startswith('--shift='): SHIFT = float(_x.split('=')[1])

class Asm:
    def __init__(self): self.l = []
    def __call__(self, s):
        for x in s.split("\n"):
            x = x.strip()
            if x.startswith("@S"): stamp(self, int(x[2:])); continue
            if x.startswith("@P"): padstore(self, *[int(t) for t in x[2:].split()]); continue
            if x.startswith("@Q"): padspin(self, *[int(t) for t in x[2:].split()]); continue
            if x.startswith("@T"): padstamp(self, int(x[2:])); continue
            if x.startswith("@D"): dump(self, *[int(t) for t in x[2:].split()]); continue
            if x: self.l.append(("" if x.endswith(":") else "    ") + x)
    def text(self): return "\n".join(self.l) + "\n"

def srd(a, d, p, size):
    a(f"s_mov_b32 s{d}, s{p}\ns_and_b32 s{d+1}, s{p+1}, 0xffff\ns_mov_b32 s{d+2}, {size}\ns_mov_b32 s{d+3}, 0x20000")
def vr(b, n): return f"v[{b}:{b+n-1}]"
def head(a, name):
    a(f".globl {name}\n.p2align 8\n.type {name},@function\n{name}:")
def desc(name, nv, ns):
    return f""".p2align 6
.amdhsa_kernel {name}
  .amdhsa_next_free_vgpr {nv}
  .amdhsa_next_free_sgpr {100 if (DIAG or PAD is not None) else ns}
  .amdhsa_accum_offset {(nv+3)//4*4}
  .amdhsa_group_segment_fixed_size 0
  .amdhsa_kernarg_size 104
  .amdhsa_user_sgpr_count 2
  .amdhsa_user_sgpr_kernarg_segment_ptr 1
  .amdhsa_system_sgpr_workgroup_id_x 1
.end_amdhsa_kernel
"""
DIAG = "--diag" in sys.argv
WS_DIAG = 16 << 20
if DIAG: WS_SIZE = 32 << 20
LIGHT = '--light' in sys.argv
def stamp(a, i, force=False):
    if LIGHT and i != 0 and not force: return
    if DIAG: a(f"{'s_memtime' if i >= 13 else 's_memrealtime'} s[{70+2*i}:{71+2*i}]\ns_waitcnt lgkmcnt(0)")
DIAG2 = "--diag2" in sys.argv
D2SEL = {0: [(0, 1), (2, 0), (8, 0)], 1: [(0, 1), (1, 0), (3, 0), (4, 0), (8, 0), (10, 0), (12, 0)], 2: [(0, 1), (1, 0), (3, 0), (5, 0), (6, 0), (7, 0)]}
_dl = [0]
def dump(a, kidx, n, WS, sW):
    if not DIAG: return
    stamp(a, min(n - 1, 12), True)
    if DIAG2:
        _dl[0] += 1
        base = sum(len(D2SEL[k]) for k in range(kidx))
        a(f"s_and_b32 s98, s2, 15\ns_cmp_lg_u32 s98, 0\ns_cbranch_scc1 LD_{_dl[0]}\ns_load_dwordx2 s[98:99], s[0:1], 88\ns_mov_b64 exec, 1\nv_mov_b32 v1, 0\ns_waitcnt lgkmcnt(0)\ns_add_u32 s98, s98, {512*(2-kidx)}\ns_addc_u32 s99, s99, 0")
        for j, (i, inv) in enumerate(D2SEL[kidx]):
            a(f"v_mov_b32 v0, s{70+2*i}")
            if inv: a("v_not_b32 v0, v0")
            a(f"global_atomic_umax v1, v0, s[98:99] offset:{4*(base+j)}\ns_nop 1")
        a(f"LD_{_dl[0]}:")
        return
    a(f"s_mov_b64 exec, 1\ns_lshl_b32 s69, s2, 4\ns_add_u32 s69, s69, s{sW}\ns_lshl_b32 s69, s69, 6\ns_add_u32 s69, s69, {WS_DIAG + kidx * (1 << 20)}\nv_mov_b32 v1, 0")
    for i in range(n):
        a(f"v_mov_b32 v0, s{70+2*i}\nbuffer_store_dword v0, v1, s[{WS}:{WS+3}], s69 offen offset:{4*i}")
PAD = [int(x.split("=")[1]) for x in sys.argv if x.startswith("--pad=")]
PAD = PAD[0] if PAD else None
WS_PAD = (7 << 20)
def padstamp(a, k):
    if PAD == k: a("s_memrealtime s[68:69]")
def padstore(a, k, WS, sW):
    if PAD != k: return
    a(f"s_or_b32 s98, s2, s{sW}\ns_cmp_lg_u32 s98, 0\ns_cbranch_scc1 LP_{k}\nv_mov_b32 v99, s68\nv_mov_b32 v98, 0\ns_mov_b32 s98, {WS_PAD}\nbuffer_store_dword v99, v98, s[{WS}:{WS+3}], s98 offen\nLP_{k}:")
def padspin(a, WS):
    if PAD is None: return
    if PAD == 1:
        a("s_mov_b32 s99, s68")
    else:
        a(f"v_mov_b32 v98, 0\ns_mov_b32 s98, {WS_PAD}\nbuffer_load_dword v99, v98, s[{WS}:{WS+3}], s98 offen\ns_waitcnt vmcnt(0)\nv_readfirstlane_b32 s99, v99\ns_nop 3")
    a(f"s_mov_b32 s97, 0\nLQ_spin:\ns_memrealtime s[68:69]\ns_waitcnt lgkmcnt(0)\ns_sub_u32 s98, s68, s99\ns_add_u32 s97, s97, 1\ns_cmp_gt_u32 s97, 100000\ns_cbranch_scc1 LQ_done\ns_cmp_lt_u32 s98, 6000\ns_cbranch_scc1 LQ_spin\nLQ_done:")
MF32 = "v_mfma_f32_32x32x16_bf16"
MF16 = "v_mfma_f32_16x16x32_bf16"

ZERO_KB = 8
K1_KV = 131072
K1_CS = 147456
K1_KC = K1_CS + 1024
K1_KP = K1_KC + 1024
K1_PS = K1_KP + 4096
K1_LDS = K1_PS + 1024
def rowstat(a, s, m, r):
    a(f"""
    v_add_f32 v{m}, v{s}, v{s+2}
    v_add_f32 v{r}, v{s+1}, v{s+3}
    v_mul_f32 v{m}, {hex(f2u(-1.0/512))}, v{m}
    v_mul_f32 v{r}, {hex(f2u(1.0/512))}, v{r}
    v_fma_f32 v{r}, -v{m}, v{m}, v{r}
    v_max_f32 v{r}, 0, v{r}
    v_add_f32 v{r}, {hex(f2u(EPS))}, v{r}
    v_rsq_f32 v{r}, v{r}
    """)
def split_ab(a, src, dst, kind):
    a(f"v_and_b32 v11, 0xffff0000, v{src}\nv_sub_f32 v12, v{src}, v11")
    if kind == "m": a(f"v_cvt_pk_bf16_f32 v{dst}, v11, v12\nv_cvt_pk_bf16_f32 v{dst+1}, v11, 0")
    else: a(f"v_cvt_pk_bf16_f32 v{dst}, v11, v11\nv_cvt_pk_bf16_f32 v{dst+1}, v12, 0")
def k1(a):
    X, WQ, WKV, WO, WS = 16, 20, 24, 32, 36
    sW, sTG, sCG = 40, 41, 42
    ONES = 69
    VL = 13
    head(a, "proj_kernel")
    a(f"""
    s_cmp_ge_u32 s2, 256
    s_cbranch_scc1 L1_end
    @S0
    @T0
    s_load_dwordx8 s[4:11], s[0:1], 0
    s_load_dwordx2 s[12:13], s[0:1], 32
    s_load_dwordx2 s[14:15], s[0:1], 96
    v_lshrrev_b32 v1, 6, v0
    v_and_b32 v2, 63, v0
    v_readfirstlane_b32 s{sW}, v1
    s_and_b32 s43, s2, 7
    s_lshr_b32 s44, s2, 3
    s_and_b32 s45, s44, 3
    s_lshl_b32 s{sTG}, s43, 2
    s_add_u32 s{sTG}, s{sTG}, s45
    s_lshr_b32 s{sCG}, s44, 2
    v_and_b32 v3, 15, v2
    v_lshrrev_b32 v4, 4, v2
    v_lshlrev_b32 v{VL}, 4, v2
    s_and_b32 s46, s{sW}, 3
    s_lshl_b32 s50, s46, 12
    s_and_b32 s58, s{sCG}, 3
    s_cmp_lt_u32 s{sW}, 4
    s_cbranch_scc1 L1_gemm
    """)
    VX, VW, WT, CS, WR, XR = 8, 12, 24, 70, 48, 32
    pass
    for i in range(4):
        a(f"v_add_u32 v7, {4*i}, v4\nv_xor_b32 v{VX+i}, v7, v3\nv_lshlrev_b32 v{VX+i}, 4, v{VX+i}\nv_lshl_add_u32 v{VX+i}, v7, 10, v{VX+i}")
    a(f"""
    v_lshrrev_b32 v7, 3, v2
    v_and_b32 v{VW}, 1, v4
    v_lshlrev_b32 v{VW}, 2, v{VW}
    v_and_b32 v14, 7, v2
    v_xor_b32 v{VW}, v{VW}, v14
    v_lshlrev_b32 v{VW}, 4, v{VW}
    v_lshl_add_u32 v{VW}, v7, 10, v{VW}
    s_lshl_b32 s48, s{sTG}, 16
    s_lshl_b32 s43, s46, 14
    s_add_u32 s48, s48, s43
    s_lshl_b32 s49, s46, 15
    s_lshl_b32 s43, s{sCG}, 7
    s_add_u32 s49, s49, s43
    s_waitcnt lgkmcnt(0)
    @S1
    """)
    srd(a, X, 4, 2 << 20)
    def issx(c):
        a(f"s_add_u32 s51, s48, {c*256}")
        for i in range(4):
            a(f"s_add_u32 m0, s50, {c*16384 + i*1024}\ns_nop 0\nbuffer_load_dwordx4 v{VX+i}, s[{X}:{X+3}], s51 offen lds")
    def issw(c):
        for i in range(4):
            a(f"s_add_u32 m0, s50, {65536 + c*16384 + i*1024}\ns_add_u32 s52, s49, {(128*c + 8*i) * 1024}\nbuffer_load_dwordx4 v{VW}, s[{WQ}:{WQ+3}], s52 offen lds")
    def isskv(c):
        a(f"s_add_u32 m0, s61, {K1_KV + c*4096}\ns_add_u32 s52, s61, {c*4096}\nbuffer_load_dwordx4 v{VL}, s[{WKV}:{WKV+3}], s52 offen lds")
    issx(0)
    a(f"s_cmp_ge_u32 s{sCG}, 4\ns_cselect_b32 s8, s10, s8\ns_cselect_b32 s9, s11, s9\ns_lshl_b32 s61, s46, 10")
    srd(a, WKV, 8, 16 << 10)
    isskv(0); issx(1); isskv(1)
    srd(a, WQ, 6, 512 << 10)
    a(f"""
    v_mov_b32 v{ONES}, 0x3f803f80
    v_add_u32 v30, {K1_KC}, v{VL}
    s_lshl_b32 s43, s58, 8
    s_add_u32 s43, s43, {K1_PS}
    v_lshl_add_u32 v31, v3, 4, s43
    s_lshl_b32 s56, s{sTG}, 1
    s_lshr_b32 s43, s58, 1
    s_add_u32 s56, s56, s43
    s_mul_i32 s56, s56, {TILE}
    s_add_u32 s56, s56, {WS_KV}
    s_and_b32 s57, s58, 1
    s_lshl_b32 s43, s57, 8
    s_mul_i32 s44, s57, 544
    s_add_u32 s44, s44, 1024
    s_cmp_ge_u32 s{sCG}, 4
    s_cselect_b32 s43, s44, s43
    s_cselect_b64 s[62:63], -1, 0
    s_add_u32 s56, s56, s43
    v_and_b32 v14, 1, v4
    v_lshrrev_b32 v15, 1, v4
    v_lshlrev_b32 v26, 9, v14
    v_lshl_add_u32 v26, v15, 3, v26
    v_lshlrev_b32 v27, 8, v15
    v_lshl_add_u32 v27, v14, 3, v27
    v_cndmask_b32 v26, v26, v27, s[62:63]
    v_lshl_add_u32 v26, v3, 4, v26
    v_lshlrev_b32 v27, 4, v4
    v_lshlrev_b32 v28, 2, v3
    v_cndmask_b32 v27, v28, v27, s[62:63]
    v_cndmask_b32 v28, 0, 4, s[62:63]
    v_mov_b32 v29, 0x7fff0000
    v_mov_b32 v74, 0
    v_mov_b32 v75, 0
    v_mov_b32 v78, 0
    v_mov_b32 v79, 0
    """)
    srd(a, WS, 14, WS_SIZE)
    a("@S2")
    size = [5, 5, 5, 5, 4, 4, 4, 4]
    for g in range(8):
        if g + 2 < 4: issx(g + 2); isskv(g + 2)
        elif g + 2 < 8: issw(g - 2)
        a(f"s_waitcnt vmcnt({sum(size[g+1:g+3])})\ns_barrier")
        if g in (0, 3, 4, 7): a(f"@S{ {0:3, 3:4, 4:5, 7:6}[g] }")
    a(f"""
    s_cmp_lg_u32 s46, 0
    s_cbranch_scc1 L1_lf
    ds_read_b128 v[80:83], v31
    ds_read_b128 v[84:87], v30
    ds_read_b128 {vr(XR,4)}, v30 offset:1024
    ds_read_b128 {vr(XR+4,4)}, v30 offset:2048
    ds_read_b128 {vr(XR+8,4)}, v30 offset:3072
    ds_read_b128 {vr(XR+12,4)}, v30 offset:4096
    s_waitcnt lgkmcnt(4)
    """)
    rowstat(a, 80, 8, 9)
    a(f"""
    v_add_f32 v84, v84, v85
    v_add_f32 v86, v86, v87
    ds_bpermute_b32 v88, v27, v9
    v_add_u32 v27, v27, v28
    ds_bpermute_b32 v89, v27, v9
    v_add_u32 v27, v27, v28
    ds_bpermute_b32 v90, v27, v9
    v_add_u32 v27, v27, v28
    ds_bpermute_b32 v91, v27, v9
    v_add_f32 v84, v84, v86
    v_cndmask_b32 v85, v84, v8, s[62:63]
    v_cndmask_b32 v86, v8, v84, s[62:63]
    """)
    split_ab(a, 85, 72, "c"); split_ab(a, 86, 76, "m")
    a("s_waitcnt lgkmcnt(4)")
    for r in range(4):
        a(f"v_add_f32 v{XR+r}, v{XR+r}, v{XR+4+r}\nv_add_f32 v{XR+8+r}, v{XR+8+r}, v{XR+12+r}")
    for r in range(4): a(f"v_add_f32 v{XR+r}, v{XR+r}, v{XR+8+r}")
    a(f"""
    v_cmp_gt_u32 vcc, 4, v2
    v_lshlrev_b32 v12, 2, v2
    {MF16} {vr(XR,4)}, v[72:75], v[76:79], {vr(XR,4)}
    v_cndmask_b32 v14, 0, v{ONES}, vcc
    s_and_b64 s[62:63], s[62:63], 0xff
    s_waitcnt lgkmcnt(0)
    s_nop 4
    """)
    for r in range(4): a(f"v_mul_f32 v{XR+r}, v{88+r}, v{XR+r}")
    a(f"""
    v_cvt_pk_bf16_f32 v{XR}, v{XR}, v{XR+1}
    v_cvt_pk_bf16_f32 v{XR+1}, v{XR+2}, v{XR+3}
    buffer_store_dwordx2 {vr(XR,2)}, v26, s[{WS}:{WS+3}], s56 offen
    v_cndmask_b32 v12, v29, v12, s[62:63]
    buffer_store_dword v14, v12, s[{WS}:{WS+3}], s56 offen offset:512
    L1_lf:
    @D0 9 {WS} {sW}
    s_endpgm
    """)
    D1 = 16
    XF, WF = 120, 32
    XA, WA, WB, WOD = 72, 68, 70, 80
    KX, KW = 92, 93
    SX, SXX, KC, KD = 14, 15, 71, 96
    KF = 104
    a(f"""
    L1_gemm:
    v_and_b32 v5, 31, v2
    v_lshrrev_b32 v6, 5, v2
    s_and_b32 s53, s{sW}, 1
    s_lshr_b32 s54, s{sW}, 1
    s_lshl_b32 s59, s2, 1
    s_add_u32 s59, s59, s53
    s_lshr_b32 s43, s59, 6
    s_lshr_b32 s44, s59, 2
    s_and_b32 s44, s44, 15
    s_and_b32 s45, s59, 3
    s_lshl_b32 s44, s44, 15
    s_lshl_b32 s43, s43, 7
    s_lshl_b32 s45, s45, 3
    s_add_u32 s47, s44, s43
    s_add_u32 s47, s47, s45
    v_lshrrev_b32 v7, 2, v3
    v_lshlrev_b32 v7, 5, v7
    v_and_b32 v8, 3, v3
    v_lshl_add_u32 v7, v8, 1, v7
    v_lshl_add_u32 v7, v4, 13, v7
    v_add_u32 v8, 4096, v7
    s_waitcnt lgkmcnt(0)
    """)
    srd(a, WO, 12, 512 << 10); srd(a, WS, 14, WS_SIZE)
    a(f"@P0 {WS} {sW}")
    a(f"s_cmp_ge_u32 s{sW}, 2\ns_cbranch_scc1 L1_nowo")
    for j in range(8):
        a(f"buffer_load_ushort v{WOD + j}, v{7 + j//4}, s[{WO}:{WO+3}], s47 offen offset:{(j & 3) * 1024}")
    a(f"""
    s_branch L1_noz
    L1_nowo:
    s_cmp_lg_u32 s{sW}, 2
    s_cbranch_scc1 L1_noz
    s_cmp_ge_u32 s2, {ZERO_KB}
    s_cbranch_scc1 L1_noz
    s_lshl_b32 s43, s2, 10
    v_add_u32 v9, s43, v{VL}
    v_cmp_gt_u32 vcc, 5504, v9
    s_add_u32 s43, s43, {WS_ACT}
    s_nop 0
    v_cndmask_b32 v{WOD}, 0, -1, vcc
    v_mov_b32 v{WOD+1}, v{WOD}
    v_mov_b32 v{WOD+2}, v{WOD}
    v_mov_b32 v{WOD+3}, v{WOD}
    buffer_store_dwordx4 {vr(WOD,4)}, v{VL}, s[{WS}:{WS+3}], s43 offen
    L1_noz:
    s_lshl_b32 s43, s54, 1
    v_xor_b32 v12, s43, v3
    s_lshl_b32 s43, s53, 13
    v_lshlrev_b32 v9, 8, v5
    v_add_u32 v9, s43, v9
    """)
    for j in range(8):
        a(f"v_add_u32 v10, {2*j}, v6\nv_xor_b32 v10, v10, v12\nv_lshl_add_u32 v{XA+j}, v10, 4, v9")
    a(f"""
    v_lshrrev_b32 v9, 2, v3
    v_lshl_add_u32 v10, v6, 3, v9
    v_lshlrev_b32 v10, 7, v10
    v_lshrrev_b32 v11, 1, v9
    v_xor_b32 v11, s54, v11
    v_lshl_add_u32 v10, v11, 6, v10
    v_and_b32 v11, 1, v4
    v_lshl_add_u32 v10, v11, 5, v10
    v_and_b32 v11, 3, v3
    v_lshl_add_u32 v10, v11, 3, v10
    s_lshl_b32 s43, s54, 11
    s_add_u32 s44, s43, 0x10000
    s_sub_u32 s43, {0x10000 + 2048}, s43
    v_add_u32 v{WA}, s44, v10
    v_add_u32 v{WB}, s43, v10
    v_lshl_add_u32 v{KW}, v4, 3, v9
    v_lshlrev_b32 v{KW}, 5, v{KW}
    v_lshl_add_u32 v{KW}, v11, 3, v{KW}
    s_lshl_b32 s43, s46, 10
    s_add_u32 s43, s43, {K1_KV}
    v_add_u32 v{KW}, s43, v{KW}
    s_lshl_b32 s43, s46, 2
    v_add_u32 v{KX}, s43, v4
    v_xor_b32 v{KX}, v{KX}, v3
    v_lshlrev_b32 v{KX}, 4, v{KX}
    v_lshl_add_u32 v{KX}, v3, 8, v{KX}
    s_lshl_b32 s43, s58, 12
    v_add_u32 v{KX}, s43, v{KX}
    v_lshrrev_b32 v64, 3, v5
    v_lshlrev_b32 v64, 13, v64
    v_and_b32 v11, 7, v5
    v_lshl_add_u32 v64, v11, 4, v64
    v_lshl_add_u32 v64, v6, 9, v64
    s_lshl_b32 s60, s{sTG}, 16
    s_lshl_b32 s44, s53, 15
    s_add_u32 s60, s60, s44
    s_lshl_b32 s44, s{sCG}, 10
    s_add_u32 s60, s60, s44
    s_lshl_b32 s44, s54, 8
    s_add_u32 s60, s60, s44
    s_add_u32 s60, s60, {WS_Q}
    s_lshl_b32 s43, s53, 9
    s_add_u32 s43, s43, {K1_PS}
    v_lshl_add_u32 v67, v5, 4, s43
    s_lshl_b32 s43, s54, 3
    v_lshl_add_u32 v65, v6, 2, v67
    v_add_u32 v65, s43, v65
    s_lshl_b32 s43, s46, 2
    s_add_u32 s43, s43, {K1_KC}
    v_add_u32 v94, s43, v{VL}
    s_lshl_b32 s43, s46, 10
    s_add_u32 s43, s43, {K1_KP}
    v_add_u32 v95, s43, v{VL}
    s_lshl_b32 s59, s59, 10
    s_add_u32 s59, s59, {WS_WO}
    s_cmp_ge_u32 s{sW}, 2
    s_cselect_b32 s59, {WS_SIZE}, s59
    s_cmp_ge_u32 s{sCG}, 4
    s_cselect_b64 s[62:63], -1, 0
    v_mov_b32 v{ONES}, 0x3f803f80
    v_mov_b32 v{SX}, 0
    v_mov_b32 v{SXX}, 0
    v_mov_b32 v{KC}, 0
    v_mov_b32 v90, 0
    v_mov_b32 v91, 0
    v_mov_b32 v250, 0
    v_mov_b32 v251, 0
    """)
    def xreads(c):
        kx, kw = KF + 8*(c & 1), KF + 8*(c & 1) + 4
        for u in (0, 2, 4, 6): a(f"ds_read_b128 {vr(XF+32*c+4*u,4)}, v{XA+u} offset:{c*16384}")
        a(f"ds_read_b128 {vr(kx,4)}, v{KX} offset:{c*16384}")
        a(f"ds_read_b64_tr_b16 {vr(kw,2)}, v{KW} offset:{c*4096}\nds_read_b64_tr_b16 {vr(kw+2,2)}, v{KW} offset:{c*4096+128}")
        for u in (1, 3, 5, 7): a(f"ds_read_b128 {vr(XF+32*c+4*u,4)}, v{XA+u} offset:{c*16384}")
    def wread(ks):
        ar = WB if ks & 1 else WA
        off = (ks & ~1) * 2048
        a(f"ds_read_b64_tr_b16 {vr(WF+4*(ks&7),2)}, v{ar} offset:{off}\nds_read_b64_tr_b16 {vr(WF+4*(ks&7)+2,2)}, v{ar} offset:{off + 512}")
    def work(c):
        kx, kw = KF + 8*(c & 1), KF + 8*(c & 1) + 4
        for u in (0, 2, 4, 6):
            a(f"s_waitcnt lgkmcnt({10 - u//2})")
            for q in range(4): a(f"v_dot2c_f32_bf16 v{SX}, v{XF+32*c+4*u+q}, v{ONES}\nv_dot2c_f32_bf16 v{SXX}, v{XF+32*c+4*u+q}, v{XF+32*c+4*u+q}")
        a("s_waitcnt lgkmcnt(4)")
        for q in range(4): a(f"v_dot2c_f32_bf16 v{KC}, v{kw+q}, v{ONES}")
        a(f"{MF16} {vr(KD,4)}, {vr(kw,4)}, {vr(kx,4)}, {'0' if c == 0 else vr(KD,4)}")
        a(f"{MF16} {vr(KD+4,4)}, {vr(kx,4)}, {vr(kw,4)}, {'0' if c == 0 else vr(KD+4,4)}")
    for c in range(4):
        a("s_barrier")
        if c == 0: a("@S3")
        xreads(c)
        work(c)
        if c == 1:
            a(f"""
            s_waitcnt vmcnt(0)
            v_lshl_or_b32 v{WOD}, v{WOD+1}, 16, v{WOD}
            v_lshl_or_b32 v{WOD+1}, v{WOD+3}, 16, v{WOD+2}
            v_lshl_or_b32 v{WOD+2}, v{WOD+5}, 16, v{WOD+4}
            v_lshl_or_b32 v{WOD+3}, v{WOD+7}, 16, v{WOD+6}
            buffer_store_dwordx4 {vr(WOD,4)}, v{VL}, s[{WS}:{WS+3}], s59 offen
            """)
    a("@S4\ns_barrier")
    for ks in range(4): wread(ks)
    a(f"""
    v_permlane32_swap_b32 v{SX}, v{SXX}
    ds_write_b32 v94, v{KC}
    v_add_f32 v{SX}, v{SX}, v{SXX}
    ds_write_b32 v65, v{SX}
    """)
    for r in range(4): a(f"v_cndmask_b32 v{KD+r}, v{KD+r}, v{KD+4+r}, s[62:63]")
    a(f"ds_write_b128 v95, {vr(KD,4)}\nv_mov_b32 v{SXX}, 0\ns_waitcnt lgkmcnt(7)")
    for ks in range(4, 8): wread(ks)
    a("@S5")
    for g in range(8):
        a(f"s_waitcnt lgkmcnt({8 if g < 7 else 0})")
        for ks in range(4*g, 4*g + 4):
            for q in range(4): a(f"v_dot2c_f32_bf16 v{SXX}, v{WF+4*(ks&7)+q}, v{ONES}")
        if g % 2 == 0 and g < 6: a("s_barrier")
        if g == 2: a("ds_read_b128 v[84:87], v67")
        for ks in range(4*g, 4*g + 4):
            a(f"{MF32} {vr(D1,16)}, {vr(WF+4*(ks&7),4)}, {vr(XF+4*ks,4)}, {'0' if ks == 0 else vr(D1,16)}")
            if ks + 8 < 32: wread(ks + 8)
            if ks == 16: rowstat(a, 84, 8, 9)
            if ks == 17: split_ab(a, 8, 88, "m"); a(f"v_mul_f32 v10, {hex(f2u(QSCALE))}, v9")
            if ks == 29: a("s_nop 0"); split_ab(a, SXX, 248, "c")
    a(f"""
    {MF32} {vr(D1,16)}, v[248:251], v[88:91], {vr(D1,16)}
    @S6
    s_nop 11
    """)
    for r in range(8):
        a(f"v_mul_f32 v{D1+2*r}, v10, v{D1+2*r}\nv_mul_f32 v{D1+2*r+1}, v10, v{D1+2*r+1}\nv_cvt_pk_bf16_f32 v{WF+r}, v{D1+2*r}, v{D1+2*r+1}")
        if r == 3: a(f"buffer_store_dwordx4 {vr(WF,4)}, v64, s[{WS}:{WS+3}], s60 offen")
    a(f"""
    buffer_store_dwordx4 {vr(WF+4,4)}, v64, s[{WS}:{WS+3}], s60 offen offset:128
    @D0 9 {WS} {sW}
    L1_end:
    s_endpgm
    """)
    return desc("proj_kernel", 252, 68)
KV_BYTES = 64 * TILE
OB = KV_BYTES
RED = OB + 8 * 1040
PART = RED + 1024
CNT = PART + 8192
K2_LDS = CNT + 64
FW = 0
FR = 32768
SMF = "v_smfmac_f32_32x32x32_bf16"
LOG2E = 1.4426950408889634
def k2(a):
    X, WR_, OUT, WS, FA, FB = 16, 20, 24, 28, 32, 36
    sW, sN = 40, 43
    Q, C, KF, VF, S, O = 8, 12, 28, 36, 52, 84
    IDX, KA, VA, LN16, XO, WRO, M, VA0 = 100, 101, 102, 103, 104, 105, 106, 107
    WO = 108; XRES, WRV, FWR = 236, 240, 244
    BAR_TILE = 10
    X_ = [x for x in sys.argv if x.startswith("--x")]
    head(a, "attn_kernel")
    a(f"""
    s_cmp_ge_u32 s2, 256
    s_cbranch_scc1 L2_end
    @S0
    @T1
    s_load_dwordx2 s[10:11], s[0:1], 96
    s_load_dwordx2 s[4:5], s[0:1], 0
    s_load_dwordx8 s[52:59], s[0:1], 48
    s_load_dwordx2 s[8:9], s[0:1], 80
    v_lshrrev_b32 v1, 6, v0
    v_and_b32 v2, 63, v0
    v_readfirstlane_b32 s{sW}, v1
    v_lshlrev_b32 v{LN16}, 4, v2
    v_and_b32 v5, 31, v2
    v_lshrrev_b32 v6, 5, v2
    s_lshl_b32 s44, s2, 13
    s_lshl_b32 s45, s{sW}, 10
    s_add_u32 s46, s44, s45
    s_add_u32 s47, s45, {WS_KV}
    s_lshl_b32 s50, s{sW}, 16
    s_add_u32 s51, s50, {WS_WO}
    s_and_b32 s48, s{sW}, 4
    s_lshl_b32 s48, s48, 13
    s_add_u32 s50, s51, s48
    s_waitcnt lgkmcnt(0)
    @S1
    """)
    srd(a, WS, 10, WS_SIZE)
    a(f"@P1 {WS} {sW}")
    a(f"buffer_load_dwordx4 {vr(Q,4)}, v{LN16}, s[{WS}:{WS+3}], s46 offen")
    def dma(i):
        return [f"s_add_u32 m0, s45, {i*8192}", f"s_add_u32 s48, s47, {i*8192}", f"buffer_load_dwordx4 v{LN16}, s[{WS}:{WS+3}], s48 offen lds"]
    for i in range(3): a("\n".join(dma(i)))
    srd(a, X, 4, 2 << 20); srd(a, WR_, 52, 1024); srd(a, OUT, 8, 2 << 20)
    a(f"""
    v_lshlrev_b32 v3, 8, v6
    v_lshl_add_u32 v3, v5, 4, v3
    v_and_b32 v4, 27, v5
    v_cmp_eq_u32 vcc, 16, v4
    v_mov_b32 v4, 528
    v_mov_b32 v7, 512
    v_cndmask_b32 v4, v4, v7, vcc
    v_cmp_gt_u32 vcc, 16, v5
    v_mov_b32 v{KA}, v{LN16}
    v_mov_b32 v{IDX}, 0xdddddddd
    v_cndmask_b32 v3, v4, v3, vcc
    v_add_u32 v{VA0}, 1024, v3
    v_mov_b32 v{VA}, v{VA0}
    v_lshrrev_b32 v3, 3, v2
    v_lshlrev_b32 v3, 4, v3
    s_lshl_b32 s49, s{sW}, 7
    v_add_u32 v{WRO}, s49, v3
    v_and_b32 v4, 7, v2
    v_lshl_add_u32 v{XO}, v4, 10, v{WRO}
    s_and_b32 s48, s2, 7
    s_lshr_b32 s49, s2, 3
    s_mul_i32 s64, s48, 22
    s_add_u32 s64, s64, s49
    s_lshl_b32 s48, s48, 3
    s_add_u32 s48, s48, s49
    s_sub_u32 s61, s48, 22
    s_and_b32 s61, s61, 63
    s_lshl_b32 s61, s61, 4
    s_min_u32 s48, s64, 171
    s_lshl_b32 s48, s48, 4
    s_mul_i32 s49, s{sW}, {64*2752}
    s_add_u32 s48, s48, s49
    s_lshl_b32 s49, s{sW}, 16
    s_add_u32 s49, s49, s61
    s_add_u32 s66, s49, {512*1024}
    s_add_u32 s67, s49, {1024*1024}
    s_movk_i32 s60, 2752
    s_cmp_ge_u32 s2, 176
    s_cselect_b32 s65, s49, s48
    s_cselect_b32 s66, s66, s48
    s_cselect_b32 s67, s67, 0x200000
    s_cselect_b32 s60, 0x400, s60
    s_cselect_b32 s54, s58, s54
    s_cselect_b32 s55, s59, s55
    s_cselect_b32 s56, s58, s56
    s_cselect_b32 s57, s59, s57
    v_mul_u32_u24 v1, s60, v2
    """)
    srd(a, FA, 54, 512*2752); srd(a, FB, 56, 512*2752)
    a(f"""
    s_mov_b32 s60, {16*8192}
    s_cmp_lt_u32 s{sW}, 4
    s_cselect_b32 s60, s60, {WS_SIZE}
    v_mov_b32 v3, {CNT}
    """)
    for r in range(16): a(f"v_mov_b32 v{O+r}, 0")
    a(f"""
    ds_write_b32 v3, v{O}
    @S2
    s_waitcnt vmcnt(0) lgkmcnt(0)
    s_barrier
    @S3
    ds_read_b128 {vr(KF,4)}, v{KA}
    ds_read_b128 {vr(KF+4,4)}, v{KA} offset:{TILE}
    ds_read_b128 {vr(VF,4)}, v{VA}
    ds_read_b128 {vr(VF+4,4)}, v{VA} offset:544
    s_waitcnt lgkmcnt(3)
    {MF32} {vr(S,16)}, {vr(KF,4)}, {vr(Q,4)}, 0
    s_waitcnt lgkmcnt(2)
    {MF32} {vr(S+16,16)}, {vr(KF+4,4)}, {vr(Q,4)}, 0
    s_nop 9
    v_max3_f32 v{M}, v{S}, v{S+1}, v{S+2}
    """)
    for r in range(3, 31, 2): a(f"v_max3_f32 v{M}, v{S+r}, v{S+r+1}, v{M}")
    a(f"""
    v_max_f32 v{M}, v{S+31}, v{M}
    v_mov_b32 v3, v{M}
    s_nop 1
    v_permlane32_swap_b32 v{M}, v3
    v_max_f32 v{M}, v{M}, v3
    v_sub_f32 v{C}, {hex(f2u(-SHIFT))}, v{M}
    """)
    for r in range(1, 16): a(f"v_mov_b32 v{C+r}, v{C}")
    a(f"""
    @S4
    @S13
    s_nop 1
    {MF32} {vr(S,16)}, {vr(KF,4)}, {vr(Q,4)}, {vr(C,16)}
    s_waitcnt lgkmcnt(0)
    s_nop 10
    """)
    base = 0
    nwo = 0
    NPT = 4 if '--npt4' in sys.argv else 2
    if '--noprio' not in sys.argv: a('s_setprio 1')
    for t in range(64):
        cur, nxt = t & 1, (t + 1) & 1
        Sc, Sn = S + 16*cur, S + 16*nxt
        e = [f"v_exp_f32 v{Sc+i}, v{Sc+i}" for i in range(16)]
        side = []
        if t < 6: side = dma(3 + 2*t) + dma(4 + 2*t)
        elif t == 6:
            d = dma(16); d[1] = "s_add_u32 s48, s47, s60"
            side = dma(15) + d
        elif t >= BAR_TILE and nwo < 32:
            for _ in range(NPT):
                f = nwo; nwo += 1
                if f and f % 4 == 0: side.append("s_add_u32 s50, s50, 4096")
                side.append(f"buffer_load_dwordx4 {vr(WO + 4*f, 4)}, v{LN16}, s[{WS}:{WS+3}], s50 offen offset:{(f & 3)*1024}")
            if NPT == 2: side = side[:-1] + [None, None, side[-1]]
        elif t == BAR_TILE + 32 // NPT: side = [f"buffer_load_dwordx4 {vr(XRES,4)}, v{XO}, s[{X}:{X+3}], s44 offen", None, None, None, f"buffer_load_dwordx4 {vr(WRV,4)}, v{WRO}, s[{WR_}:{WR_+3}], 0 offen"]
        elif t in (BAR_TILE + 32 // NPT + 1, BAR_TILE + 32 // NPT + 3, BAR_TILE + 32 // NPT + 5):
            i = (t - (BAR_TILE + 32 // NPT + 1)) // 2
            sr = FA if i == 0 else FB
            side = [f"buffer_load_dwordx4 {vr(FWR+4*i,4)}, v1, s[{sr}:{sr+3}], s{65+i} offen"]
        if t in (16, 32): a(f"@S{4 + t//16}")
        if t == BAR_TILE: a("s_waitcnt vmcnt(0)\ns_barrier")
        if (t + 2 - base) * TILE + TILE > 65535:
            a(f"v_add_u32 v{KA}, {(t - base)*TILE}, v{KA}\nv_add_u32 v{VA}, {(t - base)*TILE}, v{VA}")
            base = t
        after = {i: [] for i in range(16)}
        if t > 0: after[1].append(f"{SMF} {vr(O,16)}, {vr(VF+8*nxt+4,4)}, {vr(Sn+8,8)}, v{IDX}")
        if t < 63:
            after[2].append(f"ds_read_b128 {vr(VF+8*nxt,4)}, v{VA} offset:{(t+1-base)*TILE}")
            after[3].append(f"ds_read_b128 {vr(VF+8*nxt+4,4)}, v{VA} offset:{(t+1-base)*TILE+544}")
            after[5].append(f"{MF32} {vr(Sn,16)}, {vr(KF+4*nxt,4)}, {vr(Q,4)}, {vr(C,16)}")
        if t < 62: after[4].append(f"ds_read_b128 {vr(KF+4*cur,4)}, v{KA} offset:{(t+2-base)*TILE}")
        after[11].append(f"{SMF} {vr(O,16)}, {vr(VF+8*cur,4)}, {vr(Sc,8)}, v{IDX}")
        for x, slot in zip(side, (6, 7, 8, 9, 12, 13)):
            if x: after[slot].append(x)
        after[15].append("s_waitcnt lgkmcnt(0)")
        for i in range(16):
            a(e[i])
            for x in after[i]: a(x)
    a(f"""
    @S8
    @S14
    s_nop 0
    {SMF} {vr(O,16)}, {vr(VF+12,4)}, {vr(S+24,8)}, v{IDX}
    s_mov_b32 s48, {hex(f2u(2.0**110))}
    v_and_b32 v4, 7, v5
    v_mul_u32_u24 v4, 1040, v4
    v_lshrrev_b32 v7, 3, v5
    v_lshl_add_u32 v4, v7, 5, v4
    v_lshl_add_u32 v4, v6, 3, v4
    s_lshl_b32 s49, s{sW}, 7
    s_add_u32 s49, s49, {OB}
    v_add_u32 v4, s49, v4
    v_and_b32 v1, 7, v2
    v_mul_u32_u24 v0, 1040, v1
    v_lshrrev_b32 v7, 4, v2
    v_mul_f32 v3, 0, v{O}
    """)
    for r in range(1, 8): a(f"v_fma_f32 v3, v{O+r}, 0, v3")
    a(f"""
    v_add_f32 v3, v3, v{O+8}
    v_cmp_ngt_f32 vcc, s48, v3
    v_rcp_f32 v3, v{O+8}
    s_cmp_lg_u64 vcc, 0
    s_cbranch_scc1 L2_slow
    L2_epi:
    """)
    for r in range(8): a(f"v_mul_f32 v{O+r}, v3, v{O+r}")
    for r in range(4): a(f"v_cvt_pk_bf16_f32 v{O+r}, v{O+2*r}, v{O+2*r+1}")
    BA, PA = 101, 102
    a(f"""
    ds_write_b64 v4, {vr(O,2)}
    ds_write_b64 v4, {vr(O+2,2)} offset:16
    v_lshl_add_u32 v{BA}, v7, 4, v0
    v_add_u32 v{BA}, {OB}, v{BA}
    v_lshl_add_u32 v{PA}, v7, 3, v1
    v_lshlrev_b32 v{PA}, 6, v{PA}
    s_and_b32 s49, s{sW}, 3
    s_lshl_b32 s49, s49, 11
    s_add_u32 s49, s49, {PART}
    v_add_u32 v{PA}, s49, v{PA}
    s_waitcnt vmcnt(0)
    s_cmp_lt_u32 s{sW}, 4
    s_cbranch_scc1 L2_old
    L2_join:
    @S7
    """)
    HF, T = 60, 68
    ACC = O
    BF = [Q, 28, 32, 36]
    a("v_mov_b32 v7, 0x3f803f80")
    for q in range(4): a(f"v_mov_b32 v{T+q}, 0")
    for j in range(4):
        a(f"v_lshlrev_b32 v{HF+2*j}, 16, v{XRES+j}\nv_and_b32 v{HF+2*j+1}, 0xffff0000, v{XRES+j}\nv_dot2c_f32_bf16 v{T+3}, v{WRV+j}, v7")
    a(f"""
    v_and_b32 v3, 8, v2
    v_cmp_ne_u32 vcc, 0, v3
    s_cmp_ge_u32 s{sW}, 4
    s_cselect_b64 s[62:63], -1, 0
    s_waitcnt lgkmcnt(0)
    s_barrier
    @S9
    s_mov_b64 exec, s[62:63]
    """)
    for i in range(4): a(f"ds_read_b128 {vr(ACC+4*i,4)}, v{PA} offset:{16*i}")
    a("s_mov_b64 exec, -1")
    for ks in range(8, 12): a(f"ds_read_b128 {vr(BF[ks&3],4)}, v{BA} offset:{ks*64}")
    a(f"v_add_u32 v0, s45, v{LN16}")
    for ks in range(8, 16):
        a(f"s_waitcnt lgkmcnt({min(3, 15 - ks)})")
        for i in range(4):
            a(f"{MF16} {vr(ACC+4*i,4)}, {vr(WO+16*(ks-8)+4*i,4)}, {vr(BF[ks&3],4)}, {vr(ACC+4*i,4)}")
        if ks < 12: a(f"ds_read_b128 {vr(BF[ks&3],4)}, v{BA} offset:{(ks+4)*64}")
    for i in range(3): a(f"ds_write_b128 v0, {vr(FWR+4*i,4)} offset:{FW + i*8192}")
    A8, HB = 40, 48
    a(f"""
    @S10
    v_lshrrev_b32 v3, 4, v2
    v_lshlrev_b32 v3, 8, v3
    v_lshl_add_u32 v3, v1, 5, v3
    s_lshl_b32 s49, s{sW}, 2
    s_add_u32 s49, s49, {RED}
    v_add_u32 v3, s49, v3
    v_lshlrev_b32 v4, 5, v1
    v_add_u32 v4, {RED}, v4
    s_add_u32 s49, s44, {WS_H}
    """)
    for j in range(8): a(f"v_cndmask_b32 v{A8+j}, v{ACC+j}, v{ACC+8+j}, vcc")
    for j in range(8): a(f"v_add_f32 v{HF+j}, v{HF+j}, v{A8+j}")
    for j in range(4): a(f"v_cvt_pk_bf16_f32 v{HB+j}, v{HF+2*j}, v{HF+2*j+1}")
    a(f"buffer_store_dwordx4 {vr(HB,4)}, v{XO}, s[{WS}:{WS+3}], s49 offen sc0 sc1")
    for j in range(4):
        a(f"""
        v_dot2c_f32_bf16 v{T}, v{HB+j}, v7
        v_dot2c_f32_bf16 v{T+1}, v{HB+j}, v{HB+j}
        v_dot2c_f32_bf16 v{T+2}, v{HB+j}, v{WRV+j}
        """)
    a(f"""
    v_lshlrev_b32 v{HF}, 16, v{HB}
    v_and_b32 v{HF+1}, 0xffff0000, v{HB}
    v_permlane32_swap_b32 v{T}, v{T+1}
    v_permlane32_swap_b32 v{T+2}, v{T+3}
    v_add_f32 v{T}, v{T}, v{T+1}
    v_add_f32 v{T+2}, v{T+2}, v{T+3}
    v_lshlrev_b32 v{HF+2}, 16, v{HB+1}
    v_and_b32 v{HF+3}, 0xffff0000, v{HB+1}
    v_permlane16_swap_b32 v{T}, v{T+2}
    v_add_f32 v{T}, v{T}, v{T+2}
    v_lshlrev_b32 v{HF+4}, 16, v{HB+2}
    v_and_b32 v{HF+5}, 0xffff0000, v{HB+2}
    v_add_f32_dpp v{T}, v{T}, v{T} row_ror:8 row_mask:0xf bank_mask:0xf
    ds_write_b32 v3, v{T}
    v_lshlrev_b32 v{HF+6}, 16, v{HB+3}
    v_and_b32 v{HF+7}, 0xffff0000, v{HB+3}
    s_waitcnt lgkmcnt(0)
    s_barrier
    @S11
    """)
    R_ = 108
    for q in (0, 2, 1, 3):
        a(f"ds_read_b128 {vr(R_+8*q,4)}, v4 offset:{q*256}\nds_read_b128 {vr(R_+8*q+4,4)}, v4 offset:{q*256+16}")
    def sum8(b):
        a(f"""
        v_add_f32 v{b}, v{b}, v{b+1}
        v_add_f32 v{b+2}, v{b+2}, v{b+3}
        v_add_f32 v{b+4}, v{b+4}, v{b+5}
        v_add_f32 v{b+6}, v{b+6}, v{b+7}
        v_add_f32 v{b}, v{b}, v{b+2}
        v_add_f32 v{b+4}, v{b+4}, v{b+6}
        v_add_f32 v{b}, v{b}, v{b+4}
        """)
    s1, s3, s2, s4 = R_, R_+8, R_+16, R_+24
    ST = 76
    OV = 80
    a("s_waitcnt lgkmcnt(4)")
    sum8(s1); sum8(s2)
    a(f"""
    v_mul_f32 v{ST}, {hex(f2u(1.0/512))}, v{s1}
    v_mul_f32 v{s2}, {hex(f2u(1.0/512))}, v{s2}
    v_fma_f32 v{s2}, -v{ST}, v{ST}, v{s2}
    v_max_f32 v{s2}, 0, v{s2}
    v_add_f32 v{s2}, {hex(f2u(EPS))}, v{s2}
    v_rsq_f32 v{ST+1}, v{s2}
    s_cmp_lg_u32 s{sW}, 0
    s_cbranch_scc1 L2_nokey
    s_waitcnt lgkmcnt(0)
    """)
    sum8(s3); sum8(s4)
    a(f"""
    v_fma_f32 v{s3}, -v{ST}, v{s4}, v{s3}
    s_lshl_b32 s48, s2, 3
    v_add_u32 v4, s48, v1
    v_mul_f32 v{ST+2}, v{ST+1}, v{s3}
    v_lshlrev_b32 v0, 4, v4
    s_mov_b32 s48, {WS_ST}
    s_mov_b64 exec, 0xff
    buffer_store_dwordx4 {vr(ST,4)}, v0, s[{WS}:{WS+3}], s48 offen sc0 sc1
    s_mov_b64 exec, -1
    v_ashrrev_i32 v3, 31, v{ST+2}
    v_or_b32 v3, 0x80000000, v3
    v_xor_b32 v3, v3, v{ST+2}
    v_and_b32 v3, 0xfffff800, v3
    v_sub_u32 v4, 2047, v4
    v_or_b32 v4, v3, v4
    v_mov_b32 v5, 0
    """)
    for dpp in ("quad_perm:[1,0,3,2]", "quad_perm:[2,3,0,1]", "row_half_mirror"):
        a(f"""
        s_nop 1
        v_mov_b32_dpp v6, v4 {dpp} row_mask:0xf bank_mask:0xf
        v_mov_b32_dpp v3, v5 {dpp} row_mask:0xf bank_mask:0xf
        v_med3_u32 v5, v4, v5, v6
        v_max_u32 v4, v4, v6
        v_max_u32 v5, v5, v3
        """)
    a(f"""
    L2_nokey:
    v_add_f32 v3, 1.0, v{ST+1}
    v_mul_f32 v6, v{ST}, v{ST+1}
    s_waitcnt vmcnt(0)
    s_barrier
    s_cmp_lg_u32 s{sW}, 0
    s_cbranch_scc1 L2_nopoll
    s_lshl_b32 s48, s2, 3
    s_add_u32 s48, s48, {WS_KEY}
    v_mov_b32 v0, 0
    s_mov_b64 exec, 1
    buffer_store_dwordx2 v[4:5], v0, s[{WS}:{WS+3}], s48 offen sc0 sc1
    s_mov_b64 exec, -1
    @S1
    s_mov_b32 s48, {WS_KEY}
    s_mov_b32 s49, 0
    L2_kpoll:
    buffer_load_dwordx4 {vr(R_,4)}, v{LN16}, s[{WS}:{WS+3}], s48 offen sc1
    buffer_load_dwordx4 {vr(R_+4,4)}, v{LN16}, s[{WS}:{WS+3}], s48 offen offset:1024 sc1
    s_add_u32 s49, s49, 1
    s_waitcnt vmcnt(0)
    v_min_u32 v0, v{R_}, v{R_+2}
    v_min3_u32 v0, v{R_+4}, v{R_+6}, v0
    v_cmp_eq_u32 vcc, 0, v0
    s_cmp_gt_u32 s49, 0x40000
    s_cbranch_scc1 L2_kgot
    s_cbranch_vccnz L2_kpoll
    L2_kgot:
    @S2
    v_max_u32 v4, v{R_}, v{R_+2}
    v_min_u32 v5, v{R_}, v{R_+2}
    v_max3_u32 v5, v5, v{R_+1}, v{R_+3}
    v_med3_u32 v5, v4, v5, v{R_+4}
    v_max_u32 v4, v4, v{R_+4}
    v_med3_u32 v5, v4, v5, v{R_+6}
    v_max_u32 v4, v4, v{R_+6}
    v_max3_u32 v5, v5, v{R_+5}, v{R_+7}
    """)
    for dpp in ("quad_perm:[1,0,3,2]", "quad_perm:[2,3,0,1]", "row_half_mirror", "row_mirror"):
        a(f"""
        s_nop 1
        v_mov_b32_dpp v0, v4 {dpp} row_mask:0xf bank_mask:0xf
        v_mov_b32_dpp v{R_}, v5 {dpp} row_mask:0xf bank_mask:0xf
        v_med3_u32 v5, v4, v5, v0
        v_max_u32 v4, v4, v0
        v_max_u32 v5, v5, v{R_}
        """)
    a(f"""
    v_lshrrev_b32 v0, 4, v2
    v_lshlrev_b32 v0, 3, v0
    v_add_u32 v0, {CNT + 16}, v0
    ds_write_b64 v0, v[4:5]
    L2_nopoll:
    """)
    for j in range(8): a(f"v_fma_f32 v{A8+j}, v{HF+j}, v3, -v6")
    for j in range(4): a(f"v_cvt_pk_bf16_f32 v{OV+j}, v{A8+2*j}, v{A8+2*j+1}")
    AF = 140
    a(f"""
    v_and_b32 v9, 15, v2
    v_lshrrev_b32 v10, 2, v9
    v_lshrrev_b32 v11, 4, v2
    v_lshl_add_u32 v10, v11, 3, v10
    v_lshlrev_b32 v10, 4, v10
    v_and_b32 v8, 1, v9
    v_lshl_add_u32 v10, v8, 3, v10
    s_cmp_ge_u32 s2, 176
    s_cselect_b32 s48, 0, 12
    s_cselect_b32 s49, 3, 1
    s_mul_i32 s49, s49, s45
    v_and_b32 v8, 2, v9
    v_lshlrev_b32 v8, s48, v8
    v_and_b32 v8, 0x2000, v8
    v_add3_u32 v10, v10, v8, s49
    """)
    for s_ in range(6):
        a(f"ds_read_b64_tr_b16 {vr(AF+4*s_,2)}, v10 offset:{FW + s_*512}\nds_read_b64_tr_b16 {vr(AF+4*s_+2,2)}, v10 offset:{FW + s_*512 + 64}")
    BFR = 164
    for q in range(8): a(f"v_mov_b32 v{BFR+q}, 0x3f803f80")
    a(f"""
    v_mov_b32 v0, {CNT + 16}
    s_waitcnt lgkmcnt(0)
    s_barrier
    ds_read_b128 {vr(R_,4)}, v0
    ds_read_b128 {vr(R_+4,4)}, v0 offset:16
    s_lshl_b32 s48, s2, 3
    v_add_u32 v8, s48, v1
    s_waitcnt lgkmcnt(0)
    v_max_u32 v4, v{R_}, v{R_+2}
    v_min_u32 v5, v{R_}, v{R_+2}
    v_max3_u32 v5, v5, v{R_+1}, v{R_+3}
    v_med3_u32 v5, v4, v5, v{R_+4}
    v_max_u32 v4, v4, v{R_+4}
    v_med3_u32 v5, v4, v5, v{R_+6}
    v_max_u32 v4, v4, v{R_+6}
    v_max3_u32 v5, v5, v{R_+5}, v{R_+7}
    v_and_b32 v4, 0x7ff, v4
    v_and_b32 v5, 0x7ff, v5
    v_sub_u32 v4, 2047, v4
    v_sub_u32 v5, 2047, v5
    s_cmp_ge_u32 s2, 176
    s_cbranch_scc1 L2_st2
    """)
    def outstore():
        a(f"""
        v_cmp_ne_u32 vcc, v4, v8
        v_cmp_ne_u32 s[62:63], v5, v8
        s_and_b64 exec, vcc, s[62:63]
        buffer_store_dwordx4 {vr(OV,4)}, v{XO}, s[{OUT}:{OUT+3}], s44 offen
        s_mov_b64 exec, -1
        """)
    STT, D = 188, 192
    a(f"""
    v_and_b32 v6, 1, v2
    v_cmp_eq_u32 vcc, 1, v6
    s_lshl_b32 s48, s{sW}, 7
    s_add_u32 s48, s48, {WS_H}
    v_cndmask_b32 v3, v4, v5, vcc
    v_lshlrev_b32 v0, 10, v3
    v_lshl_add_u32 v0, v11, 4, v0
    v_lshlrev_b32 v3, 4, v3
    s_mov_b32 s49, {WS_ST}
    s_mov_b32 s62, 0x00030003
    s_mov_b32 s63, s62
    s_mov_b64 exec, s[62:63]
    buffer_load_dwordx4 {vr(BFR,4)}, v0, s[{WS}:{WS+3}], s48 offen sc1
    buffer_load_dwordx4 {vr(BFR+4,4)}, v0, s[{WS}:{WS+3}], s48 offen offset:64 sc1
    s_mov_b64 exec, -1
    buffer_load_dwordx4 {vr(STT,4)}, v3, s[{WS}:{WS+3}], s49 offen sc1
    """)
    outstore()
    a(f"""
    v_min_u32 v0, 3, v9
    v_lshlrev_b32 v0, 6, v0
    v_lshl_add_u32 v0, v11, 4, v0
    s_lshl_b32 s48, s{sW}, 8
    s_add_u32 s48, s48, {FR}
    v_add_u32 v0, s48, v0
    s_waitcnt vmcnt(2)
    @S3
    {MF16} {vr(D,4)}, {vr(AF,4)}, {vr(BFR,4)}, 0
    {MF16} {vr(D,4)}, {vr(AF+4,4)}, {vr(BFR+4,4)}, {vr(D,4)}
    v_lshrrev_b32 v9, 1, v2
    v_and_b32 v9, 7, v9
    v_lshlrev_b32 v10, 2, v9
    v_lshl_add_u32 v10, v11, 9, v10
    v_add_u32 v10, {FR}, v10
    v_lshl_add_u32 v3, v6, 6, v10
    s_nop 1
    ds_write_b128 v0, {vr(D,4)}
    s_waitcnt lgkmcnt(0)
    s_barrier
    s_cmp_lg_u32 s{sW}, 0
    s_cbranch_scc1 L2_fin
    ds_read2_b32 v[12:13], v3 offset0:0 offset1:8
    ds_read2_b32 v[14:15], v3 offset0:64 offset1:72
    ds_read2_b32 v[16:17], v10 offset0:32 offset1:40
    ds_read2_b32 v[18:19], v10 offset0:96 offset1:104
    s_waitcnt lgkmcnt(0) vmcnt(1)
    v_add_f32 v12, v12, v14
    v_add_f32 v13, v13, v15
    v_add_f32 v16, v16, v18
    v_add_f32 v17, v17, v19
    v_fma_f32 v12, -v{STT}, v16, v12
    v_fma_f32 v13, -v{STT}, v17, v13
    v_mov_b32 v14, v12
    v_mov_b32 v15, v13
    s_cmp_ge_u32 s64, 172
    s_cselect_b32 s48, 0x100000, s64
    v_permlane32_swap_b32 v12, v14
    v_permlane32_swap_b32 v13, v15
    v_add_f32 v12, v12, v14
    v_add_f32 v13, v13, v15
    v_mov_b32 v14, v12
    v_mov_b32 v15, v13
    s_lshl_b32 s48, s48, 5
    s_add_u32 s48, s48, {WS_ACT}
    v_permlane16_swap_b32 v12, v14
    v_permlane16_swap_b32 v13, v15
    v_add_f32 v12, v12, v14
    v_add_f32 v13, v13, v15
    v_mul_f32 v12, v12, v{STT+1}
    v_mul_f32 v13, v13, v{STT+1}
    v_mul_f32 v14, {hex(f2u(-LOG2E))}, v12
    v_exp_f32 v14, v14
    v_mul_f32 v12, v12, v13
    v_add_f32 v14, 1.0, v14
    v_rcp_f32 v14, v14
    v_lshlrev_b32 v0, 4, v6
    v_mul_f32 v12, v12, v14
    v_lshl_add_u32 v0, v9, 1, v0
    s_nop 0
    v_mov_b32_dpp v13, v12 quad_perm:[2,3,2,3] row_mask:0xf bank_mask:0xf
    v_cvt_pk_bf16_f32 v12, v12, v13
    s_mov_b64 exec, 0x3333
    buffer_store_dword v12, v0, s[{WS}:{WS+3}], s48 offen sc0 sc1
    L2_fin:
    @D1 15 {WS} {sW}
    s_endpgm
    """)
    a("L2_st2:")
    outstore()
    a(f"""
    s_cmp_ge_u32 s2, 240
    s_cbranch_scc1 L2_fin
    v_and_b32 v6, 8, v2
    v_cmp_ne_u32 vcc, 0, v6
    s_mov_b32 s48, {WS_H}
    s_mov_b32 s49, {WS_ST}
    v_cndmask_b32 v3, v4, v5, vcc
    v_lshlrev_b32 v12, 10, v3
    v_lshl_add_u32 v12, v1, 1, v12
    v_add_u32 v12, s61, v12
    v_lshlrev_b32 v3, 4, v3
    buffer_load_dwordx4 {vr(STT,4)}, v3, s[{WS}:{WS+3}], s49 offen sc1
    buffer_load_ushort v13, v12, s[{WS}:{WS+3}], s48 offen sc1
    v_and_b32 v6, 1, v2
    v_lshlrev_b32 v0, 5, v11
    v_lshl_add_u32 v0, v6, 4, v0
    s_mul_i32 s48, s{sW}, {6*128}
    s_add_u32 s48, s48, {WS_ACT}
    s_mov_b32 s49, 0
    L2_apoll:
    """)
    for s_ in range(6):
        a(f"buffer_load_dwordx4 {vr(BFR+4*s_,4)}, v0, s[{WS}:{WS+3}], s48 offen offset:{s_*128} sc1")
    a(f"s_add_u32 s49, s49, 1\ns_waitcnt vmcnt(0)\nv_max3_u32 v3, v{BFR}, v{BFR+1}, v{BFR+2}")
    for q in range(3, 23, 2): a(f"v_max3_u32 v3, v{BFR+q}, v{BFR+q+1}, v3")
    a(f"""
    v_max_u32 v3, v{BFR+23}, v3
    v_cmp_eq_u32 vcc, -1, v3
    s_cmp_gt_u32 s49, 0x40000
    s_cbranch_scc1 L2_agot
    s_cbranch_vccnz L2_apoll
    L2_agot:
    @S3
    """)
    for s_ in range(6): a(f"{MF16} {vr(D,4)}, {vr(AF+4*s_,4)}, {vr(BFR+4*s_,4)}, {'0' if s_ == 0 else vr(D,4)}")
    a(f"""
    v_and_b32 v3, 1, v11
    v_lshlrev_b32 v0, 5, v6
    v_lshl_add_u32 v0, v3, 4, v0
    s_lshl_b32 s48, s{sW}, 6
    s_add_u32 s48, s48, {FR}
    v_add_u32 v0, s48, v0
    v_lshlrev_b32 v10, 2, v9
    v_lshl_add_u32 v10, v11, 7, v10
    v_add_u32 v10, {FR}, v10
    ds_write_b128 v0, {vr(D,4)}
    s_waitcnt lgkmcnt(0)
    s_barrier
    s_cmp_lg_u32 s{sW}, 0
    s_cbranch_scc1 L2_fin
    ds_read2_b32 v[14:15], v10 offset0:0 offset1:16
    v_mul_f32 v16, {hex(f2u(-LOG2E))}, v{STT+2}
    v_exp_f32 v16, v16
    v_lshlrev_b32 v13, 16, v13
    v_add_f32 v16, 1.0, v16
    v_rcp_f32 v16, v16
    v_sub_f32 v17, v13, v{STT}
    v_fma_f32 v13, v17, v{STT+1}, v13
    s_waitcnt lgkmcnt(0)
    v_add_f32 v14, v14, v15
    v_mov_b32 v15, v14
    s_nop 1
    v_permlane32_swap_b32 v14, v15
    v_add_f32 v14, v14, v15
    v_mov_b32 v15, v14
    s_nop 1
    v_permlane16_swap_b32 v14, v15
    v_add_f32 v14, v14, v15
    v_fma_f32 v14, v14, v16, v13
    v_cvt_pk_bf16_f32 v14, v14, v14
    s_mov_b64 exec, 0xffff
    buffer_store_short v14, v12, s[{OUT}:{OUT+3}], 0 offen
    @Q {WS}
    @D1 15 {WS} {sW}
    L2_end:
    s_endpgm
    """)
    AB = 12
    def wl(reg, sb, f):
        a(f"buffer_load_dwordx4 {vr(reg,4)}, v{LN16}, s[{WS}:{WS+3}], s{sb} offen offset:{(f & 3)*1024}")
        if f % 4 == 3: a(f"s_add_u32 s{sb}, s{sb}, 4096")
    NE = 11
    breg = lambda f: 40 + 4*f if f < NE else WO + 4*(f - NE)
    a(f"""
    L2_old:
    s_setprio 0
    v_mov_b32 v3, {CNT}
    v_mov_b32 v4, 1
    s_waitcnt lgkmcnt(0)
    s_mov_b64 exec, 1
    ds_add_u32 v3, v4
    s_mov_b64 exec, -1
    s_add_u32 s48, s51, {4*65536}
    """)
    for f in range(NE): wl(breg(f), 48, f)
    a(f"""
    L2_spin:
    ds_read_b32 v4, v3
    s_waitcnt lgkmcnt(0)
    v_readfirstlane_b32 s49, v4
    s_cmp_ge_u32 s49, 4
    s_cbranch_scc1 L2_go
    s_sleep 2
    s_branch L2_spin
    L2_go:
    """)
    def half(acc, reg, after):
        for ks in range(3): a(f"ds_read_b128 {vr(BF[ks&3],4)}, v{BA} offset:{ks*64}")
        for ks in range(8):
            if ks + 3 < 8: a(f"ds_read_b128 {vr(BF[(ks+3)&3],4)}, v{BA} offset:{(ks+3)*64}")
            after(ks, 0)
            for i in range(4):
                a(f"{MF16} {vr(acc+4*i,4)}, {vr(reg(4*ks+i),4)}, {vr(BF[ks&3],4)}, {'0' if ks == 0 else vr(acc+4*i,4)}")
            after(ks, 1)
    a(f"s_add_u32 s49, s51, {32768 + ((32 - NE)//4)*4096}")
    def aftA(ks, post):
        if not post: a(f"s_waitcnt lgkmcnt({min(3, 7-ks)})"); return
        for slot in range(4*ks, 4*ks + 4):
            if slot < 32 - NE: wl(WO + 4*slot, 48, slot + NE)
            else: wl(WO + 4*slot, 49, slot)
    half(ACC, lambda f: WO + 4*f, aftA)
    a(f"s_add_u32 s49, s51, 32768")
    def aftB(ks, post):
        if not post:
            done = sum(1 for f in range(NE, 4*ks))
            a(f"s_waitcnt lgkmcnt({min(3, 7-ks)}) vmcnt({min(63, (31 - (4*ks+3)) + NE + done)})"); return
        for f in range(4*ks, 4*ks + 4):
            if f >= NE: wl(WO + 4*(f - NE), 49, f - NE)
    half(AB, breg, aftB)
    a("s_nop 3")
    for i in range(4): a(f"ds_write_b128 v{PA}, {vr(AB+4*i,4)} offset:{16*i}")
    a("s_waitcnt vmcnt(0)\ns_setprio 1\ns_branch L2_join")
    a(f"""
    L2_slow:
    v_mov_b32 v{KA}, v{LN16}
    v_mov_b32 v{M}, 0xff7fffff
    s_mov_b32 s{sN}, 64
    L2_maxloop:
    ds_read_b128 {vr(KF,4)}, v{KA}
    v_add_u32 v{KA}, {TILE}, v{KA}
    s_waitcnt lgkmcnt(0)
    {MF32} {vr(S,16)}, {vr(KF,4)}, {vr(Q,4)}, 0
    s_sub_u32 s{sN}, s{sN}, 1
    s_nop 10
    """)
    for r in range(8): a(f"v_max3_f32 v{M}, v{S+2*r}, v{S+2*r+1}, v{M}")
    a(f"""
    s_cmp_lg_u32 s{sN}, 0
    s_cbranch_scc1 L2_maxloop
    v_mov_b32 v3, v{M}
    v_mov_b32 v{KA}, v{LN16}
    v_mov_b32 v{VA}, v{VA0}
    v_permlane32_swap_b32 v{M}, v3
    v_max_f32 v{M}, v{M}, v3
    """)
    for r in range(16): a(f"v_sub_f32 v{C+r}, 0, v{M}\nv_mov_b32 v{O+r}, 0")
    a(f"""
    s_mov_b32 s{sN}, 64
    L2_slowloop:
    ds_read_b128 {vr(KF,4)}, v{KA}
    ds_read_b128 {vr(VF,4)}, v{VA}
    ds_read_b128 {vr(VF+4,4)}, v{VA} offset:544
    v_add_u32 v{KA}, {TILE}, v{KA}
    v_add_u32 v{VA}, {TILE}, v{VA}
    s_waitcnt lgkmcnt(0)
    {MF32} {vr(S,16)}, {vr(KF,4)}, {vr(Q,4)}, {vr(C,16)}
    s_sub_u32 s{sN}, s{sN}, 1
    s_nop 10
    """)
    for i in range(16): a(f"v_exp_f32 v{S+i}, v{S+i}")
    a(f"""
    s_nop 1
    {SMF} {vr(O,16)}, {vr(VF,4)}, {vr(S,8)}, v{IDX}
    {SMF} {vr(O,16)}, {vr(VF+4,4)}, {vr(S+8,8)}, v{IDX}
    s_cmp_lg_u32 s{sN}, 0
    s_cbranch_scc1 L2_slowloop
    s_nop 11
    v_rcp_f32 v3, v{O+8}
    s_branch L2_epi
    """)
    return desc("attn_kernel", 256, 68)
def main():
    hdr = open("sequential_preLN__grouped_kv_mqa__moe_arch_mod__prompt.s.ref").read().split("\n")
    top = [l for l in hdr if l.startswith(";") and "@launch" not in l and "Override" not in l and "grid=ceil" not in l]
    a = Asm()
    d = k1(a) + k2(a)
    out = "\n".join(top) + "\n"
    out += f"; @launch kernel=proj_kernel grid=(256,1,1) block=(512,1,1) lds={K1_LDS}\n"
    out += f"; @launch kernel=attn_kernel grid=(256,1,1) block=(512,1,1) lds={K2_LDS}\n"
    out += '.amdgcn_target "amdgcn-amd-amdhsa--gfx950"\n.text\n' + a.text() + '.section .rodata,"a"\n' + d
    sys.stdout.write(out)
main()
```

```python
import sys, struct
def f2u(x): return struct.unpack("<I", struct.pack("<f", x))[0]

WS_Q   = 0
WS_KV  = 2 << 20
WS_WO  = 3 << 20
WS_H   = 4 << 20

WS_ST  = (6 << 20) + 0x10000
WS_ACT = (6 << 20) + 0x20000
WS_KEY = WS_ACT + 0x10000
KSH = 7; ASH = 7
for _x in sys.argv:
    if _x.startswith('--ksh='): KSH = int(_x.split('=')[1])
    if _x.startswith('--ash='): ASH = int(_x.split('=')[1])
WS_SIZE = 8 << 20
TILE = 2112
QSCALE = 0.25 * 1.4426950408889634
EPS = 1e-5
SHIFT = 96.0
for _x in sys.argv:
    if _x.startswith('--shift='): SHIFT = float(_x.split('=')[1])

class Asm:
    def __init__(self): self.l = []
    def __call__(self, s):
        for x in s.split("\n"):
            x = x.strip()
            if x.startswith("@S"): stamp(self, int(x[2:])); continue
            if x.startswith("@P"): padstore(self, *[int(t) for t in x[2:].split()]); continue
            if x.startswith("@Q"): padspin(self, *[int(t) for t in x[2:].split()]); continue
            if x.startswith("@T"): padstamp(self, int(x[2:])); continue
            if x.startswith("@D"): dump(self, *[int(t) for t in x[2:].split()]); continue
            if x: self.l.append(("" if x.endswith(":") else "    ") + x)
    def text(self): return "\n".join(self.l) + "\n"

def srd(a, d, p, size):
    a(f"s_mov_b32 s{d}, s{p}\ns_and_b32 s{d+1}, s{p+1}, 0xffff\ns_mov_b32 s{d+2}, {size}\ns_mov_b32 s{d+3}, 0x20000")
def vr(b, n): return f"v[{b}:{b+n-1}]"
def head(a, name):
    a(f".globl {name}\n.p2align 8\n.type {name},@function\n{name}:")
def desc(name, nv, ns):
    return f""".p2align 6
.amdhsa_kernel {name}
  .amdhsa_next_free_vgpr {nv}
  .amdhsa_next_free_sgpr {100 if (DIAG or PAD is not None) else ns}
  .amdhsa_accum_offset {(nv+3)//4*4}
  .amdhsa_group_segment_fixed_size 0
  .amdhsa_kernarg_size 104
  .amdhsa_user_sgpr_count 2
  .amdhsa_user_sgpr_kernarg_segment_ptr 1
  .amdhsa_system_sgpr_workgroup_id_x 1
.end_amdhsa_kernel
"""
DIAG = "--diag" in sys.argv
WS_DIAG = 16 << 20
if DIAG: WS_SIZE = 32 << 20
LIGHT = '--light' in sys.argv
def stamp(a, i, force=False):
    if LIGHT and i != 0 and not force: return
    if DIAG: a(f"{'s_memtime' if i >= 13 else 's_memrealtime'} s[{70+2*i}:{71+2*i}]\ns_waitcnt lgkmcnt(0)")
DIAG2 = "--diag2" in sys.argv
D2SEL = {0: [(0, 1), (2, 0), (8, 0)], 1: [(0, 1), (1, 0), (3, 0), (4, 0), (8, 0), (10, 0), (12, 0)], 2: [(0, 1), (1, 0), (3, 0), (5, 0), (6, 0), (7, 0)]}
_dl = [0]
def dump(a, kidx, n, WS, sW):
    if not DIAG: return
    stamp(a, min(n - 1, 12), True)
    if DIAG2:
        _dl[0] += 1
        base = sum(len(D2SEL[k]) for k in range(kidx))
        a(f"s_and_b32 s98, s2, 15\ns_cmp_lg_u32 s98, 0\ns_cbranch_scc1 LD_{_dl[0]}\ns_load_dwordx2 s[98:99], s[0:1], 88\ns_mov_b64 exec, 1\nv_mov_b32 v1, 0\ns_waitcnt lgkmcnt(0)\ns_add_u32 s98, s98, {512*(2-kidx)}\ns_addc_u32 s99, s99, 0")
        for j, (i, inv) in enumerate(D2SEL[kidx]):
            a(f"v_mov_b32 v0, s{70+2*i}")
            if inv: a("v_not_b32 v0, v0")
            a(f"global_atomic_umax v1, v0, s[98:99] offset:{4*(base+j)}\ns_nop 1")
        a(f"LD_{_dl[0]}:")
        return
    a(f"s_mov_b64 exec, 1\ns_lshl_b32 s69, s2, 4\ns_add_u32 s69, s69, s{sW}\ns_lshl_b32 s69, s69, 6\ns_add_u32 s69, s69, {WS_DIAG + kidx * (1 << 20)}\nv_mov_b32 v1, 0")
    for i in range(n):
        a(f"v_mov_b32 v0, s{70+2*i}\nbuffer_store_dword v0, v1, s[{WS}:{WS+3}], s69 offen offset:{4*i}")
PAD = [int(x.split("=")[1]) for x in sys.argv if x.startswith("--pad=")]
PAD = PAD[0] if PAD else None
WS_PAD = (7 << 20)
def padstamp(a, k):
    if PAD == k: a("s_memrealtime s[68:69]")
def padstore(a, k, WS, sW):
    if PAD != k: return
    a(f"s_or_b32 s98, s2, s{sW}\ns_cmp_lg_u32 s98, 0\ns_cbranch_scc1 LP_{k}\nv_mov_b32 v99, s68\nv_mov_b32 v98, 0\ns_mov_b32 s98, {WS_PAD}\nbuffer_store_dword v99, v98, s[{WS}:{WS+3}], s98 offen\nLP_{k}:")
def padspin(a, WS):
    if PAD is None: return
    if PAD == 1:
        a("s_mov_b32 s99, s68")
    else:
        a(f"v_mov_b32 v98, 0\ns_mov_b32 s98, {WS_PAD}\nbuffer_load_dword v99, v98, s[{WS}:{WS+3}], s98 offen\ns_waitcnt vmcnt(0)\nv_readfirstlane_b32 s99, v99\ns_nop 3")
    a(f"s_mov_b32 s97, 0\nLQ_spin:\ns_memrealtime s[68:69]\ns_waitcnt lgkmcnt(0)\ns_sub_u32 s98, s68, s99\ns_add_u32 s97, s97, 1\ns_cmp_gt_u32 s97, 100000\ns_cbranch_scc1 LQ_done\ns_cmp_lt_u32 s98, 6000\ns_cbranch_scc1 LQ_spin\nLQ_done:")
MF32 = "v_mfma_f32_32x32x16_bf16"
MF16 = "v_mfma_f32_16x16x32_bf16"

ZERO_KB = 8
K1_KV = 131072
K1_CS = 147456
K1_KC = K1_CS + 1024
K1_KP = K1_KC + 1024
K1_PS = K1_KP + 4096
K1_LDS = K1_PS + 1024
def rowstat(a, s, m, r):
    a(f"""
    v_add_f32 v{m}, v{s}, v{s+2}
    v_add_f32 v{r}, v{s+1}, v{s+3}
    v_mul_f32 v{m}, {hex(f2u(-1.0/512))}, v{m}
    v_mul_f32 v{r}, {hex(f2u(1.0/512))}, v{r}
    v_fma_f32 v{r}, -v{m}, v{m}, v{r}
    v_max_f32 v{r}, 0, v{r}
    v_add_f32 v{r}, {hex(f2u(EPS))}, v{r}
    v_rsq_f32 v{r}, v{r}
    """)
def split_ab(a, src, dst, kind):
    a(f"v_and_b32 v11, 0xffff0000, v{src}\nv_sub_f32 v12, v{src}, v11")
    if kind == "m": a(f"v_cvt_pk_bf16_f32 v{dst}, v11, v12\nv_cvt_pk_bf16_f32 v{dst+1}, v11, 0")
    else: a(f"v_cvt_pk_bf16_f32 v{dst}, v11, v11\nv_cvt_pk_bf16_f32 v{dst+1}, v12, 0")
def k1(a):
    X, WQ, WKV, WO, WS = 16, 20, 24, 32, 36
    sW, sTG, sCG = 40, 41, 42
    ONES = 69
    VL = 13
    head(a, "proj_kernel")
    a(f"""
    s_cmp_ge_u32 s2, 256
    s_cbranch_scc1 L1_end
    @S0
    @T0
    s_load_dwordx8 s[4:11], s[0:1], 0
    s_load_dwordx2 s[12:13], s[0:1], 32
    s_load_dwordx2 s[14:15], s[0:1], 96
    v_lshrrev_b32 v1, 6, v0
    v_and_b32 v2, 63, v0
    v_readfirstlane_b32 s{sW}, v1
    s_and_b32 s43, s2, 7
    s_lshr_b32 s44, s2, 3
    s_and_b32 s45, s44, 3
    s_lshl_b32 s{sTG}, s43, 2
    s_add_u32 s{sTG}, s{sTG}, s45
    s_lshr_b32 s{sCG}, s44, 2
    v_and_b32 v3, 15, v2
    v_lshrrev_b32 v4, 4, v2
    v_lshlrev_b32 v{VL}, 4, v2
    s_and_b32 s46, s{sW}, 3
    s_lshl_b32 s50, s46, 12
    s_and_b32 s58, s{sCG}, 3
    s_cmp_lt_u32 s{sW}, 4
    s_cbranch_scc1 L1_gemm
    """)
    VX, VW, WT, CS, WR, XR = 8, 12, 24, 70, 48, 32
    pass
    for i in range(4):
        a(f"v_add_u32 v7, {4*i}, v4\nv_xor_b32 v{VX+i}, v7, v3\nv_lshlrev_b32 v{VX+i}, 4, v{VX+i}\nv_lshl_add_u32 v{VX+i}, v7, 10, v{VX+i}")
    a(f"""
    v_lshrrev_b32 v7, 3, v2
    v_and_b32 v{VW}, 1, v4
    v_lshlrev_b32 v{VW}, 2, v{VW}
    v_and_b32 v14, 7, v2
    v_xor_b32 v{VW}, v{VW}, v14
    v_lshlrev_b32 v{VW}, 4, v{VW}
    v_lshl_add_u32 v{VW}, v7, 10, v{VW}
    s_lshl_b32 s48, s{sTG}, 16
    s_lshl_b32 s43, s46, 14
    s_add_u32 s48, s48, s43
    s_lshl_b32 s49, s46, 15
    s_lshl_b32 s43, s{sCG}, 7
    s_add_u32 s49, s49, s43
    s_waitcnt lgkmcnt(0)
    @S1
    """)
    srd(a, X, 4, 2 << 20)
    def issx(c):
        a(f"s_add_u32 s51, s48, {c*256}")
        for i in range(4):
            a(f"s_add_u32 m0, s50, {c*16384 + i*1024}\ns_nop 0\nbuffer_load_dwordx4 v{VX+i}, s[{X}:{X+3}], s51 offen lds")
    def issw(c):
        for i in range(4):
            a(f"s_add_u32 m0, s50, {65536 + c*16384 + i*1024}\ns_add_u32 s52, s49, {(128*c + 8*i) * 1024}\nbuffer_load_dwordx4 v{VW}, s[{WQ}:{WQ+3}], s52 offen lds")
    def isskv(c):
        a(f"s_add_u32 m0, s61, {K1_KV + c*4096}\ns_add_u32 s52, s61, {c*4096}\nbuffer_load_dwordx4 v{VL}, s[{WKV}:{WKV+3}], s52 offen lds")
    issx(0)
    a(f"s_cmp_ge_u32 s{sCG}, 4\ns_cselect_b32 s8, s10, s8\ns_cselect_b32 s9, s11, s9\ns_lshl_b32 s61, s46, 10")
    srd(a, WKV, 8, 16 << 10)
    isskv(0); issx(1); isskv(1)
    srd(a, WQ, 6, 512 << 10)
    a(f"""
    v_mov_b32 v{ONES}, 0x3f803f80
    v_add_u32 v30, {K1_KC}, v{VL}
    s_lshl_b32 s43, s58, 8
    s_add_u32 s43, s43, {K1_PS}
    v_lshl_add_u32 v31, v3, 4, s43
    s_lshl_b32 s56, s{sTG}, 1
    s_lshr_b32 s43, s58, 1
    s_add_u32 s56, s56, s43
    s_mul_i32 s56, s56, {TILE}
    s_add_u32 s56, s56, {WS_KV}
    s_and_b32 s57, s58, 1
    s_lshl_b32 s43, s57, 8
    s_mul_i32 s44, s57, 544
    s_add_u32 s44, s44, 1024
    s_cmp_ge_u32 s{sCG}, 4
    s_cselect_b32 s43, s44, s43
    s_cselect_b64 s[62:63], -1, 0
    s_add_u32 s56, s56, s43
    v_and_b32 v14, 1, v4
    v_lshrrev_b32 v15, 1, v4
    v_lshlrev_b32 v26, 9, v14
    v_lshl_add_u32 v26, v15, 3, v26
    v_lshlrev_b32 v27, 8, v15
    v_lshl_add_u32 v27, v14, 3, v27
    v_cndmask_b32 v26, v26, v27, s[62:63]
    v_lshl_add_u32 v26, v3, 4, v26
    v_lshlrev_b32 v27, 4, v4
    v_lshlrev_b32 v28, 2, v3
    v_cndmask_b32 v27, v28, v27, s[62:63]
    v_cndmask_b32 v28, 0, 4, s[62:63]
    v_mov_b32 v29, 0x7fff0000
    v_mov_b32 v74, 0
    v_mov_b32 v75, 0
    v_mov_b32 v78, 0
    v_mov_b32 v79, 0
    """)
    srd(a, WS, 14, WS_SIZE)
    a("@S2")
    size = [5, 5, 5, 5, 4, 4, 4, 4]
    for g in range(8):
        if g + 2 < 4: issx(g + 2); isskv(g + 2)
        elif g + 2 < 8: issw(g - 2)
        a(f"s_waitcnt vmcnt({sum(size[g+1:g+3])})\ns_barrier")
        if g in (0, 3, 4, 7): a(f"@S{ {0:3, 3:4, 4:5, 7:6}[g] }")
    a(f"""
    s_cmp_lg_u32 s46, 0
    s_cbranch_scc1 L1_lf
    ds_read_b128 v[80:83], v31
    ds_read_b128 v[84:87], v30
    ds_read_b128 {vr(XR,4)}, v30 offset:1024
    ds_read_b128 {vr(XR+4,4)}, v30 offset:2048
    ds_read_b128 {vr(XR+8,4)}, v30 offset:3072
    ds_read_b128 {vr(XR+12,4)}, v30 offset:4096
    s_waitcnt lgkmcnt(4)
    """)
    rowstat(a, 80, 8, 9)
    a(f"""
    v_add_f32 v84, v84, v85
    v_add_f32 v86, v86, v87
    ds_bpermute_b32 v88, v27, v9
    v_add_u32 v27, v27, v28
    ds_bpermute_b32 v89, v27, v9
    v_add_u32 v27, v27, v28
    ds_bpermute_b32 v90, v27, v9
    v_add_u32 v27, v27, v28
    ds_bpermute_b32 v91, v27, v9
    v_add_f32 v84, v84, v86
    v_cndmask_b32 v85, v84, v8, s[62:63]
    v_cndmask_b32 v86, v8, v84, s[62:63]
    """)
    split_ab(a, 85, 72, "c"); split_ab(a, 86, 76, "m")
    a("s_waitcnt lgkmcnt(4)")
    for r in range(4):
        a(f"v_add_f32 v{XR+r}, v{XR+r}, v{XR+4+r}\nv_add_f32 v{XR+8+r}, v{XR+8+r}, v{XR+12+r}")
    for r in range(4): a(f"v_add_f32 v{XR+r}, v{XR+r}, v{XR+8+r}")
    a(f"""
    v_cmp_gt_u32 vcc, 4, v2
    v_lshlrev_b32 v12, 2, v2
    {MF16} {vr(XR,4)}, v[72:75], v[76:79], {vr(XR,4)}
    v_cndmask_b32 v14, 0, v{ONES}, vcc
    s_and_b64 s[62:63], s[62:63], 0xff
    s_waitcnt lgkmcnt(0)
    s_nop 4
    """)
    for r in range(4): a(f"v_mul_f32 v{XR+r}, v{88+r}, v{XR+r}")
    a(f"""
    v_cvt_pk_bf16_f32 v{XR}, v{XR}, v{XR+1}
    v_cvt_pk_bf16_f32 v{XR+1}, v{XR+2}, v{XR+3}
    buffer_store_dwordx2 {vr(XR,2)}, v26, s[{WS}:{WS+3}], s56 offen
    v_cndmask_b32 v12, v29, v12, s[62:63]
    buffer_store_dword v14, v12, s[{WS}:{WS+3}], s56 offen offset:512
    L1_lf:
    @D0 9 {WS} {sW}
    s_endpgm
    """)
    D1 = 16
    XF, WF = 120, 32
    XA, WA, WB, WOD = 72, 68, 70, 80
    KX, KW = 92, 93
    SX, SXX, KC, KD = 14, 15, 71, 96
    KF = 104
    a(f"""
    L1_gemm:
    v_and_b32 v5, 31, v2
    v_lshrrev_b32 v6, 5, v2
    s_and_b32 s53, s{sW}, 1
    s_lshr_b32 s54, s{sW}, 1
    s_lshl_b32 s59, s2, 1
    s_add_u32 s59, s59, s53
    s_lshr_b32 s43, s59, 6
    s_lshr_b32 s44, s59, 2
    s_and_b32 s44, s44, 15
    s_and_b32 s45, s59, 3
    s_lshl_b32 s44, s44, 15
    s_lshl_b32 s43, s43, 7
    s_lshl_b32 s45, s45, 3
    s_add_u32 s47, s44, s43
    s_add_u32 s47, s47, s45
    v_lshrrev_b32 v7, 2, v3
    v_lshlrev_b32 v7, 5, v7
    v_and_b32 v8, 3, v3
    v_lshl_add_u32 v7, v8, 1, v7
    v_lshl_add_u32 v7, v4, 13, v7
    v_add_u32 v8, 4096, v7
    s_waitcnt lgkmcnt(0)
    """)
    srd(a, WO, 12, 512 << 10); srd(a, WS, 14, WS_SIZE)
    a(f"@P0 {WS} {sW}")
    a(f"s_cmp_ge_u32 s{sW}, 2\ns_cbranch_scc1 L1_nowo")
    for j in range(8):
        a(f"buffer_load_ushort v{WOD + j}, v{7 + j//4}, s[{WO}:{WO+3}], s47 offen offset:{(j & 3) * 1024}")
    a(f"""
    s_branch L1_noz
    L1_nowo:
    s_cmp_lg_u32 s{sW}, 2
    s_cbranch_scc1 L1_noz
    s_cmp_lt_u32 s2, 172
    s_cselect_b32 s44, -1, 0
    v_mov_b32 v{WOD}, s44
    v_mov_b32 v{WOD+1}, 0
    v_lshlrev_b32 v9, 2, v2
    s_lshl_b32 s43, s2, {ASH}
    s_add_u32 s43, s43, {WS_ACT}
    s_lshl_b32 s44, s2, {KSH}
    s_add_u32 s44, s44, {WS_KEY}
    s_mov_b64 exec, 0xff
    buffer_store_dword v{WOD}, v9, s[{WS}:{WS+3}], s43 offen
    s_mov_b64 exec, 3
    buffer_store_dword v{WOD+1}, v9, s[{WS}:{WS+3}], s44 offen
    s_mov_b64 exec, -1
    L1_noz:
    s_lshl_b32 s43, s54, 1
    v_xor_b32 v12, s43, v3
    s_lshl_b32 s43, s53, 13
    v_lshlrev_b32 v9, 8, v5
    v_add_u32 v9, s43, v9
    """)
    for j in range(8):
        a(f"v_add_u32 v10, {2*j}, v6\nv_xor_b32 v10, v10, v12\nv_lshl_add_u32 v{XA+j}, v10, 4, v9")
    a(f"""
    v_lshrrev_b32 v9, 2, v3
    v_lshl_add_u32 v10, v6, 3, v9
    v_lshlrev_b32 v10, 7, v10
    v_lshrrev_b32 v11, 1, v9
    v_xor_b32 v11, s54, v11
    v_lshl_add_u32 v10, v11, 6, v10
    v_and_b32 v11, 1, v4
    v_lshl_add_u32 v10, v11, 5, v10
    v_and_b32 v11, 3, v3
    v_lshl_add_u32 v10, v11, 3, v10
    s_lshl_b32 s43, s54, 11
    s_add_u32 s44, s43, 0x10000
    s_sub_u32 s43, {0x10000 + 2048}, s43
    v_add_u32 v{WA}, s44, v10
    v_add_u32 v{WB}, s43, v10
    v_lshl_add_u32 v{KW}, v4, 3, v9
    v_lshlrev_b32 v{KW}, 5, v{KW}
    v_lshl_add_u32 v{KW}, v11, 3, v{KW}
    s_lshl_b32 s43, s46, 10
    s_add_u32 s43, s43, {K1_KV}
    v_add_u32 v{KW}, s43, v{KW}
    s_lshl_b32 s43, s46, 2
    v_add_u32 v{KX}, s43, v4
    v_xor_b32 v{KX}, v{KX}, v3
    v_lshlrev_b32 v{KX}, 4, v{KX}
    v_lshl_add_u32 v{KX}, v3, 8, v{KX}
    s_lshl_b32 s43, s58, 12
    v_add_u32 v{KX}, s43, v{KX}
    v_lshrrev_b32 v64, 3, v5
    v_lshlrev_b32 v64, 13, v64
    v_and_b32 v11, 7, v5
    v_lshl_add_u32 v64, v11, 4, v64
    v_lshl_add_u32 v64, v6, 9, v64
    s_lshl_b32 s60, s{sTG}, 16
    s_lshl_b32 s44, s53, 15
    s_add_u32 s60, s60, s44
    s_lshl_b32 s44, s{sCG}, 10
    s_add_u32 s60, s60, s44
    s_lshl_b32 s44, s54, 8
    s_add_u32 s60, s60, s44
    s_add_u32 s60, s60, {WS_Q}
    s_lshl_b32 s43, s53, 9
    s_add_u32 s43, s43, {K1_PS}
    v_lshl_add_u32 v67, v5, 4, s43
    s_lshl_b32 s43, s54, 3
    v_lshl_add_u32 v65, v6, 2, v67
    v_add_u32 v65, s43, v65
    s_lshl_b32 s43, s46, 2
    s_add_u32 s43, s43, {K1_KC}
    v_add_u32 v94, s43, v{VL}
    s_lshl_b32 s43, s46, 10
    s_add_u32 s43, s43, {K1_KP}
    v_add_u32 v95, s43, v{VL}
    s_lshl_b32 s59, s59, 10
    s_add_u32 s59, s59, {WS_WO}
    s_cmp_ge_u32 s{sW}, 2
    s_cselect_b32 s59, {WS_SIZE}, s59
    s_cmp_ge_u32 s{sCG}, 4
    s_cselect_b64 s[62:63], -1, 0
    v_mov_b32 v{ONES}, 0x3f803f80
    v_mov_b32 v{SX}, 0
    v_mov_b32 v{SXX}, 0
    v_mov_b32 v{KC}, 0
    v_mov_b32 v90, 0
    v_mov_b32 v91, 0
    v_mov_b32 v250, 0
    v_mov_b32 v251, 0
    """)
    def xreads(c):
        kx, kw = KF + 8*(c & 1), KF + 8*(c & 1) + 4
        for u in (0, 2, 4, 6): a(f"ds_read_b128 {vr(XF+32*c+4*u,4)}, v{XA+u} offset:{c*16384}")
        a(f"ds_read_b128 {vr(kx,4)}, v{KX} offset:{c*16384}")
        a(f"ds_read_b64_tr_b16 {vr(kw,2)}, v{KW} offset:{c*4096}\nds_read_b64_tr_b16 {vr(kw+2,2)}, v{KW} offset:{c*4096+128}")
        for u in (1, 3, 5, 7): a(f"ds_read_b128 {vr(XF+32*c+4*u,4)}, v{XA+u} offset:{c*16384}")
    def wread(ks):
        ar = WB if ks & 1 else WA
        off = (ks & ~1) * 2048
        a(f"ds_read_b64_tr_b16 {vr(WF+4*(ks&7),2)}, v{ar} offset:{off}\nds_read_b64_tr_b16 {vr(WF+4*(ks&7)+2,2)}, v{ar} offset:{off + 512}")
    def work(c):
        kx, kw = KF + 8*(c & 1), KF + 8*(c & 1) + 4
        for u in (0, 2, 4, 6):
            a(f"s_waitcnt lgkmcnt({10 - u//2})")
            for q in range(4): a(f"v_dot2c_f32_bf16 v{SX}, v{XF+32*c+4*u+q}, v{ONES}\nv_dot2c_f32_bf16 v{SXX}, v{XF+32*c+4*u+q}, v{XF+32*c+4*u+q}")
        a("s_waitcnt lgkmcnt(4)")
        for q in range(4): a(f"v_dot2c_f32_bf16 v{KC}, v{kw+q}, v{ONES}")
        a(f"{MF16} {vr(KD,4)}, {vr(kw,4)}, {vr(kx,4)}, {'0' if c == 0 else vr(KD,4)}")
        a(f"{MF16} {vr(KD+4,4)}, {vr(kx,4)}, {vr(kw,4)}, {'0' if c == 0 else vr(KD+4,4)}")
    for c in range(4):
        a("s_barrier")
        if c == 0: a("@S3")
        xreads(c)
        work(c)
        if c == 1:
            a(f"""
            s_waitcnt vmcnt(0)
            v_lshl_or_b32 v{WOD}, v{WOD+1}, 16, v{WOD}
            v_lshl_or_b32 v{WOD+1}, v{WOD+3}, 16, v{WOD+2}
            v_lshl_or_b32 v{WOD+2}, v{WOD+5}, 16, v{WOD+4}
            v_lshl_or_b32 v{WOD+3}, v{WOD+7}, 16, v{WOD+6}
            buffer_store_dwordx4 {vr(WOD,4)}, v{VL}, s[{WS}:{WS+3}], s59 offen
            """)
    a("@S4\ns_barrier")
    for ks in range(4): wread(ks)
    a(f"""
    v_permlane32_swap_b32 v{SX}, v{SXX}
    ds_write_b32 v94, v{KC}
    v_add_f32 v{SX}, v{SX}, v{SXX}
    ds_write_b32 v65, v{SX}
    """)
    for r in range(4): a(f"v_cndmask_b32 v{KD+r}, v{KD+r}, v{KD+4+r}, s[62:63]")
    a(f"ds_write_b128 v95, {vr(KD,4)}\nv_mov_b32 v{SXX}, 0\ns_waitcnt lgkmcnt(7)")
    for ks in range(4, 8): wread(ks)
    a("@S5")
    for g in range(8):
        a(f"s_waitcnt lgkmcnt({8 if g < 7 else 0})")
        for ks in range(4*g, 4*g + 4):
            for q in range(4): a(f"v_dot2c_f32_bf16 v{SXX}, v{WF+4*(ks&7)+q}, v{ONES}")
        if g % 2 == 0 and g < 6: a("s_barrier")
        if g == 2: a("ds_read_b128 v[84:87], v67")
        for ks in range(4*g, 4*g + 4):
            a(f"{MF32} {vr(D1,16)}, {vr(WF+4*(ks&7),4)}, {vr(XF+4*ks,4)}, {'0' if ks == 0 else vr(D1,16)}")
            if ks + 8 < 32: wread(ks + 8)
            if ks == 16: rowstat(a, 84, 8, 9)
            if ks == 17: split_ab(a, 8, 88, "m"); a(f"v_mul_f32 v10, {hex(f2u(QSCALE))}, v9")
            if ks == 29: a("s_nop 0"); split_ab(a, SXX, 248, "c")
    a(f"""
    {MF32} {vr(D1,16)}, v[248:251], v[88:91], {vr(D1,16)}
    @S6
    s_nop 11
    """)
    for r in range(8):
        a(f"v_mul_f32 v{D1+2*r}, v10, v{D1+2*r}\nv_mul_f32 v{D1+2*r+1}, v10, v{D1+2*r+1}\nv_cvt_pk_bf16_f32 v{WF+r}, v{D1+2*r}, v{D1+2*r+1}")
        if r == 3: a(f"buffer_store_dwordx4 {vr(WF,4)}, v64, s[{WS}:{WS+3}], s60 offen")
    a(f"""
    buffer_store_dwordx4 {vr(WF+4,4)}, v64, s[{WS}:{WS+3}], s60 offen offset:128
    @D0 9 {WS} {sW}
    L1_end:
    s_endpgm
    """)
    return desc("proj_kernel", 252, 68)
KV_BYTES = 64 * TILE
OB = KV_BYTES
RED = OB + 8 * 1040
PART = RED + 1024
CNT = PART + 8192
K2_LDS = CNT + 64
FW = 0
FR = 32768
SMF = "v_smfmac_f32_32x32x32_bf16"
LOG2E = 1.4426950408889634
def k2(a):
    X, WR_, OUT, WS, FA, FB = 16, 20, 24, 28, 32, 36
    sW, sN = 40, 43
    Q, C, KF, VF, S, O = 8, 12, 28, 36, 52, 84
    IDX, KA, VA, LN16, XO, WRO, M, VA0 = 100, 101, 102, 103, 104, 105, 106, 107
    WO = 108; XRES, WRV, FWR = 236, 240, 244
    BAR_TILE = 10
    X_ = [x for x in sys.argv if x.startswith("--x")]
    head(a, "attn_kernel")
    a(f"""
    s_cmp_ge_u32 s2, 256
    s_cbranch_scc1 L2_end
    @S0
    @T1
    s_load_dwordx2 s[10:11], s[0:1], 96
    s_load_dwordx2 s[4:5], s[0:1], 0
    s_load_dwordx8 s[52:59], s[0:1], 48
    s_load_dwordx2 s[8:9], s[0:1], 80
    v_lshrrev_b32 v1, 6, v0
    v_and_b32 v2, 63, v0
    v_readfirstlane_b32 s{sW}, v1
    v_lshlrev_b32 v{LN16}, 4, v2
    v_and_b32 v5, 31, v2
    v_lshrrev_b32 v6, 5, v2
    s_lshl_b32 s44, s2, 13
    s_lshl_b32 s45, s{sW}, 10
    s_add_u32 s46, s44, s45
    s_add_u32 s47, s45, {WS_KV}
    s_lshl_b32 s50, s{sW}, 16
    s_add_u32 s51, s50, {WS_WO}
    s_and_b32 s48, s{sW}, 4
    s_lshl_b32 s48, s48, 13
    s_add_u32 s50, s51, s48
    s_waitcnt lgkmcnt(0)
    @S1
    """)
    srd(a, WS, 10, WS_SIZE)
    a(f"@P1 {WS} {sW}")
    a(f"buffer_load_dwordx4 {vr(Q,4)}, v{LN16}, s[{WS}:{WS+3}], s46 offen")
    def dma(i):
        return [f"s_add_u32 m0, s45, {i*8192}", f"s_add_u32 s48, s47, {i*8192}", f"buffer_load_dwordx4 v{LN16}, s[{WS}:{WS+3}], s48 offen lds"]
    for i in range(3): a("\n".join(dma(i)))
    srd(a, X, 4, 2 << 20); srd(a, WR_, 52, 1024); srd(a, OUT, 8, 2 << 20)
    a(f"""
    v_lshlrev_b32 v3, 8, v6
    v_lshl_add_u32 v3, v5, 4, v3
    v_and_b32 v4, 27, v5
    v_cmp_eq_u32 vcc, 16, v4
    v_mov_b32 v4, 528
    v_mov_b32 v7, 512
    v_cndmask_b32 v4, v4, v7, vcc
    v_cmp_gt_u32 vcc, 16, v5
    v_mov_b32 v{KA}, v{LN16}
    v_mov_b32 v{IDX}, 0xdddddddd
    v_cndmask_b32 v3, v4, v3, vcc
    v_add_u32 v{VA0}, 1024, v3
    v_mov_b32 v{VA}, v{VA0}
    v_lshrrev_b32 v3, 3, v2
    v_lshlrev_b32 v3, 4, v3
    s_lshl_b32 s49, s{sW}, 7
    v_add_u32 v{WRO}, s49, v3
    v_and_b32 v4, 7, v2
    v_lshl_add_u32 v{XO}, v4, 10, v{WRO}
    s_and_b32 s48, s2, 7
    s_lshr_b32 s49, s2, 3
    s_mul_i32 s64, s48, 22
    s_add_u32 s64, s64, s49
    s_lshl_b32 s48, s48, 3
    s_add_u32 s48, s48, s49
    s_sub_u32 s61, s48, 22
    s_and_b32 s61, s61, 63
    s_lshl_b32 s61, s61, 4
    s_min_u32 s48, s64, 171
    s_lshl_b32 s48, s48, 4
    s_mul_i32 s49, s{sW}, {64*2752}
    s_add_u32 s48, s48, s49
    s_lshl_b32 s49, s{sW}, 16
    s_add_u32 s49, s49, s61
    s_add_u32 s66, s49, {512*1024}
    s_add_u32 s67, s49, {1024*1024}
    s_movk_i32 s60, 2752
    s_cmp_ge_u32 s2, 176
    s_cselect_b32 s65, s49, s48
    s_cselect_b32 s66, s66, s48
    s_cselect_b32 s67, s67, 0x200000
    s_cselect_b32 s60, 0x400, s60
    s_cselect_b32 s54, s58, s54
    s_cselect_b32 s55, s59, s55
    s_cselect_b32 s56, s58, s56
    s_cselect_b32 s57, s59, s57
    v_mul_u32_u24 v1, s60, v2
    """)
    srd(a, FA, 54, 512*2752); srd(a, FB, 56, 512*2752)
    a(f"""
    s_mov_b32 s60, {16*8192}
    s_cmp_lt_u32 s{sW}, 4
    s_cselect_b32 s60, s60, {WS_SIZE}
    v_mov_b32 v3, {CNT}
    """)
    for r in range(16): a(f"v_mov_b32 v{O+r}, 0")
    a(f"""
    ds_write_b32 v3, v{O}
    @S2
    s_waitcnt vmcnt(0) lgkmcnt(0)
    s_barrier
    @S3
    ds_read_b128 {vr(KF,4)}, v{KA}
    ds_read_b128 {vr(KF+4,4)}, v{KA} offset:{TILE}
    ds_read_b128 {vr(VF,4)}, v{VA}
    ds_read_b128 {vr(VF+4,4)}, v{VA} offset:544
    s_waitcnt lgkmcnt(3)
    {MF32} {vr(S,16)}, {vr(KF,4)}, {vr(Q,4)}, 0
    s_waitcnt lgkmcnt(2)
    {MF32} {vr(S+16,16)}, {vr(KF+4,4)}, {vr(Q,4)}, 0
    s_nop 9
    v_max3_f32 v{M}, v{S}, v{S+1}, v{S+2}
    """)
    for r in range(3, 31, 2): a(f"v_max3_f32 v{M}, v{S+r}, v{S+r+1}, v{M}")
    a(f"""
    v_max_f32 v{M}, v{S+31}, v{M}
    v_mov_b32 v3, v{M}
    s_nop 1
    v_permlane32_swap_b32 v{M}, v3
    v_max_f32 v{M}, v{M}, v3
    v_sub_f32 v{C}, {hex(f2u(-SHIFT))}, v{M}
    """)
    for r in range(1, 16): a(f"v_mov_b32 v{C+r}, v{C}")
    a(f"""
    @S4
    @S13
    s_nop 1
    {MF32} {vr(S,16)}, {vr(KF,4)}, {vr(Q,4)}, {vr(C,16)}
    s_waitcnt lgkmcnt(0)
    s_nop 10
    """)
    base = 0
    nwo = 0
    NPT = 4 if '--npt4' in sys.argv else 2
    if '--noprio' not in sys.argv: a('s_setprio 1')
    for t in range(64):
        cur, nxt = t & 1, (t + 1) & 1
        Sc, Sn = S + 16*cur, S + 16*nxt
        e = [f"v_exp_f32 v{Sc+i}, v{Sc+i}" for i in range(16)]
        side = []
        if t < 6: side = dma(3 + 2*t) + dma(4 + 2*t)
        elif t == 6:
            d = dma(16); d[1] = "s_add_u32 s48, s47, s60"
            side = dma(15) + d
        elif t >= BAR_TILE and nwo < 32:
            for _ in range(NPT):
                f = nwo; nwo += 1
                if f and f % 4 == 0: side.append("s_add_u32 s50, s50, 4096")
                side.append(f"buffer_load_dwordx4 {vr(WO + 4*f, 4)}, v{LN16}, s[{WS}:{WS+3}], s50 offen offset:{(f & 3)*1024}")
            if NPT == 2: side = side[:-1] + [None, None, side[-1]]
        elif t == BAR_TILE + 32 // NPT: side = [f"buffer_load_dwordx4 {vr(XRES,4)}, v{XO}, s[{X}:{X+3}], s44 offen", None, None, None, f"buffer_load_dwordx4 {vr(WRV,4)}, v{WRO}, s[{WR_}:{WR_+3}], 0 offen"]
        elif t in (BAR_TILE + 32 // NPT + 1, BAR_TILE + 32 // NPT + 3, BAR_TILE + 32 // NPT + 5):
            i = (t - (BAR_TILE + 32 // NPT + 1)) // 2
            sr = FA if i == 0 else FB
            side = [f"buffer_load_dwordx4 {vr(FWR+4*i,4)}, v1, s[{sr}:{sr+3}], s{65+i} offen"]
        if '--xnomem' in X_ and t >= BAR_TILE: side = []
        if t in (16, 32): a(f"@S{4 + t//16}")
        if t == BAR_TILE: a("s_waitcnt vmcnt(0)\ns_barrier")
        if (t + 2 - base) * TILE + TILE > 65535:
            a(f"v_add_u32 v{KA}, {(t - base)*TILE}, v{KA}\nv_add_u32 v{VA}, {(t - base)*TILE}, v{VA}")
            base = t
        after = {i: [] for i in range(16)}
        side = [x for x in side if x]
        grp, curg = [], []
        for x in side:
            curg.append(x)
            if x.startswith("buffer"): grp.append(curg); curg = []
        if t > 0: after[1].append(f"{SMF} {vr(O,16)}, {vr(VF+8*nxt+4,4)}, {vr(Sn+8,8)}, v{IDX}")
        if t < 63:
            after[1].append(f"ds_read_b128 {vr(VF+8*nxt,4)}, v{VA} offset:{(t+1-base)*TILE}")
            after[5].append(f"{MF32} {vr(Sn,16)}, {vr(KF+4*nxt,4)}, {vr(Q,4)}, {vr(C,16)}")
        if t < 62: after[5].append(f"ds_read_b128 {vr(KF+4*cur,4)}, v{KA} offset:{(t+2-base)*TILE}")
        after[11].append(f"{SMF} {vr(O,16)}, {vr(VF+8*cur,4)}, {vr(Sc,8)}, v{IDX}")
        after[11].append("s_waitcnt lgkmcnt(0)")
        if t < 63: after[11].append(f"ds_read_b128 {vr(VF+8*nxt+4,4)}, v{VA} offset:{(t+1-base)*TILE+544}")
        for g, slot in zip(grp, (5, 11, 1)): after[slot] += g
        assert len(grp) <= 3
        for i in range(16):
            a(e[i])
            for x in after[i]: a(x)
    a(f"""
    @S8
    @S14
    s_nop 1
    {SMF} {vr(O,16)}, {vr(VF+12,4)}, {vr(S+24,8)}, v{IDX}
    s_mov_b32 s48, {hex(f2u(2.0**110))}
    v_and_b32 v4, 7, v5
    v_mul_u32_u24 v4, 1040, v4
    v_lshrrev_b32 v7, 3, v5
    v_lshl_add_u32 v4, v7, 5, v4
    v_lshl_add_u32 v4, v6, 3, v4
    s_lshl_b32 s49, s{sW}, 7
    s_add_u32 s49, s49, {OB}
    v_add_u32 v4, s49, v4
    v_and_b32 v1, 7, v2
    v_mul_u32_u24 v0, 1040, v1
    v_lshrrev_b32 v7, 4, v2
    v_mul_f32 v3, 0, v{O}
    """)
    for r in range(1, 8): a(f"v_fma_f32 v3, v{O+r}, 0, v3")
    a(f"""
    v_add_f32 v3, v3, v{O+8}
    v_cmp_ngt_f32 vcc, s48, v3
    v_rcp_f32 v3, v{O+8}
    s_cmp_lg_u64 vcc, 0
    s_cbranch_scc1 L2_slow
    L2_epi:
    """)
    for r in range(8): a(f"v_mul_f32 v{O+r}, v3, v{O+r}")
    for r in range(4): a(f"v_cvt_pk_bf16_f32 v{O+r}, v{O+2*r}, v{O+2*r+1}")
    BA, PA = 101, 102
    a(f"""
    ds_write_b64 v4, {vr(O,2)}
    ds_write_b64 v4, {vr(O+2,2)} offset:16
    v_lshl_add_u32 v{BA}, v7, 4, v0
    v_add_u32 v{BA}, {OB}, v{BA}
    v_lshl_add_u32 v{PA}, v7, 3, v1
    v_lshlrev_b32 v{PA}, 6, v{PA}
    s_and_b32 s49, s{sW}, 3
    s_lshl_b32 s49, s49, 11
    s_add_u32 s49, s49, {PART}
    v_add_u32 v{PA}, s49, v{PA}
    s_waitcnt vmcnt(0)
    s_cmp_lt_u32 s{sW}, 4
    {'' if '--xnoold' in X_ else 's_cbranch_scc1 L2_old'}
    L2_join:
    @S7
    """)
    HF, T = 60, 68
    ACC = O
    BF = [Q, 28, 32, 36]
    a("v_mov_b32 v7, 0x3f803f80")
    for q in range(4): a(f"v_mov_b32 v{T+q}, 0")
    for j in range(4):
        a(f"v_lshlrev_b32 v{HF+2*j}, 16, v{XRES+j}\nv_and_b32 v{HF+2*j+1}, 0xffff0000, v{XRES+j}\nv_dot2c_f32_bf16 v{T+3}, v{WRV+j}, v7")
    a(f"""
    v_and_b32 v3, 8, v2
    v_cmp_ne_u32 vcc, 0, v3
    s_cmp_ge_u32 s{sW}, 4
    s_cselect_b64 s[62:63], -1, 0
    s_waitcnt lgkmcnt(0)
    s_barrier
    @S9
    s_mov_b64 exec, s[62:63]
    """)
    for i in range(4): a(f"ds_read_b128 {vr(ACC+4*i,4)}, v{PA} offset:{16*i}")
    a("s_mov_b64 exec, -1")
    for ks in range(8, 12): a(f"ds_read_b128 {vr(BF[ks&3],4)}, v{BA} offset:{ks*64}")
    a(f"v_add_u32 v0, s45, v{LN16}")
    for ks in range(8, 16):
        a(f"s_waitcnt lgkmcnt({min(3, 15 - ks)})")
        for i in range(4):
            a(f"{MF16} {vr(ACC+4*i,4)}, {vr(WO+16*(ks-8)+4*i,4)}, {vr(BF[ks&3],4)}, {vr(ACC+4*i,4)}")
        if ks < 12: a(f"ds_read_b128 {vr(BF[ks&3],4)}, v{BA} offset:{(ks+4)*64}")
    for i in range(3): a(f"ds_write_b128 v0, {vr(FWR+4*i,4)} offset:{FW + i*8192}")
    A8, HB = 40, 48
    a(f"""
    @S10
    v_lshrrev_b32 v3, 4, v2
    v_lshlrev_b32 v3, 8, v3
    v_lshl_add_u32 v3, v1, 5, v3
    s_lshl_b32 s49, s{sW}, 2
    s_add_u32 s49, s49, {RED}
    v_add_u32 v3, s49, v3
    v_lshlrev_b32 v4, 5, v1
    v_add_u32 v4, {RED}, v4
    s_add_u32 s49, s44, {WS_H}
    """)
    for j in range(8): a(f"v_cndmask_b32 v{A8+j}, v{ACC+j}, v{ACC+8+j}, vcc")
    for j in range(8): a(f"v_add_f32 v{HF+j}, v{HF+j}, v{A8+j}")
    for j in range(4): a(f"v_cvt_pk_bf16_f32 v{HB+j}, v{HF+2*j}, v{HF+2*j+1}")
    a(f"buffer_store_dwordx4 {vr(HB,4)}, v{XO}, s[{WS}:{WS+3}], s49 offen sc0 sc1")
    for j in range(4):
        a(f"""
        v_dot2c_f32_bf16 v{T}, v{HB+j}, v7
        v_dot2c_f32_bf16 v{T+1}, v{HB+j}, v{HB+j}
        v_dot2c_f32_bf16 v{T+2}, v{HB+j}, v{WRV+j}
        """)
    a(f"""
    v_lshlrev_b32 v{HF}, 16, v{HB}
    v_and_b32 v{HF+1}, 0xffff0000, v{HB}
    v_permlane32_swap_b32 v{T}, v{T+1}
    v_permlane32_swap_b32 v{T+2}, v{T+3}
    v_add_f32 v{T}, v{T}, v{T+1}
    v_add_f32 v{T+2}, v{T+2}, v{T+3}
    v_lshlrev_b32 v{HF+2}, 16, v{HB+1}
    v_and_b32 v{HF+3}, 0xffff0000, v{HB+1}
    v_permlane16_swap_b32 v{T}, v{T+2}
    v_add_f32 v{T}, v{T}, v{T+2}
    v_lshlrev_b32 v{HF+4}, 16, v{HB+2}
    v_and_b32 v{HF+5}, 0xffff0000, v{HB+2}
    v_add_f32_dpp v{T}, v{T}, v{T} row_ror:8 row_mask:0xf bank_mask:0xf
    ds_write_b32 v3, v{T}
    v_lshlrev_b32 v{HF+6}, 16, v{HB+3}
    v_and_b32 v{HF+7}, 0xffff0000, v{HB+3}
    s_waitcnt lgkmcnt(0)
    s_barrier
    @S11
    """)
    R_ = 108
    for q in (0, 2, 1, 3):
        a(f"ds_read_b128 {vr(R_+8*q,4)}, v4 offset:{q*256}\nds_read_b128 {vr(R_+8*q+4,4)}, v4 offset:{q*256+16}")
    def sum8(b):
        a(f"""
        v_add_f32 v{b}, v{b}, v{b+1}
        v_add_f32 v{b+2}, v{b+2}, v{b+3}
        v_add_f32 v{b+4}, v{b+4}, v{b+5}
        v_add_f32 v{b+6}, v{b+6}, v{b+7}
        v_add_f32 v{b}, v{b}, v{b+2}
        v_add_f32 v{b+4}, v{b+4}, v{b+6}
        v_add_f32 v{b}, v{b}, v{b+4}
        """)
    s1, s3, s2, s4 = R_, R_+8, R_+16, R_+24
    ST = 76
    OV = 80
    a("s_waitcnt lgkmcnt(4)")
    sum8(s1); sum8(s2)
    a(f"""
    v_mul_f32 v{ST}, {hex(f2u(1.0/512))}, v{s1}
    v_mul_f32 v{s2}, {hex(f2u(1.0/512))}, v{s2}
    v_fma_f32 v{s2}, -v{ST}, v{ST}, v{s2}
    v_max_f32 v{s2}, 0, v{s2}
    v_add_f32 v{s2}, {hex(f2u(EPS))}, v{s2}
    v_rsq_f32 v{ST+1}, v{s2}
    s_cmp_lg_u32 s{sW}, 0
    s_cbranch_scc1 L2_nokey
    s_waitcnt lgkmcnt(0)
    """)
    sum8(s3); sum8(s4)
    a(f"""
    v_fma_f32 v{s3}, -v{ST}, v{s4}, v{s3}
    s_lshl_b32 s48, s2, 3
    v_add_u32 v4, s48, v1
    v_mul_f32 v{ST+2}, v{ST+1}, v{s3}
    v_lshlrev_b32 v0, 4, v4
    s_mov_b32 s48, {WS_ST}
    s_mov_b64 exec, 0xff
    buffer_store_dwordx4 {vr(ST,4)}, v0, s[{WS}:{WS+3}], s48 offen sc0 sc1
    s_mov_b64 exec, -1
    v_ashrrev_i32 v3, 31, v{ST+2}
    v_or_b32 v3, 0x80000000, v3
    v_xor_b32 v3, v3, v{ST+2}
    v_and_b32 v3, 0xfffff800, v3
    v_sub_u32 v4, 2047, v4
    v_or_b32 v4, v3, v4
    v_mov_b32 v5, 0
    """)
    for dpp in ("quad_perm:[1,0,3,2]", "quad_perm:[2,3,0,1]", "row_half_mirror"):
        a(f"""
        s_nop 1
        v_mov_b32_dpp v6, v4 {dpp} row_mask:0xf bank_mask:0xf
        v_mov_b32_dpp v3, v5 {dpp} row_mask:0xf bank_mask:0xf
        v_med3_u32 v5, v4, v5, v6
        v_max_u32 v4, v4, v6
        v_max_u32 v5, v5, v3
        """)
    a(f"""
    L2_nokey:
    v_add_f32 v3, 1.0, v{ST+1}
    v_mul_f32 v6, v{ST}, v{ST+1}
    s_waitcnt vmcnt(0)
    s_barrier
    s_cmp_lg_u32 s{sW}, 0
    s_cbranch_scc1 L2_nopoll
    s_lshl_b32 s48, s2, {KSH}
    s_add_u32 s48, s48, {WS_KEY}
    v_mov_b32 v0, 0
    s_mov_b64 exec, 1
    buffer_store_dwordx2 v[4:5], v0, s[{WS}:{WS+3}], s48 offen sc0 sc1
    s_mov_b64 exec, -1
    @S1
    s_mov_b32 s48, {WS_KEY}
    s_mov_b32 s49, 0
    v_lshlrev_b32 v8, {KSH + 2}, v2
    L2_kpoll:
    buffer_load_dwordx2 {vr(R_,2)}, v8, s[{WS}:{WS+3}], s48 offen sc1
    buffer_load_dwordx2 {vr(R_+2,2)}, v8, s[{WS}:{WS+3}], s48 offen offset:{1 << KSH} sc1
    buffer_load_dwordx2 {vr(R_+4,2)}, v8, s[{WS}:{WS+3}], s48 offen offset:{2 << KSH} sc1
    buffer_load_dwordx2 {vr(R_+6,2)}, v8, s[{WS}:{WS+3}], s48 offen offset:{3 << KSH} sc1
    s_add_u32 s49, s49, 1
    s_waitcnt vmcnt(0)
    v_min_u32 v0, v{R_}, v{R_+2}
    v_min3_u32 v0, v{R_+4}, v{R_+6}, v0
    v_cmp_eq_u32 vcc, 0, v0
    s_cmp_gt_u32 s49, 0x40000
    s_cbranch_scc1 L2_kgot
    s_cbranch_vccnz L2_kpoll
    L2_kgot:
    @S2
    v_max_u32 v4, v{R_}, v{R_+2}
    v_min_u32 v5, v{R_}, v{R_+2}
    v_max3_u32 v5, v5, v{R_+1}, v{R_+3}
    v_med3_u32 v5, v4, v5, v{R_+4}
    v_max_u32 v4, v4, v{R_+4}
    v_med3_u32 v5, v4, v5, v{R_+6}
    v_max_u32 v4, v4, v{R_+6}
    v_max3_u32 v5, v5, v{R_+5}, v{R_+7}
    """)
    for dpp in ("quad_perm:[1,0,3,2]", "quad_perm:[2,3,0,1]", "row_half_mirror", "row_mirror"):
        a(f"""
        s_nop 1
        v_mov_b32_dpp v0, v4 {dpp} row_mask:0xf bank_mask:0xf
        v_mov_b32_dpp v{R_}, v5 {dpp} row_mask:0xf bank_mask:0xf
        v_med3_u32 v5, v4, v5, v0
        v_max_u32 v4, v4, v0
        v_max_u32 v5, v5, v{R_}
        """)
    a(f"""
    v_lshrrev_b32 v0, 4, v2
    v_lshlrev_b32 v0, 3, v0
    v_add_u32 v0, {CNT + 16}, v0
    ds_write_b64 v0, v[4:5]
    L2_nopoll:
    """)
    for j in range(8): a(f"v_fma_f32 v{A8+j}, v{HF+j}, v3, -v6")
    for j in range(4): a(f"v_cvt_pk_bf16_f32 v{OV+j}, v{A8+2*j}, v{A8+2*j+1}")
    AF = 140
    a(f"""
    v_and_b32 v9, 15, v2
    v_lshrrev_b32 v10, 2, v9
    v_lshrrev_b32 v11, 4, v2
    v_lshl_add_u32 v10, v11, 3, v10
    v_lshlrev_b32 v10, 4, v10
    v_and_b32 v8, 1, v9
    v_lshl_add_u32 v10, v8, 3, v10
    s_cmp_ge_u32 s2, 176
    s_cselect_b32 s48, 0, 12
    s_cselect_b32 s49, 3, 1
    s_mul_i32 s49, s49, s45
    v_and_b32 v8, 2, v9
    v_lshlrev_b32 v8, s48, v8
    v_and_b32 v8, 0x2000, v8
    v_add3_u32 v10, v10, v8, s49
    """)
    for s_ in range(6):
        a(f"ds_read_b64_tr_b16 {vr(AF+4*s_,2)}, v10 offset:{FW + s_*512}\nds_read_b64_tr_b16 {vr(AF+4*s_+2,2)}, v10 offset:{FW + s_*512 + 64}")
    BFR = 164
    for q in range(8): a(f"v_mov_b32 v{BFR+q}, 0x3f803f80")
    a(f"""
    v_mov_b32 v0, {CNT + 16}
    s_waitcnt lgkmcnt(0)
    s_barrier
    ds_read_b128 {vr(R_,4)}, v0
    ds_read_b128 {vr(R_+4,4)}, v0 offset:16
    s_lshl_b32 s48, s2, 3
    v_add_u32 v8, s48, v1
    s_waitcnt lgkmcnt(0)
    v_max_u32 v4, v{R_}, v{R_+2}
    v_min_u32 v5, v{R_}, v{R_+2}
    v_max3_u32 v5, v5, v{R_+1}, v{R_+3}
    v_med3_u32 v5, v4, v5, v{R_+4}
    v_max_u32 v4, v4, v{R_+4}
    v_med3_u32 v5, v4, v5, v{R_+6}
    v_max_u32 v4, v4, v{R_+6}
    v_max3_u32 v5, v5, v{R_+5}, v{R_+7}
    v_and_b32 v4, 0x7ff, v4
    v_and_b32 v5, 0x7ff, v5
    v_sub_u32 v4, 2047, v4
    v_sub_u32 v5, 2047, v5
    s_cmp_ge_u32 s2, 176
    s_cbranch_scc1 L2_st2
    """)
    def outstore():
        a(f"""
        v_cmp_ne_u32 vcc, v4, v8
        v_cmp_ne_u32 s[62:63], v5, v8
        s_and_b64 exec, vcc, s[62:63]
        buffer_store_dwordx4 {vr(OV,4)}, v{XO}, s[{OUT}:{OUT+3}], s44 offen
        s_mov_b64 exec, -1
        """)
    STT, D = 188, 192
    a(f"""
    v_and_b32 v6, 1, v2
    v_cmp_eq_u32 vcc, 1, v6
    s_lshl_b32 s48, s{sW}, 7
    s_add_u32 s48, s48, {WS_H}
    v_cndmask_b32 v3, v4, v5, vcc
    v_lshlrev_b32 v0, 10, v3
    v_lshl_add_u32 v0, v11, 4, v0
    v_lshlrev_b32 v3, 4, v3
    s_mov_b32 s49, {WS_ST}
    s_mov_b32 s62, 0x00030003
    s_mov_b32 s63, s62
    s_mov_b64 exec, s[62:63]
    buffer_load_dwordx4 {vr(BFR,4)}, v0, s[{WS}:{WS+3}], s48 offen sc1
    buffer_load_dwordx4 {vr(BFR+4,4)}, v0, s[{WS}:{WS+3}], s48 offen offset:64 sc1
    s_mov_b64 exec, -1
    buffer_load_dwordx4 {vr(STT,4)}, v3, s[{WS}:{WS+3}], s49 offen sc1
    """)
    outstore()
    a(f"""
    v_min_u32 v0, 3, v9
    v_lshlrev_b32 v0, 6, v0
    v_lshl_add_u32 v0, v11, 4, v0
    s_lshl_b32 s48, s{sW}, 8
    s_add_u32 s48, s48, {FR}
    v_add_u32 v0, s48, v0
    s_waitcnt vmcnt(2)
    @S3
    {MF16} {vr(D,4)}, {vr(AF,4)}, {vr(BFR,4)}, 0
    {MF16} {vr(D,4)}, {vr(AF+4,4)}, {vr(BFR+4,4)}, {vr(D,4)}
    v_lshrrev_b32 v9, 1, v2
    v_and_b32 v9, 7, v9
    v_lshlrev_b32 v10, 2, v9
    v_lshl_add_u32 v10, v11, 9, v10
    v_add_u32 v10, {FR}, v10
    v_lshl_add_u32 v3, v6, 6, v10
    s_nop 1
    ds_write_b128 v0, {vr(D,4)}
    s_waitcnt lgkmcnt(0)
    s_barrier
    s_cmp_lg_u32 s{sW}, 0
    s_cbranch_scc1 L2_fin
    ds_read2_b32 v[12:13], v3 offset0:0 offset1:8
    ds_read2_b32 v[14:15], v3 offset0:64 offset1:72
    ds_read2_b32 v[16:17], v10 offset0:32 offset1:40
    ds_read2_b32 v[18:19], v10 offset0:96 offset1:104
    s_waitcnt lgkmcnt(0) vmcnt(1)
    v_add_f32 v12, v12, v14
    v_add_f32 v13, v13, v15
    v_add_f32 v16, v16, v18
    v_add_f32 v17, v17, v19
    v_fma_f32 v12, -v{STT}, v16, v12
    v_fma_f32 v13, -v{STT}, v17, v13
    v_mov_b32 v14, v12
    v_mov_b32 v15, v13
    s_cmp_ge_u32 s64, 172
    s_cselect_b32 s48, 0x100000, s64
    v_permlane32_swap_b32 v12, v14
    v_permlane32_swap_b32 v13, v15
    v_add_f32 v12, v12, v14
    v_add_f32 v13, v13, v15
    v_mov_b32 v14, v12
    v_mov_b32 v15, v13
    s_lshl_b32 s48, s48, {ASH}
    s_add_u32 s48, s48, {WS_ACT}
    v_permlane16_swap_b32 v12, v14
    v_permlane16_swap_b32 v13, v15
    v_add_f32 v12, v12, v14
    v_add_f32 v13, v13, v15
    v_mul_f32 v12, v12, v{STT+1}
    v_mul_f32 v13, v13, v{STT+1}
    v_mul_f32 v14, {hex(f2u(-LOG2E))}, v12
    v_exp_f32 v14, v14
    v_mul_f32 v12, v12, v13
    v_add_f32 v14, 1.0, v14
    v_rcp_f32 v14, v14
    v_lshlrev_b32 v0, 4, v6
    v_mul_f32 v12, v12, v14
    v_lshl_add_u32 v0, v9, 1, v0
    s_nop 0
    v_mov_b32_dpp v13, v12 quad_perm:[2,3,2,3] row_mask:0xf bank_mask:0xf
    v_cvt_pk_bf16_f32 v12, v12, v13
    s_mov_b64 exec, 0x3333
    buffer_store_dword v12, v0, s[{WS}:{WS+3}], s48 offen sc0 sc1
    L2_fin:
    @D1 15 {WS} {sW}
    s_endpgm
    """)
    a("L2_st2:")
    outstore()
    a(f"""
    s_cmp_ge_u32 s2, 240
    s_cbranch_scc1 L2_fin
    v_and_b32 v6, 8, v2
    v_cmp_ne_u32 vcc, 0, v6
    s_mov_b32 s48, {WS_H}
    s_mov_b32 s49, {WS_ST}
    v_cndmask_b32 v3, v4, v5, vcc
    v_lshlrev_b32 v12, 10, v3
    v_lshl_add_u32 v12, v1, 1, v12
    v_add_u32 v12, s61, v12
    v_lshlrev_b32 v3, 4, v3
    buffer_load_dwordx4 {vr(STT,4)}, v3, s[{WS}:{WS+3}], s49 offen sc1
    buffer_load_ushort v13, v12, s[{WS}:{WS+3}], s48 offen sc1
    v_and_b32 v6, 1, v2
    v_lshlrev_b32 v0, {ASH}, v11
    v_lshl_add_u32 v0, v6, 4, v0
    s_mul_i32 s48, s{sW}, {24 << ASH}
    s_add_u32 s48, s48, {WS_ACT}
    s_mov_b32 s49, 0
    L2_apoll:
    """)
    for s_ in range(6):
        a(f"buffer_load_dwordx4 {vr(BFR+4*s_,4)}, v0, s[{WS}:{WS+3}], s48 offen offset:{s_*(4 << ASH)} sc1")
    a(f"s_add_u32 s49, s49, 1\ns_waitcnt vmcnt(0)\nv_max3_u32 v3, v{BFR}, v{BFR+1}, v{BFR+2}")
    for q in range(3, 23, 2): a(f"v_max3_u32 v3, v{BFR+q}, v{BFR+q+1}, v3")
    a(f"""
    v_max_u32 v3, v{BFR+23}, v3
    v_cmp_eq_u32 vcc, -1, v3
    s_cmp_gt_u32 s49, 0x40000
    s_cbranch_scc1 L2_agot
    s_cbranch_vccnz L2_apoll
    L2_agot:
    @S3
    """)
    for s_ in range(6): a(f"{MF16} {vr(D,4)}, {vr(AF+4*s_,4)}, {vr(BFR+4*s_,4)}, {'0' if s_ == 0 else vr(D,4)}")
    a(f"""
    v_and_b32 v3, 1, v11
    v_lshlrev_b32 v0, 5, v6
    v_lshl_add_u32 v0, v3, 4, v0
    s_lshl_b32 s48, s{sW}, 6
    s_add_u32 s48, s48, {FR}
    v_add_u32 v0, s48, v0
    v_lshlrev_b32 v10, 2, v9
    v_lshl_add_u32 v10, v11, 7, v10
    v_add_u32 v10, {FR}, v10
    ds_write_b128 v0, {vr(D,4)}
    s_waitcnt lgkmcnt(0)
    s_barrier
    s_cmp_lg_u32 s{sW}, 0
    s_cbranch_scc1 L2_fin
    ds_read2_b32 v[14:15], v10 offset0:0 offset1:16
    v_mul_f32 v16, {hex(f2u(-LOG2E))}, v{STT+2}
    v_exp_f32 v16, v16
    v_lshlrev_b32 v13, 16, v13
    v_add_f32 v16, 1.0, v16
    v_rcp_f32 v16, v16
    v_sub_f32 v17, v13, v{STT}
    v_fma_f32 v13, v17, v{STT+1}, v13
    s_waitcnt lgkmcnt(0)
    v_add_f32 v14, v14, v15
    v_mov_b32 v15, v14
    s_nop 1
    v_permlane32_swap_b32 v14, v15
    v_add_f32 v14, v14, v15
    v_mov_b32 v15, v14
    s_nop 1
    v_permlane16_swap_b32 v14, v15
    v_add_f32 v14, v14, v15
    v_fma_f32 v14, v14, v16, v13
    v_cvt_pk_bf16_f32 v14, v14, v14
    s_mov_b64 exec, 0xffff
    buffer_store_short v14, v12, s[{OUT}:{OUT+3}], 0 offen
    @Q {WS}
    @D1 15 {WS} {sW}
    L2_end:
    s_endpgm
    """)
    AB = 12
    def wl(reg, sb, f):
        a(f"buffer_load_dwordx4 {vr(reg,4)}, v{LN16}, s[{WS}:{WS+3}], s{sb} offen offset:{(f & 3)*1024}")
        if f % 4 == 3: a(f"s_add_u32 s{sb}, s{sb}, 4096")
    NE = 11
    breg = lambda f: 40 + 4*f if f < NE else WO + 4*(f - NE)
    a(f"""
    L2_old:
    s_setprio 0
    v_mov_b32 v3, {CNT}
    v_mov_b32 v4, 1
    s_waitcnt lgkmcnt(0)
    s_mov_b64 exec, 1
    ds_add_u32 v3, v4
    s_mov_b64 exec, -1
    s_add_u32 s48, s51, {4*65536}
    """)
    for f in range(NE): wl(breg(f), 48, f)
    a(f"""
    L2_spin:
    ds_read_b32 v4, v3
    s_waitcnt lgkmcnt(0)
    v_readfirstlane_b32 s49, v4
    s_cmp_ge_u32 s49, 4
    s_cbranch_scc1 L2_go
    s_sleep 2
    s_branch L2_spin
    L2_go:
    """)
    def half(acc, reg, after):
        for ks in range(3): a(f"ds_read_b128 {vr(BF[ks&3],4)}, v{BA} offset:{ks*64}")
        for ks in range(8):
            if ks + 3 < 8: a(f"ds_read_b128 {vr(BF[(ks+3)&3],4)}, v{BA} offset:{(ks+3)*64}")
            after(ks, 0)
            for i in range(4):
                a(f"{MF16} {vr(acc+4*i,4)}, {vr(reg(4*ks+i),4)}, {vr(BF[ks&3],4)}, {'0' if ks == 0 else vr(acc+4*i,4)}")
            after(ks, 1)
    a(f"s_add_u32 s49, s51, {32768 + ((32 - NE)//4)*4096}")
    def aftA(ks, post):
        if not post: a(f"s_waitcnt lgkmcnt({min(3, 7-ks)})"); return
        for slot in range(4*ks, 4*ks + 4):
            if slot < 32 - NE: wl(WO + 4*slot, 48, slot + NE)
            else: wl(WO + 4*slot, 49, slot)
    half(ACC, lambda f: WO + 4*f, aftA)
    a(f"s_add_u32 s49, s51, 32768")
    def aftB(ks, post):
        if not post:
            done = sum(1 for f in range(NE, 4*ks))
            a(f"s_waitcnt lgkmcnt({min(3, 7-ks)}) vmcnt({min(63, (31 - (4*ks+3)) + NE + done)})"); return
        for f in range(4*ks, 4*ks + 4):
            if f >= NE: wl(WO + 4*(f - NE), 49, f - NE)
    half(AB, breg, aftB)
    a("s_nop 3")
    for i in range(4): a(f"ds_write_b128 v{PA}, {vr(AB+4*i,4)} offset:{16*i}")
    a("s_waitcnt vmcnt(0)\ns_setprio 1\ns_branch L2_join")
    a(f"""
    L2_slow:
    v_mov_b32 v{KA}, v{LN16}
    v_mov_b32 v{M}, 0xff7fffff
    s_mov_b32 s{sN}, 64
    L2_maxloop:
    ds_read_b128 {vr(KF,4)}, v{KA}
    v_add_u32 v{KA}, {TILE}, v{KA}
    s_waitcnt lgkmcnt(0)
    {MF32} {vr(S,16)}, {vr(KF,4)}, {vr(Q,4)}, 0
    s_sub_u32 s{sN}, s{sN}, 1
    s_nop 10
    """)
    for r in range(8): a(f"v_max3_f32 v{M}, v{S+2*r}, v{S+2*r+1}, v{M}")
    a(f"""
    s_cmp_lg_u32 s{sN}, 0
    s_cbranch_scc1 L2_maxloop
    v_mov_b32 v3, v{M}
    v_mov_b32 v{KA}, v{LN16}
    v_mov_b32 v{VA}, v{VA0}
    v_permlane32_swap_b32 v{M}, v3
    v_max_f32 v{M}, v{M}, v3
    """)
    for r in range(16): a(f"v_sub_f32 v{C+r}, 0, v{M}\nv_mov_b32 v{O+r}, 0")
    a(f"""
    s_mov_b32 s{sN}, 64
    L2_slowloop:
    ds_read_b128 {vr(KF,4)}, v{KA}
    ds_read_b128 {vr(VF,4)}, v{VA}
    ds_read_b128 {vr(VF+4,4)}, v{VA} offset:544
    v_add_u32 v{KA}, {TILE}, v{KA}
    v_add_u32 v{VA}, {TILE}, v{VA}
    s_waitcnt lgkmcnt(0)
    {MF32} {vr(S,16)}, {vr(KF,4)}, {vr(Q,4)}, {vr(C,16)}
    s_sub_u32 s{sN}, s{sN}, 1
    s_nop 10
    """)
    for i in range(16): a(f"v_exp_f32 v{S+i}, v{S+i}")
    a(f"""
    s_nop 1
    {SMF} {vr(O,16)}, {vr(VF,4)}, {vr(S,8)}, v{IDX}
    {SMF} {vr(O,16)}, {vr(VF+4,4)}, {vr(S+8,8)}, v{IDX}
    s_cmp_lg_u32 s{sN}, 0
    s_cbranch_scc1 L2_slowloop
    s_nop 11
    v_rcp_f32 v3, v{O+8}
    s_branch L2_epi
    """)
    return desc("attn_kernel", 256, 68)
def main():
    hdr = open("sequential_preLN__grouped_kv_mqa__moe_arch_mod__prompt.s.ref").read().split("\n")
    top = [l for l in hdr if l.startswith(";") and "@launch" not in l and "Override" not in l and "grid=ceil" not in l]
    a = Asm()
    d = k1(a) + k2(a)
    out = "\n".join(top) + "\n"
    out += f"; @launch kernel=proj_kernel grid=(256,1,1) block=(512,1,1) lds={K1_LDS}\n"
    out += f"; @launch kernel=attn_kernel grid=(256,1,1) block=(512,1,1) lds={K2_LDS}\n"
    out += '.amdgcn_target "amdgcn-amd-amdhsa--gfx950"\n.text\n' + a.text() + '.section .rodata,"a"\n' + d
    sys.stdout.write(out)
main()
```

```python
import sys, struct
def f2u(x): return struct.unpack("<I", struct.pack("<f", x))[0]

WS_Q   = 0
WS_KV  = 2 << 20
WS_WO  = 3 << 20
WS_H   = 4 << 20

WS_ST  = (6 << 20) + 0x10000
WS_ACT = (6 << 20) + 0x20000
WS_KEY = WS_ACT + 0x10000
KSH = 7; ASH = 7
for _x in sys.argv:
    if _x.startswith('--ksh='): KSH = int(_x.split('=')[1])
    if _x.startswith('--ash='): ASH = int(_x.split('=')[1])
WS_FLG = WS_KEY + 0x10000
WS_QB = 7 << 20
sEP = 68
KNAME = 'sequential_preLN__grouped_kv_mqa__moe_arch_mod__prompt_kernel'
WS_SIZE = 8 << 20
TILE = 2112
QSCALE = 0.25 * 1.4426950408889634
EPS = 1e-5
SHIFT = 96.0
for _x in sys.argv:
    if _x.startswith('--shift='): SHIFT = float(_x.split('=')[1])

class Asm:
    def __init__(self): self.l = []
    def __call__(self, s):
        for x in s.split("\n"):
            x = x.strip()
            if x.startswith("@S"): stamp(self, int(x[2:])); continue
            if x.startswith("@P"): padstore(self, *[int(t) for t in x[2:].split()]); continue
            if x.startswith("@Q"): padspin(self, *[int(t) for t in x[2:].split()]); continue
            if x.startswith("@T"): padstamp(self, int(x[2:])); continue
            if x.startswith("@D"): dump(self, *[int(t) for t in x[2:].split()]); continue
            if x: self.l.append(("" if x.endswith(":") else "    ") + x)
    def text(self): return "\n".join(self.l) + "\n"

def srd(a, d, p, size):
    a(f"s_mov_b32 s{d}, s{p}\ns_and_b32 s{d+1}, s{p+1}, 0xffff\ns_mov_b32 s{d+2}, {size}\ns_mov_b32 s{d+3}, 0x20000")
def vr(b, n): return f"v[{b}:{b+n-1}]"
def head(a, name):
    a(f".globl {name}\n.p2align 8\n.type {name},@function\n{name}:")
def desc(name, nv, ns):
    return f""".p2align 6
.amdhsa_kernel {name}
  .amdhsa_next_free_vgpr {nv}
  .amdhsa_next_free_sgpr {100 if (DIAG or PAD is not None) else ns}
  .amdhsa_accum_offset {(nv+3)//4*4}
  .amdhsa_group_segment_fixed_size 0
  .amdhsa_kernarg_size 104
  .amdhsa_user_sgpr_count 2
  .amdhsa_user_sgpr_kernarg_segment_ptr 1
  .amdhsa_system_sgpr_workgroup_id_x 1
.end_amdhsa_kernel
"""
DIAG = "--diag" in sys.argv
WS_DIAG = 16 << 20
if DIAG: WS_SIZE = 32 << 20
LIGHT = '--light' in sys.argv
def stamp(a, i, force=False):
    if LIGHT and i != 0 and not force: return
    if DIAG: a(f"{'s_memtime' if i >= 13 else 's_memrealtime'} s[{70+2*i}:{71+2*i}]\ns_waitcnt lgkmcnt(0)")
DIAG2 = "--diag2" in sys.argv
D2SEL = {0: [(0, 1), (2, 0), (8, 0)], 1: [(0, 1), (1, 0), (3, 0), (4, 0), (8, 0), (10, 0), (12, 0)], 2: [(0, 1), (1, 0), (3, 0), (5, 0), (6, 0), (7, 0)]}
_dl = [0]
def dump(a, kidx, n, WS, sW):
    if not DIAG: return
    stamp(a, min(n - 1, 12), True)
    if DIAG2:
        _dl[0] += 1
        base = sum(len(D2SEL[k]) for k in range(kidx))
        a(f"s_and_b32 s98, s2, 15\ns_cmp_lg_u32 s98, 0\ns_cbranch_scc1 LD_{_dl[0]}\ns_load_dwordx2 s[98:99], s[0:1], 88\ns_mov_b64 exec, 1\nv_mov_b32 v1, 0\ns_waitcnt lgkmcnt(0)\ns_add_u32 s98, s98, {512*(2-kidx)}\ns_addc_u32 s99, s99, 0")
        for j, (i, inv) in enumerate(D2SEL[kidx]):
            a(f"v_mov_b32 v0, s{70+2*i}")
            if inv: a("v_not_b32 v0, v0")
            a(f"global_atomic_umax v1, v0, s[98:99] offset:{4*(base+j)}\ns_nop 1")
        a(f"LD_{_dl[0]}:")
        return
    a(f"s_mov_b64 exec, 1\ns_lshl_b32 s69, s2, 4\ns_add_u32 s69, s69, s{sW}\ns_lshl_b32 s69, s69, 6\ns_add_u32 s69, s69, {WS_DIAG + kidx * (1 << 20)}\nv_mov_b32 v1, 0")
    for i in range(n):
        a(f"v_mov_b32 v0, s{70+2*i}\nbuffer_store_dword v0, v1, s[{WS}:{WS+3}], s69 offen offset:{4*i}")
PAD = [int(x.split("=")[1]) for x in sys.argv if x.startswith("--pad=")]
PAD = PAD[0] if PAD else None
WS_PAD = (6 << 20)
def padstamp(a, k):
    if PAD == k: a("s_memrealtime s[68:69]")
def padstore(a, k, WS, sW):
    if PAD != k: return
    a(f"s_or_b32 s98, s2, s{sW}\ns_cmp_lg_u32 s98, 0\ns_cbranch_scc1 LP_{k}\nv_mov_b32 v99, s68\nv_mov_b32 v98, 0\ns_mov_b32 s98, {WS_PAD}\nbuffer_store_dword v99, v98, s[{WS}:{WS+3}], s98 offen\nLP_{k}:")
def padspin(a, WS):
    if PAD is None: return
    if PAD == 1:
        a("s_mov_b32 s99, s68")
    else:
        a(f"v_mov_b32 v98, 0\ns_mov_b32 s98, {WS_PAD}\nbuffer_load_dword v99, v98, s[{WS}:{WS+3}], s98 offen\ns_waitcnt vmcnt(0)\nv_readfirstlane_b32 s99, v99\ns_nop 3")
    a(f"s_mov_b32 s97, 0\nLQ_spin:\ns_memrealtime s[68:69]\ns_waitcnt lgkmcnt(0)\ns_sub_u32 s98, s68, s99\ns_add_u32 s97, s97, 1\ns_cmp_gt_u32 s97, 100000\ns_cbranch_scc1 LQ_done\ns_cmp_lt_u32 s98, 6000\ns_cbranch_scc1 LQ_spin\nLQ_done:")
MF32 = "v_mfma_f32_32x32x16_bf16"
MF16 = "v_mfma_f32_16x16x32_bf16"

ZERO_KB = 8
K1_KV = 131072
K1_CS = 147456
K1_KC = K1_CS + 1024
K1_KP = K1_KC + 1024
K1_PS = K1_KP + 4096
K1_EP = K1_PS + 1024
K1_LDS = K1_EP + 64
def rowstat(a, s, m, r):
    a(f"""
    v_add_f32 v{m}, v{s}, v{s+2}
    v_add_f32 v{r}, v{s+1}, v{s+3}
    v_mul_f32 v{m}, {hex(f2u(-1.0/512))}, v{m}
    v_mul_f32 v{r}, {hex(f2u(1.0/512))}, v{r}
    v_fma_f32 v{r}, -v{m}, v{m}, v{r}
    v_max_f32 v{r}, 0, v{r}
    v_add_f32 v{r}, {hex(f2u(EPS))}, v{r}
    v_rsq_f32 v{r}, v{r}
    """)
def split_ab(a, src, dst, kind):
    a(f"v_and_b32 v11, 0xffff0000, v{src}\nv_sub_f32 v12, v{src}, v11")
    if kind == "m": a(f"v_cvt_pk_bf16_f32 v{dst}, v11, v12\nv_cvt_pk_bf16_f32 v{dst+1}, v11, 0")
    else: a(f"v_cvt_pk_bf16_f32 v{dst}, v11, v11\nv_cvt_pk_bf16_f32 v{dst+1}, v12, 0")
def k1(a):
    X, WQ, WKV, WO, WS = 16, 20, 24, 32, 36
    sW, sTG, sCG = 40, 41, 42
    DBG = 28
    ONES = 69
    VL = 13
    head(a, KNAME)
    a(f"""
    s_cmp_ge_u32 s2, 256
    s_cbranch_scc1 L2_end
    @S0
    @T0
    s_load_dwordx8 s[4:11], s[0:1], 0
    s_load_dwordx2 s[12:13], s[0:1], 32
    s_load_dwordx2 s[14:15], s[0:1], 96
    s_load_dwordx2 s[64:65], s[0:1], 88
    v_lshrrev_b32 v1, 6, v0
    v_and_b32 v2, 63, v0
    v_readfirstlane_b32 s{sW}, v1
    s_and_b32 s43, s2, 7
    s_lshr_b32 s44, s2, 3
    s_and_b32 s45, s44, 3
    s_lshl_b32 s{sTG}, s43, 2
    s_add_u32 s{sTG}, s{sTG}, s45
    s_lshr_b32 s{sCG}, s44, 2
    v_and_b32 v3, 15, v2
    v_lshrrev_b32 v4, 4, v2
    v_lshlrev_b32 v{VL}, 4, v2
    s_and_b32 s46, s{sW}, 3
    s_lshl_b32 s50, s46, 12
    s_and_b32 s58, s{sCG}, 3
    s_cmp_lt_u32 s{sW}, 4
    s_cbranch_scc1 L1_gemm
    """)
    VX, VW, WT, CS, WR, XR = 8, 12, 24, 70, 48, 32
    pass
    for i in range(4):
        a(f"v_add_u32 v7, {4*i}, v4\nv_xor_b32 v{VX+i}, v7, v3\nv_lshlrev_b32 v{VX+i}, 4, v{VX+i}\nv_lshl_add_u32 v{VX+i}, v7, 10, v{VX+i}")
    a(f"""
    v_lshrrev_b32 v7, 3, v2
    v_and_b32 v{VW}, 1, v4
    v_lshlrev_b32 v{VW}, 2, v{VW}
    v_and_b32 v14, 7, v2
    v_xor_b32 v{VW}, v{VW}, v14
    v_lshlrev_b32 v{VW}, 4, v{VW}
    v_lshl_add_u32 v{VW}, v7, 10, v{VW}
    s_lshl_b32 s48, s{sTG}, 16
    s_lshl_b32 s43, s46, 14
    s_add_u32 s48, s48, s43
    s_lshl_b32 s49, s46, 15
    s_lshl_b32 s43, s{sCG}, 7
    s_add_u32 s49, s49, s43
    s_waitcnt lgkmcnt(0)
    """)
    srd(a, X, 4, 2 << 20)
    def issx(c):
        a(f"s_add_u32 s51, s48, {c*256}")
        for i in range(4):
            a(f"s_add_u32 m0, s50, {c*16384 + i*1024}\ns_nop 0\nbuffer_load_dwordx4 v{VX+i}, s[{X}:{X+3}], s51 offen lds")
    def issw(c):
        for i in range(4):
            a(f"s_add_u32 m0, s50, {65536 + c*16384 + i*1024}\ns_add_u32 s52, s49, {(128*c + 8*i) * 1024}\nbuffer_load_dwordx4 v{VW}, s[{WQ}:{WQ+3}], s52 offen lds")
    def isskv(c):
        a(f"s_add_u32 m0, s61, {K1_KV + c*4096}\ns_add_u32 s52, s61, {c*4096}\nbuffer_load_dwordx4 v{VL}, s[{WKV}:{WKV+3}], s52 offen lds")
    issx(0)
    a(f"s_cmp_ge_u32 s{sCG}, 4\ns_cselect_b32 s8, s10, s8\ns_cselect_b32 s9, s11, s9\ns_lshl_b32 s61, s46, 10")
    srd(a, WKV, 8, 16 << 10)
    isskv(0); issx(1); isskv(1)
    srd(a, WQ, 6, 512 << 10)
    a(f"""
    v_mov_b32 v{ONES}, 0x3f803f80
    v_add_u32 v30, {K1_KC}, v{VL}
    s_lshl_b32 s43, s58, 8
    s_add_u32 s43, s43, {K1_PS}
    v_lshl_add_u32 v31, v3, 4, s43
    s_lshl_b32 s56, s{sTG}, 1
    s_lshr_b32 s43, s58, 1
    s_add_u32 s56, s56, s43
    s_mul_i32 s56, s56, {TILE}
    s_add_u32 s56, s56, {WS_KV}
    s_and_b32 s57, s58, 1
    s_lshl_b32 s43, s57, 8
    s_mul_i32 s44, s57, 544
    s_add_u32 s44, s44, 1024
    s_cmp_ge_u32 s{sCG}, 4
    s_cselect_b32 s43, s44, s43
    s_cselect_b64 s[62:63], -1, 0
    s_add_u32 s56, s56, s43
    v_and_b32 v14, 1, v4
    v_lshrrev_b32 v15, 1, v4
    v_lshlrev_b32 v26, 9, v14
    v_lshl_add_u32 v26, v15, 3, v26
    v_lshlrev_b32 v27, 8, v15
    v_lshl_add_u32 v27, v14, 3, v27
    v_cndmask_b32 v26, v26, v27, s[62:63]
    v_lshl_add_u32 v26, v3, 4, v26
    v_lshlrev_b32 v27, 4, v4
    v_lshlrev_b32 v28, 2, v3
    v_cndmask_b32 v27, v28, v27, s[62:63]
    v_cndmask_b32 v28, 0, 4, s[62:63]
    v_mov_b32 v29, 0x7fff0000
    v_mov_b32 v74, 0
    v_mov_b32 v75, 0
    v_mov_b32 v78, 0
    v_mov_b32 v79, 0
    """)
    srd(a, WS, 14, WS_SIZE)
    pass
    size = [5, 5, 5, 5, 4, 4, 4, 4]
    for g in range(5):
        if g + 2 < 4: issx(g + 2); isskv(g + 2)
        else: issw(g - 2)
        a(f"s_waitcnt vmcnt({sum(size[g+1:g+3])})\ns_barrier")
    issw(3)
    a(f"""
    v_mov_b32 v7, {K1_EP}
    ds_read_b32 v92, v7
    s_cmp_eq_u32 s46, 0
    s_cbranch_scc1 L1_fin
    s_waitcnt vmcnt(8)
    s_barrier
    s_waitcnt vmcnt(4)
    s_barrier
    s_waitcnt vmcnt(0) lgkmcnt(0)
    s_barrier
    v_readfirstlane_b32 s{sEP}, v92
    s_branch L2_start
    L1_fin:
    ds_read_b128 v[80:83], v31
    ds_read_b128 v[84:87], v30
    ds_read_b128 {vr(XR,4)}, v30 offset:1024
    ds_read_b128 {vr(XR+4,4)}, v30 offset:2048
    ds_read_b128 {vr(XR+8,4)}, v30 offset:3072
    ds_read_b128 {vr(XR+12,4)}, v30 offset:4096
    s_waitcnt lgkmcnt(4)
    """)
    rowstat(a, 80, 8, 9)
    a(f"""
    v_add_f32 v84, v84, v85
    v_add_f32 v86, v86, v87
    ds_bpermute_b32 v88, v27, v9
    v_add_u32 v27, v27, v28
    ds_bpermute_b32 v89, v27, v9
    v_add_u32 v27, v27, v28
    ds_bpermute_b32 v90, v27, v9
    v_add_u32 v27, v27, v28
    ds_bpermute_b32 v91, v27, v9
    v_add_f32 v84, v84, v86
    v_cndmask_b32 v85, v84, v8, s[62:63]
    v_cndmask_b32 v86, v8, v84, s[62:63]
    """)
    split_ab(a, 85, 72, "c"); split_ab(a, 86, 76, "m")
    a("s_waitcnt lgkmcnt(4)")
    for r in range(4):
        a(f"v_add_f32 v{XR+r}, v{XR+r}, v{XR+4+r}\nv_add_f32 v{XR+8+r}, v{XR+8+r}, v{XR+12+r}")
    for r in range(4): a(f"v_add_f32 v{XR+r}, v{XR+r}, v{XR+8+r}")
    a(f"""
    v_cmp_gt_u32 vcc, 4, v2
    v_lshlrev_b32 v12, 2, v2
    {MF16} {vr(XR,4)}, v[72:75], v[76:79], {vr(XR,4)}
    v_cndmask_b32 v14, 0, v{ONES}, vcc
    s_and_b64 s[62:63], s[62:63], 0xff
    s_waitcnt lgkmcnt(0)
    s_nop 4
    """)
    for r in range(4): a(f"v_mul_f32 v{XR+r}, v{88+r}, v{XR+r}")
    a(f"""
    v_cvt_pk_bf16_f32 v{XR}, v{XR}, v{XR+1}
    v_cvt_pk_bf16_f32 v{XR+1}, v{XR+2}, v{XR+3}
    buffer_store_dwordx2 {vr(XR,2)}, v26, s[{WS}:{WS+3}], s56 offen sc0 sc1
    v_cndmask_b32 v12, v29, v12, s[62:63]
    buffer_store_dword v14, v12, s[{WS}:{WS+3}], s56 offen offset:512 sc0 sc1
    v_readfirstlane_b32 s{sEP}, v92
    s_lshl_b32 s43, s{sTG}, 3
    s_add_u32 s43, s43, s{sCG}
    s_lshl_b32 s43, s43, {KSH}
    s_add_u32 s43, s43, {WS_FLG}
    v_mov_b32 v7, 0
    s_waitcnt vmcnt(10)
    s_barrier
    s_waitcnt vmcnt(6)
    s_barrier
    s_waitcnt vmcnt(2)
    s_barrier
    s_waitcnt vmcnt(0)
    s_mov_b64 exec, 1
    buffer_store_dword v92, v7, s[{WS}:{WS+3}], s43 offen sc0 sc1
    s_mov_b64 exec, -1
    @S1
    s_branch L2_start
    """)
    D1 = 16
    XF, WF = 120, 32
    XA, WA, WB, WOD = 72, 68, 70, 80
    KX, KW = 92, 93
    SX, SXX, KC, KD = 14, 15, 71, 96
    KF = 104
    a(f"""
    L1_gemm:
    v_and_b32 v5, 31, v2
    v_lshrrev_b32 v6, 5, v2
    s_and_b32 s53, s{sW}, 1
    s_lshr_b32 s54, s{sW}, 1
    s_lshl_b32 s59, s2, 1
    s_add_u32 s59, s59, s53
    s_lshr_b32 s43, s59, 6
    s_lshr_b32 s44, s59, 2
    s_and_b32 s44, s44, 15
    s_and_b32 s45, s59, 3
    s_lshl_b32 s44, s44, 15
    s_lshl_b32 s43, s43, 7
    s_lshl_b32 s45, s45, 3
    s_add_u32 s47, s44, s43
    s_add_u32 s47, s47, s45
    v_lshrrev_b32 v7, 2, v3
    v_lshlrev_b32 v7, 5, v7
    v_and_b32 v8, 3, v3
    v_lshl_add_u32 v7, v8, 1, v7
    v_lshl_add_u32 v7, v4, 13, v7
    v_add_u32 v8, 4096, v7
    s_waitcnt lgkmcnt(0)
    """)
    srd(a, WO, 12, 512 << 10); srd(a, WS, 14, WS_SIZE); srd(a, DBG, 64, 256)
    a(f"s_cmp_ge_u32 s{sW}, 2\ns_cbranch_scc1 L1_nowo")
    for j in range(8):
        a(f"buffer_load_ushort v{WOD + j}, v{7 + j//4}, s[{WO}:{WO+3}], s47 offen offset:{(j & 3) * 1024}")
    a(f"""
    s_branch L1_noz
    L1_nowo:
    s_cmp_eq_u32 s{sW}, 2
    s_cbranch_scc1 L1_ini
    s_cmp_lg_u32 s2, 0
    s_cbranch_scc1 L1_noz
    s_memrealtime s[44:45]
    v_mov_b32 v9, 0
    s_waitcnt lgkmcnt(0)
    s_or_b32 s44, s44, 1
    v_mov_b32 v{WOD}, s44
    s_mov_b64 exec, 1
    buffer_store_dword v{WOD}, v9, s[{DBG}:{DBG+3}], 0 offen sc0 sc1
    s_mov_b64 exec, -1
    s_branch L1_noz
    L1_ini:
    s_cmp_lt_u32 s2, 172
    s_cselect_b32 s44, -1, 0
    v_mov_b32 v{WOD}, s44
    v_mov_b32 v{WOD+1}, 0
    v_lshlrev_b32 v9, 2, v2
    s_lshl_b32 s43, s2, {ASH}
    s_add_u32 s43, s43, {WS_ACT}
    s_lshl_b32 s44, s2, {KSH}
    s_add_u32 s44, s44, {WS_KEY}
    s_mov_b64 exec, 0xff
    buffer_store_dword v{WOD}, v9, s[{WS}:{WS+3}], s43 offen sc0 sc1
    s_mov_b64 exec, 3
    buffer_store_dword v{WOD+1}, v9, s[{WS}:{WS+3}], s44 offen sc0 sc1
    s_mov_b64 exec, -1
    L1_noz:
    s_lshl_b32 s43, s54, 1
    v_xor_b32 v12, s43, v3
    s_lshl_b32 s43, s53, 13
    v_lshlrev_b32 v9, 8, v5
    v_add_u32 v9, s43, v9
    """)
    for j in range(8):
        a(f"v_add_u32 v10, {2*j}, v6\nv_xor_b32 v10, v10, v12\nv_lshl_add_u32 v{XA+j}, v10, 4, v9")
    a(f"""
    v_lshrrev_b32 v9, 2, v3
    v_lshl_add_u32 v10, v6, 3, v9
    v_lshlrev_b32 v10, 7, v10
    v_lshrrev_b32 v11, 1, v9
    v_xor_b32 v11, s54, v11
    v_lshl_add_u32 v10, v11, 6, v10
    v_and_b32 v11, 1, v4
    v_lshl_add_u32 v10, v11, 5, v10
    v_and_b32 v11, 3, v3
    v_lshl_add_u32 v10, v11, 3, v10
    s_lshl_b32 s43, s54, 11
    s_add_u32 s44, s43, 0x10000
    s_sub_u32 s43, {0x10000 + 2048}, s43
    v_add_u32 v{WA}, s44, v10
    v_add_u32 v{WB}, s43, v10
    v_lshl_add_u32 v{KW}, v4, 3, v9
    v_lshlrev_b32 v{KW}, 5, v{KW}
    v_lshl_add_u32 v{KW}, v11, 3, v{KW}
    s_lshl_b32 s43, s46, 10
    s_add_u32 s43, s43, {K1_KV}
    v_add_u32 v{KW}, s43, v{KW}
    s_lshl_b32 s43, s46, 2
    v_add_u32 v{KX}, s43, v4
    v_xor_b32 v{KX}, v{KX}, v3
    v_lshlrev_b32 v{KX}, 4, v{KX}
    v_lshl_add_u32 v{KX}, v3, 8, v{KX}
    s_lshl_b32 s43, s58, 12
    v_add_u32 v{KX}, s43, v{KX}
    v_lshrrev_b32 v64, 3, v5
    v_lshlrev_b32 v64, 13, v64
    v_and_b32 v11, 7, v5
    v_lshl_add_u32 v64, v11, 4, v64
    v_lshl_add_u32 v64, v6, 9, v64
    s_lshl_b32 s60, s{sTG}, 16
    s_lshl_b32 s44, s53, 15
    s_add_u32 s60, s60, s44
    s_lshl_b32 s44, s{sCG}, 10
    s_add_u32 s60, s60, s44
    s_lshl_b32 s44, s54, 8
    s_add_u32 s60, s60, s44
    s_add_u32 s60, s60, {WS_Q}
    s_lshl_b32 s43, s53, 9
    s_add_u32 s43, s43, {K1_PS}
    v_lshl_add_u32 v67, v5, 4, s43
    s_lshl_b32 s43, s54, 3
    v_lshl_add_u32 v65, v6, 2, v67
    v_add_u32 v65, s43, v65
    s_lshl_b32 s43, s46, 2
    s_add_u32 s43, s43, {K1_KC}
    v_add_u32 v94, s43, v{VL}
    s_lshl_b32 s43, s46, 10
    s_add_u32 s43, s43, {K1_KP}
    v_add_u32 v95, s43, v{VL}
    s_lshl_b32 s59, s59, 10
    s_add_u32 s59, s59, {WS_WO}
    s_cmp_ge_u32 s{sW}, 2
    s_cselect_b32 s59, {WS_SIZE}, s59
    s_cmp_ge_u32 s{sCG}, 4
    s_cselect_b64 s[62:63], -1, 0
    v_mov_b32 v{ONES}, 0x3f803f80
    v_mov_b32 v{SX}, 0
    v_mov_b32 v{SXX}, 0
    v_mov_b32 v{KC}, 0
    v_mov_b32 v90, 0
    v_mov_b32 v91, 0
    v_mov_b32 v250, 0
    v_mov_b32 v251, 0
    """)
    def xreads(c):
        kx, kw = KF + 8*(c & 1), KF + 8*(c & 1) + 4
        for u in (0, 2, 4, 6): a(f"ds_read_b128 {vr(XF+32*c+4*u,4)}, v{XA+u} offset:{c*16384}")
        a(f"ds_read_b128 {vr(kx,4)}, v{KX} offset:{c*16384}")
        a(f"ds_read_b64_tr_b16 {vr(kw,2)}, v{KW} offset:{c*4096}\nds_read_b64_tr_b16 {vr(kw+2,2)}, v{KW} offset:{c*4096+128}")
        for u in (1, 3, 5, 7): a(f"ds_read_b128 {vr(XF+32*c+4*u,4)}, v{XA+u} offset:{c*16384}")
    def wread(ks):
        ar = WB if ks & 1 else WA
        off = (ks & ~1) * 2048
        a(f"ds_read_b64_tr_b16 {vr(WF+4*(ks&7),2)}, v{ar} offset:{off}\nds_read_b64_tr_b16 {vr(WF+4*(ks&7)+2,2)}, v{ar} offset:{off + 512}")
    def work(c):
        kx, kw = KF + 8*(c & 1), KF + 8*(c & 1) + 4
        for u in (0, 2, 4, 6):
            a(f"s_waitcnt lgkmcnt({10 - u//2})")
            for q in range(4): a(f"v_dot2c_f32_bf16 v{SX}, v{XF+32*c+4*u+q}, v{ONES}\nv_dot2c_f32_bf16 v{SXX}, v{XF+32*c+4*u+q}, v{XF+32*c+4*u+q}")
        a("s_waitcnt lgkmcnt(4)")
        for q in range(4): a(f"v_dot2c_f32_bf16 v{KC}, v{kw+q}, v{ONES}")
        a(f"{MF16} {vr(KD,4)}, {vr(kw,4)}, {vr(kx,4)}, {'0' if c == 0 else vr(KD,4)}")
        a(f"{MF16} {vr(KD+4,4)}, {vr(kx,4)}, {vr(kw,4)}, {'0' if c == 0 else vr(KD+4,4)}")
    for c in range(4):
        a("s_barrier")
        xreads(c)
        work(c)
        if c == 1:
            a(f"""
            s_waitcnt vmcnt(0)
            v_lshl_or_b32 v{WOD}, v{WOD+1}, 16, v{WOD}
            v_lshl_or_b32 v{WOD+1}, v{WOD+3}, 16, v{WOD+2}
            v_lshl_or_b32 v{WOD+2}, v{WOD+5}, 16, v{WOD+4}
            v_lshl_or_b32 v{WOD+3}, v{WOD+7}, 16, v{WOD+6}
            buffer_store_dwordx4 {vr(WOD,4)}, v{VL}, s[{WS}:{WS+3}], s59 offen sc0 sc1
            buffer_load_dword v66, v90, s[{DBG}:{DBG+3}], 0 offen sc1
            """)
    a(f"""
    v_permlane32_swap_b32 v{SX}, v{SXX}
    s_waitcnt vmcnt(0)
    ds_write_b32 v94, v{KC}
    v_add_f32 v{SX}, v{SX}, v{SXX}
    v_readfirstlane_b32 s{sEP}, v66
    ds_write_b32 v65, v{SX}
    v_mov_b32 v7, {K1_EP}
    s_cmp_eq_u32 s{sEP}, 0
    s_cbranch_scc1 L1_tag
    L1_tagok:
    """)
    for r in range(4): a(f"v_cndmask_b32 v{KD+r}, v{KD+r}, v{KD+4+r}, s[62:63]")
    a(f"ds_write_b128 v95, {vr(KD,4)}\nds_write_b32 v7, v66\nds_write_b32 v7, v90 offset:8\nv_mov_b32 v{SXX}, 0\ns_waitcnt lgkmcnt(0)\ns_barrier")
    for ks in range(7): wread(ks)
    a("s_waitcnt lgkmcnt(12)")
    wread(7)
    for g in range(8):
        a(f"s_waitcnt lgkmcnt({8 if g < 7 else 0})")
        for ks in range(4*g, 4*g + 4):
            for q in range(4): a(f"v_dot2c_f32_bf16 v{SXX}, v{WF+4*(ks&7)+q}, v{ONES}")
        if g % 2 == 0 and g < 6: a("s_barrier")
        if g == 2: a("ds_read_b128 v[84:87], v67")
        for ks in range(4*g, 4*g + 4):
            a(f"{MF32} {vr(D1,16)}, {vr(WF+4*(ks&7),4)}, {vr(XF+4*ks,4)}, {'0' if ks == 0 else vr(D1,16)}")
            if ks + 8 < 32: wread(ks + 8)
            if ks == 16: rowstat(a, 84, 8, 9)
            if ks == 17: split_ab(a, 8, 88, "m"); a(f"v_mul_f32 v10, {hex(f2u(QSCALE))}, v9")
            if ks == 29: a("s_nop 0"); split_ab(a, SXX, 248, "c")
    a(f"""
    {MF32} {vr(D1,16)}, v[248:251], v[88:91], {vr(D1,16)}
    v_mov_b32 v35, v66
    v_mov_b32 v37, v66
    v_mov_b32 v39, v66
    v_mov_b32 v43, v66
    v_lshrrev_b32 v44, 1, v64
    s_sub_u32 s61, s60, {WS_Q}
    s_lshr_b32 s61, s61, 1
    s_add_u32 s61, s61, {WS_QB}
    s_nop 3
    """)
    dst = [32, 33, 34, 36, 40, 41, 42, 38]
    for r in range(8):
        a(f"v_mul_f32 v{D1+2*r}, v10, v{D1+2*r}\nv_mul_f32 v{D1+2*r+1}, v10, v{D1+2*r+1}\nv_cvt_pk_bf16_f32 v{dst[r]}, v{D1+2*r}, v{D1+2*r+1}")
        if r == 2: a(f"buffer_store_dwordx4 v[32:35], v64, s[{WS}:{WS+3}], s60 offen sc0 sc1")
        if r == 3: a(f"buffer_store_dwordx2 v[36:37], v44, s[{WS}:{WS+3}], s61 offen sc0 sc1")
        if r == 6: a(f"buffer_store_dwordx4 v[40:43], v64, s[{WS}:{WS+3}], s60 offen offset:128 sc0 sc1")
    a(f"""
    buffer_store_dwordx2 v[38:39], v44, s[{WS}:{WS+3}], s61 offen offset:64 sc0 sc1
    @S1
    """)
def k1_cold(a):
    DBG = 28
    a(f"""
    L1_tag:
    s_mov_b32 s43, 0
    L1_tagl:
    buffer_load_dword v66, v90, s[{DBG}:{DBG+3}], 0 offen sc1
    s_add_u32 s43, s43, 1
    s_waitcnt vmcnt(0)
    v_readfirstlane_b32 s{sEP}, v66
    s_cmp_gt_u32 s43, 0x40000
    s_cbranch_scc1 L1_tagok
    s_cmp_eq_u32 s{sEP}, 0
    s_cbranch_scc1 L1_tagl
    s_branch L1_tagok
    """)
KV_BYTES = 64 * TILE
OB = KV_BYTES
RED = OB + 8 * 1040
PART = RED + 1024
CNT = PART + 8192
K2_LDS = CNT + 64
FW = 0
FR = 32768
SMF = "v_smfmac_f32_32x32x32_bf16"
LOG2E = 1.4426950408889634
SLEEP = 's_nop 0'
for _x in sys.argv:
    if _x.startswith('--sleep='): SLEEP = 's_sleep ' + _x.split('=')[1]
def k2(a):
    X, WR_, OUT, WS, FA, FB = 16, 20, 24, 28, 32, 36
    sW, sN, sG = 40, 43, 41
    Q, C, KF, VF, S, O = 8, 12, 28, 36, 52, 84
    IDX, KA, VA, LN16, XO, WRO, M, VA0 = 100, 101, 102, 103, 104, 105, 106, 107
    WO = 108; XRES, WRV, FWR = 236, 240, 244
    BAR_TILE = 10
    X_ = [x for x in sys.argv if x.startswith("--x")]
    a(f"""
    L2_start:
    s_load_dwordx8 s[52:59], s[0:1], 48
    s_load_dwordx2 s[8:9], s[0:1], 80
    v_lshlrev_b32 v{LN16}, 4, v2
    v_and_b32 v5, 31, v2
    v_lshrrev_b32 v6, 5, v2
    s_lshl_b32 s{sG}, s41, 3
    s_add_u32 s{sG}, s{sG}, s42
    s_lshl_b32 s44, s{sG}, 13
    s_lshl_b32 s45, s{sW}, 10
    s_add_u32 s46, s44, s45
    s_add_u32 s47, s45, {WS_KV}
    s_lshl_b32 s50, s{sW}, 16
    s_add_u32 s51, s50, {WS_WO}
    s_and_b32 s48, s{sW}, 4
    s_lshl_b32 s48, s48, 13
    s_add_u32 s50, s51, s48
    """)
    srd(a, WS, 14, WS_SIZE)
    def dma(i):
        return [f"s_add_u32 m0, s45, {i*8192}", f"s_add_u32 s48, s47, {i*8192}", f"buffer_load_dwordx4 v{LN16}, s[{WS}:{WS+3}], s48 offen sc1 lds"]
    a("s_waitcnt lgkmcnt(0)")
    srd(a, X, 4, 2 << 20); srd(a, WR_, 52, 1024); srd(a, OUT, 8, 2 << 20)
    a(f"""
    v_lshlrev_b32 v3, 8, v6
    v_lshl_add_u32 v3, v5, 4, v3
    v_and_b32 v4, 27, v5
    v_cmp_eq_u32 vcc, 16, v4
    v_mov_b32 v4, 528
    v_mov_b32 v7, 512
    v_cndmask_b32 v4, v4, v7, vcc
    v_cmp_gt_u32 vcc, 16, v5
    v_mov_b32 v{KA}, v{LN16}
    v_mov_b32 v{IDX}, 0xdddddddd
    v_cndmask_b32 v3, v4, v3, vcc
    v_add_u32 v{VA0}, 1024, v3
    v_mov_b32 v{VA}, v{VA0}
    v_lshrrev_b32 v3, 3, v2
    v_lshlrev_b32 v3, 4, v3
    s_lshl_b32 s49, s{sW}, 7
    v_add_u32 v{WRO}, s49, v3
    v_and_b32 v4, 7, v2
    v_lshl_add_u32 v{XO}, v4, 10, v{WRO}
    s_and_b32 s48, s2, 7
    s_lshr_b32 s49, s2, 3
    s_mul_i32 s64, s48, 22
    s_add_u32 s64, s64, s49
    s_lshl_b32 s48, s48, 3
    s_add_u32 s48, s48, s49
    s_sub_u32 s61, s48, 22
    s_and_b32 s61, s61, 63
    s_lshl_b32 s61, s61, 4
    s_min_u32 s48, s64, 171
    s_lshl_b32 s48, s48, 4
    s_mul_i32 s49, s{sW}, {64*2752}
    s_add_u32 s48, s48, s49
    s_lshl_b32 s49, s{sW}, 16
    s_add_u32 s49, s49, s61
    s_add_u32 s66, s49, {512*1024}
    s_add_u32 s67, s49, {1024*1024}
    s_movk_i32 s60, 2752
    s_cmp_ge_u32 s2, 176
    s_cselect_b32 s65, s49, s48
    s_cselect_b32 s66, s66, s48
    s_cselect_b32 s67, s67, 0x200000
    s_cselect_b32 s60, 0x400, s60
    s_cselect_b32 s54, s58, s54
    s_cselect_b32 s55, s59, s55
    s_cselect_b32 s56, s58, s56
    s_cselect_b32 s57, s59, s57
    v_mul_u32_u24 v1, s60, v2
    """)
    srd(a, FA, 54, 512*2752); srd(a, FB, 56, 512*2752)
    a(f"""
    s_mov_b32 s60, {16*8192}
    s_cmp_lt_u32 s{sW}, 4
    s_cselect_b32 s60, s60, {WS_SIZE}
    v_mov_b32 v3, {CNT}
    """)
    for r in range(16): a(f"v_mov_b32 v{O+r}, 0")
    a(f"""
    ds_write_b32 v3, v{O}
    s_lshr_b32 s12, s46, 1
    s_add_u32 s12, s12, {WS_QB}
    s_add_u32 s46, s46, {WS_Q}
    v_lshrrev_b32 v7, 1, v{LN16}
    s_cmp_lt_u32 s{sW}, 4
    s_cbranch_scc1 L2_noflag
    s_sub_u32 s13, s{sW}, 4
    s_lshl_b32 s48, s13, {KSH + 6}
    s_add_u32 s48, s48, {WS_FLG}
    v_lshlrev_b32 v3, {KSH}, v2
    s_mov_b32 s49, 0
    L2_fpoll:
    buffer_load_dword v4, v3, s[{WS}:{WS+3}], s48 offen sc1
    s_add_u32 s49, s49, 1
    s_waitcnt vmcnt(0)
    v_cmp_ne_u32 vcc, s{sEP}, v4
    s_cmp_gt_u32 s49, 0x40000
    s_cbranch_scc1 L2_fgot
    s_and_b64 exec, exec, vcc
    s_cbranch_scc1 L2_fpoll
    L2_fgot:
    s_mov_b64 exec, 1
    v_mov_b32 v3, {K1_EP + 8}
    v_mov_b32 v4, 1
    ds_add_u32 v3, v4
    L2_fspin:
    ds_read_b32 v4, v3
    s_waitcnt lgkmcnt(0)
    v_readfirstlane_b32 s49, v4
    s_cmp_lt_u32 s49, 4
    s_cbranch_scc1 L2_fspin
    s_mov_b64 exec, -1
    @S2
    s_lshl_b32 s13, s13, 10
    s_add_u32 s62, s13, {WS_KV}
    """)
    for i in range(6):
        a(f"s_add_u32 m0, s13, {i*4096}\ns_add_u32 s48, s62, {i*4096}\nbuffer_load_dwordx4 v{LN16}, s[{WS}:{WS+3}], s48 offen sc1 lds")
    a(f"""
    L2_noflag:
    s_barrier
    s_mov_b32 s49, 0
    L2_qpoll:
    buffer_load_dwordx4 {vr(Q,4)}, v{LN16}, s[{WS}:{WS+3}], s46 offen sc1
    buffer_load_dwordx2 {vr(S,2)}, v7, s[{WS}:{WS+3}], s12 offen sc1
    s_add_u32 s49, s49, 1
    s_waitcnt vmcnt(0)
    v_cmp_ne_u32 vcc, s{sEP}, v{Q+3}
    v_cmp_ne_u32 s[62:63], s{sEP}, v{S+1}
    s_cmp_gt_u32 s49, 0x40000
    s_cbranch_scc1 L2_qgot
    s_or_b64 exec, vcc, s[62:63]
    s_cbranch_scc1 L2_qpoll
    L2_qgot:
    s_mov_b64 exec, -1
    v_mov_b32 v{Q+3}, v{S}
    s_waitcnt lgkmcnt(0)
    s_barrier
    @S3
    ds_read_b128 {vr(KF,4)}, v{KA}
    ds_read_b128 {vr(KF+4,4)}, v{KA} offset:{TILE}
    ds_read_b128 {vr(VF,4)}, v{VA}
    ds_read_b128 {vr(VF+4,4)}, v{VA} offset:544
    s_waitcnt lgkmcnt(3)
    {MF32} {vr(S,16)}, {vr(KF,4)}, {vr(Q,4)}, 0
    s_waitcnt lgkmcnt(2)
    {MF32} {vr(S+16,16)}, {vr(KF+4,4)}, {vr(Q,4)}, 0
    s_nop 9
    v_max3_f32 v{M}, v{S}, v{S+1}, v{S+2}
    """)
    for r in range(3, 31, 2): a(f"v_max3_f32 v{M}, v{S+r}, v{S+r+1}, v{M}")
    a(f"""
    v_max_f32 v{M}, v{S+31}, v{M}
    v_mov_b32 v3, v{M}
    s_nop 1
    v_permlane32_swap_b32 v{M}, v3
    v_max_f32 v{M}, v{M}, v3
    v_sub_f32 v{C}, {hex(f2u(-SHIFT))}, v{M}
    """)
    for r in range(1, 16): a(f"v_mov_b32 v{C+r}, v{C}")
    a(f"""
    @S4
    @S13
    s_nop 1
    {MF32} {vr(S,16)}, {vr(KF,4)}, {vr(Q,4)}, {vr(C,16)}
    s_waitcnt lgkmcnt(0)
    s_nop 10
    """)
    base = 0
    nwo = 0
    NPT = 4 if '--npt4' in sys.argv else 2
    if '--noprio' not in sys.argv: a('s_setprio 1')
    for t in range(64):
        cur, nxt = t & 1, (t + 1) & 1
        Sc, Sn = S + 16*cur, S + 16*nxt
        e = [f"v_exp_f32 v{Sc+i}, v{Sc+i}" for i in range(16)]
        side = []
        if t < 6: side = dma(3 + 2*t) + dma(4 + 2*t)
        elif t == 6:
            d = dma(16); d[1] = "s_add_u32 s48, s47, s60"
            side = dma(15) + d
        elif t >= BAR_TILE and nwo < 32:
            for _ in range(NPT):
                f = nwo; nwo += 1
                if f and f % 4 == 0: side.append("s_add_u32 s50, s50, 4096")
                side.append(f"buffer_load_dwordx4 {vr(WO + 4*f, 4)}, v{LN16}, s[{WS}:{WS+3}], s50 offen offset:{(f & 3)*1024} sc1")
            if NPT == 2: side = side[:-1] + [None, None, side[-1]]
        elif t == BAR_TILE + 32 // NPT: side = [f"buffer_load_dwordx4 {vr(XRES,4)}, v{XO}, s[{X}:{X+3}], s44 offen", None, None, None, f"buffer_load_dwordx4 {vr(WRV,4)}, v{WRO}, s[{WR_}:{WR_+3}], 0 offen"]
        elif t in (BAR_TILE + 32 // NPT + 1, BAR_TILE + 32 // NPT + 3, BAR_TILE + 32 // NPT + 5):
            i = (t - (BAR_TILE + 32 // NPT + 1)) // 2
            sr = FA if i == 0 else FB
            side = [f"buffer_load_dwordx4 {vr(FWR+4*i,4)}, v1, s[{sr}:{sr+3}], s{65+i} offen"]
        if '--xnomem' in X_ and t >= BAR_TILE: side = []
        if t == BAR_TILE: a("s_waitcnt vmcnt(0)\ns_barrier")
        if (t + 2 - base) * TILE + TILE > 65535:
            a(f"v_add_u32 v{KA}, {(t - base)*TILE}, v{KA}\nv_add_u32 v{VA}, {(t - base)*TILE}, v{VA}")
            base = t
        after = {i: [] for i in range(16)}
        side = [x for x in side if x]
        grp, curg = [], []
        for x in side:
            curg.append(x)
            if x.startswith("buffer"): grp.append(curg); curg = []
        if t > 0: after[1].append(f"{SMF} {vr(O,16)}, {vr(VF+8*nxt+4,4)}, {vr(Sn+8,8)}, v{IDX}")
        if t < 63:
            after[1].append(f"ds_read_b128 {vr(VF+8*nxt,4)}, v{VA} offset:{(t+1-base)*TILE}")
            after[5].append(f"{MF32} {vr(Sn,16)}, {vr(KF+4*nxt,4)}, {vr(Q,4)}, {vr(C,16)}")
        if t < 62: after[5].append(f"ds_read_b128 {vr(KF+4*cur,4)}, v{KA} offset:{(t+2-base)*TILE}")
        after[11].append(f"{SMF} {vr(O,16)}, {vr(VF+8*cur,4)}, {vr(Sc,8)}, v{IDX}")
        after[11].append("s_waitcnt lgkmcnt(0)")
        if t < 63: after[11].append(f"ds_read_b128 {vr(VF+8*nxt+4,4)}, v{VA} offset:{(t+1-base)*TILE+544}")
        for g, slot in zip(grp, (5, 11, 1)): after[slot] += g
        assert len(grp) <= 3
        for i in range(16):
            a(e[i])
            for x in after[i]: a(x)
    a(f"""
    @S8
    @S14
    s_nop 1
    {SMF} {vr(O,16)}, {vr(VF+12,4)}, {vr(S+24,8)}, v{IDX}
    s_mov_b32 s48, {hex(f2u(2.0**110))}
    v_and_b32 v4, 7, v5
    v_mul_u32_u24 v4, 1040, v4
    v_lshrrev_b32 v7, 3, v5
    v_lshl_add_u32 v4, v7, 5, v4
    v_lshl_add_u32 v4, v6, 3, v4
    s_lshl_b32 s49, s{sW}, 7
    s_add_u32 s49, s49, {OB}
    v_add_u32 v4, s49, v4
    v_and_b32 v1, 7, v2
    v_mul_u32_u24 v0, 1040, v1
    v_lshrrev_b32 v7, 4, v2
    v_mul_f32 v3, 0, v{O}
    """)
    for r in range(1, 8): a(f"v_fma_f32 v3, v{O+r}, 0, v3")
    a(f"""
    v_add_f32 v3, v3, v{O+8}
    v_cmp_ngt_f32 vcc, s48, v3
    v_rcp_f32 v3, v{O+8}
    s_cmp_lg_u64 vcc, 0
    s_cbranch_scc1 L2_slow
    L2_epi:
    """)
    for r in range(8): a(f"v_mul_f32 v{O+r}, v3, v{O+r}")
    for r in range(4): a(f"v_cvt_pk_bf16_f32 v{O+r}, v{O+2*r}, v{O+2*r+1}")
    BA, PA = 101, 102
    a(f"""
    ds_write_b64 v4, {vr(O,2)}
    ds_write_b64 v4, {vr(O+2,2)} offset:16
    v_lshl_add_u32 v{BA}, v7, 4, v0
    v_add_u32 v{BA}, {OB}, v{BA}
    v_lshl_add_u32 v{PA}, v7, 3, v1
    v_lshlrev_b32 v{PA}, 6, v{PA}
    s_and_b32 s49, s{sW}, 3
    s_lshl_b32 s49, s49, 11
    s_add_u32 s49, s49, {PART}
    v_add_u32 v{PA}, s49, v{PA}
    s_waitcnt vmcnt(0)
    s_cmp_lt_u32 s{sW}, 4
    {'' if '--xnoold' in X_ else 's_cbranch_scc1 L2_old'}
    L2_join:
    @S7
    """)
    HF, T = 60, 68
    ACC = O
    BF = [Q, 28, 32, 36]
    a("v_mov_b32 v7, 0x3f803f80")
    for q in range(4): a(f"v_mov_b32 v{T+q}, 0")
    for j in range(4):
        a(f"v_lshlrev_b32 v{HF+2*j}, 16, v{XRES+j}\nv_and_b32 v{HF+2*j+1}, 0xffff0000, v{XRES+j}\nv_dot2c_f32_bf16 v{T+3}, v{WRV+j}, v7")
    a(f"""
    v_and_b32 v3, 8, v2
    v_cmp_ne_u32 vcc, 0, v3
    s_cmp_ge_u32 s{sW}, 4
    s_cselect_b64 s[62:63], -1, 0
    s_waitcnt lgkmcnt(0)
    s_barrier
    @S9
    s_mov_b64 exec, s[62:63]
    """)
    for i in range(4): a(f"ds_read_b128 {vr(ACC+4*i,4)}, v{PA} offset:{16*i}")
    a("s_mov_b64 exec, -1")
    for ks in range(8, 12): a(f"ds_read_b128 {vr(BF[ks&3],4)}, v{BA} offset:{ks*64}")
    a(f"v_add_u32 v0, s45, v{LN16}")
    for ks in range(8, 16):
        a(f"s_waitcnt lgkmcnt({min(3, 15 - ks)})")
        for i in range(4):
            a(f"{MF16} {vr(ACC+4*i,4)}, {vr(WO+16*(ks-8)+4*i,4)}, {vr(BF[ks&3],4)}, {vr(ACC+4*i,4)}")
        if ks < 12: a(f"ds_read_b128 {vr(BF[ks&3],4)}, v{BA} offset:{(ks+4)*64}")
    for i in range(3): a(f"ds_write_b128 v0, {vr(FWR+4*i,4)} offset:{FW + i*8192}")
    A8, HB = 40, 48
    a(f"""
    v_lshrrev_b32 v3, 4, v2
    v_lshlrev_b32 v3, 8, v3
    v_lshl_add_u32 v3, v1, 5, v3
    s_lshl_b32 s49, s{sW}, 2
    s_add_u32 s49, s49, {RED}
    v_add_u32 v3, s49, v3
    v_lshlrev_b32 v4, 5, v1
    v_add_u32 v4, {RED}, v4
    s_add_u32 s49, s44, {WS_H}
    """)
    for j in range(8): a(f"v_cndmask_b32 v{A8+j}, v{ACC+j}, v{ACC+8+j}, vcc")
    for j in range(8): a(f"v_add_f32 v{HF+j}, v{HF+j}, v{A8+j}")
    for j in range(4): a(f"v_cvt_pk_bf16_f32 v{HB+j}, v{HF+2*j}, v{HF+2*j+1}")
    a(f"buffer_store_dwordx4 {vr(HB,4)}, v{XO}, s[{WS}:{WS+3}], s49 offen sc0 sc1")
    for j in range(4):
        a(f"""
        v_dot2c_f32_bf16 v{T}, v{HB+j}, v7
        v_dot2c_f32_bf16 v{T+1}, v{HB+j}, v{HB+j}
        v_dot2c_f32_bf16 v{T+2}, v{HB+j}, v{WRV+j}
        """)
    a(f"""
    v_lshlrev_b32 v{HF}, 16, v{HB}
    v_and_b32 v{HF+1}, 0xffff0000, v{HB}
    v_permlane32_swap_b32 v{T}, v{T+1}
    v_permlane32_swap_b32 v{T+2}, v{T+3}
    v_add_f32 v{T}, v{T}, v{T+1}
    v_add_f32 v{T+2}, v{T+2}, v{T+3}
    v_lshlrev_b32 v{HF+2}, 16, v{HB+1}
    v_and_b32 v{HF+3}, 0xffff0000, v{HB+1}
    v_permlane16_swap_b32 v{T}, v{T+2}
    v_add_f32 v{T}, v{T}, v{T+2}
    v_lshlrev_b32 v{HF+4}, 16, v{HB+2}
    v_and_b32 v{HF+5}, 0xffff0000, v{HB+2}
    v_add_f32_dpp v{T}, v{T}, v{T} row_ror:8 row_mask:0xf bank_mask:0xf
    ds_write_b32 v3, v{T}
    v_lshlrev_b32 v{HF+6}, 16, v{HB+3}
    v_and_b32 v{HF+7}, 0xffff0000, v{HB+3}
    s_waitcnt lgkmcnt(0)
    s_barrier
    @S11
    """)
    R_ = 108
    for q in (0, 2, 1, 3):
        a(f"ds_read_b128 {vr(R_+8*q,4)}, v4 offset:{q*256}\nds_read_b128 {vr(R_+8*q+4,4)}, v4 offset:{q*256+16}")
    def sum8(b):
        a(f"""
        v_add_f32 v{b}, v{b}, v{b+1}
        v_add_f32 v{b+2}, v{b+2}, v{b+3}
        v_add_f32 v{b+4}, v{b+4}, v{b+5}
        v_add_f32 v{b+6}, v{b+6}, v{b+7}
        v_add_f32 v{b}, v{b}, v{b+2}
        v_add_f32 v{b+4}, v{b+4}, v{b+6}
        v_add_f32 v{b}, v{b}, v{b+4}
        """)
    s1, s3, s2, s4 = R_, R_+8, R_+16, R_+24
    ST = 76
    OV = 80
    a("s_waitcnt lgkmcnt(4)")
    sum8(s1); sum8(s2)
    a(f"""
    v_mul_f32 v{ST}, {hex(f2u(1.0/512))}, v{s1}
    v_mul_f32 v{s2}, {hex(f2u(1.0/512))}, v{s2}
    v_fma_f32 v{s2}, -v{ST}, v{ST}, v{s2}
    v_max_f32 v{s2}, 0, v{s2}
    v_add_f32 v{s2}, {hex(f2u(EPS))}, v{s2}
    v_rsq_f32 v{ST+1}, v{s2}
    s_cmp_lg_u32 s{sW}, 0
    s_cbranch_scc1 L2_nokey
    s_waitcnt lgkmcnt(0)
    """)
    sum8(s3); sum8(s4)
    AF, BFR, STT, D, D2 = 140, 12, 204, 208, 212
    breg = lambda q: 12 + 4*q if q < 7 else 216 + 4*(q - 7)
    a(f"""
    v_fma_f32 v{s3}, -v{ST}, v{s4}, v{s3}
    s_lshl_b32 s48, s{sG}, 3
    v_add_u32 v4, s48, v1
    v_mul_f32 v{ST+2}, v{ST+1}, v{s3}
    v_mov_b32 v{ST+3}, s{sEP}
    v_lshlrev_b32 v0, 4, v4
    s_mov_b32 s48, {WS_ST}
    s_mov_b64 exec, 0xff
    buffer_store_dwordx4 {vr(ST,4)}, v0, s[{WS}:{WS+3}], s48 offen sc0 sc1
    s_mov_b64 exec, -1
    v_ashrrev_i32 v3, 31, v{ST+2}
    v_or_b32 v3, 0x80000000, v3
    v_xor_b32 v3, v3, v{ST+2}
    v_and_b32 v3, 0xfffff800, v3
    v_sub_u32 v4, 2047, v4
    v_or_b32 v4, v3, v4
    s_lshl_b32 s48, s2, {KSH}
    s_add_u32 s48, s48, {WS_KEY}
    v_mov_b32_dpp v6, v4 quad_perm:[1,0,3,2] row_mask:0xf bank_mask:0xf
    v_mov_b32 v0, 0
    v_min_u32 v5, v4, v6
    v_max_u32 v4, v4, v6
    """)
    for dpp in ("quad_perm:[2,3,0,1]", "row_half_mirror"):
        a(f"""
        s_nop 0
        v_mov_b32_dpp v3, v5 {dpp} row_mask:0xf bank_mask:0xf
        v_mov_b32_dpp v6, v4 {dpp} row_mask:0xf bank_mask:0xf
        v_max_u32 v5, v5, v3
        v_med3_u32 v5, v4, v5, v6
        v_max_u32 v4, v4, v6
        """)
    a(f"""
    s_waitcnt vmcnt(1)
    s_barrier
    s_mov_b64 exec, 1
    buffer_store_dwordx2 v[4:5], v0, s[{WS}:{WS+3}], s48 offen sc0 sc1
    s_mov_b64 exec, -1
    @S5
    v_lshlrev_b32 v8, {KSH + 2}, v2
    s_mov_b32 s48, {WS_KEY}
    """)
    def kloads():
        for q in range(4): a(f"buffer_load_dwordx2 {vr(R_+2*q,2)}, v8, s[{WS}:{WS+3}], s48 offen offset:{q << KSH} sc1")
    kloads()
    def outval():
        a(f"v_add_f32 v3, 1.0, v{ST+1}\nv_mul_f32 v6, v{ST}, v{ST+1}")
        for j in range(8): a(f"v_fma_f32 v{A8+j}, v{HF+j}, v3, -v6")
        for j in range(4): a(f"v_cvt_pk_bf16_f32 v{OV+j}, v{A8+2*j}, v{A8+2*j+1}")
    a(f"""
    v_and_b32 v9, 15, v2
    v_lshrrev_b32 v11, 4, v2
    v_lshrrev_b32 v10, 2, v9
    v_lshl_add_u32 v10, v11, 7, v10
    v_lshlrev_b32 v10, 4, v10
    v_and_b32 v0, 1, v9
    v_lshl_add_u32 v10, v0, 3, v10
    v_and_b32 v3, 2, v9
    v_lshl_add_u32 v10, v3, 12, v10
    """)
    for q in range(7): a(f"ds_read_b64_tr_b16 {vr(AF+4*q,2)}, v10 offset:{FW + q*128}\nds_read_b64_tr_b16 {vr(AF+4*q+2,2)}, v10 offset:{FW + q*128 + 64}")
    outval()
    a("s_waitcnt lgkmcnt(0)")
    for q in range(7, 14): a(f"ds_read_b64_tr_b16 {vr(AF+4*q,2)}, v10 offset:{FW + q*128}\nds_read_b64_tr_b16 {vr(AF+4*q+2,2)}, v10 offset:{FW + q*128 + 64}")
    a(f"v_mov_b32 v252, v7\nv_mov_b32 v253, v7\nv_mov_b32 v254, v7\nv_mov_b32 v255, v7\ns_waitcnt lgkmcnt(4)")
    for q in range(14, 16): a(f"ds_read_b64_tr_b16 {vr(AF+4*q,2)}, v10 offset:{FW + q*128}\nds_read_b64_tr_b16 {vr(AF+4*q+2,2)}, v10 offset:{FW + q*128 + 64}")
    a(f"""
    v_cmp_eq_u32 s[10:11], 1, v0
    v_lshlrev_b32 v10, 8, v11
    s_mov_b32 s12, 0x00030003
    s_mov_b32 s13, s12
    s_cmp_ge_u32 s2, 176
    s_cselect_b64 s[12:13], 0, s[12:13]
    s_mov_b32 s49, 0
    s_mov_b32 s46, 0
    s_mov_b32 s47, 0
    s_mov_b32 s50, {WS_H}
    s_mov_b32 s51, {WS_ST}
    s_waitcnt lgkmcnt(0)
    """)
    for q in range(16): a(f"{MF16} {vr(D2,4)}, {vr(AF+4*q,4)}, v[252:255], {'0' if q == 0 else vr(D2,4)}")
    a(f"""
    L2_kpoll:
    s_waitcnt vmcnt(0)
    s_mov_b64 exec, -1
    v_min_u32 v0, v{R_}, v{R_+2}
    v_min3_u32 v0, v{R_+4}, v{R_+6}, v0
    v_cmp_eq_u32 s[62:63], 0, v0
    s_add_u32 s49, s49, 1
    s_cmp_gt_u32 s49, 0x40000
    s_cselect_b64 s[62:63], 0, s[62:63]
    v_max_u32 v4, v{R_}, v{R_+2}
    v_min_u32 v5, v{R_}, v{R_+2}
    v_max3_u32 v5, v5, v{R_+1}, v{R_+3}
    v_med3_u32 v5, v4, v5, v{R_+4}
    v_max_u32 v4, v4, v{R_+4}
    v_med3_u32 v5, v4, v5, v{R_+6}
    v_max_u32 v4, v4, v{R_+6}
    v_max3_u32 v5, v5, v{R_+5}, v{R_+7}
    s_mov_b64 exec, s[62:63]
    s_cbranch_execz L2_klast
    """)
    kloads()
    a("L2_klast:\ns_mov_b64 exec, -1")
    for dpp in ("quad_perm:[1,0,3,2]", "quad_perm:[2,3,0,1]", "row_half_mirror", "row_mirror"):
        a(f"""
        v_mov_b32_dpp v3, v5 {dpp} row_mask:0xf bank_mask:0xf
        v_mov_b32_dpp v6, v4 {dpp} row_mask:0xf bank_mask:0xf
        v_max_u32 v5, v5, v3
        v_med3_u32 v5, v4, v5, v6
        v_max_u32 v4, v4, v6
        s_nop 0
        """)
    for q in range(4): a(f"v_readlane_b32 s{52+2*q}, v4, {16*q}\nv_readlane_b32 s{53+2*q}, v5, {16*q}")
    a(f"""
    s_min_u32 s60, s52, s54
    s_max_u32 s52, s52, s54
    s_max_u32 s53, s53, s55
    s_max_u32 s53, s53, s60
    s_min_u32 s60, s56, s58
    s_max_u32 s56, s56, s58
    s_max_u32 s57, s57, s59
    s_max_u32 s57, s57, s60
    s_min_u32 s60, s52, s56
    s_max_u32 s52, s52, s56
    s_max_u32 s53, s53, s57
    s_max_u32 s53, s53, s60
    s_cmp_eq_u64 s[52:53], s[46:47]
    s_cbranch_scc1 L2_ksame
    s_mov_b64 s[46:47], s[52:53]
    s_andn2_b32 s54, 0x7ff, s52
    s_andn2_b32 s55, 0x7ff, s53
    v_mov_b32 v4, s54
    v_mov_b32 v5, s55
    s_mov_b64 exec, s[12:13]
    s_cbranch_execz L2_ksame
    v_cndmask_b32 v3, v4, v5, s[10:11]
    v_lshl_add_u32 v0, v3, 10, v10
    v_lshlrev_b32 v9, 4, v3
    buffer_load_dwordx4 {vr(STT,4)}, v9, s[{WS}:{WS+3}], s51 offen sc1
    """)
    for q in range(16): a(f"buffer_load_dwordx4 {vr(breg(q),4)}, v0, s[{WS}:{WS+3}], s50 offen offset:{q*16} sc1")
    a(f"""
    L2_ksame:
    s_cmp_lg_u64 s[62:63], 0
    s_cbranch_scc1 L2_kpoll
    s_mov_b64 exec, -1
    @S6
    s_andn2_b32 s54, 0x7ff, s46
    s_andn2_b32 s55, 0x7ff, s47
    v_mov_b32 v4, s54
    v_mov_b32 v5, s55
    v_mov_b32 v0, {CNT + 16}
    ds_write_b64 v0, v[4:5]
    s_cmp_ge_u32 s2, 176
    s_cbranch_scc1 L2_bc
    s_cmp_ge_u32 s64, 172
    s_cselect_b32 s48, 0x100000, s64
    s_lshl_b32 s48, s48, {ASH}
    s_add_u32 s48, s48, {WS_ACT}
    L2_stw:
    s_waitcnt vmcnt(0)
    v_cmp_ne_u32 vcc, s{sEP}, v{STT+3}
    @S10
    """)
    for q in range(16): a(f"{MF16} {vr(D,4)}, {vr(AF+4*q,4)}, {vr(breg(q),4)}, {'0' if q == 0 else vr(D,4)}")
    a(f"""
    s_and_b64 vcc, vcc, s[12:13]
    s_cbranch_scc1 L2_stre
    L2_stok:
    v_and_b32 v0, 1, v2
    v_lshlrev_b32 v0, 4, v0
    v_lshl_add_u32 v0, v11, 3, v0
    s_nop 2
    """)
    for r in range(4): a(f"v_fma_f32 v{D+r}, -v{STT}, v{D2+r}, v{D+r}")
    for r in range(4): a(f"v_mul_f32 v{D+r}, v{D+r}, v{STT+1}")
    for r in range(4): a(f"v_mov_b32 v{D2+r}, v{D+r}")
    for r in range(4): a(f"v_mul_f32 v{12+r}, {hex(f2u(-LOG2E))}, v{D+r}")
    for r in range(4): a(f"v_exp_f32 v{12+r}, v{12+r}")
    for r in range(4): a(f"v_permlane32_swap_b32 v{D+r}, v{D2+r}")
    for r in range(4): a(f"v_add_f32 v{12+r}, 1.0, v{12+r}")
    for r in range(4): a(f"v_rcp_f32 v{12+r}, v{12+r}")
    for r in range(4): a(f"v_mul_f32 v{D+r}, v{D+r}, v{D2+r}")
    for r in range(4): a(f"v_mul_f32 v{D+r}, v{D+r}, v{12+r}")
    a(f"""
    v_cvt_pk_bf16_f32 v12, v{D}, v{D+1}
    v_cvt_pk_bf16_f32 v13, v{D+2}, v{D+3}
    s_mov_b64 exec, 0x00030003
    buffer_store_dwordx2 v[12:13], v0, s[{WS}:{WS+3}], s48 offen sc0 sc1
    s_mov_b64 exec, -1
    s_branch L2_bc
    L2_stre:
    s_add_u32 s49, s49, 1
    s_cmp_gt_u32 s49, 0x40000
    s_cbranch_scc1 L2_stok
    s_mov_b64 exec, s[12:13]
    buffer_load_dwordx4 {vr(STT,4)}, v9, s[{WS}:{WS+3}], s51 offen sc1
    s_mov_b64 exec, -1
    s_nop 7
    s_branch L2_stw
    L2_nokey:
    s_waitcnt vmcnt(0)
    s_barrier
    """)
    outval()
    BFR = 164
    a(f"""
    L2_bc:
    v_and_b32 v9, 15, v2
    v_lshrrev_b32 v10, 2, v9
    v_lshrrev_b32 v11, 4, v2
    v_lshl_add_u32 v10, v11, 3, v10
    v_lshlrev_b32 v10, 4, v10
    v_and_b32 v8, 1, v9
    v_lshl_add_u32 v10, v8, 3, v10
    s_mul_i32 s49, s45, 3
    v_add_u32 v10, s49, v10
    """)
    for s_ in range(6):
        a(f"ds_read_b64_tr_b16 {vr(AF+4*s_,2)}, v10 offset:{FW + s_*512}\nds_read_b64_tr_b16 {vr(AF+4*s_+2,2)}, v10 offset:{FW + s_*512 + 64}")
    a(f"""
    v_mov_b32 v0, {CNT + 16}
    s_lshl_b32 s48, s{sG}, 3
    v_add_u32 v8, s48, v1
    s_waitcnt lgkmcnt(0)
    s_barrier
    ds_read_b64 v[4:5], v0
    s_waitcnt lgkmcnt(0)
    v_cmp_ne_u32 vcc, v4, v8
    v_cmp_ne_u32 s[62:63], v5, v8
    s_and_b64 exec, vcc, s[62:63]
    buffer_store_dwordx4 {vr(OV,4)}, v{XO}, s[{OUT}:{OUT+3}], s44 offen
    s_mov_b64 exec, -1
    s_sub_u32 s48, s2, 176
    s_cmp_lt_u32 s48, 64
    s_cbranch_scc1 L2_st2
    L2_fin:
    @D0 15 {WS} {sW}
    s_endpgm
    """)
    a("L2_st2:")
    a(f"""
    v_and_b32 v6, 8, v2
    v_cmp_ne_u32 vcc, 0, v6
    s_mov_b32 s48, {WS_H}
    s_mov_b32 s51, {WS_ST}
    v_cndmask_b32 v3, v4, v5, vcc
    v_lshlrev_b32 v12, 10, v3
    v_lshl_add_u32 v12, v1, 1, v12
    v_add_u32 v12, s61, v12
    v_lshlrev_b32 v18, 4, v3
    buffer_load_ushort v13, v12, s[{WS}:{WS+3}], s48 offen sc1
    v_and_b32 v6, 1, v2
    v_lshlrev_b32 v0, {ASH}, v11
    v_lshl_add_u32 v0, v6, 4, v0
    s_mul_i32 s48, s{sW}, {24 << ASH}
    s_add_u32 s48, s48, {WS_ACT}
    s_mov_b32 s49, 0
    L2_apoll:
    buffer_load_dwordx4 {vr(STT,4)}, v18, s[{WS}:{WS+3}], s51 offen sc1
    """)
    for s_ in range(6):
        a(f"buffer_load_dwordx4 {vr(BFR+4*s_,4)}, v0, s[{WS}:{WS+3}], s48 offen offset:{s_*(4 << ASH)} sc1")
    a(f"s_add_u32 s49, s49, 1\ns_waitcnt vmcnt(0)\nv_max3_u32 v3, v{BFR}, v{BFR+1}, v{BFR+2}")
    for q in range(3, 23, 2): a(f"v_max3_u32 v3, v{BFR+q}, v{BFR+q+1}, v3")
    a(f"""
    v_max_u32 v3, v{BFR+23}, v3
    v_cmp_eq_u32 vcc, -1, v3
    v_cmp_ne_u32 s[62:63], s{sEP}, v{STT+3}
    s_cmp_gt_u32 s49, 0x40000
    s_cbranch_scc1 L2_agot
    s_or_b64 vcc, vcc, s[62:63]
    s_cbranch_scc1 L2_apoll
    L2_agot:
    @S10
    """)
    for s_ in range(6): a(f"{MF16} {vr(D,4)}, {vr(AF+4*s_,4)}, {vr(BFR+4*s_,4)}, {'0' if s_ == 0 else vr(D,4)}")
    a(f"""
    v_and_b32 v3, 1, v11
    v_lshlrev_b32 v0, 5, v6
    v_lshl_add_u32 v0, v3, 4, v0
    s_lshl_b32 s48, s{sW}, 6
    s_add_u32 s48, s48, {FR}
    v_add_u32 v0, s48, v0
    v_lshlrev_b32 v10, 2, v9
    v_lshl_add_u32 v10, v11, 7, v10
    v_add_u32 v10, {FR}, v10
    ds_write_b128 v0, {vr(D,4)}
    s_waitcnt lgkmcnt(0)
    s_barrier
    s_cmp_lg_u32 s{sW}, 0
    s_cbranch_scc1 L2_fin
    ds_read2_b32 v[14:15], v10 offset0:0 offset1:16
    v_mul_f32 v16, {hex(f2u(-LOG2E))}, v{STT+2}
    v_exp_f32 v16, v16
    v_lshlrev_b32 v13, 16, v13
    v_add_f32 v16, 1.0, v16
    v_rcp_f32 v16, v16
    v_sub_f32 v17, v13, v{STT}
    v_fma_f32 v13, v17, v{STT+1}, v13
    s_waitcnt lgkmcnt(0)
    v_add_f32 v14, v14, v15
    v_mov_b32 v15, v14
    s_nop 1
    v_permlane32_swap_b32 v14, v15
    v_add_f32 v14, v14, v15
    v_mov_b32 v15, v14
    s_nop 1
    v_permlane16_swap_b32 v14, v15
    v_add_f32 v14, v14, v15
    v_fma_f32 v14, v14, v16, v13
    v_cvt_pk_bf16_f32 v14, v14, v14
    s_mov_b64 exec, 0xffff
    buffer_store_short v14, v12, s[{OUT}:{OUT+3}], 0 offen
    @Q {WS}
    @D0 15 {WS} {sW}
    L2_end:
    s_endpgm
    """)
    AB = 12
    def wl(reg, sb, f):
        a(f"buffer_load_dwordx4 {vr(reg,4)}, v{LN16}, s[{WS}:{WS+3}], s{sb} offen offset:{(f & 3)*1024} sc1")
        if f % 4 == 3: a(f"s_add_u32 s{sb}, s{sb}, 4096")
    NE = 11
    breg = lambda f: 40 + 4*f if f < NE else WO + 4*(f - NE)
    a(f"""
    L2_old:
    s_setprio 0
    v_mov_b32 v3, {CNT}
    v_mov_b32 v4, 1
    s_waitcnt lgkmcnt(0)
    s_mov_b64 exec, 1
    ds_add_u32 v3, v4
    s_mov_b64 exec, -1
    s_add_u32 s48, s51, {4*65536}
    """)
    for f in range(NE): wl(breg(f), 48, f)
    a(f"""
    L2_spin:
    ds_read_b32 v4, v3
    s_waitcnt lgkmcnt(0)
    v_readfirstlane_b32 s49, v4
    s_cmp_ge_u32 s49, 4
    s_cbranch_scc1 L2_go
    s_sleep 2
    s_branch L2_spin
    L2_go:
    """)
    def half(acc, reg, after):
        for ks in range(3): a(f"ds_read_b128 {vr(BF[ks&3],4)}, v{BA} offset:{ks*64}")
        for ks in range(8):
            if ks + 3 < 8: a(f"ds_read_b128 {vr(BF[(ks+3)&3],4)}, v{BA} offset:{(ks+3)*64}")
            after(ks, 0)
            for i in range(4):
                a(f"{MF16} {vr(acc+4*i,4)}, {vr(reg(4*ks+i),4)}, {vr(BF[ks&3],4)}, {'0' if ks == 0 else vr(acc+4*i,4)}")
            after(ks, 1)
    a(f"s_add_u32 s49, s51, {32768 + ((32 - NE)//4)*4096}")
    def aftA(ks, post):
        if not post: a(f"s_waitcnt lgkmcnt({min(3, 7-ks)})"); return
        for slot in range(4*ks, 4*ks + 4):
            if slot < 32 - NE: wl(WO + 4*slot, 48, slot + NE)
            else: wl(WO + 4*slot, 49, slot)
    half(ACC, lambda f: WO + 4*f, aftA)
    a(f"s_add_u32 s49, s51, 32768")
    def aftB(ks, post):
        if not post:
            done = sum(1 for f in range(NE, 4*ks))
            a(f"s_waitcnt lgkmcnt({min(3, 7-ks)}) vmcnt({min(63, (31 - (4*ks+3)) + NE + done)})"); return
        for f in range(4*ks, 4*ks + 4):
            if f >= NE: wl(WO + 4*(f - NE), 49, f - NE)
    half(AB, breg, aftB)
    a("s_nop 3")
    for i in range(4): a(f"ds_write_b128 v{PA}, {vr(AB+4*i,4)} offset:{16*i}")
    a("s_waitcnt vmcnt(0)\ns_setprio 1\ns_branch L2_join")
    a(f"""
    L2_slow:
    v_mov_b32 v{KA}, v{LN16}
    v_mov_b32 v{M}, 0xff7fffff
    s_mov_b32 s{sN}, 64
    L2_maxloop:
    ds_read_b128 {vr(KF,4)}, v{KA}
    v_add_u32 v{KA}, {TILE}, v{KA}
    s_waitcnt lgkmcnt(0)
    {MF32} {vr(S,16)}, {vr(KF,4)}, {vr(Q,4)}, 0
    s_sub_u32 s{sN}, s{sN}, 1
    s_nop 10
    """)
    for r in range(8): a(f"v_max3_f32 v{M}, v{S+2*r}, v{S+2*r+1}, v{M}")
    a(f"""
    s_cmp_lg_u32 s{sN}, 0
    s_cbranch_scc1 L2_maxloop
    v_mov_b32 v3, v{M}
    v_mov_b32 v{KA}, v{LN16}
    v_mov_b32 v{VA}, v{VA0}
    v_permlane32_swap_b32 v{M}, v3
    v_max_f32 v{M}, v{M}, v3
    """)
    for r in range(16): a(f"v_sub_f32 v{C+r}, 0, v{M}\nv_mov_b32 v{O+r}, 0")
    a(f"""
    s_mov_b32 s{sN}, 64
    L2_slowloop:
    ds_read_b128 {vr(KF,4)}, v{KA}
    ds_read_b128 {vr(VF,4)}, v{VA}
    ds_read_b128 {vr(VF+4,4)}, v{VA} offset:544
    v_add_u32 v{KA}, {TILE}, v{KA}
    v_add_u32 v{VA}, {TILE}, v{VA}
    s_waitcnt lgkmcnt(0)
    {MF32} {vr(S,16)}, {vr(KF,4)}, {vr(Q,4)}, {vr(C,16)}
    s_sub_u32 s{sN}, s{sN}, 1
    s_nop 10
    """)
    for i in range(16): a(f"v_exp_f32 v{S+i}, v{S+i}")
    a(f"""
    s_nop 1
    {SMF} {vr(O,16)}, {vr(VF,4)}, {vr(S,8)}, v{IDX}
    {SMF} {vr(O,16)}, {vr(VF+4,4)}, {vr(S+8,8)}, v{IDX}
    s_cmp_lg_u32 s{sN}, 0
    s_cbranch_scc1 L2_slowloop
    s_nop 11
    v_rcp_f32 v3, v{O+8}
    s_branch L2_epi
    """)
    k1_cold(a)
    return desc(KNAME, 256, 70)
def main():
    hdr = open("sequential_preLN__grouped_kv_mqa__moe_arch_mod__prompt.s.ref").read().split("\n")
    top = [l for l in hdr if l.startswith(";") and "@launch" not in l and "Override" not in l and "grid=ceil" not in l]
    a = Asm()
    k1(a)
    d = k2(a)
    out = "\n".join(top) + "\n"
    out += f"; @launch grid=(256,1,1) block=(512,1,1) lds={max(K1_LDS, K2_LDS)}\n"
    out += '.amdgcn_target "amdgcn-amd-amdhsa--gfx950"\n.text\n' + a.text() + '.section .rodata,"a"\n' + d
    sys.stdout.write(out)
main()
```

```python
import sys, struct
def f2u(x): return struct.unpack("<I", struct.pack("<f", x))[0]

WS_Q   = 0
WS_KV  = 2 << 20
WS_WO  = 3 << 20
WS_H   = 4 << 20

WS_ST  = (6 << 20) + 0x10000
WS_ACT = (6 << 20) + 0x20000
WS_KEY = WS_ACT + 0x10000
KSH = 7; ASH = 7
for _x in sys.argv:
    if _x.startswith('--ksh='): KSH = int(_x.split('=')[1])
    if _x.startswith('--ash='): ASH = int(_x.split('=')[1])
WS_FLG = WS_KEY + 0x10000
WS_QB = 7 << 20
sEP = 68
KNAME = 'sequential_preLN__grouped_kv_mqa__moe_arch_mod__prompt_kernel'
WS_SIZE = 8 << 20
TILE = 2112
QSCALE = 0.25 * 1.4426950408889634
EPS = 1e-5
SHIFT = 96.0
for _x in sys.argv:
    if _x.startswith('--shift='): SHIFT = float(_x.split('=')[1])

class Asm:
    def __init__(self): self.l = []
    def __call__(self, s):
        for x in s.split("\n"):
            x = x.strip()
            if x.startswith("@S"): stamp(self, int(x[2:])); continue
            if x.startswith("@P"): padstore(self, *[int(t) for t in x[2:].split()]); continue
            if x.startswith("@Q"): padspin(self, *[int(t) for t in x[2:].split()]); continue
            if x.startswith("@T"): padstamp(self, int(x[2:])); continue
            if x.startswith("@D"): dump(self, *[int(t) for t in x[2:].split()]); continue
            if x: self.l.append(("" if x.endswith(":") else "    ") + x)
    def text(self): return "\n".join(self.l) + "\n"

def srd(a, d, p, size):
    a(f"s_mov_b32 s{d}, s{p}\ns_and_b32 s{d+1}, s{p+1}, 0xffff\ns_mov_b32 s{d+2}, {size}\ns_mov_b32 s{d+3}, 0x20000")
def vr(b, n): return f"v[{b}:{b+n-1}]"
def head(a, name):
    a(f".globl {name}\n.p2align 8\n.type {name},@function\n{name}:")
def desc(name, nv, ns):
    return f""".p2align 6
.amdhsa_kernel {name}
  .amdhsa_next_free_vgpr {nv}
  .amdhsa_next_free_sgpr {100 if (DIAG or PAD is not None) else ns}
  .amdhsa_accum_offset {(nv+3)//4*4}
  .amdhsa_group_segment_fixed_size 0
  .amdhsa_kernarg_size 104
  .amdhsa_user_sgpr_count 2
  .amdhsa_user_sgpr_kernarg_segment_ptr 1
  .amdhsa_system_sgpr_workgroup_id_x 1
.end_amdhsa_kernel
"""
DIAG = "--diag" in sys.argv
WS_DIAG = 16 << 20
if DIAG: WS_SIZE = 32 << 20
LIGHT = '--light' in sys.argv
def stamp(a, i, force=False):
    if LIGHT and i != 0 and not force: return
    if DIAG: a(f"{'s_memtime' if i >= 13 else 's_memrealtime'} s[{70+2*i}:{71+2*i}]\ns_waitcnt lgkmcnt(0)")
DIAG2 = "--diag2" in sys.argv
D2SEL = {0: [(0, 1), (2, 0), (8, 0)], 1: [(0, 1), (1, 0), (3, 0), (4, 0), (8, 0), (10, 0), (12, 0)], 2: [(0, 1), (1, 0), (3, 0), (5, 0), (6, 0), (7, 0)]}
_dl = [0]
def dump(a, kidx, n, WS, sW):
    if not DIAG: return
    stamp(a, min(n - 1, 12), True)
    if DIAG2:
        _dl[0] += 1
        base = sum(len(D2SEL[k]) for k in range(kidx))
        a(f"s_and_b32 s98, s2, 15\ns_cmp_lg_u32 s98, 0\ns_cbranch_scc1 LD_{_dl[0]}\ns_load_dwordx2 s[98:99], s[0:1], 88\ns_mov_b64 exec, 1\nv_mov_b32 v1, 0\ns_waitcnt lgkmcnt(0)\ns_add_u32 s98, s98, {512*(2-kidx)}\ns_addc_u32 s99, s99, 0")
        for j, (i, inv) in enumerate(D2SEL[kidx]):
            a(f"v_mov_b32 v0, s{70+2*i}")
            if inv: a("v_not_b32 v0, v0")
            a(f"global_atomic_umax v1, v0, s[98:99] offset:{4*(base+j)}\ns_nop 1")
        a(f"LD_{_dl[0]}:")
        return
    a(f"s_mov_b64 exec, 1\ns_lshl_b32 s69, s2, 4\ns_add_u32 s69, s69, s{sW}\ns_lshl_b32 s69, s69, 6\ns_add_u32 s69, s69, {WS_DIAG + kidx * (1 << 20)}\nv_mov_b32 v1, 0")
    for i in range(n):
        a(f"v_mov_b32 v0, s{70+2*i}\nbuffer_store_dword v0, v1, s[{WS}:{WS+3}], s69 offen offset:{4*i}")
PAD = [int(x.split("=")[1]) for x in sys.argv if x.startswith("--pad=")]
PAD = PAD[0] if PAD else None
WS_PAD = (6 << 20)
def padstamp(a, k):
    if PAD == k: a("s_memrealtime s[68:69]")
def padstore(a, k, WS, sW):
    if PAD != k: return
    a(f"s_or_b32 s98, s2, s{sW}\ns_cmp_lg_u32 s98, 0\ns_cbranch_scc1 LP_{k}\nv_mov_b32 v99, s68\nv_mov_b32 v98, 0\ns_mov_b32 s98, {WS_PAD}\nbuffer_store_dword v99, v98, s[{WS}:{WS+3}], s98 offen\nLP_{k}:")
def padspin(a, WS):
    if PAD is None: return
    if PAD == 1:
        a("s_mov_b32 s99, s68")
    else:
        a(f"v_mov_b32 v98, 0\ns_mov_b32 s98, {WS_PAD}\nbuffer_load_dword v99, v98, s[{WS}:{WS+3}], s98 offen\ns_waitcnt vmcnt(0)\nv_readfirstlane_b32 s99, v99\ns_nop 3")
    a(f"s_mov_b32 s97, 0\nLQ_spin:\ns_memrealtime s[68:69]\ns_waitcnt lgkmcnt(0)\ns_sub_u32 s98, s68, s99\ns_add_u32 s97, s97, 1\ns_cmp_gt_u32 s97, 100000\ns_cbranch_scc1 LQ_done\ns_cmp_lt_u32 s98, 6000\ns_cbranch_scc1 LQ_spin\nLQ_done:")
MF32 = "v_mfma_f32_32x32x16_bf16"
MF16 = "v_mfma_f32_16x16x32_bf16"

ZERO_KB = 8
K1_KV = 131072
K1_CS = 147456
K1_KC = K1_CS + 1024
K1_KP = K1_KC + 1024
K1_PS = K1_KP + 4096
K1_EP = K1_PS + 1024
K1_LDS = K1_EP + 64
QSC = 'sc1' if '--qsc1' in sys.argv else '' if '--qplain' in sys.argv else 'sc0 sc1'
CODE_SPAN = 22000
def rowstat(a, s, m, r):
    a(f"""
    v_add_f32 v{m}, v{s}, v{s+2}
    v_add_f32 v{r}, v{s+1}, v{s+3}
    v_mul_f32 v{m}, {hex(f2u(-1.0/512))}, v{m}
    v_mul_f32 v{r}, {hex(f2u(1.0/512))}, v{r}
    v_fma_f32 v{r}, -v{m}, v{m}, v{r}
    v_max_f32 v{r}, 0, v{r}
    v_add_f32 v{r}, {hex(f2u(EPS))}, v{r}
    v_rsq_f32 v{r}, v{r}
    """)
def split_ab(a, src, dst, kind):
    a(f"v_and_b32 v11, 0xffff0000, v{src}\nv_sub_f32 v12, v{src}, v11")
    if kind == "m": a(f"v_cvt_pk_bf16_f32 v{dst}, v11, v12\nv_cvt_pk_bf16_f32 v{dst+1}, v11, 0")
    else: a(f"v_cvt_pk_bf16_f32 v{dst}, v11, v11\nv_cvt_pk_bf16_f32 v{dst+1}, v12, 0")
def k1(a):
    X, WQ, WKV, WO, WS = 16, 20, 24, 32, 36
    sW, sTG, sCG = 40, 41, 42
    DBG = 28
    ONES = 69
    VL = 13
    head(a, KNAME)
    a(f"""
    s_cmp_ge_u32 s2, 256
    s_cbranch_scc1 L2_end
    @S0
    @T0
    s_load_dwordx8 s[4:11], s[0:1], 0
    s_load_dwordx2 s[12:13], s[0:1], 32
    s_load_dwordx2 s[14:15], s[0:1], 96
    s_load_dwordx2 s[64:65], s[0:1], 88
    v_lshrrev_b32 v1, 6, v0
    v_and_b32 v2, 63, v0
    v_readfirstlane_b32 s{sW}, v1
    s_and_b32 s43, s2, 7
    s_lshr_b32 s44, s2, 3
    s_and_b32 s45, s44, 3
    s_lshl_b32 s{sTG}, s43, 2
    s_add_u32 s{sTG}, s{sTG}, s45
    s_lshr_b32 s{sCG}, s44, 2
    v_and_b32 v3, 15, v2
    v_lshrrev_b32 v4, 4, v2
    v_lshlrev_b32 v{VL}, 4, v2
    s_and_b32 s46, s{sW}, 3
    s_lshl_b32 s50, s46, 12
    s_and_b32 s58, s{sCG}, 3
    s_cmp_lt_u32 s{sW}, 4
    s_cbranch_scc1 L1_gemm
    """)
    VX, VW, WT, CS, WR, XR = 8, 12, 24, 70, 48, 32
    pass
    for i in range(4):
        a(f"v_add_u32 v7, {4*i}, v4\nv_xor_b32 v{VX+i}, v7, v3\nv_lshlrev_b32 v{VX+i}, 4, v{VX+i}\nv_lshl_add_u32 v{VX+i}, v7, 10, v{VX+i}")
    a(f"""
    v_lshrrev_b32 v7, 3, v2
    v_and_b32 v{VW}, 1, v4
    v_lshlrev_b32 v{VW}, 2, v{VW}
    v_and_b32 v14, 7, v2
    v_xor_b32 v{VW}, v{VW}, v14
    v_lshlrev_b32 v{VW}, 4, v{VW}
    v_lshl_add_u32 v{VW}, v7, 10, v{VW}
    s_lshl_b32 s48, s{sTG}, 16
    s_lshl_b32 s43, s46, 14
    s_add_u32 s48, s48, s43
    s_lshl_b32 s49, s46, 15
    s_lshl_b32 s43, s{sCG}, 7
    s_add_u32 s49, s49, s43
    s_waitcnt lgkmcnt(0)
    """)
    srd(a, X, 4, 2 << 20)
    def issx(c):
        a(f"s_add_u32 s51, s48, {c*256}")
        for i in range(4):
            a(f"s_add_u32 m0, s50, {c*16384 + i*1024}\ns_nop 0\nbuffer_load_dwordx4 v{VX+i}, s[{X}:{X+3}], s51 offen lds")
    def issw(c):
        for i in range(4):
            a(f"s_add_u32 m0, s50, {65536 + c*16384 + i*1024}\ns_add_u32 s52, s49, {(128*c + 8*i) * 1024}\nbuffer_load_dwordx4 v{VW}, s[{WQ}:{WQ+3}], s52 offen lds")
    def isskv(c):
        a(f"s_add_u32 m0, s61, {K1_KV + c*4096}\ns_add_u32 s52, s61, {c*4096}\nbuffer_load_dwordx4 v{VL}, s[{WKV}:{WKV+3}], s52 offen lds")
    issx(0)
    a(f"s_cmp_ge_u32 s{sCG}, 4\ns_cselect_b32 s8, s10, s8\ns_cselect_b32 s9, s11, s9\ns_lshl_b32 s61, s46, 10")
    srd(a, WKV, 8, 16 << 10)
    isskv(0); issx(1); isskv(1)
    srd(a, WQ, 6, 512 << 10)
    a(f"""
    v_mov_b32 v{ONES}, 0x3f803f80
    v_add_u32 v30, {K1_KC}, v{VL}
    s_lshl_b32 s43, s58, 8
    s_add_u32 s43, s43, {K1_PS}
    v_lshl_add_u32 v31, v3, 4, s43
    s_lshl_b32 s56, s{sTG}, 1
    s_lshr_b32 s43, s58, 1
    s_add_u32 s56, s56, s43
    s_mul_i32 s56, s56, {TILE}
    s_add_u32 s56, s56, {WS_KV}
    s_and_b32 s57, s58, 1
    s_lshl_b32 s43, s57, 8
    s_mul_i32 s44, s57, 544
    s_add_u32 s44, s44, 1024
    s_cmp_ge_u32 s{sCG}, 4
    s_cselect_b32 s43, s44, s43
    s_cselect_b64 s[62:63], -1, 0
    s_add_u32 s56, s56, s43
    v_and_b32 v14, 1, v4
    v_lshrrev_b32 v15, 1, v4
    v_lshlrev_b32 v26, 9, v14
    v_lshl_add_u32 v26, v15, 3, v26
    v_lshlrev_b32 v27, 8, v15
    v_lshl_add_u32 v27, v14, 3, v27
    v_cndmask_b32 v26, v26, v27, s[62:63]
    v_lshl_add_u32 v26, v3, 4, v26
    v_lshlrev_b32 v27, 4, v4
    v_lshlrev_b32 v28, 2, v3
    v_cndmask_b32 v27, v28, v27, s[62:63]
    v_cndmask_b32 v28, 0, 4, s[62:63]
    v_mov_b32 v29, 0x7fff0000
    v_mov_b32 v74, 0
    v_mov_b32 v75, 0
    v_mov_b32 v78, 0
    v_mov_b32 v79, 0
    """)
    srd(a, WS, 14, WS_SIZE)
    pass
    size = [5, 5, 5, 5, 4, 4, 4, 4]
    for g in range(5):
        if g + 2 < 4: issx(g + 2); isskv(g + 2)
        else: issw(g - 2)
        a(f"s_waitcnt vmcnt({sum(size[g+1:g+3])})\ns_barrier")
    issw(3)
    a(f"""
    v_mov_b32 v7, {K1_EP}
    ds_read_b32 v92, v7
    s_cmp_eq_u32 s46, 0
    s_cbranch_scc1 L1_fin
    s_waitcnt vmcnt(8)
    s_barrier
    s_waitcnt vmcnt(4)
    s_barrier
    s_waitcnt vmcnt(0) lgkmcnt(0)
    s_barrier
    v_readfirstlane_b32 s{sEP}, v92
    s_branch L2_start
    L1_fin:
    ds_read_b128 v[80:83], v31
    ds_read_b128 v[84:87], v30
    ds_read_b128 {vr(XR,4)}, v30 offset:1024
    ds_read_b128 {vr(XR+4,4)}, v30 offset:2048
    ds_read_b128 {vr(XR+8,4)}, v30 offset:3072
    ds_read_b128 {vr(XR+12,4)}, v30 offset:4096
    s_waitcnt lgkmcnt(4)
    """)
    rowstat(a, 80, 8, 9)
    a(f"""
    v_add_f32 v84, v84, v85
    v_add_f32 v86, v86, v87
    ds_bpermute_b32 v88, v27, v9
    v_add_u32 v27, v27, v28
    ds_bpermute_b32 v89, v27, v9
    v_add_u32 v27, v27, v28
    ds_bpermute_b32 v90, v27, v9
    v_add_u32 v27, v27, v28
    ds_bpermute_b32 v91, v27, v9
    v_add_f32 v84, v84, v86
    v_cndmask_b32 v85, v84, v8, s[62:63]
    v_cndmask_b32 v86, v8, v84, s[62:63]
    """)
    split_ab(a, 85, 72, "c"); split_ab(a, 86, 76, "m")
    a("s_waitcnt lgkmcnt(4)")
    for r in range(4):
        a(f"v_add_f32 v{XR+r}, v{XR+r}, v{XR+4+r}\nv_add_f32 v{XR+8+r}, v{XR+8+r}, v{XR+12+r}")
    for r in range(4): a(f"v_add_f32 v{XR+r}, v{XR+r}, v{XR+8+r}")
    a(f"""
    v_cmp_gt_u32 vcc, 4, v2
    v_lshlrev_b32 v12, 2, v2
    {MF16} {vr(XR,4)}, v[72:75], v[76:79], {vr(XR,4)}
    v_cndmask_b32 v14, 0, v{ONES}, vcc
    s_and_b64 s[62:63], s[62:63], 0xff
    s_waitcnt lgkmcnt(0)
    s_nop 4
    """)
    for r in range(4): a(f"v_mul_f32 v{XR+r}, v{88+r}, v{XR+r}")
    a(f"""
    v_cvt_pk_bf16_f32 v{XR}, v{XR}, v{XR+1}
    v_cvt_pk_bf16_f32 v{XR+1}, v{XR+2}, v{XR+3}
    buffer_store_dwordx2 {vr(XR,2)}, v26, s[{WS}:{WS+3}], s56 offen sc0 sc1
    v_cndmask_b32 v12, v29, v12, s[62:63]
    buffer_store_dword v14, v12, s[{WS}:{WS+3}], s56 offen offset:512 sc0 sc1
    v_readfirstlane_b32 s{sEP}, v92
    s_lshl_b32 s43, s2, {KSH}
    s_add_u32 s43, s43, {WS_FLG}
    v_mov_b32 v7, 0
    s_waitcnt vmcnt(10)
    s_barrier
    s_waitcnt vmcnt(6)
    s_barrier
    s_waitcnt vmcnt(0)
    s_mov_b64 exec, 1
    buffer_store_dword v92, v7, s[{WS}:{WS+3}], s43 offen sc0 sc1
    s_mov_b64 exec, -1
    @S1
    s_barrier
    s_branch L2_start
    """)
    D1 = 16
    XF, WF = 120, 32
    XA, WA, WB, WOD = 72, 68, 70, 80
    KX, KW = 92, 93
    SX, SXX, KC, KD = 14, 15, 71, 96
    KF = 104
    a(f"""
    L1_gemm:
    v_and_b32 v5, 31, v2
    v_lshrrev_b32 v6, 5, v2
    s_and_b32 s53, s{sW}, 1
    s_lshr_b32 s54, s{sW}, 1
    s_lshl_b32 s59, s2, 1
    s_add_u32 s59, s59, s53
    s_lshr_b32 s43, s59, 6
    s_lshr_b32 s44, s59, 2
    s_and_b32 s44, s44, 15
    s_and_b32 s45, s59, 3
    s_lshl_b32 s44, s44, 15
    s_lshl_b32 s43, s43, 7
    s_lshl_b32 s45, s45, 3
    s_add_u32 s47, s44, s43
    s_add_u32 s47, s47, s45
    v_lshrrev_b32 v7, 2, v3
    v_lshlrev_b32 v7, 5, v7
    v_and_b32 v8, 3, v3
    v_lshl_add_u32 v7, v8, 1, v7
    v_lshl_add_u32 v7, v4, 13, v7
    v_add_u32 v8, 4096, v7
    s_waitcnt lgkmcnt(0)
    """)
    srd(a, WO, 12, 512 << 10); srd(a, WS, 14, WS_SIZE); srd(a, DBG, 64, 256)
    a(f"s_cmp_ge_u32 s{sW}, 2\ns_cbranch_scc1 L1_nowo")
    for j in range(8):
        a(f"buffer_load_ushort v{WOD + j}, v{7 + j//4}, s[{WO}:{WO+3}], s47 offen offset:{(j & 3) * 1024}")
    a(f"""
    s_branch L1_noz
    L1_nowo:
    s_cmp_eq_u32 s{sW}, 2
    s_cbranch_scc1 L1_ini
    s_cmp_lg_u32 s2, 0
    s_cbranch_scc1 L1_noz
    s_memrealtime s[44:45]
    v_mov_b32 v9, 0
    s_waitcnt lgkmcnt(0)
    s_or_b32 s44, s44, 1
    v_mov_b32 v{WOD}, s44
    s_mov_b64 exec, 1
    buffer_store_dword v{WOD}, v9, s[{DBG}:{DBG+3}], 0 offen sc0 sc1
    s_mov_b64 exec, -1
    s_branch L1_noz
    L1_ini:
    s_cmp_lt_u32 s2, 172
    s_cselect_b32 s44, -1, 0
    v_mov_b32 v{WOD}, s44
    v_mov_b32 v{WOD+1}, 0
    v_lshlrev_b32 v9, 2, v2
    s_lshl_b32 s43, s2, {ASH}
    s_add_u32 s43, s43, {WS_ACT}
    s_lshl_b32 s44, s2, {KSH}
    s_add_u32 s44, s44, {WS_KEY}
    s_mov_b64 exec, 0xff
    buffer_store_dword v{WOD}, v9, s[{WS}:{WS+3}], s43 offen sc0 sc1
    s_mov_b64 exec, 3
    buffer_store_dword v{WOD+1}, v9, s[{WS}:{WS+3}], s44 offen sc0 sc1
    s_mov_b64 exec, -1
    L1_noz:
    """)
    if "--cpf" in sys.argv:
        a(f"""
        s_getpc_b64 s[44:45]
        s_and_b32 s44, s44, 0xffffff00
        s_lshr_b32 s43, s2, 3
        s_lshl_b32 s43, s43, 2
        s_add_u32 s43, s43, s{sW}
        s_lshl_b32 s43, s43, 8
        v_lshl_add_u32 v9, v2, 2, s43
        v_min_u32 v9, {CODE_SPAN}, v9
        global_load_dword v252, v9, s[44:45]
        """)
    a(f"""
    s_lshl_b32 s43, s54, 1
    v_xor_b32 v12, s43, v3
    s_lshl_b32 s43, s53, 13
    v_lshlrev_b32 v9, 8, v5
    v_add_u32 v9, s43, v9
    """)
    for j in range(8):
        a(f"v_add_u32 v10, {2*j}, v6\nv_xor_b32 v10, v10, v12\nv_lshl_add_u32 v{XA+j}, v10, 4, v9")
    a(f"""
    v_lshrrev_b32 v9, 2, v3
    v_lshl_add_u32 v10, v6, 3, v9
    v_lshlrev_b32 v10, 7, v10
    v_lshrrev_b32 v11, 1, v9
    v_xor_b32 v11, s54, v11
    v_lshl_add_u32 v10, v11, 6, v10
    v_and_b32 v11, 1, v4
    v_lshl_add_u32 v10, v11, 5, v10
    v_and_b32 v11, 3, v3
    v_lshl_add_u32 v10, v11, 3, v10
    s_lshl_b32 s43, s54, 11
    s_add_u32 s44, s43, 0x10000
    s_sub_u32 s43, {0x10000 + 2048}, s43
    v_add_u32 v{WA}, s44, v10
    v_add_u32 v{WB}, s43, v10
    v_lshl_add_u32 v{KW}, v4, 3, v9
    v_lshlrev_b32 v{KW}, 5, v{KW}
    v_lshl_add_u32 v{KW}, v11, 3, v{KW}
    s_lshl_b32 s43, s46, 10
    s_add_u32 s43, s43, {K1_KV}
    v_add_u32 v{KW}, s43, v{KW}
    s_lshl_b32 s43, s46, 2
    v_add_u32 v{KX}, s43, v4
    v_xor_b32 v{KX}, v{KX}, v3
    v_lshlrev_b32 v{KX}, 4, v{KX}
    v_lshl_add_u32 v{KX}, v3, 8, v{KX}
    s_lshl_b32 s43, s58, 12
    v_add_u32 v{KX}, s43, v{KX}
    v_lshrrev_b32 v64, 3, v5
    v_lshlrev_b32 v64, 13, v64
    v_and_b32 v11, 7, v5
    v_lshl_add_u32 v64, v11, 4, v64
    v_lshl_add_u32 v64, v6, 9, v64
    s_lshl_b32 s60, s{sTG}, 16
    s_lshl_b32 s44, s53, 15
    s_add_u32 s60, s60, s44
    s_lshl_b32 s44, s{sCG}, 10
    s_add_u32 s60, s60, s44
    s_lshl_b32 s44, s54, 8
    s_add_u32 s60, s60, s44
    s_add_u32 s60, s60, {WS_Q}
    s_lshl_b32 s43, s53, 9
    s_add_u32 s43, s43, {K1_PS}
    v_lshl_add_u32 v67, v5, 4, s43
    s_lshl_b32 s43, s54, 3
    v_lshl_add_u32 v65, v6, 2, v67
    v_add_u32 v65, s43, v65
    s_lshl_b32 s43, s46, 2
    s_add_u32 s43, s43, {K1_KC}
    v_add_u32 v94, s43, v{VL}
    s_lshl_b32 s43, s46, 10
    s_add_u32 s43, s43, {K1_KP}
    v_add_u32 v95, s43, v{VL}
    s_lshl_b32 s59, s59, 10
    s_add_u32 s59, s59, {WS_WO}
    s_cmp_ge_u32 s{sW}, 2
    s_cselect_b32 s59, {WS_SIZE}, s59
    s_cmp_ge_u32 s{sCG}, 4
    s_cselect_b64 s[62:63], -1, 0
    v_mov_b32 v{ONES}, 0x3f803f80
    v_mov_b32 v{SX}, 0
    v_mov_b32 v{SXX}, 0
    v_mov_b32 v{KC}, 0
    v_mov_b32 v90, 0
    v_mov_b32 v91, 0
    v_mov_b32 v250, 0
    v_mov_b32 v251, 0
    """)
    def xreads(c):
        kx, kw = KF + 8*(c & 1), KF + 8*(c & 1) + 4
        for u in (0, 2, 4, 6): a(f"ds_read_b128 {vr(XF+32*c+4*u,4)}, v{XA+u} offset:{c*16384}")
        a(f"ds_read_b128 {vr(kx,4)}, v{KX} offset:{c*16384}")
        a(f"ds_read_b64_tr_b16 {vr(kw,2)}, v{KW} offset:{c*4096}\nds_read_b64_tr_b16 {vr(kw+2,2)}, v{KW} offset:{c*4096+128}")
        for u in (1, 3, 5, 7): a(f"ds_read_b128 {vr(XF+32*c+4*u,4)}, v{XA+u} offset:{c*16384}")
    def wread(ks):
        ar = WB if ks & 1 else WA
        off = (ks & ~1) * 2048
        a(f"ds_read_b64_tr_b16 {vr(WF+4*(ks&7),2)}, v{ar} offset:{off}\nds_read_b64_tr_b16 {vr(WF+4*(ks&7)+2,2)}, v{ar} offset:{off + 512}")
    def work(c):
        kx, kw = KF + 8*(c & 1), KF + 8*(c & 1) + 4
        for u in (0, 2, 4, 6):
            a(f"s_waitcnt lgkmcnt({10 - u//2})")
            for q in range(4): a(f"v_dot2c_f32_bf16 v{SX}, v{XF+32*c+4*u+q}, v{ONES}\nv_dot2c_f32_bf16 v{SXX}, v{XF+32*c+4*u+q}, v{XF+32*c+4*u+q}")
        a("s_waitcnt lgkmcnt(4)")
        for q in range(4): a(f"v_dot2c_f32_bf16 v{KC}, v{kw+q}, v{ONES}")
        a(f"{MF16} {vr(KD,4)}, {vr(kw,4)}, {vr(kx,4)}, {'0' if c == 0 else vr(KD,4)}")
        a(f"{MF16} {vr(KD+4,4)}, {vr(kx,4)}, {vr(kw,4)}, {'0' if c == 0 else vr(KD+4,4)}")
    for c in range(4):
        a("s_barrier")
        xreads(c)
        work(c)
        if c == 1:
            a(f"""
            s_waitcnt vmcnt(0)
            v_lshl_or_b32 v{WOD}, v{WOD+1}, 16, v{WOD}
            v_lshl_or_b32 v{WOD+1}, v{WOD+3}, 16, v{WOD+2}
            v_lshl_or_b32 v{WOD+2}, v{WOD+5}, 16, v{WOD+4}
            v_lshl_or_b32 v{WOD+3}, v{WOD+7}, 16, v{WOD+6}
            buffer_store_dwordx4 {vr(WOD,4)}, v{VL}, s[{WS}:{WS+3}], s59 offen sc0 sc1
            buffer_load_dword v66, v90, s[{DBG}:{DBG+3}], 0 offen sc1
            """)
    a(f"""
    v_permlane32_swap_b32 v{SX}, v{SXX}
    s_waitcnt vmcnt(0)
    ds_write_b32 v94, v{KC}
    v_add_f32 v{SX}, v{SX}, v{SXX}
    v_readfirstlane_b32 s{sEP}, v66
    ds_write_b32 v65, v{SX}
    v_mov_b32 v7, {K1_EP}
    s_cmp_eq_u32 s{sEP}, 0
    s_cbranch_scc1 L1_tag
    L1_tagok:
    """)
    for r in range(4): a(f"v_cndmask_b32 v{KD+r}, v{KD+r}, v{KD+4+r}, s[62:63]")
    a(f"ds_write_b128 v95, {vr(KD,4)}\nds_write_b32 v7, v66\nds_write_b32 v7, v90 offset:8\nv_mov_b32 v{SXX}, 0\ns_waitcnt lgkmcnt(0)\ns_barrier")
    for ks in range(7): wread(ks)
    a("s_waitcnt lgkmcnt(12)")
    wread(7)
    for g in range(8):
        a(f"s_waitcnt lgkmcnt({8 if g < 7 else 0})")
        for ks in range(4*g, 4*g + 4):
            for q in range(4): a(f"v_dot2c_f32_bf16 v{SXX}, v{WF+4*(ks&7)+q}, v{ONES}")
        if g % 2 == 0 and g < 6: a("s_barrier")
        if g == 2: a("ds_read_b128 v[84:87], v67")
        for ks in range(4*g, 4*g + 4):
            a(f"{MF32} {vr(D1,16)}, {vr(WF+4*(ks&7),4)}, {vr(XF+4*ks,4)}, {'0' if ks == 0 else vr(D1,16)}")
            if ks + 8 < 32: wread(ks + 8)
            if ks == 16: rowstat(a, 84, 8, 9)
            if ks == 17: split_ab(a, 8, 88, "m"); a(f"v_mul_f32 v10, {hex(f2u(QSCALE))}, v9")
            if ks == 29: a("s_nop 0"); split_ab(a, SXX, 248, "c")
    a(f"""
    {MF32} {vr(D1,16)}, v[248:251], v[88:91], {vr(D1,16)}
    v_mov_b32 v35, v66
    v_mov_b32 v39, v66
    v_mov_b32 v43, v66
    v_lshrrev_b32 v44, 3, v5
    v_lshlrev_b32 v44, 12, v44
    v_and_b32 v11, 7, v5
    v_lshl_add_u32 v44, v11, 4, v44
    v_lshl_add_u32 v44, v6, 8, v44
    s_sub_u32 s61, s60, {WS_Q}
    s_lshr_b32 s61, s61, 1
    s_add_u32 s61, s61, {WS_QB}
    s_nop 0
    """)
    dst = [32, 33, 34, 36, 40, 41, 42, 37]
    for r in range(8):
        a(f"v_mul_f32 v{D1+2*r}, v10, v{D1+2*r}\nv_mul_f32 v{D1+2*r+1}, v10, v{D1+2*r+1}\nv_cvt_pk_bf16_f32 v{dst[r]}, v{D1+2*r}, v{D1+2*r+1}")
        if r == 2: a(f"buffer_store_dwordx4 v[32:35], v64, s[{WS}:{WS+3}], s60 offen {QSC}")
        if r == 6: a(f"buffer_store_dwordx4 v[40:43], v64, s[{WS}:{WS+3}], s60 offen offset:128 {QSC}")
    a(f"""
    buffer_store_dwordx4 v[36:39], v44, s[{WS}:{WS+3}], s61 offen {QSC}
    @S1
    """)
def k1_cold(a):
    DBG = 28
    a(f"""
    L1_tag:
    s_mov_b32 s43, 0
    L1_tagl:
    buffer_load_dword v66, v90, s[{DBG}:{DBG+3}], 0 offen sc1
    s_add_u32 s43, s43, 1
    s_waitcnt vmcnt(0)
    v_readfirstlane_b32 s{sEP}, v66
    s_cmp_gt_u32 s43, 0x40000
    s_cbranch_scc1 L1_tagok
    s_cmp_eq_u32 s{sEP}, 0
    s_cbranch_scc1 L1_tagl
    s_branch L1_tagok
    """)
KV_BYTES = 64 * TILE
OB = KV_BYTES
RED = OB + 8 * 1040
PART = RED + 1024
CNT = PART + 8192
K2_LDS = CNT + 64
FW = 0
FR = 32768
SMF = "v_smfmac_f32_32x32x32_bf16"
LOG2E = 1.4426950408889634
OSC = 'sc0 sc1' if '--osc' in sys.argv else 'nt' if '--ont' in sys.argv else ''
SLEEP = 's_nop 0'
for _x in sys.argv:
    if _x.startswith('--sleep='): SLEEP = 's_sleep ' + _x.split('=')[1]
def k2(a):
    X, WR_, OUT, WS, FA, FB = 16, 20, 24, 28, 32, 36
    sW, sN, sG = 40, 43, 41
    Q, C, KF, VF, S, O = 8, 12, 28, 36, 52, 84
    IDX, KA, VA, LN16, XO, WRO, M, VA0 = 100, 101, 102, 103, 104, 105, 106, 107
    WO = 108; XRES, WRV, FWR = 236, 240, 244
    BAR_TILE = 10
    X_ = [x for x in sys.argv if x.startswith("--x")]
    a(f"""
    L2_start:
    s_load_dwordx8 s[52:59], s[0:1], 48
    s_load_dwordx2 s[8:9], s[0:1], 80
    v_lshlrev_b32 v{LN16}, 4, v2
    v_and_b32 v5, 31, v2
    v_lshrrev_b32 v6, 5, v2
    s_lshl_b32 s{sG}, s41, 3
    s_add_u32 s{sG}, s{sG}, s42
    s_lshl_b32 s44, s{sG}, 13
    s_lshl_b32 s45, s{sW}, 10
    s_add_u32 s46, s44, s45
    s_add_u32 s47, s45, {WS_KV}
    s_lshl_b32 s50, s{sW}, 16
    s_add_u32 s51, s50, {WS_WO}
    s_and_b32 s48, s{sW}, 4
    s_lshl_b32 s48, s48, 13
    s_add_u32 s50, s51, s48
    """)
    srd(a, WS, 14, WS_SIZE)
    def dma(i):
        return [f"s_add_u32 m0, s45, {i*8192}", f"s_add_u32 s48, s47, {i*8192}", f"buffer_load_dwordx4 v{LN16}, s[{WS}:{WS+3}], s48 offen sc1 lds"]
    a("s_waitcnt lgkmcnt(0)")
    srd(a, X, 4, 2 << 20); srd(a, WR_, 52, 1024); srd(a, OUT, 8, 2 << 20)
    a(f"""
    v_lshlrev_b32 v3, 8, v6
    v_lshl_add_u32 v3, v5, 4, v3
    v_and_b32 v4, 27, v5
    v_cmp_eq_u32 vcc, 16, v4
    v_mov_b32 v4, 528
    v_mov_b32 v7, 512
    v_cndmask_b32 v4, v4, v7, vcc
    v_cmp_gt_u32 vcc, 16, v5
    v_mov_b32 v{KA}, v{LN16}
    v_mov_b32 v{IDX}, 0xdddddddd
    v_cndmask_b32 v3, v4, v3, vcc
    v_add_u32 v{VA0}, 1024, v3
    v_mov_b32 v{VA}, v{VA0}
    v_lshrrev_b32 v3, 3, v2
    v_lshlrev_b32 v3, 4, v3
    s_lshl_b32 s49, s{sW}, 7
    v_add_u32 v{WRO}, s49, v3
    v_and_b32 v4, 7, v2
    v_lshl_add_u32 v{XO}, v4, 10, v{WRO}
    s_and_b32 s48, s2, 7
    s_lshr_b32 s49, s2, 3
    s_mul_i32 s64, s48, 22
    s_add_u32 s64, s64, s49
    s_lshl_b32 s48, s48, 3
    s_add_u32 s48, s48, s49
    s_sub_u32 s61, s48, 22
    s_and_b32 s61, s61, 63
    s_lshl_b32 s61, s61, 4
    s_min_u32 s48, s64, 171
    s_lshl_b32 s48, s48, 4
    s_mul_i32 s49, s{sW}, {64*2752}
    s_add_u32 s48, s48, s49
    s_lshl_b32 s49, s{sW}, 16
    s_add_u32 s49, s49, s61
    s_add_u32 s66, s49, {512*1024}
    s_add_u32 s67, s49, {1024*1024}
    s_movk_i32 s60, 2752
    s_cmp_ge_u32 s2, 176
    s_cselect_b32 s65, s49, s48
    s_cselect_b32 s66, s66, s48
    s_cselect_b32 s67, s67, 0x200000
    s_cselect_b32 s60, 0x400, s60
    s_cselect_b32 s54, s58, s54
    s_cselect_b32 s55, s59, s55
    s_cselect_b32 s56, s58, s56
    s_cselect_b32 s57, s59, s57
    v_mul_u32_u24 v1, s60, v2
    """)
    srd(a, FA, 54, 512*2752); srd(a, FB, 56, 512*2752)
    a(f"""
    s_mov_b32 s60, {16*8192}
    s_cmp_lt_u32 s{sW}, 4
    s_cselect_b32 s60, s60, {WS_SIZE}
    v_mov_b32 v3, {CNT}
    """)
    for r in range(16): a(f"v_mov_b32 v{O+r}, 0")
    a(f"""
    ds_write_b32 v3, v{O}
    s_lshr_b32 s12, s46, 1
    s_add_u32 s12, s12, {WS_QB}
    s_add_u32 s46, s46, {WS_Q}
    v_lshrrev_b32 v7, 4, v2
    v_lshlrev_b32 v7, 7, v7
    v_and_b32 v4, 7, v2
    v_lshl_add_u32 v7, v4, 4, v7
    s_cmp_lt_u32 s{sW}, 4
    s_cbranch_scc1 L2_noflag
    s_sub_u32 s13, s{sW}, 4
    s_lshl_b32 s48, s13, {KSH + 6}
    s_add_u32 s48, s48, {WS_FLG}
    v_lshlrev_b32 v3, {KSH}, v2
    s_mov_b32 s49, 0
    L2_fpoll:
    buffer_load_dword v4, v3, s[{WS}:{WS+3}], s48 offen sc1
    s_add_u32 s49, s49, 1
    s_waitcnt vmcnt(0)
    v_cmp_ne_u32 vcc, s{sEP}, v4
    s_cmp_gt_u32 s49, 0x40000
    s_cbranch_scc1 L2_fgot
    s_and_b64 exec, exec, vcc
    s_cbranch_scc1 L2_fpoll
    L2_fgot:
    s_mov_b64 exec, -1
    @S5
    """)
    if "--varA" not in sys.argv:
        a(f"""
    s_mov_b64 exec, 1
    v_mov_b32 v3, {K1_EP + 8}
    v_mov_b32 v4, 1
    ds_add_u32 v3, v4
    L2_fspin:
    ds_read_b32 v4, v3
    s_waitcnt lgkmcnt(0)
    v_readfirstlane_b32 s49, v4
    s_cmp_lt_u32 s49, 4
    s_cbranch_scc1 L2_fspin
    s_mov_b64 exec, -1
    @S2
    s_lshl_b32 s13, s13, 10
    s_add_u32 s62, s13, {WS_KV}
    """)
        for i in range(6):
            a(f"s_add_u32 m0, s13, {i*4096}\ns_add_u32 s48, s62, {i*4096}\nbuffer_load_dwordx4 v{LN16}, s[{WS}:{WS+3}], s48 offen sc1 lds")
        a(f"""
    """)
    a(f"""
    L2_noflag:
    @S6
    s_barrier
    """)
    if '--varA' in sys.argv:
        for i in range(3): a('\n'.join(dma(i)))
    a(f"""
    s_mov_b32 s49, 0
    L2_qpoll:
    buffer_load_dwordx4 {vr(Q,4)}, v{LN16}, s[{WS}:{WS+3}], s46 offen sc1
    buffer_load_dwordx4 {vr(S,4)}, v7, s[{WS}:{WS+3}], s12 offen sc1
    s_add_u32 s49, s49, 1
    s_waitcnt vmcnt(0)
    v_cmp_ne_u32 vcc, s{sEP}, v{Q+3}
    v_cmp_ne_u32 s[62:63], s{sEP}, v{S+3}
    s_cmp_gt_u32 s49, 0x40000
    s_cbranch_scc1 L2_qgot
    s_or_b64 exec, vcc, s[62:63]
    s_cbranch_scc1 L2_qpoll
    L2_qgot:
    s_mov_b64 exec, -1
    s_mov_b32 s62, 0xff00ff00
    s_mov_b32 s63, s62
    v_cndmask_b32 v{Q+3}, v{S}, v{S+1}, s[62:63]
    s_waitcnt lgkmcnt(0)
    s_barrier
    @S3
    ds_read_b128 {vr(KF,4)}, v{KA}
    ds_read_b128 {vr(KF+4,4)}, v{KA} offset:{TILE}
    ds_read_b128 {vr(VF,4)}, v{VA}
    ds_read_b128 {vr(VF+4,4)}, v{VA} offset:544
    s_waitcnt lgkmcnt(3)
    {MF32} {vr(S,16)}, {vr(KF,4)}, {vr(Q,4)}, 0
    s_waitcnt lgkmcnt(2)
    {MF32} {vr(S+16,16)}, {vr(KF+4,4)}, {vr(Q,4)}, 0
    s_nop 9
    v_max3_f32 v{M}, v{S}, v{S+1}, v{S+2}
    """)
    for r in range(3, 31, 2): a(f"v_max3_f32 v{M}, v{S+r}, v{S+r+1}, v{M}")
    a(f"""
    v_max_f32 v{M}, v{S+31}, v{M}
    v_mov_b32 v3, v{M}
    s_nop 1
    v_permlane32_swap_b32 v{M}, v3
    v_max_f32 v{M}, v{M}, v3
    v_sub_f32 v{C}, {hex(f2u(-SHIFT))}, v{M}
    """)
    for r in range(1, 16): a(f"v_mov_b32 v{C+r}, v{C}")
    a(f"""
    @S4
    @S13
    s_nop 1
    {MF32} {vr(S,16)}, {vr(KF,4)}, {vr(Q,4)}, {vr(C,16)}
    s_waitcnt lgkmcnt(0)
    s_nop 10
    """)
    base = 0
    nwo = 0
    NPT = 4 if '--npt4' in sys.argv else 2
    if '--noprio' not in sys.argv: a('s_setprio 1')
    for t in range(64):
        cur, nxt = t & 1, (t + 1) & 1
        Sc, Sn = S + 16*cur, S + 16*nxt
        e = [f"v_exp_f32 v{Sc+i}, v{Sc+i}" for i in range(16)]
        side = []
        if t < 6: side = dma(3 + 2*t) + dma(4 + 2*t)
        elif t == 6:
            d = dma(16); d[1] = "s_add_u32 s48, s47, s60"
            side = dma(15) + d
        elif t >= BAR_TILE and nwo < 32:
            for _ in range(NPT):
                f = nwo; nwo += 1
                if f and f % 4 == 0: side.append("s_add_u32 s50, s50, 4096")
                side.append(f"buffer_load_dwordx4 {vr(WO + 4*f, 4)}, v{LN16}, s[{WS}:{WS+3}], s50 offen offset:{(f & 3)*1024} sc1")
            if NPT == 2: side = side[:-1] + [None, None, side[-1]]
        elif t == BAR_TILE + 32 // NPT: side = [f"buffer_load_dwordx4 {vr(XRES,4)}, v{XO}, s[{X}:{X+3}], s44 offen", None, None, None, f"buffer_load_dwordx4 {vr(WRV,4)}, v{WRO}, s[{WR_}:{WR_+3}], 0 offen"]
        elif t in (BAR_TILE + 32 // NPT + 1, BAR_TILE + 32 // NPT + 3, BAR_TILE + 32 // NPT + 5):
            i = (t - (BAR_TILE + 32 // NPT + 1)) // 2
            sr = FA if i == 0 else FB
            side = [f"buffer_load_dwordx4 {vr(FWR+4*i,4)}, v1, s[{sr}:{sr+3}], s{65+i} offen"]
        if '--xnomem' in X_ and t >= BAR_TILE: side = []
        if t == BAR_TILE: a("s_waitcnt vmcnt(0)\ns_barrier")
        if (t + 2 - base) * TILE + TILE > 65535:
            a(f"v_add_u32 v{KA}, {(t - base)*TILE}, v{KA}\nv_add_u32 v{VA}, {(t - base)*TILE}, v{VA}")
            base = t
        after = {i: [] for i in range(16)}
        side = [x for x in side if x]
        grp, curg = [], []
        for x in side:
            curg.append(x)
            if x.startswith("buffer"): grp.append(curg); curg = []
        if t > 0: after[1].append(f"{SMF} {vr(O,16)}, {vr(VF+8*nxt+4,4)}, {vr(Sn+8,8)}, v{IDX}")
        if t < 63:
            after[1].append(f"ds_read_b128 {vr(VF+8*nxt,4)}, v{VA} offset:{(t+1-base)*TILE}")
            after[5].append(f"{MF32} {vr(Sn,16)}, {vr(KF+4*nxt,4)}, {vr(Q,4)}, {vr(C,16)}")
        if t < 62: after[5].append(f"ds_read_b128 {vr(KF+4*cur,4)}, v{KA} offset:{(t+2-base)*TILE}")
        after[11].append(f"{SMF} {vr(O,16)}, {vr(VF+8*cur,4)}, {vr(Sc,8)}, v{IDX}")
        after[11].append("s_waitcnt lgkmcnt(0)")
        if t < 63: after[11].append(f"ds_read_b128 {vr(VF+8*nxt+4,4)}, v{VA} offset:{(t+1-base)*TILE+544}")
        for g, slot in zip(grp, (5, 11, 1)): after[slot] += g
        assert len(grp) <= 3
        for i in range(16):
            a(e[i])
            for x in after[i]: a(x)
    a(f"""
    @S8
    @S14
    s_nop 1
    {SMF} {vr(O,16)}, {vr(VF+12,4)}, {vr(S+24,8)}, v{IDX}
    s_mov_b32 s48, {hex(f2u(2.0**110))}
    v_and_b32 v4, 7, v5
    v_mul_u32_u24 v4, 1040, v4
    v_lshrrev_b32 v7, 3, v5
    v_lshl_add_u32 v4, v7, 5, v4
    v_lshl_add_u32 v4, v6, 3, v4
    s_lshl_b32 s49, s{sW}, 7
    s_add_u32 s49, s49, {OB}
    v_add_u32 v4, s49, v4
    v_and_b32 v1, 7, v2
    v_mul_u32_u24 v0, 1040, v1
    v_lshrrev_b32 v7, 4, v2
    v_mul_f32 v3, 0, v{O}
    """)
    for r in range(1, 8): a(f"v_fma_f32 v3, v{O+r}, 0, v3")
    a(f"""
    v_add_f32 v3, v3, v{O+8}
    v_cmp_ngt_f32 vcc, s48, v3
    v_rcp_f32 v3, v{O+8}
    s_cmp_lg_u64 vcc, 0
    s_cbranch_scc1 L2_slow
    L2_epi:
    """)
    for r in range(8): a(f"v_mul_f32 v{O+r}, v3, v{O+r}")
    for r in range(4): a(f"v_cvt_pk_bf16_f32 v{O+r}, v{O+2*r}, v{O+2*r+1}")
    BA, PA = 101, 102
    a(f"""
    ds_write_b64 v4, {vr(O,2)}
    ds_write_b64 v4, {vr(O+2,2)} offset:16
    v_lshl_add_u32 v{BA}, v7, 4, v0
    v_add_u32 v{BA}, {OB}, v{BA}
    v_lshl_add_u32 v{PA}, v7, 3, v1
    v_lshlrev_b32 v{PA}, 6, v{PA}
    s_and_b32 s49, s{sW}, 3
    s_lshl_b32 s49, s49, 11
    s_add_u32 s49, s49, {PART}
    v_add_u32 v{PA}, s49, v{PA}
    s_waitcnt vmcnt(0)
    s_cmp_lt_u32 s{sW}, 4
    {'' if '--xnoold' in X_ else 's_cbranch_scc1 L2_old'}
    L2_join:
    @S7
    """)
    HF, T = 60, 68
    ACC = O
    BF = [Q, 28, 32, 36]
    a("v_mov_b32 v7, 0x3f803f80")
    for q in range(4): a(f"v_mov_b32 v{T+q}, 0")
    for j in range(4):
        a(f"v_lshlrev_b32 v{HF+2*j}, 16, v{XRES+j}\nv_and_b32 v{HF+2*j+1}, 0xffff0000, v{XRES+j}\nv_dot2c_f32_bf16 v{T+3}, v{WRV+j}, v7")
    a(f"""
    v_and_b32 v3, 8, v2
    v_cmp_ne_u32 vcc, 0, v3
    s_cmp_ge_u32 s{sW}, 4
    s_cselect_b64 s[62:63], -1, 0
    s_waitcnt lgkmcnt(0)
    s_barrier
    @S9
    s_mov_b64 exec, s[62:63]
    """)
    for i in range(4): a(f"ds_read_b128 {vr(ACC+4*i,4)}, v{PA} offset:{16*i}")
    a("s_mov_b64 exec, -1")
    for ks in range(8, 12): a(f"ds_read_b128 {vr(BF[ks&3],4)}, v{BA} offset:{ks*64}")
    a(f"v_add_u32 v0, s45, v{LN16}")
    for ks in range(8, 16):
        a(f"s_waitcnt lgkmcnt({min(3, 15 - ks)})")
        for i in range(4):
            a(f"{MF16} {vr(ACC+4*i,4)}, {vr(WO+16*(ks-8)+4*i,4)}, {vr(BF[ks&3],4)}, {vr(ACC+4*i,4)}")
        if ks < 12: a(f"ds_read_b128 {vr(BF[ks&3],4)}, v{BA} offset:{(ks+4)*64}")
    for i in range(3): a(f"ds_write_b128 v0, {vr(FWR+4*i,4)} offset:{FW + i*8192}")
    A8, HB = 40, 48
    a(f"""
    v_lshrrev_b32 v3, 4, v2
    v_lshlrev_b32 v3, 8, v3
    v_lshl_add_u32 v3, v1, 5, v3
    s_lshl_b32 s49, s{sW}, 2
    s_add_u32 s49, s49, {RED}
    v_add_u32 v3, s49, v3
    v_lshlrev_b32 v4, 5, v1
    v_add_u32 v4, {RED}, v4
    s_add_u32 s49, s44, {WS_H}
    """)
    for j in range(8): a(f"v_cndmask_b32 v{A8+j}, v{ACC+j}, v{ACC+8+j}, vcc")
    for j in range(8): a(f"v_add_f32 v{HF+j}, v{HF+j}, v{A8+j}")
    for j in range(4): a(f"v_cvt_pk_bf16_f32 v{HB+j}, v{HF+2*j}, v{HF+2*j+1}")
    a(f"buffer_store_dwordx4 {vr(HB,4)}, v{XO}, s[{WS}:{WS+3}], s49 offen sc0 sc1")
    for j in range(4):
        a(f"""
        v_dot2c_f32_bf16 v{T}, v{HB+j}, v7
        v_dot2c_f32_bf16 v{T+1}, v{HB+j}, v{HB+j}
        v_dot2c_f32_bf16 v{T+2}, v{HB+j}, v{WRV+j}
        """)
    a(f"""
    v_lshlrev_b32 v{HF}, 16, v{HB}
    v_and_b32 v{HF+1}, 0xffff0000, v{HB}
    v_permlane32_swap_b32 v{T}, v{T+1}
    v_permlane32_swap_b32 v{T+2}, v{T+3}
    v_add_f32 v{T}, v{T}, v{T+1}
    v_add_f32 v{T+2}, v{T+2}, v{T+3}
    v_lshlrev_b32 v{HF+2}, 16, v{HB+1}
    v_and_b32 v{HF+3}, 0xffff0000, v{HB+1}
    v_permlane16_swap_b32 v{T}, v{T+2}
    v_add_f32 v{T}, v{T}, v{T+2}
    v_lshlrev_b32 v{HF+4}, 16, v{HB+2}
    v_and_b32 v{HF+5}, 0xffff0000, v{HB+2}
    v_add_f32_dpp v{T}, v{T}, v{T} row_ror:8 row_mask:0xf bank_mask:0xf
    ds_write_b32 v3, v{T}
    v_lshlrev_b32 v{HF+6}, 16, v{HB+3}
    v_and_b32 v{HF+7}, 0xffff0000, v{HB+3}
    s_waitcnt lgkmcnt(0)
    s_barrier
    @S11
    """)
    R_ = 108
    for q in (0, 2, 1, 3):
        a(f"ds_read_b128 {vr(R_+8*q,4)}, v4 offset:{q*256}\nds_read_b128 {vr(R_+8*q+4,4)}, v4 offset:{q*256+16}")
    def sum8(b):
        a(f"""
        v_add_f32 v{b}, v{b}, v{b+1}
        v_add_f32 v{b+2}, v{b+2}, v{b+3}
        v_add_f32 v{b+4}, v{b+4}, v{b+5}
        v_add_f32 v{b+6}, v{b+6}, v{b+7}
        v_add_f32 v{b}, v{b}, v{b+2}
        v_add_f32 v{b+4}, v{b+4}, v{b+6}
        v_add_f32 v{b}, v{b}, v{b+4}
        """)
    s1, s3, s2, s4 = R_, R_+8, R_+16, R_+24
    ST = 76
    OV = 80
    a("s_waitcnt lgkmcnt(4)")
    sum8(s1); sum8(s2)
    a(f"""
    v_mul_f32 v{ST}, {hex(f2u(1.0/512))}, v{s1}
    v_mul_f32 v{s2}, {hex(f2u(1.0/512))}, v{s2}
    v_fma_f32 v{s2}, -v{ST}, v{ST}, v{s2}
    v_max_f32 v{s2}, 0, v{s2}
    v_add_f32 v{s2}, {hex(f2u(EPS))}, v{s2}
    v_rsq_f32 v{ST+1}, v{s2}
    s_cmp_lg_u32 s{sW}, 0
    s_cbranch_scc1 L2_nokey
    s_waitcnt lgkmcnt(0)
    """)
    sum8(s3); sum8(s4)
    AF, BFR, STT, D, D2 = 140, 12, 204, 208, 212
    breg = lambda q: 12 + 4*q if q < 7 else 216 + 4*(q - 7)
    a(f"""
    v_fma_f32 v{s3}, -v{ST}, v{s4}, v{s3}
    s_lshl_b32 s48, s{sG}, 3
    v_add_u32 v4, s48, v1
    v_mul_f32 v{ST+2}, v{ST+1}, v{s3}
    v_mov_b32 v{ST+3}, s{sEP}
    v_lshlrev_b32 v0, 4, v4
    s_mov_b32 s48, {WS_ST}
    s_mov_b64 exec, 0xff
    buffer_store_dwordx4 {vr(ST,4)}, v0, s[{WS}:{WS+3}], s48 offen sc0 sc1
    s_mov_b64 exec, -1
    v_ashrrev_i32 v3, 31, v{ST+2}
    v_or_b32 v3, 0x80000000, v3
    v_xor_b32 v3, v3, v{ST+2}
    v_and_b32 v3, 0xfffff800, v3
    v_sub_u32 v4, 2047, v4
    v_or_b32 v4, v3, v4
    s_lshl_b32 s48, s2, {KSH}
    s_add_u32 s48, s48, {WS_KEY}
    v_mov_b32_dpp v6, v4 quad_perm:[1,0,3,2] row_mask:0xf bank_mask:0xf
    v_mov_b32 v0, 0
    v_min_u32 v5, v4, v6
    v_max_u32 v4, v4, v6
    """)
    for dpp in ("quad_perm:[2,3,0,1]", "row_half_mirror"):
        a(f"""
        s_nop 0
        v_mov_b32_dpp v3, v5 {dpp} row_mask:0xf bank_mask:0xf
        v_mov_b32_dpp v6, v4 {dpp} row_mask:0xf bank_mask:0xf
        v_max_u32 v5, v5, v3
        v_med3_u32 v5, v4, v5, v6
        v_max_u32 v4, v4, v6
        """)
    a(f"""
    s_waitcnt vmcnt(1)
    s_barrier
    s_mov_b64 exec, 1
    buffer_store_dwordx2 v[4:5], v0, s[{WS}:{WS+3}], s48 offen sc0 sc1
    s_mov_b64 exec, -1
    @S5
    v_lshlrev_b32 v8, {KSH + 2}, v2
    s_mov_b32 s48, {WS_KEY}
    """)
    def kloads():
        for q in range(4): a(f"buffer_load_dwordx2 {vr(R_+2*q,2)}, v8, s[{WS}:{WS+3}], s48 offen offset:{q << KSH} sc1")
    kloads()
    def outval():
        a(f"v_add_f32 v3, 1.0, v{ST+1}\nv_mul_f32 v6, v{ST}, v{ST+1}")
        for j in range(8): a(f"v_fma_f32 v{A8+j}, v{HF+j}, v3, -v6")
        for j in range(4): a(f"v_cvt_pk_bf16_f32 v{OV+j}, v{A8+2*j}, v{A8+2*j+1}")
    a(f"""
    v_and_b32 v9, 15, v2
    v_lshrrev_b32 v11, 4, v2
    v_lshrrev_b32 v10, 2, v9
    v_lshl_add_u32 v10, v11, 7, v10
    v_lshlrev_b32 v10, 4, v10
    v_and_b32 v0, 1, v9
    v_lshl_add_u32 v10, v0, 3, v10
    v_and_b32 v3, 2, v9
    v_lshl_add_u32 v10, v3, 12, v10
    """)
    for q in range(7): a(f"ds_read_b64_tr_b16 {vr(AF+4*q,2)}, v10 offset:{FW + q*128}\nds_read_b64_tr_b16 {vr(AF+4*q+2,2)}, v10 offset:{FW + q*128 + 64}")
    outval()
    a("s_waitcnt lgkmcnt(0)")
    for q in range(7, 14): a(f"ds_read_b64_tr_b16 {vr(AF+4*q,2)}, v10 offset:{FW + q*128}\nds_read_b64_tr_b16 {vr(AF+4*q+2,2)}, v10 offset:{FW + q*128 + 64}")
    a(f"v_mov_b32 v252, v7\nv_mov_b32 v253, v7\nv_mov_b32 v254, v7\nv_mov_b32 v255, v7\ns_waitcnt lgkmcnt(4)")
    for q in range(14, 16): a(f"ds_read_b64_tr_b16 {vr(AF+4*q,2)}, v10 offset:{FW + q*128}\nds_read_b64_tr_b16 {vr(AF+4*q+2,2)}, v10 offset:{FW + q*128 + 64}")
    a(f"""
    v_cmp_eq_u32 s[10:11], 1, v0
    v_lshlrev_b32 v10, 8, v11
    s_mov_b32 s12, 0x00030003
    s_mov_b32 s13, s12
    s_cmp_ge_u32 s2, 176
    s_cselect_b64 s[12:13], 0, s[12:13]
    s_mov_b32 s49, 0
    s_mov_b32 s46, 0
    s_mov_b32 s47, 0
    s_mov_b32 s50, {WS_H}
    s_mov_b32 s51, {WS_ST}
    s_waitcnt lgkmcnt(0)
    """)
    for q in range(16): a(f"{MF16} {vr(D2,4)}, {vr(AF+4*q,4)}, v[252:255], {'0' if q == 0 else vr(D2,4)}")
    a(f"""
    L2_kpoll:
    s_waitcnt vmcnt(0)
    s_mov_b64 exec, -1
    v_min_u32 v0, v{R_}, v{R_+2}
    v_min3_u32 v0, v{R_+4}, v{R_+6}, v0
    v_cmp_eq_u32 s[62:63], 0, v0
    s_add_u32 s49, s49, 1
    s_cmp_gt_u32 s49, 0x40000
    s_cselect_b64 s[62:63], 0, s[62:63]
    v_max_u32 v4, v{R_}, v{R_+2}
    v_min_u32 v5, v{R_}, v{R_+2}
    v_max3_u32 v5, v5, v{R_+1}, v{R_+3}
    v_med3_u32 v5, v4, v5, v{R_+4}
    v_max_u32 v4, v4, v{R_+4}
    v_med3_u32 v5, v4, v5, v{R_+6}
    v_max_u32 v4, v4, v{R_+6}
    v_max3_u32 v5, v5, v{R_+5}, v{R_+7}
    s_mov_b64 exec, s[62:63]
    s_cbranch_execz L2_klast
    """)
    kloads()
    a("L2_klast:\ns_mov_b64 exec, -1")
    for dpp in ("quad_perm:[1,0,3,2]", "quad_perm:[2,3,0,1]", "row_half_mirror", "row_mirror"):
        a(f"""
        v_mov_b32_dpp v3, v5 {dpp} row_mask:0xf bank_mask:0xf
        v_mov_b32_dpp v6, v4 {dpp} row_mask:0xf bank_mask:0xf
        v_max_u32 v5, v5, v3
        v_med3_u32 v5, v4, v5, v6
        v_max_u32 v4, v4, v6
        s_nop 0
        """)
    for q in range(4): a(f"v_readlane_b32 s{52+2*q}, v4, {16*q}\nv_readlane_b32 s{53+2*q}, v5, {16*q}")
    a(f"""
    s_min_u32 s60, s52, s54
    s_max_u32 s52, s52, s54
    s_max_u32 s53, s53, s55
    s_max_u32 s53, s53, s60
    s_min_u32 s60, s56, s58
    s_max_u32 s56, s56, s58
    s_max_u32 s57, s57, s59
    s_max_u32 s57, s57, s60
    s_min_u32 s60, s52, s56
    s_max_u32 s52, s52, s56
    s_max_u32 s53, s53, s57
    s_max_u32 s53, s53, s60
    s_cmp_eq_u64 s[52:53], s[46:47]
    s_cbranch_scc1 L2_ksame
    s_mov_b64 s[46:47], s[52:53]
    s_andn2_b32 s54, 0x7ff, s52
    s_andn2_b32 s55, 0x7ff, s53
    v_mov_b32 v4, s54
    v_mov_b32 v5, s55
    s_mov_b64 exec, s[12:13]
    s_cbranch_execz L2_ksame
    v_cndmask_b32 v3, v4, v5, s[10:11]
    v_lshl_add_u32 v0, v3, 10, v10
    v_lshlrev_b32 v9, 4, v3
    buffer_load_dwordx4 {vr(STT,4)}, v9, s[{WS}:{WS+3}], s51 offen sc1
    """)
    for q in range(16): a(f"buffer_load_dwordx4 {vr(breg(q),4)}, v0, s[{WS}:{WS+3}], s50 offen offset:{q*16} sc1")
    a(f"""
    L2_ksame:
    s_cmp_lg_u64 s[62:63], 0
    s_cbranch_scc1 L2_kpoll
    s_mov_b64 exec, -1
    @S6
    s_andn2_b32 s54, 0x7ff, s46
    s_andn2_b32 s55, 0x7ff, s47
    v_mov_b32 v4, s54
    v_mov_b32 v5, s55
    v_mov_b32 v0, {CNT + 16}
    ds_write_b64 v0, v[4:5]
    s_cmp_ge_u32 s2, 176
    s_cbranch_scc1 L2_bc
    s_cmp_ge_u32 s64, 172
    s_cselect_b32 s48, 0x100000, s64
    s_lshl_b32 s48, s48, {ASH}
    s_add_u32 s48, s48, {WS_ACT}
    L2_stw:
    s_waitcnt vmcnt(0)
    v_cmp_ne_u32 vcc, s{sEP}, v{STT+3}
    @S10
    """)
    for q in range(16): a(f"{MF16} {vr(D,4)}, {vr(AF+4*q,4)}, {vr(breg(q),4)}, {'0' if q == 0 else vr(D,4)}")
    a(f"""
    s_and_b64 vcc, vcc, s[12:13]
    s_cbranch_scc1 L2_stre
    L2_stok:
    v_and_b32 v0, 1, v2
    v_lshlrev_b32 v0, 4, v0
    v_lshl_add_u32 v0, v11, 3, v0
    s_nop 2
    """)
    for r in range(4): a(f"v_fma_f32 v{D+r}, -v{STT}, v{D2+r}, v{D+r}")
    for r in range(4): a(f"v_mul_f32 v{D+r}, v{D+r}, v{STT+1}")
    for r in range(4): a(f"v_mov_b32 v{D2+r}, v{D+r}")
    for r in range(4): a(f"v_mul_f32 v{12+r}, {hex(f2u(-LOG2E))}, v{D+r}")
    for r in range(4): a(f"v_exp_f32 v{12+r}, v{12+r}")
    for r in range(4): a(f"v_permlane32_swap_b32 v{D+r}, v{D2+r}")
    for r in range(4): a(f"v_add_f32 v{12+r}, 1.0, v{12+r}")
    for r in range(4): a(f"v_rcp_f32 v{12+r}, v{12+r}")
    for r in range(4): a(f"v_mul_f32 v{D+r}, v{D+r}, v{D2+r}")
    for r in range(4): a(f"v_mul_f32 v{D+r}, v{D+r}, v{12+r}")
    a(f"""
    v_cvt_pk_bf16_f32 v12, v{D}, v{D+1}
    v_cvt_pk_bf16_f32 v13, v{D+2}, v{D+3}
    s_mov_b64 exec, 0x00030003
    buffer_store_dwordx2 v[12:13], v0, s[{WS}:{WS+3}], s48 offen sc0 sc1
    s_mov_b64 exec, -1
    s_branch L2_bc
    L2_stre:
    s_add_u32 s49, s49, 1
    s_cmp_gt_u32 s49, 0x40000
    s_cbranch_scc1 L2_stok
    s_mov_b64 exec, s[12:13]
    buffer_load_dwordx4 {vr(STT,4)}, v9, s[{WS}:{WS+3}], s51 offen sc1
    s_mov_b64 exec, -1
    s_nop 7
    s_branch L2_stw
    L2_nokey:
    s_waitcnt vmcnt(0)
    s_barrier
    """)
    outval()
    BFR = 164
    a(f"""
    L2_bc:
    v_and_b32 v9, 15, v2
    v_lshrrev_b32 v10, 2, v9
    v_lshrrev_b32 v11, 4, v2
    v_lshl_add_u32 v10, v11, 3, v10
    v_lshlrev_b32 v10, 4, v10
    v_and_b32 v8, 1, v9
    v_lshl_add_u32 v10, v8, 3, v10
    s_mul_i32 s49, s45, 3
    v_add_u32 v10, s49, v10
    """)
    for s_ in range(6):
        a(f"ds_read_b64_tr_b16 {vr(AF+4*s_,2)}, v10 offset:{FW + s_*512}\nds_read_b64_tr_b16 {vr(AF+4*s_+2,2)}, v10 offset:{FW + s_*512 + 64}")
    a(f"""
    v_mov_b32 v0, {CNT + 16}
    s_lshl_b32 s48, s{sG}, 3
    v_add_u32 v8, s48, v1
    s_waitcnt lgkmcnt(0)
    s_barrier
    ds_read_b64 v[4:5], v0
    s_waitcnt lgkmcnt(0)
    v_cmp_ne_u32 vcc, v4, v8
    v_cmp_ne_u32 s[62:63], v5, v8
    s_and_b64 exec, vcc, s[62:63]
    buffer_store_dwordx4 {vr(OV,4)}, v{XO}, s[{OUT}:{OUT+3}], s44 offen {OSC}
    s_mov_b64 exec, -1
    s_sub_u32 s48, s2, 176
    s_cmp_lt_u32 s48, 64
    s_cbranch_scc1 L2_st2
    L2_fin:
    @D0 15 {WS} {sW}
    s_endpgm
    """)
    a("L2_st2:")
    a(f"""
    v_and_b32 v6, 8, v2
    v_cmp_ne_u32 vcc, 0, v6
    s_mov_b32 s48, {WS_H}
    s_mov_b32 s51, {WS_ST}
    v_cndmask_b32 v3, v4, v5, vcc
    v_lshlrev_b32 v12, 10, v3
    v_lshl_add_u32 v12, v1, 1, v12
    v_add_u32 v12, s61, v12
    v_lshlrev_b32 v18, 4, v3
    buffer_load_ushort v13, v12, s[{WS}:{WS+3}], s48 offen sc1
    v_and_b32 v6, 1, v2
    v_lshlrev_b32 v0, {ASH}, v11
    v_lshl_add_u32 v0, v6, 4, v0
    s_mul_i32 s48, s{sW}, {24 << ASH}
    s_add_u32 s48, s48, {WS_ACT}
    s_mov_b32 s49, 0
    L2_apoll:
    buffer_load_dwordx4 {vr(STT,4)}, v18, s[{WS}:{WS+3}], s51 offen sc1
    """)
    for s_ in range(6):
        a(f"buffer_load_dwordx4 {vr(BFR+4*s_,4)}, v0, s[{WS}:{WS+3}], s48 offen offset:{s_*(4 << ASH)} sc1")
    a(f"s_add_u32 s49, s49, 1\ns_waitcnt vmcnt(0)\nv_max3_u32 v3, v{BFR}, v{BFR+1}, v{BFR+2}")
    for q in range(3, 23, 2): a(f"v_max3_u32 v3, v{BFR+q}, v{BFR+q+1}, v3")
    a(f"""
    v_max_u32 v3, v{BFR+23}, v3
    v_cmp_eq_u32 vcc, -1, v3
    v_cmp_ne_u32 s[62:63], s{sEP}, v{STT+3}
    s_cmp_gt_u32 s49, 0x40000
    s_cbranch_scc1 L2_agot
    s_or_b64 vcc, vcc, s[62:63]
    s_cbranch_scc1 L2_apoll
    L2_agot:
    @S10
    """)
    for s_ in range(6): a(f"{MF16} {vr(D,4)}, {vr(AF+4*s_,4)}, {vr(BFR+4*s_,4)}, {'0' if s_ == 0 else vr(D,4)}")
    a(f"""
    v_and_b32 v3, 1, v11
    v_lshlrev_b32 v0, 5, v6
    v_lshl_add_u32 v0, v3, 4, v0
    s_lshl_b32 s48, s{sW}, 6
    s_add_u32 s48, s48, {FR}
    v_add_u32 v0, s48, v0
    v_lshlrev_b32 v10, 2, v9
    v_lshl_add_u32 v10, v11, 7, v10
    v_add_u32 v10, {FR}, v10
    ds_write_b128 v0, {vr(D,4)}
    s_waitcnt lgkmcnt(0)
    s_barrier
    s_cmp_lg_u32 s{sW}, 0
    s_cbranch_scc1 L2_fin
    ds_read2_b32 v[14:15], v10 offset0:0 offset1:16
    v_mul_f32 v16, {hex(f2u(-LOG2E))}, v{STT+2}
    v_exp_f32 v16, v16
    v_lshlrev_b32 v13, 16, v13
    v_add_f32 v16, 1.0, v16
    v_rcp_f32 v16, v16
    v_sub_f32 v17, v13, v{STT}
    v_fma_f32 v13, v17, v{STT+1}, v13
    s_waitcnt lgkmcnt(0)
    v_add_f32 v14, v14, v15
    v_mov_b32 v15, v14
    s_nop 1
    v_permlane32_swap_b32 v14, v15
    v_add_f32 v14, v14, v15
    v_mov_b32 v15, v14
    s_nop 1
    v_permlane16_swap_b32 v14, v15
    v_add_f32 v14, v14, v15
    v_fma_f32 v14, v14, v16, v13
    v_cvt_pk_bf16_f32 v14, v14, v14
    s_mov_b64 exec, 0xffff
    buffer_store_short v14, v12, s[{OUT}:{OUT+3}], 0 offen {OSC}
    @Q {WS}
    @D0 15 {WS} {sW}
    L2_end:
    s_endpgm
    """)
    AB = 12
    def wl(reg, sb, f):
        a(f"buffer_load_dwordx4 {vr(reg,4)}, v{LN16}, s[{WS}:{WS+3}], s{sb} offen offset:{(f & 3)*1024} sc1")
        if f % 4 == 3: a(f"s_add_u32 s{sb}, s{sb}, 4096")
    NE = 11
    breg = lambda f: 40 + 4*f if f < NE else WO + 4*(f - NE)
    a(f"""
    L2_old:
    s_setprio 0
    v_mov_b32 v3, {CNT}
    v_mov_b32 v4, 1
    s_waitcnt lgkmcnt(0)
    s_mov_b64 exec, 1
    ds_add_u32 v3, v4
    s_mov_b64 exec, -1
    s_add_u32 s48, s51, {4*65536}
    """)
    for f in range(NE): wl(breg(f), 48, f)
    a(f"""
    L2_spin:
    ds_read_b32 v4, v3
    s_waitcnt lgkmcnt(0)
    v_readfirstlane_b32 s49, v4
    s_cmp_ge_u32 s49, 4
    s_cbranch_scc1 L2_go
    s_sleep 2
    s_branch L2_spin
    L2_go:
    """)
    def half(acc, reg, after):
        for ks in range(3): a(f"ds_read_b128 {vr(BF[ks&3],4)}, v{BA} offset:{ks*64}")
        for ks in range(8):
            if ks + 3 < 8: a(f"ds_read_b128 {vr(BF[(ks+3)&3],4)}, v{BA} offset:{(ks+3)*64}")
            after(ks, 0)
            for i in range(4):
                a(f"{MF16} {vr(acc+4*i,4)}, {vr(reg(4*ks+i),4)}, {vr(BF[ks&3],4)}, {'0' if ks == 0 else vr(acc+4*i,4)}")
            after(ks, 1)
    a(f"s_add_u32 s49, s51, {32768 + ((32 - NE)//4)*4096}")
    def aftA(ks, post):
        if not post: a(f"s_waitcnt lgkmcnt({min(3, 7-ks)})"); return
        for slot in range(4*ks, 4*ks + 4):
            if slot < 32 - NE: wl(WO + 4*slot, 48, slot + NE)
            else: wl(WO + 4*slot, 49, slot)
    half(ACC, lambda f: WO + 4*f, aftA)
    a(f"s_add_u32 s49, s51, 32768")
    def aftB(ks, post):
        if not post:
            done = sum(1 for f in range(NE, 4*ks))
            a(f"s_waitcnt lgkmcnt({min(3, 7-ks)}) vmcnt({min(63, (31 - (4*ks+3)) + NE + done)})"); return
        for f in range(4*ks, 4*ks + 4):
            if f >= NE: wl(WO + 4*(f - NE), 49, f - NE)
    half(AB, breg, aftB)
    a("s_nop 3")
    for i in range(4): a(f"ds_write_b128 v{PA}, {vr(AB+4*i,4)} offset:{16*i}")
    a("s_waitcnt vmcnt(0)\ns_setprio 1\ns_branch L2_join")
    a(f"""
    L2_slow:
    v_mov_b32 v{KA}, v{LN16}
    v_mov_b32 v{M}, 0xff7fffff
    s_mov_b32 s{sN}, 64
    L2_maxloop:
    ds_read_b128 {vr(KF,4)}, v{KA}
    v_add_u32 v{KA}, {TILE}, v{KA}
    s_waitcnt lgkmcnt(0)
    {MF32} {vr(S,16)}, {vr(KF,4)}, {vr(Q,4)}, 0
    s_sub_u32 s{sN}, s{sN}, 1
    s_nop 10
    """)
    for r in range(8): a(f"v_max3_f32 v{M}, v{S+2*r}, v{S+2*r+1}, v{M}")
    a(f"""
    s_cmp_lg_u32 s{sN}, 0
    s_cbranch_scc1 L2_maxloop
    v_mov_b32 v3, v{M}
    v_mov_b32 v{KA}, v{LN16}
    v_mov_b32 v{VA}, v{VA0}
    v_permlane32_swap_b32 v{M}, v3
    v_max_f32 v{M}, v{M}, v3
    """)
    for r in range(16): a(f"v_sub_f32 v{C+r}, 0, v{M}\nv_mov_b32 v{O+r}, 0")
    a(f"""
    s_mov_b32 s{sN}, 64
    L2_slowloop:
    ds_read_b128 {vr(KF,4)}, v{KA}
    ds_read_b128 {vr(VF,4)}, v{VA}
    ds_read_b128 {vr(VF+4,4)}, v{VA} offset:544
    v_add_u32 v{KA}, {TILE}, v{KA}
    v_add_u32 v{VA}, {TILE}, v{VA}
    s_waitcnt lgkmcnt(0)
    {MF32} {vr(S,16)}, {vr(KF,4)}, {vr(Q,4)}, {vr(C,16)}
    s_sub_u32 s{sN}, s{sN}, 1
    s_nop 10
    """)
    for i in range(16): a(f"v_exp_f32 v{S+i}, v{S+i}")
    a(f"""
    s_nop 1
    {SMF} {vr(O,16)}, {vr(VF,4)}, {vr(S,8)}, v{IDX}
    {SMF} {vr(O,16)}, {vr(VF+4,4)}, {vr(S+8,8)}, v{IDX}
    s_cmp_lg_u32 s{sN}, 0
    s_cbranch_scc1 L2_slowloop
    s_nop 11
    v_rcp_f32 v3, v{O+8}
    s_branch L2_epi
    """)
    k1_cold(a)
    return desc(KNAME, 256, 70)
def main():
    hdr = open("sequential_preLN__grouped_kv_mqa__moe_arch_mod__prompt.s.ref").read().split("\n")
    top = [l for l in hdr if l.startswith(";") and "@launch" not in l and "Override" not in l and "grid=ceil" not in l]
    a = Asm()
    k1(a)
    d = k2(a)
    out = "\n".join(top) + "\n"
    out += f"; @launch grid=(256,1,1) block=(512,1,1) lds={max(K1_LDS, K2_LDS)}\n"
    out += '.amdgcn_target "amdgcn-amd-amdhsa--gfx950"\n.text\n' + a.text() + '.section .rodata,"a"\n' + d
    sys.stdout.write(out)
main()
```

```python
import sys, struct
def f2u(x): return struct.unpack("<I", struct.pack("<f", x))[0]

WS_Q   = 0
WS_KV  = 2 << 20
WS_WO  = 3 << 20
WS_H   = 4 << 20

WS_ST  = (6 << 20) + 0x10000
WS_ACT = (6 << 20) + 0x20000
WS_KEY = WS_ACT + 0x10000
KSH = 7; ASH = 7; FSH = 7
for _x in sys.argv:
    if _x.startswith('--ksh='): KSH = int(_x.split('=')[1])
    if _x.startswith('--fsh='): FSH = int(_x.split('=')[1])
    if _x.startswith('--ash='): ASH = int(_x.split('=')[1])
WS_FLG = WS_KEY + 0x10000
WS_QB = 7 << 20
sEP = 68
KNAME = 'sequential_preLN__grouped_kv_mqa__moe_arch_mod__prompt_kernel'
WS_SIZE = 8 << 20
TILE = 2112
QSCALE = 0.25 * 1.4426950408889634
EPS = 1e-5
SHIFT = 96.0
for _x in sys.argv:
    if _x.startswith('--shift='): SHIFT = float(_x.split('=')[1])

class Asm:
    def __init__(self): self.l = []
    def __call__(self, s):
        for x in s.split("\n"):
            x = x.strip()
            if x.startswith("@S"): stamp(self, int(x[2:])); continue
            if x.startswith("@P"): padstore(self, *[int(t) for t in x[2:].split()]); continue
            if x.startswith("@Q"): padspin(self, *[int(t) for t in x[2:].split()]); continue
            if x.startswith("@T"): padstamp(self, int(x[2:])); continue
            if x.startswith("@D"): dump(self, *[int(t) for t in x[2:].split()]); continue
            if x: self.l.append(("" if x.endswith(":") else "    ") + x)
    def text(self): return "\n".join(self.l) + "\n"

def srd(a, d, p, size):
    a(f"s_mov_b32 s{d}, s{p}\ns_and_b32 s{d+1}, s{p+1}, 0xffff\ns_mov_b32 s{d+2}, {size}\ns_mov_b32 s{d+3}, 0x20000")
def vr(b, n): return f"v[{b}:{b+n-1}]"
def head(a, name):
    a(f".globl {name}\n.p2align 8\n.type {name},@function\n{name}:")
def desc(name, nv, ns):
    return f""".p2align 6
.amdhsa_kernel {name}
  .amdhsa_next_free_vgpr {nv}
  .amdhsa_next_free_sgpr {100 if (DIAG or PAD is not None) else ns}
  .amdhsa_accum_offset {(nv+3)//4*4}
  .amdhsa_group_segment_fixed_size 0
  .amdhsa_kernarg_size 104
  .amdhsa_user_sgpr_count 2
  .amdhsa_user_sgpr_kernarg_segment_ptr 1
  .amdhsa_system_sgpr_workgroup_id_x 1
.end_amdhsa_kernel
"""
DIAG = "--diag" in sys.argv
WS_DIAG = 16 << 20
if DIAG: WS_SIZE = 32 << 20
LIGHT = '--light' in sys.argv
def stamp(a, i, force=False):
    if LIGHT and i != 0 and not force: return
    if DIAG: a(f"{'s_memtime' if i >= 13 else 's_memrealtime'} s[{70+2*i}:{71+2*i}]\ns_waitcnt lgkmcnt(0)")
DIAG2 = "--diag2" in sys.argv
D2SEL = {0: [(0, 1), (2, 0), (8, 0)], 1: [(0, 1), (1, 0), (3, 0), (4, 0), (8, 0), (10, 0), (12, 0)], 2: [(0, 1), (1, 0), (3, 0), (5, 0), (6, 0), (7, 0)]}
_dl = [0]
def dump(a, kidx, n, WS, sW):
    if not DIAG: return
    stamp(a, min(n - 1, 12), True)
    if DIAG2:
        _dl[0] += 1
        base = sum(len(D2SEL[k]) for k in range(kidx))
        a(f"s_and_b32 s98, s2, 15\ns_cmp_lg_u32 s98, 0\ns_cbranch_scc1 LD_{_dl[0]}\ns_load_dwordx2 s[98:99], s[0:1], 88\ns_mov_b64 exec, 1\nv_mov_b32 v1, 0\ns_waitcnt lgkmcnt(0)\ns_add_u32 s98, s98, {512*(2-kidx)}\ns_addc_u32 s99, s99, 0")
        for j, (i, inv) in enumerate(D2SEL[kidx]):
            a(f"v_mov_b32 v0, s{70+2*i}")
            if inv: a("v_not_b32 v0, v0")
            a(f"global_atomic_umax v1, v0, s[98:99] offset:{4*(base+j)}\ns_nop 1")
        a(f"LD_{_dl[0]}:")
        return
    a(f"s_mov_b64 exec, 1\ns_lshl_b32 s69, s2, 4\ns_add_u32 s69, s69, s{sW}\ns_lshl_b32 s69, s69, 6\ns_add_u32 s69, s69, {WS_DIAG + kidx * (1 << 20)}\nv_mov_b32 v1, 0")
    for i in range(n):
        a(f"v_mov_b32 v0, s{70+2*i}\nbuffer_store_dword v0, v1, s[{WS}:{WS+3}], s69 offen offset:{4*i}")
PAD = [int(x.split("=")[1]) for x in sys.argv if x.startswith("--pad=")]
PAD = PAD[0] if PAD else None
WS_PAD = (6 << 20)
def padstamp(a, k):
    if PAD == k: a("s_memrealtime s[94:95]\ns_waitcnt lgkmcnt(0)")
def padstore(a, k, WS, sW): pass
def padspin(a, WS):
    if PAD is None: return
    a(f"s_mov_b32 s97, 0\nLQ_spin:\ns_memrealtime s[92:93]\ns_waitcnt lgkmcnt(0)\ns_sub_u32 s98, s92, s94\ns_add_u32 s97, s97, 1\ns_cmp_gt_u32 s97, 100000\ns_cbranch_scc1 LQ_done\ns_cmp_lt_u32 s98, 6000\ns_cbranch_scc1 LQ_spin\nLQ_done:")
MF32 = "v_mfma_f32_32x32x16_bf16"
MF16 = "v_mfma_f32_16x16x32_bf16"

ZERO_KB = 8
K1_KV = 131072
K1_CS = 147456
K1_KC = K1_CS + 1024
K1_KP = K1_KC + 1024
K1_PS = K1_KP + 4096
K1_EP = K1_PS + 1024
K1_LDS = K1_EP + 64
QSC = 'sc1' if '--qsc1' in sys.argv else '' if '--qplain' in sys.argv else 'sc0 sc1'
CODE_SPAN = 18600
def rowstat(a, s, m, r):
    a(f"""
    v_add_f32 v{m}, v{s}, v{s+2}
    v_add_f32 v{r}, v{s+1}, v{s+3}
    v_mul_f32 v{m}, {hex(f2u(-1.0/512))}, v{m}
    v_mul_f32 v{r}, {hex(f2u(1.0/512))}, v{r}
    v_fma_f32 v{r}, -v{m}, v{m}, v{r}
    v_max_f32 v{r}, 0, v{r}
    v_add_f32 v{r}, {hex(f2u(EPS))}, v{r}
    v_rsq_f32 v{r}, v{r}
    """)
def split_ab(a, src, dst, kind):
    a(f"v_and_b32 v11, 0xffff0000, v{src}\nv_sub_f32 v12, v{src}, v11")
    if kind == "m": a(f"v_cvt_pk_bf16_f32 v{dst}, v11, v12\nv_cvt_pk_bf16_f32 v{dst+1}, v11, 0")
    else: a(f"v_cvt_pk_bf16_f32 v{dst}, v11, v11\nv_cvt_pk_bf16_f32 v{dst+1}, v12, 0")
def k1(a):
    X, WQ, WKV, WO, WS = 16, 20, 24, 32, 36
    sW, sTG, sCG = 40, 41, 42
    DBG = 28
    ONES = 69
    VL = 13
    head(a, KNAME)
    a(f"""
    s_cmp_ge_u32 s2, 256
    s_cbranch_scc1 L2_end
    @S0
    @T0
    s_load_dwordx8 s[4:11], s[0:1], 0
    s_load_dwordx2 s[12:13], s[0:1], 32
    s_load_dwordx2 s[14:15], s[0:1], 96
    s_load_dwordx2 s[64:65], s[0:1], 88
    v_lshrrev_b32 v1, 6, v0
    v_and_b32 v2, 63, v0
    v_readfirstlane_b32 s{sW}, v1
    s_and_b32 s43, s2, 7
    s_lshr_b32 s44, s2, 3
    s_and_b32 s45, s44, 3
    s_lshl_b32 s{sTG}, s43, 2
    s_add_u32 s{sTG}, s{sTG}, s45
    s_lshr_b32 s{sCG}, s44, 2
    v_and_b32 v3, 15, v2
    v_lshrrev_b32 v4, 4, v2
    v_lshlrev_b32 v{VL}, 4, v2
    s_and_b32 s46, s{sW}, 3
    s_lshl_b32 s50, s46, 12
    s_and_b32 s58, s{sCG}, 3
    s_cmp_lt_u32 s{sW}, 4
    s_cbranch_scc1 L1_gemm
    """)
    VX, VW, WT, CS, WR, XR = 8, 12, 24, 70, 48, 32
    pass
    for i in range(4):
        a(f"v_add_u32 v7, {4*i}, v4\nv_xor_b32 v{VX+i}, v7, v3\nv_lshlrev_b32 v{VX+i}, 4, v{VX+i}\nv_lshl_add_u32 v{VX+i}, v7, 10, v{VX+i}")
    a(f"""
    v_lshrrev_b32 v7, 3, v2
    v_and_b32 v{VW}, 1, v4
    v_lshlrev_b32 v{VW}, 2, v{VW}
    v_and_b32 v14, 7, v2
    v_xor_b32 v{VW}, v{VW}, v14
    v_lshlrev_b32 v{VW}, 4, v{VW}
    v_lshl_add_u32 v{VW}, v7, 10, v{VW}
    s_lshl_b32 s48, s{sTG}, 16
    s_lshl_b32 s43, s46, 14
    s_add_u32 s48, s48, s43
    s_lshl_b32 s49, s46, 15
    s_lshl_b32 s43, s{sCG}, 7
    s_add_u32 s49, s49, s43
    {'s_mov_b32 s55, 0' if '--norot' in sys.argv else f's_add_u32 s55, s{sCG}, s{sTG}'}
    s_waitcnt lgkmcnt(0)
    """)
    srd(a, X, 4, 2 << 20)
    def chunk(c, sh): a(f"s_add_u32 s43, s55, {c}\ns_and_b32 s43, s43, 3\ns_lshl_b32 s43, s43, {sh}")
    def issx(c):
        chunk(c, 8); a("s_add_u32 s51, s48, s43")
        for i in range(4):
            a(f"s_add_u32 m0, s50, {c*16384 + i*1024}\ns_nop 0\nbuffer_load_dwordx4 v{VX+i}, s[{X}:{X+3}], s51 offen lds")
    def issw(c):
        chunk(c, 17); a("s_add_u32 s51, s49, s43")
        for i in range(4):
            a(f"s_add_u32 m0, s50, {65536 + c*16384 + i*1024}\ns_add_u32 s52, s51, {8*i*1024}\nbuffer_load_dwordx4 v{VW}, s[{WQ}:{WQ+3}], s52 offen lds")
    def isskv(c):
        chunk(c, 12)
        a(f"s_add_u32 m0, s61, {K1_KV + c*4096}\ns_add_u32 s52, s61, s43\nbuffer_load_dwordx4 v{VL}, s[{WKV}:{WKV+3}], s52 offen lds")
    issx(0)
    a(f"s_cmp_ge_u32 s{sCG}, 4\ns_cselect_b32 s8, s10, s8\ns_cselect_b32 s9, s11, s9\ns_lshl_b32 s61, s46, 10")
    srd(a, WKV, 8, 16 << 10)
    isskv(0); issx(1); isskv(1)
    srd(a, WQ, 6, 512 << 10)
    a(f"""
    v_mov_b32 v{ONES}, 0x3f803f80
    v_add_u32 v30, {K1_KC}, v{VL}
    s_lshl_b32 s43, s58, 8
    s_add_u32 s43, s43, {K1_PS}
    v_lshl_add_u32 v31, v3, 4, s43
    s_lshl_b32 s56, s{sTG}, 1
    s_lshr_b32 s43, s58, 1
    s_add_u32 s56, s56, s43
    s_mul_i32 s56, s56, {TILE}
    s_add_u32 s56, s56, {WS_KV}
    s_and_b32 s57, s58, 1
    s_lshl_b32 s43, s57, 8
    s_mul_i32 s44, s57, 544
    s_add_u32 s44, s44, 1024
    s_cmp_ge_u32 s{sCG}, 4
    s_cselect_b32 s43, s44, s43
    s_cselect_b64 s[62:63], -1, 0
    s_add_u32 s56, s56, s43
    v_and_b32 v14, 1, v4
    v_lshrrev_b32 v15, 1, v4
    v_lshlrev_b32 v26, 9, v14
    v_lshl_add_u32 v26, v15, 3, v26
    v_lshlrev_b32 v27, 8, v15
    v_lshl_add_u32 v27, v14, 3, v27
    v_cndmask_b32 v26, v26, v27, s[62:63]
    v_lshl_add_u32 v26, v3, 4, v26
    v_lshlrev_b32 v27, 4, v4
    v_lshlrev_b32 v28, 2, v3
    v_cndmask_b32 v27, v28, v27, s[62:63]
    v_cndmask_b32 v28, 0, 4, s[62:63]
    v_mov_b32 v29, 0x7fff0000
    v_mov_b32 v74, 0
    v_mov_b32 v75, 0
    v_mov_b32 v78, 0
    v_mov_b32 v79, 0
    """)
    srd(a, WS, 14, WS_SIZE)
    pass
    size = [5, 5, 5, 5, 4, 4, 4, 4]
    for g in range(5):
        if g + 2 < 4: issx(g + 2); isskv(g + 2)
        else: issw(g - 2)
        a(f"s_waitcnt vmcnt({sum(size[g+1:g+3])})\ns_barrier")
    issw(3)
    a(f"""
    v_mov_b32 v7, {K1_EP}
    ds_read_b32 v92, v7
    s_cmp_eq_u32 s46, 0
    s_cbranch_scc1 L1_fin
    s_waitcnt vmcnt(8)
    s_barrier
    s_waitcnt vmcnt(4)
    s_barrier
    s_waitcnt vmcnt(0) lgkmcnt(0)
    s_barrier
    v_readfirstlane_b32 s{sEP}, v92
    s_branch L2_start
    L1_fin:
    ds_read_b128 v[80:83], v31
    ds_read_b128 v[84:87], v30
    ds_read_b128 {vr(XR,4)}, v30 offset:1024
    ds_read_b128 {vr(XR+4,4)}, v30 offset:2048
    ds_read_b128 {vr(XR+8,4)}, v30 offset:3072
    ds_read_b128 {vr(XR+12,4)}, v30 offset:4096
    s_waitcnt lgkmcnt(4)
    """)
    rowstat(a, 80, 8, 9)
    a(f"""
    v_add_f32 v84, v84, v85
    v_add_f32 v86, v86, v87
    ds_bpermute_b32 v88, v27, v9
    v_add_u32 v27, v27, v28
    ds_bpermute_b32 v89, v27, v9
    v_add_u32 v27, v27, v28
    ds_bpermute_b32 v90, v27, v9
    v_add_u32 v27, v27, v28
    ds_bpermute_b32 v91, v27, v9
    v_add_f32 v84, v84, v86
    v_cndmask_b32 v85, v84, v8, s[62:63]
    v_cndmask_b32 v86, v8, v84, s[62:63]
    """)
    split_ab(a, 85, 72, "c"); split_ab(a, 86, 76, "m")
    a("s_waitcnt lgkmcnt(4)")
    for r in range(4):
        a(f"v_add_f32 v{XR+r}, v{XR+r}, v{XR+4+r}\nv_add_f32 v{XR+8+r}, v{XR+8+r}, v{XR+12+r}")
    for r in range(4): a(f"v_add_f32 v{XR+r}, v{XR+r}, v{XR+8+r}")
    a(f"""
    v_cmp_gt_u32 vcc, 4, v2
    v_lshlrev_b32 v12, 2, v2
    {MF16} {vr(XR,4)}, v[72:75], v[76:79], {vr(XR,4)}
    v_cndmask_b32 v14, 0, v{ONES}, vcc
    s_and_b64 s[62:63], s[62:63], 0xff
    s_waitcnt lgkmcnt(0)
    s_nop 4
    """)
    for r in range(4): a(f"v_mul_f32 v{XR+r}, v{88+r}, v{XR+r}")
    a(f"""
    v_cvt_pk_bf16_f32 v{XR}, v{XR}, v{XR+1}
    v_cvt_pk_bf16_f32 v{XR+1}, v{XR+2}, v{XR+3}
    buffer_store_dwordx2 {vr(XR,2)}, v26, s[{WS}:{WS+3}], s56 offen sc0 sc1
    v_cndmask_b32 v12, v29, v12, s[62:63]
    buffer_store_dword v14, v12, s[{WS}:{WS+3}], s56 offen offset:512 sc0 sc1
    v_readfirstlane_b32 s{sEP}, v92
    s_lshl_b32 s43, s2, {KSH}
    s_add_u32 s43, s43, {WS_FLG}
    v_mov_b32 v7, 0
    s_waitcnt vmcnt(10)
    s_barrier
    s_waitcnt vmcnt(6)
    s_barrier
    s_waitcnt vmcnt(0)
    s_mov_b64 exec, 1
    buffer_store_dword v92, v7, s[{WS}:{WS+3}], s43 offen sc0 sc1
    s_mov_b64 exec, -1
    @S1
    s_barrier
    s_branch L2_start
    """)
    D1 = 16
    XF, WF = 120, 32
    XA, WA, WB, WOD = 72, 68, 70, 80
    KX, KW = 92, 93
    SX, SXX, KC, KD = 14, 15, 71, 96
    KF = 104
    a(f"""
    L1_gemm:
    v_and_b32 v5, 31, v2
    v_lshrrev_b32 v6, 5, v2
    s_and_b32 s53, s{sW}, 1
    s_lshr_b32 s54, s{sW}, 1
    s_lshl_b32 s59, s2, 1
    s_add_u32 s59, s59, s53
    s_lshr_b32 s43, s59, 6
    s_lshr_b32 s44, s59, 2
    s_and_b32 s44, s44, 15
    s_and_b32 s45, s59, 3
    s_lshl_b32 s44, s44, 15
    s_lshl_b32 s43, s43, 7
    s_lshl_b32 s45, s45, 3
    s_add_u32 s47, s44, s43
    s_add_u32 s47, s47, s45
    v_lshrrev_b32 v7, 2, v3
    v_lshlrev_b32 v7, 5, v7
    v_and_b32 v8, 3, v3
    v_lshl_add_u32 v7, v8, 1, v7
    v_lshl_add_u32 v7, v4, 13, v7
    v_add_u32 v8, 4096, v7
    s_waitcnt lgkmcnt(0)
    """)
    if "--pf" in sys.argv:
        a(f"""
        s_lshr_b32 s43, s2, 3
        s_lshl_b32 s43, s43, 14
        s_lshl_b32 s44, s53, 13
        s_add_u32 s43, s43, s44
        s_lshl_b32 s44, s{sTG}, 16
        s_lshl_b32 s45, s{sCG}, 13
        s_add_u32 s44, s44, s45
        s_cmp_eq_u32 s{sW}, 3
        s_cselect_b32 s44, 0x400000, s44
        s_cmp_ge_u32 s{sW}, 2
        s_cselect_b32 s43, s44, s43
        s_cselect_b32 s{X}, s4, s6
        s_cselect_b32 s{X+1}, s5, s7
        s_mov_b32 s{X+2}, 0x80000
        s_cselect_b32 s{X+2}, 0x200000, s{X+2}
        s_and_b32 s{X+1}, s{X+1}, 0xffff
        s_mov_b32 s{X+3}, 0x20000
        v_lshlrev_b32 v9, 7, v2
        buffer_load_dword v252, v9, s[{X}:{X+3}], s43 offen
        """)
    srd(a, WO, 12, 512 << 10); srd(a, WS, 14, WS_SIZE); srd(a, DBG, 64, 256)
    a(f"s_cmp_ge_u32 s{sW}, 2\ns_cbranch_scc1 L1_nowo")
    for j in range(8):
        a(f"buffer_load_ushort v{WOD + j}, v{7 + j//4}, s[{WO}:{WO+3}], s47 offen offset:{(j & 3) * 1024}")
    a(f"""
    s_branch L1_noz
    L1_nowo:
    s_cmp_eq_u32 s{sW}, 2
    s_cbranch_scc1 L1_ini
    s_cmp_lg_u32 s2, 0
    s_cbranch_scc1 L1_noz
    s_memrealtime s[44:45]
    v_mov_b32 v9, 0
    s_waitcnt lgkmcnt(0)
    s_or_b32 s44, s44, 1
    v_mov_b32 v{WOD}, s44
    s_mov_b64 exec, 1
    buffer_store_dword v{WOD}, v9, s[{DBG}:{DBG+3}], 0 offen sc0 sc1
    s_mov_b64 exec, -1
    s_branch L1_noz
    L1_ini:
    s_cmp_lt_u32 s2, 172
    s_cselect_b32 s44, -1, 0
    v_mov_b32 v{WOD}, s44
    v_mov_b32 v{WOD+1}, 0
    v_lshlrev_b32 v9, 2, v2
    s_lshl_b32 s43, s2, {ASH}
    s_add_u32 s43, s43, {WS_ACT}
    s_lshl_b32 s44, s2, {KSH}
    s_add_u32 s44, s44, {WS_KEY}
    s_mov_b64 exec, 0xff
    buffer_store_dword v{WOD}, v9, s[{WS}:{WS+3}], s43 offen sc0 sc1
    s_mov_b64 exec, 3
    buffer_store_dword v{WOD+1}, v9, s[{WS}:{WS+3}], s44 offen sc0 sc1
        s_mov_b64 exec, -1
    L1_noz:
    """)
    if "--cpf" in sys.argv:
        a(f"""
        s_getpc_b64 s[44:45]
        s_and_b32 s44, s44, 0xffffff00
        s_lshr_b32 s43, s2, 3
        s_lshl_b32 s43, s43, 2
        s_add_u32 s43, s43, s{sW}
        s_lshl_b32 s43, s43, 8
        v_lshl_add_u32 v9, v2, 2, s43
        v_min_u32 v9, {CODE_SPAN}, v9
        global_load_dword v252, v9, s[44:45]
        """)
    a(f"""
    s_lshl_b32 s43, s54, 1
    v_xor_b32 v12, s43, v3
    s_lshl_b32 s43, s53, 13
    v_lshlrev_b32 v9, 8, v5
    v_add_u32 v9, s43, v9
    """)
    for j in range(8):
        a(f"v_add_u32 v10, {2*j}, v6\nv_xor_b32 v10, v10, v12\nv_lshl_add_u32 v{XA+j}, v10, 4, v9")
    a(f"""
    v_lshrrev_b32 v9, 2, v3
    v_lshl_add_u32 v10, v6, 3, v9
    v_lshlrev_b32 v10, 7, v10
    v_lshrrev_b32 v11, 1, v9
    v_xor_b32 v11, s54, v11
    v_lshl_add_u32 v10, v11, 6, v10
    v_and_b32 v11, 1, v4
    v_lshl_add_u32 v10, v11, 5, v10
    v_and_b32 v11, 3, v3
    v_lshl_add_u32 v10, v11, 3, v10
    s_lshl_b32 s43, s54, 11
    s_add_u32 s44, s43, 0x10000
    s_sub_u32 s43, {0x10000 + 2048}, s43
    v_add_u32 v{WA}, s44, v10
    v_add_u32 v{WB}, s43, v10
    v_lshl_add_u32 v{KW}, v4, 3, v9
    v_lshlrev_b32 v{KW}, 5, v{KW}
    v_lshl_add_u32 v{KW}, v11, 3, v{KW}
    s_lshl_b32 s43, s46, 10
    s_add_u32 s43, s43, {K1_KV}
    v_add_u32 v{KW}, s43, v{KW}
    s_lshl_b32 s43, s46, 2
    v_add_u32 v{KX}, s43, v4
    v_xor_b32 v{KX}, v{KX}, v3
    v_lshlrev_b32 v{KX}, 4, v{KX}
    v_lshl_add_u32 v{KX}, v3, 8, v{KX}
    s_lshl_b32 s43, s58, 12
    v_add_u32 v{KX}, s43, v{KX}
    v_lshrrev_b32 v64, 3, v5
    v_lshlrev_b32 v64, 13, v64
    v_and_b32 v11, 7, v5
    v_lshl_add_u32 v64, v11, 4, v64
    v_lshl_add_u32 v64, v6, 9, v64
    s_lshl_b32 s60, s{sTG}, 16
    s_lshl_b32 s44, s53, 15
    s_add_u32 s60, s60, s44
    s_lshl_b32 s44, s{sCG}, 10
    s_add_u32 s60, s60, s44
    s_lshl_b32 s44, s54, 8
    s_add_u32 s60, s60, s44
    s_add_u32 s60, s60, {WS_Q}
    s_lshl_b32 s43, s53, 9
    s_add_u32 s43, s43, {K1_PS}
    v_lshl_add_u32 v67, v5, 4, s43
    s_lshl_b32 s43, s54, 3
    v_lshl_add_u32 v65, v6, 2, v67
    v_add_u32 v65, s43, v65
    s_lshl_b32 s43, s46, 2
    s_add_u32 s43, s43, {K1_KC}
    v_add_u32 v94, s43, v{VL}
    s_lshl_b32 s43, s46, 10
    s_add_u32 s43, s43, {K1_KP}
    v_add_u32 v95, s43, v{VL}
    s_lshl_b32 s59, s59, 10
    s_add_u32 s59, s59, {WS_WO}
    s_cmp_ge_u32 s{sW}, 2
    s_cselect_b32 s59, {WS_SIZE}, s59
    s_cmp_ge_u32 s{sCG}, 4
    s_cselect_b64 s[62:63], -1, 0
    v_mov_b32 v{ONES}, 0x3f803f80
    v_mov_b32 v{SX}, 0
    v_mov_b32 v{SXX}, 0
    v_mov_b32 v{KC}, 0
    v_mov_b32 v90, 0
    v_mov_b32 v91, 0
    v_mov_b32 v250, 0
    v_mov_b32 v251, 0
    """)
    def xreads(c):
        kx, kw = KF + 8*(c & 1), KF + 8*(c & 1) + 4
        for u in (0, 2, 4, 6): a(f"ds_read_b128 {vr(XF+32*c+4*u,4)}, v{XA+u} offset:{c*16384}")
        a(f"ds_read_b128 {vr(kx,4)}, v{KX} offset:{c*16384}")
        a(f"ds_read_b64_tr_b16 {vr(kw,2)}, v{KW} offset:{c*4096}\nds_read_b64_tr_b16 {vr(kw+2,2)}, v{KW} offset:{c*4096+128}")
        for u in (1, 3, 5, 7): a(f"ds_read_b128 {vr(XF+32*c+4*u,4)}, v{XA+u} offset:{c*16384}")
    def wread(ks):
        ar = WB if ks & 1 else WA
        off = (ks & ~1) * 2048
        a(f"ds_read_b64_tr_b16 {vr(WF+4*(ks&7),2)}, v{ar} offset:{off}\nds_read_b64_tr_b16 {vr(WF+4*(ks&7)+2,2)}, v{ar} offset:{off + 512}")
    def work(c):
        kx, kw = KF + 8*(c & 1), KF + 8*(c & 1) + 4
        for u in (0, 2, 4, 6):
            a(f"s_waitcnt lgkmcnt({10 - u//2})")
            for q in range(4): a(f"v_dot2c_f32_bf16 v{SX}, v{XF+32*c+4*u+q}, v{ONES}\nv_dot2c_f32_bf16 v{SXX}, v{XF+32*c+4*u+q}, v{XF+32*c+4*u+q}")
        a("s_waitcnt lgkmcnt(4)")
        for q in range(4): a(f"v_dot2c_f32_bf16 v{KC}, v{kw+q}, v{ONES}")
        a(f"{MF16} {vr(KD,4)}, {vr(kw,4)}, {vr(kx,4)}, {'0' if c == 0 else vr(KD,4)}")
        a(f"{MF16} {vr(KD+4,4)}, {vr(kx,4)}, {vr(kw,4)}, {'0' if c == 0 else vr(KD+4,4)}")
    for c in range(4):
        a("s_barrier")
        xreads(c)
        work(c)
        if c == 1:
            a(f"""
            s_waitcnt vmcnt(0)
            v_lshl_or_b32 v{WOD}, v{WOD+1}, 16, v{WOD}
            v_lshl_or_b32 v{WOD+1}, v{WOD+3}, 16, v{WOD+2}
            v_lshl_or_b32 v{WOD+2}, v{WOD+5}, 16, v{WOD+4}
            v_lshl_or_b32 v{WOD+3}, v{WOD+7}, 16, v{WOD+6}
            buffer_store_dwordx4 {vr(WOD,4)}, v{VL}, s[{WS}:{WS+3}], s59 offen sc0 sc1
            buffer_load_dword v66, v90, s[{DBG}:{DBG+3}], 0 offen sc1
            """)
    a(f"""
    v_permlane32_swap_b32 v{SX}, v{SXX}
    s_waitcnt vmcnt(0)
    ds_write_b32 v94, v{KC}
    v_add_f32 v{SX}, v{SX}, v{SXX}
    v_readfirstlane_b32 s{sEP}, v66
    ds_write_b32 v65, v{SX}
    v_mov_b32 v7, {K1_EP}
    s_cmp_eq_u32 s{sEP}, 0
    s_cbranch_scc1 L1_tag
    L1_tagok:
    """)
    for r in range(4): a(f"v_cndmask_b32 v{KD+r}, v{KD+r}, v{KD+4+r}, s[62:63]")
    a(f"ds_write_b128 v95, {vr(KD,4)}\nds_write_b32 v7, v66\nds_write_b32 v7, v90 offset:8\nv_mov_b32 v{SXX}, 0\ns_waitcnt lgkmcnt(0)\ns_barrier")
    for ks in range(7): wread(ks)
    a("s_waitcnt lgkmcnt(12)")
    wread(7)
    for g in range(8):
        a(f"s_waitcnt lgkmcnt({8 if g < 7 else 0})")
        for ks in range(4*g, 4*g + 4):
            for q in range(4): a(f"v_dot2c_f32_bf16 v{SXX}, v{WF+4*(ks&7)+q}, v{ONES}")
        if g % 2 == 0 and g < 6: a("s_barrier")
        if g == 2: a("ds_read_b128 v[84:87], v67")
        for ks in range(4*g, 4*g + 4):
            a(f"{MF32} {vr(D1,16)}, {vr(WF+4*(ks&7),4)}, {vr(XF+4*ks,4)}, {'0' if ks == 0 else vr(D1,16)}")
            if ks + 8 < 32: wread(ks + 8)
            if ks == 16: rowstat(a, 84, 8, 9)
            if ks == 17: split_ab(a, 8, 88, "m"); a(f"v_mul_f32 v10, {hex(f2u(QSCALE))}, v9")
            if ks == 29: a("s_nop 0"); split_ab(a, SXX, 248, "c")
    a(f"""
    {MF32} {vr(D1,16)}, v[248:251], v[88:91], {vr(D1,16)}
    v_mov_b32 v35, v66
    v_mov_b32 v39, v66
    v_mov_b32 v43, v66
    v_lshrrev_b32 v44, 3, v5
    v_lshlrev_b32 v44, 12, v44
    v_and_b32 v11, 7, v5
    v_lshl_add_u32 v44, v11, 4, v44
    v_lshl_add_u32 v44, v6, 8, v44
    s_sub_u32 s61, s60, {WS_Q}
    s_lshr_b32 s61, s61, 1
    s_add_u32 s61, s61, {WS_QB}
    s_nop 0
    """)
    dst = [32, 33, 34, 36, 40, 41, 42, 37]
    for r in range(8):
        a(f"v_mul_f32 v{D1+2*r}, v10, v{D1+2*r}\nv_mul_f32 v{D1+2*r+1}, v10, v{D1+2*r+1}\nv_cvt_pk_bf16_f32 v{dst[r]}, v{D1+2*r}, v{D1+2*r+1}")
        if r == 2: a(f"buffer_store_dwordx4 v[32:35], v64, s[{WS}:{WS+3}], s60 offen {QSC}")
        if r == 6: a(f"buffer_store_dwordx4 v[40:43], v64, s[{WS}:{WS+3}], s60 offen offset:128 {QSC}")
    a(f"""
    buffer_store_dwordx4 v[36:39], v44, s[{WS}:{WS+3}], s61 offen {QSC}
    @S1
    """)
def k1_cold(a):
    DBG = 28
    a(f"""
    L1_tag:
    s_mov_b32 s43, 0
    L1_tagl:
    buffer_load_dword v66, v90, s[{DBG}:{DBG+3}], 0 offen sc1
    s_add_u32 s43, s43, 1
    s_waitcnt vmcnt(0)
    v_readfirstlane_b32 s{sEP}, v66
    s_cmp_gt_u32 s43, 0x40000
    s_cbranch_scc1 L1_tagok
    s_cmp_eq_u32 s{sEP}, 0
    s_cbranch_scc1 L1_tagl
    s_branch L1_tagok
    """)
KV_BYTES = 64 * TILE
OB = KV_BYTES
RED = OB + 8 * 1040
PART = RED + 1024
CNT = PART + 8192
K2_LDS = CNT + 64
FW = 0
FR = 32768
SMF = "v_smfmac_f32_32x32x32_bf16"
LOG2E = 1.4426950408889634
KSLEEP = ''
for _x in sys.argv:
    if _x.startswith('--ksleep='): KSLEEP = 's_sleep ' + _x.split('=')[1]
OSC = 'sc0 sc1' if '--osc' in sys.argv else 'nt' if '--ont' in sys.argv else ''
SLEEP = 's_nop 0'
for _x in sys.argv:
    if _x.startswith('--sleep='): SLEEP = 's_sleep ' + _x.split('=')[1]
def k2(a):
    X, WR_, OUT, WS, FA, FB = 16, 20, 24, 28, 32, 36
    sW, sN, sG = 40, 43, 41
    Q, C, KF, VF, S, O = 8, 12, 28, 36, 52, 84
    IDX, KA, VA, LN16, XO, WRO, M, VA0 = 100, 101, 102, 103, 104, 105, 106, 107
    WO = 108; XRES, WRV, FWR = 236, 240, 244
    BAR_TILE = 10
    X_ = [x for x in sys.argv if x.startswith("--x")]
    a(f"""
    L2_start:
    s_load_dwordx8 s[52:59], s[0:1], 48
    s_load_dwordx2 s[8:9], s[0:1], 80
    v_lshlrev_b32 v{LN16}, 4, v2
    v_and_b32 v5, 31, v2
    v_lshrrev_b32 v6, 5, v2
    s_lshl_b32 s{sG}, s41, 3
    s_add_u32 s{sG}, s{sG}, s42
    s_lshl_b32 s44, s{sG}, 13
    s_lshl_b32 s45, s{sW}, 10
    s_add_u32 s46, s44, s45
    s_add_u32 s47, s45, {WS_KV}
    s_lshl_b32 s50, s{sW}, 16
    s_add_u32 s51, s50, {WS_WO}
    s_and_b32 s48, s{sW}, 4
    s_lshl_b32 s48, s48, 13
    s_add_u32 s50, s51, s48
    """)
    srd(a, WS, 14, WS_SIZE)
    def dma(i):
        return [f"s_add_u32 m0, s45, {i*8192}", f"s_add_u32 s48, s47, {i*8192}", f"buffer_load_dwordx4 v{LN16}, s[{WS}:{WS+3}], s48 offen sc1 lds"]
    a("s_waitcnt lgkmcnt(0)")
    srd(a, X, 4, 2 << 20); srd(a, WR_, 52, 1024); srd(a, OUT, 8, 2 << 20)
    a(f"""
    v_lshlrev_b32 v3, 8, v6
    v_lshl_add_u32 v3, v5, 4, v3
    v_and_b32 v4, 27, v5
    v_cmp_eq_u32 vcc, 16, v4
    v_mov_b32 v4, 528
    v_mov_b32 v7, 512
    v_cndmask_b32 v4, v4, v7, vcc
    v_cmp_gt_u32 vcc, 16, v5
    v_mov_b32 v{KA}, v{LN16}
    v_mov_b32 v{IDX}, 0xdddddddd
    v_cndmask_b32 v3, v4, v3, vcc
    v_add_u32 v{VA0}, 1024, v3
    v_mov_b32 v{VA}, v{VA0}
    v_lshrrev_b32 v3, 3, v2
    v_lshlrev_b32 v3, 4, v3
    s_lshl_b32 s49, s{sW}, 7
    v_add_u32 v{WRO}, s49, v3
    v_and_b32 v4, 7, v2
    v_lshl_add_u32 v{XO}, v4, 10, v{WRO}
    s_and_b32 s48, s2, 7
    s_lshr_b32 s49, s2, 3
    s_mul_i32 s64, s48, 22
    s_add_u32 s64, s64, s49
    s_lshl_b32 s48, s48, 3
    s_add_u32 s48, s48, s49
    s_sub_u32 s61, s48, 22
    s_and_b32 s61, s61, 63
    s_lshl_b32 s61, s61, 4
    s_min_u32 s48, s64, 171
    s_lshl_b32 s48, s48, 4
    s_mul_i32 s49, s{sW}, {64*2752}
    s_add_u32 s48, s48, s49
    s_lshl_b32 s49, s{sW}, 16
    s_add_u32 s49, s49, s61
    s_add_u32 s66, s49, {512*1024}
    s_add_u32 s67, s49, {1024*1024}
    s_movk_i32 s60, 2752
    s_cmp_ge_u32 s2, 176
    s_cselect_b32 s65, s49, s48
    s_cselect_b32 s66, s66, s48
    s_cselect_b32 s67, s67, 0x200000
    s_cselect_b32 s60, 0x400, s60
    s_cselect_b32 s54, s58, s54
    s_cselect_b32 s55, s59, s55
    s_cselect_b32 s56, s58, s56
    s_cselect_b32 s57, s59, s57
    v_mul_u32_u24 v1, s60, v2
    """)
    srd(a, FA, 54, 512*2752); srd(a, FB, 56, 512*2752)
    a(f"""
    s_mov_b32 s60, {16*8192}
    s_cmp_lt_u32 s{sW}, 4
    s_cselect_b32 s60, s60, {WS_SIZE}
    v_mov_b32 v3, {CNT}
    """)
    for r in range(16): a(f"v_mov_b32 v{O+r}, 0")
    a(f"""
    ds_write_b32 v3, v{O}
    ds_write_b128 v3, {vr(O,4)} offset:16
    s_lshr_b32 s12, s46, 1
    s_add_u32 s12, s12, {WS_QB}
    s_add_u32 s46, s46, {WS_Q}
    v_lshrrev_b32 v7, 4, v2
    v_lshlrev_b32 v7, 7, v7
    v_and_b32 v4, 7, v2
    v_lshl_add_u32 v7, v4, 4, v7
    s_cmp_lt_u32 s{sW}, 4
    s_cbranch_scc1 L2_noflag
    s_sub_u32 s13, s{sW}, 4
    """)
    if "--fw1" not in sys.argv:
        a(f"""
        s_lshl_b32 s48, s13, {KSH + 6}
        s_add_u32 s48, s48, {WS_FLG}
        v_lshlrev_b32 v3, {KSH}, v2
        s_mov_b32 s49, 0
        L2_fpoll:
        buffer_load_dword v4, v3, s[{WS}:{WS+3}], s48 offen sc1
        s_add_u32 s49, s49, 1
        s_waitcnt vmcnt(0)
        v_cmp_ne_u32 vcc, s{sEP}, v4
        s_cmp_gt_u32 s49, 0x40000
        s_cbranch_scc1 L2_fgot
        s_and_b64 exec, exec, vcc
        s_cbranch_scc1 L2_fpoll
        L2_fgot:
        s_mov_b64 exec, 1
        v_mov_b32 v3, {K1_EP + 8}
        v_mov_b32 v4, 1
        ds_add_u32 v3, v4
        """)
    else:
        a(f"""
        s_cmp_lg_u32 s{sW}, 5
        s_cbranch_scc1 L2_fwait
        s_mov_b32 s48, {WS_FLG}
        v_lshlrev_b32 v3, {KSH + 2}, v2
        s_mov_b32 s49, 0
        L2_fpoll:
        """)
        for q in range(4): a(f"buffer_load_dword v{S+q}, v3, s[{WS}:{WS+3}], s48 offen offset:{q << KSH} sc1")
        a(f"""
        s_add_u32 s49, s49, 1
        s_waitcnt vmcnt(0)
        v_xor_b32 v{S}, s{sEP}, v{S}
        v_xor_b32 v{S+1}, s{sEP}, v{S+1}
        v_xor_b32 v{S+2}, s{sEP}, v{S+2}
        v_xor_b32 v{S+3}, s{sEP}, v{S+3}
        v_or3_b32 v4, v{S}, v{S+1}, v{S+2}
        v_or_b32 v4, v4, v{S+3}
        v_cmp_ne_u32 vcc, 0, v4
        s_cmp_gt_u32 s49, 0x40000
        s_cbranch_scc1 L2_fgot
        s_and_b64 exec, exec, vcc
        s_cbranch_scc1 L2_fpoll
        L2_fgot:
        s_mov_b64 exec, 1
        v_mov_b32 v3, {K1_EP + 8}
        v_mov_b32 v4, 4
        ds_write_b32 v3, v4
        L2_fwait:
        s_mov_b64 exec, 1
        v_mov_b32 v3, {K1_EP + 8}
        """)
    a(f"""
    L2_fspin:
    ds_read_b32 v4, v3
    s_waitcnt lgkmcnt(0)
    v_readfirstlane_b32 s49, v4
    s_cmp_lt_u32 s49, 4
    s_cbranch_scc1 L2_fspin
    s_mov_b64 exec, -1
    @S2
    s_lshl_b32 s13, s13, 10
    s_add_u32 s62, s13, {WS_KV}
    """)
    for i in range(6):
        a(f"s_add_u32 m0, s13, {i*4096}\ns_add_u32 s48, s62, {i*4096}\nbuffer_load_dwordx4 v{LN16}, s[{WS}:{WS+3}], s48 offen sc1 lds")
    a(f"""
    L2_noflag:
    {'' if '--nobarA' in sys.argv else 's_barrier'}
    s_mov_b32 s49, 0
    L2_qpoll:
    buffer_load_dwordx4 {vr(Q,4)}, v{LN16}, s[{WS}:{WS+3}], s46 offen sc1
    buffer_load_dwordx4 {vr(S,4)}, v7, s[{WS}:{WS+3}], s12 offen sc1
    s_add_u32 s49, s49, 1
    s_waitcnt vmcnt(0)
    v_cmp_ne_u32 vcc, s{sEP}, v{Q+3}
    v_cmp_ne_u32 s[62:63], s{sEP}, v{S+3}
    s_cmp_gt_u32 s49, 0x40000
    s_cbranch_scc1 L2_qgot
    s_or_b64 exec, vcc, s[62:63]
    s_cbranch_scc1 L2_qpoll
    L2_qgot:
    s_mov_b64 exec, -1
    s_mov_b32 s62, 0xff00ff00
    s_mov_b32 s63, s62
    v_cndmask_b32 v{Q+3}, v{S}, v{S+1}, s[62:63]
    s_waitcnt lgkmcnt(0)
    s_barrier
    @S3
    ds_read_b128 {vr(KF,4)}, v{KA}
    ds_read_b128 {vr(KF+4,4)}, v{KA} offset:{TILE}
    ds_read_b128 {vr(VF,4)}, v{VA}
    ds_read_b128 {vr(VF+4,4)}, v{VA} offset:544
    s_waitcnt lgkmcnt(3)
    {MF32} {vr(S,16)}, {vr(KF,4)}, {vr(Q,4)}, 0
    s_waitcnt lgkmcnt(2)
    {MF32} {vr(S+16,16)}, {vr(KF+4,4)}, {vr(Q,4)}, 0
    s_nop 9
    v_max3_f32 v{M}, v{S}, v{S+1}, v{S+2}
    """)
    for r in range(3, 31, 2): a(f"v_max3_f32 v{M}, v{S+r}, v{S+r+1}, v{M}")
    a(f"""
    v_max_f32 v{M}, v{S+31}, v{M}
    v_mov_b32 v3, v{M}
    s_nop 1
    v_permlane32_swap_b32 v{M}, v3
    v_max_f32 v{M}, v{M}, v3
    v_sub_f32 v{C}, {hex(f2u(-SHIFT))}, v{M}
    """)
    for r in range(1, 16): a(f"v_mov_b32 v{C+r}, v{C}")
    a(f"""
    @S4
    @S13
    @T1
    s_nop 1
    {MF32} {vr(S,16)}, {vr(KF,4)}, {vr(Q,4)}, {vr(C,16)}
    s_waitcnt lgkmcnt(0)
    s_nop 10
    """)
    base = 0
    nwo = 0
    NPT = 2 if '--npt2' in sys.argv else 3
    queue = [dma(i) for i in range(3, 17)]
    queue[-1][1] = "s_add_u32 s48, s47, s60"
    ffn = [[f"buffer_load_dwordx4 {vr(FWR+4*i,4)}, v1, s[{FA if i == 0 else FB}:{(FA if i == 0 else FB)+3}], s{65+i} offen"] for i in range(3)]
    wol = [(["s_add_u32 s50, s50, 4096"] if (f and f % 4 == 0) else []) + [f"buffer_load_dwordx4 {vr(WO + 4*f, 4)}, v{LN16}, s[{WS}:{WS+3}], s50 offen offset:{(f & 3)*1024} sc1"] for f in range(32)]
    xw = [[f"buffer_load_dwordx4 {vr(XRES,4)}, v{XO}, s[{X}:{X+3}], s44 offen"], [f"buffer_load_dwordx4 {vr(WRV,4)}, v{WRO}, s[{WR_}:{WR_+3}], 0 offen"]]
    SCH = [x.split("=")[1] for x in sys.argv if x.startswith("--sch=")]
    SCH = SCH[0] if SCH else "E"
    if SCH == "A":
        queue += wol + xw + ffn
        cnt = lambda t: 2 if t < 7 or 10 <= t <= 26 else 1 if t in (27, 29, 31) else 0
    elif SCH == "B":
        queue += wol + xw + ffn
        cnt = lambda t: 2 if t <= 23 else 1
    elif SCH == "C":
        queue += xw + wol[:4] + ffn[:1] + wol[4:5] + ffn[1:2] + wol[5:6] + ffn[2:] + wol[6:]
        cnt = lambda t: 2
    elif SCH == "D":
        queue += wol + xw + ffn
        cnt = lambda t: 2 if t <= 23 else 1 if t in (58, 60, 62) else 0
    elif SCH == "E":
        queue += wol + xw + ffn
        cnt = lambda t: 2 if t <= 23 else 1 if t in (52, 56, 60) else 0
    elif SCH == "F":
        queue += wol + xw + ffn
        cnt = lambda t: 2 if t <= 23 else 1 if t in (61, 62, 63) else 0
    nissued = 0
    if '--noprio' not in sys.argv: a('s_setprio 1')
    for t in range(64):
        cur, nxt = t & 1, (t + 1) & 1
        Sc, Sn = S + 16*cur, S + 16*nxt
        e = [f"v_exp_f32 v{Sc+i}, v{Sc+i}" for i in range(16)]
        n_ = cnt(t); side = sum(queue[:n_], []); queue = queue[n_:]
        if t == BAR_TILE: a(f"s_waitcnt vmcnt({nissued - 14})\ns_barrier")
        nissued += sum(1 for x in side if x.startswith("buffer"))
        if (t + 2 - base) * TILE + TILE > 65535:
            a(f"v_add_u32 v{KA}, {(t - base)*TILE}, v{KA}\nv_add_u32 v{VA}, {(t - base)*TILE}, v{VA}")
            base = t
        after = {i: [] for i in range(16)}
        side = [x for x in side if x]
        grp, curg = [], []
        for x in side:
            curg.append(x)
            if x.startswith("buffer"): grp.append(curg); curg = []
        if t > 0: after[1].append(f"{SMF} {vr(O,16)}, {vr(VF+8*nxt+4,4)}, {vr(Sn+8,8)}, v{IDX}")
        if t < 63:
            after[1].append(f"ds_read_b128 {vr(VF+8*nxt,4)}, v{VA} offset:{(t+1-base)*TILE}")
            after[5].append(f"{MF32} {vr(Sn,16)}, {vr(KF+4*nxt,4)}, {vr(Q,4)}, {vr(C,16)}")
        if t < 62: after[5].append(f"ds_read_b128 {vr(KF+4*cur,4)}, v{KA} offset:{(t+2-base)*TILE}")
        after[11].append(f"{SMF} {vr(O,16)}, {vr(VF+8*cur,4)}, {vr(Sc,8)}, v{IDX}")
        after[11].append("s_waitcnt lgkmcnt(0)")
        if t < 63: after[11].append(f"ds_read_b128 {vr(VF+8*nxt+4,4)}, v{VA} offset:{(t+1-base)*TILE+544}")
        for g, slot in zip(grp, (1, 5, 11) if len(grp) == 3 else (5, 11)): after[slot] += g
        assert len(grp) <= 3
        for i in range(16):
            a(e[i])
            for x in after[i]: a(x)
    a(f"""
    @S8
    @S14
    s_nop 1
    {SMF} {vr(O,16)}, {vr(VF+12,4)}, {vr(S+24,8)}, v{IDX}
    s_mov_b32 s48, {hex(f2u(2.0**110))}
    v_and_b32 v4, 7, v5
    v_mul_u32_u24 v4, 1040, v4
    v_lshrrev_b32 v7, 3, v5
    v_lshl_add_u32 v4, v7, 5, v4
    v_lshl_add_u32 v4, v6, 3, v4
    s_lshl_b32 s49, s{sW}, 7
    s_add_u32 s49, s49, {OB}
    v_add_u32 v4, s49, v4
    v_and_b32 v1, 7, v2
    v_mul_u32_u24 v0, 1040, v1
    v_lshrrev_b32 v7, 4, v2
    v_mul_f32 v3, 0, v{O}
    """)
    for r in range(1, 8): a(f"v_fma_f32 v3, v{O+r}, 0, v3")
    a(f"""
    v_add_f32 v3, v3, v{O+8}
    v_cmp_ngt_f32 vcc, s48, v3
    v_rcp_f32 v3, v{O+8}
    s_cmp_lg_u64 vcc, 0
    s_cbranch_scc1 L2_slow
    L2_epi:
    """)
    for r in range(8): a(f"v_mul_f32 v{O+r}, v3, v{O+r}")
    for r in range(4): a(f"v_cvt_pk_bf16_f32 v{O+r}, v{O+2*r}, v{O+2*r+1}")
    BA, PA = 101, 102
    a(f"""
    ds_write_b64 v4, {vr(O,2)}
    ds_write_b64 v4, {vr(O+2,2)} offset:16
    v_lshl_add_u32 v{BA}, v7, 4, v0
    v_add_u32 v{BA}, {OB}, v{BA}
    v_lshl_add_u32 v{PA}, v7, 3, v1
    v_lshlrev_b32 v{PA}, 6, v{PA}
    s_and_b32 s49, s{sW}, 3
    s_lshl_b32 s49, s49, 11
    s_add_u32 s49, s49, {PART}
    v_add_u32 v{PA}, s49, v{PA}
    s_waitcnt vmcnt(3)
    s_cmp_lt_u32 s{sW}, 4
    {'' if '--xnoold' in X_ else 's_cbranch_scc1 L2_old'}
    L2_join:
    @S7
    """)
    HF, T = 60, 68
    ACC = O
    BF = [Q, 28, 32, 36]
    a("v_mov_b32 v7, 0x3f803f80")
    for q in range(4): a(f"v_mov_b32 v{T+q}, 0")
    for j in range(4):
        a(f"v_lshlrev_b32 v{HF+2*j}, 16, v{XRES+j}\nv_and_b32 v{HF+2*j+1}, 0xffff0000, v{XRES+j}\nv_dot2c_f32_bf16 v{T+3}, v{WRV+j}, v7")
    a(f"""
    v_and_b32 v3, 8, v2
    v_cmp_ne_u32 vcc, 0, v3
    s_cmp_ge_u32 s{sW}, 4
    s_cselect_b64 s[62:63], -1, 0
    s_waitcnt lgkmcnt(0)
    s_barrier
    @S9
    @T2
    s_mov_b64 exec, s[62:63]
    """)
    for i in range(4): a(f"ds_read_b128 {vr(ACC+4*i,4)}, v{PA} offset:{16*i}")
    a("s_mov_b64 exec, -1")
    for ks in range(8, 12): a(f"ds_read_b128 {vr(BF[ks&3],4)}, v{BA} offset:{ks*64}")
    a(f"v_add_u32 v0, s45, v{LN16}")
    for ks in range(8, 16):
        a(f"s_waitcnt lgkmcnt({min(3, 15 - ks)})")
        for i in range(4):
            a(f"{MF16} {vr(ACC+4*i,4)}, {vr(WO+16*(ks-8)+4*i,4)}, {vr(BF[ks&3],4)}, {vr(ACC+4*i,4)}")
        if ks < 12: a(f"ds_read_b128 {vr(BF[ks&3],4)}, v{BA} offset:{(ks+4)*64}")
    a("s_waitcnt vmcnt(0)")
    for i in range(3): a(f"ds_write_b128 v0, {vr(FWR+4*i,4)} offset:{FW + i*8192}")
    A8, HB = 40, 48
    a(f"""
    v_lshrrev_b32 v3, 4, v2
    v_lshlrev_b32 v3, 8, v3
    v_lshl_add_u32 v3, v1, 5, v3
    s_lshl_b32 s49, s{sW}, 2
    s_add_u32 s49, s49, {RED}
    v_add_u32 v3, s49, v3
    v_lshlrev_b32 v4, 5, v1
    v_add_u32 v4, {RED}, v4
    s_add_u32 s49, s44, {WS_H}
    """)
    for j in range(8): a(f"v_cndmask_b32 v{A8+j}, v{ACC+j}, v{ACC+8+j}, vcc")
    for j in range(8): a(f"v_add_f32 v{HF+j}, v{HF+j}, v{A8+j}")
    for j in range(4): a(f"v_cvt_pk_bf16_f32 v{HB+j}, v{HF+2*j}, v{HF+2*j+1}")
    a(f"buffer_store_dwordx4 {vr(HB,4)}, v{XO}, s[{WS}:{WS+3}], s49 offen sc0 sc1")
    for j in range(4):
        a(f"""
        v_dot2c_f32_bf16 v{T}, v{HB+j}, v7
        v_dot2c_f32_bf16 v{T+1}, v{HB+j}, v{HB+j}
        v_dot2c_f32_bf16 v{T+2}, v{HB+j}, v{WRV+j}
        """)
    a(f"""
    v_lshlrev_b32 v{HF}, 16, v{HB}
    v_and_b32 v{HF+1}, 0xffff0000, v{HB}
    v_permlane32_swap_b32 v{T}, v{T+1}
    v_permlane32_swap_b32 v{T+2}, v{T+3}
    v_add_f32 v{T}, v{T}, v{T+1}
    v_add_f32 v{T+2}, v{T+2}, v{T+3}
    v_lshlrev_b32 v{HF+2}, 16, v{HB+1}
    v_and_b32 v{HF+3}, 0xffff0000, v{HB+1}
    v_permlane16_swap_b32 v{T}, v{T+2}
    v_add_f32 v{T}, v{T}, v{T+2}
    v_lshlrev_b32 v{HF+4}, 16, v{HB+2}
    v_and_b32 v{HF+5}, 0xffff0000, v{HB+2}
    v_add_f32_dpp v{T}, v{T}, v{T} row_ror:8 row_mask:0xf bank_mask:0xf
    ds_write_b32 v3, v{T}
    v_lshlrev_b32 v{HF+6}, 16, v{HB+3}
    v_and_b32 v{HF+7}, 0xffff0000, v{HB+3}
    """)
    KR = 128
    def kloads():
        for q in range(4): a(f"buffer_load_dwordx2 {vr(KR+2*q,2)}, v8, s[{WS}:{WS+3}], s48 offen offset:{q << KSH} sc1")
    a(f"""
    s_waitcnt lgkmcnt(0)
    s_barrier
    @S11
    """)
    R_ = 108
    for q in (0, 2, 1, 3):
        a(f"ds_read_b128 {vr(R_+8*q,4)}, v4 offset:{q*256}\nds_read_b128 {vr(R_+8*q+4,4)}, v4 offset:{q*256+16}")
    def sum8(b):
        a(f"""
        v_add_f32 v{b}, v{b}, v{b+1}
        v_add_f32 v{b+2}, v{b+2}, v{b+3}
        v_add_f32 v{b+4}, v{b+4}, v{b+5}
        v_add_f32 v{b+6}, v{b+6}, v{b+7}
        v_add_f32 v{b}, v{b}, v{b+2}
        v_add_f32 v{b+4}, v{b+4}, v{b+6}
        v_add_f32 v{b}, v{b}, v{b+4}
        """)
    s1, s3, s2, s4 = R_, R_+8, R_+16, R_+24
    ST = 76
    OV = 80
    a("s_waitcnt lgkmcnt(4)")
    sum8(s1); sum8(s2)
    a(f"""
    v_mul_f32 v{ST}, {hex(f2u(1.0/512))}, v{s1}
    v_mul_f32 v{s2}, {hex(f2u(1.0/512))}, v{s2}
    v_fma_f32 v{s2}, -v{ST}, v{ST}, v{s2}
    v_max_f32 v{s2}, 0, v{s2}
    v_add_f32 v{s2}, {hex(f2u(EPS))}, v{s2}
    v_rsq_f32 v{ST+1}, v{s2}
    s_cmp_lg_u32 s{sW}, 0
    s_cbranch_scc1 L2_nokey
    s_waitcnt lgkmcnt(0)
    """)
    sum8(s3); sum8(s4)
    AF, BFR, STT, D, D2 = 140, 12, 204, 208, 212
    breg = lambda q: 12 + 4*q if q < 7 else 216 + 4*(q - 7)
    a(f"""
    v_fma_f32 v{s3}, -v{ST}, v{s4}, v{s3}
    s_lshl_b32 s48, s{sG}, 3
    v_add_u32 v4, s48, v1
    v_mul_f32 v{ST+2}, v{ST+1}, v{s3}
    v_mov_b32 v{ST+3}, s{sEP}
    v_lshlrev_b32 v0, 4, v4
    s_mov_b32 s48, {WS_ST}
    s_mov_b64 exec, 0xff
    buffer_store_dwordx4 {vr(ST,4)}, v0, s[{WS}:{WS+3}], s48 offen sc0 sc1
    s_mov_b64 exec, -1
    v_ashrrev_i32 v3, 31, v{ST+2}
    v_or_b32 v3, 0x80000000, v3
    v_xor_b32 v3, v3, v{ST+2}
    v_and_b32 v3, 0xfffff800, v3
    v_sub_u32 v4, 2047, v4
    v_or_b32 v4, v3, v4
    s_lshl_b32 s48, s2, {KSH}
    s_add_u32 s48, s48, {WS_KEY}
    v_mov_b32_dpp v6, v4 quad_perm:[1,0,3,2] row_mask:0xf bank_mask:0xf
    v_mov_b32 v0, 0
    v_min_u32 v5, v4, v6
    v_max_u32 v4, v4, v6
    """)
    for dpp in ("quad_perm:[2,3,0,1]", "row_half_mirror"):
        a(f"""
        s_nop 0
        v_mov_b32_dpp v3, v5 {dpp} row_mask:0xf bank_mask:0xf
        v_mov_b32_dpp v6, v4 {dpp} row_mask:0xf bank_mask:0xf
        v_max_u32 v5, v5, v3
        v_med3_u32 v5, v4, v5, v6
        v_max_u32 v4, v4, v6
        """)
    a(f"""
    s_waitcnt vmcnt(1)
    s_barrier
    s_mov_b64 exec, 1
    buffer_store_dwordx2 v[4:5], v0, s[{WS}:{WS+3}], s48 offen sc0 sc1
    s_mov_b64 exec, -1
    @S5
    """)
    def outval():
        a(f"v_add_f32 v3, 1.0, v{ST+1}\nv_mul_f32 v6, v{ST}, v{ST+1}")
        for j in range(8): a(f"v_fma_f32 v{A8+j}, v{HF+j}, v3, -v6")
        for j in range(4): a(f"v_cvt_pk_bf16_f32 v{OV+j}, v{A8+2*j}, v{A8+2*j+1}")
    a(f"v_lshlrev_b32 v8, {KSH + 2}, v2\ns_mov_b32 s48, {WS_KEY}")
    if "--knoack" in sys.argv: kloads()
    ROWS = 40960
    a(f"""
    v_and_b32 v9, 15, v2
    v_lshrrev_b32 v11, 4, v2
    v_lshrrev_b32 v10, 2, v9
    v_lshl_add_u32 v10, v11, 7, v10
    v_lshlrev_b32 v10, 4, v10
    v_and_b32 v0, 1, v9
    v_lshl_add_u32 v10, v0, 3, v10
    v_and_b32 v3, 2, v9
    v_lshl_add_u32 v10, v3, 12, v10
    """)
    for q in range(7): a(f"ds_read_b64_tr_b16 {vr(AF+4*q,2)}, v10 offset:{FW + q*128}\nds_read_b64_tr_b16 {vr(AF+4*q+2,2)}, v10 offset:{FW + q*128 + 64}")
    outval()
    a("s_waitcnt lgkmcnt(0)")
    for q in range(7, 14): a(f"ds_read_b64_tr_b16 {vr(AF+4*q,2)}, v10 offset:{FW + q*128}\nds_read_b64_tr_b16 {vr(AF+4*q+2,2)}, v10 offset:{FW + q*128 + 64}")
    a(f"v_mov_b32 v252, v7\nv_mov_b32 v253, v7\nv_mov_b32 v254, v7\nv_mov_b32 v255, v7\ns_waitcnt lgkmcnt(4)")
    for q in range(14, 16): a(f"ds_read_b64_tr_b16 {vr(AF+4*q,2)}, v10 offset:{FW + q*128}\nds_read_b64_tr_b16 {vr(AF+4*q+2,2)}, v10 offset:{FW + q*128 + 64}")
    if "--knoack" not in sys.argv: a("s_waitcnt vmcnt(0)"); kloads()
    a(f"""
    v_cmp_eq_u32 s[10:11], 1, v0
    v_mul_u32_u24 v10, 1040, v0
    v_lshl_add_u32 v10, v11, 8, v10
    v_lshlrev_b32 v{R_}, 4, v0
    v_lshl_add_u32 v{R_}, v11, 3, v{R_}
    s_mov_b32 s49, 0
    s_mov_b32 s46, 0
    s_mov_b32 s47, 0
    s_mov_b32 s51, {WS_ST}
    s_waitcnt lgkmcnt(0)
    """)
    for q in range(16): a(f"{MF16} {vr(D2,4)}, {vr(AF+4*q,4)}, v[252:255], {'0' if q == 0 else vr(D2,4)}")
    a(f"""
    L2_kpoll:
    s_waitcnt vmcnt(0)
    v_min_u32 v0, v{KR}, v{KR+2}
    v_min3_u32 v0, v{KR+4}, v{KR+6}, v0
    v_cmp_eq_u32 s[62:63], 0, v0
    s_add_u32 s49, s49, 1
    s_cmp_gt_u32 s49, 0x40000
    s_cselect_b64 s[62:63], 0, s[62:63]
    v_max_u32 v4, v{KR}, v{KR+2}
    v_min_u32 v5, v{KR}, v{KR+2}
    v_max3_u32 v5, v5, v{KR+1}, v{KR+3}
    v_med3_u32 v5, v4, v5, v{KR+4}
    v_max_u32 v4, v4, v{KR+4}
    v_med3_u32 v5, v4, v5, v{KR+6}
    v_max_u32 v4, v4, v{KR+6}
    v_max3_u32 v5, v5, v{KR+5}, v{KR+7}
    s_mov_b64 exec, s[62:63]
    s_cbranch_execz L2_klast
    """)
    kloads()
    a("L2_klast:\ns_mov_b64 exec, -1")
    for dpp in ("quad_perm:[1,0,3,2]", "quad_perm:[2,3,0,1]", "row_half_mirror", "row_mirror"):
        a(f"""
        v_mov_b32_dpp v3, v5 {dpp} row_mask:0xf bank_mask:0xf
        v_mov_b32_dpp v6, v4 {dpp} row_mask:0xf bank_mask:0xf
        v_max_u32 v5, v5, v3
        v_med3_u32 v5, v4, v5, v6
        v_max_u32 v4, v4, v6
        s_nop 0
        """)
    for sw in ("v_permlane16_swap_b32", "v_permlane32_swap_b32"):
        a(f"""
        v_mov_b32 v3, v5
        v_mov_b32 v6, v4
        s_nop 0
        {sw} v5, v3
        {sw} v4, v6
        v_max_u32 v5, v5, v3
        v_med3_u32 v5, v4, v5, v6
        v_max_u32 v4, v4, v6
        """)
    a(f"""
    v_readfirstlane_b32 s53, v5
    v_readfirstlane_b32 s52, v4
    v_cndmask_b32 v3, v4, v5, s[10:11]
    v_not_b32 v3, v3
    s_cmp_eq_u64 s[52:53], s[46:47]
    s_cbranch_scc1 L2_ksame
    s_mov_b64 s[46:47], s[52:53]
    s_cmp_ge_u32 s2, 176
    s_cbranch_scc1 L2_ksame
    s_andn2_b32 s54, 0x7ff, s52
    s_andn2_b32 s55, 0x7ff, s53
    s_lshl_b32 s54, s54, 10
    s_lshl_b32 s55, s55, 10
    s_add_u32 s54, s54, {WS_H}
    s_add_u32 s55, s55, {WS_H}
    s_mov_b32 m0, {ROWS}
    v_and_b32 v3, 0x7ff, v3
    buffer_load_dwordx4 v{LN16}, s[{WS}:{WS+3}], s54 offen sc1 lds
    s_mov_b32 m0, {ROWS + 1040}
    v_lshlrev_b32 v9, 4, v3
    buffer_load_dwordx4 v{LN16}, s[{WS}:{WS+3}], s55 offen sc1 lds
    buffer_load_dwordx4 {vr(STT,4)}, v9, s[{WS}:{WS+3}], s51 offen sc1
    L2_ksame:
    s_cmp_lg_u64 s[62:63], 0
    s_cbranch_scc1 L2_kpoll
    @S6
    v_mov_b32 v0, {CNT + 16}
    ds_write_b64 v0, v[4:5]
    s_cmp_ge_u32 s2, 176
    s_cbranch_scc1 L2_bc
    s_cmp_ge_u32 s64, 172
    s_cselect_b32 s48, 0x100000, s64
    s_lshl_b32 s48, s48, {ASH}
    s_add_u32 s48, s48, {WS_ACT}
    s_waitcnt vmcnt(1)
    """)
    for q in range(12): a(f"ds_read_b128 {vr(breg(q),4)}, v10 offset:{ROWS + q*16}")
    for q in range(16):
        a(f"s_waitcnt lgkmcnt({min(11, 15 - q)})")
        a(f"{MF16} {vr(D,4)}, {vr(AF+4*q,4)}, {vr(breg(q),4)}, {'0' if q == 0 else vr(D,4)}")
        if q < 4: a(f"ds_read_b128 {vr(breg(q+12),4)}, v10 offset:{ROWS + (q+12)*16}")
    E = R_ + 8
    a(f"""
    L2_stw:
    s_waitcnt vmcnt(0)
    v_cmp_ne_u32 vcc, s{sEP}, v{STT+3}
    s_nop 2
    s_cbranch_vccnz L2_stre
    L2_stok:
    s_nop 1
    """)
    for r in range(4): a(f"v_fma_f32 v{D+r}, -v{STT}, v{D2+r}, v{D+r}")
    for r in range(4): a(f"v_mul_f32 v{D+r}, v{D+r}, v{STT+1}")
    for r in range(4): a(f"v_mov_b32 v{E+4+r}, v{D+r}")
    for r in range(4): a(f"v_mul_f32 v{E+r}, {hex(f2u(-LOG2E))}, v{D+r}")
    for r in range(4): a(f"v_exp_f32 v{E+r}, v{E+r}")
    for r in range(4): a(f"v_permlane32_swap_b32 v{D+r}, v{E+4+r}")
    for r in range(4): a(f"v_add_f32 v{E+r}, 1.0, v{E+r}")
    for r in range(4): a(f"v_rcp_f32 v{E+r}, v{E+r}")
    for r in range(4): a(f"v_mul_f32 v{D+r}, v{D+r}, v{E+4+r}")
    for r in range(4): a(f"v_mul_f32 v{D+r}, v{D+r}, v{E+r}")
    a(f"""
    v_cvt_pk_bf16_f32 v{R_+2}, v{D}, v{D+1}
    v_cvt_pk_bf16_f32 v{R_+3}, v{D+2}, v{D+3}
    s_mov_b64 exec, 0x00030003
    buffer_store_dwordx2 {vr(R_+2,2)}, v{R_}, s[{WS}:{WS+3}], s48 offen sc0 sc1
    s_mov_b64 exec, -1
    @S10
    s_branch L2_bc
    L2_stre:
    s_add_u32 s49, s49, 1
    s_cmp_gt_u32 s49, 0x40000
    s_cbranch_scc1 L2_stok
    buffer_load_dwordx4 {vr(STT,4)}, v9, s[{WS}:{WS+3}], s51 offen sc1
    s_branch L2_stw
    L2_nokey:
    """)
    outval()
    a("s_waitcnt vmcnt(0)\ns_barrier")
    BFR = 164
    a(f"""
    L2_bc:
    v_and_b32 v9, 15, v2
    v_lshrrev_b32 v10, 2, v9
    v_lshrrev_b32 v11, 4, v2
    v_lshl_add_u32 v10, v11, 3, v10
    v_lshlrev_b32 v10, 4, v10
    v_and_b32 v8, 1, v9
    v_lshl_add_u32 v10, v8, 3, v10
    s_mul_i32 s49, s45, 3
    v_add_u32 v10, s49, v10
    """)
    for s_ in range(6):
        a(f"ds_read_b64_tr_b16 {vr(AF+4*s_,2)}, v10 offset:{FW + s_*512}\nds_read_b64_tr_b16 {vr(AF+4*s_+2,2)}, v10 offset:{FW + s_*512 + 64}")
    a(f"""
    v_mov_b32 v0, {CNT + 16}
    s_lshl_b32 s48, s{sG}, 3
    v_add_u32 v8, s48, v1
    s_waitcnt lgkmcnt(0)
    s_barrier
    ds_read_b64 v[4:5], v0
    s_waitcnt lgkmcnt(0)
    v_not_b32 v4, v4
    v_not_b32 v5, v5
    v_and_b32 v4, 0x7ff, v4
    v_and_b32 v5, 0x7ff, v5
    v_cmp_ne_u32 vcc, v4, v8
    v_cmp_ne_u32 s[62:63], v5, v8
    s_and_b64 exec, vcc, s[62:63]
    buffer_store_dwordx4 {vr(OV,4)}, v{XO}, s[{OUT}:{OUT+3}], s44 offen {OSC}
    s_mov_b64 exec, -1
    s_sub_u32 s48, s2, 176
    s_cmp_lt_u32 s48, 64
    s_cbranch_scc1 L2_st2
    L2_fin:
    @D0 15 {WS} {sW}
    s_endpgm
    """)
    a("L2_st2:")
    a(f"""
    v_and_b32 v6, 8, v2
    v_cmp_ne_u32 vcc, 0, v6
    s_mov_b32 s48, {WS_H}
    s_mov_b32 s51, {WS_ST}
    v_cndmask_b32 v3, v4, v5, vcc
    v_lshlrev_b32 v12, 10, v3
    v_lshl_add_u32 v12, v1, 1, v12
    v_add_u32 v12, s61, v12
    v_lshlrev_b32 v18, 4, v3
    buffer_load_ushort v13, v12, s[{WS}:{WS+3}], s48 offen sc1
    v_and_b32 v6, 1, v2
    v_lshlrev_b32 v0, {ASH}, v11
    v_lshl_add_u32 v0, v6, 4, v0
    s_mul_i32 s48, s{sW}, {24 << ASH}
    s_add_u32 s48, s48, {WS_ACT}
    s_mov_b32 s49, 0
    L2_apoll:
    buffer_load_dwordx4 {vr(STT,4)}, v18, s[{WS}:{WS+3}], s51 offen sc1
    """)
    for s_ in range(6):
        a(f"buffer_load_dwordx4 {vr(BFR+4*s_,4)}, v0, s[{WS}:{WS+3}], s48 offen offset:{s_*(4 << ASH)} sc1")
    a(f"s_add_u32 s49, s49, 1\ns_waitcnt vmcnt(0)\nv_max3_u32 v3, v{BFR}, v{BFR+1}, v{BFR+2}")
    for q in range(3, 23, 2): a(f"v_max3_u32 v3, v{BFR+q}, v{BFR+q+1}, v3")
    a(f"""
    v_max_u32 v3, v{BFR+23}, v3
    v_cmp_eq_u32 vcc, -1, v3
    v_cmp_ne_u32 s[62:63], s{sEP}, v{STT+3}
    s_cmp_gt_u32 s49, 0x40000
    s_cbranch_scc1 L2_agot
    s_or_b64 {'exec' if '--amask' in sys.argv else 'vcc'}, vcc, s[62:63]
    s_cbranch_scc0 L2_agot
    {SLEEP}
    s_branch L2_apoll
    L2_agot:
    s_mov_b64 exec, -1
    @S10
    """)
    for s_ in range(6): a(f"{MF16} {vr(D,4)}, {vr(AF+4*s_,4)}, {vr(BFR+4*s_,4)}, {'0' if s_ == 0 else vr(D,4)}")
    a(f"""
    v_and_b32 v3, 1, v11
    v_lshlrev_b32 v0, 5, v6
    v_lshl_add_u32 v0, v3, 4, v0
    s_lshl_b32 s48, s{sW}, 6
    s_add_u32 s48, s48, {FR}
    v_add_u32 v0, s48, v0
    v_lshlrev_b32 v10, 2, v9
    v_lshl_add_u32 v10, v11, 7, v10
    v_add_u32 v10, {FR}, v10
    ds_write_b128 v0, {vr(D,4)}
    s_waitcnt lgkmcnt(0)
    s_barrier
    s_cmp_lg_u32 s{sW}, 0
    s_cbranch_scc1 L2_fin
    ds_read2_b32 v[14:15], v10 offset0:0 offset1:16
    v_mul_f32 v16, {hex(f2u(-LOG2E))}, v{STT+2}
    v_exp_f32 v16, v16
    v_lshlrev_b32 v13, 16, v13
    v_add_f32 v16, 1.0, v16
    v_rcp_f32 v16, v16
    v_sub_f32 v17, v13, v{STT}
    v_fma_f32 v13, v17, v{STT+1}, v13
    s_waitcnt lgkmcnt(0)
    v_add_f32 v14, v14, v15
    v_mov_b32 v15, v14
    s_nop 1
    v_permlane32_swap_b32 v14, v15
    v_add_f32 v14, v14, v15
    v_mov_b32 v15, v14
    s_nop 1
    v_permlane16_swap_b32 v14, v15
    v_add_f32 v14, v14, v15
    v_fma_f32 v14, v14, v16, v13
    v_cvt_pk_bf16_f32 v14, v14, v14
    s_mov_b64 exec, 0xffff
    buffer_store_short v14, v12, s[{OUT}:{OUT+3}], 0 offen {OSC}
    @Q {WS}
    @D0 15 {WS} {sW}
    L2_end:
    s_endpgm
    """)
    AB = 12
    def wl(reg, sb, f):
        a(f"buffer_load_dwordx4 {vr(reg,4)}, v{LN16}, s[{WS}:{WS+3}], s{sb} offen offset:{(f & 3)*1024} sc1")
        if f % 4 == 3: a(f"s_add_u32 s{sb}, s{sb}, 4096")
    NE = 11
    breg = lambda f: 40 + 4*f if f < NE else WO + 4*(f - NE)
    a(f"""
    L2_old:
    s_setprio 0
    v_mov_b32 v3, {CNT}
    v_mov_b32 v4, 1
    s_waitcnt lgkmcnt(0)
    s_mov_b64 exec, 1
    ds_add_u32 v3, v4
    s_mov_b64 exec, -1
    s_add_u32 s48, s51, {4*65536}
    """)
    for f in range(NE): wl(breg(f), 48, f)
    a(f"""
    L2_spin:
    ds_read_b32 v4, v3
    s_waitcnt lgkmcnt(0)
    v_readfirstlane_b32 s49, v4
    s_cmp_ge_u32 s49, 4
    s_cbranch_scc1 L2_go
    s_sleep 2
    s_branch L2_spin
    L2_go:
    """)
    def half(acc, reg, after):
        for ks in range(3): a(f"ds_read_b128 {vr(BF[ks&3],4)}, v{BA} offset:{ks*64}")
        for ks in range(8):
            if ks + 3 < 8: a(f"ds_read_b128 {vr(BF[(ks+3)&3],4)}, v{BA} offset:{(ks+3)*64}")
            after(ks, 0)
            for i in range(4):
                a(f"{MF16} {vr(acc+4*i,4)}, {vr(reg(4*ks+i),4)}, {vr(BF[ks&3],4)}, {'0' if ks == 0 else vr(acc+4*i,4)}")
            after(ks, 1)
    a(f"s_add_u32 s49, s51, {32768 + ((32 - NE)//4)*4096}")
    def aftA(ks, post):
        if not post: a(f"s_waitcnt lgkmcnt({min(3, 7-ks)})"); return
        for slot in range(4*ks, 4*ks + 4):
            if slot < 32 - NE: wl(WO + 4*slot, 48, slot + NE)
            else: wl(WO + 4*slot, 49, slot)
    half(ACC, lambda f: WO + 4*f, aftA)
    a(f"s_add_u32 s49, s51, 32768")
    def aftB(ks, post):
        if not post:
            done = sum(1 for f in range(NE, 4*ks))
            a(f"s_waitcnt lgkmcnt({min(3, 7-ks)}) vmcnt({min(63, (31 - (4*ks+3)) + NE + done)})"); return
        for f in range(4*ks, 4*ks + 4):
            if f >= NE: wl(WO + 4*(f - NE), 49, f - NE)
    half(AB, breg, aftB)
    a("s_nop 3")
    for i in range(4): a(f"ds_write_b128 v{PA}, {vr(AB+4*i,4)} offset:{16*i}")
    a("s_waitcnt vmcnt(0)\ns_setprio 1\ns_branch L2_join")
    a(f"""
    L2_slow:
    v_mov_b32 v{KA}, v{LN16}
    v_mov_b32 v{M}, 0xff7fffff
    s_mov_b32 s{sN}, 64
    L2_maxloop:
    ds_read_b128 {vr(KF,4)}, v{KA}
    v_add_u32 v{KA}, {TILE}, v{KA}
    s_waitcnt lgkmcnt(0)
    {MF32} {vr(S,16)}, {vr(KF,4)}, {vr(Q,4)}, 0
    s_sub_u32 s{sN}, s{sN}, 1
    s_nop 10
    """)
    for r in range(8): a(f"v_max3_f32 v{M}, v{S+2*r}, v{S+2*r+1}, v{M}")
    a(f"""
    s_cmp_lg_u32 s{sN}, 0
    s_cbranch_scc1 L2_maxloop
    v_mov_b32 v3, v{M}
    v_mov_b32 v{KA}, v{LN16}
    v_mov_b32 v{VA}, v{VA0}
    v_permlane32_swap_b32 v{M}, v3
    v_max_f32 v{M}, v{M}, v3
    """)
    for r in range(16): a(f"v_sub_f32 v{C+r}, 0, v{M}\nv_mov_b32 v{O+r}, 0")
    a(f"""
    s_mov_b32 s{sN}, 64
    L2_slowloop:
    ds_read_b128 {vr(KF,4)}, v{KA}
    ds_read_b128 {vr(VF,4)}, v{VA}
    ds_read_b128 {vr(VF+4,4)}, v{VA} offset:544
    v_add_u32 v{KA}, {TILE}, v{KA}
    v_add_u32 v{VA}, {TILE}, v{VA}
    s_waitcnt lgkmcnt(0)
    {MF32} {vr(S,16)}, {vr(KF,4)}, {vr(Q,4)}, {vr(C,16)}
    s_sub_u32 s{sN}, s{sN}, 1
    s_nop 10
    """)
    for i in range(16): a(f"v_exp_f32 v{S+i}, v{S+i}")
    a(f"""
    s_nop 1
    {SMF} {vr(O,16)}, {vr(VF,4)}, {vr(S,8)}, v{IDX}
    {SMF} {vr(O,16)}, {vr(VF+4,4)}, {vr(S+8,8)}, v{IDX}
    s_cmp_lg_u32 s{sN}, 0
    s_cbranch_scc1 L2_slowloop
    s_nop 11
    v_rcp_f32 v3, v{O+8}
    s_branch L2_epi
    """)
    k1_cold(a)
    return desc(KNAME, 256, 70)
def main():
    hdr = open("sequential_preLN__grouped_kv_mqa__moe_arch_mod__prompt.s.ref").read().split("\n")
    top = [l for l in hdr if l.startswith(";") and "@launch" not in l and "Override" not in l and "grid=ceil" not in l]
    a = Asm()
    k1(a)
    d = k2(a)
    out = "\n".join(top) + "\n"
    out += f"; @launch grid=(256,1,1) block=(512,1,1) lds={max(K1_LDS, K2_LDS)}\n"
    out += '.amdgcn_target "amdgcn-amd-amdhsa--gfx950"\n.text\n' + a.text() + '.section .rodata,"a"\n' + d
    sys.stdout.write(out)
main()
```

```python
import sys, struct
def f2u(x): return struct.unpack("<I", struct.pack("<f", x))[0]

WS_Q   = 0
WS_KV  = 2 << 20
WS_WO  = 3 << 20
WS_H   = 4 << 20

WS_ST  = (6 << 20) + 0x10000
WS_ACT = (6 << 20) + 0x20000
WS_KEY = WS_ACT + 0x10000
KSH = 7; ASH = 7; FSH = 7
for _x in sys.argv:
    if _x.startswith('--ksh='): KSH = int(_x.split('=')[1])
    if _x.startswith('--fsh='): FSH = int(_x.split('=')[1])
    if _x.startswith('--ash='): ASH = int(_x.split('=')[1])
WS_FLG = WS_KEY + 0x10000
WS_QB = 7 << 20
sEP = 68
KNAME = 'sequential_preLN__grouped_kv_mqa__moe_arch_mod__prompt_kernel'
WS_SIZE = 8 << 20
TILE = 2112
QSCALE = 0.25 * 1.4426950408889634
EPS = 1e-5
SHIFT = 96.0
for _x in sys.argv:
    if _x.startswith('--shift='): SHIFT = float(_x.split('=')[1])

class Asm:
    def __init__(self): self.l = []
    def __call__(self, s):
        for x in s.split("\n"):
            x = x.strip()
            if x.startswith("@S"): stamp(self, int(x[2:])); continue
            if x.startswith("@P"): padstore(self, *[int(t) for t in x[2:].split()]); continue
            if x.startswith("@Q"): padspin(self, *[int(t) for t in x[2:].split()]); continue
            if x.startswith("@T"): padstamp(self, int(x[2:])); continue
            if x.startswith("@D"): dump(self, *[int(t) for t in x[2:].split()]); continue
            if x: self.l.append(("" if x.endswith(":") else "    ") + x)
    def text(self): return "\n".join(self.l) + "\n"

def srd(a, d, p, size):
    a(f"s_mov_b32 s{d}, s{p}\ns_and_b32 s{d+1}, s{p+1}, 0xffff\ns_mov_b32 s{d+2}, {size}\ns_mov_b32 s{d+3}, 0x20000")
def vr(b, n): return f"v[{b}:{b+n-1}]"
def head(a, name):
    a(f".globl {name}\n.p2align 8\n.type {name},@function\n{name}:")
def desc(name, nv, ns):
    return f""".p2align 6
.amdhsa_kernel {name}
  .amdhsa_next_free_vgpr {nv}
  .amdhsa_next_free_sgpr {100 if (DIAG or PAD is not None) else ns}
  .amdhsa_accum_offset {(nv+3)//4*4}
  .amdhsa_group_segment_fixed_size 0
  .amdhsa_kernarg_size 104
  .amdhsa_user_sgpr_count 2
  .amdhsa_user_sgpr_kernarg_segment_ptr 1
  .amdhsa_system_sgpr_workgroup_id_x 1
.end_amdhsa_kernel
"""
DIAG = "--diag" in sys.argv
WS_DIAG = 16 << 20
if DIAG: WS_SIZE = 32 << 20
LIGHT = '--light' in sys.argv
def stamp(a, i, force=False):
    if LIGHT and i != 0 and not force: return
    if DIAG: a(f"{'s_memtime' if i >= 13 else 's_memrealtime'} s[{70+2*i}:{71+2*i}]\ns_waitcnt lgkmcnt(0)")
DIAG2 = "--diag2" in sys.argv
D2SEL = {0: [(0, 1), (2, 0), (8, 0)], 1: [(0, 1), (1, 0), (3, 0), (4, 0), (8, 0), (10, 0), (12, 0)], 2: [(0, 1), (1, 0), (3, 0), (5, 0), (6, 0), (7, 0)]}
_dl = [0]
def dump(a, kidx, n, WS, sW):
    if not DIAG: return
    stamp(a, min(n - 1, 12), True)
    if DIAG2:
        _dl[0] += 1
        base = sum(len(D2SEL[k]) for k in range(kidx))
        a(f"s_and_b32 s98, s2, 15\ns_cmp_lg_u32 s98, 0\ns_cbranch_scc1 LD_{_dl[0]}\ns_load_dwordx2 s[98:99], s[0:1], 88\ns_mov_b64 exec, 1\nv_mov_b32 v1, 0\ns_waitcnt lgkmcnt(0)\ns_add_u32 s98, s98, {512*(2-kidx)}\ns_addc_u32 s99, s99, 0")
        for j, (i, inv) in enumerate(D2SEL[kidx]):
            a(f"v_mov_b32 v0, s{70+2*i}")
            if inv: a("v_not_b32 v0, v0")
            a(f"global_atomic_umax v1, v0, s[98:99] offset:{4*(base+j)}\ns_nop 1")
        a(f"LD_{_dl[0]}:")
        return
    a(f"s_mov_b64 exec, 1\ns_lshl_b32 s69, s2, 4\ns_add_u32 s69, s69, s{sW}\ns_lshl_b32 s69, s69, 6\ns_add_u32 s69, s69, {WS_DIAG + kidx * (1 << 20)}\nv_mov_b32 v1, 0")
    for i in range(n):
        a(f"v_mov_b32 v0, s{70+2*i}\nbuffer_store_dword v0, v1, s[{WS}:{WS+3}], s69 offen offset:{4*i}")
PAD = [int(x.split("=")[1]) for x in sys.argv if x.startswith("--pad=")]
PAD = PAD[0] if PAD else None
WS_PAD = (6 << 20)
def padstamp(a, k):
    if PAD == k: a("s_memrealtime s[94:95]\ns_waitcnt lgkmcnt(0)")
def padstore(a, k, WS, sW): pass
def padspin(a, WS):
    if PAD is None: return
    a(f"s_mov_b32 s97, 0\nLQ_spin:\ns_memrealtime s[92:93]\ns_waitcnt lgkmcnt(0)\ns_sub_u32 s98, s92, s94\ns_add_u32 s97, s97, 1\ns_cmp_gt_u32 s97, 100000\ns_cbranch_scc1 LQ_done\ns_cmp_lt_u32 s98, 6000\ns_cbranch_scc1 LQ_spin\nLQ_done:")
MF32 = "v_mfma_f32_32x32x16_bf16"
MF16 = "v_mfma_f32_16x16x32_bf16"

ZERO_KB = 8
K1_KV = 131072
K1_CS = 147456
K1_KC = K1_CS + 1024
K1_KP = K1_KC + 1024
K1_PS = K1_KP + 4096
K1_EP = K1_PS + 1024
K1_LDS = K1_EP + 64
QSC = 'sc1' if '--qsc1' in sys.argv else '' if '--qplain' in sys.argv else 'sc0 sc1'
CODE_SPAN = 18600
def rowstat(a, s, m, r):
    a(f"""
    v_add_f32 v{m}, v{s}, v{s+2}
    v_add_f32 v{r}, v{s+1}, v{s+3}
    v_mul_f32 v{m}, {hex(f2u(-1.0/512))}, v{m}
    v_mul_f32 v{r}, {hex(f2u(1.0/512))}, v{r}
    v_fma_f32 v{r}, -v{m}, v{m}, v{r}
    v_max_f32 v{r}, 0, v{r}
    v_add_f32 v{r}, {hex(f2u(EPS))}, v{r}
    v_rsq_f32 v{r}, v{r}
    """)
def split_ab(a, src, dst, kind):
    a(f"v_and_b32 v11, 0xffff0000, v{src}\nv_sub_f32 v12, v{src}, v11")
    if kind == "m": a(f"v_cvt_pk_bf16_f32 v{dst}, v11, v12\nv_cvt_pk_bf16_f32 v{dst+1}, v11, 0")
    else: a(f"v_cvt_pk_bf16_f32 v{dst}, v11, v11\nv_cvt_pk_bf16_f32 v{dst+1}, v12, 0")
def k1(a):
    X, WQ, WKV, WO, WS = 16, 20, 24, 32, 36
    sW, sTG, sCG = 40, 41, 42
    DBG = 28
    ONES = 69
    VL = 13
    head(a, KNAME)
    a(f"""
    s_cmp_ge_u32 s2, 256
    s_cbranch_scc1 L2_end
    @S0
    @T0
    s_load_dwordx8 s[4:11], s[0:1], 0
    s_load_dwordx2 s[12:13], s[0:1], 32
    s_load_dwordx2 s[14:15], s[0:1], 96
    s_load_dwordx2 s[64:65], s[0:1], 88
    v_lshrrev_b32 v1, 6, v0
    v_and_b32 v2, 63, v0
    v_readfirstlane_b32 s{sW}, v1
    s_and_b32 s43, s2, 7
    s_lshr_b32 s44, s2, 3
    s_and_b32 s45, s44, 3
    s_lshl_b32 s{sTG}, s43, 2
    s_add_u32 s{sTG}, s{sTG}, s45
    s_lshr_b32 s{sCG}, s44, 2
    v_and_b32 v3, 15, v2
    v_lshrrev_b32 v4, 4, v2
    v_lshlrev_b32 v{VL}, 4, v2
    s_and_b32 s46, s{sW}, 3
    s_lshl_b32 s50, s46, 12
    s_and_b32 s58, s{sCG}, 3
    s_cmp_lt_u32 s{sW}, 4
    s_cbranch_scc1 L1_gemm
    """)
    VX, VW, WT, CS, WR, XR = 8, 12, 24, 70, 48, 32
    pass
    for i in range(4):
        a(f"v_add_u32 v7, {4*i}, v4\nv_xor_b32 v{VX+i}, v7, v3\nv_lshlrev_b32 v{VX+i}, 4, v{VX+i}\nv_lshl_add_u32 v{VX+i}, v7, 10, v{VX+i}")
    a(f"""
    v_lshrrev_b32 v7, 3, v2
    v_and_b32 v{VW}, 1, v4
    v_lshlrev_b32 v{VW}, 2, v{VW}
    v_and_b32 v14, 7, v2
    v_xor_b32 v{VW}, v{VW}, v14
    v_lshlrev_b32 v{VW}, 4, v{VW}
    v_lshl_add_u32 v{VW}, v7, 10, v{VW}
    s_lshl_b32 s48, s{sTG}, 16
    s_lshl_b32 s43, s46, 14
    s_add_u32 s48, s48, s43
    s_lshl_b32 s49, s46, 15
    s_lshl_b32 s43, s{sCG}, 7
    s_add_u32 s49, s49, s43
    {'s_mov_b32 s55, 0' if '--norot' in sys.argv else f's_add_u32 s55, s{sCG}, s{sTG}'}
    s_waitcnt lgkmcnt(0)
    """)
    srd(a, X, 4, 2 << 20)
    def chunk(c, sh): a(f"s_add_u32 s43, s55, {c}\ns_and_b32 s43, s43, 3\ns_lshl_b32 s43, s43, {sh}")
    def issx(c):
        chunk(c, 8); a("s_add_u32 s51, s48, s43")
        for i in range(4):
            a(f"s_add_u32 m0, s50, {c*16384 + i*1024}\ns_nop 0\nbuffer_load_dwordx4 v{VX+i}, s[{X}:{X+3}], s51 offen lds")
    def issw(c):
        chunk(c, 17); a("s_add_u32 s51, s49, s43")
        for i in range(4):
            a(f"s_add_u32 m0, s50, {65536 + c*16384 + i*1024}\ns_add_u32 s52, s51, {8*i*1024}\nbuffer_load_dwordx4 v{VW}, s[{WQ}:{WQ+3}], s52 offen lds")
    def isskv(c):
        chunk(c, 12)
        a(f"s_add_u32 m0, s61, {K1_KV + c*4096}\ns_add_u32 s52, s61, s43\nbuffer_load_dwordx4 v{VL}, s[{WKV}:{WKV+3}], s52 offen lds")
    issx(0)
    a(f"s_cmp_ge_u32 s{sCG}, 4\ns_cselect_b32 s8, s10, s8\ns_cselect_b32 s9, s11, s9\ns_lshl_b32 s61, s46, 10")
    srd(a, WKV, 8, 16 << 10)
    isskv(0); issx(1); isskv(1)
    srd(a, WQ, 6, 512 << 10)
    a(f"""
    v_mov_b32 v{ONES}, 0x3f803f80
    v_add_u32 v30, {K1_KC}, v{VL}
    s_lshl_b32 s43, s58, 8
    s_add_u32 s43, s43, {K1_PS}
    v_lshl_add_u32 v31, v3, 4, s43
    s_lshl_b32 s56, s{sTG}, 1
    s_lshr_b32 s43, s58, 1
    s_add_u32 s56, s56, s43
    s_mul_i32 s56, s56, {TILE}
    s_add_u32 s56, s56, {WS_KV}
    s_and_b32 s57, s58, 1
    s_lshl_b32 s43, s57, 8
    s_mul_i32 s44, s57, 544
    s_add_u32 s44, s44, 1024
    s_cmp_ge_u32 s{sCG}, 4
    s_cselect_b32 s43, s44, s43
    s_cselect_b64 s[62:63], -1, 0
    s_add_u32 s56, s56, s43
    v_and_b32 v14, 1, v4
    v_lshrrev_b32 v15, 1, v4
    v_lshlrev_b32 v26, 9, v14
    v_lshl_add_u32 v26, v15, 3, v26
    v_lshlrev_b32 v27, 8, v15
    v_lshl_add_u32 v27, v14, 3, v27
    v_cndmask_b32 v26, v26, v27, s[62:63]
    v_lshl_add_u32 v26, v3, 4, v26
    v_lshlrev_b32 v27, 4, v4
    v_lshlrev_b32 v28, 2, v3
    v_cndmask_b32 v27, v28, v27, s[62:63]
    v_cndmask_b32 v28, 0, 4, s[62:63]
    v_mov_b32 v29, 0x7fff0000
    v_mov_b32 v74, 0
    v_mov_b32 v75, 0
    v_mov_b32 v78, 0
    v_mov_b32 v79, 0
    """)
    srd(a, WS, 14, WS_SIZE)
    pass
    size = [5, 5, 5, 5, 4, 4, 4, 4]
    for g in range(5):
        if g + 2 < 4: issx(g + 2); isskv(g + 2)
        else: issw(g - 2)
        a(f"s_waitcnt vmcnt({sum(size[g+1:g+3])})\ns_barrier")
    issw(3)
    a(f"""
    v_mov_b32 v7, {K1_EP}
    ds_read_b32 v92, v7
    s_cmp_eq_u32 s46, 0
    s_cbranch_scc1 L1_fin
    s_waitcnt vmcnt(8)
    s_barrier
    s_waitcnt vmcnt(4)
    s_barrier
    s_waitcnt vmcnt(0) lgkmcnt(0)
    s_barrier
    v_readfirstlane_b32 s{sEP}, v92
    s_branch L2_start
    L1_fin:
    ds_read_b128 v[80:83], v31
    ds_read_b128 v[84:87], v30
    ds_read_b128 {vr(XR,4)}, v30 offset:1024
    ds_read_b128 {vr(XR+4,4)}, v30 offset:2048
    ds_read_b128 {vr(XR+8,4)}, v30 offset:3072
    ds_read_b128 {vr(XR+12,4)}, v30 offset:4096
    s_waitcnt lgkmcnt(4)
    """)
    rowstat(a, 80, 8, 9)
    a(f"""
    v_add_f32 v84, v84, v85
    v_add_f32 v86, v86, v87
    ds_bpermute_b32 v88, v27, v9
    v_add_u32 v27, v27, v28
    ds_bpermute_b32 v89, v27, v9
    v_add_u32 v27, v27, v28
    ds_bpermute_b32 v90, v27, v9
    v_add_u32 v27, v27, v28
    ds_bpermute_b32 v91, v27, v9
    v_add_f32 v84, v84, v86
    v_cndmask_b32 v85, v84, v8, s[62:63]
    v_cndmask_b32 v86, v8, v84, s[62:63]
    """)
    split_ab(a, 85, 72, "c"); split_ab(a, 86, 76, "m")
    a("s_waitcnt lgkmcnt(4)")
    for r in range(4):
        a(f"v_add_f32 v{XR+r}, v{XR+r}, v{XR+4+r}\nv_add_f32 v{XR+8+r}, v{XR+8+r}, v{XR+12+r}")
    for r in range(4): a(f"v_add_f32 v{XR+r}, v{XR+r}, v{XR+8+r}")
    a(f"""
    v_cmp_gt_u32 vcc, 4, v2
    v_lshlrev_b32 v12, 2, v2
    {MF16} {vr(XR,4)}, v[72:75], v[76:79], {vr(XR,4)}
    v_cndmask_b32 v14, 0, v{ONES}, vcc
    s_and_b64 s[62:63], s[62:63], 0xff
    s_waitcnt lgkmcnt(0)
    s_nop 4
    """)
    for r in range(4): a(f"v_mul_f32 v{XR+r}, v{88+r}, v{XR+r}")
    a(f"""
    v_cvt_pk_bf16_f32 v{XR}, v{XR}, v{XR+1}
    v_cvt_pk_bf16_f32 v{XR+1}, v{XR+2}, v{XR+3}
    buffer_store_dwordx2 {vr(XR,2)}, v26, s[{WS}:{WS+3}], s56 offen sc0 sc1
    v_cndmask_b32 v12, v29, v12, s[62:63]
    buffer_store_dword v14, v12, s[{WS}:{WS+3}], s56 offen offset:512 sc0 sc1
    v_readfirstlane_b32 s{sEP}, v92
    s_lshl_b32 s43, s2, {KSH}
    s_add_u32 s43, s43, {WS_FLG}
    v_mov_b32 v7, 0
    s_waitcnt vmcnt(10)
    s_barrier
    s_waitcnt vmcnt(6)
    s_barrier
    s_waitcnt vmcnt(0)
    s_mov_b64 exec, 1
    buffer_store_dword v92, v7, s[{WS}:{WS+3}], s43 offen sc0 sc1
    s_mov_b64 exec, -1
    @S1
    s_barrier
    s_branch L2_start
    """)
    D1 = 16
    XF, WF = 120, 32
    XA, WA, WB, WOD = 72, 68, 70, 80
    KX, KW = 92, 93
    SX, SXX, KC, KD = 14, 15, 71, 96
    KF = 104
    a(f"""
    L1_gemm:
    v_and_b32 v5, 31, v2
    v_lshrrev_b32 v6, 5, v2
    s_and_b32 s53, s{sW}, 1
    s_lshr_b32 s54, s{sW}, 1
    s_lshl_b32 s59, s2, 1
    s_add_u32 s59, s59, s53
    s_lshr_b32 s43, s59, 6
    s_lshr_b32 s44, s59, 2
    s_and_b32 s44, s44, 15
    s_and_b32 s45, s59, 3
    s_lshl_b32 s44, s44, 15
    s_lshl_b32 s43, s43, 7
    s_lshl_b32 s45, s45, 3
    s_add_u32 s47, s44, s43
    s_add_u32 s47, s47, s45
    v_lshrrev_b32 v7, 2, v3
    v_lshlrev_b32 v7, 5, v7
    v_and_b32 v8, 3, v3
    v_lshl_add_u32 v7, v8, 1, v7
    v_lshl_add_u32 v7, v4, 13, v7
    v_add_u32 v8, 4096, v7
    s_waitcnt lgkmcnt(0)
    """)
    if "--pf" in sys.argv:
        a(f"""
        s_lshr_b32 s43, s2, 3
        s_lshl_b32 s43, s43, 14
        s_lshl_b32 s44, s53, 13
        s_add_u32 s43, s43, s44
        s_lshl_b32 s44, s{sTG}, 16
        s_lshl_b32 s45, s{sCG}, 13
        s_add_u32 s44, s44, s45
        s_cmp_eq_u32 s{sW}, 3
        s_cselect_b32 s44, 0x400000, s44
        s_cmp_ge_u32 s{sW}, 2
        s_cselect_b32 s43, s44, s43
        s_cselect_b32 s{X}, s4, s6
        s_cselect_b32 s{X+1}, s5, s7
        s_mov_b32 s{X+2}, 0x80000
        s_cselect_b32 s{X+2}, 0x200000, s{X+2}
        s_and_b32 s{X+1}, s{X+1}, 0xffff
        s_mov_b32 s{X+3}, 0x20000
        v_lshlrev_b32 v9, 7, v2
        buffer_load_dword v252, v9, s[{X}:{X+3}], s43 offen
        """)
    srd(a, WO, 12, 512 << 10); srd(a, WS, 14, WS_SIZE); srd(a, DBG, 64, 256)
    a(f"s_cmp_ge_u32 s{sW}, 2\ns_cbranch_scc1 L1_nowo")
    for j in range(8):
        a(f"buffer_load_ushort v{WOD + j}, v{7 + j//4}, s[{WO}:{WO+3}], s47 offen offset:{(j & 3) * 1024}")
    a(f"""
    s_branch L1_noz
    L1_nowo:
    s_cmp_eq_u32 s{sW}, 2
    s_cbranch_scc1 L1_ini
    """)
    if "--tlb" in sys.argv:
        a(f"""
        s_load_dwordx8 s[16:23], s[0:1], 48
        s_load_dwordx2 s[24:25], s[0:1], 80
        v_lshlrev_b32 v9, 20, v2
        s_mov_b64 exec, 0xff
        buffer_load_dword v252, v9, s[{WS}:{WS+3}], 0 offen offset:2048
        s_mov_b64 exec, 1
        global_load_dword v253, v9, s[6:7]
        s_waitcnt lgkmcnt(0)
        global_load_dword v253, v9, s[16:17]
        global_load_dword v253, v9, s[18:19]
        global_load_dword v253, v9, s[20:21]
        global_load_dword v253, v9, s[22:23]
        global_load_dword v253, v9, s[24:25]
        s_mov_b64 exec, -1
        """)
    a(f"""
    s_cmp_lg_u32 s2, 0
    s_cbranch_scc1 L1_noz
    s_memrealtime s[44:45]
    v_mov_b32 v9, 0
    s_waitcnt lgkmcnt(0)
    s_or_b32 s44, s44, 1
    v_mov_b32 v{WOD}, s44
    s_mov_b64 exec, 1
    buffer_store_dword v{WOD}, v9, s[{DBG}:{DBG+3}], 0 offen sc0 sc1
    s_mov_b64 exec, -1
    s_branch L1_noz
    L1_ini:
    s_cmp_lt_u32 s2, 172
    s_cselect_b32 s44, -1, 0
    v_mov_b32 v{WOD}, s44
    v_mov_b32 v{WOD+1}, 0
    v_lshlrev_b32 v9, 2, v2
    s_lshl_b32 s43, s2, {ASH}
    s_add_u32 s43, s43, {WS_ACT}
    s_lshl_b32 s44, s2, {KSH}
    s_add_u32 s44, s44, {WS_KEY}
    s_mov_b64 exec, 0xff
    buffer_store_dword v{WOD}, v9, s[{WS}:{WS+3}], s43 offen sc0 sc1
    s_mov_b64 exec, 3
    buffer_store_dword v{WOD+1}, v9, s[{WS}:{WS+3}], s44 offen sc0 sc1
        s_mov_b64 exec, -1
    L1_noz:
    """)
    if "--cpf" in sys.argv:
        a(f"""
        s_getpc_b64 s[44:45]
        s_and_b32 s44, s44, 0xffffff00
        s_lshr_b32 s43, s2, 3
        s_lshl_b32 s43, s43, 2
        s_add_u32 s43, s43, s{sW}
        s_lshl_b32 s43, s43, 8
        v_lshl_add_u32 v9, v2, 2, s43
        v_min_u32 v9, {CODE_SPAN}, v9
        global_load_dword v252, v9, s[44:45]
        """)
    a(f"""
    s_lshl_b32 s43, s54, 1
    v_xor_b32 v12, s43, v3
    s_lshl_b32 s43, s53, 13
    v_lshlrev_b32 v9, 8, v5
    v_add_u32 v9, s43, v9
    """)
    for j in range(8):
        a(f"v_add_u32 v10, {2*j}, v6\nv_xor_b32 v10, v10, v12\nv_lshl_add_u32 v{XA+j}, v10, 4, v9")
    a(f"""
    v_lshrrev_b32 v9, 2, v3
    v_lshl_add_u32 v10, v6, 3, v9
    v_lshlrev_b32 v10, 7, v10
    v_lshrrev_b32 v11, 1, v9
    v_xor_b32 v11, s54, v11
    v_lshl_add_u32 v10, v11, 6, v10
    v_and_b32 v11, 1, v4
    v_lshl_add_u32 v10, v11, 5, v10
    v_and_b32 v11, 3, v3
    v_lshl_add_u32 v10, v11, 3, v10
    s_lshl_b32 s43, s54, 11
    s_add_u32 s44, s43, 0x10000
    s_sub_u32 s43, {0x10000 + 2048}, s43
    v_add_u32 v{WA}, s44, v10
    v_add_u32 v{WB}, s43, v10
    v_lshl_add_u32 v{KW}, v4, 3, v9
    v_lshlrev_b32 v{KW}, 5, v{KW}
    v_lshl_add_u32 v{KW}, v11, 3, v{KW}
    s_lshl_b32 s43, s46, 10
    s_add_u32 s43, s43, {K1_KV}
    v_add_u32 v{KW}, s43, v{KW}
    s_lshl_b32 s43, s46, 2
    v_add_u32 v{KX}, s43, v4
    v_xor_b32 v{KX}, v{KX}, v3
    v_lshlrev_b32 v{KX}, 4, v{KX}
    v_lshl_add_u32 v{KX}, v3, 8, v{KX}
    s_lshl_b32 s43, s58, 12
    v_add_u32 v{KX}, s43, v{KX}
    v_lshrrev_b32 v64, 3, v5
    v_lshlrev_b32 v64, 13, v64
    v_and_b32 v11, 7, v5
    v_lshl_add_u32 v64, v11, 4, v64
    v_lshl_add_u32 v64, v6, 9, v64
    s_lshl_b32 s60, s{sTG}, 16
    s_lshl_b32 s44, s53, 15
    s_add_u32 s60, s60, s44
    s_lshl_b32 s44, s{sCG}, 10
    s_add_u32 s60, s60, s44
    s_lshl_b32 s44, s54, 8
    s_add_u32 s60, s60, s44
    s_add_u32 s60, s60, {WS_Q}
    s_lshl_b32 s43, s53, 9
    s_add_u32 s43, s43, {K1_PS}
    v_lshl_add_u32 v67, v5, 4, s43
    s_lshl_b32 s43, s54, 3
    v_lshl_add_u32 v65, v6, 2, v67
    v_add_u32 v65, s43, v65
    s_lshl_b32 s43, s46, 2
    s_add_u32 s43, s43, {K1_KC}
    v_add_u32 v94, s43, v{VL}
    s_lshl_b32 s43, s46, 10
    s_add_u32 s43, s43, {K1_KP}
    v_add_u32 v95, s43, v{VL}
    s_lshl_b32 s59, s59, 10
    s_add_u32 s59, s59, {WS_WO}
    s_cmp_ge_u32 s{sW}, 2
    s_cselect_b32 s59, {WS_SIZE}, s59
    s_cmp_ge_u32 s{sCG}, 4
    s_cselect_b64 s[62:63], -1, 0
    v_mov_b32 v{ONES}, 0x3f803f80
    v_mov_b32 v{SX}, 0
    v_mov_b32 v{SXX}, 0
    v_mov_b32 v{KC}, 0
    v_mov_b32 v90, 0
    v_mov_b32 v91, 0
    v_mov_b32 v250, 0
    v_mov_b32 v251, 0
    """)
    def xreads(c):
        kx, kw = KF + 8*(c & 1), KF + 8*(c & 1) + 4
        for u in (0, 2, 4, 6): a(f"ds_read_b128 {vr(XF+32*c+4*u,4)}, v{XA+u} offset:{c*16384}")
        a(f"ds_read_b128 {vr(kx,4)}, v{KX} offset:{c*16384}")
        a(f"ds_read_b64_tr_b16 {vr(kw,2)}, v{KW} offset:{c*4096}\nds_read_b64_tr_b16 {vr(kw+2,2)}, v{KW} offset:{c*4096+128}")
        for u in (1, 3, 5, 7): a(f"ds_read_b128 {vr(XF+32*c+4*u,4)}, v{XA+u} offset:{c*16384}")
    def wread(ks):
        ar = WB if ks & 1 else WA
        off = (ks & ~1) * 2048
        a(f"ds_read_b64_tr_b16 {vr(WF+4*(ks&7),2)}, v{ar} offset:{off}\nds_read_b64_tr_b16 {vr(WF+4*(ks&7)+2,2)}, v{ar} offset:{off + 512}")
    def work(c):
        kx, kw = KF + 8*(c & 1), KF + 8*(c & 1) + 4
        for u in (0, 2, 4, 6):
            a(f"s_waitcnt lgkmcnt({10 - u//2})")
            for q in range(4): a(f"v_dot2c_f32_bf16 v{SX}, v{XF+32*c+4*u+q}, v{ONES}\nv_dot2c_f32_bf16 v{SXX}, v{XF+32*c+4*u+q}, v{XF+32*c+4*u+q}")
        a("s_waitcnt lgkmcnt(4)")
        for q in range(4): a(f"v_dot2c_f32_bf16 v{KC}, v{kw+q}, v{ONES}")
        a(f"{MF16} {vr(KD,4)}, {vr(kw,4)}, {vr(kx,4)}, {'0' if c == 0 else vr(KD,4)}")
        a(f"{MF16} {vr(KD+4,4)}, {vr(kx,4)}, {vr(kw,4)}, {'0' if c == 0 else vr(KD+4,4)}")
    for c in range(4):
        a("s_barrier")
        xreads(c)
        work(c)
        if c == 1:
            a(f"""
            s_waitcnt vmcnt(0)
            v_lshl_or_b32 v{WOD}, v{WOD+1}, 16, v{WOD}
            v_lshl_or_b32 v{WOD+1}, v{WOD+3}, 16, v{WOD+2}
            v_lshl_or_b32 v{WOD+2}, v{WOD+5}, 16, v{WOD+4}
            v_lshl_or_b32 v{WOD+3}, v{WOD+7}, 16, v{WOD+6}
            buffer_store_dwordx4 {vr(WOD,4)}, v{VL}, s[{WS}:{WS+3}], s59 offen sc0 sc1
            buffer_load_dword v66, v90, s[{DBG}:{DBG+3}], 0 offen sc1
            """)
    a(f"""
    v_permlane32_swap_b32 v{SX}, v{SXX}
    s_waitcnt vmcnt(0)
    ds_write_b32 v94, v{KC}
    v_add_f32 v{SX}, v{SX}, v{SXX}
    v_readfirstlane_b32 s{sEP}, v66
    ds_write_b32 v65, v{SX}
    v_mov_b32 v7, {K1_EP}
    s_cmp_eq_u32 s{sEP}, 0
    s_cbranch_scc1 L1_tag
    L1_tagok:
    """)
    for r in range(4): a(f"v_cndmask_b32 v{KD+r}, v{KD+r}, v{KD+4+r}, s[62:63]")
    a(f"ds_write_b128 v95, {vr(KD,4)}\nds_write_b32 v7, v66\nds_write_b32 v7, v90 offset:8\nv_mov_b32 v{SXX}, 0\ns_waitcnt lgkmcnt(0)\ns_barrier")
    for ks in range(7): wread(ks)
    a("s_waitcnt lgkmcnt(12)")
    wread(7)
    for g in range(8):
        a(f"s_waitcnt lgkmcnt({8 if g < 7 else 0})")
        for ks in range(4*g, 4*g + 4):
            for q in range(4): a(f"v_dot2c_f32_bf16 v{SXX}, v{WF+4*(ks&7)+q}, v{ONES}")
        if g % 2 == 0 and g < 6: a("s_barrier")
        if g == 2: a("ds_read_b128 v[84:87], v67")
        for ks in range(4*g, 4*g + 4):
            a(f"{MF32} {vr(D1,16)}, {vr(WF+4*(ks&7),4)}, {vr(XF+4*ks,4)}, {'0' if ks == 0 else vr(D1,16)}")
            if ks + 8 < 32: wread(ks + 8)
            if ks == 16: rowstat(a, 84, 8, 9)
            if ks == 17: split_ab(a, 8, 88, "m"); a(f"v_mul_f32 v10, {hex(f2u(QSCALE))}, v9")
            if ks == 29: a("s_nop 0"); split_ab(a, SXX, 248, "c")
    a(f"""
    {MF32} {vr(D1,16)}, v[248:251], v[88:91], {vr(D1,16)}
    v_mov_b32 v35, v66
    v_mov_b32 v39, v66
    v_mov_b32 v43, v66
    v_lshrrev_b32 v44, 3, v5
    v_lshlrev_b32 v44, 12, v44
    v_and_b32 v11, 7, v5
    v_lshl_add_u32 v44, v11, 4, v44
    v_lshl_add_u32 v44, v6, 8, v44
    s_sub_u32 s61, s60, {WS_Q}
    s_lshr_b32 s61, s61, 1
    s_add_u32 s61, s61, {WS_QB}
    s_nop 0
    """)
    dst = [32, 33, 34, 36, 40, 41, 42, 37]
    for r in range(8):
        a(f"v_mul_f32 v{D1+2*r}, v10, v{D1+2*r}\nv_mul_f32 v{D1+2*r+1}, v10, v{D1+2*r+1}\nv_cvt_pk_bf16_f32 v{dst[r]}, v{D1+2*r}, v{D1+2*r+1}")
        if r == 2: a(f"buffer_store_dwordx4 v[32:35], v64, s[{WS}:{WS+3}], s60 offen {QSC}")
        if r == 6: a(f"buffer_store_dwordx4 v[40:43], v64, s[{WS}:{WS+3}], s60 offen offset:128 {QSC}")
    a(f"""
    buffer_store_dwordx4 v[36:39], v44, s[{WS}:{WS+3}], s61 offen {QSC}
    @S1
    """)
def k1_cold(a):
    DBG = 28
    a(f"""
    L1_tag:
    s_mov_b32 s43, 0
    L1_tagl:
    buffer_load_dword v66, v90, s[{DBG}:{DBG+3}], 0 offen sc1
    s_add_u32 s43, s43, 1
    s_waitcnt vmcnt(0)
    v_readfirstlane_b32 s{sEP}, v66
    s_cmp_gt_u32 s43, 0x40000
    s_cbranch_scc1 L1_tagok
    s_cmp_eq_u32 s{sEP}, 0
    s_cbranch_scc1 L1_tagl
    s_branch L1_tagok
    """)
KV_BYTES = 64 * TILE
OB = KV_BYTES
RED = OB + 8 * 1040
PART = RED + 1024
CNT = PART + 8192
K2_LDS = CNT + 64
FW = 0
FR = 32768
SMF = "v_smfmac_f32_32x32x32_bf16"
LOG2E = 1.4426950408889634
KSLEEP = ''
for _x in sys.argv:
    if _x.startswith('--ksleep='): KSLEEP = 's_sleep ' + _x.split('=')[1]
OSC = 'sc0 sc1' if '--osc' in sys.argv else 'nt' if '--ont' in sys.argv else ''
SLEEP = 's_nop 0'
for _x in sys.argv:
    if _x.startswith('--sleep='): SLEEP = 's_sleep ' + _x.split('=')[1]
def k2(a):
    X, WR_, OUT, WS, FA, FB = 16, 20, 24, 28, 32, 36
    sW, sN, sG = 40, 43, 41
    Q, C, KF, VF, S, O = 8, 12, 28, 36, 52, 84
    IDX, KA, VA, LN16, XO, WRO, M, VA0 = 100, 101, 102, 103, 104, 105, 106, 107
    WO = 108; XRES, WRV, FWR = 236, 240, 244
    BAR_TILE = 10
    X_ = [x for x in sys.argv if x.startswith("--x")]
    a(f"""
    L2_start:
    s_load_dwordx8 s[52:59], s[0:1], 48
    s_load_dwordx2 s[8:9], s[0:1], 80
    v_lshlrev_b32 v{LN16}, 4, v2
    v_and_b32 v5, 31, v2
    v_lshrrev_b32 v6, 5, v2
    s_lshl_b32 s{sG}, s41, 3
    s_add_u32 s{sG}, s{sG}, s42
    s_lshl_b32 s44, s{sG}, 13
    s_lshl_b32 s45, s{sW}, 10
    s_add_u32 s46, s44, s45
    s_add_u32 s47, s45, {WS_KV}
    s_lshl_b32 s50, s{sW}, 16
    s_add_u32 s51, s50, {WS_WO}
    s_and_b32 s48, s{sW}, 4
    s_lshl_b32 s48, s48, 13
    s_add_u32 s50, s51, s48
    """)
    srd(a, WS, 14, WS_SIZE)
    def dma(i):
        return [f"s_add_u32 m0, s45, {i*8192}", f"s_add_u32 s48, s47, {i*8192}", f"buffer_load_dwordx4 v{LN16}, s[{WS}:{WS+3}], s48 offen sc1 lds"]
    a("s_waitcnt lgkmcnt(0)")
    srd(a, X, 4, 2 << 20); srd(a, WR_, 52, 1024); srd(a, OUT, 8, 2 << 20)
    a(f"""
    v_lshlrev_b32 v3, 8, v6
    v_lshl_add_u32 v3, v5, 4, v3
    v_and_b32 v4, 27, v5
    v_cmp_eq_u32 vcc, 16, v4
    v_mov_b32 v4, 528
    v_mov_b32 v7, 512
    v_cndmask_b32 v4, v4, v7, vcc
    v_cmp_gt_u32 vcc, 16, v5
    v_mov_b32 v{KA}, v{LN16}
    v_mov_b32 v{IDX}, 0xdddddddd
    v_cndmask_b32 v3, v4, v3, vcc
    v_add_u32 v{VA0}, 1024, v3
    v_mov_b32 v{VA}, v{VA0}
    v_lshrrev_b32 v3, 3, v2
    v_lshlrev_b32 v3, 4, v3
    s_lshl_b32 s49, s{sW}, 7
    v_add_u32 v{WRO}, s49, v3
    v_and_b32 v4, 7, v2
    v_lshl_add_u32 v{XO}, v4, 10, v{WRO}
    s_and_b32 s48, s2, 7
    s_lshr_b32 s49, s2, 3
    s_mul_i32 s64, s48, 22
    s_add_u32 s64, s64, s49
    s_lshl_b32 s48, s48, 3
    s_add_u32 s48, s48, s49
    s_sub_u32 s61, s48, 22
    s_and_b32 s61, s61, 63
    s_lshl_b32 s61, s61, 4
    s_min_u32 s48, s64, 171
    s_lshl_b32 s48, s48, 4
    s_mul_i32 s49, s{sW}, {64*2752}
    s_add_u32 s48, s48, s49
    s_lshl_b32 s49, s{sW}, 16
    s_add_u32 s49, s49, s61
    s_add_u32 s66, s49, {512*1024}
    s_add_u32 s67, s49, {1024*1024}
    s_movk_i32 s60, 2752
    s_cmp_ge_u32 s2, 176
    s_cselect_b32 s65, s49, s48
    s_cselect_b32 s66, s66, s48
    s_cselect_b32 s67, s67, 0x200000
    s_cselect_b32 s60, 0x400, s60
    s_cselect_b32 s54, s58, s54
    s_cselect_b32 s55, s59, s55
    s_cselect_b32 s56, s58, s56
    s_cselect_b32 s57, s59, s57
    v_mul_u32_u24 v1, s60, v2
    """)
    srd(a, FA, 54, 512*2752); srd(a, FB, 56, 512*2752)
    a(f"""
    s_mov_b32 s60, {16*8192}
    s_cmp_lt_u32 s{sW}, 4
    s_cselect_b32 s60, s60, {WS_SIZE}
    v_mov_b32 v3, {CNT}
    """)
    for r in range(16): a(f"v_mov_b32 v{O+r}, 0")
    a(f"""
    ds_write_b32 v3, v{O}
    ds_write_b128 v3, {vr(O,4)} offset:16
    s_lshr_b32 s12, s46, 1
    s_add_u32 s12, s12, {WS_QB}
    s_add_u32 s46, s46, {WS_Q}
    v_lshrrev_b32 v7, 4, v2
    v_lshlrev_b32 v7, 7, v7
    v_and_b32 v4, 7, v2
    v_lshl_add_u32 v7, v4, 4, v7
    s_cmp_lt_u32 s{sW}, 4
    s_cbranch_scc1 L2_noflag
    s_sub_u32 s13, s{sW}, 4
    """)
    if "--fw1" not in sys.argv:
        a(f"""
        s_lshl_b32 s48, s13, {KSH + 6}
        s_add_u32 s48, s48, {WS_FLG}
        v_lshlrev_b32 v3, {KSH}, v2
        s_mov_b32 s49, 0
        L2_fpoll:
        buffer_load_dword v4, v3, s[{WS}:{WS+3}], s48 offen sc1
        s_add_u32 s49, s49, 1
        s_waitcnt vmcnt(0)
        v_cmp_ne_u32 vcc, s{sEP}, v4
        s_cmp_gt_u32 s49, 0x40000
        s_cbranch_scc1 L2_fgot
        s_and_b64 exec, exec, vcc
        s_cbranch_scc1 L2_fpoll
        L2_fgot:
        s_mov_b64 exec, 1
        v_mov_b32 v3, {K1_EP + 8}
        v_mov_b32 v4, 1
        ds_add_u32 v3, v4
        """)
    else:
        a(f"""
        s_cmp_lg_u32 s{sW}, 5
        s_cbranch_scc1 L2_fwait
        s_mov_b32 s48, {WS_FLG}
        v_lshlrev_b32 v3, {KSH + 2}, v2
        s_mov_b32 s49, 0
        L2_fpoll:
        """)
        for q in range(4): a(f"buffer_load_dword v{S+q}, v3, s[{WS}:{WS+3}], s48 offen offset:{q << KSH} sc1")
        a(f"""
        s_add_u32 s49, s49, 1
        s_waitcnt vmcnt(0)
        v_xor_b32 v{S}, s{sEP}, v{S}
        v_xor_b32 v{S+1}, s{sEP}, v{S+1}
        v_xor_b32 v{S+2}, s{sEP}, v{S+2}
        v_xor_b32 v{S+3}, s{sEP}, v{S+3}
        v_or3_b32 v4, v{S}, v{S+1}, v{S+2}
        v_or_b32 v4, v4, v{S+3}
        v_cmp_ne_u32 vcc, 0, v4
        s_cmp_gt_u32 s49, 0x40000
        s_cbranch_scc1 L2_fgot
        s_and_b64 exec, exec, vcc
        s_cbranch_scc1 L2_fpoll
        L2_fgot:
        s_mov_b64 exec, 1
        v_mov_b32 v3, {K1_EP + 8}
        v_mov_b32 v4, 4
        ds_write_b32 v3, v4
        L2_fwait:
        s_mov_b64 exec, 1
        v_mov_b32 v3, {K1_EP + 8}
        """)
    a(f"""
    L2_fspin:
    ds_read_b32 v4, v3
    s_waitcnt lgkmcnt(0)
    v_readfirstlane_b32 s49, v4
    s_cmp_lt_u32 s49, 4
    s_cbranch_scc1 L2_fspin
    s_mov_b64 exec, -1
    @S2
    s_lshl_b32 s13, s13, 10
    s_add_u32 s62, s13, {WS_KV}
    """)
    for i in range(6):
        a(f"s_add_u32 m0, s13, {i*4096}\ns_add_u32 s48, s62, {i*4096}\nbuffer_load_dwordx4 v{LN16}, s[{WS}:{WS+3}], s48 offen sc1 lds")
    a(f"""
    L2_noflag:
    {'' if '--nobarA' in sys.argv else 's_barrier'}
    s_mov_b32 s49, 0
    L2_qpoll:
    buffer_load_dwordx4 {vr(Q,4)}, v{LN16}, s[{WS}:{WS+3}], s46 offen sc1
    buffer_load_dwordx4 {vr(S,4)}, v7, s[{WS}:{WS+3}], s12 offen sc1
    s_add_u32 s49, s49, 1
    s_waitcnt vmcnt(0)
    v_cmp_ne_u32 vcc, s{sEP}, v{Q+3}
    v_cmp_ne_u32 s[62:63], s{sEP}, v{S+3}
    s_cmp_gt_u32 s49, 0x40000
    s_cbranch_scc1 L2_qgot
    s_or_b64 exec, vcc, s[62:63]
    s_cbranch_scc1 L2_qpoll
    L2_qgot:
    s_mov_b64 exec, -1
    s_mov_b32 s62, 0xff00ff00
    s_mov_b32 s63, s62
    v_cndmask_b32 v{Q+3}, v{S}, v{S+1}, s[62:63]
    s_waitcnt lgkmcnt(0)
    s_barrier
    @S3
    ds_read_b128 {vr(KF,4)}, v{KA}
    ds_read_b128 {vr(KF+4,4)}, v{KA} offset:{TILE}
    ds_read_b128 {vr(VF,4)}, v{VA}
    ds_read_b128 {vr(VF+4,4)}, v{VA} offset:544
    s_waitcnt lgkmcnt(3)
    {MF32} {vr(S,16)}, {vr(KF,4)}, {vr(Q,4)}, 0
    s_waitcnt lgkmcnt(2)
    {MF32} {vr(S+16,16)}, {vr(KF+4,4)}, {vr(Q,4)}, 0
    s_nop 9
    v_max3_f32 v{M}, v{S}, v{S+1}, v{S+2}
    """)
    for r in range(3, 31, 2): a(f"v_max3_f32 v{M}, v{S+r}, v{S+r+1}, v{M}")
    a(f"""
    v_max_f32 v{M}, v{S+31}, v{M}
    v_mov_b32 v3, v{M}
    s_nop 1
    v_permlane32_swap_b32 v{M}, v3
    v_max_f32 v{M}, v{M}, v3
    v_sub_f32 v{C}, {hex(f2u(-SHIFT))}, v{M}
    """)
    for r in range(1, 16): a(f"v_mov_b32 v{C+r}, v{C}")
    a(f"""
    @S4
    @S13
    @T1
    s_nop 1
    {MF32} {vr(S,16)}, {vr(KF,4)}, {vr(Q,4)}, {vr(C,16)}
    s_waitcnt lgkmcnt(0)
    s_nop 10
    """)
    base = 0
    nwo = 0
    NPT = 2 if '--npt2' in sys.argv else 3
    queue = [dma(i) for i in range(3, 17)]
    queue[-1][1] = "s_add_u32 s48, s47, s60"
    ffn = [[f"buffer_load_dwordx4 {vr(FWR+4*i,4)}, v1, s[{FA if i == 0 else FB}:{(FA if i == 0 else FB)+3}], s{65+i} offen"] for i in range(3)]
    wol = [(["s_add_u32 s50, s50, 4096"] if (f and f % 4 == 0) else []) + [f"buffer_load_dwordx4 {vr(WO + 4*f, 4)}, v{LN16}, s[{WS}:{WS+3}], s50 offen offset:{(f & 3)*1024} sc1"] for f in range(32)]
    xw = [[f"buffer_load_dwordx4 {vr(XRES,4)}, v{XO}, s[{X}:{X+3}], s44 offen"], [f"buffer_load_dwordx4 {vr(WRV,4)}, v{WRO}, s[{WR_}:{WR_+3}], 0 offen"]]
    SCH = [x.split("=")[1] for x in sys.argv if x.startswith("--sch=")]
    SCH = SCH[0] if SCH else "E"
    if SCH == "A":
        queue += wol + xw + ffn
        cnt = lambda t: 2 if t < 7 or 10 <= t <= 26 else 1 if t in (27, 29, 31) else 0
    elif SCH == "B":
        queue += wol + xw + ffn
        cnt = lambda t: 2 if t <= 23 else 1
    elif SCH == "C":
        queue += xw + wol[:4] + ffn[:1] + wol[4:5] + ffn[1:2] + wol[5:6] + ffn[2:] + wol[6:]
        cnt = lambda t: 2
    elif SCH == "D":
        queue += wol + xw + ffn
        cnt = lambda t: 2 if t <= 23 else 1 if t in (58, 60, 62) else 0
    elif SCH == "E":
        queue += wol + xw + ffn
        cnt = lambda t: 2 if t <= 23 else 1 if t in (52, 56, 60) else 0
    elif SCH == "F":
        queue += wol + xw + ffn
        cnt = lambda t: 2 if t <= 23 else 1 if t in (61, 62, 63) else 0
    nissued = 0
    if '--noprio' not in sys.argv: a('s_setprio 1')
    for t in range(64):
        cur, nxt = t & 1, (t + 1) & 1
        Sc, Sn = S + 16*cur, S + 16*nxt
        e = [f"v_exp_f32 v{Sc+i}, v{Sc+i}" for i in range(16)]
        n_ = cnt(t); side = sum(queue[:n_], []); queue = queue[n_:]
        if t == BAR_TILE: a(f"s_waitcnt vmcnt({nissued - 14})\ns_barrier")
        nissued += sum(1 for x in side if x.startswith("buffer"))
        if (t + 2 - base) * TILE + TILE > 65535:
            a(f"v_add_u32 v{KA}, {(t - base)*TILE}, v{KA}\nv_add_u32 v{VA}, {(t - base)*TILE}, v{VA}")
            base = t
        after = {i: [] for i in range(16)}
        side = [x for x in side if x]
        grp, curg = [], []
        for x in side:
            curg.append(x)
            if x.startswith("buffer"): grp.append(curg); curg = []
        if t > 0: after[1].append(f"{SMF} {vr(O,16)}, {vr(VF+8*nxt+4,4)}, {vr(Sn+8,8)}, v{IDX}")
        if t < 63:
            after[1].append(f"ds_read_b128 {vr(VF+8*nxt,4)}, v{VA} offset:{(t+1-base)*TILE}")
            after[5].append(f"{MF32} {vr(Sn,16)}, {vr(KF+4*nxt,4)}, {vr(Q,4)}, {vr(C,16)}")
        if t < 62: after[5].append(f"ds_read_b128 {vr(KF+4*cur,4)}, v{KA} offset:{(t+2-base)*TILE}")
        after[11].append(f"{SMF} {vr(O,16)}, {vr(VF+8*cur,4)}, {vr(Sc,8)}, v{IDX}")
        after[11].append("s_waitcnt lgkmcnt(0)")
        if t < 63: after[11].append(f"ds_read_b128 {vr(VF+8*nxt+4,4)}, v{VA} offset:{(t+1-base)*TILE+544}")
        for g, slot in zip(grp, (1, 5, 11) if len(grp) == 3 else (5, 11)): after[slot] += g
        assert len(grp) <= 3
        for i in range(16):
            a(e[i])
            for x in after[i]: a(x)
    a(f"""
    @S8
    @S14
    s_nop 1
    {SMF} {vr(O,16)}, {vr(VF+12,4)}, {vr(S+24,8)}, v{IDX}
    s_mov_b32 s48, {hex(f2u(2.0**110))}
    v_and_b32 v4, 7, v5
    v_mul_u32_u24 v4, 1040, v4
    v_lshrrev_b32 v7, 3, v5
    v_lshl_add_u32 v4, v7, 5, v4
    v_lshl_add_u32 v4, v6, 3, v4
    s_lshl_b32 s49, s{sW}, 7
    s_add_u32 s49, s49, {OB}
    v_add_u32 v4, s49, v4
    v_and_b32 v1, 7, v2
    v_mul_u32_u24 v0, 1040, v1
    v_lshrrev_b32 v7, 4, v2
    v_mul_f32 v3, 0, v{O}
    """)
    for r in range(1, 8): a(f"v_fma_f32 v3, v{O+r}, 0, v3")
    a(f"""
    v_add_f32 v3, v3, v{O+8}
    v_cmp_ngt_f32 vcc, s48, v3
    v_rcp_f32 v3, v{O+8}
    s_cmp_lg_u64 vcc, 0
    s_cbranch_scc1 L2_slow
    L2_epi:
    """)
    for r in range(8): a(f"v_mul_f32 v{O+r}, v3, v{O+r}")
    for r in range(4): a(f"v_cvt_pk_bf16_f32 v{O+r}, v{O+2*r}, v{O+2*r+1}")
    BA, PA = 101, 102
    a(f"""
    ds_write_b64 v4, {vr(O,2)}
    ds_write_b64 v4, {vr(O+2,2)} offset:16
    v_lshl_add_u32 v{BA}, v7, 4, v0
    v_add_u32 v{BA}, {OB}, v{BA}
    v_lshl_add_u32 v{PA}, v7, 3, v1
    v_lshlrev_b32 v{PA}, 6, v{PA}
    s_and_b32 s49, s{sW}, 3
    s_lshl_b32 s49, s49, 11
    s_add_u32 s49, s49, {PART}
    v_add_u32 v{PA}, s49, v{PA}
    s_waitcnt vmcnt(3)
    s_cmp_lt_u32 s{sW}, 4
    {'' if '--xnoold' in X_ else 's_cbranch_scc1 L2_old'}
    L2_join:
    @S7
    """)
    HF, T = 60, 68
    ACC = O
    BF = [Q, 28, 32, 36]
    a("v_mov_b32 v7, 0x3f803f80")
    for q in range(4): a(f"v_mov_b32 v{T+q}, 0")
    for j in range(4):
        a(f"v_lshlrev_b32 v{HF+2*j}, 16, v{XRES+j}\nv_and_b32 v{HF+2*j+1}, 0xffff0000, v{XRES+j}\nv_dot2c_f32_bf16 v{T+3}, v{WRV+j}, v7")
    a(f"""
    v_and_b32 v3, 8, v2
    v_cmp_ne_u32 vcc, 0, v3
    s_cmp_ge_u32 s{sW}, 4
    s_cselect_b64 s[62:63], -1, 0
    s_waitcnt lgkmcnt(0)
    s_barrier
    @S9
    @T2
    s_mov_b64 exec, s[62:63]
    """)
    for i in range(4): a(f"ds_read_b128 {vr(ACC+4*i,4)}, v{PA} offset:{16*i}")
    a("s_mov_b64 exec, -1")
    for ks in range(8, 12): a(f"ds_read_b128 {vr(BF[ks&3],4)}, v{BA} offset:{ks*64}")
    a(f"v_add_u32 v0, s45, v{LN16}")
    for ks in range(8, 16):
        a(f"s_waitcnt lgkmcnt({min(3, 15 - ks)})")
        for i in range(4):
            a(f"{MF16} {vr(ACC+4*i,4)}, {vr(WO+16*(ks-8)+4*i,4)}, {vr(BF[ks&3],4)}, {vr(ACC+4*i,4)}")
        if ks < 12: a(f"ds_read_b128 {vr(BF[ks&3],4)}, v{BA} offset:{(ks+4)*64}")
    a("s_waitcnt vmcnt(0)")
    for i in range(3): a(f"ds_write_b128 v0, {vr(FWR+4*i,4)} offset:{FW + i*8192}")
    A8, HB = 40, 48
    a(f"""
    v_lshrrev_b32 v3, 4, v2
    v_lshlrev_b32 v3, 8, v3
    v_lshl_add_u32 v3, v1, 5, v3
    s_lshl_b32 s49, s{sW}, 2
    s_add_u32 s49, s49, {RED}
    v_add_u32 v3, s49, v3
    v_lshlrev_b32 v4, 5, v1
    v_add_u32 v4, {RED}, v4
    s_add_u32 s49, s44, {WS_H}
    """)
    for j in range(8): a(f"v_cndmask_b32 v{A8+j}, v{ACC+j}, v{ACC+8+j}, vcc")
    for j in range(8): a(f"v_add_f32 v{HF+j}, v{HF+j}, v{A8+j}")
    for j in range(4): a(f"v_cvt_pk_bf16_f32 v{HB+j}, v{HF+2*j}, v{HF+2*j+1}")
    a(f"buffer_store_dwordx4 {vr(HB,4)}, v{XO}, s[{WS}:{WS+3}], s49 offen sc0 sc1")
    for j in range(4):
        a(f"""
        v_dot2c_f32_bf16 v{T}, v{HB+j}, v7
        v_dot2c_f32_bf16 v{T+1}, v{HB+j}, v{HB+j}
        v_dot2c_f32_bf16 v{T+2}, v{HB+j}, v{WRV+j}
        """)
    a(f"""
    v_lshlrev_b32 v{HF}, 16, v{HB}
    v_and_b32 v{HF+1}, 0xffff0000, v{HB}
    v_permlane32_swap_b32 v{T}, v{T+1}
    v_permlane32_swap_b32 v{T+2}, v{T+3}
    v_add_f32 v{T}, v{T}, v{T+1}
    v_add_f32 v{T+2}, v{T+2}, v{T+3}
    v_lshlrev_b32 v{HF+2}, 16, v{HB+1}
    v_and_b32 v{HF+3}, 0xffff0000, v{HB+1}
    v_permlane16_swap_b32 v{T}, v{T+2}
    v_add_f32 v{T}, v{T}, v{T+2}
    v_lshlrev_b32 v{HF+4}, 16, v{HB+2}
    v_and_b32 v{HF+5}, 0xffff0000, v{HB+2}
    v_add_f32_dpp v{T}, v{T}, v{T} row_ror:8 row_mask:0xf bank_mask:0xf
    ds_write_b32 v3, v{T}
    v_lshlrev_b32 v{HF+6}, 16, v{HB+3}
    v_and_b32 v{HF+7}, 0xffff0000, v{HB+3}
    """)
    KR = 128
    def kloads():
        for q in range(4): a(f"buffer_load_dwordx2 {vr(KR+2*q,2)}, v8, s[{WS}:{WS+3}], s48 offen offset:{q << KSH} sc1")
    a(f"""
    s_waitcnt lgkmcnt(0)
    s_barrier
    @S11
    """)
    R_ = 108
    for q in (0, 2, 1, 3):
        a(f"ds_read_b128 {vr(R_+8*q,4)}, v4 offset:{q*256}\nds_read_b128 {vr(R_+8*q+4,4)}, v4 offset:{q*256+16}")
    def sum8(b):
        a(f"""
        v_add_f32 v{b}, v{b}, v{b+1}
        v_add_f32 v{b+2}, v{b+2}, v{b+3}
        v_add_f32 v{b+4}, v{b+4}, v{b+5}
        v_add_f32 v{b+6}, v{b+6}, v{b+7}
        v_add_f32 v{b}, v{b}, v{b+2}
        v_add_f32 v{b+4}, v{b+4}, v{b+6}
        v_add_f32 v{b}, v{b}, v{b+4}
        """)
    s1, s3, s2, s4 = R_, R_+8, R_+16, R_+24
    ST = 76
    OV = 80
    a("s_waitcnt lgkmcnt(4)")
    sum8(s1); sum8(s2)
    a(f"""
    v_mul_f32 v{ST}, {hex(f2u(1.0/512))}, v{s1}
    v_mul_f32 v{s2}, {hex(f2u(1.0/512))}, v{s2}
    v_fma_f32 v{s2}, -v{ST}, v{ST}, v{s2}
    v_max_f32 v{s2}, 0, v{s2}
    v_add_f32 v{s2}, {hex(f2u(EPS))}, v{s2}
    v_rsq_f32 v{ST+1}, v{s2}
    s_cmp_lg_u32 s{sW}, 0
    s_cbranch_scc1 L2_nokey
    s_waitcnt lgkmcnt(0)
    """)
    sum8(s3); sum8(s4)
    AF, BFR, STT, D, D2 = 140, 12, 204, 208, 212
    breg = lambda q: 12 + 4*q if q < 7 else 216 + 4*(q - 7)
    a(f"""
    v_fma_f32 v{s3}, -v{ST}, v{s4}, v{s3}
    s_lshl_b32 s48, s{sG}, 3
    v_add_u32 v4, s48, v1
    v_mul_f32 v{ST+2}, v{ST+1}, v{s3}
    v_mov_b32 v{ST+3}, s{sEP}
    v_lshlrev_b32 v0, 4, v4
    s_mov_b32 s48, {WS_ST}
    s_mov_b64 exec, 0xff
    buffer_store_dwordx4 {vr(ST,4)}, v0, s[{WS}:{WS+3}], s48 offen sc0 sc1
    s_mov_b64 exec, -1
    v_ashrrev_i32 v3, 31, v{ST+2}
    v_or_b32 v3, 0x80000000, v3
    v_xor_b32 v3, v3, v{ST+2}
    v_and_b32 v3, 0xfffff800, v3
    v_sub_u32 v4, 2047, v4
    v_or_b32 v4, v3, v4
    s_lshl_b32 s48, s2, {KSH}
    s_add_u32 s48, s48, {WS_KEY}
    v_mov_b32_dpp v6, v4 quad_perm:[1,0,3,2] row_mask:0xf bank_mask:0xf
    v_mov_b32 v0, 0
    v_min_u32 v5, v4, v6
    v_max_u32 v4, v4, v6
    """)
    for dpp in ("quad_perm:[2,3,0,1]", "row_half_mirror"):
        a(f"""
        s_nop 0
        v_mov_b32_dpp v3, v5 {dpp} row_mask:0xf bank_mask:0xf
        v_mov_b32_dpp v6, v4 {dpp} row_mask:0xf bank_mask:0xf
        v_max_u32 v5, v5, v3
        v_med3_u32 v5, v4, v5, v6
        v_max_u32 v4, v4, v6
        """)
    a(f"""
    s_waitcnt vmcnt(1)
    s_barrier
    s_mov_b64 exec, 1
    buffer_store_dwordx2 v[4:5], v0, s[{WS}:{WS+3}], s48 offen sc0 sc1
    s_mov_b64 exec, -1
    @S5
    """)
    def outval():
        a(f"v_add_f32 v3, 1.0, v{ST+1}\nv_mul_f32 v6, v{ST}, v{ST+1}")
        for j in range(8): a(f"v_fma_f32 v{A8+j}, v{HF+j}, v3, -v6")
        for j in range(4): a(f"v_cvt_pk_bf16_f32 v{OV+j}, v{A8+2*j}, v{A8+2*j+1}")
    a(f"v_lshlrev_b32 v8, {KSH + 2}, v2\ns_mov_b32 s48, {WS_KEY}")
    if "--knoack" in sys.argv: kloads()
    ROWS = 40960
    a(f"""
    v_and_b32 v9, 15, v2
    v_lshrrev_b32 v11, 4, v2
    v_lshrrev_b32 v10, 2, v9
    v_lshl_add_u32 v10, v11, 7, v10
    v_lshlrev_b32 v10, 4, v10
    v_and_b32 v0, 1, v9
    v_lshl_add_u32 v10, v0, 3, v10
    v_and_b32 v3, 2, v9
    v_lshl_add_u32 v10, v3, 12, v10
    """)
    for q in range(7): a(f"ds_read_b64_tr_b16 {vr(AF+4*q,2)}, v10 offset:{FW + q*128}\nds_read_b64_tr_b16 {vr(AF+4*q+2,2)}, v10 offset:{FW + q*128 + 64}")
    outval()
    a("s_waitcnt lgkmcnt(0)")
    for q in range(7, 14): a(f"ds_read_b64_tr_b16 {vr(AF+4*q,2)}, v10 offset:{FW + q*128}\nds_read_b64_tr_b16 {vr(AF+4*q+2,2)}, v10 offset:{FW + q*128 + 64}")
    a(f"v_mov_b32 v252, v7\nv_mov_b32 v253, v7\nv_mov_b32 v254, v7\nv_mov_b32 v255, v7\ns_waitcnt lgkmcnt(4)")
    for q in range(14, 16): a(f"ds_read_b64_tr_b16 {vr(AF+4*q,2)}, v10 offset:{FW + q*128}\nds_read_b64_tr_b16 {vr(AF+4*q+2,2)}, v10 offset:{FW + q*128 + 64}")
    if "--knoack" not in sys.argv: a("s_waitcnt vmcnt(0)"); kloads()
    a(f"""
    v_cmp_eq_u32 s[10:11], 1, v0
    v_mul_u32_u24 v10, 1040, v0
    v_lshl_add_u32 v10, v11, 8, v10
    v_lshlrev_b32 v{R_}, 4, v0
    v_lshl_add_u32 v{R_}, v11, 3, v{R_}
    s_mov_b32 s49, 0
    s_mov_b32 s46, 0
    s_mov_b32 s47, 0
    s_mov_b32 s51, {WS_ST}
    s_waitcnt lgkmcnt(0)
    """)
    for q in range(16): a(f"{MF16} {vr(D2,4)}, {vr(AF+4*q,4)}, v[252:255], {'0' if q == 0 else vr(D2,4)}")
    a(f"""
    L2_kpoll:
    s_waitcnt vmcnt(0)
    v_min_u32 v0, v{KR}, v{KR+2}
    v_min3_u32 v0, v{KR+4}, v{KR+6}, v0
    v_cmp_eq_u32 s[62:63], 0, v0
    s_add_u32 s49, s49, 1
    s_cmp_gt_u32 s49, 0x40000
    s_cselect_b64 s[62:63], 0, s[62:63]
    v_max_u32 v4, v{KR}, v{KR+2}
    v_min_u32 v5, v{KR}, v{KR+2}
    v_max3_u32 v5, v5, v{KR+1}, v{KR+3}
    v_med3_u32 v5, v4, v5, v{KR+4}
    v_max_u32 v4, v4, v{KR+4}
    v_med3_u32 v5, v4, v5, v{KR+6}
    v_max_u32 v4, v4, v{KR+6}
    v_max3_u32 v5, v5, v{KR+5}, v{KR+7}
    s_mov_b64 exec, s[62:63]
    s_cbranch_execz L2_klast
    """)
    kloads()
    a("L2_klast:\ns_mov_b64 exec, -1")
    for dpp in ("quad_perm:[1,0,3,2]", "quad_perm:[2,3,0,1]", "row_half_mirror", "row_mirror"):
        a(f"""
        v_mov_b32_dpp v3, v5 {dpp} row_mask:0xf bank_mask:0xf
        v_mov_b32_dpp v6, v4 {dpp} row_mask:0xf bank_mask:0xf
        v_max_u32 v5, v5, v3
        v_med3_u32 v5, v4, v5, v6
        v_max_u32 v4, v4, v6
        s_nop 0
        """)
    for sw in ("v_permlane16_swap_b32", "v_permlane32_swap_b32"):
        a(f"""
        v_mov_b32 v3, v5
        v_mov_b32 v6, v4
        s_nop 0
        {sw} v5, v3
        {sw} v4, v6
        v_max_u32 v5, v5, v3
        v_med3_u32 v5, v4, v5, v6
        v_max_u32 v4, v4, v6
        """)
    a(f"""
    v_readfirstlane_b32 s53, v5
    v_readfirstlane_b32 s52, v4
    v_cndmask_b32 v3, v4, v5, s[10:11]
    v_not_b32 v3, v3
    s_cmp_eq_u64 s[52:53], s[46:47]
    s_cbranch_scc1 L2_ksame
    s_mov_b64 s[46:47], s[52:53]
    s_cmp_ge_u32 s2, 176
    s_cbranch_scc1 L2_ksame
    s_andn2_b32 s54, 0x7ff, s52
    s_andn2_b32 s55, 0x7ff, s53
    s_lshl_b32 s54, s54, 10
    s_lshl_b32 s55, s55, 10
    s_add_u32 s54, s54, {WS_H}
    s_add_u32 s55, s55, {WS_H}
    s_mov_b32 m0, {ROWS}
    v_and_b32 v3, 0x7ff, v3
    buffer_load_dwordx4 v{LN16}, s[{WS}:{WS+3}], s54 offen sc1 lds
    s_mov_b32 m0, {ROWS + 1040}
    v_lshlrev_b32 v9, 4, v3
    buffer_load_dwordx4 v{LN16}, s[{WS}:{WS+3}], s55 offen sc1 lds
    buffer_load_dwordx4 {vr(STT,4)}, v9, s[{WS}:{WS+3}], s51 offen sc1
    L2_ksame:
    s_cmp_lg_u64 s[62:63], 0
    s_cbranch_scc1 L2_kpoll
    @S6
    v_mov_b32 v0, {CNT + 16}
    ds_write_b64 v0, v[4:5]
    s_cmp_ge_u32 s2, 176
    s_cbranch_scc1 L2_bc
    s_cmp_ge_u32 s64, 172
    s_cselect_b32 s48, 0x100000, s64
    s_lshl_b32 s48, s48, {ASH}
    s_add_u32 s48, s48, {WS_ACT}
    s_waitcnt vmcnt(1)
    """)
    for q in range(12): a(f"ds_read_b128 {vr(breg(q),4)}, v10 offset:{ROWS + q*16}")
    for q in range(16):
        a(f"s_waitcnt lgkmcnt({min(11, 15 - q)})")
        a(f"{MF16} {vr(D,4)}, {vr(AF+4*q,4)}, {vr(breg(q),4)}, {'0' if q == 0 else vr(D,4)}")
        if q < 4: a(f"ds_read_b128 {vr(breg(q+12),4)}, v10 offset:{ROWS + (q+12)*16}")
    E = R_ + 8
    a(f"""
    L2_stw:
    s_waitcnt vmcnt(0)
    v_cmp_ne_u32 vcc, s{sEP}, v{STT+3}
    s_nop 2
    s_cbranch_vccnz L2_stre
    L2_stok:
    s_nop 1
    """)
    for r in range(4): a(f"v_fma_f32 v{D+r}, -v{STT}, v{D2+r}, v{D+r}")
    for r in range(4): a(f"v_mul_f32 v{D+r}, v{D+r}, v{STT+1}")
    for r in range(4): a(f"v_mov_b32 v{E+4+r}, v{D+r}")
    for r in range(4): a(f"v_mul_f32 v{E+r}, {hex(f2u(-LOG2E))}, v{D+r}")
    for r in range(4): a(f"v_exp_f32 v{E+r}, v{E+r}")
    for r in range(4): a(f"v_permlane32_swap_b32 v{D+r}, v{E+4+r}")
    for r in range(4): a(f"v_add_f32 v{E+r}, 1.0, v{E+r}")
    for r in range(4): a(f"v_rcp_f32 v{E+r}, v{E+r}")
    for r in range(4): a(f"v_mul_f32 v{D+r}, v{D+r}, v{E+4+r}")
    for r in range(4): a(f"v_mul_f32 v{D+r}, v{D+r}, v{E+r}")
    a(f"""
    v_cvt_pk_bf16_f32 v{R_+2}, v{D}, v{D+1}
    v_cvt_pk_bf16_f32 v{R_+3}, v{D+2}, v{D+3}
    s_mov_b64 exec, 0x00030003
    buffer_store_dwordx2 {vr(R_+2,2)}, v{R_}, s[{WS}:{WS+3}], s48 offen sc0 sc1
    s_mov_b64 exec, -1
    @S10
    s_branch L2_bc
    L2_stre:
    s_add_u32 s49, s49, 1
    s_cmp_gt_u32 s49, 0x40000
    s_cbranch_scc1 L2_stok
    buffer_load_dwordx4 {vr(STT,4)}, v9, s[{WS}:{WS+3}], s51 offen sc1
    s_branch L2_stw
    L2_nokey:
    """)
    outval()
    a("s_waitcnt vmcnt(0)\ns_barrier")
    BFR = 164
    a(f"""
    L2_bc:
    v_and_b32 v9, 15, v2
    v_lshrrev_b32 v10, 2, v9
    v_lshrrev_b32 v11, 4, v2
    v_lshl_add_u32 v10, v11, 3, v10
    v_lshlrev_b32 v10, 4, v10
    v_and_b32 v8, 1, v9
    v_lshl_add_u32 v10, v8, 3, v10
    s_mul_i32 s49, s45, 3
    v_add_u32 v10, s49, v10
    """)
    for s_ in range(6):
        a(f"ds_read_b64_tr_b16 {vr(AF+4*s_,2)}, v10 offset:{FW + s_*512}\nds_read_b64_tr_b16 {vr(AF+4*s_+2,2)}, v10 offset:{FW + s_*512 + 64}")
    a(f"""
    v_mov_b32 v0, {CNT + 16}
    s_lshl_b32 s48, s{sG}, 3
    v_add_u32 v8, s48, v1
    s_waitcnt lgkmcnt(0)
    s_barrier
    ds_read_b64 v[4:5], v0
    s_waitcnt lgkmcnt(0)
    v_not_b32 v4, v4
    v_not_b32 v5, v5
    v_and_b32 v4, 0x7ff, v4
    v_and_b32 v5, 0x7ff, v5
    v_cmp_ne_u32 vcc, v4, v8
    v_cmp_ne_u32 s[62:63], v5, v8
    s_and_b64 exec, vcc, s[62:63]
    buffer_store_dwordx4 {vr(OV,4)}, v{XO}, s[{OUT}:{OUT+3}], s44 offen {OSC}
    s_mov_b64 exec, -1
    s_sub_u32 s48, s2, 176
    s_cmp_lt_u32 s48, 64
    s_cbranch_scc1 L2_st2
    L2_fin:
    @D0 15 {WS} {sW}
    s_endpgm
    """)
    a("L2_st2:")
    a(f"""
    v_and_b32 v6, 8, v2
    v_cmp_ne_u32 vcc, 0, v6
    s_mov_b32 s48, {WS_H}
    s_mov_b32 s51, {WS_ST}
    v_cndmask_b32 v3, v4, v5, vcc
    v_lshlrev_b32 v12, 10, v3
    v_lshl_add_u32 v12, v1, 1, v12
    v_add_u32 v12, s61, v12
    v_lshlrev_b32 v18, 4, v3
    buffer_load_ushort v13, v12, s[{WS}:{WS+3}], s48 offen sc1
    v_and_b32 v6, 1, v2
    v_lshlrev_b32 v0, {ASH}, v11
    v_lshl_add_u32 v0, v6, 4, v0
    s_mul_i32 s48, s{sW}, {24 << ASH}
    s_add_u32 s48, s48, {WS_ACT}
    s_mov_b32 s49, 0
    L2_apoll:
    buffer_load_dwordx4 {vr(STT,4)}, v18, s[{WS}:{WS+3}], s51 offen sc1
    """)
    for s_ in range(6):
        a(f"buffer_load_dwordx4 {vr(BFR+4*s_,4)}, v0, s[{WS}:{WS+3}], s48 offen offset:{s_*(4 << ASH)} sc1")
    a(f"s_add_u32 s49, s49, 1\ns_waitcnt vmcnt(0)\nv_max3_u32 v3, v{BFR}, v{BFR+1}, v{BFR+2}")
    for q in range(3, 23, 2): a(f"v_max3_u32 v3, v{BFR+q}, v{BFR+q+1}, v3")
    a(f"""
    v_max_u32 v3, v{BFR+23}, v3
    v_cmp_eq_u32 vcc, -1, v3
    v_cmp_ne_u32 s[62:63], s{sEP}, v{STT+3}
    s_cmp_gt_u32 s49, 0x40000
    s_cbranch_scc1 L2_agot
    s_or_b64 {'exec' if '--amask' in sys.argv else 'vcc'}, vcc, s[62:63]
    s_cbranch_scc0 L2_agot
    {SLEEP}
    s_branch L2_apoll
    L2_agot:
    s_mov_b64 exec, -1
    @S10
    """)
    for s_ in range(6): a(f"{MF16} {vr(D,4)}, {vr(AF+4*s_,4)}, {vr(BFR+4*s_,4)}, {'0' if s_ == 0 else vr(D,4)}")
    a(f"""
    v_and_b32 v3, 1, v11
    v_lshlrev_b32 v0, 5, v6
    v_lshl_add_u32 v0, v3, 4, v0
    s_lshl_b32 s48, s{sW}, 6
    s_add_u32 s48, s48, {FR}
    v_add_u32 v0, s48, v0
    v_lshlrev_b32 v10, 2, v9
    v_lshl_add_u32 v10, v11, 7, v10
    v_add_u32 v10, {FR}, v10
    ds_write_b128 v0, {vr(D,4)}
    s_waitcnt lgkmcnt(0)
    s_barrier
    s_cmp_lg_u32 s{sW}, 0
    s_cbranch_scc1 L2_fin
    ds_read2_b32 v[14:15], v10 offset0:0 offset1:16
    v_mul_f32 v16, {hex(f2u(-LOG2E))}, v{STT+2}
    v_exp_f32 v16, v16
    v_lshlrev_b32 v13, 16, v13
    v_add_f32 v16, 1.0, v16
    v_rcp_f32 v16, v16
    v_sub_f32 v17, v13, v{STT}
    v_fma_f32 v13, v17, v{STT+1}, v13
    s_waitcnt lgkmcnt(0)
    v_add_f32 v14, v14, v15
    v_mov_b32 v15, v14
    s_nop 1
    v_permlane32_swap_b32 v14, v15
    v_add_f32 v14, v14, v15
    v_mov_b32 v15, v14
    s_nop 1
    v_permlane16_swap_b32 v14, v15
    v_add_f32 v14, v14, v15
    v_fma_f32 v14, v14, v16, v13
    v_cvt_pk_bf16_f32 v14, v14, v14
    s_mov_b64 exec, 0xffff
    buffer_store_short v14, v12, s[{OUT}:{OUT+3}], 0 offen {OSC}
    @Q {WS}
    @D0 15 {WS} {sW}
    L2_end:
    s_endpgm
    """)
    AB = 12
    def wl(reg, sb, f):
        a(f"buffer_load_dwordx4 {vr(reg,4)}, v{LN16}, s[{WS}:{WS+3}], s{sb} offen offset:{(f & 3)*1024} sc1")
        if f % 4 == 3: a(f"s_add_u32 s{sb}, s{sb}, 4096")
    NE = 11
    breg = lambda f: 40 + 4*f if f < NE else WO + 4*(f - NE)
    a(f"""
    L2_old:
    s_setprio 0
    v_mov_b32 v3, {CNT}
    v_mov_b32 v4, 1
    s_waitcnt lgkmcnt(0)
    s_mov_b64 exec, 1
    ds_add_u32 v3, v4
    s_mov_b64 exec, -1
    s_add_u32 s48, s51, {4*65536}
    """)
    for f in range(NE): wl(breg(f), 48, f)
    a(f"""
    L2_spin:
    ds_read_b32 v4, v3
    s_waitcnt lgkmcnt(0)
    v_readfirstlane_b32 s49, v4
    s_cmp_ge_u32 s49, 4
    s_cbranch_scc1 L2_go
    s_sleep 2
    s_branch L2_spin
    L2_go:
    """)
    def half(acc, reg, after):
        for ks in range(3): a(f"ds_read_b128 {vr(BF[ks&3],4)}, v{BA} offset:{ks*64}")
        for ks in range(8):
            if ks + 3 < 8: a(f"ds_read_b128 {vr(BF[(ks+3)&3],4)}, v{BA} offset:{(ks+3)*64}")
            after(ks, 0)
            for i in range(4):
                a(f"{MF16} {vr(acc+4*i,4)}, {vr(reg(4*ks+i),4)}, {vr(BF[ks&3],4)}, {'0' if ks == 0 else vr(acc+4*i,4)}")
            after(ks, 1)
    a(f"s_add_u32 s49, s51, {32768 + ((32 - NE)//4)*4096}")
    def aftA(ks, post):
        if not post: a(f"s_waitcnt lgkmcnt({min(3, 7-ks)})"); return
        for slot in range(4*ks, 4*ks + 4):
            if slot < 32 - NE: wl(WO + 4*slot, 48, slot + NE)
            else: wl(WO + 4*slot, 49, slot)
    half(ACC, lambda f: WO + 4*f, aftA)
    a(f"s_add_u32 s49, s51, 32768")
    def aftB(ks, post):
        if not post:
            done = sum(1 for f in range(NE, 4*ks))
            a(f"s_waitcnt lgkmcnt({min(3, 7-ks)}) vmcnt({min(63, (31 - (4*ks+3)) + NE + done)})"); return
        for f in range(4*ks, 4*ks + 4):
            if f >= NE: wl(WO + 4*(f - NE), 49, f - NE)
    half(AB, breg, aftB)
    a("s_nop 3")
    for i in range(4): a(f"ds_write_b128 v{PA}, {vr(AB+4*i,4)} offset:{16*i}")
    a("s_waitcnt vmcnt(0)\ns_setprio 1\ns_branch L2_join")
    a(f"""
    L2_slow:
    v_mov_b32 v{KA}, v{LN16}
    v_mov_b32 v{M}, 0xff7fffff
    s_mov_b32 s{sN}, 64
    L2_maxloop:
    ds_read_b128 {vr(KF,4)}, v{KA}
    v_add_u32 v{KA}, {TILE}, v{KA}
    s_waitcnt lgkmcnt(0)
    {MF32} {vr(S,16)}, {vr(KF,4)}, {vr(Q,4)}, 0
    s_sub_u32 s{sN}, s{sN}, 1
    s_nop 10
    """)
    for r in range(8): a(f"v_max3_f32 v{M}, v{S+2*r}, v{S+2*r+1}, v{M}")
    a(f"""
    s_cmp_lg_u32 s{sN}, 0
    s_cbranch_scc1 L2_maxloop
    v_mov_b32 v3, v{M}
    v_mov_b32 v{KA}, v{LN16}
    v_mov_b32 v{VA}, v{VA0}
    v_permlane32_swap_b32 v{M}, v3
    v_max_f32 v{M}, v{M}, v3
    """)
    for r in range(16): a(f"v_sub_f32 v{C+r}, 0, v{M}\nv_mov_b32 v{O+r}, 0")
    a(f"""
    s_mov_b32 s{sN}, 64
    L2_slowloop:
    ds_read_b128 {vr(KF,4)}, v{KA}
    ds_read_b128 {vr(VF,4)}, v{VA}
    ds_read_b128 {vr(VF+4,4)}, v{VA} offset:544
    v_add_u32 v{KA}, {TILE}, v{KA}
    v_add_u32 v{VA}, {TILE}, v{VA}
    s_waitcnt lgkmcnt(0)
    {MF32} {vr(S,16)}, {vr(KF,4)}, {vr(Q,4)}, {vr(C,16)}
    s_sub_u32 s{sN}, s{sN}, 1
    s_nop 10
    """)
    for i in range(16): a(f"v_exp_f32 v{S+i}, v{S+i}")
    a(f"""
    s_nop 1
    {SMF} {vr(O,16)}, {vr(VF,4)}, {vr(S,8)}, v{IDX}
    {SMF} {vr(O,16)}, {vr(VF+4,4)}, {vr(S+8,8)}, v{IDX}
    s_cmp_lg_u32 s{sN}, 0
    s_cbranch_scc1 L2_slowloop
    s_nop 11
    v_rcp_f32 v3, v{O+8}
    s_branch L2_epi
    """)
    k1_cold(a)
    return desc(KNAME, 256, 70)
def main():
    hdr = open("sequential_preLN__grouped_kv_mqa__moe_arch_mod__prompt.s.ref").read().split("\n")
    top = [l for l in hdr if l.startswith(";") and "@launch" not in l and "Override" not in l and "grid=ceil" not in l]
    a = Asm()
    k1(a)
    d = k2(a)
    out = "\n".join(top) + "\n"
    out += f"; @launch grid=(256,1,1) block=(512,1,1) lds={max(K1_LDS, K2_LDS)}\n"
    out += '.amdgcn_target "amdgcn-amd-amdhsa--gfx950"\n.text\n' + a.text() + '.section .rodata,"a"\n' + d
    sys.stdout.write(out)
main()
```

```python
import sys, struct
def f2u(x): return struct.unpack("<I", struct.pack("<f", x))[0]

WS_Q   = 0
WS_KV  = 2 << 20
WS_WO  = 3 << 20
WS_H   = 4 << 20

WS_ST  = (6 << 20) + 0x10000
WS_ACT = (6 << 20) + 0x20000
WS_KEY = WS_ACT + 0x10000
KSH = 7; ASH = 7; FSH = 7
for _x in sys.argv:
    if _x.startswith('--ksh='): KSH = int(_x.split('=')[1])
    if _x.startswith('--fsh='): FSH = int(_x.split('=')[1])
    if _x.startswith('--ash='): ASH = int(_x.split('=')[1])
WS_FLG = WS_KEY + 0x10000
WS_QB = 7 << 20
sEP = 68
KNAME = 'sequential_preLN__grouped_kv_mqa__moe_arch_mod__prompt_kernel'
WS_SIZE = 8 << 20
TILE = 2112
QSCALE = 0.25 * 1.4426950408889634
EPS = 1e-5
SHIFT = 96.0
for _x in sys.argv:
    if _x.startswith('--shift='): SHIFT = float(_x.split('=')[1])

class Asm:
    def __init__(self): self.l = []
    def __call__(self, s):
        for x in s.split("\n"):
            x = x.strip()
            if x.startswith("@S"): stamp(self, int(x[2:])); continue
            if x.startswith("@P"): padstore(self, *[int(t) for t in x[2:].split()]); continue
            if x.startswith("@Q"): padspin(self, *[int(t) for t in x[2:].split()]); continue
            if x.startswith("@T"): padstamp(self, int(x[2:])); continue
            if x.startswith("@D"): dump(self, *[int(t) for t in x[2:].split()]); continue
            if x: self.l.append(("" if x.endswith(":") else "    ") + x)
    def text(self): return "\n".join(self.l) + "\n"

def srd(a, d, p, size):
    a(f"s_mov_b32 s{d}, s{p}\ns_and_b32 s{d+1}, s{p+1}, 0xffff\ns_mov_b32 s{d+2}, {size}\ns_mov_b32 s{d+3}, 0x20000")
def vr(b, n): return f"v[{b}:{b+n-1}]"
def head(a, name):
    a(f".globl {name}\n.p2align 8\n.type {name},@function\n{name}:")
def desc(name, nv, ns):
    return f""".p2align 6
.amdhsa_kernel {name}
  .amdhsa_next_free_vgpr {nv}
  .amdhsa_next_free_sgpr {100 if (DIAG or PAD is not None) else ns}
  .amdhsa_accum_offset {(nv+3)//4*4}
  .amdhsa_group_segment_fixed_size 0
  .amdhsa_kernarg_size 104
  .amdhsa_user_sgpr_count 2
  .amdhsa_user_sgpr_kernarg_segment_ptr 1
  .amdhsa_system_sgpr_workgroup_id_x 1
.end_amdhsa_kernel
"""
DIAG = "--diag" in sys.argv
WS_DIAG = 16 << 20
if DIAG: WS_SIZE = 32 << 20
LIGHT = '--light' in sys.argv
def stamp(a, i, force=False):
    if LIGHT and i != 0 and not force: return
    if DIAG: a(f"{'s_memtime' if i >= 13 else 's_memrealtime'} s[{70+2*i}:{71+2*i}]\ns_waitcnt lgkmcnt(0)")
DIAG2 = "--diag2" in sys.argv
D2SEL = {0: [(0, 1), (2, 0), (8, 0)], 1: [(0, 1), (1, 0), (3, 0), (4, 0), (8, 0), (10, 0), (12, 0)], 2: [(0, 1), (1, 0), (3, 0), (5, 0), (6, 0), (7, 0)]}
_dl = [0]
def dump(a, kidx, n, WS, sW):
    if not DIAG: return
    stamp(a, min(n - 1, 12), True)
    if DIAG2:
        _dl[0] += 1
        base = sum(len(D2SEL[k]) for k in range(kidx))
        a(f"s_and_b32 s98, s2, 15\ns_cmp_lg_u32 s98, 0\ns_cbranch_scc1 LD_{_dl[0]}\ns_load_dwordx2 s[98:99], s[0:1], 88\ns_mov_b64 exec, 1\nv_mov_b32 v1, 0\ns_waitcnt lgkmcnt(0)\ns_add_u32 s98, s98, {512*(2-kidx)}\ns_addc_u32 s99, s99, 0")
        for j, (i, inv) in enumerate(D2SEL[kidx]):
            a(f"v_mov_b32 v0, s{70+2*i}")
            if inv: a("v_not_b32 v0, v0")
            a(f"global_atomic_umax v1, v0, s[98:99] offset:{4*(base+j)}\ns_nop 1")
        a(f"LD_{_dl[0]}:")
        return
    a(f"s_mov_b64 exec, 1\ns_lshl_b32 s69, s2, 4\ns_add_u32 s69, s69, s{sW}\ns_lshl_b32 s69, s69, 6\ns_add_u32 s69, s69, {WS_DIAG + kidx * (1 << 20)}\nv_mov_b32 v1, 0")
    for i in range(n):
        a(f"v_mov_b32 v0, s{70+2*i}\nbuffer_store_dword v0, v1, s[{WS}:{WS+3}], s69 offen offset:{4*i}")
PAD = [int(x.split("=")[1]) for x in sys.argv if x.startswith("--pad=")]
PAD = PAD[0] if PAD else None
WS_PAD = (6 << 20)
def padstamp(a, k):
    if PAD == k: a("s_memrealtime s[94:95]\ns_waitcnt lgkmcnt(0)")
def padstore(a, k, WS, sW): pass
def padspin(a, WS):
    if PAD is None: return
    a(f"s_mov_b32 s97, 0\nLQ_spin:\ns_memrealtime s[92:93]\ns_waitcnt lgkmcnt(0)\ns_sub_u32 s98, s92, s94\ns_add_u32 s97, s97, 1\ns_cmp_gt_u32 s97, 100000\ns_cbranch_scc1 LQ_done\ns_cmp_lt_u32 s98, 6000\ns_cbranch_scc1 LQ_spin\nLQ_done:")
MF32 = "v_mfma_f32_32x32x16_bf16"
MF16 = "v_mfma_f32_16x16x32_bf16"

ZERO_KB = 8
K1_KV = 131072
K1_CS = 147456
K1_KC = K1_CS + 1024
K1_KP = K1_KC + 1024
K1_PS = K1_KP + 4096
K1_EP = K1_PS + 1024
K1_LDS = K1_EP + 64
QSC = 'sc1' if '--qsc1' in sys.argv else '' if '--qplain' in sys.argv else 'sc0 sc1'
CODE_SPAN = 18600
def rowstat(a, s, m, r):
    a(f"""
    v_add_f32 v{m}, v{s}, v{s+2}
    v_add_f32 v{r}, v{s+1}, v{s+3}
    v_mul_f32 v{m}, {hex(f2u(-1.0/512))}, v{m}
    v_mul_f32 v{r}, {hex(f2u(1.0/512))}, v{r}
    v_fma_f32 v{r}, -v{m}, v{m}, v{r}
    v_max_f32 v{r}, 0, v{r}
    v_add_f32 v{r}, {hex(f2u(EPS))}, v{r}
    v_rsq_f32 v{r}, v{r}
    """)
def split_ab(a, src, dst, kind):
    a(f"v_and_b32 v11, 0xffff0000, v{src}\nv_sub_f32 v12, v{src}, v11")
    if kind == "m": a(f"v_cvt_pk_bf16_f32 v{dst}, v11, v12\nv_cvt_pk_bf16_f32 v{dst+1}, v11, 0")
    else: a(f"v_cvt_pk_bf16_f32 v{dst}, v11, v11\nv_cvt_pk_bf16_f32 v{dst+1}, v12, 0")
def k1(a):
    X, WQ, WKV, WO, WS = 16, 20, 24, 32, 36
    sW, sTG, sCG = 40, 41, 42
    DBG = 28
    ONES = 69
    VL = 13
    head(a, KNAME)
    a(f"""
    s_cmp_ge_u32 s2, 256
    s_cbranch_scc1 L2_end
    @S0
    @T0
    s_load_dwordx8 s[4:11], s[0:1], 0
    s_load_dwordx2 s[12:13], s[0:1], 32
    s_load_dwordx2 s[14:15], s[0:1], 96
    s_load_dwordx2 s[64:65], s[0:1], 88
    v_lshrrev_b32 v1, 6, v0
    v_and_b32 v2, 63, v0
    v_readfirstlane_b32 s{sW}, v1
    s_and_b32 s43, s2, 7
    s_lshr_b32 s44, s2, 3
    s_and_b32 s45, s44, 3
    s_lshl_b32 s{sTG}, s43, 2
    s_add_u32 s{sTG}, s{sTG}, s45
    s_lshr_b32 s{sCG}, s44, 2
    v_and_b32 v3, 15, v2
    v_lshrrev_b32 v4, 4, v2
    v_lshlrev_b32 v{VL}, 4, v2
    s_and_b32 s46, s{sW}, 3
    s_lshl_b32 s50, s46, 12
    s_and_b32 s58, s{sCG}, 3
    s_cmp_lt_u32 s{sW}, 4
    s_cbranch_scc1 L1_gemm
    """)
    VX, VW, WT, CS, WR, XR = 8, 12, 24, 70, 48, 32
    pass
    for i in range(4):
        a(f"v_add_u32 v7, {4*i}, v4\nv_xor_b32 v{VX+i}, v7, v3\nv_lshlrev_b32 v{VX+i}, 4, v{VX+i}\nv_lshl_add_u32 v{VX+i}, v7, 10, v{VX+i}")
    a(f"""
    v_lshrrev_b32 v7, 3, v2
    v_and_b32 v{VW}, 1, v4
    v_lshlrev_b32 v{VW}, 2, v{VW}
    v_and_b32 v14, 7, v2
    v_xor_b32 v{VW}, v{VW}, v14
    v_lshlrev_b32 v{VW}, 4, v{VW}
    v_lshl_add_u32 v{VW}, v7, 10, v{VW}
    s_lshl_b32 s48, s{sTG}, 16
    s_lshl_b32 s43, s46, 14
    s_add_u32 s48, s48, s43
    s_lshl_b32 s49, s46, 15
    s_lshl_b32 s43, s{sCG}, 7
    s_add_u32 s49, s49, s43
    {'s_mov_b32 s55, 0' if '--norot' in sys.argv else f's_add_u32 s55, s{sCG}, s{sTG}'}
    s_waitcnt lgkmcnt(0)
    """)
    srd(a, X, 4, 2 << 20)
    def chunk(c, sh): a(f"s_add_u32 s43, s55, {c}\ns_and_b32 s43, s43, 3\ns_lshl_b32 s43, s43, {sh}")
    def issx(c):
        chunk(c, 8); a("s_add_u32 s51, s48, s43")
        for i in range(4):
            a(f"s_add_u32 m0, s50, {c*16384 + i*1024}\ns_nop 0\nbuffer_load_dwordx4 v{VX+i}, s[{X}:{X+3}], s51 offen lds")
    def issw(c):
        chunk(c, 17); a("s_add_u32 s51, s49, s43")
        for i in range(4):
            a(f"s_add_u32 m0, s50, {65536 + c*16384 + i*1024}\ns_add_u32 s52, s51, {8*i*1024}\nbuffer_load_dwordx4 v{VW}, s[{WQ}:{WQ+3}], s52 offen lds")
    def isskv(c):
        chunk(c, 12)
        a(f"s_add_u32 m0, s61, {K1_KV + c*4096}\ns_add_u32 s52, s61, s43\nbuffer_load_dwordx4 v{VL}, s[{WKV}:{WKV+3}], s52 offen lds")
    issx(0)
    a(f"s_cmp_ge_u32 s{sCG}, 4\ns_cselect_b32 s8, s10, s8\ns_cselect_b32 s9, s11, s9\ns_lshl_b32 s61, s46, 10")
    srd(a, WKV, 8, 16 << 10)
    isskv(0); issx(1); isskv(1)
    srd(a, WQ, 6, 512 << 10)
    a(f"""
    v_mov_b32 v{ONES}, 0x3f803f80
    v_add_u32 v30, {K1_KC}, v{VL}
    s_lshl_b32 s43, s58, 8
    s_add_u32 s43, s43, {K1_PS}
    v_lshl_add_u32 v31, v3, 4, s43
    s_lshl_b32 s56, s{sTG}, 1
    s_lshr_b32 s43, s58, 1
    s_add_u32 s56, s56, s43
    s_mul_i32 s56, s56, {TILE}
    s_add_u32 s56, s56, {WS_KV}
    s_and_b32 s57, s58, 1
    s_lshl_b32 s43, s57, 8
    s_mul_i32 s44, s57, 544
    s_add_u32 s44, s44, 1024
    s_cmp_ge_u32 s{sCG}, 4
    s_cselect_b32 s43, s44, s43
    s_cselect_b64 s[62:63], -1, 0
    s_add_u32 s56, s56, s43
    v_and_b32 v14, 1, v4
    v_lshrrev_b32 v15, 1, v4
    v_lshlrev_b32 v26, 9, v14
    v_lshl_add_u32 v26, v15, 3, v26
    v_lshlrev_b32 v27, 8, v15
    v_lshl_add_u32 v27, v14, 3, v27
    v_cndmask_b32 v26, v26, v27, s[62:63]
    v_lshl_add_u32 v26, v3, 4, v26
    v_lshlrev_b32 v27, 4, v4
    v_lshlrev_b32 v28, 2, v3
    v_cndmask_b32 v27, v28, v27, s[62:63]
    v_cndmask_b32 v28, 0, 4, s[62:63]
    v_mov_b32 v29, 0x7fff0000
    v_mov_b32 v74, 0
    v_mov_b32 v75, 0
    v_mov_b32 v78, 0
    v_mov_b32 v79, 0
    """)
    srd(a, WS, 14, WS_SIZE)
    pass
    size = [5, 5, 5, 5, 4, 4, 4, 4]
    for g in range(5):
        if g + 2 < 4: issx(g + 2); isskv(g + 2)
        else: issw(g - 2)
        a(f"s_waitcnt vmcnt({sum(size[g+1:g+3])})\ns_barrier")
    issw(3)
    a(f"""
    v_mov_b32 v7, {K1_EP}
    ds_read_b32 v92, v7
    s_cmp_eq_u32 s46, 0
    s_cbranch_scc1 L1_fin
    s_waitcnt vmcnt(8)
    s_barrier
    s_waitcnt vmcnt(4)
    s_barrier
    s_waitcnt vmcnt(0) lgkmcnt(0)
    s_barrier
    v_readfirstlane_b32 s{sEP}, v92
    s_branch L2_start
    L1_fin:
    ds_read_b128 v[80:83], v31
    ds_read_b128 v[84:87], v30
    ds_read_b128 {vr(XR,4)}, v30 offset:1024
    ds_read_b128 {vr(XR+4,4)}, v30 offset:2048
    ds_read_b128 {vr(XR+8,4)}, v30 offset:3072
    ds_read_b128 {vr(XR+12,4)}, v30 offset:4096
    s_waitcnt lgkmcnt(4)
    """)
    rowstat(a, 80, 8, 9)
    a(f"""
    v_add_f32 v84, v84, v85
    v_add_f32 v86, v86, v87
    ds_bpermute_b32 v88, v27, v9
    v_add_u32 v27, v27, v28
    ds_bpermute_b32 v89, v27, v9
    v_add_u32 v27, v27, v28
    ds_bpermute_b32 v90, v27, v9
    v_add_u32 v27, v27, v28
    ds_bpermute_b32 v91, v27, v9
    v_add_f32 v84, v84, v86
    v_cndmask_b32 v85, v84, v8, s[62:63]
    v_cndmask_b32 v86, v8, v84, s[62:63]
    """)
    split_ab(a, 85, 72, "c"); split_ab(a, 86, 76, "m")
    a("s_waitcnt lgkmcnt(4)")
    for r in range(4):
        a(f"v_add_f32 v{XR+r}, v{XR+r}, v{XR+4+r}\nv_add_f32 v{XR+8+r}, v{XR+8+r}, v{XR+12+r}")
    for r in range(4): a(f"v_add_f32 v{XR+r}, v{XR+r}, v{XR+8+r}")
    a(f"""
    v_cmp_gt_u32 vcc, 4, v2
    v_lshlrev_b32 v12, 2, v2
    {MF16} {vr(XR,4)}, v[72:75], v[76:79], {vr(XR,4)}
    v_cndmask_b32 v14, 0, v{ONES}, vcc
    s_and_b64 s[62:63], s[62:63], 0xff
    s_waitcnt lgkmcnt(0)
    s_nop 4
    """)
    for r in range(4): a(f"v_mul_f32 v{XR+r}, v{88+r}, v{XR+r}")
    a(f"""
    v_cvt_pk_bf16_f32 v{XR}, v{XR}, v{XR+1}
    v_cvt_pk_bf16_f32 v{XR+1}, v{XR+2}, v{XR+3}
    buffer_store_dwordx2 {vr(XR,2)}, v26, s[{WS}:{WS+3}], s56 offen sc0 sc1
    v_cndmask_b32 v12, v29, v12, s[62:63]
    buffer_store_dword v14, v12, s[{WS}:{WS+3}], s56 offen offset:512 sc0 sc1
    v_readfirstlane_b32 s{sEP}, v92
    s_lshl_b32 s43, s2, {KSH}
    s_add_u32 s43, s43, {WS_FLG}
    v_mov_b32 v7, 0
    s_waitcnt vmcnt(10)
    s_barrier
    s_waitcnt vmcnt(6)
    s_barrier
    s_waitcnt vmcnt(0)
    s_mov_b64 exec, 1
    buffer_store_dword v92, v7, s[{WS}:{WS+3}], s43 offen sc0 sc1
    s_mov_b64 exec, -1
    @S1
    s_barrier
    s_branch L2_start
    """)
    D1 = 16
    XF, WF = 120, 32
    XA, WA, WB, WOD = 72, 68, 70, 80
    KX, KW = 92, 93
    SX, SXX, KC, KD = 14, 15, 71, 96
    KF = 104
    a(f"""
    L1_gemm:
    v_and_b32 v5, 31, v2
    v_lshrrev_b32 v6, 5, v2
    s_and_b32 s53, s{sW}, 1
    s_lshr_b32 s54, s{sW}, 1
    s_lshl_b32 s59, s2, 1
    s_add_u32 s59, s59, s53
    s_lshr_b32 s43, s59, 6
    s_lshr_b32 s44, s59, 2
    s_and_b32 s44, s44, 15
    s_and_b32 s45, s59, 3
    s_lshl_b32 s44, s44, 15
    s_lshl_b32 s43, s43, 7
    s_lshl_b32 s45, s45, 3
    s_add_u32 s47, s44, s43
    s_add_u32 s47, s47, s45
    v_lshrrev_b32 v7, 2, v3
    v_lshlrev_b32 v7, 5, v7
    v_and_b32 v8, 3, v3
    v_lshl_add_u32 v7, v8, 1, v7
    v_lshl_add_u32 v7, v4, 13, v7
    v_add_u32 v8, 4096, v7
    s_waitcnt lgkmcnt(0)
    """)
    if "--pf" in sys.argv:
        a(f"""
        s_lshr_b32 s43, s2, 3
        s_lshl_b32 s43, s43, 14
        s_lshl_b32 s44, s53, 13
        s_add_u32 s43, s43, s44
        s_lshl_b32 s44, s{sTG}, 16
        s_lshl_b32 s45, s{sCG}, 13
        s_add_u32 s44, s44, s45
        s_cmp_eq_u32 s{sW}, 3
        s_cselect_b32 s44, 0x400000, s44
        s_cmp_ge_u32 s{sW}, 2
        s_cselect_b32 s43, s44, s43
        s_cselect_b32 s{X}, s4, s6
        s_cselect_b32 s{X+1}, s5, s7
        s_mov_b32 s{X+2}, 0x80000
        s_cselect_b32 s{X+2}, 0x200000, s{X+2}
        s_and_b32 s{X+1}, s{X+1}, 0xffff
        s_mov_b32 s{X+3}, 0x20000
        v_lshlrev_b32 v9, 7, v2
        buffer_load_dword v252, v9, s[{X}:{X+3}], s43 offen
        """)
    srd(a, WO, 12, 512 << 10); srd(a, WS, 14, WS_SIZE); srd(a, DBG, 64, 256)
    a(f"s_cmp_ge_u32 s{sW}, 2\ns_cbranch_scc1 L1_nowo")
    for j in range(8):
        a(f"buffer_load_ushort v{WOD + j}, v{7 + j//4}, s[{WO}:{WO+3}], s47 offen offset:{(j & 3) * 1024}")
    a(f"""
    s_branch L1_noz
    L1_nowo:
    s_cmp_eq_u32 s{sW}, 2
    s_cbranch_scc1 L1_ini
    """)
    if "--tlb" in sys.argv:
        a(f"""
        s_load_dwordx8 s[16:23], s[0:1], 48
        s_load_dwordx2 s[24:25], s[0:1], 80
        v_lshlrev_b32 v9, 20, v2
        s_mov_b64 exec, 0xff
        buffer_load_dword v252, v9, s[{WS}:{WS+3}], 0 offen offset:2048
        s_mov_b64 exec, 1
        global_load_dword v253, v9, s[6:7]
        s_waitcnt lgkmcnt(0)
        global_load_dword v253, v9, s[16:17]
        global_load_dword v253, v9, s[18:19]
        global_load_dword v253, v9, s[20:21]
        global_load_dword v253, v9, s[22:23]
        global_load_dword v253, v9, s[24:25]
        s_mov_b64 exec, -1
        """)
    a(f"""
    s_cmp_lg_u32 s2, 0
    s_cbranch_scc1 L1_noz
    s_memrealtime s[44:45]
    v_mov_b32 v9, 0
    s_waitcnt lgkmcnt(0)
    s_or_b32 s44, s44, 1
    v_mov_b32 v{WOD}, s44
    s_mov_b64 exec, 1
    buffer_store_dword v{WOD}, v9, s[{DBG}:{DBG+3}], 0 offen sc0 sc1
    s_mov_b64 exec, -1
    s_branch L1_noz
    L1_ini:
    s_cmp_lt_u32 s2, 172
    s_cselect_b32 s44, -1, 0
    v_mov_b32 v{WOD}, s44
    v_mov_b32 v{WOD+1}, 0
    v_lshlrev_b32 v9, 2, v2
    s_lshl_b32 s43, s2, {ASH}
    s_add_u32 s43, s43, {WS_ACT}
    s_lshl_b32 s44, s2, {KSH}
    s_add_u32 s44, s44, {WS_KEY}
    s_mov_b64 exec, 0xff
    buffer_store_dword v{WOD}, v9, s[{WS}:{WS+3}], s43 offen sc0 sc1
    s_mov_b64 exec, 3
    buffer_store_dword v{WOD+1}, v9, s[{WS}:{WS+3}], s44 offen sc0 sc1
        s_mov_b64 exec, -1
    L1_noz:
    """)
    if "--cpf" in sys.argv:
        a(f"""
        s_getpc_b64 s[44:45]
        s_and_b32 s44, s44, 0xffffff00
        s_lshr_b32 s43, s2, 3
        s_lshl_b32 s43, s43, 2
        s_add_u32 s43, s43, s{sW}
        s_lshl_b32 s43, s43, 8
        v_lshl_add_u32 v9, v2, 2, s43
        v_min_u32 v9, {CODE_SPAN}, v9
        global_load_dword v252, v9, s[44:45]
        """)
    a(f"""
    s_lshl_b32 s43, s54, 1
    v_xor_b32 v12, s43, v3
    s_lshl_b32 s43, s53, 13
    v_lshlrev_b32 v9, 8, v5
    v_add_u32 v9, s43, v9
    """)
    for j in range(8):
        a(f"v_add_u32 v10, {2*j}, v6\nv_xor_b32 v10, v10, v12\nv_lshl_add_u32 v{XA+j}, v10, 4, v9")
    a(f"""
    v_lshrrev_b32 v9, 2, v3
    v_lshl_add_u32 v10, v6, 3, v9
    v_lshlrev_b32 v10, 7, v10
    v_lshrrev_b32 v11, 1, v9
    v_xor_b32 v11, s54, v11
    v_lshl_add_u32 v10, v11, 6, v10
    v_and_b32 v11, 1, v4
    v_lshl_add_u32 v10, v11, 5, v10
    v_and_b32 v11, 3, v3
    v_lshl_add_u32 v10, v11, 3, v10
    s_lshl_b32 s43, s54, 11
    s_add_u32 s44, s43, 0x10000
    s_sub_u32 s43, {0x10000 + 2048}, s43
    v_add_u32 v{WA}, s44, v10
    v_add_u32 v{WB}, s43, v10
    v_lshl_add_u32 v{KW}, v4, 3, v9
    v_lshlrev_b32 v{KW}, 5, v{KW}
    v_lshl_add_u32 v{KW}, v11, 3, v{KW}
    s_lshl_b32 s43, s46, 10
    s_add_u32 s43, s43, {K1_KV}
    v_add_u32 v{KW}, s43, v{KW}
    s_lshl_b32 s43, s46, 2
    v_add_u32 v{KX}, s43, v4
    v_xor_b32 v{KX}, v{KX}, v3
    v_lshlrev_b32 v{KX}, 4, v{KX}
    v_lshl_add_u32 v{KX}, v3, 8, v{KX}
    s_lshl_b32 s43, s58, 12
    v_add_u32 v{KX}, s43, v{KX}
    v_lshrrev_b32 v64, 3, v5
    v_lshlrev_b32 v64, 13, v64
    v_and_b32 v11, 7, v5
    v_lshl_add_u32 v64, v11, 4, v64
    v_lshl_add_u32 v64, v6, 9, v64
    s_lshl_b32 s60, s{sTG}, 16
    s_lshl_b32 s44, s53, 15
    s_add_u32 s60, s60, s44
    s_lshl_b32 s44, s{sCG}, 10
    s_add_u32 s60, s60, s44
    s_lshl_b32 s44, s54, 8
    s_add_u32 s60, s60, s44
    s_add_u32 s60, s60, {WS_Q}
    s_lshl_b32 s43, s53, 9
    s_add_u32 s43, s43, {K1_PS}
    v_lshl_add_u32 v67, v5, 4, s43
    s_lshl_b32 s43, s54, 3
    v_lshl_add_u32 v65, v6, 2, v67
    v_add_u32 v65, s43, v65
    s_lshl_b32 s43, s46, 2
    s_add_u32 s43, s43, {K1_KC}
    v_add_u32 v94, s43, v{VL}
    s_lshl_b32 s43, s46, 10
    s_add_u32 s43, s43, {K1_KP}
    v_add_u32 v95, s43, v{VL}
    s_lshl_b32 s59, s59, 10
    s_add_u32 s59, s59, {WS_WO}
    s_cmp_ge_u32 s{sW}, 2
    s_cselect_b32 s59, {WS_SIZE}, s59
    s_cmp_ge_u32 s{sCG}, 4
    s_cselect_b64 s[62:63], -1, 0
    v_mov_b32 v{ONES}, 0x3f803f80
    v_mov_b32 v{SX}, 0
    v_mov_b32 v{SXX}, 0
    v_mov_b32 v{KC}, 0
    v_mov_b32 v90, 0
    v_mov_b32 v91, 0
    v_mov_b32 v250, 0
    v_mov_b32 v251, 0
    """)
    def xreads(c):
        kx, kw = KF + 8*(c & 1), KF + 8*(c & 1) + 4
        for u in (0, 2, 4, 6): a(f"ds_read_b128 {vr(XF+32*c+4*u,4)}, v{XA+u} offset:{c*16384}")
        a(f"ds_read_b128 {vr(kx,4)}, v{KX} offset:{c*16384}")
        a(f"ds_read_b64_tr_b16 {vr(kw,2)}, v{KW} offset:{c*4096}\nds_read_b64_tr_b16 {vr(kw+2,2)}, v{KW} offset:{c*4096+128}")
        for u in (1, 3, 5, 7): a(f"ds_read_b128 {vr(XF+32*c+4*u,4)}, v{XA+u} offset:{c*16384}")
    def wread(ks):
        ar = WB if ks & 1 else WA
        off = (ks & ~1) * 2048
        a(f"ds_read_b64_tr_b16 {vr(WF+4*(ks&7),2)}, v{ar} offset:{off}\nds_read_b64_tr_b16 {vr(WF+4*(ks&7)+2,2)}, v{ar} offset:{off + 512}")
    def work(c):
        kx, kw = KF + 8*(c & 1), KF + 8*(c & 1) + 4
        for u in (0, 2, 4, 6):
            a(f"s_waitcnt lgkmcnt({10 - u//2})")
            for q in range(4): a(f"v_dot2c_f32_bf16 v{SX}, v{XF+32*c+4*u+q}, v{ONES}\nv_dot2c_f32_bf16 v{SXX}, v{XF+32*c+4*u+q}, v{XF+32*c+4*u+q}")
        a("s_waitcnt lgkmcnt(4)")
        for q in range(4): a(f"v_dot2c_f32_bf16 v{KC}, v{kw+q}, v{ONES}")
        a(f"{MF16} {vr(KD,4)}, {vr(kw,4)}, {vr(kx,4)}, {'0' if c == 0 else vr(KD,4)}")
        a(f"{MF16} {vr(KD+4,4)}, {vr(kx,4)}, {vr(kw,4)}, {'0' if c == 0 else vr(KD+4,4)}")
    for c in range(4):
        a("s_barrier")
        if c == 0: a("@T3")
        xreads(c)
        work(c)
        if c == 1:
            a(f"""
            s_waitcnt vmcnt(0)
            v_lshl_or_b32 v{WOD}, v{WOD+1}, 16, v{WOD}
            v_lshl_or_b32 v{WOD+1}, v{WOD+3}, 16, v{WOD+2}
            v_lshl_or_b32 v{WOD+2}, v{WOD+5}, 16, v{WOD+4}
            v_lshl_or_b32 v{WOD+3}, v{WOD+7}, 16, v{WOD+6}
            buffer_store_dwordx4 {vr(WOD,4)}, v{VL}, s[{WS}:{WS+3}], s59 offen sc0 sc1
            buffer_load_dword v66, v90, s[{DBG}:{DBG+3}], 0 offen sc1
            """)
    a(f"""
    v_permlane32_swap_b32 v{SX}, v{SXX}
    s_waitcnt vmcnt(0)
    ds_write_b32 v94, v{KC}
    v_add_f32 v{SX}, v{SX}, v{SXX}
    v_readfirstlane_b32 s{sEP}, v66
    ds_write_b32 v65, v{SX}
    v_mov_b32 v7, {K1_EP}
    s_cmp_eq_u32 s{sEP}, 0
    s_cbranch_scc1 L1_tag
    L1_tagok:
    """)
    for r in range(4): a(f"v_cndmask_b32 v{KD+r}, v{KD+r}, v{KD+4+r}, s[62:63]")
    a(f"ds_write_b128 v95, {vr(KD,4)}\nds_write_b32 v7, v66\nds_write_b32 v7, v90 offset:8\nv_mov_b32 v{SXX}, 0\ns_waitcnt lgkmcnt(0)\ns_barrier\n@T4")
    for ks in range(7): wread(ks)
    a("s_waitcnt lgkmcnt(12)")
    wread(7)
    for g in range(8):
        a(f"s_waitcnt lgkmcnt({8 if g < 7 else 0})")
        for ks in range(4*g, 4*g + 4):
            for q in range(4): a(f"v_dot2c_f32_bf16 v{SXX}, v{WF+4*(ks&7)+q}, v{ONES}")
        if g % 2 == 0 and g < 6: a("s_barrier")
        if g == 2: a("ds_read_b128 v[84:87], v67")
        for ks in range(4*g, 4*g + 4):
            a(f"{MF32} {vr(D1,16)}, {vr(WF+4*(ks&7),4)}, {vr(XF+4*ks,4)}, {'0' if ks == 0 else vr(D1,16)}")
            if ks + 8 < 32: wread(ks + 8)
            if ks == 16: rowstat(a, 84, 8, 9)
            if ks == 17: split_ab(a, 8, 88, "m"); a(f"v_mul_f32 v10, {hex(f2u(QSCALE))}, v9")
            if ks == 29: a("s_nop 0"); split_ab(a, SXX, 248, "c")
    a(f"""
    {MF32} {vr(D1,16)}, v[248:251], v[88:91], {vr(D1,16)}
    v_mov_b32 v35, v66
    v_mov_b32 v39, v66
    v_mov_b32 v43, v66
    v_lshrrev_b32 v44, 3, v5
    v_lshlrev_b32 v44, 12, v44
    v_and_b32 v11, 7, v5
    v_lshl_add_u32 v44, v11, 4, v44
    v_lshl_add_u32 v44, v6, 8, v44
    s_sub_u32 s61, s60, {WS_Q}
    s_lshr_b32 s61, s61, 1
    s_add_u32 s61, s61, {WS_QB}
    s_nop 0
    """)
    dst = [32, 33, 34, 36, 40, 41, 42, 37]
    for r in range(8):
        a(f"v_mul_f32 v{D1+2*r}, v10, v{D1+2*r}\nv_mul_f32 v{D1+2*r+1}, v10, v{D1+2*r+1}\nv_cvt_pk_bf16_f32 v{dst[r]}, v{D1+2*r}, v{D1+2*r+1}")
        if r == 2: a(f"buffer_store_dwordx4 v[32:35], v64, s[{WS}:{WS+3}], s60 offen {QSC}")
        if r == 6: a(f"buffer_store_dwordx4 v[40:43], v64, s[{WS}:{WS+3}], s60 offen offset:128 {QSC}")
    a(f"""
    buffer_store_dwordx4 v[36:39], v44, s[{WS}:{WS+3}], s61 offen {QSC}
    @T5
    @S1
    """)
def k1_cold(a):
    DBG = 28
    a(f"""
    L1_tag:
    s_mov_b32 s43, 0
    L1_tagl:
    buffer_load_dword v66, v90, s[{DBG}:{DBG+3}], 0 offen sc1
    s_add_u32 s43, s43, 1
    s_waitcnt vmcnt(0)
    v_readfirstlane_b32 s{sEP}, v66
    s_cmp_gt_u32 s43, 0x40000
    s_cbranch_scc1 L1_tagok
    s_cmp_eq_u32 s{sEP}, 0
    s_cbranch_scc1 L1_tagl
    s_branch L1_tagok
    """)
KV_BYTES = 64 * TILE
OB = KV_BYTES
RED = OB + 8 * 1040
PART = RED + 1024
CNT = PART + 8192
K2_LDS = CNT + 64
FW = 0
FR = 32768
SMF = "v_smfmac_f32_32x32x32_bf16"
LOG2E = 1.4426950408889634
KSLEEP = ''
for _x in sys.argv:
    if _x.startswith('--ksleep='): KSLEEP = 's_sleep ' + _x.split('=')[1]
OSC = 'sc0 sc1' if '--osc' in sys.argv else 'nt' if '--ont' in sys.argv else ''
SLEEP = 's_nop 0'
for _x in sys.argv:
    if _x.startswith('--sleep='): SLEEP = 's_sleep ' + _x.split('=')[1]
def k2(a):
    X, WR_, OUT, WS, FA, FB = 16, 20, 24, 28, 32, 36
    sW, sN, sG = 40, 43, 41
    Q, C, KF, VF, S, O = 8, 12, 28, 36, 52, 84
    IDX, KA, VA, LN16, XO, WRO, M, VA0 = 100, 101, 102, 103, 104, 105, 106, 107
    WO = 108; XRES, WRV, FWR = 236, 240, 244
    BAR_TILE = 10
    X_ = [x for x in sys.argv if x.startswith("--x")]
    a(f"""
    L2_start:
    s_load_dwordx8 s[52:59], s[0:1], 48
    s_load_dwordx2 s[8:9], s[0:1], 80
    v_lshlrev_b32 v{LN16}, 4, v2
    v_and_b32 v5, 31, v2
    v_lshrrev_b32 v6, 5, v2
    s_lshl_b32 s{sG}, s41, 3
    s_add_u32 s{sG}, s{sG}, s42
    s_lshl_b32 s44, s{sG}, 13
    s_lshl_b32 s45, s{sW}, 10
    s_add_u32 s46, s44, s45
    s_add_u32 s47, s45, {WS_KV}
    s_lshl_b32 s50, s{sW}, 16
    s_add_u32 s51, s50, {WS_WO}
    s_and_b32 s48, s{sW}, 4
    s_lshl_b32 s48, s48, 13
    s_add_u32 s50, s51, s48
    """)
    srd(a, WS, 14, WS_SIZE)
    def dma(i):
        return [f"s_add_u32 m0, s45, {i*8192}", f"s_add_u32 s48, s47, {i*8192}", f"buffer_load_dwordx4 v{LN16}, s[{WS}:{WS+3}], s48 offen sc1 lds"]
    a("s_waitcnt lgkmcnt(0)")
    srd(a, X, 4, 2 << 20); srd(a, WR_, 52, 1024); srd(a, OUT, 8, 2 << 20)
    a(f"""
    v_lshlrev_b32 v3, 8, v6
    v_lshl_add_u32 v3, v5, 4, v3
    v_and_b32 v4, 27, v5
    v_cmp_eq_u32 vcc, 16, v4
    v_mov_b32 v4, 528
    v_mov_b32 v7, 512
    v_cndmask_b32 v4, v4, v7, vcc
    v_cmp_gt_u32 vcc, 16, v5
    v_mov_b32 v{KA}, v{LN16}
    v_mov_b32 v{IDX}, 0xdddddddd
    v_cndmask_b32 v3, v4, v3, vcc
    v_add_u32 v{VA0}, 1024, v3
    v_mov_b32 v{VA}, v{VA0}
    v_lshrrev_b32 v3, 3, v2
    v_lshlrev_b32 v3, 4, v3
    s_lshl_b32 s49, s{sW}, 7
    v_add_u32 v{WRO}, s49, v3
    v_and_b32 v4, 7, v2
    v_lshl_add_u32 v{XO}, v4, 10, v{WRO}
    s_and_b32 s48, s2, 7
    s_lshr_b32 s49, s2, 3
    s_mul_i32 s64, s48, 22
    s_add_u32 s64, s64, s49
    s_lshl_b32 s48, s48, 3
    s_add_u32 s48, s48, s49
    s_sub_u32 s61, s48, 22
    s_and_b32 s61, s61, 63
    s_lshl_b32 s61, s61, 4
    s_min_u32 s48, s64, 171
    s_lshl_b32 s48, s48, 4
    s_mul_i32 s49, s{sW}, {64*2752}
    s_add_u32 s48, s48, s49
    s_lshl_b32 s49, s{sW}, 16
    s_add_u32 s49, s49, s61
    s_add_u32 s66, s49, {512*1024}
    s_add_u32 s67, s49, {1024*1024}
    s_movk_i32 s60, 2752
    s_cmp_ge_u32 s2, 176
    s_cselect_b32 s65, s49, s48
    s_cselect_b32 s66, s66, s48
    s_cselect_b32 s67, s67, 0x200000
    s_cselect_b32 s60, 0x400, s60
    s_cselect_b32 s54, s58, s54
    s_cselect_b32 s55, s59, s55
    s_cselect_b32 s56, s58, s56
    s_cselect_b32 s57, s59, s57
    v_mul_u32_u24 v1, s60, v2
    """)
    srd(a, FA, 54, 512*2752); srd(a, FB, 56, 512*2752)
    a(f"""
    s_mov_b32 s60, {16*8192}
    s_cmp_lt_u32 s{sW}, 4
    s_cselect_b32 s60, s60, {WS_SIZE}
    v_mov_b32 v3, {CNT}
    """)
    for r in range(16): a(f"v_mov_b32 v{O+r}, 0")
    a(f"""
    ds_write_b32 v3, v{O}
    ds_write_b128 v3, {vr(O,4)} offset:16
    s_lshr_b32 s12, s46, 1
    s_add_u32 s12, s12, {WS_QB}
    s_add_u32 s46, s46, {WS_Q}
    v_lshrrev_b32 v7, 4, v2
    v_lshlrev_b32 v7, 7, v7
    v_and_b32 v4, 7, v2
    v_lshl_add_u32 v7, v4, 4, v7
    s_cmp_lt_u32 s{sW}, 4
    s_cbranch_scc1 L2_noflag
    s_sub_u32 s13, s{sW}, 4
    """)
    if "--fw1" not in sys.argv:
        a(f"""
        s_lshl_b32 s48, s13, {KSH + 6}
        s_add_u32 s48, s48, {WS_FLG}
        v_lshlrev_b32 v3, {KSH}, v2
        s_mov_b32 s49, 0
        L2_fpoll:
        buffer_load_dword v4, v3, s[{WS}:{WS+3}], s48 offen sc1
        s_add_u32 s49, s49, 1
        s_waitcnt vmcnt(0)
        v_cmp_ne_u32 vcc, s{sEP}, v4
        s_cmp_gt_u32 s49, 0x40000
        s_cbranch_scc1 L2_fgot
        s_and_b64 exec, exec, vcc
        s_cbranch_scc1 L2_fpoll
        L2_fgot:
        s_mov_b64 exec, 1
        v_mov_b32 v3, {K1_EP + 8}
        v_mov_b32 v4, 1
        ds_add_u32 v3, v4
        """)
    else:
        a(f"""
        s_cmp_lg_u32 s{sW}, 5
        s_cbranch_scc1 L2_fwait
        s_mov_b32 s48, {WS_FLG}
        v_lshlrev_b32 v3, {KSH + 2}, v2
        s_mov_b32 s49, 0
        L2_fpoll:
        """)
        for q in range(4): a(f"buffer_load_dword v{S+q}, v3, s[{WS}:{WS+3}], s48 offen offset:{q << KSH} sc1")
        a(f"""
        s_add_u32 s49, s49, 1
        s_waitcnt vmcnt(0)
        v_xor_b32 v{S}, s{sEP}, v{S}
        v_xor_b32 v{S+1}, s{sEP}, v{S+1}
        v_xor_b32 v{S+2}, s{sEP}, v{S+2}
        v_xor_b32 v{S+3}, s{sEP}, v{S+3}
        v_or3_b32 v4, v{S}, v{S+1}, v{S+2}
        v_or_b32 v4, v4, v{S+3}
        v_cmp_ne_u32 vcc, 0, v4
        s_cmp_gt_u32 s49, 0x40000
        s_cbranch_scc1 L2_fgot
        s_and_b64 exec, exec, vcc
        s_cbranch_scc1 L2_fpoll
        L2_fgot:
        s_mov_b64 exec, 1
        v_mov_b32 v3, {K1_EP + 8}
        v_mov_b32 v4, 4
        ds_write_b32 v3, v4
        L2_fwait:
        s_mov_b64 exec, 1
        v_mov_b32 v3, {K1_EP + 8}
        """)
    a(f"""
    L2_fspin:
    ds_read_b32 v4, v3
    s_waitcnt lgkmcnt(0)
    v_readfirstlane_b32 s49, v4
    s_cmp_lt_u32 s49, 4
    s_cbranch_scc1 L2_fspin
    s_mov_b64 exec, -1
    @S2
    s_lshl_b32 s13, s13, 10
    s_add_u32 s62, s13, {WS_KV}
    """)
    for i in range(6):
        a(f"s_add_u32 m0, s13, {i*4096}\ns_add_u32 s48, s62, {i*4096}\nbuffer_load_dwordx4 v{LN16}, s[{WS}:{WS+3}], s48 offen sc1 lds")
    a(f"""
    L2_noflag:
    {'' if '--nobarA' in sys.argv else 's_barrier'}
    @T6
    s_mov_b32 s49, 0
    L2_qpoll:
    buffer_load_dwordx4 {vr(Q,4)}, v{LN16}, s[{WS}:{WS+3}], s46 offen sc1
    buffer_load_dwordx4 {vr(S,4)}, v7, s[{WS}:{WS+3}], s12 offen sc1
    s_add_u32 s49, s49, 1
    s_waitcnt vmcnt(0)
    v_cmp_ne_u32 vcc, s{sEP}, v{Q+3}
    v_cmp_ne_u32 s[62:63], s{sEP}, v{S+3}
    s_cmp_gt_u32 s49, 0x40000
    s_cbranch_scc1 L2_qgot
    s_or_b64 exec, vcc, s[62:63]
    s_cbranch_scc1 L2_qpoll
    L2_qgot:
    s_mov_b64 exec, -1
    s_mov_b32 s62, 0xff00ff00
    s_mov_b32 s63, s62
    v_cndmask_b32 v{Q+3}, v{S}, v{S+1}, s[62:63]
    s_waitcnt lgkmcnt(0)
    s_barrier
    @S3
    ds_read_b128 {vr(KF,4)}, v{KA}
    ds_read_b128 {vr(KF+4,4)}, v{KA} offset:{TILE}
    ds_read_b128 {vr(VF,4)}, v{VA}
    ds_read_b128 {vr(VF+4,4)}, v{VA} offset:544
    s_waitcnt lgkmcnt(3)
    {MF32} {vr(S,16)}, {vr(KF,4)}, {vr(Q,4)}, 0
    s_waitcnt lgkmcnt(2)
    {MF32} {vr(S+16,16)}, {vr(KF+4,4)}, {vr(Q,4)}, 0
    s_nop 9
    v_max3_f32 v{M}, v{S}, v{S+1}, v{S+2}
    """)
    for r in range(3, 31, 2): a(f"v_max3_f32 v{M}, v{S+r}, v{S+r+1}, v{M}")
    a(f"""
    v_max_f32 v{M}, v{S+31}, v{M}
    v_mov_b32 v3, v{M}
    s_nop 1
    v_permlane32_swap_b32 v{M}, v3
    v_max_f32 v{M}, v{M}, v3
    v_sub_f32 v{C}, {hex(f2u(-SHIFT))}, v{M}
    """)
    for r in range(1, 16): a(f"v_mov_b32 v{C+r}, v{C}")
    a(f"""
    @S4
    @S13
    @T1
    s_nop 1
    {MF32} {vr(S,16)}, {vr(KF,4)}, {vr(Q,4)}, {vr(C,16)}
    s_waitcnt lgkmcnt(0)
    s_nop 10
    """)
    base = 0
    nwo = 0
    NPT = 2 if '--npt2' in sys.argv else 3
    queue = [dma(i) for i in range(3, 17)]
    queue[-1][1] = "s_add_u32 s48, s47, s60"
    ffn = [[f"buffer_load_dwordx4 {vr(FWR+4*i,4)}, v1, s[{FA if i == 0 else FB}:{(FA if i == 0 else FB)+3}], s{65+i} offen"] for i in range(3)]
    wol = [(["s_add_u32 s50, s50, 4096"] if (f and f % 4 == 0) else []) + [f"buffer_load_dwordx4 {vr(WO + 4*f, 4)}, v{LN16}, s[{WS}:{WS+3}], s50 offen offset:{(f & 3)*1024} sc1"] for f in range(32)]
    xw = [[f"buffer_load_dwordx4 {vr(XRES,4)}, v{XO}, s[{X}:{X+3}], s44 offen"], [f"buffer_load_dwordx4 {vr(WRV,4)}, v{WRO}, s[{WR_}:{WR_+3}], 0 offen"]]
    SCH = [x.split("=")[1] for x in sys.argv if x.startswith("--sch=")]
    SCH = SCH[0] if SCH else "E"
    if SCH == "A":
        queue += wol + xw + ffn
        cnt = lambda t: 2 if t < 7 or 10 <= t <= 26 else 1 if t in (27, 29, 31) else 0
    elif SCH == "B":
        queue += wol + xw + ffn
        cnt = lambda t: 2 if t <= 23 else 1
    elif SCH == "C":
        queue += xw + wol[:4] + ffn[:1] + wol[4:5] + ffn[1:2] + wol[5:6] + ffn[2:] + wol[6:]
        cnt = lambda t: 2
    elif SCH == "D":
        queue += wol + xw + ffn
        cnt = lambda t: 2 if t <= 23 else 1 if t in (58, 60, 62) else 0
    elif SCH == "E":
        queue += wol + xw + ffn
        cnt = lambda t: 2 if t <= 23 else 1 if t in (52, 56, 60) else 0
    elif SCH == "F":
        queue += wol + xw + ffn
        cnt = lambda t: 2 if t <= 23 else 1 if t in (61, 62, 63) else 0
    nissued = 0
    if '--noprio' not in sys.argv: a('s_setprio 1')
    for t in range(64):
        cur, nxt = t & 1, (t + 1) & 1
        Sc, Sn = S + 16*cur, S + 16*nxt
        e = [f"v_exp_f32 v{Sc+i}, v{Sc+i}" for i in range(16)]
        n_ = cnt(t); side = sum(queue[:n_], []); queue = queue[n_:]
        if t == BAR_TILE: a(f"s_waitcnt vmcnt({nissued - 14})\ns_barrier")
        nissued += sum(1 for x in side if x.startswith("buffer"))
        if (t + 2 - base) * TILE + TILE > 65535:
            a(f"v_add_u32 v{KA}, {(t - base)*TILE}, v{KA}\nv_add_u32 v{VA}, {(t - base)*TILE}, v{VA}")
            base = t
        after = {i: [] for i in range(16)}
        side = [x for x in side if x]
        grp, curg = [], []
        for x in side:
            curg.append(x)
            if x.startswith("buffer"): grp.append(curg); curg = []
        if t > 0: after[1].append(f"{SMF} {vr(O,16)}, {vr(VF+8*nxt+4,4)}, {vr(Sn+8,8)}, v{IDX}")
        if t < 63:
            after[1].append(f"ds_read_b128 {vr(VF+8*nxt,4)}, v{VA} offset:{(t+1-base)*TILE}")
            after[5].append(f"{MF32} {vr(Sn,16)}, {vr(KF+4*nxt,4)}, {vr(Q,4)}, {vr(C,16)}")
        if t < 62: after[5].append(f"ds_read_b128 {vr(KF+4*cur,4)}, v{KA} offset:{(t+2-base)*TILE}")
        after[11].append(f"{SMF} {vr(O,16)}, {vr(VF+8*cur,4)}, {vr(Sc,8)}, v{IDX}")
        after[11].append("s_waitcnt lgkmcnt(0)")
        if t < 63: after[11].append(f"ds_read_b128 {vr(VF+8*nxt+4,4)}, v{VA} offset:{(t+1-base)*TILE+544}")
        for g, slot in zip(grp, (1, 5, 11) if len(grp) == 3 else (5, 11)): after[slot] += g
        assert len(grp) <= 3
        for i in range(16):
            a(e[i])
            for x in after[i]: a(x)
    a(f"""
    @S8
    @S14
    s_nop 1
    {SMF} {vr(O,16)}, {vr(VF+12,4)}, {vr(S+24,8)}, v{IDX}
    s_mov_b32 s48, {hex(f2u(2.0**110))}
    v_and_b32 v4, 7, v5
    v_mul_u32_u24 v4, 1040, v4
    v_lshrrev_b32 v7, 3, v5
    v_lshl_add_u32 v4, v7, 5, v4
    v_lshl_add_u32 v4, v6, 3, v4
    s_lshl_b32 s49, s{sW}, 7
    s_add_u32 s49, s49, {OB}
    v_add_u32 v4, s49, v4
    v_and_b32 v1, 7, v2
    v_mul_u32_u24 v0, 1040, v1
    v_lshrrev_b32 v7, 4, v2
    v_mul_f32 v3, 0, v{O}
    """)
    for r in range(1, 8): a(f"v_fma_f32 v3, v{O+r}, 0, v3")
    a(f"""
    v_add_f32 v3, v3, v{O+8}
    v_cmp_ngt_f32 vcc, s48, v3
    v_rcp_f32 v3, v{O+8}
    s_cmp_lg_u64 vcc, 0
    s_cbranch_scc1 L2_slow
    L2_epi:
    """)
    for r in range(8): a(f"v_mul_f32 v{O+r}, v3, v{O+r}")
    for r in range(4): a(f"v_cvt_pk_bf16_f32 v{O+r}, v{O+2*r}, v{O+2*r+1}")
    BA, PA = 101, 102
    a(f"""
    ds_write_b64 v4, {vr(O,2)}
    ds_write_b64 v4, {vr(O+2,2)} offset:16
    v_lshl_add_u32 v{BA}, v7, 4, v0
    v_add_u32 v{BA}, {OB}, v{BA}
    v_lshl_add_u32 v{PA}, v7, 3, v1
    v_lshlrev_b32 v{PA}, 6, v{PA}
    s_and_b32 s49, s{sW}, 3
    s_lshl_b32 s49, s49, 11
    s_add_u32 s49, s49, {PART}
    v_add_u32 v{PA}, s49, v{PA}
    s_waitcnt vmcnt(3)
    s_cmp_lt_u32 s{sW}, 4
    {'' if '--xnoold' in X_ else 's_cbranch_scc1 L2_old'}
    L2_join:
    @S7
    """)
    HF, T = 60, 68
    ACC = O
    BF = [Q, 28, 32, 36]
    a("v_mov_b32 v7, 0x3f803f80")
    for q in range(4): a(f"v_mov_b32 v{T+q}, 0")
    for j in range(4):
        a(f"v_lshlrev_b32 v{HF+2*j}, 16, v{XRES+j}\nv_and_b32 v{HF+2*j+1}, 0xffff0000, v{XRES+j}\nv_dot2c_f32_bf16 v{T+3}, v{WRV+j}, v7")
    a(f"""
    v_and_b32 v3, 8, v2
    v_cmp_ne_u32 vcc, 0, v3
    s_cmp_ge_u32 s{sW}, 4
    s_cselect_b64 s[62:63], -1, 0
    s_waitcnt lgkmcnt(0)
    s_barrier
    @S9
    @T2
    s_mov_b64 exec, s[62:63]
    """)
    for i in range(4): a(f"ds_read_b128 {vr(ACC+4*i,4)}, v{PA} offset:{16*i}")
    a("s_mov_b64 exec, -1")
    for ks in range(8, 12): a(f"ds_read_b128 {vr(BF[ks&3],4)}, v{BA} offset:{ks*64}")
    a(f"v_add_u32 v0, s45, v{LN16}")
    for ks in range(8, 16):
        a(f"s_waitcnt lgkmcnt({min(3, 15 - ks)})")
        for i in range(4):
            a(f"{MF16} {vr(ACC+4*i,4)}, {vr(WO+16*(ks-8)+4*i,4)}, {vr(BF[ks&3],4)}, {vr(ACC+4*i,4)}")
        if ks < 12: a(f"ds_read_b128 {vr(BF[ks&3],4)}, v{BA} offset:{(ks+4)*64}")
    a("s_waitcnt vmcnt(0)")
    for i in range(3): a(f"ds_write_b128 v0, {vr(FWR+4*i,4)} offset:{FW + i*8192}")
    A8, HB = 40, 48
    a(f"""
    v_lshrrev_b32 v3, 4, v2
    v_lshlrev_b32 v3, 8, v3
    v_lshl_add_u32 v3, v1, 5, v3
    s_lshl_b32 s49, s{sW}, 2
    s_add_u32 s49, s49, {RED}
    v_add_u32 v3, s49, v3
    v_lshlrev_b32 v4, 5, v1
    v_add_u32 v4, {RED}, v4
    s_add_u32 s49, s44, {WS_H}
    """)
    for j in range(8): a(f"v_cndmask_b32 v{A8+j}, v{ACC+j}, v{ACC+8+j}, vcc")
    for j in range(8): a(f"v_add_f32 v{HF+j}, v{HF+j}, v{A8+j}")
    for j in range(4): a(f"v_cvt_pk_bf16_f32 v{HB+j}, v{HF+2*j}, v{HF+2*j+1}")
    a(f"buffer_store_dwordx4 {vr(HB,4)}, v{XO}, s[{WS}:{WS+3}], s49 offen sc0 sc1")
    for j in range(4):
        a(f"""
        v_dot2c_f32_bf16 v{T}, v{HB+j}, v7
        v_dot2c_f32_bf16 v{T+1}, v{HB+j}, v{HB+j}
        v_dot2c_f32_bf16 v{T+2}, v{HB+j}, v{WRV+j}
        """)
    a(f"""
    v_lshlrev_b32 v{HF}, 16, v{HB}
    v_and_b32 v{HF+1}, 0xffff0000, v{HB}
    v_permlane32_swap_b32 v{T}, v{T+1}
    v_permlane32_swap_b32 v{T+2}, v{T+3}
    v_add_f32 v{T}, v{T}, v{T+1}
    v_add_f32 v{T+2}, v{T+2}, v{T+3}
    v_lshlrev_b32 v{HF+2}, 16, v{HB+1}
    v_and_b32 v{HF+3}, 0xffff0000, v{HB+1}
    v_permlane16_swap_b32 v{T}, v{T+2}
    v_add_f32 v{T}, v{T}, v{T+2}
    v_lshlrev_b32 v{HF+4}, 16, v{HB+2}
    v_and_b32 v{HF+5}, 0xffff0000, v{HB+2}
    v_add_f32_dpp v{T}, v{T}, v{T} row_ror:8 row_mask:0xf bank_mask:0xf
    ds_write_b32 v3, v{T}
    v_lshlrev_b32 v{HF+6}, 16, v{HB+3}
    v_and_b32 v{HF+7}, 0xffff0000, v{HB+3}
    """)
    KR = 128
    def kloads():
        for q in range(4): a(f"buffer_load_dwordx2 {vr(KR+2*q,2)}, v8, s[{WS}:{WS+3}], s48 offen offset:{q << KSH} sc1")
    a(f"""
    s_waitcnt lgkmcnt(0)
    s_barrier
    @S11
    """)
    R_ = 108
    for q in (0, 2, 1, 3):
        a(f"ds_read_b128 {vr(R_+8*q,4)}, v4 offset:{q*256}\nds_read_b128 {vr(R_+8*q+4,4)}, v4 offset:{q*256+16}")
    def sum8(b):
        a(f"""
        v_add_f32 v{b}, v{b}, v{b+1}
        v_add_f32 v{b+2}, v{b+2}, v{b+3}
        v_add_f32 v{b+4}, v{b+4}, v{b+5}
        v_add_f32 v{b+6}, v{b+6}, v{b+7}
        v_add_f32 v{b}, v{b}, v{b+2}
        v_add_f32 v{b+4}, v{b+4}, v{b+6}
        v_add_f32 v{b}, v{b}, v{b+4}
        """)
    s1, s3, s2, s4 = R_, R_+8, R_+16, R_+24
    ST = 76
    OV = 80
    a("s_waitcnt lgkmcnt(4)")
    sum8(s1); sum8(s2)
    a(f"""
    v_mul_f32 v{ST}, {hex(f2u(1.0/512))}, v{s1}
    v_mul_f32 v{s2}, {hex(f2u(1.0/512))}, v{s2}
    v_fma_f32 v{s2}, -v{ST}, v{ST}, v{s2}
    v_max_f32 v{s2}, 0, v{s2}
    v_add_f32 v{s2}, {hex(f2u(EPS))}, v{s2}
    v_rsq_f32 v{ST+1}, v{s2}
    s_cmp_lg_u32 s{sW}, 0
    s_cbranch_scc1 L2_nokey
    s_waitcnt lgkmcnt(0)
    """)
    sum8(s3); sum8(s4)
    AF, BFR, STT, D, D2 = 140, 12, 204, 208, 212
    breg = lambda q: 12 + 4*q if q < 7 else 216 + 4*(q - 7)
    a(f"""
    v_fma_f32 v{s3}, -v{ST}, v{s4}, v{s3}
    s_lshl_b32 s48, s{sG}, 3
    v_add_u32 v4, s48, v1
    v_mul_f32 v{ST+2}, v{ST+1}, v{s3}
    v_mov_b32 v{ST+3}, s{sEP}
    v_lshlrev_b32 v0, 4, v4
    s_mov_b32 s48, {WS_ST}
    s_mov_b64 exec, 0xff
    buffer_store_dwordx4 {vr(ST,4)}, v0, s[{WS}:{WS+3}], s48 offen sc0 sc1
    s_mov_b64 exec, -1
    v_ashrrev_i32 v3, 31, v{ST+2}
    v_or_b32 v3, 0x80000000, v3
    v_xor_b32 v3, v3, v{ST+2}
    v_and_b32 v3, 0xfffff800, v3
    v_sub_u32 v4, 2047, v4
    v_or_b32 v4, v3, v4
    s_lshl_b32 s48, s2, {KSH}
    s_add_u32 s48, s48, {WS_KEY}
    v_mov_b32_dpp v6, v4 quad_perm:[1,0,3,2] row_mask:0xf bank_mask:0xf
    v_mov_b32 v0, 0
    v_min_u32 v5, v4, v6
    v_max_u32 v4, v4, v6
    """)
    for dpp in ("quad_perm:[2,3,0,1]", "row_half_mirror"):
        a(f"""
        s_nop 0
        v_mov_b32_dpp v3, v5 {dpp} row_mask:0xf bank_mask:0xf
        v_mov_b32_dpp v6, v4 {dpp} row_mask:0xf bank_mask:0xf
        v_max_u32 v5, v5, v3
        v_med3_u32 v5, v4, v5, v6
        v_max_u32 v4, v4, v6
        """)
    a(f"""
    s_waitcnt vmcnt(1)
    s_barrier
    s_mov_b64 exec, 1
    buffer_store_dwordx2 v[4:5], v0, s[{WS}:{WS+3}], s48 offen sc0 sc1
    s_mov_b64 exec, -1
    @S5
    """)
    def outval():
        a(f"v_add_f32 v3, 1.0, v{ST+1}\nv_mul_f32 v6, v{ST}, v{ST+1}")
        for j in range(8): a(f"v_fma_f32 v{A8+j}, v{HF+j}, v3, -v6")
        for j in range(4): a(f"v_cvt_pk_bf16_f32 v{OV+j}, v{A8+2*j}, v{A8+2*j+1}")
    a(f"v_lshlrev_b32 v8, {KSH + 2}, v2\ns_mov_b32 s48, {WS_KEY}")
    if "--knoack" in sys.argv: kloads()
    ROWS = 40960
    a(f"""
    v_and_b32 v9, 15, v2
    v_lshrrev_b32 v11, 4, v2
    v_lshrrev_b32 v10, 2, v9
    v_lshl_add_u32 v10, v11, 7, v10
    v_lshlrev_b32 v10, 4, v10
    v_and_b32 v0, 1, v9
    v_lshl_add_u32 v10, v0, 3, v10
    v_and_b32 v3, 2, v9
    v_lshl_add_u32 v10, v3, 12, v10
    """)
    for q in range(7): a(f"ds_read_b64_tr_b16 {vr(AF+4*q,2)}, v10 offset:{FW + q*128}\nds_read_b64_tr_b16 {vr(AF+4*q+2,2)}, v10 offset:{FW + q*128 + 64}")
    outval()
    a("s_waitcnt lgkmcnt(0)")
    for q in range(7, 14): a(f"ds_read_b64_tr_b16 {vr(AF+4*q,2)}, v10 offset:{FW + q*128}\nds_read_b64_tr_b16 {vr(AF+4*q+2,2)}, v10 offset:{FW + q*128 + 64}")
    a(f"v_mov_b32 v252, v7\nv_mov_b32 v253, v7\nv_mov_b32 v254, v7\nv_mov_b32 v255, v7\ns_waitcnt lgkmcnt(4)")
    for q in range(14, 16): a(f"ds_read_b64_tr_b16 {vr(AF+4*q,2)}, v10 offset:{FW + q*128}\nds_read_b64_tr_b16 {vr(AF+4*q+2,2)}, v10 offset:{FW + q*128 + 64}")
    if "--knoack" not in sys.argv: a("s_waitcnt vmcnt(0)"); kloads()
    a(f"""
    v_cmp_eq_u32 s[10:11], 1, v0
    v_mul_u32_u24 v10, 1040, v0
    v_lshl_add_u32 v10, v11, 8, v10
    v_lshlrev_b32 v{R_}, 4, v0
    v_lshl_add_u32 v{R_}, v11, 3, v{R_}
    s_mov_b32 s49, 0
    s_mov_b32 s46, 0
    s_mov_b32 s47, 0
    s_mov_b32 s51, {WS_ST}
    s_waitcnt lgkmcnt(0)
    """)
    for q in range(16): a(f"{MF16} {vr(D2,4)}, {vr(AF+4*q,4)}, v[252:255], {'0' if q == 0 else vr(D2,4)}")
    a(f"""
    L2_kpoll:
    s_waitcnt vmcnt(0)
    v_min_u32 v0, v{KR}, v{KR+2}
    v_min3_u32 v0, v{KR+4}, v{KR+6}, v0
    v_cmp_eq_u32 s[62:63], 0, v0
    s_add_u32 s49, s49, 1
    s_cmp_gt_u32 s49, 0x40000
    s_cselect_b64 s[62:63], 0, s[62:63]
    v_max_u32 v4, v{KR}, v{KR+2}
    v_min_u32 v5, v{KR}, v{KR+2}
    v_max3_u32 v5, v5, v{KR+1}, v{KR+3}
    v_med3_u32 v5, v4, v5, v{KR+4}
    v_max_u32 v4, v4, v{KR+4}
    v_med3_u32 v5, v4, v5, v{KR+6}
    v_max_u32 v4, v4, v{KR+6}
    v_max3_u32 v5, v5, v{KR+5}, v{KR+7}
    s_mov_b64 exec, s[62:63]
    s_cbranch_execz L2_klast
    """)
    kloads()
    a("L2_klast:\ns_mov_b64 exec, -1")
    for dpp in ("quad_perm:[1,0,3,2]", "quad_perm:[2,3,0,1]", "row_half_mirror", "row_mirror"):
        a(f"""
        v_mov_b32_dpp v3, v5 {dpp} row_mask:0xf bank_mask:0xf
        v_mov_b32_dpp v6, v4 {dpp} row_mask:0xf bank_mask:0xf
        v_max_u32 v5, v5, v3
        v_med3_u32 v5, v4, v5, v6
        v_max_u32 v4, v4, v6
        s_nop 0
        """)
    for sw in ("v_permlane16_swap_b32", "v_permlane32_swap_b32"):
        a(f"""
        v_mov_b32 v3, v5
        v_mov_b32 v6, v4
        s_nop 0
        {sw} v5, v3
        {sw} v4, v6
        v_max_u32 v5, v5, v3
        v_med3_u32 v5, v4, v5, v6
        v_max_u32 v4, v4, v6
        """)
    a(f"""
    v_readfirstlane_b32 s53, v5
    v_readfirstlane_b32 s52, v4
    v_cndmask_b32 v3, v4, v5, s[10:11]
    v_not_b32 v3, v3
    s_cmp_eq_u64 s[52:53], s[46:47]
    s_cbranch_scc1 L2_ksame
    s_mov_b64 s[46:47], s[52:53]
    s_cmp_ge_u32 s2, 176
    s_cbranch_scc1 L2_ksame
    s_andn2_b32 s54, 0x7ff, s52
    s_andn2_b32 s55, 0x7ff, s53
    s_lshl_b32 s54, s54, 10
    s_lshl_b32 s55, s55, 10
    s_add_u32 s54, s54, {WS_H}
    s_add_u32 s55, s55, {WS_H}
    s_mov_b32 m0, {ROWS}
    v_and_b32 v3, 0x7ff, v3
    buffer_load_dwordx4 v{LN16}, s[{WS}:{WS+3}], s54 offen sc1 lds
    s_mov_b32 m0, {ROWS + 1040}
    v_lshlrev_b32 v9, 4, v3
    buffer_load_dwordx4 v{LN16}, s[{WS}:{WS+3}], s55 offen sc1 lds
    buffer_load_dwordx4 {vr(STT,4)}, v9, s[{WS}:{WS+3}], s51 offen sc1
    L2_ksame:
    s_cmp_lg_u64 s[62:63], 0
    s_cbranch_scc1 L2_kpoll
    @S6
    v_mov_b32 v0, {CNT + 16}
    ds_write_b64 v0, v[4:5]
    s_cmp_ge_u32 s2, 176
    s_cbranch_scc1 L2_bc
    s_cmp_ge_u32 s64, 172
    s_cselect_b32 s48, 0x100000, s64
    s_lshl_b32 s48, s48, {ASH}
    s_add_u32 s48, s48, {WS_ACT}
    s_waitcnt vmcnt(1)
    """)
    for q in range(12): a(f"ds_read_b128 {vr(breg(q),4)}, v10 offset:{ROWS + q*16}")
    for q in range(16):
        a(f"s_waitcnt lgkmcnt({min(11, 15 - q)})")
        a(f"{MF16} {vr(D,4)}, {vr(AF+4*q,4)}, {vr(breg(q),4)}, {'0' if q == 0 else vr(D,4)}")
        if q < 4: a(f"ds_read_b128 {vr(breg(q+12),4)}, v10 offset:{ROWS + (q+12)*16}")
    E = R_ + 8
    a(f"""
    L2_stw:
    s_waitcnt vmcnt(0)
    v_cmp_ne_u32 vcc, s{sEP}, v{STT+3}
    s_nop 2
    s_cbranch_vccnz L2_stre
    L2_stok:
    s_nop 1
    """)
    for r in range(4): a(f"v_fma_f32 v{D+r}, -v{STT}, v{D2+r}, v{D+r}")
    for r in range(4): a(f"v_mul_f32 v{D+r}, v{D+r}, v{STT+1}")
    for r in range(4): a(f"v_mov_b32 v{E+4+r}, v{D+r}")
    for r in range(4): a(f"v_mul_f32 v{E+r}, {hex(f2u(-LOG2E))}, v{D+r}")
    for r in range(4): a(f"v_exp_f32 v{E+r}, v{E+r}")
    for r in range(4): a(f"v_permlane32_swap_b32 v{D+r}, v{E+4+r}")
    for r in range(4): a(f"v_add_f32 v{E+r}, 1.0, v{E+r}")
    for r in range(4): a(f"v_rcp_f32 v{E+r}, v{E+r}")
    for r in range(4): a(f"v_mul_f32 v{D+r}, v{D+r}, v{E+4+r}")
    for r in range(4): a(f"v_mul_f32 v{D+r}, v{D+r}, v{E+r}")
    a(f"""
    v_cvt_pk_bf16_f32 v{R_+2}, v{D}, v{D+1}
    v_cvt_pk_bf16_f32 v{R_+3}, v{D+2}, v{D+3}
    s_mov_b64 exec, 0x00030003
    buffer_store_dwordx2 {vr(R_+2,2)}, v{R_}, s[{WS}:{WS+3}], s48 offen sc0 sc1
    s_mov_b64 exec, -1
    @S10
    s_branch L2_bc
    L2_stre:
    s_add_u32 s49, s49, 1
    s_cmp_gt_u32 s49, 0x40000
    s_cbranch_scc1 L2_stok
    buffer_load_dwordx4 {vr(STT,4)}, v9, s[{WS}:{WS+3}], s51 offen sc1
    s_branch L2_stw
    L2_nokey:
    """)
    outval()
    a("s_waitcnt vmcnt(0)\ns_barrier")
    BFR = 164
    a(f"""
    L2_bc:
    v_and_b32 v9, 15, v2
    v_lshrrev_b32 v10, 2, v9
    v_lshrrev_b32 v11, 4, v2
    v_lshl_add_u32 v10, v11, 3, v10
    v_lshlrev_b32 v10, 4, v10
    v_and_b32 v8, 1, v9
    v_lshl_add_u32 v10, v8, 3, v10
    s_mul_i32 s49, s45, 3
    v_add_u32 v10, s49, v10
    """)
    for s_ in range(6):
        a(f"ds_read_b64_tr_b16 {vr(AF+4*s_,2)}, v10 offset:{FW + s_*512}\nds_read_b64_tr_b16 {vr(AF+4*s_+2,2)}, v10 offset:{FW + s_*512 + 64}")
    a(f"""
    v_mov_b32 v0, {CNT + 16}
    s_lshl_b32 s48, s{sG}, 3
    v_add_u32 v8, s48, v1
    s_waitcnt lgkmcnt(0)
    s_barrier
    ds_read_b64 v[4:5], v0
    s_waitcnt lgkmcnt(0)
    v_not_b32 v4, v4
    v_not_b32 v5, v5
    v_and_b32 v4, 0x7ff, v4
    v_and_b32 v5, 0x7ff, v5
    v_cmp_ne_u32 vcc, v4, v8
    v_cmp_ne_u32 s[62:63], v5, v8
    s_and_b64 exec, vcc, s[62:63]
    buffer_store_dwordx4 {vr(OV,4)}, v{XO}, s[{OUT}:{OUT+3}], s44 offen {OSC}
    s_mov_b64 exec, -1
    s_sub_u32 s48, s2, 176
    s_cmp_lt_u32 s48, 64
    s_cbranch_scc1 L2_st2
    L2_fin:
    @D0 15 {WS} {sW}
    s_endpgm
    """)
    a("L2_st2:")
    a(f"""
    v_and_b32 v6, 8, v2
    v_cmp_ne_u32 vcc, 0, v6
    s_mov_b32 s48, {WS_H}
    s_mov_b32 s51, {WS_ST}
    v_cndmask_b32 v3, v4, v5, vcc
    v_lshlrev_b32 v12, 10, v3
    v_lshl_add_u32 v12, v1, 1, v12
    v_add_u32 v12, s61, v12
    v_lshlrev_b32 v18, 4, v3
    buffer_load_ushort v13, v12, s[{WS}:{WS+3}], s48 offen sc1
    v_and_b32 v6, 1, v2
    v_lshlrev_b32 v0, {ASH}, v11
    v_lshl_add_u32 v0, v6, 4, v0
    s_mul_i32 s48, s{sW}, {24 << ASH}
    s_add_u32 s48, s48, {WS_ACT}
    s_mov_b32 s49, 0
    L2_apoll:
    buffer_load_dwordx4 {vr(STT,4)}, v18, s[{WS}:{WS+3}], s51 offen sc1
    """)
    for s_ in range(6):
        a(f"buffer_load_dwordx4 {vr(BFR+4*s_,4)}, v0, s[{WS}:{WS+3}], s48 offen offset:{s_*(4 << ASH)} sc1")
    a(f"s_add_u32 s49, s49, 1\ns_waitcnt vmcnt(0)\nv_max3_u32 v3, v{BFR}, v{BFR+1}, v{BFR+2}")
    for q in range(3, 23, 2): a(f"v_max3_u32 v3, v{BFR+q}, v{BFR+q+1}, v3")
    a(f"""
    v_max_u32 v3, v{BFR+23}, v3
    v_cmp_eq_u32 vcc, -1, v3
    v_cmp_ne_u32 s[62:63], s{sEP}, v{STT+3}
    s_cmp_gt_u32 s49, 0x40000
    s_cbranch_scc1 L2_agot
    s_or_b64 {'exec' if '--amask' in sys.argv else 'vcc'}, vcc, s[62:63]
    s_cbranch_scc0 L2_agot
    {SLEEP}
    s_branch L2_apoll
    L2_agot:
    s_mov_b64 exec, -1
    @S10
    """)
    for s_ in range(6): a(f"{MF16} {vr(D,4)}, {vr(AF+4*s_,4)}, {vr(BFR+4*s_,4)}, {'0' if s_ == 0 else vr(D,4)}")
    a(f"""
    v_and_b32 v3, 1, v11
    v_lshlrev_b32 v0, 5, v6
    v_lshl_add_u32 v0, v3, 4, v0
    s_lshl_b32 s48, s{sW}, 6
    s_add_u32 s48, s48, {FR}
    v_add_u32 v0, s48, v0
    v_lshlrev_b32 v10, 2, v9
    v_lshl_add_u32 v10, v11, 7, v10
    v_add_u32 v10, {FR}, v10
    ds_write_b128 v0, {vr(D,4)}
    s_waitcnt lgkmcnt(0)
    s_barrier
    s_cmp_lg_u32 s{sW}, 0
    s_cbranch_scc1 L2_fin
    ds_read2_b32 v[14:15], v10 offset0:0 offset1:16
    v_mul_f32 v16, {hex(f2u(-LOG2E))}, v{STT+2}
    v_exp_f32 v16, v16
    v_lshlrev_b32 v13, 16, v13
    v_add_f32 v16, 1.0, v16
    v_rcp_f32 v16, v16
    v_sub_f32 v17, v13, v{STT}
    v_fma_f32 v13, v17, v{STT+1}, v13
    s_waitcnt lgkmcnt(0)
    v_add_f32 v14, v14, v15
    v_mov_b32 v15, v14
    s_nop 1
    v_permlane32_swap_b32 v14, v15
    v_add_f32 v14, v14, v15
    v_mov_b32 v15, v14
    s_nop 1
    v_permlane16_swap_b32 v14, v15
    v_add_f32 v14, v14, v15
    v_fma_f32 v14, v14, v16, v13
    v_cvt_pk_bf16_f32 v14, v14, v14
    s_mov_b64 exec, 0xffff
    buffer_store_short v14, v12, s[{OUT}:{OUT+3}], 0 offen {OSC}
    @Q {WS}
    @D0 15 {WS} {sW}
    L2_end:
    s_endpgm
    """)
    AB = 12
    def wl(reg, sb, f):
        a(f"buffer_load_dwordx4 {vr(reg,4)}, v{LN16}, s[{WS}:{WS+3}], s{sb} offen offset:{(f & 3)*1024} sc1")
        if f % 4 == 3: a(f"s_add_u32 s{sb}, s{sb}, 4096")
    NE = 11
    breg = lambda f: 40 + 4*f if f < NE else WO + 4*(f - NE)
    a(f"""
    L2_old:
    s_setprio 0
    v_mov_b32 v3, {CNT}
    v_mov_b32 v4, 1
    s_waitcnt lgkmcnt(0)
    s_mov_b64 exec, 1
    ds_add_u32 v3, v4
    s_mov_b64 exec, -1
    s_add_u32 s48, s51, {4*65536}
    """)
    for f in range(NE): wl(breg(f), 48, f)
    a(f"""
    L2_spin:
    ds_read_b32 v4, v3
    s_waitcnt lgkmcnt(0)
    v_readfirstlane_b32 s49, v4
    s_cmp_ge_u32 s49, 4
    s_cbranch_scc1 L2_go
    s_sleep 2
    s_branch L2_spin
    L2_go:
    """)
    def half(acc, reg, after):
        for ks in range(3): a(f"ds_read_b128 {vr(BF[ks&3],4)}, v{BA} offset:{ks*64}")
        for ks in range(8):
            if ks + 3 < 8: a(f"ds_read_b128 {vr(BF[(ks+3)&3],4)}, v{BA} offset:{(ks+3)*64}")
            after(ks, 0)
            for i in range(4):
                a(f"{MF16} {vr(acc+4*i,4)}, {vr(reg(4*ks+i),4)}, {vr(BF[ks&3],4)}, {'0' if ks == 0 else vr(acc+4*i,4)}")
            after(ks, 1)
    a(f"s_add_u32 s49, s51, {32768 + ((32 - NE)//4)*4096}")
    def aftA(ks, post):
        if not post: a(f"s_waitcnt lgkmcnt({min(3, 7-ks)})"); return
        for slot in range(4*ks, 4*ks + 4):
            if slot < 32 - NE: wl(WO + 4*slot, 48, slot + NE)
            else: wl(WO + 4*slot, 49, slot)
    half(ACC, lambda f: WO + 4*f, aftA)
    a(f"s_add_u32 s49, s51, 32768")
    def aftB(ks, post):
        if not post:
            done = sum(1 for f in range(NE, 4*ks))
            a(f"s_waitcnt lgkmcnt({min(3, 7-ks)}) vmcnt({min(63, (31 - (4*ks+3)) + NE + done)})"); return
        for f in range(4*ks, 4*ks + 4):
            if f >= NE: wl(WO + 4*(f - NE), 49, f - NE)
    half(AB, breg, aftB)
    a("s_nop 3")
    for i in range(4): a(f"ds_write_b128 v{PA}, {vr(AB+4*i,4)} offset:{16*i}")
    a("s_waitcnt vmcnt(0)\ns_setprio 1\ns_branch L2_join")
    a(f"""
    L2_slow:
    v_mov_b32 v{KA}, v{LN16}
    v_mov_b32 v{M}, 0xff7fffff
    s_mov_b32 s{sN}, 64
    L2_maxloop:
    ds_read_b128 {vr(KF,4)}, v{KA}
    v_add_u32 v{KA}, {TILE}, v{KA}
    s_waitcnt lgkmcnt(0)
    {MF32} {vr(S,16)}, {vr(KF,4)}, {vr(Q,4)}, 0
    s_sub_u32 s{sN}, s{sN}, 1
    s_nop 10
    """)
    for r in range(8): a(f"v_max3_f32 v{M}, v{S+2*r}, v{S+2*r+1}, v{M}")
    a(f"""
    s_cmp_lg_u32 s{sN}, 0
    s_cbranch_scc1 L2_maxloop
    v_mov_b32 v3, v{M}
    v_mov_b32 v{KA}, v{LN16}
    v_mov_b32 v{VA}, v{VA0}
    v_permlane32_swap_b32 v{M}, v3
    v_max_f32 v{M}, v{M}, v3
    """)
    for r in range(16): a(f"v_sub_f32 v{C+r}, 0, v{M}\nv_mov_b32 v{O+r}, 0")
    a(f"""
    s_mov_b32 s{sN}, 64
    L2_slowloop:
    ds_read_b128 {vr(KF,4)}, v{KA}
    ds_read_b128 {vr(VF,4)}, v{VA}
    ds_read_b128 {vr(VF+4,4)}, v{VA} offset:544
    v_add_u32 v{KA}, {TILE}, v{KA}
    v_add_u32 v{VA}, {TILE}, v{VA}
    s_waitcnt lgkmcnt(0)
    {MF32} {vr(S,16)}, {vr(KF,4)}, {vr(Q,4)}, {vr(C,16)}
    s_sub_u32 s{sN}, s{sN}, 1
    s_nop 10
    """)
    for i in range(16): a(f"v_exp_f32 v{S+i}, v{S+i}")
    a(f"""
    s_nop 1
    {SMF} {vr(O,16)}, {vr(VF,4)}, {vr(S,8)}, v{IDX}
    {SMF} {vr(O,16)}, {vr(VF+4,4)}, {vr(S+8,8)}, v{IDX}
    s_cmp_lg_u32 s{sN}, 0
    s_cbranch_scc1 L2_slowloop
    s_nop 11
    v_rcp_f32 v3, v{O+8}
    s_branch L2_epi
    """)
    k1_cold(a)
    return desc(KNAME, 256, 70)
def main():
    hdr = open("sequential_preLN__grouped_kv_mqa__moe_arch_mod__prompt.s.ref").read().split("\n")
    top = [l for l in hdr if l.startswith(";") and "@launch" not in l and "Override" not in l and "grid=ceil" not in l]
    a = Asm()
    k1(a)
    d = k2(a)
    out = "\n".join(top) + "\n"
    out += f"; @launch grid=(256,1,1) block=(512,1,1) lds={max(K1_LDS, K2_LDS)}\n"
    out += '.amdgcn_target "amdgcn-amd-amdhsa--gfx950"\n.text\n' + a.text() + '.section .rodata,"a"\n' + d
    sys.stdout.write(out)
main()
```

```python
import sys, struct
def f2u(x): return struct.unpack("<I", struct.pack("<f", x))[0]

WS_Q   = 0
WS_KV  = 2 << 20
WS_WO  = 3 << 20
WS_H   = 4 << 20

WS_ST  = (6 << 20) + 0x10000
WS_ACT = (6 << 20) + 0x20000
WS_KEY = WS_ACT + 0x10000
KSH = 7; ASH = 7; FSH = 7
for _x in sys.argv:
    if _x.startswith('--ksh='): KSH = int(_x.split('=')[1])
    if _x.startswith('--fsh='): FSH = int(_x.split('=')[1])
    if _x.startswith('--ash='): ASH = int(_x.split('=')[1])
WS_FLG = WS_KEY + 0x10000
WS_QB = 7 << 20
sEP = 68
KNAME = 'sequential_preLN__grouped_kv_mqa__moe_arch_mod__prompt_kernel'
WS_SIZE = 8 << 20
TILE = 2112
QSCALE = 0.25 * 1.4426950408889634
EPS = 1e-5
SHIFT = 96.0
for _x in sys.argv:
    if _x.startswith('--shift='): SHIFT = float(_x.split('=')[1])

class Asm:
    def __init__(self): self.l = []
    def __call__(self, s):
        for x in s.split("\n"):
            x = x.strip()
            if x.startswith("@S"): stamp(self, int(x[2:])); continue
            if x.startswith("@P"): padstore(self, *[int(t) for t in x[2:].split()]); continue
            if x.startswith("@Q"): padspin(self, *[int(t) for t in x[2:].split()]); continue
            if x.startswith("@T"): padstamp(self, int(x[2:])); continue
            if x.startswith("@D"): dump(self, *[int(t) for t in x[2:].split()]); continue
            if x: self.l.append(("" if x.endswith(":") else "    ") + x)
    def text(self): return "\n".join(self.l) + "\n"

def srd(a, d, p, size):
    a(f"s_mov_b32 s{d}, s{p}\ns_and_b32 s{d+1}, s{p+1}, 0xffff\ns_mov_b32 s{d+2}, {size}\ns_mov_b32 s{d+3}, 0x20000")
def vr(b, n): return f"v[{b}:{b+n-1}]"
def head(a, name):
    a(f".globl {name}\n.p2align 8\n.type {name},@function\n{name}:")
def desc(name, nv, ns):
    return f""".p2align 6
.amdhsa_kernel {name}
  .amdhsa_next_free_vgpr {nv}
  .amdhsa_next_free_sgpr {100 if (DIAG or PAD is not None) else ns}
  .amdhsa_accum_offset {(nv+3)//4*4}
  .amdhsa_group_segment_fixed_size 0
  .amdhsa_kernarg_size 104
  .amdhsa_user_sgpr_count 2
  .amdhsa_user_sgpr_kernarg_segment_ptr 1
  .amdhsa_system_sgpr_workgroup_id_x 1
.end_amdhsa_kernel
"""
DIAG = "--diag" in sys.argv
WS_DIAG = 16 << 20
if DIAG: WS_SIZE = 32 << 20
LIGHT = '--light' in sys.argv
def stamp(a, i, force=False):
    if LIGHT and i != 0 and not force: return
    if DIAG: a(f"{'s_memtime' if i >= 13 else 's_memrealtime'} s[{70+2*i}:{71+2*i}]\ns_waitcnt lgkmcnt(0)")
DIAG2 = "--diag2" in sys.argv
D2SEL = {0: [(0, 1), (2, 0), (8, 0)], 1: [(0, 1), (1, 0), (3, 0), (4, 0), (8, 0), (10, 0), (12, 0)], 2: [(0, 1), (1, 0), (3, 0), (5, 0), (6, 0), (7, 0)]}
_dl = [0]
def dump(a, kidx, n, WS, sW):
    if not DIAG: return
    stamp(a, min(n - 1, 12), True)
    if DIAG2:
        _dl[0] += 1
        base = sum(len(D2SEL[k]) for k in range(kidx))
        a(f"s_and_b32 s98, s2, 15\ns_cmp_lg_u32 s98, 0\ns_cbranch_scc1 LD_{_dl[0]}\ns_load_dwordx2 s[98:99], s[0:1], 88\ns_mov_b64 exec, 1\nv_mov_b32 v1, 0\ns_waitcnt lgkmcnt(0)\ns_add_u32 s98, s98, {512*(2-kidx)}\ns_addc_u32 s99, s99, 0")
        for j, (i, inv) in enumerate(D2SEL[kidx]):
            a(f"v_mov_b32 v0, s{70+2*i}")
            if inv: a("v_not_b32 v0, v0")
            a(f"global_atomic_umax v1, v0, s[98:99] offset:{4*(base+j)}\ns_nop 1")
        a(f"LD_{_dl[0]}:")
        return
    a(f"s_mov_b64 exec, 1\ns_lshl_b32 s69, s2, 4\ns_add_u32 s69, s69, s{sW}\ns_lshl_b32 s69, s69, 6\ns_add_u32 s69, s69, {WS_DIAG + kidx * (1 << 20)}\nv_mov_b32 v1, 0")
    for i in range(n):
        a(f"v_mov_b32 v0, s{70+2*i}\nbuffer_store_dword v0, v1, s[{WS}:{WS+3}], s69 offen offset:{4*i}")
PAD = [int(x.split("=")[1]) for x in sys.argv if x.startswith("--pad=")]
PAD = PAD[0] if PAD else None
WS_PAD = (6 << 20)
def padstamp(a, k):
    if PAD == k: a("s_memrealtime s[94:95]\ns_waitcnt lgkmcnt(0)")
def padstore(a, k, WS, sW): pass
def padspin(a, WS):
    if PAD is None: return
    a(f"s_mov_b32 s97, 0\nLQ_spin:\ns_memrealtime s[92:93]\ns_waitcnt lgkmcnt(0)\ns_sub_u32 s98, s92, s94\ns_add_u32 s97, s97, 1\ns_cmp_gt_u32 s97, 100000\ns_cbranch_scc1 LQ_done\ns_cmp_lt_u32 s98, 6000\ns_cbranch_scc1 LQ_spin\nLQ_done:")
MF32 = "v_mfma_f32_32x32x16_bf16"
MF16 = "v_mfma_f32_16x16x32_bf16"

ZERO_KB = 8
K1_KV = 131072
K1_CS = 147456
K1_KC = K1_CS + 1024
K1_KP = K1_KC + 1024
K1_PS = K1_KP + 4096
K1_EP = K1_PS + 1024
K1_LDS = K1_EP + 64
QSC = 'sc1' if '--qsc1' in sys.argv else '' if '--qplain' in sys.argv else 'sc0 sc1'
CODE_SPAN = 18600
WOC = 1 if '--woc1' in sys.argv else 2
def rowstat(a, s, m, r):
    a(f"""
    v_add_f32 v{m}, v{s}, v{s+2}
    v_add_f32 v{r}, v{s+1}, v{s+3}
    v_mul_f32 v{m}, {hex(f2u(-1.0/512))}, v{m}
    v_mul_f32 v{r}, {hex(f2u(1.0/512))}, v{r}
    v_fma_f32 v{r}, -v{m}, v{m}, v{r}
    v_max_f32 v{r}, 0, v{r}
    v_add_f32 v{r}, {hex(f2u(EPS))}, v{r}
    v_rsq_f32 v{r}, v{r}
    """)
def split_ab(a, src, dst, kind):
    a(f"v_and_b32 v11, 0xffff0000, v{src}\nv_sub_f32 v12, v{src}, v11")
    if kind == "m": a(f"v_cvt_pk_bf16_f32 v{dst}, v11, v12\nv_cvt_pk_bf16_f32 v{dst+1}, v11, 0")
    else: a(f"v_cvt_pk_bf16_f32 v{dst}, v11, v11\nv_cvt_pk_bf16_f32 v{dst+1}, v12, 0")
def k1(a):
    X, WQ, WKV, WO, WS = 16, 20, 24, 32, 36
    sW, sTG, sCG = 40, 41, 42
    DBG = 28
    ONES = 69
    VL = 13
    head(a, KNAME)
    a(f"""
    s_cmp_ge_u32 s2, 256
    s_cbranch_scc1 L2_end
    @S0
    @T0
    s_load_dwordx8 s[4:11], s[0:1], 0
    s_load_dwordx2 s[12:13], s[0:1], 32
    s_load_dwordx2 s[14:15], s[0:1], 96
    s_load_dwordx2 s[64:65], s[0:1], 88
    v_lshrrev_b32 v1, 6, v0
    v_and_b32 v2, 63, v0
    v_readfirstlane_b32 s{sW}, v1
    s_and_b32 s43, s2, 7
    s_lshr_b32 s44, s2, 3
    s_and_b32 s45, s44, 3
    s_lshl_b32 s{sTG}, s43, 2
    s_add_u32 s{sTG}, s{sTG}, s45
    s_lshr_b32 s{sCG}, s44, 2
    v_and_b32 v3, 15, v2
    v_lshrrev_b32 v4, 4, v2
    v_lshlrev_b32 v{VL}, 4, v2
    s_and_b32 s46, s{sW}, 3
    s_lshl_b32 s50, s46, 12
    s_and_b32 s58, s{sCG}, 3
    s_cmp_lt_u32 s{sW}, 4
    s_cbranch_scc1 L1_gemm
    """)
    VX, VW, WT, CS, WR, XR = 8, 12, 24, 70, 48, 32
    pass
    for i in range(4):
        a(f"v_add_u32 v7, {4*i}, v4\nv_xor_b32 v{VX+i}, v7, v3\nv_lshlrev_b32 v{VX+i}, 4, v{VX+i}\nv_lshl_add_u32 v{VX+i}, v7, 10, v{VX+i}")
    a(f"""
    v_lshrrev_b32 v7, 3, v2
    v_and_b32 v{VW}, 1, v4
    v_lshlrev_b32 v{VW}, 2, v{VW}
    v_and_b32 v14, 7, v2
    v_xor_b32 v{VW}, v{VW}, v14
    v_lshlrev_b32 v{VW}, 4, v{VW}
    v_lshl_add_u32 v{VW}, v7, 10, v{VW}
    s_lshl_b32 s48, s{sTG}, 16
    s_lshl_b32 s43, s46, 14
    s_add_u32 s48, s48, s43
    s_lshl_b32 s49, s46, 15
    s_lshl_b32 s43, s{sCG}, 7
    s_add_u32 s49, s49, s43
    {'s_mov_b32 s55, 0' if '--norot' in sys.argv else f's_add_u32 s55, s{sCG}, s{sTG}'}
    s_waitcnt lgkmcnt(0)
    """)
    srd(a, X, 4, 2 << 20)
    def chunk(c, sh): a(f"s_add_u32 s43, s55, {c}\ns_and_b32 s43, s43, 3\ns_lshl_b32 s43, s43, {sh}")
    def issx(c):
        chunk(c, 8); a("s_add_u32 s51, s48, s43")
        for i in range(4):
            a(f"s_add_u32 m0, s50, {c*16384 + i*1024}\ns_nop 0\nbuffer_load_dwordx4 v{VX+i}, s[{X}:{X+3}], s51 offen lds")
    def issw(c):
        chunk(c, 17); a("s_add_u32 s51, s49, s43")
        for i in range(4):
            a(f"s_add_u32 m0, s50, {65536 + c*16384 + i*1024}\ns_add_u32 s52, s51, {8*i*1024}\nbuffer_load_dwordx4 v{VW}, s[{WQ}:{WQ+3}], s52 offen lds")
    def isskv(c):
        chunk(c, 12)
        a(f"s_add_u32 m0, s61, {K1_KV + c*4096}\ns_add_u32 s52, s61, s43\nbuffer_load_dwordx4 v{VL}, s[{WKV}:{WKV+3}], s52 offen lds")
    issx(0)
    a(f"s_cmp_ge_u32 s{sCG}, 4\ns_cselect_b32 s8, s10, s8\ns_cselect_b32 s9, s11, s9\ns_lshl_b32 s61, s46, 10")
    srd(a, WKV, 8, 16 << 10)
    isskv(0); issx(1); isskv(1)
    srd(a, WQ, 6, 512 << 10)
    a(f"""
    v_mov_b32 v{ONES}, 0x3f803f80
    v_add_u32 v30, {K1_KC}, v{VL}
    s_lshl_b32 s43, s58, 8
    s_add_u32 s43, s43, {K1_PS}
    v_lshl_add_u32 v31, v3, 4, s43
    s_lshl_b32 s56, s{sTG}, 1
    s_lshr_b32 s43, s58, 1
    s_add_u32 s56, s56, s43
    s_mul_i32 s56, s56, {TILE}
    s_add_u32 s56, s56, {WS_KV}
    s_and_b32 s57, s58, 1
    s_lshl_b32 s43, s57, 8
    s_mul_i32 s44, s57, 544
    s_add_u32 s44, s44, 1024
    s_cmp_ge_u32 s{sCG}, 4
    s_cselect_b32 s43, s44, s43
    s_cselect_b64 s[62:63], -1, 0
    s_add_u32 s56, s56, s43
    v_and_b32 v14, 1, v4
    v_lshrrev_b32 v15, 1, v4
    v_lshlrev_b32 v26, 9, v14
    v_lshl_add_u32 v26, v15, 3, v26
    v_lshlrev_b32 v27, 8, v15
    v_lshl_add_u32 v27, v14, 3, v27
    v_cndmask_b32 v26, v26, v27, s[62:63]
    v_lshl_add_u32 v26, v3, 4, v26
    v_lshlrev_b32 v27, 4, v4
    v_lshlrev_b32 v28, 2, v3
    v_cndmask_b32 v27, v28, v27, s[62:63]
    v_cndmask_b32 v28, 0, 4, s[62:63]
    v_mov_b32 v29, 0x7fff0000
    v_mov_b32 v74, 0
    v_mov_b32 v75, 0
    v_mov_b32 v78, 0
    v_mov_b32 v79, 0
    """)
    srd(a, WS, 14, WS_SIZE); srd(a, DBG, 64, 256)
    a(f"v_mov_b32 v93, {K1_EP}\nv_mov_b32 v94, 0")
    size = [5, 5, 5, 5, 4, 4, 4, 4]
    for g in range(5):
        if g + 2 < 4: issx(g + 2); isskv(g + 2)
        else: issw(g - 2)
        a(f"s_waitcnt vmcnt({sum(size[g+1:g+3])})\ns_barrier")
    a(f"buffer_load_dword v66, v94, s[{DBG}:{DBG+3}], 0 offen sc1")
    issw(3)
    a(f"""
    s_cmp_eq_u32 s46, 0
    s_cbranch_scc1 L1_fin
    s_waitcnt vmcnt(9)
    s_barrier
    s_waitcnt vmcnt(5)
    s_barrier
    s_waitcnt vmcnt(0)
    v_readfirstlane_b32 s{sEP}, v66
    s_cmp_eq_u32 s{sEP}, 0
    s_cbranch_scc1 L1_tag
    L1_tagok0:
    ds_write_b32 v93, v66
    s_waitcnt lgkmcnt(0)
    s_barrier
    s_branch L2_start
    L1_fin:
    ds_read_b128 v[80:83], v31
    ds_read_b128 v[84:87], v30
    ds_read_b128 {vr(XR,4)}, v30 offset:1024
    ds_read_b128 {vr(XR+4,4)}, v30 offset:2048
    ds_read_b128 {vr(XR+8,4)}, v30 offset:3072
    ds_read_b128 {vr(XR+12,4)}, v30 offset:4096
    s_waitcnt lgkmcnt(4)
    """)
    rowstat(a, 80, 8, 9)
    a(f"""
    v_add_f32 v84, v84, v85
    v_add_f32 v86, v86, v87
    ds_bpermute_b32 v88, v27, v9
    v_add_u32 v27, v27, v28
    ds_bpermute_b32 v89, v27, v9
    v_add_u32 v27, v27, v28
    ds_bpermute_b32 v90, v27, v9
    v_add_u32 v27, v27, v28
    ds_bpermute_b32 v91, v27, v9
    v_add_f32 v84, v84, v86
    v_cndmask_b32 v85, v84, v8, s[62:63]
    v_cndmask_b32 v86, v8, v84, s[62:63]
    """)
    split_ab(a, 85, 72, "c"); split_ab(a, 86, 76, "m")
    a("s_waitcnt lgkmcnt(4)")
    for r in range(4):
        a(f"v_add_f32 v{XR+r}, v{XR+r}, v{XR+4+r}\nv_add_f32 v{XR+8+r}, v{XR+8+r}, v{XR+12+r}")
    for r in range(4): a(f"v_add_f32 v{XR+r}, v{XR+r}, v{XR+8+r}")
    a(f"""
    v_cmp_gt_u32 vcc, 4, v2
    v_lshlrev_b32 v12, 2, v2
    {MF16} {vr(XR,4)}, v[72:75], v[76:79], {vr(XR,4)}
    v_cndmask_b32 v14, 0, v{ONES}, vcc
    s_and_b64 s[62:63], s[62:63], 0xff
    s_waitcnt lgkmcnt(0)
    s_nop 4
    """)
    for r in range(4): a(f"v_mul_f32 v{XR+r}, v{88+r}, v{XR+r}")
    a(f"""
    v_cvt_pk_bf16_f32 v{XR}, v{XR}, v{XR+1}
    v_cvt_pk_bf16_f32 v{XR+1}, v{XR+2}, v{XR+3}
    buffer_store_dwordx2 {vr(XR,2)}, v26, s[{WS}:{WS+3}], s56 offen sc0 sc1
    v_cndmask_b32 v12, v29, v12, s[62:63]
    buffer_store_dword v14, v12, s[{WS}:{WS+3}], s56 offen offset:512 sc0 sc1
    s_lshl_b32 s43, s2, {KSH}
    s_add_u32 s43, s43, {WS_FLG}
    v_mov_b32 v7, 0
    s_waitcnt vmcnt(11)
    s_barrier
    s_waitcnt vmcnt(7)
    s_barrier
    s_waitcnt vmcnt(0)
    v_readfirstlane_b32 s{sEP}, v66
    s_cmp_eq_u32 s{sEP}, 0
    s_cbranch_scc1 L1_tag
    L1_tagok1:
    s_mov_b64 exec, 1
    buffer_store_dword v66, v7, s[{WS}:{WS+3}], s43 offen sc0 sc1
    s_mov_b64 exec, -1
    @S1
    s_barrier
    s_branch L2_start
    """)
    D1 = 16
    XF, WF = 120, 32
    XA, WA, WB, WOD = 72, 68, 70, 80
    KX, KW = 92, 93
    SX, SXX, KC, KD = 14, 15, 71, 96
    KF = 104
    a(f"""
    L1_gemm:
    v_and_b32 v5, 31, v2
    v_lshrrev_b32 v6, 5, v2
    s_and_b32 s53, s{sW}, 1
    s_lshr_b32 s54, s{sW}, 1
    s_lshl_b32 s59, s2, 1
    s_add_u32 s59, s59, s53
    s_lshr_b32 s43, s59, 6
    s_lshr_b32 s44, s59, 2
    s_and_b32 s44, s44, 15
    s_and_b32 s45, s59, 3
    s_lshl_b32 s44, s44, 15
    s_lshl_b32 s43, s43, 7
    s_lshl_b32 s45, s45, 3
    s_add_u32 s47, s44, s43
    s_add_u32 s47, s47, s45
    v_lshrrev_b32 v7, 2, v3
    v_lshlrev_b32 v7, 5, v7
    v_and_b32 v8, 3, v3
    v_lshl_add_u32 v7, v8, 1, v7
    v_lshl_add_u32 v7, v4, 13, v7
    v_add_u32 v8, 4096, v7
    s_waitcnt lgkmcnt(0)
    """)
    if "--pf" in sys.argv:
        a(f"""
        s_lshr_b32 s43, s2, 3
        s_lshl_b32 s43, s43, 14
        s_lshl_b32 s44, s53, 13
        s_add_u32 s43, s43, s44
        s_lshl_b32 s44, s{sTG}, 16
        s_lshl_b32 s45, s{sCG}, 13
        s_add_u32 s44, s44, s45
        s_cmp_eq_u32 s{sW}, 3
        s_cselect_b32 s44, 0x400000, s44
        s_cmp_ge_u32 s{sW}, 2
        s_cselect_b32 s43, s44, s43
        s_cselect_b32 s{X}, s4, s6
        s_cselect_b32 s{X+1}, s5, s7
        s_mov_b32 s{X+2}, 0x80000
        s_cselect_b32 s{X+2}, 0x200000, s{X+2}
        s_and_b32 s{X+1}, s{X+1}, 0xffff
        s_mov_b32 s{X+3}, 0x20000
        v_lshlrev_b32 v9, 7, v2
        buffer_load_dword v252, v9, s[{X}:{X+3}], s43 offen
        """)
    srd(a, WO, 12, 512 << 10); srd(a, WS, 14, WS_SIZE); srd(a, DBG, 64, 256)
    a(f"s_cmp_ge_u32 s{sW}, 2\ns_cbranch_scc1 L1_nowo")
    for j in range(8):
        a(f"buffer_load_ushort v{WOD + j}, v{7 + j//4}, s[{WO}:{WO+3}], s47 offen offset:{(j & 3) * 1024}")
    a(f"""
    s_branch L1_noz
    L1_nowo:
    s_cmp_eq_u32 s{sW}, 2
    s_cbranch_scc1 L1_ini
    """)
    if "--tlb" in sys.argv:
        a(f"""
        s_load_dwordx8 s[16:23], s[0:1], 48
        s_load_dwordx2 s[24:25], s[0:1], 80
        v_lshlrev_b32 v9, 20, v2
        s_mov_b64 exec, 0xff
        buffer_load_dword v252, v9, s[{WS}:{WS+3}], 0 offen offset:2048
        s_mov_b64 exec, 1
        global_load_dword v253, v9, s[6:7]
        s_waitcnt lgkmcnt(0)
        global_load_dword v253, v9, s[16:17]
        global_load_dword v253, v9, s[18:19]
        global_load_dword v253, v9, s[20:21]
        global_load_dword v253, v9, s[22:23]
        global_load_dword v253, v9, s[24:25]
        s_mov_b64 exec, -1
        """)
    a(f"""
    s_cmp_lg_u32 s2, 0
    s_cbranch_scc1 L1_noz
    s_memrealtime s[44:45]
    v_mov_b32 v9, 0
    s_waitcnt lgkmcnt(0)
    s_or_b32 s44, s44, 1
    v_mov_b32 v{WOD}, s44
    s_mov_b64 exec, 1
    buffer_store_dword v{WOD}, v9, s[{DBG}:{DBG+3}], 0 offen sc0 sc1
    s_mov_b64 exec, -1
    s_branch L1_noz
    L1_ini:
    s_cmp_lt_u32 s2, 172
    s_cselect_b32 s44, -1, 0
    v_mov_b32 v{WOD}, s44
    v_mov_b32 v{WOD+1}, 0
    v_lshlrev_b32 v9, 2, v2
    s_lshl_b32 s43, s2, {ASH}
    s_add_u32 s43, s43, {WS_ACT}
    s_lshl_b32 s44, s2, {KSH}
    s_add_u32 s44, s44, {WS_KEY}
    s_mov_b64 exec, 0xff
    buffer_store_dword v{WOD}, v9, s[{WS}:{WS+3}], s43 offen sc0 sc1
    s_mov_b64 exec, 3
    buffer_store_dword v{WOD+1}, v9, s[{WS}:{WS+3}], s44 offen sc0 sc1
        s_mov_b64 exec, -1
    L1_noz:
    """)
    if "--cpf" in sys.argv:
        a(f"""
        s_getpc_b64 s[44:45]
        s_and_b32 s44, s44, 0xffffff00
        s_lshr_b32 s43, s2, 3
        s_lshl_b32 s43, s43, 2
        s_add_u32 s43, s43, s{sW}
        s_lshl_b32 s43, s43, 8
        v_lshl_add_u32 v9, v2, 2, s43
        v_min_u32 v9, {CODE_SPAN}, v9
        global_load_dword v252, v9, s[44:45]
        """)
    a(f"""
    s_lshl_b32 s43, s54, 1
    v_xor_b32 v12, s43, v3
    s_lshl_b32 s43, s53, 13
    v_lshlrev_b32 v9, 8, v5
    v_add_u32 v9, s43, v9
    """)
    for j in range(8):
        a(f"v_add_u32 v10, {2*j}, v6\nv_xor_b32 v10, v10, v12\nv_lshl_add_u32 v{XA+j}, v10, 4, v9")
    a(f"""
    v_lshrrev_b32 v9, 2, v3
    v_lshl_add_u32 v10, v6, 3, v9
    v_lshlrev_b32 v10, 7, v10
    v_lshrrev_b32 v11, 1, v9
    v_xor_b32 v11, s54, v11
    v_lshl_add_u32 v10, v11, 6, v10
    v_and_b32 v11, 1, v4
    v_lshl_add_u32 v10, v11, 5, v10
    v_and_b32 v11, 3, v3
    v_lshl_add_u32 v10, v11, 3, v10
    s_lshl_b32 s43, s54, 11
    s_add_u32 s44, s43, 0x10000
    s_sub_u32 s43, {0x10000 + 2048}, s43
    v_add_u32 v{WA}, s44, v10
    v_add_u32 v{WB}, s43, v10
    v_lshl_add_u32 v{KW}, v4, 3, v9
    v_lshlrev_b32 v{KW}, 5, v{KW}
    v_lshl_add_u32 v{KW}, v11, 3, v{KW}
    s_lshl_b32 s43, s46, 10
    s_add_u32 s43, s43, {K1_KV}
    v_add_u32 v{KW}, s43, v{KW}
    s_lshl_b32 s43, s46, 2
    v_add_u32 v{KX}, s43, v4
    v_xor_b32 v{KX}, v{KX}, v3
    v_lshlrev_b32 v{KX}, 4, v{KX}
    v_lshl_add_u32 v{KX}, v3, 8, v{KX}
    s_lshl_b32 s43, s58, 12
    v_add_u32 v{KX}, s43, v{KX}
    v_lshrrev_b32 v64, 3, v5
    v_lshlrev_b32 v64, 13, v64
    v_and_b32 v11, 7, v5
    v_lshl_add_u32 v64, v11, 4, v64
    v_lshl_add_u32 v64, v6, 9, v64
    s_lshl_b32 s60, s{sTG}, 16
    s_lshl_b32 s44, s53, 15
    s_add_u32 s60, s60, s44
    s_lshl_b32 s44, s{sCG}, 10
    s_add_u32 s60, s60, s44
    s_lshl_b32 s44, s54, 8
    s_add_u32 s60, s60, s44
    s_add_u32 s60, s60, {WS_Q}
    s_lshl_b32 s43, s53, 9
    s_add_u32 s43, s43, {K1_PS}
    v_lshl_add_u32 v67, v5, 4, s43
    s_lshl_b32 s43, s54, 3
    v_lshl_add_u32 v65, v6, 2, v67
    v_add_u32 v65, s43, v65
    s_lshl_b32 s43, s46, 2
    s_add_u32 s43, s43, {K1_KC}
    v_add_u32 v94, s43, v{VL}
    s_lshl_b32 s43, s46, 10
    s_add_u32 s43, s43, {K1_KP}
    v_add_u32 v95, s43, v{VL}
    s_lshl_b32 s59, s59, 10
    s_add_u32 s59, s59, {WS_WO}
    s_cmp_ge_u32 s{sW}, 2
    s_cselect_b32 s59, {WS_SIZE}, s59
    s_cmp_ge_u32 s{sCG}, 4
    s_cselect_b64 s[62:63], -1, 0
    v_mov_b32 v{ONES}, 0x3f803f80
    v_mov_b32 v{SX}, 0
    v_mov_b32 v{SXX}, 0
    v_mov_b32 v{KC}, 0
    v_mov_b32 v90, 0
    v_mov_b32 v91, 0
    v_mov_b32 v250, 0
    v_mov_b32 v251, 0
    """)
    def xreads(c):
        kx, kw = KF + 8*(c & 1), KF + 8*(c & 1) + 4
        for u in (0, 2, 4, 6): a(f"ds_read_b128 {vr(XF+32*c+4*u,4)}, v{XA+u} offset:{c*16384}")
        a(f"ds_read_b128 {vr(kx,4)}, v{KX} offset:{c*16384}")
        a(f"ds_read_b64_tr_b16 {vr(kw,2)}, v{KW} offset:{c*4096}\nds_read_b64_tr_b16 {vr(kw+2,2)}, v{KW} offset:{c*4096+128}")
        for u in (1, 3, 5, 7): a(f"ds_read_b128 {vr(XF+32*c+4*u,4)}, v{XA+u} offset:{c*16384}")
    def wread(ks):
        ar = WB if ks & 1 else WA
        off = (ks & ~1) * 2048
        a(f"ds_read_b64_tr_b16 {vr(WF+4*(ks&7),2)}, v{ar} offset:{off}\nds_read_b64_tr_b16 {vr(WF+4*(ks&7)+2,2)}, v{ar} offset:{off + 512}")
    def work(c):
        kx, kw = KF + 8*(c & 1), KF + 8*(c & 1) + 4
        for u in (0, 2, 4, 6):
            a(f"s_waitcnt lgkmcnt({10 - u//2})")
            for q in range(4): a(f"v_dot2c_f32_bf16 v{SX}, v{XF+32*c+4*u+q}, v{ONES}\nv_dot2c_f32_bf16 v{SXX}, v{XF+32*c+4*u+q}, v{XF+32*c+4*u+q}")
        a("s_waitcnt lgkmcnt(4)")
        for q in range(4): a(f"v_dot2c_f32_bf16 v{KC}, v{kw+q}, v{ONES}")
        a(f"{MF16} {vr(KD,4)}, {vr(kw,4)}, {vr(kx,4)}, {'0' if c == 0 else vr(KD,4)}")
        a(f"{MF16} {vr(KD+4,4)}, {vr(kx,4)}, {vr(kw,4)}, {'0' if c == 0 else vr(KD+4,4)}")
    for c in range(4):
        a("s_barrier")
        if c == 0: a("@T3")
        xreads(c)
        work(c)
        if c == WOC:
            a(f"""
            s_waitcnt vmcnt(0)
            v_lshl_or_b32 v{WOD}, v{WOD+1}, 16, v{WOD}
            v_lshl_or_b32 v{WOD+1}, v{WOD+3}, 16, v{WOD+2}
            v_lshl_or_b32 v{WOD+2}, v{WOD+5}, 16, v{WOD+4}
            v_lshl_or_b32 v{WOD+3}, v{WOD+7}, 16, v{WOD+6}
            buffer_store_dwordx4 {vr(WOD,4)}, v{VL}, s[{WS}:{WS+3}], s59 offen sc0 sc1
            """)
    a(f"""
    v_permlane32_swap_b32 v{SX}, v{SXX}
    s_nop 0
    ds_write_b32 v94, v{KC}
    v_add_f32 v{SX}, v{SX}, v{SXX}
    v_mov_b32 v7, {K1_EP}
    ds_write_b32 v65, v{SX}
    s_nop 1
    """)
    for r in range(4): a(f"v_cndmask_b32 v{KD+r}, v{KD+r}, v{KD+4+r}, s[62:63]")
    a(f"ds_write_b128 v95, {vr(KD,4)}\nds_write_b32 v7, v90 offset:8\nv_mov_b32 v{SXX}, 0\ns_waitcnt lgkmcnt(0)\ns_barrier\n@T4")
    for ks in range(7): wread(ks)
    a("s_waitcnt lgkmcnt(12)")
    wread(7)
    for g in range(8):
        a(f"s_waitcnt lgkmcnt({8 if g < 7 else 0})")
        for ks in range(4*g, 4*g + 4):
            for q in range(4): a(f"v_dot2c_f32_bf16 v{SXX}, v{WF+4*(ks&7)+q}, v{ONES}")
        if g == 2: a("s_waitcnt vmcnt(0)")
        if g % 2 == 0 and g < 6: a("s_barrier")
        if g == 2: a("ds_read_b128 v[84:87], v67")
        if g == 4: a("ds_read_b32 v66, v7")
        if g == 6: a(f"v_readfirstlane_b32 s{sEP}, v66")
        for ks in range(4*g, 4*g + 4):
            a(f"{MF32} {vr(D1,16)}, {vr(WF+4*(ks&7),4)}, {vr(XF+4*ks,4)}, {'0' if ks == 0 else vr(D1,16)}")
            if ks + 8 < 32: wread(ks + 8)
            if ks == 16: rowstat(a, 84, 8, 9)
            if ks == 17: split_ab(a, 8, 88, "m"); a(f"v_mul_f32 v10, {hex(f2u(QSCALE))}, v9")
            if ks == 29: a("s_nop 0"); split_ab(a, SXX, 248, "c")
    a(f"""
    {MF32} {vr(D1,16)}, v[248:251], v[88:91], {vr(D1,16)}
    v_mov_b32 v35, v66
    v_mov_b32 v39, v66
    v_mov_b32 v43, v66
    v_lshrrev_b32 v44, 3, v5
    v_lshlrev_b32 v44, 12, v44
    v_and_b32 v11, 7, v5
    v_lshl_add_u32 v44, v11, 4, v44
    v_lshl_add_u32 v44, v6, 8, v44
    s_sub_u32 s61, s60, {WS_Q}
    s_lshr_b32 s61, s61, 1
    s_add_u32 s61, s61, {WS_QB}
    s_nop 0
    """)
    dst = [32, 33, 34, 36, 40, 41, 42, 37]
    for r in range(8):
        a(f"v_mul_f32 v{D1+2*r}, v10, v{D1+2*r}\nv_mul_f32 v{D1+2*r+1}, v10, v{D1+2*r+1}\nv_cvt_pk_bf16_f32 v{dst[r]}, v{D1+2*r}, v{D1+2*r+1}")
        if r == 2: a(f"buffer_store_dwordx4 v[32:35], v64, s[{WS}:{WS+3}], s60 offen {QSC}")
        if r == 6: a(f"buffer_store_dwordx4 v[40:43], v64, s[{WS}:{WS+3}], s60 offen offset:128 {QSC}")
    a(f"""
    buffer_store_dwordx4 v[36:39], v44, s[{WS}:{WS+3}], s61 offen {QSC}
    @T5
    @S1
    """)
def k1_cold(a):
    DBG = 28
    a(f"""
    L1_tag:
    s_mov_b32 s47, 0
    L1_tagl:
    buffer_load_dword v66, v94, s[{DBG}:{DBG+3}], 0 offen sc1
    s_add_u32 s47, s47, 1
    s_waitcnt vmcnt(0)
    v_readfirstlane_b32 s{sEP}, v66
    s_cmp_gt_u32 s47, 0x40000
    s_cbranch_scc1 L1_tagx
    s_cmp_eq_u32 s{sEP}, 0
    s_cbranch_scc1 L1_tagl
    L1_tagx:
    s_cmp_eq_u32 s46, 0
    s_cbranch_scc1 L1_tagok1
    s_branch L1_tagok0
    """)
KV_BYTES = 64 * TILE
OB = KV_BYTES
RED = OB + 8 * 1040
PART = RED + 1024
CNT = PART + 8192
K2_LDS = CNT + 64
FW = 0
FR = 32768
SMF = "v_smfmac_f32_32x32x32_bf16"
LOG2E = 1.4426950408889634
KSLEEP = ''
for _x in sys.argv:
    if _x.startswith('--ksleep='): KSLEEP = 's_sleep ' + _x.split('=')[1]
OSC = 'sc0 sc1' if '--osc' in sys.argv else 'nt' if '--ont' in sys.argv else ''
SLEEP = 's_nop 0'
for _x in sys.argv:
    if _x.startswith('--sleep='): SLEEP = 's_sleep ' + _x.split('=')[1]
def k2(a):
    X, WR_, OUT, WS, FA, FB = 16, 20, 24, 28, 32, 36
    sW, sN, sG = 40, 43, 41
    Q, C, KF, VF, S, O = 8, 12, 28, 36, 52, 84
    IDX, KA, VA, LN16, XO, WRO, M, VA0 = 100, 101, 102, 103, 104, 105, 106, 107
    WO = 108; XRES, WRV, FWR = 236, 240, 244
    BAR_TILE = 10
    X_ = [x for x in sys.argv if x.startswith("--x")]
    a(f"""
    L2_start:
    s_load_dwordx8 s[52:59], s[0:1], 48
    s_load_dwordx2 s[8:9], s[0:1], 80
    v_lshlrev_b32 v{LN16}, 4, v2
    v_and_b32 v5, 31, v2
    v_lshrrev_b32 v6, 5, v2
    s_lshl_b32 s{sG}, s41, 3
    s_add_u32 s{sG}, s{sG}, s42
    s_lshl_b32 s44, s{sG}, 13
    s_lshl_b32 s45, s{sW}, 10
    s_add_u32 s46, s44, s45
    s_add_u32 s47, s45, {WS_KV}
    s_lshl_b32 s50, s{sW}, 16
    s_add_u32 s51, s50, {WS_WO}
    s_and_b32 s48, s{sW}, 4
    s_lshl_b32 s48, s48, 13
    s_add_u32 s50, s51, s48
    """)
    srd(a, WS, 14, WS_SIZE)
    def dma(i):
        return [f"s_add_u32 m0, s45, {i*8192}", f"s_add_u32 s48, s47, {i*8192}", f"buffer_load_dwordx4 v{LN16}, s[{WS}:{WS+3}], s48 offen sc1 lds"]
    a("s_waitcnt lgkmcnt(0)")
    srd(a, X, 4, 2 << 20); srd(a, WR_, 52, 1024); srd(a, OUT, 8, 2 << 20)
    a(f"""
    v_lshlrev_b32 v3, 8, v6
    v_lshl_add_u32 v3, v5, 4, v3
    v_and_b32 v4, 27, v5
    v_cmp_eq_u32 vcc, 16, v4
    v_mov_b32 v4, 528
    v_mov_b32 v7, 512
    v_cndmask_b32 v4, v4, v7, vcc
    v_cmp_gt_u32 vcc, 16, v5
    v_mov_b32 v{KA}, v{LN16}
    v_mov_b32 v{IDX}, 0xdddddddd
    v_cndmask_b32 v3, v4, v3, vcc
    v_add_u32 v{VA0}, 1024, v3
    v_mov_b32 v{VA}, v{VA0}
    v_lshrrev_b32 v3, 3, v2
    v_lshlrev_b32 v3, 4, v3
    s_lshl_b32 s49, s{sW}, 7
    v_add_u32 v{WRO}, s49, v3
    v_and_b32 v4, 7, v2
    v_lshl_add_u32 v{XO}, v4, 10, v{WRO}
    s_and_b32 s48, s2, 7
    s_lshr_b32 s49, s2, 3
    s_mul_i32 s64, s48, 22
    s_add_u32 s64, s64, s49
    s_lshl_b32 s48, s48, 3
    s_add_u32 s48, s48, s49
    s_sub_u32 s61, s48, 22
    s_and_b32 s61, s61, 63
    s_lshl_b32 s61, s61, 4
    s_min_u32 s48, s64, 171
    s_lshl_b32 s48, s48, 4
    s_mul_i32 s49, s{sW}, {64*2752}
    s_add_u32 s48, s48, s49
    s_lshl_b32 s49, s{sW}, 16
    s_add_u32 s49, s49, s61
    s_add_u32 s66, s49, {512*1024}
    s_add_u32 s67, s49, {1024*1024}
    s_movk_i32 s60, 2752
    s_cmp_ge_u32 s2, 176
    s_cselect_b32 s65, s49, s48
    s_cselect_b32 s66, s66, s48
    s_cselect_b32 s67, s67, 0x200000
    s_cselect_b32 s60, 0x400, s60
    s_cselect_b32 s54, s58, s54
    s_cselect_b32 s55, s59, s55
    s_cselect_b32 s56, s58, s56
    s_cselect_b32 s57, s59, s57
    v_mul_u32_u24 v1, s60, v2
    """)
    srd(a, FA, 54, 512*2752); srd(a, FB, 56, 512*2752)
    a(f"""
    s_mov_b32 s60, {16*8192}
    s_cmp_lt_u32 s{sW}, 4
    s_cselect_b32 s60, s60, {WS_SIZE}
    v_mov_b32 v3, {CNT}
    """)
    for r in range(16): a(f"v_mov_b32 v{O+r}, 0")
    a(f"""
    ds_write_b32 v3, v{O}
    ds_write_b128 v3, {vr(O,4)} offset:16
    s_lshr_b32 s12, s46, 1
    s_add_u32 s12, s12, {WS_QB}
    s_add_u32 s46, s46, {WS_Q}
    v_lshrrev_b32 v7, 4, v2
    v_lshlrev_b32 v7, 7, v7
    v_and_b32 v4, 7, v2
    v_lshl_add_u32 v7, v4, 4, v7
    s_cmp_lt_u32 s{sW}, 4
    s_cbranch_scc1 L2_noflag
    s_sub_u32 s13, s{sW}, 4
    """)
    if "--fw1" not in sys.argv:
        a(f"""
        s_lshl_b32 s48, s13, {KSH + 6}
        s_add_u32 s48, s48, {WS_FLG}
        v_lshlrev_b32 v3, {KSH}, v2
        s_mov_b32 s49, 0
        L2_fpoll:
        buffer_load_dword v4, v3, s[{WS}:{WS+3}], s48 offen sc1
        s_add_u32 s49, s49, 1
        s_waitcnt vmcnt(0)
        v_cmp_ne_u32 vcc, s{sEP}, v4
        s_cmp_gt_u32 s49, 0x40000
        s_cbranch_scc1 L2_fgot
        s_and_b64 exec, exec, vcc
        s_cbranch_scc1 L2_fpoll
        L2_fgot:
        s_mov_b64 exec, 1
        v_mov_b32 v3, {K1_EP + 8}
        v_mov_b32 v4, 1
        ds_add_u32 v3, v4
        """)
    else:
        a(f"""
        s_cmp_lg_u32 s{sW}, 5
        s_cbranch_scc1 L2_fwait
        s_mov_b32 s48, {WS_FLG}
        v_lshlrev_b32 v3, {KSH + 2}, v2
        s_mov_b32 s49, 0
        L2_fpoll:
        """)
        for q in range(4): a(f"buffer_load_dword v{S+q}, v3, s[{WS}:{WS+3}], s48 offen offset:{q << KSH} sc1")
        a(f"""
        s_add_u32 s49, s49, 1
        s_waitcnt vmcnt(0)
        v_xor_b32 v{S}, s{sEP}, v{S}
        v_xor_b32 v{S+1}, s{sEP}, v{S+1}
        v_xor_b32 v{S+2}, s{sEP}, v{S+2}
        v_xor_b32 v{S+3}, s{sEP}, v{S+3}
        v_or3_b32 v4, v{S}, v{S+1}, v{S+2}
        v_or_b32 v4, v4, v{S+3}
        v_cmp_ne_u32 vcc, 0, v4
        s_cmp_gt_u32 s49, 0x40000
        s_cbranch_scc1 L2_fgot
        s_and_b64 exec, exec, vcc
        s_cbranch_scc1 L2_fpoll
        L2_fgot:
        s_mov_b64 exec, 1
        v_mov_b32 v3, {K1_EP + 8}
        v_mov_b32 v4, 4
        ds_write_b32 v3, v4
        L2_fwait:
        s_mov_b64 exec, 1
        v_mov_b32 v3, {K1_EP + 8}
        """)
    a(f"""
    L2_fspin:
    ds_read_b32 v4, v3
    s_waitcnt lgkmcnt(0)
    v_readfirstlane_b32 s49, v4
    s_cmp_lt_u32 s49, 4
    s_cbranch_scc1 L2_fspin
    s_mov_b64 exec, -1
    @S2
    s_lshl_b32 s13, s13, 10
    s_add_u32 s62, s13, {WS_KV}
    """)
    for i in range(6):
        a(f"s_add_u32 m0, s13, {i*4096}\ns_add_u32 s48, s62, {i*4096}\nbuffer_load_dwordx4 v{LN16}, s[{WS}:{WS+3}], s48 offen sc1 lds")
    a(f"""
    L2_noflag:
    {'' if '--nobarA' in sys.argv else 's_barrier'}
    @T6
    s_mov_b32 s49, 0
    L2_qpoll:
    buffer_load_dwordx4 {vr(Q,4)}, v{LN16}, s[{WS}:{WS+3}], s46 offen sc1
    buffer_load_dwordx4 {vr(S,4)}, v7, s[{WS}:{WS+3}], s12 offen sc1
    s_add_u32 s49, s49, 1
    s_waitcnt vmcnt(0)
    v_cmp_ne_u32 vcc, s{sEP}, v{Q+3}
    v_cmp_ne_u32 s[62:63], s{sEP}, v{S+3}
    s_cmp_gt_u32 s49, 0x40000
    s_cbranch_scc1 L2_qgot
    s_or_b64 exec, vcc, s[62:63]
    s_cbranch_scc1 L2_qpoll
    L2_qgot:
    s_mov_b64 exec, -1
    s_mov_b32 s62, 0xff00ff00
    s_mov_b32 s63, s62
    v_cndmask_b32 v{Q+3}, v{S}, v{S+1}, s[62:63]
    s_waitcnt lgkmcnt(0)
    s_barrier
    @S3
    ds_read_b128 {vr(KF,4)}, v{KA}
    ds_read_b128 {vr(KF+4,4)}, v{KA} offset:{TILE}
    ds_read_b128 {vr(VF,4)}, v{VA}
    ds_read_b128 {vr(VF+4,4)}, v{VA} offset:544
    s_waitcnt lgkmcnt(3)
    {MF32} {vr(S,16)}, {vr(KF,4)}, {vr(Q,4)}, 0
    s_waitcnt lgkmcnt(2)
    {MF32} {vr(S+16,16)}, {vr(KF+4,4)}, {vr(Q,4)}, 0
    s_nop 9
    v_max3_f32 v{M}, v{S}, v{S+1}, v{S+2}
    """)
    for r in range(3, 31, 2): a(f"v_max3_f32 v{M}, v{S+r}, v{S+r+1}, v{M}")
    a(f"""
    v_max_f32 v{M}, v{S+31}, v{M}
    v_mov_b32 v3, v{M}
    s_nop 1
    v_permlane32_swap_b32 v{M}, v3
    v_max_f32 v{M}, v{M}, v3
    v_sub_f32 v{C}, {hex(f2u(-SHIFT))}, v{M}
    """)
    for r in range(1, 16): a(f"v_mov_b32 v{C+r}, v{C}")
    a(f"""
    @S4
    @S13
    @T1
    s_nop 1
    {MF32} {vr(S,16)}, {vr(KF,4)}, {vr(Q,4)}, {vr(C,16)}
    s_waitcnt lgkmcnt(0)
    s_nop 10
    """)
    base = 0
    nwo = 0
    NPT = 2 if '--npt2' in sys.argv else 3
    queue = [dma(i) for i in range(3, 17)]
    queue[-1][1] = "s_add_u32 s48, s47, s60"
    ffn = [[f"buffer_load_dwordx4 {vr(FWR+4*i,4)}, v1, s[{FA if i == 0 else FB}:{(FA if i == 0 else FB)+3}], s{65+i} offen"] for i in range(3)]
    wol = [(["s_add_u32 s50, s50, 4096"] if (f and f % 4 == 0) else []) + [f"buffer_load_dwordx4 {vr(WO + 4*f, 4)}, v{LN16}, s[{WS}:{WS+3}], s50 offen offset:{(f & 3)*1024} sc1"] for f in range(32)]
    xw = [[f"buffer_load_dwordx4 {vr(XRES,4)}, v{XO}, s[{X}:{X+3}], s44 offen"], [f"buffer_load_dwordx4 {vr(WRV,4)}, v{WRO}, s[{WR_}:{WR_+3}], 0 offen"]]
    SCH = [x.split("=")[1] for x in sys.argv if x.startswith("--sch=")]
    SCH = SCH[0] if SCH else "E"
    if SCH == "A":
        queue += wol + xw + ffn
        cnt = lambda t: 2 if t < 7 or 10 <= t <= 26 else 1 if t in (27, 29, 31) else 0
    elif SCH == "B":
        queue += wol + xw + ffn
        cnt = lambda t: 2 if t <= 23 else 1
    elif SCH == "C":
        queue += xw + wol[:4] + ffn[:1] + wol[4:5] + ffn[1:2] + wol[5:6] + ffn[2:] + wol[6:]
        cnt = lambda t: 2
    elif SCH == "D":
        queue += wol + xw + ffn
        cnt = lambda t: 2 if t <= 23 else 1 if t in (58, 60, 62) else 0
    elif SCH == "E":
        queue += wol + xw + ffn
        cnt = lambda t: 2 if t <= 23 else 1 if t in (52, 56, 60) else 0
    elif SCH == "F":
        queue += wol + xw + ffn
        cnt = lambda t: 2 if t <= 23 else 1 if t in (61, 62, 63) else 0
    nissued = 0
    if '--noprio' not in sys.argv: a('s_setprio 1')
    for t in range(64):
        cur, nxt = t & 1, (t + 1) & 1
        Sc, Sn = S + 16*cur, S + 16*nxt
        e = [f"v_exp_f32 v{Sc+i}, v{Sc+i}" for i in range(16)]
        n_ = cnt(t); side = sum(queue[:n_], []); queue = queue[n_:]
        if t == BAR_TILE: a(f"s_waitcnt vmcnt({nissued - 14})\ns_barrier")
        nissued += sum(1 for x in side if x.startswith("buffer"))
        if (t + 2 - base) * TILE + TILE > 65535:
            a(f"v_add_u32 v{KA}, {(t - base)*TILE}, v{KA}\nv_add_u32 v{VA}, {(t - base)*TILE}, v{VA}")
            base = t
        after = {i: [] for i in range(16)}
        side = [x for x in side if x]
        grp, curg = [], []
        for x in side:
            curg.append(x)
            if x.startswith("buffer"): grp.append(curg); curg = []
        if t > 0: after[1].append(f"{SMF} {vr(O,16)}, {vr(VF+8*nxt+4,4)}, {vr(Sn+8,8)}, v{IDX}")
        if t < 63:
            after[1].append(f"ds_read_b128 {vr(VF+8*nxt,4)}, v{VA} offset:{(t+1-base)*TILE}")
            after[5].append(f"{MF32} {vr(Sn,16)}, {vr(KF+4*nxt,4)}, {vr(Q,4)}, {vr(C,16)}")
        if t < 62: after[5].append(f"ds_read_b128 {vr(KF+4*cur,4)}, v{KA} offset:{(t+2-base)*TILE}")
        after[11].append(f"{SMF} {vr(O,16)}, {vr(VF+8*cur,4)}, {vr(Sc,8)}, v{IDX}")
        after[11].append("s_waitcnt lgkmcnt(0)")
        if t < 63: after[11].append(f"ds_read_b128 {vr(VF+8*nxt+4,4)}, v{VA} offset:{(t+1-base)*TILE+544}")
        for g, slot in zip(grp, (1, 5, 11) if len(grp) == 3 else (5, 11)): after[slot] += g
        assert len(grp) <= 3
        for i in range(16):
            a(e[i])
            for x in after[i]: a(x)
    a(f"""
    @S8
    @S14
    s_nop 1
    {SMF} {vr(O,16)}, {vr(VF+12,4)}, {vr(S+24,8)}, v{IDX}
    s_mov_b32 s48, {hex(f2u(2.0**110))}
    v_and_b32 v4, 7, v5
    v_mul_u32_u24 v4, 1040, v4
    v_lshrrev_b32 v7, 3, v5
    v_lshl_add_u32 v4, v7, 5, v4
    v_lshl_add_u32 v4, v6, 3, v4
    s_lshl_b32 s49, s{sW}, 7
    s_add_u32 s49, s49, {OB}
    v_add_u32 v4, s49, v4
    v_and_b32 v1, 7, v2
    v_mul_u32_u24 v0, 1040, v1
    v_lshrrev_b32 v7, 4, v2
    v_mul_f32 v3, 0, v{O}
    """)
    for r in range(1, 8): a(f"v_fma_f32 v3, v{O+r}, 0, v3")
    a(f"""
    v_add_f32 v3, v3, v{O+8}
    v_cmp_ngt_f32 vcc, s48, v3
    v_rcp_f32 v3, v{O+8}
    s_cmp_lg_u64 vcc, 0
    s_cbranch_scc1 L2_slow
    L2_epi:
    """)
    for r in range(8): a(f"v_mul_f32 v{O+r}, v3, v{O+r}")
    for r in range(4): a(f"v_cvt_pk_bf16_f32 v{O+r}, v{O+2*r}, v{O+2*r+1}")
    BA, PA = 101, 102
    a(f"""
    ds_write_b64 v4, {vr(O,2)}
    ds_write_b64 v4, {vr(O+2,2)} offset:16
    v_lshl_add_u32 v{BA}, v7, 4, v0
    v_add_u32 v{BA}, {OB}, v{BA}
    v_lshl_add_u32 v{PA}, v7, 3, v1
    v_lshlrev_b32 v{PA}, 6, v{PA}
    s_and_b32 s49, s{sW}, 3
    s_lshl_b32 s49, s49, 11
    s_add_u32 s49, s49, {PART}
    v_add_u32 v{PA}, s49, v{PA}
    s_waitcnt vmcnt(3)
    s_cmp_lt_u32 s{sW}, 4
    {'' if '--xnoold' in X_ else 's_cbranch_scc1 L2_old'}
    L2_join:
    @S7
    """)
    HF, T = 60, 68
    ACC = O
    BF = [Q, 28, 32, 36]
    a("v_mov_b32 v7, 0x3f803f80")
    for q in range(4): a(f"v_mov_b32 v{T+q}, 0")
    for j in range(4):
        a(f"v_lshlrev_b32 v{HF+2*j}, 16, v{XRES+j}\nv_and_b32 v{HF+2*j+1}, 0xffff0000, v{XRES+j}\nv_dot2c_f32_bf16 v{T+3}, v{WRV+j}, v7")
    a(f"""
    v_and_b32 v3, 8, v2
    v_cmp_ne_u32 vcc, 0, v3
    s_cmp_ge_u32 s{sW}, 4
    s_cselect_b64 s[62:63], -1, 0
    s_waitcnt lgkmcnt(0)
    s_barrier
    @S9
    @T2
    s_mov_b64 exec, s[62:63]
    """)
    for i in range(4): a(f"ds_read_b128 {vr(ACC+4*i,4)}, v{PA} offset:{16*i}")
    a("s_mov_b64 exec, -1")
    for ks in range(8, 12): a(f"ds_read_b128 {vr(BF[ks&3],4)}, v{BA} offset:{ks*64}")
    a(f"v_add_u32 v0, s45, v{LN16}")
    for ks in range(8, 16):
        a(f"s_waitcnt lgkmcnt({min(3, 15 - ks)})")
        for i in range(4):
            a(f"{MF16} {vr(ACC+4*i,4)}, {vr(WO+16*(ks-8)+4*i,4)}, {vr(BF[ks&3],4)}, {vr(ACC+4*i,4)}")
        if ks < 12: a(f"ds_read_b128 {vr(BF[ks&3],4)}, v{BA} offset:{(ks+4)*64}")
    a("s_waitcnt vmcnt(0)")
    for i in range(3): a(f"ds_write_b128 v0, {vr(FWR+4*i,4)} offset:{FW + i*8192}")
    A8, HB = 40, 48
    a(f"""
    v_lshrrev_b32 v3, 4, v2
    v_lshlrev_b32 v3, 8, v3
    v_lshl_add_u32 v3, v1, 5, v3
    s_lshl_b32 s49, s{sW}, 2
    s_add_u32 s49, s49, {RED}
    v_add_u32 v3, s49, v3
    v_lshlrev_b32 v4, 5, v1
    v_add_u32 v4, {RED}, v4
    s_add_u32 s49, s44, {WS_H}
    """)
    for j in range(8): a(f"v_cndmask_b32 v{A8+j}, v{ACC+j}, v{ACC+8+j}, vcc")
    for j in range(8): a(f"v_add_f32 v{HF+j}, v{HF+j}, v{A8+j}")
    for j in range(4): a(f"v_cvt_pk_bf16_f32 v{HB+j}, v{HF+2*j}, v{HF+2*j+1}")
    a(f"buffer_store_dwordx4 {vr(HB,4)}, v{XO}, s[{WS}:{WS+3}], s49 offen sc0 sc1")
    for j in range(4):
        a(f"""
        v_dot2c_f32_bf16 v{T}, v{HB+j}, v7
        v_dot2c_f32_bf16 v{T+1}, v{HB+j}, v{HB+j}
        v_dot2c_f32_bf16 v{T+2}, v{HB+j}, v{WRV+j}
        """)
    a(f"""
    v_lshlrev_b32 v{HF}, 16, v{HB}
    v_and_b32 v{HF+1}, 0xffff0000, v{HB}
    v_permlane32_swap_b32 v{T}, v{T+1}
    v_permlane32_swap_b32 v{T+2}, v{T+3}
    v_add_f32 v{T}, v{T}, v{T+1}
    v_add_f32 v{T+2}, v{T+2}, v{T+3}
    v_lshlrev_b32 v{HF+2}, 16, v{HB+1}
    v_and_b32 v{HF+3}, 0xffff0000, v{HB+1}
    v_permlane16_swap_b32 v{T}, v{T+2}
    v_add_f32 v{T}, v{T}, v{T+2}
    v_lshlrev_b32 v{HF+4}, 16, v{HB+2}
    v_and_b32 v{HF+5}, 0xffff0000, v{HB+2}
    v_add_f32_dpp v{T}, v{T}, v{T} row_ror:8 row_mask:0xf bank_mask:0xf
    ds_write_b32 v3, v{T}
    v_lshlrev_b32 v{HF+6}, 16, v{HB+3}
    v_and_b32 v{HF+7}, 0xffff0000, v{HB+3}
    """)
    KR = 128
    def kloads():
        for q in range(4): a(f"buffer_load_dwordx2 {vr(KR+2*q,2)}, v8, s[{WS}:{WS+3}], s48 offen offset:{q << KSH} sc1")
    a(f"""
    s_waitcnt lgkmcnt(0)
    s_barrier
    @S11
    """)
    R_ = 108
    for q in (0, 2, 1, 3):
        a(f"ds_read_b128 {vr(R_+8*q,4)}, v4 offset:{q*256}\nds_read_b128 {vr(R_+8*q+4,4)}, v4 offset:{q*256+16}")
    def sum8(b):
        a(f"""
        v_add_f32 v{b}, v{b}, v{b+1}
        v_add_f32 v{b+2}, v{b+2}, v{b+3}
        v_add_f32 v{b+4}, v{b+4}, v{b+5}
        v_add_f32 v{b+6}, v{b+6}, v{b+7}
        v_add_f32 v{b}, v{b}, v{b+2}
        v_add_f32 v{b+4}, v{b+4}, v{b+6}
        v_add_f32 v{b}, v{b}, v{b+4}
        """)
    s1, s3, s2, s4 = R_, R_+8, R_+16, R_+24
    ST = 76
    OV = 80
    a("s_waitcnt lgkmcnt(4)")
    sum8(s1); sum8(s2)
    a(f"""
    v_mul_f32 v{ST}, {hex(f2u(1.0/512))}, v{s1}
    v_mul_f32 v{s2}, {hex(f2u(1.0/512))}, v{s2}
    v_fma_f32 v{s2}, -v{ST}, v{ST}, v{s2}
    v_max_f32 v{s2}, 0, v{s2}
    v_add_f32 v{s2}, {hex(f2u(EPS))}, v{s2}
    v_rsq_f32 v{ST+1}, v{s2}
    s_cmp_lg_u32 s{sW}, 0
    s_cbranch_scc1 L2_nokey
    s_waitcnt lgkmcnt(0)
    """)
    sum8(s3); sum8(s4)
    AF, BFR, STT, D, D2 = 140, 12, 204, 208, 212
    breg = lambda q: 12 + 4*q if q < 7 else 216 + 4*(q - 7)
    a(f"""
    v_fma_f32 v{s3}, -v{ST}, v{s4}, v{s3}
    s_lshl_b32 s48, s{sG}, 3
    v_add_u32 v4, s48, v1
    v_mul_f32 v{ST+2}, v{ST+1}, v{s3}
    v_mov_b32 v{ST+3}, s{sEP}
    v_lshlrev_b32 v0, 4, v4
    s_mov_b32 s48, {WS_ST}
    s_mov_b64 exec, 0xff
    buffer_store_dwordx4 {vr(ST,4)}, v0, s[{WS}:{WS+3}], s48 offen sc0 sc1
    s_mov_b64 exec, -1
    v_ashrrev_i32 v3, 31, v{ST+2}
    v_or_b32 v3, 0x80000000, v3
    v_xor_b32 v3, v3, v{ST+2}
    v_and_b32 v3, 0xfffff800, v3
    v_sub_u32 v4, 2047, v4
    v_or_b32 v4, v3, v4
    s_lshl_b32 s48, s2, {KSH}
    s_add_u32 s48, s48, {WS_KEY}
    v_mov_b32_dpp v6, v4 quad_perm:[1,0,3,2] row_mask:0xf bank_mask:0xf
    v_mov_b32 v0, 0
    v_min_u32 v5, v4, v6
    v_max_u32 v4, v4, v6
    """)
    for dpp in ("quad_perm:[2,3,0,1]", "row_half_mirror"):
        a(f"""
        s_nop 0
        v_mov_b32_dpp v3, v5 {dpp} row_mask:0xf bank_mask:0xf
        v_mov_b32_dpp v6, v4 {dpp} row_mask:0xf bank_mask:0xf
        v_max_u32 v5, v5, v3
        v_med3_u32 v5, v4, v5, v6
        v_max_u32 v4, v4, v6
        """)
    a(f"""
    s_waitcnt vmcnt(1)
    s_barrier
    s_mov_b64 exec, 1
    buffer_store_dwordx2 v[4:5], v0, s[{WS}:{WS+3}], s48 offen sc0 sc1
    s_mov_b64 exec, -1
    @S5
    """)
    def outval():
        a(f"v_add_f32 v3, 1.0, v{ST+1}\nv_mul_f32 v6, v{ST}, v{ST+1}")
        for j in range(8): a(f"v_fma_f32 v{A8+j}, v{HF+j}, v3, -v6")
        for j in range(4): a(f"v_cvt_pk_bf16_f32 v{OV+j}, v{A8+2*j}, v{A8+2*j+1}")
    a(f"v_lshlrev_b32 v8, {KSH + 2}, v2\ns_mov_b32 s48, {WS_KEY}")
    if "--knoack" in sys.argv: kloads()
    ROWS = 40960
    a(f"""
    v_and_b32 v9, 15, v2
    v_lshrrev_b32 v11, 4, v2
    v_lshrrev_b32 v10, 2, v9
    v_lshl_add_u32 v10, v11, 7, v10
    v_lshlrev_b32 v10, 4, v10
    v_and_b32 v0, 1, v9
    v_lshl_add_u32 v10, v0, 3, v10
    v_and_b32 v3, 2, v9
    v_lshl_add_u32 v10, v3, 12, v10
    """)
    for q in range(7): a(f"ds_read_b64_tr_b16 {vr(AF+4*q,2)}, v10 offset:{FW + q*128}\nds_read_b64_tr_b16 {vr(AF+4*q+2,2)}, v10 offset:{FW + q*128 + 64}")
    outval()
    a("s_waitcnt lgkmcnt(0)")
    for q in range(7, 14): a(f"ds_read_b64_tr_b16 {vr(AF+4*q,2)}, v10 offset:{FW + q*128}\nds_read_b64_tr_b16 {vr(AF+4*q+2,2)}, v10 offset:{FW + q*128 + 64}")
    a(f"v_mov_b32 v252, v7\nv_mov_b32 v253, v7\nv_mov_b32 v254, v7\nv_mov_b32 v255, v7\ns_waitcnt lgkmcnt(4)")
    for q in range(14, 16): a(f"ds_read_b64_tr_b16 {vr(AF+4*q,2)}, v10 offset:{FW + q*128}\nds_read_b64_tr_b16 {vr(AF+4*q+2,2)}, v10 offset:{FW + q*128 + 64}")
    if "--knoack" not in sys.argv: a("s_waitcnt vmcnt(0)"); kloads()
    a(f"""
    v_cmp_eq_u32 s[10:11], 1, v0
    v_mul_u32_u24 v10, 1040, v0
    v_lshl_add_u32 v10, v11, 8, v10
    v_lshlrev_b32 v{R_}, 4, v0
    v_lshl_add_u32 v{R_}, v11, 3, v{R_}
    s_mov_b32 s49, 0
    s_mov_b32 s46, 0
    s_mov_b32 s47, 0
    s_mov_b32 s51, {WS_ST}
    s_waitcnt lgkmcnt(0)
    """)
    for q in range(16): a(f"{MF16} {vr(D2,4)}, {vr(AF+4*q,4)}, v[252:255], {'0' if q == 0 else vr(D2,4)}")
    a(f"""
    L2_kpoll:
    s_waitcnt vmcnt(0)
    v_min_u32 v0, v{KR}, v{KR+2}
    v_min3_u32 v0, v{KR+4}, v{KR+6}, v0
    v_cmp_eq_u32 s[62:63], 0, v0
    s_add_u32 s49, s49, 1
    s_cmp_gt_u32 s49, 0x40000
    s_cselect_b64 s[62:63], 0, s[62:63]
    v_max_u32 v4, v{KR}, v{KR+2}
    v_min_u32 v5, v{KR}, v{KR+2}
    v_max3_u32 v5, v5, v{KR+1}, v{KR+3}
    v_med3_u32 v5, v4, v5, v{KR+4}
    v_max_u32 v4, v4, v{KR+4}
    v_med3_u32 v5, v4, v5, v{KR+6}
    v_max_u32 v4, v4, v{KR+6}
    v_max3_u32 v5, v5, v{KR+5}, v{KR+7}
    s_mov_b64 exec, s[62:63]
    s_cbranch_execz L2_klast
    """)
    kloads()
    a("L2_klast:\ns_mov_b64 exec, -1")
    for dpp in ("quad_perm:[1,0,3,2]", "quad_perm:[2,3,0,1]", "row_half_mirror", "row_mirror"):
        a(f"""
        v_mov_b32_dpp v3, v5 {dpp} row_mask:0xf bank_mask:0xf
        v_mov_b32_dpp v6, v4 {dpp} row_mask:0xf bank_mask:0xf
        v_max_u32 v5, v5, v3
        v_med3_u32 v5, v4, v5, v6
        v_max_u32 v4, v4, v6
        s_nop 0
        """)
    for sw in ("v_permlane16_swap_b32", "v_permlane32_swap_b32"):
        a(f"""
        v_mov_b32 v3, v5
        v_mov_b32 v6, v4
        s_nop 0
        {sw} v5, v3
        {sw} v4, v6
        v_max_u32 v5, v5, v3
        v_med3_u32 v5, v4, v5, v6
        v_max_u32 v4, v4, v6
        """)
    a(f"""
    v_readfirstlane_b32 s53, v5
    v_readfirstlane_b32 s52, v4
    v_cndmask_b32 v3, v4, v5, s[10:11]
    v_not_b32 v3, v3
    s_cmp_eq_u64 s[52:53], s[46:47]
    s_cbranch_scc1 L2_ksame
    s_mov_b64 s[46:47], s[52:53]
    s_cmp_ge_u32 s2, 176
    s_cbranch_scc1 L2_ksame
    s_andn2_b32 s54, 0x7ff, s52
    s_andn2_b32 s55, 0x7ff, s53
    s_lshl_b32 s54, s54, 10
    s_lshl_b32 s55, s55, 10
    s_add_u32 s54, s54, {WS_H}
    s_add_u32 s55, s55, {WS_H}
    s_mov_b32 m0, {ROWS}
    v_and_b32 v3, 0x7ff, v3
    buffer_load_dwordx4 v{LN16}, s[{WS}:{WS+3}], s54 offen sc1 lds
    s_mov_b32 m0, {ROWS + 1040}
    v_lshlrev_b32 v9, 4, v3
    buffer_load_dwordx4 v{LN16}, s[{WS}:{WS+3}], s55 offen sc1 lds
    buffer_load_dwordx4 {vr(STT,4)}, v9, s[{WS}:{WS+3}], s51 offen sc1
    L2_ksame:
    s_cmp_lg_u64 s[62:63], 0
    s_cbranch_scc1 L2_kpoll
    @S6
    v_mov_b32 v0, {CNT + 16}
    ds_write_b64 v0, v[4:5]
    s_cmp_ge_u32 s2, 176
    s_cbranch_scc1 L2_bc
    s_cmp_ge_u32 s64, 172
    s_cselect_b32 s48, 0x100000, s64
    s_lshl_b32 s48, s48, {ASH}
    s_add_u32 s48, s48, {WS_ACT}
    s_waitcnt vmcnt(1)
    """)
    for q in range(12): a(f"ds_read_b128 {vr(breg(q),4)}, v10 offset:{ROWS + q*16}")
    for q in range(16):
        a(f"s_waitcnt lgkmcnt({min(11, 15 - q)})")
        a(f"{MF16} {vr(D,4)}, {vr(AF+4*q,4)}, {vr(breg(q),4)}, {'0' if q == 0 else vr(D,4)}")
        if q < 4: a(f"ds_read_b128 {vr(breg(q+12),4)}, v10 offset:{ROWS + (q+12)*16}")
    E = R_ + 8
    a(f"""
    L2_stw:
    s_waitcnt vmcnt(0)
    v_cmp_ne_u32 vcc, s{sEP}, v{STT+3}
    s_nop 2
    s_cbranch_vccnz L2_stre
    L2_stok:
    s_nop 1
    """)
    for r in range(4): a(f"v_fma_f32 v{D+r}, -v{STT}, v{D2+r}, v{D+r}")
    for r in range(4): a(f"v_mul_f32 v{D+r}, v{D+r}, v{STT+1}")
    for r in range(4): a(f"v_mov_b32 v{E+4+r}, v{D+r}")
    for r in range(4): a(f"v_mul_f32 v{E+r}, {hex(f2u(-LOG2E))}, v{D+r}")
    for r in range(4): a(f"v_exp_f32 v{E+r}, v{E+r}")
    for r in range(4): a(f"v_permlane32_swap_b32 v{D+r}, v{E+4+r}")
    for r in range(4): a(f"v_add_f32 v{E+r}, 1.0, v{E+r}")
    for r in range(4): a(f"v_rcp_f32 v{E+r}, v{E+r}")
    for r in range(4): a(f"v_mul_f32 v{D+r}, v{D+r}, v{E+4+r}")
    for r in range(4): a(f"v_mul_f32 v{D+r}, v{D+r}, v{E+r}")
    a(f"""
    v_cvt_pk_bf16_f32 v{R_+2}, v{D}, v{D+1}
    v_cvt_pk_bf16_f32 v{R_+3}, v{D+2}, v{D+3}
    s_mov_b64 exec, 0x00030003
    buffer_store_dwordx2 {vr(R_+2,2)}, v{R_}, s[{WS}:{WS+3}], s48 offen sc0 sc1
    s_mov_b64 exec, -1
    @S10
    s_branch L2_bc
    L2_stre:
    s_add_u32 s49, s49, 1
    s_cmp_gt_u32 s49, 0x40000
    s_cbranch_scc1 L2_stok
    buffer_load_dwordx4 {vr(STT,4)}, v9, s[{WS}:{WS+3}], s51 offen sc1
    s_branch L2_stw
    L2_nokey:
    """)
    outval()
    a("s_waitcnt vmcnt(0)\ns_barrier")
    BFR = 164
    a(f"""
    L2_bc:
    v_and_b32 v9, 15, v2
    v_lshrrev_b32 v10, 2, v9
    v_lshrrev_b32 v11, 4, v2
    v_lshl_add_u32 v10, v11, 3, v10
    v_lshlrev_b32 v10, 4, v10
    v_and_b32 v8, 1, v9
    v_lshl_add_u32 v10, v8, 3, v10
    s_mul_i32 s49, s45, 3
    v_add_u32 v10, s49, v10
    """)
    for s_ in range(6):
        a(f"ds_read_b64_tr_b16 {vr(AF+4*s_,2)}, v10 offset:{FW + s_*512}\nds_read_b64_tr_b16 {vr(AF+4*s_+2,2)}, v10 offset:{FW + s_*512 + 64}")
    a(f"""
    v_mov_b32 v0, {CNT + 16}
    s_lshl_b32 s48, s{sG}, 3
    v_add_u32 v8, s48, v1
    s_waitcnt lgkmcnt(0)
    s_barrier
    ds_read_b64 v[4:5], v0
    s_waitcnt lgkmcnt(0)
    v_not_b32 v4, v4
    v_not_b32 v5, v5
    v_and_b32 v4, 0x7ff, v4
    v_and_b32 v5, 0x7ff, v5
    v_cmp_ne_u32 vcc, v4, v8
    v_cmp_ne_u32 s[62:63], v5, v8
    s_and_b64 exec, vcc, s[62:63]
    buffer_store_dwordx4 {vr(OV,4)}, v{XO}, s[{OUT}:{OUT+3}], s44 offen {OSC}
    s_mov_b64 exec, -1
    s_sub_u32 s48, s2, 176
    s_cmp_lt_u32 s48, 64
    s_cbranch_scc1 L2_st2
    L2_fin:
    @D0 15 {WS} {sW}
    s_endpgm
    """)
    a("L2_st2:")
    a(f"""
    v_and_b32 v6, 8, v2
    v_cmp_ne_u32 vcc, 0, v6
    s_mov_b32 s48, {WS_H}
    s_mov_b32 s51, {WS_ST}
    v_cndmask_b32 v3, v4, v5, vcc
    v_lshlrev_b32 v12, 10, v3
    v_lshl_add_u32 v12, v1, 1, v12
    v_add_u32 v12, s61, v12
    v_lshlrev_b32 v18, 4, v3
    buffer_load_ushort v13, v12, s[{WS}:{WS+3}], s48 offen sc1
    v_and_b32 v6, 1, v2
    v_lshlrev_b32 v0, {ASH}, v11
    v_lshl_add_u32 v0, v6, 4, v0
    s_mul_i32 s48, s{sW}, {24 << ASH}
    s_add_u32 s48, s48, {WS_ACT}
    s_mov_b32 s49, 0
    L2_apoll:
    buffer_load_dwordx4 {vr(STT,4)}, v18, s[{WS}:{WS+3}], s51 offen sc1
    """)
    for s_ in range(6):
        a(f"buffer_load_dwordx4 {vr(BFR+4*s_,4)}, v0, s[{WS}:{WS+3}], s48 offen offset:{s_*(4 << ASH)} sc1")
    a(f"s_add_u32 s49, s49, 1\ns_waitcnt vmcnt(0)\nv_max3_u32 v3, v{BFR}, v{BFR+1}, v{BFR+2}")
    for q in range(3, 23, 2): a(f"v_max3_u32 v3, v{BFR+q}, v{BFR+q+1}, v3")
    a(f"""
    v_max_u32 v3, v{BFR+23}, v3
    v_cmp_eq_u32 vcc, -1, v3
    v_cmp_ne_u32 s[62:63], s{sEP}, v{STT+3}
    s_cmp_gt_u32 s49, 0x40000
    s_cbranch_scc1 L2_agot
    s_or_b64 {'exec' if '--amask' in sys.argv else 'vcc'}, vcc, s[62:63]
    s_cbranch_scc0 L2_agot
    {SLEEP}
    s_branch L2_apoll
    L2_agot:
    s_mov_b64 exec, -1
    @S10
    """)
    for s_ in range(6): a(f"{MF16} {vr(D,4)}, {vr(AF+4*s_,4)}, {vr(BFR+4*s_,4)}, {'0' if s_ == 0 else vr(D,4)}")
    a(f"""
    v_and_b32 v3, 1, v11
    v_lshlrev_b32 v0, 5, v6
    v_lshl_add_u32 v0, v3, 4, v0
    s_lshl_b32 s48, s{sW}, 6
    s_add_u32 s48, s48, {FR}
    v_add_u32 v0, s48, v0
    v_lshlrev_b32 v10, 2, v9
    v_lshl_add_u32 v10, v11, 7, v10
    v_add_u32 v10, {FR}, v10
    ds_write_b128 v0, {vr(D,4)}
    s_waitcnt lgkmcnt(0)
    s_barrier
    s_cmp_lg_u32 s{sW}, 0
    s_cbranch_scc1 L2_fin
    ds_read2_b32 v[14:15], v10 offset0:0 offset1:16
    v_mul_f32 v16, {hex(f2u(-LOG2E))}, v{STT+2}
    v_exp_f32 v16, v16
    v_lshlrev_b32 v13, 16, v13
    v_add_f32 v16, 1.0, v16
    v_rcp_f32 v16, v16
    v_sub_f32 v17, v13, v{STT}
    v_fma_f32 v13, v17, v{STT+1}, v13
    s_waitcnt lgkmcnt(0)
    v_add_f32 v14, v14, v15
    v_mov_b32 v15, v14
    s_nop 1
    v_permlane32_swap_b32 v14, v15
    v_add_f32 v14, v14, v15
    v_mov_b32 v15, v14
    s_nop 1
    v_permlane16_swap_b32 v14, v15
    v_add_f32 v14, v14, v15
    v_fma_f32 v14, v14, v16, v13
    v_cvt_pk_bf16_f32 v14, v14, v14
    s_mov_b64 exec, 0xffff
    buffer_store_short v14, v12, s[{OUT}:{OUT+3}], 0 offen {OSC}
    @Q {WS}
    @D0 15 {WS} {sW}
    L2_end:
    s_endpgm
    """)
    AB = 12
    def wl(reg, sb, f):
        a(f"buffer_load_dwordx4 {vr(reg,4)}, v{LN16}, s[{WS}:{WS+3}], s{sb} offen offset:{(f & 3)*1024} sc1")
        if f % 4 == 3: a(f"s_add_u32 s{sb}, s{sb}, 4096")
    NE = 11
    breg = lambda f: 40 + 4*f if f < NE else WO + 4*(f - NE)
    a(f"""
    L2_old:
    s_setprio 0
    v_mov_b32 v3, {CNT}
    v_mov_b32 v4, 1
    s_waitcnt lgkmcnt(0)
    s_mov_b64 exec, 1
    ds_add_u32 v3, v4
    s_mov_b64 exec, -1
    s_add_u32 s48, s51, {4*65536}
    """)
    for f in range(NE): wl(breg(f), 48, f)
    a(f"""
    L2_spin:
    ds_read_b32 v4, v3
    s_waitcnt lgkmcnt(0)
    v_readfirstlane_b32 s49, v4
    s_cmp_ge_u32 s49, 4
    s_cbranch_scc1 L2_go
    s_sleep 2
    s_branch L2_spin
    L2_go:
    """)
    def half(acc, reg, after):
        for ks in range(3): a(f"ds_read_b128 {vr(BF[ks&3],4)}, v{BA} offset:{ks*64}")
        for ks in range(8):
            if ks + 3 < 8: a(f"ds_read_b128 {vr(BF[(ks+3)&3],4)}, v{BA} offset:{(ks+3)*64}")
            after(ks, 0)
            for i in range(4):
                a(f"{MF16} {vr(acc+4*i,4)}, {vr(reg(4*ks+i),4)}, {vr(BF[ks&3],4)}, {'0' if ks == 0 else vr(acc+4*i,4)}")
            after(ks, 1)
    a(f"s_add_u32 s49, s51, {32768 + ((32 - NE)//4)*4096}")
    def aftA(ks, post):
        if not post: a(f"s_waitcnt lgkmcnt({min(3, 7-ks)})"); return
        for slot in range(4*ks, 4*ks + 4):
            if slot < 32 - NE: wl(WO + 4*slot, 48, slot + NE)
            else: wl(WO + 4*slot, 49, slot)
    half(ACC, lambda f: WO + 4*f, aftA)
    a(f"s_add_u32 s49, s51, 32768")
    def aftB(ks, post):
        if not post:
            done = sum(1 for f in range(NE, 4*ks))
            a(f"s_waitcnt lgkmcnt({min(3, 7-ks)}) vmcnt({min(63, (31 - (4*ks+3)) + NE + done)})"); return
        for f in range(4*ks, 4*ks + 4):
            if f >= NE: wl(WO + 4*(f - NE), 49, f - NE)
    half(AB, breg, aftB)
    a("s_nop 3")
    for i in range(4): a(f"ds_write_b128 v{PA}, {vr(AB+4*i,4)} offset:{16*i}")
    a("s_waitcnt vmcnt(0)\ns_setprio 1\ns_branch L2_join")
    a(f"""
    L2_slow:
    v_mov_b32 v{KA}, v{LN16}
    v_mov_b32 v{M}, 0xff7fffff
    s_mov_b32 s{sN}, 64
    L2_maxloop:
    ds_read_b128 {vr(KF,4)}, v{KA}
    v_add_u32 v{KA}, {TILE}, v{KA}
    s_waitcnt lgkmcnt(0)
    {MF32} {vr(S,16)}, {vr(KF,4)}, {vr(Q,4)}, 0
    s_sub_u32 s{sN}, s{sN}, 1
    s_nop 10
    """)
    for r in range(8): a(f"v_max3_f32 v{M}, v{S+2*r}, v{S+2*r+1}, v{M}")
    a(f"""
    s_cmp_lg_u32 s{sN}, 0
    s_cbranch_scc1 L2_maxloop
    v_mov_b32 v3, v{M}
    v_mov_b32 v{KA}, v{LN16}
    v_mov_b32 v{VA}, v{VA0}
    v_permlane32_swap_b32 v{M}, v3
    v_max_f32 v{M}, v{M}, v3
    """)
    for r in range(16): a(f"v_sub_f32 v{C+r}, 0, v{M}\nv_mov_b32 v{O+r}, 0")
    a(f"""
    s_mov_b32 s{sN}, 64
    L2_slowloop:
    ds_read_b128 {vr(KF,4)}, v{KA}
    ds_read_b128 {vr(VF,4)}, v{VA}
    ds_read_b128 {vr(VF+4,4)}, v{VA} offset:544
    v_add_u32 v{KA}, {TILE}, v{KA}
    v_add_u32 v{VA}, {TILE}, v{VA}
    s_waitcnt lgkmcnt(0)
    {MF32} {vr(S,16)}, {vr(KF,4)}, {vr(Q,4)}, {vr(C,16)}
    s_sub_u32 s{sN}, s{sN}, 1
    s_nop 10
    """)
    for i in range(16): a(f"v_exp_f32 v{S+i}, v{S+i}")
    a(f"""
    s_nop 1
    {SMF} {vr(O,16)}, {vr(VF,4)}, {vr(S,8)}, v{IDX}
    {SMF} {vr(O,16)}, {vr(VF+4,4)}, {vr(S+8,8)}, v{IDX}
    s_cmp_lg_u32 s{sN}, 0
    s_cbranch_scc1 L2_slowloop
    s_nop 11
    v_rcp_f32 v3, v{O+8}
    s_branch L2_epi
    """)
    k1_cold(a)
    return desc(KNAME, 256, 70)
def main():
    hdr = open("sequential_preLN__grouped_kv_mqa__moe_arch_mod__prompt.s.ref").read().split("\n")
    top = [l for l in hdr if l.startswith(";") and "@launch" not in l and "Override" not in l and "grid=ceil" not in l]
    a = Asm()
    k1(a)
    d = k2(a)
    out = "\n".join(top) + "\n"
    out += f"; @launch grid=(256,1,1) block=(512,1,1) lds={max(K1_LDS, K2_LDS)}\n"
    out += '.amdgcn_target "amdgcn-amd-amdhsa--gfx950"\n.text\n' + a.text() + '.section .rodata,"a"\n' + d
    sys.stdout.write(out)
main()
```

```python
import sys, struct
def f2u(x): return struct.unpack("<I", struct.pack("<f", x))[0]

WS_Q   = 0
WS_KV  = 2 << 20
WS_WO  = 3 << 20
WS_H   = 4 << 20

WS_ST  = (6 << 20) + 0x10000
WS_ACT = (6 << 20) + 0x20000
WS_KEY = WS_ACT + 0x10000
KSH = 7; ASH = 7; FSH = 7
for _x in sys.argv:
    if _x.startswith('--ksh='): KSH = int(_x.split('=')[1])
    if _x.startswith('--fsh='): FSH = int(_x.split('=')[1])
    if _x.startswith('--ash='): ASH = int(_x.split('=')[1])
WS_FLG = WS_KEY + 0x10000
WS_QB = 7 << 20
sEP = 68
KNAME = 'sequential_preLN__grouped_kv_mqa__moe_arch_mod__prompt_kernel'
WS_SIZE = 8 << 20
TILE = 2112
QSCALE = 0.25 * 1.4426950408889634
EPS = 1e-5
SHIFT = 96.0
for _x in sys.argv:
    if _x.startswith('--shift='): SHIFT = float(_x.split('=')[1])

class Asm:
    def __init__(self): self.l = []
    def __call__(self, s):
        for x in s.split("\n"):
            x = x.strip()
            if x.startswith("@S"): stamp(self, int(x[2:])); continue
            if x.startswith("@P"): padstore(self, *[int(t) for t in x[2:].split()]); continue
            if x.startswith("@Q"): padspin(self, *[int(t) for t in x[2:].split()]); continue
            if x.startswith("@T"): padstamp(self, int(x[2:])); continue
            if x.startswith("@D"): dump(self, *[int(t) for t in x[2:].split()]); continue
            if x: self.l.append(("" if x.endswith(":") else "    ") + x)
    def text(self): return "\n".join(self.l) + "\n"

def srd(a, d, p, size):
    a(f"s_mov_b32 s{d}, s{p}\ns_and_b32 s{d+1}, s{p+1}, 0xffff\ns_mov_b32 s{d+2}, {size}\ns_mov_b32 s{d+3}, 0x20000")
def vr(b, n): return f"v[{b}:{b+n-1}]"
def head(a, name):
    a(f".globl {name}\n.p2align 8\n.type {name},@function\n{name}:")
def desc(name, nv, ns):
    return f""".p2align 6
.amdhsa_kernel {name}
  .amdhsa_next_free_vgpr {nv}
  .amdhsa_next_free_sgpr {102 if (DIAG or PAD is not None) else ns}
  .amdhsa_accum_offset {(nv+3)//4*4}
  .amdhsa_group_segment_fixed_size 0
  .amdhsa_kernarg_size 104
  .amdhsa_user_sgpr_count 2
  .amdhsa_user_sgpr_kernarg_segment_ptr 1
  .amdhsa_system_sgpr_workgroup_id_x 1
.end_amdhsa_kernel
"""
DIAG = "--diag" in sys.argv
WS_DIAG = 16 << 20
if DIAG: WS_SIZE = 32 << 20
LIGHT = '--light' in sys.argv
def stamp(a, i, force=False):
    if LIGHT and i != 0 and not force: return
    if DIAG: a(f"{'s_memtime' if i >= 13 else 's_memrealtime'} s[{70+2*i}:{71+2*i}]\ns_waitcnt lgkmcnt(0)")
DIAG2 = "--diag2" in sys.argv
D2SEL = {0: [(0, 1), (2, 0), (8, 0)], 1: [(0, 1), (1, 0), (3, 0), (4, 0), (8, 0), (10, 0), (12, 0)], 2: [(0, 1), (1, 0), (3, 0), (5, 0), (6, 0), (7, 0)]}
_dl = [0]
def dump(a, kidx, n, WS, sW):
    if not DIAG: return
    stamp(a, min(n - 1, 12), True)
    if DIAG2:
        _dl[0] += 1
        base = sum(len(D2SEL[k]) for k in range(kidx))
        a(f"s_and_b32 s98, s2, 15\ns_cmp_lg_u32 s98, 0\ns_cbranch_scc1 LD_{_dl[0]}\ns_load_dwordx2 s[98:99], s[0:1], 88\ns_mov_b64 exec, 1\nv_mov_b32 v1, 0\ns_waitcnt lgkmcnt(0)\ns_add_u32 s98, s98, {512*(2-kidx)}\ns_addc_u32 s99, s99, 0")
        for j, (i, inv) in enumerate(D2SEL[kidx]):
            a(f"v_mov_b32 v0, s{70+2*i}")
            if inv: a("v_not_b32 v0, v0")
            a(f"global_atomic_umax v1, v0, s[98:99] offset:{4*(base+j)}\ns_nop 1")
        a(f"LD_{_dl[0]}:")
        return
    a(f"s_mov_b64 exec, 1\ns_lshl_b32 s69, s2, 4\ns_add_u32 s69, s69, s{sW}\ns_lshl_b32 s69, s69, 6\ns_add_u32 s69, s69, {WS_DIAG + kidx * (1 << 20)}\nv_mov_b32 v1, 0")
    for i in range(n):
        a(f"v_mov_b32 v0, s{70+2*i}\nbuffer_store_dword v0, v1, s[{WS}:{WS+3}], s69 offen offset:{4*i}")
PAD = [int(x.split("=")[1]) for x in sys.argv if x.startswith("--pad=")]
PAD = PAD[0] if PAD else None
WS_PAD = (6 << 20)
def padstamp(a, k):
    if PAD == k: a("s_memrealtime s[94:95]\ns_waitcnt lgkmcnt(0)")
def padstore(a, k, WS, sW): pass
def padspin(a, WS):
    if PAD is None: return
    a(f"s_mov_b32 s97, 0\nLQ_spin:\ns_memrealtime s[92:93]\ns_waitcnt lgkmcnt(0)\ns_sub_u32 s98, s92, s94\ns_add_u32 s97, s97, 1\ns_cmp_gt_u32 s97, 100000\ns_cbranch_scc1 LQ_done\ns_cmp_lt_u32 s98, 6000\ns_cbranch_scc1 LQ_spin\nLQ_done:")
MF32 = "v_mfma_f32_32x32x16_bf16"
MF16 = "v_mfma_f32_16x16x32_bf16"

ZERO_KB = 8
K1_KV = 131072
K1_CS = 147456
K1_KC = K1_CS + 1024
K1_KP = K1_KC + 1024
K1_PS = K1_KP + 4096
K1_EP = K1_PS + 1024
K1_LDS = K1_EP + 64
QSC = 'sc1' if '--qsc1' in sys.argv else '' if '--qplain' in sys.argv else 'sc0 sc1'
CODE_SPAN = 18600
WOC = 1 if '--woc1' in sys.argv else 2
def rowstat(a, s, m, r):
    a(f"""
    v_add_f32 v{m}, v{s}, v{s+2}
    v_add_f32 v{r}, v{s+1}, v{s+3}
    v_mul_f32 v{m}, {hex(f2u(-1.0/512))}, v{m}
    v_mul_f32 v{r}, {hex(f2u(1.0/512))}, v{r}
    v_fma_f32 v{r}, -v{m}, v{m}, v{r}
    v_max_f32 v{r}, 0, v{r}
    """)
    if "--exactln" in sys.argv:
        a(f"v_add_f32 v{r}, {hex(f2u(EPS))}, v{r}\nv_rsq_f32 v{r}, v{r}")
        return
    a(f"""
    v_cvt_pk_bf16_f32 v{r}, v{m}, v{r}
    v_lshlrev_b32 v{m}, 16, v{r}
    v_and_b32 v{r}, 0xffff0000, v{r}
    v_add_f32 v{r}, {hex(f2u(EPS))}, v{r}
    v_cvt_pk_bf16_f32 v{r}, v{r}, v{r}
    v_and_b32 v{r}, 0xffff0000, v{r}
    v_sqrt_f32 v{r}, v{r}
    s_nop 0
    v_cvt_pk_bf16_f32 v{r}, v{r}, v{r}
    v_and_b32 v{r}, 0xffff0000, v{r}
    v_rcp_f32 v{r}, v{r}
    """)
def split_ab(a, src, dst, kind):
    a(f"v_and_b32 v11, 0xffff0000, v{src}\nv_sub_f32 v12, v{src}, v11")
    if kind == "m": a(f"v_cvt_pk_bf16_f32 v{dst}, v11, v12\nv_cvt_pk_bf16_f32 v{dst+1}, v11, 0")
    else: a(f"v_cvt_pk_bf16_f32 v{dst}, v11, v11\nv_cvt_pk_bf16_f32 v{dst+1}, v12, 0")
def k1(a):
    X, WQ, WKV, WO, WS = 16, 20, 24, 32, 36
    sW, sTG, sCG = 40, 41, 42
    DBG = 28
    ONES = 69
    VL = 13
    head(a, KNAME)
    a(f"""
    s_cmp_ge_u32 s2, 256
    s_cbranch_scc1 L2_end
    @S0
    @T0
    s_load_dwordx8 s[4:11], s[0:1], 0
    s_load_dwordx2 s[12:13], s[0:1], 32
    s_load_dwordx2 s[14:15], s[0:1], 96
    s_load_dwordx2 s[64:65], s[0:1], 88
    v_lshrrev_b32 v1, 6, v0
    v_and_b32 v2, 63, v0
    v_readfirstlane_b32 s{sW}, v1
    s_and_b32 s43, s2, 7
    s_lshr_b32 s44, s2, 3
    s_and_b32 s45, s44, 3
    s_lshl_b32 s{sTG}, s43, 2
    s_add_u32 s{sTG}, s{sTG}, s45
    s_lshr_b32 s{sCG}, s44, 2
    v_and_b32 v3, 15, v2
    v_lshrrev_b32 v4, 4, v2
    v_lshlrev_b32 v{VL}, 4, v2
    s_and_b32 s46, s{sW}, 3
    s_lshl_b32 s50, s46, 12
    s_and_b32 s58, s{sCG}, 3
    s_cmp_lt_u32 s{sW}, 4
    s_cbranch_scc1 L1_gemm
    """)
    VX, VW, WT, CS, WR, XR = 8, 12, 24, 70, 48, 32
    pass
    for i in range(4):
        a(f"v_add_u32 v7, {4*i}, v4\nv_xor_b32 v{VX+i}, v7, v3\nv_lshlrev_b32 v{VX+i}, 4, v{VX+i}\nv_lshl_add_u32 v{VX+i}, v7, 10, v{VX+i}")
    a(f"""
    v_lshrrev_b32 v7, 3, v2
    v_and_b32 v{VW}, 1, v4
    v_lshlrev_b32 v{VW}, 2, v{VW}
    v_and_b32 v14, 7, v2
    v_xor_b32 v{VW}, v{VW}, v14
    v_lshlrev_b32 v{VW}, 4, v{VW}
    v_lshl_add_u32 v{VW}, v7, 10, v{VW}
    s_lshl_b32 s48, s{sTG}, 16
    s_lshl_b32 s43, s46, 14
    s_add_u32 s48, s48, s43
    s_lshl_b32 s49, s46, 15
    s_lshl_b32 s43, s{sCG}, 7
    s_add_u32 s49, s49, s43
    {'s_mov_b32 s55, 0' if '--norot' in sys.argv else f's_add_u32 s55, s{sCG}, s{sTG}'}
    s_waitcnt lgkmcnt(0)
    """)
    srd(a, X, 4, 2 << 20)
    def chunk(c, sh): a(f"s_add_u32 s43, s55, {c}\ns_and_b32 s43, s43, 3\ns_lshl_b32 s43, s43, {sh}")
    def issx(c):
        chunk(c, 8); a("s_add_u32 s51, s48, s43")
        for i in range(4):
            a(f"s_add_u32 m0, s50, {c*16384 + i*1024}\ns_nop 0\nbuffer_load_dwordx4 v{VX+i}, s[{X}:{X+3}], s51 offen lds")
    def issw(c):
        chunk(c, 17); a("s_add_u32 s51, s49, s43")
        for i in range(4):
            a(f"s_add_u32 m0, s50, {65536 + c*16384 + i*1024}\ns_add_u32 s52, s51, {8*i*1024}\nbuffer_load_dwordx4 v{VW}, s[{WQ}:{WQ+3}], s52 offen lds")
    def isskv(c):
        chunk(c, 12)
        a(f"s_add_u32 m0, s61, {K1_KV + c*4096}\ns_add_u32 s52, s61, s43\nbuffer_load_dwordx4 v{VL}, s[{WKV}:{WKV+3}], s52 offen lds")
    issx(0)
    a(f"s_cmp_ge_u32 s{sCG}, 4\ns_cselect_b32 s8, s10, s8\ns_cselect_b32 s9, s11, s9\ns_lshl_b32 s61, s46, 10")
    srd(a, WKV, 8, 16 << 10)
    isskv(0); issx(1); isskv(1)
    srd(a, WQ, 6, 512 << 10)
    a(f"""
    v_mov_b32 v{ONES}, 0x3f803f80
    v_add_u32 v30, {K1_KC}, v{VL}
    s_lshl_b32 s43, s58, 8
    s_add_u32 s43, s43, {K1_PS}
    v_lshl_add_u32 v31, v3, 4, s43
    s_lshl_b32 s56, s{sTG}, 1
    s_lshr_b32 s43, s58, 1
    s_add_u32 s56, s56, s43
    s_mul_i32 s56, s56, {TILE}
    s_add_u32 s56, s56, {WS_KV}
    s_and_b32 s57, s58, 1
    s_lshl_b32 s43, s57, 8
    s_mul_i32 s44, s57, 544
    s_add_u32 s44, s44, 1024
    s_cmp_ge_u32 s{sCG}, 4
    s_cselect_b32 s43, s44, s43
    s_cselect_b64 s[62:63], -1, 0
    s_add_u32 s56, s56, s43
    v_and_b32 v14, 1, v4
    v_lshrrev_b32 v15, 1, v4
    v_lshlrev_b32 v26, 9, v14
    v_lshl_add_u32 v26, v15, 3, v26
    v_lshlrev_b32 v27, 8, v15
    v_lshl_add_u32 v27, v14, 3, v27
    v_cndmask_b32 v26, v26, v27, s[62:63]
    v_lshl_add_u32 v26, v3, 4, v26
    v_lshlrev_b32 v27, 4, v4
    v_lshlrev_b32 v28, 2, v3
    v_cndmask_b32 v27, v28, v27, s[62:63]
    v_cndmask_b32 v28, 0, 4, s[62:63]
    v_mov_b32 v29, 0x7fff0000
    v_mov_b32 v74, 0
    v_mov_b32 v75, 0
    v_mov_b32 v78, 0
    v_mov_b32 v79, 0
    """)
    srd(a, WS, 14, WS_SIZE); srd(a, DBG, 64, 256)
    a(f"v_mov_b32 v93, {K1_EP}\nv_mov_b32 v94, 0")
    size = [5, 5, 5, 5, 4, 4, 4, 4]
    for g in range(5):
        if g + 2 < 4: issx(g + 2); isskv(g + 2)
        else: issw(g - 2)
        a(f"s_waitcnt vmcnt({sum(size[g+1:g+3])})\ns_barrier")
    a(f"buffer_load_dword v66, v94, s[{DBG}:{DBG+3}], 0 offen sc1")
    issw(3)
    a(f"""
    s_cmp_eq_u32 s46, 0
    s_cbranch_scc1 L1_fin
    s_waitcnt vmcnt(9)
    s_barrier
    s_waitcnt vmcnt(5)
    s_barrier
    s_waitcnt vmcnt(0)
    v_readfirstlane_b32 s{sEP}, v66
    s_cmp_eq_u32 s{sEP}, 0
    s_cbranch_scc1 L1_tag
    L1_tagok0:
    ds_write_b32 v93, v66
    s_waitcnt lgkmcnt(0)
    s_barrier
    s_branch L2_start
    L1_fin:
    ds_read_b128 v[80:83], v31
    ds_read_b128 v[84:87], v30
    ds_read_b128 {vr(XR,4)}, v30 offset:1024
    ds_read_b128 {vr(XR+4,4)}, v30 offset:2048
    ds_read_b128 {vr(XR+8,4)}, v30 offset:3072
    ds_read_b128 {vr(XR+12,4)}, v30 offset:4096
    s_waitcnt lgkmcnt(4)
    """)
    rowstat(a, 80, 8, 9)
    a(f"""
    v_add_f32 v84, v84, v85
    v_add_f32 v86, v86, v87
    ds_bpermute_b32 v88, v27, v9
    v_add_u32 v27, v27, v28
    ds_bpermute_b32 v89, v27, v9
    v_add_u32 v27, v27, v28
    ds_bpermute_b32 v90, v27, v9
    v_add_u32 v27, v27, v28
    ds_bpermute_b32 v91, v27, v9
    v_add_f32 v84, v84, v86
    v_cndmask_b32 v85, v84, v8, s[62:63]
    v_cndmask_b32 v86, v8, v84, s[62:63]
    """)
    split_ab(a, 85, 72, "c"); split_ab(a, 86, 76, "m")
    a("s_waitcnt lgkmcnt(4)")
    for r in range(4):
        a(f"v_add_f32 v{XR+r}, v{XR+r}, v{XR+4+r}\nv_add_f32 v{XR+8+r}, v{XR+8+r}, v{XR+12+r}")
    for r in range(4): a(f"v_add_f32 v{XR+r}, v{XR+r}, v{XR+8+r}")
    a(f"""
    v_cmp_gt_u32 vcc, 4, v2
    v_lshlrev_b32 v12, 2, v2
    {MF16} {vr(XR,4)}, v[72:75], v[76:79], {vr(XR,4)}
    v_cndmask_b32 v14, 0, v{ONES}, vcc
    s_and_b64 s[62:63], s[62:63], 0xff
    s_waitcnt lgkmcnt(0)
    s_nop 4
    """)
    for r in range(4): a(f"v_mul_f32 v{XR+r}, v{88+r}, v{XR+r}")
    a(f"""
    v_cvt_pk_bf16_f32 v{XR}, v{XR}, v{XR+1}
    v_cvt_pk_bf16_f32 v{XR+1}, v{XR+2}, v{XR+3}
    buffer_store_dwordx2 {vr(XR,2)}, v26, s[{WS}:{WS+3}], s56 offen sc0 sc1
    v_cndmask_b32 v12, v29, v12, s[62:63]
    buffer_store_dword v14, v12, s[{WS}:{WS+3}], s56 offen offset:512 sc0 sc1
    s_lshl_b32 s43, s2, {KSH}
    s_add_u32 s43, s43, {WS_FLG}
    v_mov_b32 v7, 0
    s_waitcnt vmcnt(11)
    s_barrier
    s_waitcnt vmcnt(7)
    s_barrier
    {'s_waitcnt vmcnt(2)' if '--fb' in sys.argv else ''}
    {'s_barrier' if '--fb' in sys.argv else ''}
    s_waitcnt vmcnt(0)
    v_readfirstlane_b32 s{sEP}, v66
    s_cmp_eq_u32 s{sEP}, 0
    s_cbranch_scc1 L1_tag
    L1_tagok1:
    s_mov_b64 exec, 1
    buffer_store_dword v66, v7, s[{WS}:{WS+3}], s43 offen sc0 sc1
    s_mov_b64 exec, -1
    @S1
    {'' if '--fb' in sys.argv else 's_barrier'}
    s_branch L2_start
    """)
    D1 = 16
    XF, WF = 120, 32
    XA, WA, WB, WOD = 72, 68, 70, 80
    KX, KW = 92, 93
    SX, SXX, KC, KD = 14, 15, 71, 96
    KF = 104
    a(f"""
    L1_gemm:
    v_and_b32 v5, 31, v2
    v_lshrrev_b32 v6, 5, v2
    s_and_b32 s53, s{sW}, 1
    s_lshr_b32 s54, s{sW}, 1
    s_lshl_b32 s59, s2, 1
    s_add_u32 s59, s59, s53
    s_lshr_b32 s43, s59, 6
    s_lshl_b32 s47, s43, 7
    s_lshr_b32 s44, s59, 3
    s_and_b32 s44, s44, 7
    s_lshl_b32 s44, s44, 16
    s_add_u32 s47, s47, s44
    s_lshl_b32 s44, s53, 15
    s_add_u32 s47, s47, s44
    s_and_b32 s44, s59, 2
    s_lshl_b32 s44, s44, 5
    s_add_u32 s47, s47, s44
    s_and_b32 s44, s59, 4
    s_lshr_b32 s44, s44, 1
    s_add_u32 s47, s47, s44
    v_lshlrev_b32 v7, 2, v3
    v_lshl_add_u32 v7, v6, 14, v7
    v_and_b32 v8, 1, v4
    v_lshl_add_u32 v7, v8, 12, v7
    v_add_u32 v8, 8192, v7
    s_waitcnt lgkmcnt(0)
    """)
    if "--pf" in sys.argv:
        a(f"""
        s_lshr_b32 s43, s2, 3
        s_lshl_b32 s43, s43, 14
        s_lshl_b32 s44, s53, 13
        s_add_u32 s43, s43, s44
        s_lshl_b32 s44, s{sTG}, 16
        s_lshl_b32 s45, s{sCG}, 13
        s_add_u32 s44, s44, s45
        s_cmp_eq_u32 s{sW}, 3
        s_cselect_b32 s44, 0x400000, s44
        s_cmp_ge_u32 s{sW}, 2
        s_cselect_b32 s43, s44, s43
        s_cselect_b32 s{X}, s4, s6
        s_cselect_b32 s{X+1}, s5, s7
        s_mov_b32 s{X+2}, 0x80000
        s_cselect_b32 s{X+2}, 0x200000, s{X+2}
        s_and_b32 s{X+1}, s{X+1}, 0xffff
        s_mov_b32 s{X+3}, 0x20000
        v_lshlrev_b32 v9, 7, v2
        buffer_load_dword v252, v9, s[{X}:{X+3}], s43 offen
        """)
    srd(a, WO, 12, 512 << 10); srd(a, WS, 14, WS_SIZE); srd(a, DBG, 64, 256)
    a(f"s_cmp_ge_u32 s{sW}, 2\ns_cbranch_scc1 L1_nowo")
    for j in range(8):
        ro = (0, 1, 8, 9, 2, 3, 10, 11)[j]
        a(f"buffer_load_ushort v{WOD + j}, v{7 + ro//8}, s[{WO}:{WO+3}], s47 offen offset:{(ro & 3) * 1024}")
    a(f"""
    s_branch L1_noz
    L1_nowo:
    s_cmp_eq_u32 s{sW}, 2
    s_cbranch_scc1 L1_ini
    """)
    if "--tlb" in sys.argv:
        a(f"""
        s_load_dwordx8 s[16:23], s[0:1], 48
        s_load_dwordx2 s[24:25], s[0:1], 80
        v_lshlrev_b32 v9, 20, v2
        s_mov_b64 exec, 0xff
        buffer_load_dword v252, v9, s[{WS}:{WS+3}], 0 offen offset:2048
        s_mov_b64 exec, 1
        global_load_dword v253, v9, s[6:7]
        s_waitcnt lgkmcnt(0)
        global_load_dword v253, v9, s[16:17]
        global_load_dword v253, v9, s[18:19]
        global_load_dword v253, v9, s[20:21]
        global_load_dword v253, v9, s[22:23]
        global_load_dword v253, v9, s[24:25]
        s_mov_b64 exec, -1
        """)
    a(f"""
    s_cmp_lg_u32 s2, 0
    s_cbranch_scc1 L1_noz
    s_memrealtime s[44:45]
    v_mov_b32 v9, 0
    s_waitcnt lgkmcnt(0)
    s_or_b32 s44, s44, 1
    v_mov_b32 v{WOD}, s44
    s_mov_b64 exec, 1
    buffer_store_dword v{WOD}, v9, s[{DBG}:{DBG+3}], 0 offen sc0 sc1
    s_mov_b64 exec, -1
    s_branch L1_noz
    L1_ini:
    s_cmp_lt_u32 s2, 172
    s_cselect_b32 s44, -1, 0
    v_mov_b32 v{WOD}, s44
    v_mov_b32 v{WOD+1}, 0
    v_lshlrev_b32 v9, 2, v2
    s_lshl_b32 s43, s2, {ASH}
    s_add_u32 s43, s43, {WS_ACT}
    s_lshl_b32 s44, s2, {KSH}
    s_add_u32 s44, s44, {WS_KEY}
    s_mov_b64 exec, 0xff
    buffer_store_dword v{WOD}, v9, s[{WS}:{WS+3}], s43 offen sc0 sc1
    s_mov_b64 exec, 3
    buffer_store_dword v{WOD+1}, v9, s[{WS}:{WS+3}], s44 offen sc0 sc1
        s_mov_b64 exec, -1
    L1_noz:
    """)
    if "--cpf" in sys.argv:
        a(f"""
        s_getpc_b64 s[44:45]
        s_and_b32 s44, s44, 0xffffff00
        s_lshr_b32 s43, s2, 3
        s_lshl_b32 s43, s43, 2
        s_add_u32 s43, s43, s{sW}
        s_lshl_b32 s43, s43, 8
        v_lshl_add_u32 v9, v2, 2, s43
        v_min_u32 v9, {CODE_SPAN}, v9
        global_load_dword v252, v9, s[44:45]
        """)
    a(f"""
    s_lshl_b32 s43, s54, 1
    v_xor_b32 v12, s43, v3
    s_lshl_b32 s43, s53, 13
    v_lshlrev_b32 v9, 8, v5
    v_add_u32 v9, s43, v9
    """)
    for j in range(8):
        a(f"v_add_u32 v10, {2*j}, v6\nv_xor_b32 v10, v10, v12\nv_lshl_add_u32 v{XA+j}, v10, 4, v9")
    a(f"""
    v_lshrrev_b32 v9, 2, v3
    v_lshl_add_u32 v10, v6, 3, v9
    v_lshlrev_b32 v10, 7, v10
    v_lshrrev_b32 v11, 1, v9
    v_xor_b32 v11, s54, v11
    v_lshl_add_u32 v10, v11, 6, v10
    v_and_b32 v11, 1, v4
    v_lshl_add_u32 v10, v11, 5, v10
    v_and_b32 v11, 3, v3
    v_lshl_add_u32 v10, v11, 3, v10
    s_lshl_b32 s43, s54, 11
    s_add_u32 s44, s43, 0x10000
    s_sub_u32 s43, {0x10000 + 2048}, s43
    v_add_u32 v{WA}, s44, v10
    v_add_u32 v{WB}, s43, v10
    v_lshl_add_u32 v{KW}, v4, 3, v9
    v_lshlrev_b32 v{KW}, 5, v{KW}
    v_lshl_add_u32 v{KW}, v11, 3, v{KW}
    s_lshl_b32 s43, s46, 10
    s_add_u32 s43, s43, {K1_KV}
    v_add_u32 v{KW}, s43, v{KW}
    s_lshl_b32 s43, s46, 2
    v_add_u32 v{KX}, s43, v4
    v_xor_b32 v{KX}, v{KX}, v3
    v_lshlrev_b32 v{KX}, 4, v{KX}
    v_lshl_add_u32 v{KX}, v3, 8, v{KX}
    s_lshl_b32 s43, s58, 12
    v_add_u32 v{KX}, s43, v{KX}
    v_lshrrev_b32 v64, 3, v5
    v_lshlrev_b32 v64, 13, v64
    v_and_b32 v11, 7, v5
    v_lshl_add_u32 v64, v11, 4, v64
    v_lshl_add_u32 v64, v6, 9, v64
    s_lshl_b32 s60, s{sTG}, 16
    s_lshl_b32 s44, s53, 15
    s_add_u32 s60, s60, s44
    s_lshl_b32 s44, s{sCG}, 10
    s_add_u32 s60, s60, s44
    s_lshl_b32 s44, s54, 8
    s_add_u32 s60, s60, s44
    s_add_u32 s60, s60, {WS_Q}
    s_lshl_b32 s43, s53, 9
    s_add_u32 s43, s43, {K1_PS}
    v_lshl_add_u32 v67, v5, 4, s43
    s_lshl_b32 s43, s54, 3
    v_lshl_add_u32 v65, v6, 2, v67
    v_add_u32 v65, s43, v65
    s_lshl_b32 s43, s46, 2
    s_add_u32 s43, s43, {K1_KC}
    v_add_u32 v94, s43, v{VL}
    s_lshl_b32 s43, s46, 10
    s_add_u32 s43, s43, {K1_KP}
    v_add_u32 v95, s43, v{VL}
    s_lshl_b32 s59, s59, 10
    s_add_u32 s59, s59, {WS_WO}
    s_cmp_ge_u32 s{sW}, 2
    s_cselect_b32 s59, {WS_SIZE}, s59
    s_cmp_ge_u32 s{sCG}, 4
    s_cselect_b64 s[62:63], -1, 0
    v_mov_b32 v{ONES}, 0x3f803f80
    v_mov_b32 v{SX}, 0
    v_mov_b32 v{SXX}, 0
    v_mov_b32 v{KC}, 0
    v_mov_b32 v90, 0
    v_mov_b32 v91, 0
    v_mov_b32 v250, 0
    v_mov_b32 v251, 0
    """)
    def xreads(c):
        kx, kw = KF + 8*(c & 1), KF + 8*(c & 1) + 4
        for u in (0, 2, 4, 6): a(f"ds_read_b128 {vr(XF+32*c+4*u,4)}, v{XA+u} offset:{c*16384}")
        a(f"ds_read_b128 {vr(kx,4)}, v{KX} offset:{c*16384}")
        a(f"ds_read_b64_tr_b16 {vr(kw,2)}, v{KW} offset:{c*4096}\nds_read_b64_tr_b16 {vr(kw+2,2)}, v{KW} offset:{c*4096+128}")
        for u in (1, 3, 5, 7): a(f"ds_read_b128 {vr(XF+32*c+4*u,4)}, v{XA+u} offset:{c*16384}")
    def wread(ks):
        ar = WB if ks & 1 else WA
        off = (ks & ~1) * 2048
        a(f"ds_read_b64_tr_b16 {vr(WF+4*(ks&7),2)}, v{ar} offset:{off}\nds_read_b64_tr_b16 {vr(WF+4*(ks&7)+2,2)}, v{ar} offset:{off + 512}")
    def work(c):
        kx, kw = KF + 8*(c & 1), KF + 8*(c & 1) + 4
        for u in (0, 2, 4, 6):
            a(f"s_waitcnt lgkmcnt({10 - u//2})")
            for q in range(4): a(f"v_dot2c_f32_bf16 v{SX}, v{XF+32*c+4*u+q}, v{ONES}\nv_dot2c_f32_bf16 v{SXX}, v{XF+32*c+4*u+q}, v{XF+32*c+4*u+q}")
        a("s_waitcnt lgkmcnt(4)")
        for q in range(4): a(f"v_dot2c_f32_bf16 v{KC}, v{kw+q}, v{ONES}")
        a(f"{MF16} {vr(KD,4)}, {vr(kw,4)}, {vr(kx,4)}, {'0' if c == 0 else vr(KD,4)}")
        a(f"{MF16} {vr(KD+4,4)}, {vr(kx,4)}, {vr(kw,4)}, {'0' if c == 0 else vr(KD+4,4)}")
    for c in range(4):
        a("s_barrier")
        if c == 0: a("@T3")
        xreads(c)
        work(c)
        if c == WOC:
            a(f"""
            s_waitcnt vmcnt(0)
            v_lshl_or_b32 v{WOD}, v{WOD+1}, 16, v{WOD}
            v_lshl_or_b32 v{WOD+1}, v{WOD+3}, 16, v{WOD+2}
            v_lshl_or_b32 v{WOD+2}, v{WOD+5}, 16, v{WOD+4}
            v_lshl_or_b32 v{WOD+3}, v{WOD+7}, 16, v{WOD+6}
            buffer_store_dwordx4 {vr(WOD,4)}, v{VL}, s[{WS}:{WS+3}], s59 offen sc0 sc1
            """)
    a(f"""
    v_permlane32_swap_b32 v{SX}, v{SXX}
    s_nop 0
    ds_write_b32 v94, v{KC}
    v_add_f32 v{SX}, v{SX}, v{SXX}
    v_mov_b32 v7, {K1_EP}
    ds_write_b32 v65, v{SX}
    s_nop 1
    """)
    for r in range(4): a(f"v_cndmask_b32 v{KD+r}, v{KD+r}, v{KD+4+r}, s[62:63]")
    a(f"ds_write_b128 v95, {vr(KD,4)}\nds_write_b32 v7, v90 offset:8\nv_mov_b32 v{SXX}, 0\ns_waitcnt lgkmcnt(0)\ns_barrier\n@T4\n@S2")
    for ks in range(7): wread(ks)
    a("s_waitcnt lgkmcnt(12)")
    wread(7)
    for g in range(8):
        a(f"s_waitcnt lgkmcnt({8 if g < 7 else 0})")
        for ks in range(4*g, 4*g + 4):
            for q in range(4): a(f"v_dot2c_f32_bf16 v{SXX}, v{WF+4*(ks&7)+q}, v{ONES}")
        if g == 2: a("s_waitcnt vmcnt(0)")
        if g % 2 == 0 and g < 6: a("s_barrier")
        if g == 2: a("ds_read_b128 v[84:87], v67")
        if g == 4: a("@S10\nds_read_b32 v66, v7")
        if g == 2: a("@S6")
        if g == 0: a("@S5")
        if g == 6: a(f"v_readfirstlane_b32 s{sEP}, v66")
        for ks in range(4*g, 4*g + 4):
            a(f"{MF32} {vr(D1,16)}, {vr(WF+4*(ks&7),4)}, {vr(XF+4*ks,4)}, {'0' if ks == 0 else vr(D1,16)}")
            if ks + 8 < 32: wread(ks + 8)
            if ks == 16: rowstat(a, 84, 8, 9)
            if ks == 17: split_ab(a, 8, 88, "m"); a(f"v_mul_f32 v10, {hex(f2u(QSCALE))}, v9")
            if ks == 29: a("s_nop 0"); split_ab(a, SXX, 248, "c")
    a(f"""
    {MF32} {vr(D1,16)}, v[248:251], v[88:91], {vr(D1,16)}
    v_mov_b32 v35, v66
    v_mov_b32 v39, v66
    v_mov_b32 v43, v66
    v_lshrrev_b32 v44, 3, v5
    v_lshlrev_b32 v44, 12, v44
    v_and_b32 v11, 7, v5
    v_lshl_add_u32 v44, v11, 4, v44
    v_lshl_add_u32 v44, v6, 8, v44
    s_sub_u32 s61, s60, {WS_Q}
    s_lshr_b32 s61, s61, 1
    s_add_u32 s61, s61, {WS_QB}
    s_nop 0
    """)
    dst = [32, 33, 34, 36, 40, 41, 42, 37]
    for r in range(8):
        a(f"v_mul_f32 v{D1+2*r}, v10, v{D1+2*r}\nv_mul_f32 v{D1+2*r+1}, v10, v{D1+2*r+1}\nv_cvt_pk_bf16_f32 v{dst[r]}, v{D1+2*r}, v{D1+2*r+1}")
        if r == 2: a(f"buffer_store_dwordx4 v[32:35], v64, s[{WS}:{WS+3}], s60 offen {QSC}")
        if r == 6: a(f"buffer_store_dwordx4 v[40:43], v64, s[{WS}:{WS+3}], s60 offen offset:128 {QSC}")
    a(f"""
    buffer_store_dwordx4 v[36:39], v44, s[{WS}:{WS+3}], s61 offen {QSC}
    @T5
    @S1
    """)
def k1_cold(a):
    DBG = 28
    a(f"""
    L1_tag:
    s_mov_b32 s47, 0
    L1_tagl:
    buffer_load_dword v66, v94, s[{DBG}:{DBG+3}], 0 offen sc1
    s_add_u32 s47, s47, 1
    s_waitcnt vmcnt(0)
    v_readfirstlane_b32 s{sEP}, v66
    s_cmp_gt_u32 s47, 0x40000
    s_cbranch_scc1 L1_tagx
    s_cmp_eq_u32 s{sEP}, 0
    s_cbranch_scc1 L1_tagl
    L1_tagx:
    s_cmp_eq_u32 s46, 0
    s_cbranch_scc1 L1_tagok1
    s_branch L1_tagok0
    """)
KV_BYTES = 64 * TILE
OB = KV_BYTES
RED = OB + 8 * 1040
PART = RED + 1024
CNT = PART + 16384
K2_LDS = CNT + 64
FW = 0
FR = 32768
SMF = "v_smfmac_f32_32x32x32_bf16"
SM16 = "v_smfmac_f32_16x16x64_bf16"
LOG2E = 1.4426950408889634
KSLEEP = ''
for _x in sys.argv:
    if _x.startswith('--ksleep='): KSLEEP = 's_sleep ' + _x.split('=')[1]
OSC = 'sc0 sc1' if '--osc' in sys.argv else 'nt' if '--ont' in sys.argv else ''
SLEEP = 's_nop 0'
for _x in sys.argv:
    if _x.startswith('--sleep='): SLEEP = 's_sleep ' + _x.split('=')[1]
def k2(a):
    X, WR_, OUT, WS, FA, FB = 16, 20, 24, 28, 32, 36
    sW, sN, sG = 40, 43, 41
    Q, C, KF, VF, S, O = 8, 12, 28, 36, 52, 84
    IDX, KA, VA, LN16, XO, WRO, M, VA0 = 100, 101, 102, 103, 104, 105, 106, 107
    WO = 108; XRES, WRV, FWR = 236, 240, 244
    BAR_TILE = 10
    X_ = [x for x in sys.argv if x.startswith("--x")]
    a(f"""
    L2_start:
    s_load_dwordx8 s[52:59], s[0:1], 48
    s_load_dwordx2 s[8:9], s[0:1], 80
    v_lshlrev_b32 v{LN16}, 4, v2
    v_and_b32 v5, 31, v2
    v_lshrrev_b32 v6, 5, v2
    s_lshl_b32 s{sG}, s41, 3
    s_add_u32 s{sG}, s{sG}, s42
    s_lshl_b32 s44, s{sG}, 13
    s_lshl_b32 s45, s{sW}, 10
    s_add_u32 s46, s44, s45
    s_add_u32 s47, s45, {WS_KV}
    s_lshl_b32 s50, s{sW}, 16
    s_add_u32 s51, s50, {WS_WO}
    s_and_b32 s48, s{sW}, 4
    s_lshl_b32 s48, s48, 13
    s_add_u32 s50, s51, s48
    """)
    srd(a, WS, 14, WS_SIZE)
    def dma(i):
        return [f"s_add_u32 m0, s45, {i*8192}", f"s_add_u32 s48, s47, {i*8192}", f"buffer_load_dwordx4 v{LN16}, s[{WS}:{WS+3}], s48 offen sc1 lds"]
    a("s_waitcnt lgkmcnt(0)")
    srd(a, X, 4, 2 << 20); srd(a, WR_, 52, 1024); srd(a, OUT, 8, 2 << 20)
    a(f"""
    v_lshlrev_b32 v3, 8, v6
    v_lshl_add_u32 v3, v5, 4, v3
    v_and_b32 v4, 27, v5
    v_cmp_eq_u32 vcc, 16, v4
    v_mov_b32 v4, 528
    v_mov_b32 v7, 512
    v_cndmask_b32 v4, v4, v7, vcc
    v_cmp_gt_u32 vcc, 16, v5
    v_mov_b32 v{KA}, v{LN16}
    v_mov_b32 v{IDX}, 0xdddddddd
    v_cndmask_b32 v3, v4, v3, vcc
    v_add_u32 v{VA0}, 1024, v3
    v_mov_b32 v{VA}, v{VA0}
    v_and_b32 v3, 12, v2
    v_lshlrev_b32 v3, 2, v3
    v_lshl_add_u32 v3, v6, 6, v3
    s_lshl_b32 s49, s{sW}, 7
    v_add_u32 v{WRO}, s49, v3
    v_and_b32 v4, 16, v2
    v_lshlrev_b32 v4, 8, v4
    v_and_b32 v3, 15, v2
    v_lshl_add_u32 v0, v3, 2, v4
    v_lshl_add_u32 v0, v6, 6, v0
    v_add_u32 v0, s49, v0
    v_and_b32 v3, 3, v2
    v_lshl_add_u32 v4, v3, 10, v4
    v_add_u32 v{XO}, v4, v{WRO}
    s_and_b32 s48, s2, 7
    s_lshr_b32 s49, s2, 3
    s_mul_i32 s64, s48, 22
    s_add_u32 s64, s64, s49
    s_lshl_b32 s48, s48, 3
    s_add_u32 s48, s48, s49
    s_sub_u32 s61, s48, 22
    s_and_b32 s61, s61, 63
    s_lshl_b32 s61, s61, 4
    s_min_u32 s48, s64, 171
    s_lshl_b32 s48, s48, 4
    s_mul_i32 s49, s{sW}, {64*2752}
    s_add_u32 s48, s48, s49
    s_lshl_b32 s49, s{sW}, 16
    s_add_u32 s49, s49, s61
    s_add_u32 s66, s49, {512*1024}
    s_add_u32 s67, s49, {1024*1024}
    s_movk_i32 s60, 2752
    s_cmp_ge_u32 s2, 176
    s_cselect_b32 s65, s49, s48
    s_cselect_b32 s66, s66, s48
    s_cselect_b32 s67, s67, 0x200000
    s_cselect_b32 s60, 0x400, s60
    s_cselect_b32 s54, s58, s54
    s_cselect_b32 s55, s59, s55
    s_cselect_b32 s56, s58, s56
    s_cselect_b32 s57, s59, s57
    v_mul_u32_u24 v1, s60, v2
    """)
    srd(a, FA, 54, 512*2752); srd(a, FB, 56, 512*2752)
    a(f"""
    s_mov_b32 s60, {16*8192}
    s_cmp_lt_u32 s{sW}, 4
    s_cselect_b32 s60, s60, {WS_SIZE}
    v_mov_b32 v3, {CNT}
    """)
    for r in range(16): a(f"v_mov_b32 v{O+r}, 0")
    a(f"""
    ds_write_b32 v3, v{O}
    ds_write_b128 v3, {vr(O,4)} offset:16
    s_lshr_b32 s12, s46, 1
    s_add_u32 s12, s12, {WS_QB}
    s_add_u32 s46, s46, {WS_Q}
    v_lshrrev_b32 v7, 4, v2
    v_lshlrev_b32 v7, 7, v7
    v_and_b32 v4, 7, v2
    v_lshl_add_u32 v7, v4, 4, v7
    s_cmp_lt_u32 s{sW}, 4
    s_cbranch_scc1 L2_noflag
    s_sub_u32 s13, s{sW}, 4
    """)
    if "--fw1" not in sys.argv:
        a(f"""
        s_lshl_b32 s48, s13, {KSH + 6}
        s_add_u32 s48, s48, {WS_FLG}
        v_lshlrev_b32 v3, {KSH}, v2
        s_mov_b32 s49, 0
        L2_fpoll:
        buffer_load_dword v4, v3, s[{WS}:{WS+3}], s48 offen sc1
        s_add_u32 s49, s49, 1
        s_waitcnt vmcnt(0)
        v_cmp_ne_u32 vcc, s{sEP}, v4
        s_cmp_gt_u32 s49, 0x40000
        s_cbranch_scc1 L2_fgot
        s_and_b64 exec, exec, vcc
        s_cbranch_scc1 L2_fpoll
        L2_fgot:
        s_mov_b64 exec, 1
        v_mov_b32 v3, {K1_EP + 8}
        v_mov_b32 v4, 1
        ds_add_u32 v3, v4
        """)
    else:
        a(f"""
        s_cmp_lg_u32 s{sW}, 5
        s_cbranch_scc1 L2_fwait
        s_mov_b32 s48, {WS_FLG}
        v_lshlrev_b32 v3, {KSH + 2}, v2
        s_mov_b32 s49, 0
        L2_fpoll:
        """)
        for q in range(4): a(f"buffer_load_dword v{S+q}, v3, s[{WS}:{WS+3}], s48 offen offset:{q << KSH} sc1")
        a(f"""
        s_add_u32 s49, s49, 1
        s_waitcnt vmcnt(0)
        v_xor_b32 v{S}, s{sEP}, v{S}
        v_xor_b32 v{S+1}, s{sEP}, v{S+1}
        v_xor_b32 v{S+2}, s{sEP}, v{S+2}
        v_xor_b32 v{S+3}, s{sEP}, v{S+3}
        v_or3_b32 v4, v{S}, v{S+1}, v{S+2}
        v_or_b32 v4, v4, v{S+3}
        v_cmp_ne_u32 vcc, 0, v4
        s_cmp_gt_u32 s49, 0x40000
        s_cbranch_scc1 L2_fgot
        s_and_b64 exec, exec, vcc
        s_cbranch_scc1 L2_fpoll
        L2_fgot:
        s_mov_b64 exec, 1
        v_mov_b32 v3, {K1_EP + 8}
        v_mov_b32 v4, 4
        ds_write_b32 v3, v4
        L2_fwait:
        s_mov_b64 exec, 1
        v_mov_b32 v3, {K1_EP + 8}
        """)
    a(f"""
    L2_fspin:
    ds_read_b32 v4, v3
    s_waitcnt lgkmcnt(0)
    v_readfirstlane_b32 s49, v4
    s_cmp_lt_u32 s49, 4
    s_cbranch_scc1 L2_fspin
    s_mov_b64 exec, -1
    @S2
    s_lshl_b32 s13, s13, 10
    s_add_u32 s62, s13, {WS_KV}
    """)
    for i in range(6):
        a(f"s_add_u32 m0, s13, {i*4096}\ns_add_u32 s48, s62, {i*4096}\nbuffer_load_dwordx4 v{LN16}, s[{WS}:{WS+3}], s48 offen sc1 lds")
    a(f"""
    L2_noflag:
    {'' if '--nobarA' in sys.argv else 's_barrier'}
    @T6
    s_mov_b32 s49, 0
    L2_qpoll:
    buffer_load_dwordx4 {vr(Q,4)}, v{LN16}, s[{WS}:{WS+3}], s46 offen sc1
    buffer_load_dwordx4 {vr(S,4)}, v7, s[{WS}:{WS+3}], s12 offen sc1
    s_add_u32 s49, s49, 1
    s_waitcnt vmcnt(0)
    v_cmp_ne_u32 vcc, s{sEP}, v{Q+3}
    v_cmp_ne_u32 s[62:63], s{sEP}, v{S+3}
    s_cmp_gt_u32 s49, 0x40000
    s_cbranch_scc1 L2_qgot
    s_or_b64 exec, vcc, s[62:63]
    s_cbranch_scc1 L2_qpoll
    L2_qgot:
    s_mov_b64 exec, -1
    s_mov_b32 s62, 0xff00ff00
    s_mov_b32 s63, s62
    v_cndmask_b32 v{Q+3}, v{S}, v{S+1}, s[62:63]
    s_waitcnt lgkmcnt(0)
    s_barrier
    @S3
    ds_read_b128 {vr(KF,4)}, v{KA}
    ds_read_b128 {vr(KF+4,4)}, v{KA} offset:{TILE}
    ds_read_b128 {vr(VF,4)}, v{VA}
    ds_read_b128 {vr(VF+4,4)}, v{VA} offset:544
    s_waitcnt lgkmcnt(3)
    {MF32} {vr(S,16)}, {vr(KF,4)}, {vr(Q,4)}, 0
    s_waitcnt lgkmcnt(2)
    {MF32} {vr(S+16,16)}, {vr(KF+4,4)}, {vr(Q,4)}, 0
    s_nop 9
    v_max3_f32 v{M}, v{S}, v{S+1}, v{S+2}
    """)
    for r in range(3, 31, 2): a(f"v_max3_f32 v{M}, v{S+r}, v{S+r+1}, v{M}")
    a(f"""
    v_max_f32 v{M}, v{S+31}, v{M}
    v_mov_b32 v3, v{M}
    s_nop 1
    v_permlane32_swap_b32 v{M}, v3
    v_max_f32 v{M}, v{M}, v3
    v_sub_f32 v{C}, {hex(f2u(-SHIFT))}, v{M}
    """)
    for r in range(1, 16): a(f"v_mov_b32 v{C+r}, v{C}")
    a(f"""
    @S4
    @S13
    @T1
    s_nop 1
    {MF32} {vr(S,16)}, {vr(KF,4)}, {vr(Q,4)}, {vr(C,16)}
    s_waitcnt lgkmcnt(0)
    s_nop 10
    """)
    base = 0
    nwo = 0
    NPT = 2 if '--npt2' in sys.argv else 3
    queue = [dma(i) for i in range(3, 17)]
    queue[-1][1] = "s_add_u32 s48, s47, s60"
    ffn = [[f"buffer_load_dwordx4 {vr(FWR+4*i,4)}, v1, s[{FA if i == 0 else FB}:{(FA if i == 0 else FB)+3}], s{65+i} offen"] for i in range(3)]
    wol = [(["s_add_u32 s50, s50, 4096"] if (f and f % 4 == 0) else []) + [f"buffer_load_dwordx4 {vr(WO + 4*f, 4)}, v{LN16}, s[{WS}:{WS+3}], s50 offen offset:{(f & 3)*1024} sc1"] for f in range(32)]
    xw = [[f"buffer_load_dword v{XRES+r}, v0, s[{X}:{X+3}], s44 offen offset:{r*1024}"] for r in range(4)] + [[f"buffer_load_dwordx4 {vr(WRV,4)}, v{WRO}, s[{WR_}:{WR_+3}], 0 offen"]]
    SCH = [x.split("=")[1] for x in sys.argv if x.startswith("--sch=")]
    SCH = SCH[0] if SCH else "E"
    if SCH == "A":
        queue += wol + xw + ffn
        cnt = lambda t: 2 if t < 7 or 10 <= t <= 26 else 1 if t in (27, 29, 31) else 0
    elif SCH == "B":
        queue += wol + xw + ffn
        cnt = lambda t: 2 if t <= 23 else 1
    elif SCH == "C":
        queue += xw + wol[:4] + ffn[:1] + wol[4:5] + ffn[1:2] + wol[5:6] + ffn[2:] + wol[6:]
        cnt = lambda t: 2
    elif SCH == "D":
        queue += wol + xw + ffn
        cnt = lambda t: 2 if t <= 23 else 1 if t in (58, 60, 62) else 0
    elif SCH == "E":
        queue += wol + xw + ffn
        cnt = lambda t: 2 if t <= 24 else 1 if t in (25, 52, 56, 60) else 0
    elif SCH == "F":
        queue += wol + xw + ffn
        cnt = lambda t: 2 if t <= 23 else 1 if t in (61, 62, 63) else 0
    nissued = 0
    if '--noprio' not in sys.argv: a('s_setprio 1')
    if '--vmask' in sys.argv: a('s_mov_b32 s100, 0xffff\ns_mov_b32 s101, 0xffff' if DIAG else 's_mov_b32 s70, 0xffff\ns_mov_b32 s71, 0xffff')
    for t in range(64):
        cur, nxt = t & 1, (t + 1) & 1
        Sc, Sn = S + 16*cur, S + 16*nxt
        e = [f"v_exp_f32 v{Sc+i}, v{Sc+i}" for i in range(16)]
        n_ = cnt(t); side = sum(queue[:n_], []); queue = queue[n_:]
        if t == BAR_TILE: a(f"s_waitcnt vmcnt({nissued - 14})\ns_barrier")
        nissued += sum(1 for x in side if x.startswith("buffer"))
        if (t + 2 - base) * TILE + TILE > 65535:
            a(f"v_add_u32 v{KA}, {(t - base)*TILE}, v{KA}\nv_add_u32 v{VA}, {(t - base)*TILE}, v{VA}")
            base = t
        after = {i: [] for i in range(16)}
        side = [x for x in side if x]
        grp, curg = [], []
        for x in side:
            curg.append(x)
            if x.startswith("buffer"): grp.append(curg); curg = []
        if t > 0: after[1].append(f"{SMF} {vr(O,16)}, {vr(VF+8*nxt+4,4)}, {vr(Sn+8,8)}, v{IDX}")
        va = f"ds_read_b128 {vr(VF+8*nxt,4)}, v{VA} offset:{(t+1-base)*TILE}"
        vb = f"ds_read_b128 {vr(VF+8*nxt+4,4)}, v{VA} offset:{(t+1-base)*TILE+544}"
        VM = "--vmask" in sys.argv and t >= 1
        VQ = "--vq1" in sys.argv
        if t < 63:
            if VM: after[1] += ["s_mov_b64 exec, s[70:71]" if not DIAG else "s_mov_b64 exec, s[100:101]", va, vb, "s_mov_b64 exec, -1"]
            elif VQ: after[1] += [va, vb]
            else: after[1].append(va)
            after[5].append(f"{MF32} {vr(Sn,16)}, {vr(KF+4*nxt,4)}, {vr(Q,4)}, {vr(C,16)}")
        if t < 62: after[5].append(f"ds_read_b128 {vr(KF+4*cur,4)}, v{KA} offset:{(t+2-base)*TILE}")
        after[11].append(f"{SMF} {vr(O,16)}, {vr(VF+8*cur,4)}, {vr(Sc,8)}, v{IDX}")
        after[11].append("s_waitcnt lgkmcnt(0)")
        if t < 63 and not VM and not VQ: after[11].append(vb)
        for g, slot in zip(grp, (1, 5, 11) if len(grp) == 3 else (5, 11)): after[slot] += g
        assert len(grp) <= 3
        for i in range(16):
            a(e[i])
            for x in after[i]: a(x)
    a(f"""
    @S8
    @S14
    s_nop 1
    {SMF} {vr(O,16)}, {vr(VF+12,4)}, {vr(S+24,8)}, v{IDX}
    s_mov_b32 s48, {hex(f2u(2.0**110))}
    v_and_b32 v4, 7, v5
    v_mul_u32_u24 v4, 1040, v4
    v_lshrrev_b32 v7, 3, v5
    v_lshl_add_u32 v4, v7, 5, v4
    v_lshl_add_u32 v4, v6, 3, v4
    s_lshl_b32 s49, s{sW}, 7
    s_add_u32 s49, s49, {OB}
    v_add_u32 v4, s49, v4
    v_and_b32 v1, 7, v2
    v_mul_u32_u24 v0, 1040, v1
    v_lshrrev_b32 v7, 4, v2
    v_mul_f32 v3, 0, v{O}
    """)
    for r in range(1, 8): a(f"v_fma_f32 v3, v{O+r}, 0, v3")
    a(f"""
    v_add_f32 v3, v3, v{O+8}
    v_cmp_ngt_f32 vcc, s48, v3
    v_rcp_f32 v3, v{O+8}
    s_cmp_lg_u64 vcc, 0
    s_cbranch_scc1 L2_slow
    L2_epi:
    """)
    for r in range(8): a(f"v_mul_f32 v{O+r}, v3, v{O+r}")
    for r in range(4): a(f"v_cvt_pk_bf16_f32 v{O+r}, v{O+2*r}, v{O+2*r+1}")
    BA, PA = 101, 102
    a(f"""
    ds_write_b64 v4, {vr(O,2)}
    ds_write_b64 v4, {vr(O+2,2)} offset:16
    v_lshl_add_u32 v{BA}, v7, 5, v0
    v_and_b32 v3, 8, v2
    v_lshl_add_u32 v{BA}, v3, 1, v{BA}
    v_add_u32 v{BA}, {OB}, v{BA}
    v_cmp_ne_u32 vcc, 0, v3
    v_mov_b32 v{IDX}, 0x4444
    v_mov_b32 v3, 0xeeee
    s_and_b32 s49, s{sW}, 3
    s_lshl_b32 s49, s49, 12
    s_add_u32 s49, s49, {PART}
    v_add_u32 v{PA}, s49, v{LN16}
    v_cndmask_b32 v{IDX}, v{IDX}, v3, vcc
    s_waitcnt vmcnt(3)
    s_cmp_lt_u32 s{sW}, 4
    {'' if '--xnoold' in X_ else 's_cbranch_scc1 L2_old'}
    L2_join:
    @S7
    """)
    HF, T, WF8, TOK = 60, 68, 52, 106
    ACC = O
    BF = [Q, 28, 32, 36]
    for j in range(4):
        a(f"v_lshlrev_b32 v{HF+2*j}, 16, v{XRES+j}\nv_and_b32 v{HF+2*j+1}, 0xffff0000, v{XRES+j}")
        a(f"v_lshlrev_b32 v{WF8+2*j}, 16, v{WRV+j}\nv_and_b32 v{WF8+2*j+1}, 0xffff0000, v{WRV+j}")
    a(f"v_add_f32 v{T+3}, v{WF8}, v{WF8+1}")
    for j in range(2, 8): a(f"v_add_f32 v{T+3}, v{T+3}, v{WF8+j}")
    a(f"""
    v_mov_b32 v7, 0x3f803f80
    v_lshrrev_b32 v{TOK}, 10, v{XO}
    v_lshlrev_b32 v4, 5, v{TOK}
    v_add_u32 v4, {RED}, v4
    v_lshrrev_b32 v3, 5, v2
    v_lshl_add_u32 v3, v3, 9, v4
    s_lshl_b32 s49, s{sW}, 2
    v_add_u32 v3, s49, v3
    v_add_u32 v0, s45, v{LN16}
    s_add_u32 s49, s44, {WS_H}
    s_cmp_ge_u32 s{sW}, 4
    s_cselect_b64 s[62:63], -1, 0
    s_waitcnt lgkmcnt(0)
    s_barrier
    @S9
    @T2
    s_mov_b64 exec, s[62:63]
    """)
    for i in range(4): a(f"ds_read_b128 {vr(ACC+4*i,4)}, v{PA} offset:{1024*i}")
    a("s_mov_b64 exec, -1")
    for s_ in range(4): a(f"ds_read_b128 {vr(BF[s_],4)}, v{BA} offset:{(s_+4)*128}")
    for s_ in range(4):
        a(f"s_waitcnt lgkmcnt({3 - s_})")
        for i in range(4):
            a(f"{SM16} {vr(ACC+4*i,4)}, {vr(BF[s_],4)}, {vr(WO+32*s_+8*i,8)}, v{IDX}")
    a("s_waitcnt vmcnt(0)")
    for i in range(3): a(f"ds_write_b128 v0, {vr(FWR+4*i,4)} offset:{FW + i*8192}")
    A8, HB = 40, 48
    a("s_mov_b32 vcc_lo, 0x55555555\ns_mov_b32 vcc_hi, 0x55555555\ns_nop 1")
    for p in range(2):
        for r in range(4): a(f"v_permlane32_swap_b32 v{ACC+8*p+r}, v{ACC+8*p+4+r}")
    for r in range(4):
        for p in range(2): a(f"v_add_f32 v{HF+2*r+p}, v{HF+2*r+p}, v{ACC+8*p+r}")
    for r in range(4):
        for p in range(2): a(f"v_add_f32 v{HF+2*r+p}, v{HF+2*r+p}, v{ACC+8*p+4+r}")
    for r in range(4): a(f"v_cvt_pk_bf16_f32 v{A8+r}, v{HF+2*r}, v{HF+2*r+1}")
    X1, X2 = "quad_perm:[1,0,3,2] row_mask:0xf bank_mask:0xf", "quad_perm:[2,3,0,1] row_mask:0xf bank_mask:0xf"
    N = A8 + 4
    a(f"""
    s_nop 0
    v_cndmask_b32_dpp v{N}, v{A8+1}, v{A8}, vcc {X1}
    v_cndmask_b32_dpp v{N+2}, v{A8+3}, v{A8+2}, vcc {X1}
    s_not_b64 vcc, vcc
    v_cndmask_b32_dpp v{N+1}, v{A8}, v{A8+1}, vcc {X1}
    v_cndmask_b32_dpp v{N+3}, v{A8+2}, v{A8+3}, vcc {X1}
    s_mov_b32 vcc_lo, 0x33333333
    s_mov_b32 vcc_hi, 0x33333333
    v_cndmask_b32_dpp v{HB}, v{N+2}, v{N}, vcc {X2}
    v_cndmask_b32_dpp v{HB+1}, v{N+3}, v{N+1}, vcc {X2}
    s_not_b64 vcc, vcc
    v_cndmask_b32_dpp v{HB+2}, v{N}, v{N+2}, vcc {X2}
    v_cndmask_b32_dpp v{HB+3}, v{N+1}, v{N+3}, vcc {X2}
    buffer_store_dwordx4 {vr(HB,4)}, v{XO}, s[{WS}:{WS+3}], s49 offen sc0 sc1
    """)
    for j in range(4): a(f"v_lshlrev_b32 v{HF+2*j}, 16, v{HB+j}\nv_and_b32 v{HF+2*j+1}, 0xffff0000, v{HB+j}")
    a(f"v_add_f32 v{T}, v{HF}, v{HF+1}\nv_mul_f32 v{T+1}, v{HF}, v{HF}\nv_mul_f32 v{T+2}, v{HF}, v{WF8}")
    for j in range(1, 8):
        if j > 1: a(f"v_add_f32 v{T}, v{T}, v{HF+j}")
        a(f"v_fmac_f32 v{T+1}, v{HF+j}, v{HF+j}\nv_fmac_f32 v{T+2}, v{HF+j}, v{WF8+j}")
    a(f"""
    s_nop 0
    v_permlane32_swap_b32 v{T}, v{T+1}
    v_permlane32_swap_b32 v{T+2}, v{T+3}
    v_add_f32 v{T}, v{T}, v{T+1}
    v_add_f32 v{T+2}, v{T+2}, v{T+3}
    s_nop 0
    v_add_f32_dpp v{T}, v{T}, v{T} row_ror:8 row_mask:0xf bank_mask:0xf
    v_add_f32_dpp v{T+2}, v{T+2}, v{T+2} row_ror:8 row_mask:0xf bank_mask:0xf
    s_nop 0
    v_add_f32_dpp v{T}, v{T}, v{T} row_ror:4 row_mask:0xf bank_mask:0xf
    v_add_f32_dpp v{T+2}, v{T+2}, v{T+2} row_ror:4 row_mask:0xf bank_mask:0xf
    ds_write_b32 v3, v{T}
    ds_write_b32 v3, v{T+2} offset:256
    """)
    KR = 128
    def kloads():
        for q in range(4): a(f"buffer_load_dwordx2 {vr(KR+2*q,2)}, v8, s[{WS}:{WS+3}], s48 offen offset:{q << KSH} sc1")
    a(f"""
    s_waitcnt lgkmcnt(0)
    s_barrier
    @S11
    """)
    R_ = 108
    for q in (0, 2, 1, 3):
        a(f"ds_read_b128 {vr(R_+8*q,4)}, v4 offset:{q*256}\nds_read_b128 {vr(R_+8*q+4,4)}, v4 offset:{q*256+16}")
    def sum8(b):
        a(f"""
        v_add_f32 v{b}, v{b}, v{b+1}
        v_add_f32 v{b+2}, v{b+2}, v{b+3}
        v_add_f32 v{b+4}, v{b+4}, v{b+5}
        v_add_f32 v{b+6}, v{b+6}, v{b+7}
        v_add_f32 v{b}, v{b}, v{b+2}
        v_add_f32 v{b+4}, v{b+4}, v{b+6}
        v_add_f32 v{b}, v{b}, v{b+4}
        """)
    s1, s3, s2, s4 = R_, R_+8, R_+16, R_+24
    ST = 76
    OV = 80
    a("s_waitcnt lgkmcnt(4)")
    sum8(s1); sum8(s2)
    a(f"""
    v_mul_f32 v{ST}, {hex(f2u(1.0/512))}, v{s1}
    v_mul_f32 v{s2}, {hex(f2u(1.0/512))}, v{s2}
    v_fma_f32 v{s2}, -v{ST}, v{ST}, v{s2}
    v_max_f32 v{s2}, 0, v{s2}
    v_add_f32 v{s2}, {hex(f2u(EPS))}, v{s2}
    v_rsq_f32 v{ST+1}, v{s2}
    s_cmp_lg_u32 s{sW}, 0
    s_cbranch_scc1 L2_nokey
    s_waitcnt lgkmcnt(0)
    """)
    sum8(s3); sum8(s4)
    AF, BFR, STT, D, D2 = 140, 12, 204, 208, 212
    breg = lambda q: 12 + 4*q if q < 7 else 216 + 4*(q - 7)
    a(f"""
    v_fma_f32 v{s3}, -v{ST}, v{s4}, v{s3}
    s_lshl_b32 s48, s{sG}, 3
    v_add_u32 v4, s48, v{TOK}
    v_mul_f32 v{ST+2}, v{ST+1}, v{s3}
    v_mov_b32 v{ST+3}, s{sEP}
    v_lshlrev_b32 v0, 4, v4
    s_mov_b32 s48, {WS_ST}
    s_mov_b64 exec, 0x000f000f
    buffer_store_dwordx4 {vr(ST,4)}, v0, s[{WS}:{WS+3}], s48 offen sc0 sc1
    s_mov_b64 exec, -1
    v_ashrrev_i32 v3, 31, v{ST+2}
    v_or_b32 v3, 0x80000000, v3
    v_xor_b32 v3, v3, v{ST+2}
    v_and_b32 v3, 0xfffff800, v3
    v_sub_u32 v4, 2047, v4
    v_or_b32 v4, v3, v4
    s_lshl_b32 s48, s2, {KSH}
    s_add_u32 s48, s48, {WS_KEY}
    v_mov_b32_dpp v6, v4 quad_perm:[1,0,3,2] row_mask:0xf bank_mask:0xf
    v_mov_b32 v0, 0
    v_min_u32 v5, v4, v6
    v_max_u32 v4, v4, v6
    """)
    a(f"""
    s_nop 0
    v_mov_b32_dpp v3, v5 quad_perm:[2,3,0,1] row_mask:0xf bank_mask:0xf
    v_mov_b32_dpp v6, v4 quad_perm:[2,3,0,1] row_mask:0xf bank_mask:0xf
    v_max_u32 v5, v5, v3
    v_med3_u32 v5, v4, v5, v6
    v_max_u32 v4, v4, v6
    v_mov_b32 v3, v5
    v_mov_b32 v6, v4
    s_nop 0
    v_permlane16_swap_b32 v5, v3
    v_permlane16_swap_b32 v4, v6
    v_max_u32 v5, v5, v3
    v_med3_u32 v5, v4, v5, v6
    v_max_u32 v4, v4, v6
    """)
    a(f"""
    s_waitcnt vmcnt(1)
    s_barrier
    s_mov_b64 exec, 1
    buffer_store_dwordx2 v[4:5], v0, s[{WS}:{WS+3}], s48 offen sc0 sc1
    s_mov_b64 exec, -1
    @S5
    """)
    def outval():
        a(f"v_add_f32 v3, 1.0, v{ST+1}\nv_mul_f32 v6, v{ST}, v{ST+1}")
        for j in range(8): a(f"v_fma_f32 v{A8+j}, v{HF+j}, v3, -v6")
        for j in range(4): a(f"v_cvt_pk_bf16_f32 v{OV+j}, v{A8+2*j}, v{A8+2*j+1}")
    a(f"v_lshlrev_b32 v8, {KSH + 2}, v2\ns_mov_b32 s48, {WS_KEY}")
    if "--knoack" in sys.argv: kloads()
    ROWS = 40960
    a(f"""
    v_and_b32 v9, 15, v2
    v_lshrrev_b32 v11, 4, v2
    v_lshrrev_b32 v10, 2, v9
    v_lshl_add_u32 v10, v11, 7, v10
    v_lshlrev_b32 v10, 4, v10
    v_and_b32 v0, 1, v9
    v_lshl_add_u32 v10, v0, 3, v10
    v_and_b32 v3, 2, v9
    v_lshl_add_u32 v10, v3, 12, v10
    """)
    for q in range(7): a(f"ds_read_b64_tr_b16 {vr(AF+4*q,2)}, v10 offset:{FW + q*128}\nds_read_b64_tr_b16 {vr(AF+4*q+2,2)}, v10 offset:{FW + q*128 + 64}")
    outval()
    a("s_waitcnt lgkmcnt(0)")
    for q in range(7, 14): a(f"ds_read_b64_tr_b16 {vr(AF+4*q,2)}, v10 offset:{FW + q*128}\nds_read_b64_tr_b16 {vr(AF+4*q+2,2)}, v10 offset:{FW + q*128 + 64}")
    a(f"v_mov_b32 v252, v7\nv_mov_b32 v253, v7\nv_mov_b32 v254, v7\nv_mov_b32 v255, v7\ns_waitcnt lgkmcnt(4)")
    for q in range(14, 16): a(f"ds_read_b64_tr_b16 {vr(AF+4*q,2)}, v10 offset:{FW + q*128}\nds_read_b64_tr_b16 {vr(AF+4*q+2,2)}, v10 offset:{FW + q*128 + 64}")
    if "--knoack" not in sys.argv: a("s_waitcnt vmcnt(0)"); kloads()
    a(f"""
    v_cmp_eq_u32 s[10:11], 1, v0
    v_mul_u32_u24 v10, 1040, v0
    v_lshl_add_u32 v10, v11, 8, v10
    v_lshlrev_b32 v{R_}, 4, v0
    v_lshl_add_u32 v{R_}, v11, 3, v{R_}
    s_mov_b32 s49, 0
    s_mov_b32 s46, 0
    s_mov_b32 s47, 0
    s_mov_b32 s51, {WS_ST}
    s_waitcnt lgkmcnt(0)
    """)
    for q in range(16): a(f"{MF16} {vr(D2,4)}, {vr(AF+4*q,4)}, v[252:255], {'0' if q == 0 else vr(D2,4)}")
    a(f"""
    L2_kpoll:
    s_waitcnt vmcnt(0)
    v_min_u32 v0, v{KR}, v{KR+2}
    v_min3_u32 v0, v{KR+4}, v{KR+6}, v0
    v_cmp_eq_u32 s[62:63], 0, v0
    s_add_u32 s49, s49, 1
    s_cmp_gt_u32 s49, 0x40000
    s_cselect_b64 s[62:63], 0, s[62:63]
    v_max_u32 v4, v{KR}, v{KR+2}
    v_min_u32 v5, v{KR}, v{KR+2}
    v_max3_u32 v5, v5, v{KR+1}, v{KR+3}
    v_med3_u32 v5, v4, v5, v{KR+4}
    v_max_u32 v4, v4, v{KR+4}
    v_med3_u32 v5, v4, v5, v{KR+6}
    v_max_u32 v4, v4, v{KR+6}
    v_max3_u32 v5, v5, v{KR+5}, v{KR+7}
    s_mov_b64 exec, s[62:63]
    s_cbranch_execz L2_klast
    """)
    kloads()
    a("L2_klast:\ns_mov_b64 exec, -1")
    for dpp in ("quad_perm:[1,0,3,2]", "quad_perm:[2,3,0,1]", "row_half_mirror", "row_mirror"):
        a(f"""
        v_mov_b32_dpp v3, v5 {dpp} row_mask:0xf bank_mask:0xf
        v_mov_b32_dpp v6, v4 {dpp} row_mask:0xf bank_mask:0xf
        v_max_u32 v5, v5, v3
        v_med3_u32 v5, v4, v5, v6
        v_max_u32 v4, v4, v6
        s_nop 0
        """)
    for sw in ("v_permlane16_swap_b32", "v_permlane32_swap_b32"):
        a(f"""
        v_mov_b32 v3, v5
        v_mov_b32 v6, v4
        s_nop 0
        {sw} v5, v3
        {sw} v4, v6
        v_max_u32 v5, v5, v3
        v_med3_u32 v5, v4, v5, v6
        v_max_u32 v4, v4, v6
        """)
    a(f"""
    v_readfirstlane_b32 s53, v5
    v_readfirstlane_b32 s52, v4
    v_cndmask_b32 v3, v4, v5, s[10:11]
    v_not_b32 v3, v3
    s_cmp_eq_u64 s[52:53], s[46:47]
    s_cbranch_scc1 L2_ksame
    s_mov_b64 s[46:47], s[52:53]
    s_cmp_ge_u32 s2, 176
    s_cbranch_scc1 L2_ksame
    s_andn2_b32 s54, 0x7ff, s52
    s_andn2_b32 s55, 0x7ff, s53
    s_lshl_b32 s54, s54, 10
    s_lshl_b32 s55, s55, 10
    s_add_u32 s54, s54, {WS_H}
    s_add_u32 s55, s55, {WS_H}
    s_mov_b32 m0, {ROWS}
    v_and_b32 v3, 0x7ff, v3
    buffer_load_dwordx4 v{LN16}, s[{WS}:{WS+3}], s54 offen sc1 lds
    s_mov_b32 m0, {ROWS + 1040}
    v_lshlrev_b32 v9, 4, v3
    buffer_load_dwordx4 v{LN16}, s[{WS}:{WS+3}], s55 offen sc1 lds
    buffer_load_dwordx4 {vr(STT,4)}, v9, s[{WS}:{WS+3}], s51 offen sc1
    L2_ksame:
    s_cmp_lg_u64 s[62:63], 0
    s_cbranch_scc1 L2_kpoll
    @S6
    v_mov_b32 v0, {CNT + 16}
    ds_write_b64 v0, v[4:5]
    s_cmp_ge_u32 s2, 176
    s_cbranch_scc1 L2_bc
    s_cmp_ge_u32 s64, 172
    s_cselect_b32 s48, 0x100000, s64
    s_lshl_b32 s48, s48, {ASH}
    s_add_u32 s48, s48, {WS_ACT}
    s_waitcnt vmcnt(1)
    """)
    for q in range(12): a(f"ds_read_b128 {vr(breg(q),4)}, v10 offset:{ROWS + q*16}")
    for q in range(16):
        a(f"s_waitcnt lgkmcnt({min(11, 15 - q)})")
        a(f"{MF16} {vr(D,4)}, {vr(AF+4*q,4)}, {vr(breg(q),4)}, {'0' if q == 0 else vr(D,4)}")
        if q < 4: a(f"ds_read_b128 {vr(breg(q+12),4)}, v10 offset:{ROWS + (q+12)*16}")
    E = R_ + 8
    a(f"""
    L2_stw:
    s_waitcnt vmcnt(0)
    v_cmp_ne_u32 vcc, s{sEP}, v{STT+3}
    s_nop 2
    s_cbranch_vccnz L2_stre
    L2_stok:
    s_nop 1
    """)
    for r in range(4): a(f"v_fma_f32 v{D+r}, -v{STT}, v{D2+r}, v{D+r}")
    for r in range(4): a(f"v_mul_f32 v{D+r}, v{D+r}, v{STT+1}")
    for r in range(4): a(f"v_mov_b32 v{E+4+r}, v{D+r}")
    for r in range(4): a(f"v_mul_f32 v{E+r}, {hex(f2u(-LOG2E))}, v{D+r}")
    for r in range(4): a(f"v_exp_f32 v{E+r}, v{E+r}")
    for r in range(4): a(f"v_permlane32_swap_b32 v{D+r}, v{E+4+r}")
    for r in range(4): a(f"v_add_f32 v{E+r}, 1.0, v{E+r}")
    for r in range(4): a(f"v_rcp_f32 v{E+r}, v{E+r}")
    for r in range(4): a(f"v_mul_f32 v{D+r}, v{D+r}, v{E+4+r}")
    for r in range(4): a(f"v_mul_f32 v{D+r}, v{D+r}, v{E+r}")
    a(f"""
    v_cvt_pk_bf16_f32 v{R_+2}, v{D}, v{D+1}
    v_cvt_pk_bf16_f32 v{R_+3}, v{D+2}, v{D+3}
    s_mov_b64 exec, 0x00030003
    buffer_store_dwordx2 {vr(R_+2,2)}, v{R_}, s[{WS}:{WS+3}], s48 offen sc0 sc1
    s_mov_b64 exec, -1
    @S10
    s_branch L2_bc
    L2_stre:
    s_add_u32 s49, s49, 1
    s_cmp_gt_u32 s49, 0x40000
    s_cbranch_scc1 L2_stok
    buffer_load_dwordx4 {vr(STT,4)}, v9, s[{WS}:{WS+3}], s51 offen sc1
    s_branch L2_stw
    L2_nokey:
    """)
    outval()
    a("s_waitcnt vmcnt(0)\ns_barrier")
    BFR = 164
    a(f"""
    L2_bc:
    v_and_b32 v9, 15, v2
    v_lshrrev_b32 v10, 2, v9
    v_lshrrev_b32 v11, 4, v2
    v_lshl_add_u32 v10, v11, 3, v10
    v_lshlrev_b32 v10, 4, v10
    v_and_b32 v8, 1, v9
    v_lshl_add_u32 v10, v8, 3, v10
    s_mul_i32 s49, s45, 3
    v_add_u32 v10, s49, v10
    """)
    for s_ in range(6):
        a(f"ds_read_b64_tr_b16 {vr(AF+4*s_,2)}, v10 offset:{FW + s_*512}\nds_read_b64_tr_b16 {vr(AF+4*s_+2,2)}, v10 offset:{FW + s_*512 + 64}")
    a(f"""
    v_mov_b32 v0, {CNT + 16}
    s_lshl_b32 s48, s{sG}, 3
    v_add_u32 v8, s48, v{TOK}
    s_waitcnt lgkmcnt(0)
    s_barrier
    ds_read_b64 v[4:5], v0
    s_waitcnt lgkmcnt(0)
    v_not_b32 v4, v4
    v_not_b32 v5, v5
    v_and_b32 v4, 0x7ff, v4
    v_and_b32 v5, 0x7ff, v5
    v_cmp_ne_u32 vcc, v4, v8
    v_cmp_ne_u32 s[62:63], v5, v8
    s_and_b64 exec, vcc, s[62:63]
    buffer_store_dwordx4 {vr(OV,4)}, v{XO}, s[{OUT}:{OUT+3}], s44 offen {OSC}
    s_mov_b64 exec, -1
    s_sub_u32 s48, s2, 176
    s_cmp_lt_u32 s48, 64
    s_cbranch_scc1 L2_st2
    L2_fin:
    @D0 15 {WS} {sW}
    s_endpgm
    """)
    a("L2_st2:")
    a(f"""
    v_and_b32 v6, 8, v2
    v_cmp_ne_u32 vcc, 0, v6
    s_mov_b32 s48, {WS_H}
    s_mov_b32 s51, {WS_ST}
    v_cndmask_b32 v3, v4, v5, vcc
    v_lshlrev_b32 v12, 10, v3
    v_lshl_add_u32 v12, v1, 1, v12
    v_add_u32 v12, s61, v12
    v_lshlrev_b32 v18, 4, v3
    buffer_load_ushort v13, v12, s[{WS}:{WS+3}], s48 offen sc1
    v_and_b32 v6, 1, v2
    v_lshlrev_b32 v0, {ASH}, v11
    v_lshl_add_u32 v0, v6, 4, v0
    s_mul_i32 s48, s{sW}, {24 << ASH}
    s_add_u32 s48, s48, {WS_ACT}
    s_mov_b32 s49, 0
    L2_apoll:
    buffer_load_dwordx4 {vr(STT,4)}, v18, s[{WS}:{WS+3}], s51 offen sc1
    """)
    for s_ in range(6):
        a(f"buffer_load_dwordx4 {vr(BFR+4*s_,4)}, v0, s[{WS}:{WS+3}], s48 offen offset:{s_*(4 << ASH)} sc1")
    a(f"s_add_u32 s49, s49, 1\ns_waitcnt vmcnt(0)\nv_max3_u32 v3, v{BFR}, v{BFR+1}, v{BFR+2}")
    for q in range(3, 23, 2): a(f"v_max3_u32 v3, v{BFR+q}, v{BFR+q+1}, v3")
    a(f"""
    v_max_u32 v3, v{BFR+23}, v3
    v_cmp_eq_u32 vcc, -1, v3
    v_cmp_ne_u32 s[62:63], s{sEP}, v{STT+3}
    s_cmp_gt_u32 s49, 0x40000
    s_cbranch_scc1 L2_agot
    s_or_b64 {'exec' if '--amask' in sys.argv else 'vcc'}, vcc, s[62:63]
    s_cbranch_scc0 L2_agot
    {SLEEP}
    s_branch L2_apoll
    L2_agot:
    s_mov_b64 exec, -1
    @S10
    """)
    for s_ in range(6): a(f"{MF16} {vr(D,4)}, {vr(AF+4*s_,4)}, {vr(BFR+4*s_,4)}, {'0' if s_ == 0 else vr(D,4)}")
    a(f"""
    v_and_b32 v3, 1, v11
    v_lshlrev_b32 v0, 5, v6
    v_lshl_add_u32 v0, v3, 4, v0
    s_lshl_b32 s48, s{sW}, 6
    s_add_u32 s48, s48, {FR}
    v_add_u32 v0, s48, v0
    v_lshlrev_b32 v10, 2, v9
    v_lshl_add_u32 v10, v11, 7, v10
    v_add_u32 v10, {FR}, v10
    ds_write_b128 v0, {vr(D,4)}
    s_waitcnt lgkmcnt(0)
    s_barrier
    s_cmp_lg_u32 s{sW}, 0
    s_cbranch_scc1 L2_fin
    ds_read2_b32 v[14:15], v10 offset0:0 offset1:16
    v_mul_f32 v16, {hex(f2u(-LOG2E))}, v{STT+2}
    v_exp_f32 v16, v16
    v_lshlrev_b32 v13, 16, v13
    v_add_f32 v16, 1.0, v16
    v_rcp_f32 v16, v16
    v_sub_f32 v17, v13, v{STT}
    v_fma_f32 v13, v17, v{STT+1}, v13
    s_waitcnt lgkmcnt(0)
    v_add_f32 v14, v14, v15
    v_mov_b32 v15, v14
    s_nop 1
    v_permlane32_swap_b32 v14, v15
    v_add_f32 v14, v14, v15
    v_mov_b32 v15, v14
    s_nop 1
    v_permlane16_swap_b32 v14, v15
    v_add_f32 v14, v14, v15
    v_fma_f32 v14, v14, v16, v13
    v_cvt_pk_bf16_f32 v14, v14, v14
    s_mov_b64 exec, 0xffff
    buffer_store_short v14, v12, s[{OUT}:{OUT+3}], 0 offen {OSC}
    @Q {WS}
    @D0 15 {WS} {sW}
    L2_end:
    s_endpgm
    """)
    AB = 12
    def wl(reg, sb, f):
        a(f"buffer_load_dwordx4 {vr(reg,4)}, v{LN16}, s[{WS}:{WS+3}], s{sb} offen offset:{(f & 3)*1024} sc1")
        if f % 4 == 3: a(f"s_add_u32 s{sb}, s{sb}, 4096")
    NE = 10
    breg = lambda f: 40 + 4*f if f < NE else WO + 4*(f - NE)
    a(f"""
    L2_old:
    s_setprio 0
    v_mov_b32 v3, {CNT}
    v_mov_b32 v4, 1
    s_waitcnt lgkmcnt(0)
    s_mov_b64 exec, 1
    ds_add_u32 v3, v4
    s_mov_b64 exec, -1
    s_add_u32 s48, s51, {4*65536}
    v_mov_b32 v7, {1024 + 528}
    """)
    for i in range(4): a(f"ds_read_b128 {vr(ACC+4*i,4)}, v7\nds_read_b128 {vr(AB+4*i,4)}, v7")
    for f in range(NE): wl(breg(f), 48, f)
    a(f"""
    L2_spin:
    ds_read_b32 v4, v3
    s_waitcnt lgkmcnt(0)
    v_readfirstlane_b32 s49, v4
    s_cmp_ge_u32 s49, 4
    s_cbranch_scc1 L2_go
    s_sleep 2
    s_branch L2_spin
    L2_go:
    """)
    for s_ in range(4): a(f"ds_read_b128 {vr(BF[s_],4)}, v{BA} offset:{s_*128}")
    def half(acc, reg, after):
        for s_ in range(4):
            for i in range(4):
                f = 8*s_ + 2*i
                after(f, 0)
                a(f"{SM16} {vr(acc+4*i,4)}, {vr(BF[s_],4)}, {vr(reg(f),8)}, v{IDX}")
                after(f, 1)
    a(f"s_add_u32 s49, s51, {32768 + ((32 - NE)//4)*4096}\ns_waitcnt lgkmcnt(0)")
    def aftA(f, post):
        if not post: return
        for slot in (f, f + 1):
            if slot < 32 - NE: wl(WO + 4*slot, 48, slot + NE)
            else: wl(WO + 4*slot, 49, slot)
    half(ACC, lambda f: WO + 4*f, aftA)
    a(f"s_add_u32 s49, s51, 32768")
    def aftB(f, post):
        if not post:
            done = max(0, f - NE)
            a(f"s_waitcnt vmcnt({min(63, (31 - (f + 1)) + NE + done)})"); return
        for g in (f, f + 1):
            if g >= NE: wl(WO + 4*(g - NE), 49, g - NE)
    half(AB, breg, aftB)
    a("s_nop 5")
    for i in range(4): a(f"ds_write_b128 v{PA}, {vr(AB+4*i,4)} offset:{1024*i}")
    a("s_waitcnt vmcnt(0)\ns_setprio 1\ns_branch L2_join")
    a(f"""
    L2_slow:
    v_mov_b32 v{KA}, v{LN16}
    v_mov_b32 v{M}, 0xff7fffff
    s_mov_b32 s{sN}, 64
    L2_maxloop:
    ds_read_b128 {vr(KF,4)}, v{KA}
    v_add_u32 v{KA}, {TILE}, v{KA}
    s_waitcnt lgkmcnt(0)
    {MF32} {vr(S,16)}, {vr(KF,4)}, {vr(Q,4)}, 0
    s_sub_u32 s{sN}, s{sN}, 1
    s_nop 10
    """)
    for r in range(8): a(f"v_max3_f32 v{M}, v{S+2*r}, v{S+2*r+1}, v{M}")
    a(f"""
    s_cmp_lg_u32 s{sN}, 0
    s_cbranch_scc1 L2_maxloop
    v_mov_b32 v3, v{M}
    v_mov_b32 v{KA}, v{LN16}
    v_mov_b32 v{VA}, v{VA0}
    v_permlane32_swap_b32 v{M}, v3
    v_max_f32 v{M}, v{M}, v3
    """)
    for r in range(16): a(f"v_sub_f32 v{C+r}, 0, v{M}\nv_mov_b32 v{O+r}, 0")
    a(f"""
    s_mov_b32 s{sN}, 64
    L2_slowloop:
    ds_read_b128 {vr(KF,4)}, v{KA}
    ds_read_b128 {vr(VF,4)}, v{VA}
    ds_read_b128 {vr(VF+4,4)}, v{VA} offset:544
    v_add_u32 v{KA}, {TILE}, v{KA}
    v_add_u32 v{VA}, {TILE}, v{VA}
    s_waitcnt lgkmcnt(0)
    {MF32} {vr(S,16)}, {vr(KF,4)}, {vr(Q,4)}, {vr(C,16)}
    s_sub_u32 s{sN}, s{sN}, 1
    s_nop 10
    """)
    for i in range(16): a(f"v_exp_f32 v{S+i}, v{S+i}")
    a(f"""
    s_nop 1
    {SMF} {vr(O,16)}, {vr(VF,4)}, {vr(S,8)}, v{IDX}
    {SMF} {vr(O,16)}, {vr(VF+4,4)}, {vr(S+8,8)}, v{IDX}
    s_cmp_lg_u32 s{sN}, 0
    s_cbranch_scc1 L2_slowloop
    s_nop 11
    v_rcp_f32 v3, v{O+8}
    s_branch L2_epi
    """)
    k1_cold(a)
    return desc(KNAME, 256, 72)
def main():
    hdr = open("sequential_preLN__grouped_kv_mqa__moe_arch_mod__prompt.s.ref").read().split("\n")
    top = [l for l in hdr if l.startswith(";") and "@launch" not in l and "Override" not in l and "grid=ceil" not in l]
    a = Asm()
    k1(a)
    d = k2(a)
    out = "\n".join(top) + "\n"
    out += f"; @launch grid=(256,1,1) block=(512,1,1) lds={max(K1_LDS, K2_LDS)}\n"
    out += '.amdgcn_target "amdgcn-amd-amdhsa--gfx950"\n.text\n' + a.text() + '.section .rodata,"a"\n' + d
    sys.stdout.write(out)
main()
```

```python
import sys, struct
def f2u(x): return struct.unpack("<I", struct.pack("<f", x))[0]

WS_Q   = 0
WS_KV  = 2 << 20
WS_WO  = 3 << 20
WS_H   = 4 << 20

WS_ST  = (6 << 20) + 0x10000
WS_ACT = (6 << 20) + 0x20000
WS_KEY = WS_ACT + 0x10000
KSH = 7; ASH = 7; FSH = 7
for _x in sys.argv:
    if _x.startswith('--ksh='): KSH = int(_x.split('=')[1])
    if _x.startswith('--fsh='): FSH = int(_x.split('=')[1])
    if _x.startswith('--ash='): ASH = int(_x.split('=')[1])
WS_FLG = WS_KEY + 0x10000
WS_QB = 7 << 20
sEP = 68
KNAME = 'sequential_preLN__grouped_kv_mqa__moe_arch_mod__prompt_kernel'
WS_SIZE = 8 << 20
TILE = 2112
QSCALE = 0.25 * 1.4426950408889634
EPS = 1e-5
SHIFT = 96.0
for _x in sys.argv:
    if _x.startswith('--shift='): SHIFT = float(_x.split('=')[1])

class Asm:
    def __init__(self): self.l = []
    def __call__(self, s):
        for x in s.split("\n"):
            x = x.strip()
            if x.startswith("@S"): stamp(self, int(x[2:])); continue
            if x.startswith("@P"): padstore(self, *[int(t) for t in x[2:].split()]); continue
            if x.startswith("@Q"): padspin(self, *[int(t) for t in x[2:].split()]); continue
            if x.startswith("@T"): padstamp(self, int(x[2:])); continue
            if x.startswith("@D"): dump(self, *[int(t) for t in x[2:].split()]); continue
            if x: self.l.append(("" if x.endswith(":") else "    ") + x)
    def text(self): return "\n".join(self.l) + "\n"

def srd(a, d, p, size):
    a(f"s_mov_b32 s{d}, s{p}\ns_and_b32 s{d+1}, s{p+1}, 0xffff\ns_mov_b32 s{d+2}, {size}\ns_mov_b32 s{d+3}, 0x20000")
def vr(b, n): return f"v[{b}:{b+n-1}]"
def head(a, name):
    a(f".globl {name}\n.p2align 8\n.type {name},@function\n{name}:")
def desc(name, nv, ns):
    return f""".p2align 6
.amdhsa_kernel {name}
  .amdhsa_next_free_vgpr {nv}
  .amdhsa_next_free_sgpr {102 if (DIAG or PAD is not None) else ns}
  .amdhsa_accum_offset {(nv+3)//4*4}
  .amdhsa_group_segment_fixed_size 0
  .amdhsa_kernarg_size 104
  .amdhsa_user_sgpr_count 2
  .amdhsa_user_sgpr_kernarg_segment_ptr 1
  .amdhsa_system_sgpr_workgroup_id_x 1
.end_amdhsa_kernel
"""
DIAG = "--diag" in sys.argv
WS_DIAG = 16 << 20
if DIAG: WS_SIZE = 32 << 20
LIGHT = '--light' in sys.argv
def stamp(a, i, force=False):
    if LIGHT and i != 0 and not force: return
    if DIAG: a(f"{'s_memtime' if i >= 13 else 's_memrealtime'} s[{70+2*i}:{71+2*i}]\ns_waitcnt lgkmcnt(0)")
DIAG2 = "--diag2" in sys.argv
D2SEL = {0: [(0, 1), (2, 0), (8, 0)], 1: [(0, 1), (1, 0), (3, 0), (4, 0), (8, 0), (10, 0), (12, 0)], 2: [(0, 1), (1, 0), (3, 0), (5, 0), (6, 0), (7, 0)]}
_dl = [0]
def dump(a, kidx, n, WS, sW):
    if not DIAG: return
    stamp(a, min(n - 1, 12), True)
    if DIAG2:
        _dl[0] += 1
        base = sum(len(D2SEL[k]) for k in range(kidx))
        a(f"s_and_b32 s98, s2, 15\ns_cmp_lg_u32 s98, 0\ns_cbranch_scc1 LD_{_dl[0]}\ns_load_dwordx2 s[98:99], s[0:1], 88\ns_mov_b64 exec, 1\nv_mov_b32 v1, 0\ns_waitcnt lgkmcnt(0)\ns_add_u32 s98, s98, {512*(2-kidx)}\ns_addc_u32 s99, s99, 0")
        for j, (i, inv) in enumerate(D2SEL[kidx]):
            a(f"v_mov_b32 v0, s{70+2*i}")
            if inv: a("v_not_b32 v0, v0")
            a(f"global_atomic_umax v1, v0, s[98:99] offset:{4*(base+j)}\ns_nop 1")
        a(f"LD_{_dl[0]}:")
        return
    a(f"s_mov_b64 exec, 1\ns_lshl_b32 s69, s2, 4\ns_add_u32 s69, s69, s{sW}\ns_lshl_b32 s69, s69, 6\ns_add_u32 s69, s69, {WS_DIAG + kidx * (1 << 20)}\nv_mov_b32 v1, 0")
    for i in range(n):
        a(f"v_mov_b32 v0, s{70+2*i}\nbuffer_store_dword v0, v1, s[{WS}:{WS+3}], s69 offen offset:{4*i}")
PAD = [int(x.split("=")[1]) for x in sys.argv if x.startswith("--pad=")]
PAD = PAD[0] if PAD else None
WS_PAD = (6 << 20)
def padstamp(a, k):
    if PAD == k: a("s_memrealtime s[94:95]\ns_waitcnt lgkmcnt(0)")
def padstore(a, k, WS, sW): pass
def padspin(a, WS):
    if PAD is None: return
    a(f"s_mov_b32 s97, 0\nLQ_spin:\ns_memrealtime s[92:93]\ns_waitcnt lgkmcnt(0)\ns_sub_u32 s98, s92, s94\ns_add_u32 s97, s97, 1\ns_cmp_gt_u32 s97, 100000\ns_cbranch_scc1 LQ_done\ns_cmp_lt_u32 s98, 6000\ns_cbranch_scc1 LQ_spin\nLQ_done:")
MF32 = "v_mfma_f32_32x32x16_bf16"
MF16 = "v_mfma_f32_16x16x32_bf16"

ZERO_KB = 8
K1_KV = 131072
K1_CS = 147456
K1_KC = K1_CS + 1024
K1_KP = K1_KC + 1024
K1_PS = K1_KP + 4096
K1_EP = K1_PS + 1024
K1_LDS = K1_EP + 64
QSC = 'sc1' if '--qsc1' in sys.argv else '' if '--qplain' in sys.argv else 'sc0 sc1'
CODE_SPAN = 18600
WOC = 1 if '--woc1' in sys.argv else 2
def rowstat(a, s, m, r):
    a(f"""
    v_add_f32 v{m}, v{s}, v{s+2}
    v_add_f32 v{r}, v{s+1}, v{s+3}
    v_mul_f32 v{m}, {hex(f2u(-1.0/512))}, v{m}
    v_mul_f32 v{r}, {hex(f2u(1.0/512))}, v{r}
    v_fma_f32 v{r}, -v{m}, v{m}, v{r}
    v_max_f32 v{r}, 0, v{r}
    """)
    if "--exactln" in sys.argv:
        a(f"v_add_f32 v{r}, {hex(f2u(EPS))}, v{r}\nv_rsq_f32 v{r}, v{r}")
        return
    a(f"""
    v_cvt_pk_bf16_f32 v{r}, v{m}, v{r}
    v_lshlrev_b32 v{m}, 16, v{r}
    v_and_b32 v{r}, 0xffff0000, v{r}
    v_add_f32 v{r}, {hex(f2u(EPS))}, v{r}
    v_cvt_pk_bf16_f32 v{r}, v{r}, v{r}
    v_and_b32 v{r}, 0xffff0000, v{r}
    v_sqrt_f32 v{r}, v{r}
    s_nop 0
    v_cvt_pk_bf16_f32 v{r}, v{r}, v{r}
    v_and_b32 v{r}, 0xffff0000, v{r}
    v_rcp_f32 v{r}, v{r}
    """)
def split_ab(a, src, dst, kind):
    a(f"v_and_b32 v11, 0xffff0000, v{src}\nv_sub_f32 v12, v{src}, v11")
    if kind == "m": a(f"v_cvt_pk_bf16_f32 v{dst}, v11, v12\nv_cvt_pk_bf16_f32 v{dst+1}, v11, 0")
    else: a(f"v_cvt_pk_bf16_f32 v{dst}, v11, v11\nv_cvt_pk_bf16_f32 v{dst+1}, v12, 0")
def k1(a):
    X, WQ, WKV, WO, WS = 16, 20, 24, 32, 36
    sW, sTG, sCG = 40, 41, 42
    DBG = 28
    ONES = 69
    VL = 13
    head(a, KNAME)
    a(f"""
    s_cmp_ge_u32 s2, 256
    s_cbranch_scc1 L2_end
    @S0
    @T0
    s_load_dwordx8 s[4:11], s[0:1], 0
    s_load_dwordx2 s[12:13], s[0:1], 32
    s_load_dwordx2 s[14:15], s[0:1], 96
    s_load_dwordx2 s[64:65], s[0:1], 88
    v_lshrrev_b32 v1, 6, v0
    v_and_b32 v2, 63, v0
    v_readfirstlane_b32 s{sW}, v1
    s_and_b32 s43, s2, 7
    s_lshr_b32 s44, s2, 3
    s_and_b32 s45, s44, 3
    s_lshl_b32 s{sTG}, s43, 2
    s_add_u32 s{sTG}, s{sTG}, s45
    s_lshr_b32 s{sCG}, s44, 2
    v_and_b32 v3, 15, v2
    v_lshrrev_b32 v4, 4, v2
    v_lshlrev_b32 v{VL}, 4, v2
    s_and_b32 s46, s{sW}, 3
    s_lshl_b32 s50, s46, 12
    s_and_b32 s58, s{sCG}, 3
    s_cmp_lt_u32 s{sW}, 4
    s_cbranch_scc1 L1_gemm
    """)
    VX, VW, WT, CS, WR, XR = 8, 12, 24, 70, 48, 32
    pass
    for i in range(4):
        a(f"v_add_u32 v7, {4*i}, v4\nv_xor_b32 v{VX+i}, v7, v3\nv_lshlrev_b32 v{VX+i}, 4, v{VX+i}\nv_lshl_add_u32 v{VX+i}, v7, 10, v{VX+i}")
    a(f"""
    v_lshrrev_b32 v7, 3, v2
    v_and_b32 v{VW}, 1, v4
    v_lshlrev_b32 v{VW}, 2, v{VW}
    v_and_b32 v14, 7, v2
    v_xor_b32 v{VW}, v{VW}, v14
    v_lshlrev_b32 v{VW}, 4, v{VW}
    v_lshl_add_u32 v{VW}, v7, 10, v{VW}
    s_lshl_b32 s48, s{sTG}, 16
    s_lshl_b32 s43, s46, 14
    s_add_u32 s48, s48, s43
    s_lshl_b32 s49, s46, 15
    s_lshl_b32 s43, s{sCG}, 7
    s_add_u32 s49, s49, s43
    {'s_mov_b32 s55, 0' if '--norot' in sys.argv else f's_add_u32 s55, s{sCG}, s{sTG}'}
    s_waitcnt lgkmcnt(0)
    """)
    srd(a, X, 4, 2 << 20)
    def chunk(c, sh): a(f"s_add_u32 s43, s55, {c}\ns_and_b32 s43, s43, 3\ns_lshl_b32 s43, s43, {sh}")
    def issx(c):
        chunk(c, 8); a("s_add_u32 s51, s48, s43")
        for i in range(4):
            a(f"s_add_u32 m0, s50, {c*16384 + i*1024}\ns_nop 0\nbuffer_load_dwordx4 v{VX+i}, s[{X}:{X+3}], s51 offen lds")
    def issw(c):
        chunk(c, 17); a("s_add_u32 s51, s49, s43")
        for i in range(4):
            a(f"s_add_u32 m0, s50, {65536 + c*16384 + i*1024}\ns_add_u32 s52, s51, {8*i*1024}\nbuffer_load_dwordx4 v{VW}, s[{WQ}:{WQ+3}], s52 offen lds")
    def isskv(c):
        chunk(c, 12)
        a(f"s_add_u32 m0, s61, {K1_KV + c*4096}\ns_add_u32 s52, s61, s43\nbuffer_load_dwordx4 v{VL}, s[{WKV}:{WKV+3}], s52 offen lds")
    issx(0)
    a(f"s_cmp_ge_u32 s{sCG}, 4\ns_cselect_b32 s8, s10, s8\ns_cselect_b32 s9, s11, s9\ns_lshl_b32 s61, s46, 10")
    srd(a, WKV, 8, 16 << 10)
    isskv(0); issx(1); isskv(1)
    srd(a, WQ, 6, 512 << 10)
    a(f"""
    v_mov_b32 v{ONES}, 0x3f803f80
    v_add_u32 v30, {K1_KC}, v{VL}
    s_lshl_b32 s43, s58, 8
    s_add_u32 s43, s43, {K1_PS}
    v_lshl_add_u32 v31, v3, 4, s43
    s_lshl_b32 s56, s{sTG}, 1
    s_lshr_b32 s43, s58, 1
    s_add_u32 s56, s56, s43
    s_mul_i32 s56, s56, {TILE}
    s_add_u32 s56, s56, {WS_KV}
    s_and_b32 s57, s58, 1
    s_lshl_b32 s43, s57, 8
    s_mul_i32 s44, s57, 544
    s_add_u32 s44, s44, 1024
    s_cmp_ge_u32 s{sCG}, 4
    s_cselect_b32 s43, s44, s43
    s_cselect_b64 s[62:63], -1, 0
    s_add_u32 s56, s56, s43
    v_and_b32 v14, 1, v4
    v_lshrrev_b32 v15, 1, v4
    v_lshlrev_b32 v26, 9, v14
    v_lshl_add_u32 v26, v15, 3, v26
    v_lshlrev_b32 v27, 8, v15
    v_lshl_add_u32 v27, v14, 3, v27
    v_cndmask_b32 v26, v26, v27, s[62:63]
    v_lshl_add_u32 v26, v3, 4, v26
    v_lshlrev_b32 v27, 4, v4
    v_lshlrev_b32 v28, 2, v3
    v_cndmask_b32 v27, v28, v27, s[62:63]
    v_cndmask_b32 v28, 0, 4, s[62:63]
    v_mov_b32 v29, 0x7fff0000
    v_mov_b32 v74, 0
    v_mov_b32 v75, 0
    v_mov_b32 v78, 0
    v_mov_b32 v79, 0
    """)
    srd(a, WS, 14, WS_SIZE); srd(a, DBG, 64, 256)
    a(f"v_mov_b32 v93, {K1_EP}\nv_mov_b32 v94, 0")
    size = [5, 5, 5, 5, 4, 4, 4, 4]
    for g in range(5):
        if g + 2 < 4: issx(g + 2); isskv(g + 2)
        else: issw(g - 2)
        a(f"s_waitcnt vmcnt({sum(size[g+1:g+3])})\ns_barrier")
    a(f"buffer_load_dword v66, v94, s[{DBG}:{DBG+3}], 0 offen sc1")
    issw(3)
    a(f"""
    s_cmp_eq_u32 s46, 0
    s_cbranch_scc1 L1_fin
    s_waitcnt vmcnt(9)
    s_barrier
    s_waitcnt vmcnt(5)
    s_barrier
    s_waitcnt vmcnt(0)
    v_readfirstlane_b32 s{sEP}, v66
    s_cmp_eq_u32 s{sEP}, 0
    s_cbranch_scc1 L1_tag
    L1_tagok0:
    ds_write_b32 v93, v66
    s_waitcnt lgkmcnt(0)
    s_barrier
    s_branch L2_start
    L1_fin:
    ds_read_b128 v[80:83], v31
    ds_read_b128 v[84:87], v30
    ds_read_b128 {vr(XR,4)}, v30 offset:1024
    ds_read_b128 {vr(XR+4,4)}, v30 offset:2048
    ds_read_b128 {vr(XR+8,4)}, v30 offset:3072
    ds_read_b128 {vr(XR+12,4)}, v30 offset:4096
    s_waitcnt lgkmcnt(4)
    """)
    rowstat(a, 80, 8, 9)
    a(f"""
    v_add_f32 v84, v84, v85
    v_add_f32 v86, v86, v87
    ds_bpermute_b32 v88, v27, v9
    v_add_u32 v27, v27, v28
    ds_bpermute_b32 v89, v27, v9
    v_add_u32 v27, v27, v28
    ds_bpermute_b32 v90, v27, v9
    v_add_u32 v27, v27, v28
    ds_bpermute_b32 v91, v27, v9
    v_add_f32 v84, v84, v86
    v_cndmask_b32 v85, v84, v8, s[62:63]
    v_cndmask_b32 v86, v8, v84, s[62:63]
    """)
    split_ab(a, 85, 72, "c"); split_ab(a, 86, 76, "m")
    a("s_waitcnt lgkmcnt(4)")
    for r in range(4):
        a(f"v_add_f32 v{XR+r}, v{XR+r}, v{XR+4+r}\nv_add_f32 v{XR+8+r}, v{XR+8+r}, v{XR+12+r}")
    for r in range(4): a(f"v_add_f32 v{XR+r}, v{XR+r}, v{XR+8+r}")
    a(f"""
    v_cmp_gt_u32 vcc, 4, v2
    v_lshlrev_b32 v12, 2, v2
    {MF16} {vr(XR,4)}, v[72:75], v[76:79], {vr(XR,4)}
    v_cndmask_b32 v14, 0, v{ONES}, vcc
    s_and_b64 s[62:63], s[62:63], 0xff
    s_waitcnt lgkmcnt(0)
    s_nop 4
    """)
    for r in range(4): a(f"v_mul_f32 v{XR+r}, v{88+r}, v{XR+r}")
    a(f"""
    v_cvt_pk_bf16_f32 v{XR}, v{XR}, v{XR+1}
    v_cvt_pk_bf16_f32 v{XR+1}, v{XR+2}, v{XR+3}
    buffer_store_dwordx2 {vr(XR,2)}, v26, s[{WS}:{WS+3}], s56 offen sc0 sc1
    v_cndmask_b32 v12, v29, v12, s[62:63]
    buffer_store_dword v14, v12, s[{WS}:{WS+3}], s56 offen offset:512 sc0 sc1
    s_lshl_b32 s43, s2, {FSH}
    s_add_u32 s43, s43, {WS_FLG}
    v_mov_b32 v7, 0
    s_waitcnt vmcnt(11)
    s_barrier
    s_waitcnt vmcnt(7)
    s_barrier
    {'s_waitcnt vmcnt(2)' if '--fb' in sys.argv else ''}
    {'s_barrier' if '--fb' in sys.argv else ''}
    s_waitcnt vmcnt(0)
    v_readfirstlane_b32 s{sEP}, v66
    s_cmp_eq_u32 s{sEP}, 0
    s_cbranch_scc1 L1_tag
    L1_tagok1:
    s_mov_b64 exec, 1
    buffer_store_dword v66, v7, s[{WS}:{WS+3}], s43 offen sc0 sc1
    s_mov_b64 exec, -1
    @S1
    {'' if '--fb' in sys.argv else 's_barrier'}
    s_branch L2_start
    """)
    D1 = 16
    XF, WF = 120, 32
    XA, WA, WB, WOD = 72, 68, 70, 80
    KX, KW = 92, 93
    SX, SXX, KC, KD = 14, 15, 71, 96
    KF = 104
    a(f"""
    L1_gemm:
    v_and_b32 v5, 31, v2
    v_lshrrev_b32 v6, 5, v2
    s_and_b32 s53, s{sW}, 1
    s_lshr_b32 s54, s{sW}, 1
    s_lshl_b32 s59, s2, 1
    s_add_u32 s59, s59, s53
    s_lshr_b32 s43, s59, 6
    s_lshl_b32 s47, s43, 7
    s_lshr_b32 s44, s59, 3
    s_and_b32 s44, s44, 7
    s_lshl_b32 s44, s44, 16
    s_add_u32 s47, s47, s44
    s_lshl_b32 s44, s53, 15
    s_add_u32 s47, s47, s44
    s_and_b32 s44, s59, 2
    s_lshl_b32 s44, s44, 5
    s_add_u32 s47, s47, s44
    s_and_b32 s44, s59, 4
    s_lshr_b32 s44, s44, 1
    s_add_u32 s47, s47, s44
    v_lshlrev_b32 v7, 2, v3
    v_lshl_add_u32 v7, v6, 14, v7
    v_and_b32 v8, 1, v4
    v_lshl_add_u32 v7, v8, 12, v7
    v_add_u32 v8, 8192, v7
    s_waitcnt lgkmcnt(0)
    """)
    if "--pf" in sys.argv:
        a(f"""
        s_lshr_b32 s43, s2, 3
        s_lshl_b32 s43, s43, 14
        s_lshl_b32 s44, s53, 13
        s_add_u32 s43, s43, s44
        s_lshl_b32 s44, s{sTG}, 16
        s_lshl_b32 s45, s{sCG}, 13
        s_add_u32 s44, s44, s45
        s_cmp_eq_u32 s{sW}, 3
        s_cselect_b32 s44, 0x400000, s44
        s_cmp_ge_u32 s{sW}, 2
        s_cselect_b32 s43, s44, s43
        s_cselect_b32 s{X}, s4, s6
        s_cselect_b32 s{X+1}, s5, s7
        s_mov_b32 s{X+2}, 0x80000
        s_cselect_b32 s{X+2}, 0x200000, s{X+2}
        s_and_b32 s{X+1}, s{X+1}, 0xffff
        s_mov_b32 s{X+3}, 0x20000
        v_lshlrev_b32 v9, 7, v2
        buffer_load_dword v252, v9, s[{X}:{X+3}], s43 offen
        """)
    srd(a, WO, 12, 512 << 10); srd(a, WS, 14, WS_SIZE); srd(a, DBG, 64, 256)
    a(f"s_cmp_ge_u32 s{sW}, 2\ns_cbranch_scc1 L1_nowo")
    for j in range(8):
        ro = (0, 1, 8, 9, 2, 3, 10, 11)[j]
        a(f"buffer_load_ushort v{WOD + j}, v{7 + ro//8}, s[{WO}:{WO+3}], s47 offen offset:{(ro & 3) * 1024}")
    a(f"""
    s_branch L1_noz
    L1_nowo:
    s_cmp_eq_u32 s{sW}, 2
    s_cbranch_scc1 L1_ini
    """)
    if "--tlb" in sys.argv:
        a(f"""
        s_load_dwordx8 s[16:23], s[0:1], 48
        s_load_dwordx2 s[24:25], s[0:1], 80
        v_lshlrev_b32 v9, 20, v2
        s_mov_b64 exec, 0xff
        buffer_load_dword v252, v9, s[{WS}:{WS+3}], 0 offen offset:2048
        s_mov_b64 exec, 1
        global_load_dword v253, v9, s[6:7]
        s_waitcnt lgkmcnt(0)
        global_load_dword v253, v9, s[16:17]
        global_load_dword v253, v9, s[18:19]
        global_load_dword v253, v9, s[20:21]
        global_load_dword v253, v9, s[22:23]
        global_load_dword v253, v9, s[24:25]
        s_mov_b64 exec, -1
        """)
    a(f"""
    s_cmp_lg_u32 s2, 0
    s_cbranch_scc1 L1_noz
    s_memrealtime s[44:45]
    v_mov_b32 v9, 0
    s_waitcnt lgkmcnt(0)
    s_or_b32 s44, s44, 1
    v_mov_b32 v{WOD}, s44
    s_mov_b64 exec, 1
    buffer_store_dword v{WOD}, v9, s[{DBG}:{DBG+3}], 0 offen sc0 sc1
    s_mov_b64 exec, -1
    s_branch L1_noz
    L1_ini:
    s_cmp_lt_u32 s2, 172
    s_cselect_b32 s44, -1, 0
    v_mov_b32 v{WOD}, s44
    v_mov_b32 v{WOD+1}, 0
    v_lshlrev_b32 v9, 2, v2
    s_lshl_b32 s43, s2, {ASH}
    s_add_u32 s43, s43, {WS_ACT}
    s_lshl_b32 s44, s2, {KSH}
    s_add_u32 s44, s44, {WS_KEY}
    s_mov_b64 exec, 0xff
    buffer_store_dword v{WOD}, v9, s[{WS}:{WS+3}], s43 offen sc0 sc1
    s_mov_b64 exec, 3
    buffer_store_dword v{WOD+1}, v9, s[{WS}:{WS+3}], s44 offen sc0 sc1
        s_mov_b64 exec, -1
    L1_noz:
    """)
    if "--cpf" in sys.argv:
        a(f"""
        s_getpc_b64 s[44:45]
        s_and_b32 s44, s44, 0xffffff00
        s_lshr_b32 s43, s2, 3
        s_lshl_b32 s43, s43, 2
        s_add_u32 s43, s43, s{sW}
        s_lshl_b32 s43, s43, 8
        v_lshl_add_u32 v9, v2, 2, s43
        v_min_u32 v9, {CODE_SPAN}, v9
        global_load_dword v252, v9, s[44:45]
        """)
    a(f"""
    s_lshl_b32 s43, s54, 1
    v_xor_b32 v12, s43, v3
    s_lshl_b32 s43, s53, 13
    v_lshlrev_b32 v9, 8, v5
    v_add_u32 v9, s43, v9
    """)
    for j in range(8):
        a(f"v_add_u32 v10, {2*j}, v6\nv_xor_b32 v10, v10, v12\nv_lshl_add_u32 v{XA+j}, v10, 4, v9")
    a(f"""
    v_lshrrev_b32 v9, 2, v3
    v_lshl_add_u32 v10, v6, 3, v9
    v_lshlrev_b32 v10, 7, v10
    v_lshrrev_b32 v11, 1, v9
    v_xor_b32 v11, s54, v11
    v_lshl_add_u32 v10, v11, 6, v10
    v_and_b32 v11, 1, v4
    v_lshl_add_u32 v10, v11, 5, v10
    v_and_b32 v11, 3, v3
    v_lshl_add_u32 v10, v11, 3, v10
    s_lshl_b32 s43, s54, 11
    s_add_u32 s44, s43, 0x10000
    s_sub_u32 s43, {0x10000 + 2048}, s43
    v_add_u32 v{WA}, s44, v10
    v_add_u32 v{WB}, s43, v10
    v_lshl_add_u32 v{KW}, v4, 3, v9
    v_lshlrev_b32 v{KW}, 5, v{KW}
    v_lshl_add_u32 v{KW}, v11, 3, v{KW}
    s_lshl_b32 s43, s46, 10
    s_add_u32 s43, s43, {K1_KV}
    v_add_u32 v{KW}, s43, v{KW}
    s_lshl_b32 s43, s46, 2
    v_add_u32 v{KX}, s43, v4
    v_xor_b32 v{KX}, v{KX}, v3
    v_lshlrev_b32 v{KX}, 4, v{KX}
    v_lshl_add_u32 v{KX}, v3, 8, v{KX}
    s_lshl_b32 s43, s58, 12
    v_add_u32 v{KX}, s43, v{KX}
    v_lshrrev_b32 v64, 3, v5
    v_lshlrev_b32 v64, 13, v64
    v_and_b32 v11, 7, v5
    v_lshl_add_u32 v64, v11, 4, v64
    v_lshl_add_u32 v64, v6, 9, v64
    s_lshl_b32 s60, s{sTG}, 16
    s_lshl_b32 s44, s53, 15
    s_add_u32 s60, s60, s44
    s_lshl_b32 s44, s{sCG}, 10
    s_add_u32 s60, s60, s44
    s_lshl_b32 s44, s54, 8
    s_add_u32 s60, s60, s44
    s_add_u32 s60, s60, {WS_Q}
    s_lshl_b32 s43, s53, 9
    s_add_u32 s43, s43, {K1_PS}
    v_lshl_add_u32 v67, v5, 4, s43
    s_lshl_b32 s43, s54, 3
    v_lshl_add_u32 v65, v6, 2, v67
    v_add_u32 v65, s43, v65
    s_lshl_b32 s43, s46, 2
    s_add_u32 s43, s43, {K1_KC}
    v_add_u32 v94, s43, v{VL}
    s_lshl_b32 s43, s46, 10
    s_add_u32 s43, s43, {K1_KP}
    v_add_u32 v95, s43, v{VL}
    s_lshl_b32 s59, s59, 10
    s_add_u32 s59, s59, {WS_WO}
    s_cmp_ge_u32 s{sW}, 2
    s_cselect_b32 s59, {WS_SIZE}, s59
    s_cmp_ge_u32 s{sCG}, 4
    s_cselect_b64 s[62:63], -1, 0
    v_mov_b32 v{ONES}, 0x3f803f80
    v_mov_b32 v{SX}, 0
    v_mov_b32 v{SXX}, 0
    v_mov_b32 v{KC}, 0
    v_mov_b32 v90, 0
    v_mov_b32 v91, 0
    v_mov_b32 v250, 0
    v_mov_b32 v251, 0
    """)
    def xreads(c):
        kx, kw = KF + 8*(c & 1), KF + 8*(c & 1) + 4
        for u in (0, 2, 4, 6): a(f"ds_read_b128 {vr(XF+32*c+4*u,4)}, v{XA+u} offset:{c*16384}")
        a(f"ds_read_b128 {vr(kx,4)}, v{KX} offset:{c*16384}")
        a(f"ds_read_b64_tr_b16 {vr(kw,2)}, v{KW} offset:{c*4096}\nds_read_b64_tr_b16 {vr(kw+2,2)}, v{KW} offset:{c*4096+128}")
        for u in (1, 3, 5, 7): a(f"ds_read_b128 {vr(XF+32*c+4*u,4)}, v{XA+u} offset:{c*16384}")
    def wread(ks):
        ar = WB if ks & 1 else WA
        off = (ks & ~1) * 2048
        a(f"ds_read_b64_tr_b16 {vr(WF+4*(ks&7),2)}, v{ar} offset:{off}\nds_read_b64_tr_b16 {vr(WF+4*(ks&7)+2,2)}, v{ar} offset:{off + 512}")
    def work(c):
        kx, kw = KF + 8*(c & 1), KF + 8*(c & 1) + 4
        for u in (0, 2, 4, 6):
            a(f"s_waitcnt lgkmcnt({10 - u//2})")
            for q in range(4): a(f"v_dot2c_f32_bf16 v{SX}, v{XF+32*c+4*u+q}, v{ONES}\nv_dot2c_f32_bf16 v{SXX}, v{XF+32*c+4*u+q}, v{XF+32*c+4*u+q}")
        a("s_waitcnt lgkmcnt(4)")
        for q in range(4): a(f"v_dot2c_f32_bf16 v{KC}, v{kw+q}, v{ONES}")
        a(f"{MF16} {vr(KD,4)}, {vr(kw,4)}, {vr(kx,4)}, {'0' if c == 0 else vr(KD,4)}")
        a(f"{MF16} {vr(KD+4,4)}, {vr(kx,4)}, {vr(kw,4)}, {'0' if c == 0 else vr(KD+4,4)}")
    for c in range(4):
        a("s_barrier")
        if c == 0: a("@T3")
        xreads(c)
        work(c)
        if c == WOC:
            a(f"""
            s_waitcnt vmcnt(0)
            v_lshl_or_b32 v{WOD}, v{WOD+1}, 16, v{WOD}
            v_lshl_or_b32 v{WOD+1}, v{WOD+3}, 16, v{WOD+2}
            v_lshl_or_b32 v{WOD+2}, v{WOD+5}, 16, v{WOD+4}
            v_lshl_or_b32 v{WOD+3}, v{WOD+7}, 16, v{WOD+6}
            buffer_store_dwordx4 {vr(WOD,4)}, v{VL}, s[{WS}:{WS+3}], s59 offen sc0 sc1
            """)
    a(f"""
    v_permlane32_swap_b32 v{SX}, v{SXX}
    s_nop 0
    ds_write_b32 v94, v{KC}
    v_add_f32 v{SX}, v{SX}, v{SXX}
    v_mov_b32 v7, {K1_EP}
    ds_write_b32 v65, v{SX}
    s_nop 1
    """)
    for r in range(4): a(f"v_cndmask_b32 v{KD+r}, v{KD+r}, v{KD+4+r}, s[62:63]")
    a(f"ds_write_b128 v95, {vr(KD,4)}\nds_write_b32 v7, v90 offset:8\nv_mov_b32 v{SXX}, 0\ns_waitcnt lgkmcnt(0)\ns_barrier\n@T4\n@S2")
    for ks in range(7): wread(ks)
    a("s_waitcnt lgkmcnt(12)")
    wread(7)
    for g in range(8):
        a(f"s_waitcnt lgkmcnt({8 if g < 7 else 0})")
        for ks in range(4*g, 4*g + 4):
            for q in range(4): a(f"v_dot2c_f32_bf16 v{SXX}, v{WF+4*(ks&7)+q}, v{ONES}")
        if g == 2: a("s_waitcnt vmcnt(0)")
        if g % 2 == 0 and g < 6: a("s_barrier")
        if g == 2: a("ds_read_b128 v[84:87], v67")
        if g == 4: a("@S10\nds_read_b32 v66, v7")
        if g == 2: a("@S6")
        if g == 0: a("@S5")
        if g == 6: a(f"v_readfirstlane_b32 s{sEP}, v66")
        for ks in range(4*g, 4*g + 4):
            a(f"{MF32} {vr(D1,16)}, {vr(WF+4*(ks&7),4)}, {vr(XF+4*ks,4)}, {'0' if ks == 0 else vr(D1,16)}")
            if ks + 8 < 32: wread(ks + 8)
            if ks == 16: rowstat(a, 84, 8, 9)
            if ks == 17: split_ab(a, 8, 88, "m"); a(f"v_mul_f32 v10, {hex(f2u(QSCALE))}, v9")
            if ks == 29: a("s_nop 0"); split_ab(a, SXX, 248, "c")
    a(f"""
    {MF32} {vr(D1,16)}, v[248:251], v[88:91], {vr(D1,16)}
    v_mov_b32 v35, v66
    v_mov_b32 v39, v66
    v_mov_b32 v43, v66
    v_lshrrev_b32 v44, 3, v5
    v_lshlrev_b32 v44, 12, v44
    v_and_b32 v11, 7, v5
    v_lshl_add_u32 v44, v11, 4, v44
    v_lshl_add_u32 v44, v6, 8, v44
    s_sub_u32 s61, s60, {WS_Q}
    s_lshr_b32 s61, s61, 1
    s_add_u32 s61, s61, {WS_QB}
    s_nop 0
    """)
    dst = [32, 33, 34, 36, 40, 41, 42, 37]
    for r in range(8):
        a(f"v_mul_f32 v{D1+2*r}, v10, v{D1+2*r}\nv_mul_f32 v{D1+2*r+1}, v10, v{D1+2*r+1}\nv_cvt_pk_bf16_f32 v{dst[r]}, v{D1+2*r}, v{D1+2*r+1}")
        if r == 2: a(f"buffer_store_dwordx4 v[32:35], v64, s[{WS}:{WS+3}], s60 offen {QSC}")
        if r == 6: a(f"buffer_store_dwordx4 v[40:43], v64, s[{WS}:{WS+3}], s60 offen offset:128 {QSC}")
    a(f"""
    buffer_store_dwordx4 v[36:39], v44, s[{WS}:{WS+3}], s61 offen {QSC}
    @T5
    @S1
    """)
def k1_cold(a):
    DBG = 28
    a(f"""
    L1_tag:
    s_mov_b32 s47, 0
    L1_tagl:
    buffer_load_dword v66, v94, s[{DBG}:{DBG+3}], 0 offen sc1
    s_add_u32 s47, s47, 1
    s_waitcnt vmcnt(0)
    v_readfirstlane_b32 s{sEP}, v66
    s_cmp_gt_u32 s47, 0x40000
    s_cbranch_scc1 L1_tagx
    s_cmp_eq_u32 s{sEP}, 0
    s_cbranch_scc1 L1_tagl
    L1_tagx:
    s_cmp_eq_u32 s46, 0
    s_cbranch_scc1 L1_tagok1
    s_branch L1_tagok0
    """)
KV_BYTES = 64 * TILE
OB = KV_BYTES
RED = OB + 8 * 1040
PART = RED + 1024
CNT = PART + 16384
K2_LDS = CNT + 64
FW = 0
FR = 32768
SMF = "v_smfmac_f32_32x32x32_bf16"
SM16 = "v_smfmac_f32_16x16x64_bf16"
LOG2E = 1.4426950408889634
KSLEEP = ''
for _x in sys.argv:
    if _x.startswith('--ksleep='): KSLEEP = 's_sleep ' + _x.split('=')[1]
OSC = 'sc0 sc1' if '--osc' in sys.argv else 'nt' if '--ont' in sys.argv else ''
SLEEP = 's_nop 0'
for _x in sys.argv:
    if _x.startswith('--sleep='): SLEEP = 's_sleep ' + _x.split('=')[1]
def k2(a):
    X, WR_, OUT, WS, FA, FB = 16, 20, 24, 28, 32, 36
    sW, sN, sG = 40, 43, 41
    Q, C, KF, VF, S, O = 8, 12, 28, 36, 52, 84
    IDX, KA, VA, LN16, XO, WRO, M, VA0 = 100, 101, 102, 103, 104, 105, 106, 107
    WO = 108; XRES, WRV, FWR = 236, 240, 244
    BAR_TILE = 10
    X_ = [x for x in sys.argv if x.startswith("--x")]
    a(f"""
    L2_start:
    s_load_dwordx8 s[52:59], s[0:1], 48
    s_load_dwordx2 s[8:9], s[0:1], 80
    v_lshlrev_b32 v{LN16}, 4, v2
    v_and_b32 v5, 31, v2
    v_lshrrev_b32 v6, 5, v2
    s_lshl_b32 s{sG}, s41, 3
    s_add_u32 s{sG}, s{sG}, s42
    s_lshl_b32 s44, s{sG}, 13
    s_lshl_b32 s45, s{sW}, 10
    s_add_u32 s46, s44, s45
    s_add_u32 s47, s45, {WS_KV}
    s_lshl_b32 s50, s{sW}, 16
    s_add_u32 s51, s50, {WS_WO}
    s_and_b32 s48, s{sW}, 4
    s_lshl_b32 s48, s48, 13
    s_add_u32 s50, s51, s48
    """)
    srd(a, WS, 14, WS_SIZE)
    def dma(i):
        return [f"s_add_u32 m0, s45, {i*8192}", f"s_add_u32 s48, s47, {i*8192}", f"buffer_load_dwordx4 v{LN16}, s[{WS}:{WS+3}], s48 offen sc1 lds"]
    a("s_waitcnt lgkmcnt(0)")
    srd(a, X, 4, 2 << 20); srd(a, WR_, 52, 1024); srd(a, OUT, 8, 2 << 20)
    a(f"""
    v_lshlrev_b32 v3, 8, v6
    v_lshl_add_u32 v3, v5, 4, v3
    v_and_b32 v4, 27, v5
    v_cmp_eq_u32 vcc, 16, v4
    v_mov_b32 v4, 528
    v_mov_b32 v7, 512
    v_cndmask_b32 v4, v4, v7, vcc
    v_cmp_gt_u32 vcc, 16, v5
    v_mov_b32 v{KA}, v{LN16}
    v_mov_b32 v{IDX}, 0xdddddddd
    v_cndmask_b32 v3, v4, v3, vcc
    v_add_u32 v{VA0}, 1024, v3
    v_mov_b32 v{VA}, v{VA0}
    v_and_b32 v3, 12, v2
    v_lshlrev_b32 v3, 2, v3
    v_lshl_add_u32 v3, v6, 6, v3
    s_lshl_b32 s49, s{sW}, 7
    v_add_u32 v{WRO}, s49, v3
    v_and_b32 v4, 16, v2
    v_lshlrev_b32 v4, 8, v4
    v_and_b32 v3, 15, v2
    v_lshl_add_u32 v0, v3, 2, v4
    v_lshl_add_u32 v0, v6, 6, v0
    v_add_u32 v0, s49, v0
    v_and_b32 v3, 3, v2
    v_lshl_add_u32 v4, v3, 10, v4
    v_add_u32 v{XO}, v4, v{WRO}
    s_and_b32 s48, s2, 7
    s_lshr_b32 s49, s2, 3
    s_mul_i32 s64, s48, 22
    s_add_u32 s64, s64, s49
    s_lshl_b32 s48, s48, 3
    s_add_u32 s48, s48, s49
    s_sub_u32 s61, s48, 22
    s_and_b32 s61, s61, 63
    s_lshl_b32 s61, s61, 4
    s_min_u32 s48, s64, 171
    s_lshl_b32 s48, s48, 4
    s_mul_i32 s49, s{sW}, {64*2752}
    s_add_u32 s48, s48, s49
    s_lshl_b32 s49, s{sW}, 16
    s_add_u32 s49, s49, s61
    s_add_u32 s66, s49, {512*1024}
    s_add_u32 s67, s49, {1024*1024}
    s_movk_i32 s60, 2752
    s_cmp_ge_u32 s2, 176
    s_cselect_b32 s65, s49, s48
    s_cselect_b32 s66, s66, s48
    s_cselect_b32 s67, s67, 0x200000
    s_cselect_b32 s60, 0x400, s60
    s_cselect_b32 s54, s58, s54
    s_cselect_b32 s55, s59, s55
    s_cselect_b32 s56, s58, s56
    s_cselect_b32 s57, s59, s57
    v_mul_u32_u24 v1, s60, v2
    """)
    srd(a, FA, 54, 512*2752); srd(a, FB, 56, 512*2752)
    a(f"""
    s_mov_b32 s60, {16*8192}
    s_cmp_lt_u32 s{sW}, 4
    s_cselect_b32 s60, s60, {WS_SIZE}
    v_mov_b32 v3, {CNT}
    """)
    for r in range(16): a(f"v_mov_b32 v{O+r}, 0")
    a(f"""
    ds_write_b32 v3, v{O}
    ds_write_b128 v3, {vr(O,4)} offset:16
    s_lshr_b32 s12, s46, 1
    s_add_u32 s12, s12, {WS_QB}
    s_add_u32 s46, s46, {WS_Q}
    v_lshrrev_b32 v7, 4, v2
    v_lshlrev_b32 v7, 7, v7
    v_and_b32 v4, 7, v2
    v_lshl_add_u32 v7, v4, 4, v7
    s_cmp_lt_u32 s{sW}, 4
    s_cbranch_scc1 L2_noflag
    s_sub_u32 s13, s{sW}, 4
    """)
    if "--fw1" not in sys.argv:
        a(f"""
        s_lshl_b32 s48, s13, {FSH + 6}
        s_add_u32 s48, s48, {WS_FLG}
        v_lshlrev_b32 v3, {FSH}, v2
        s_mov_b32 s49, 0
        L2_fpoll:
        buffer_load_dword v4, v3, s[{WS}:{WS+3}], s48 offen sc1
        s_add_u32 s49, s49, 1
        s_waitcnt vmcnt(0)
        v_cmp_ne_u32 vcc, s{sEP}, v4
        s_cmp_gt_u32 s49, 0x40000
        s_cbranch_scc1 L2_fgot
        s_and_b64 exec, exec, vcc
        s_cbranch_scc1 L2_fpoll
        L2_fgot:
        s_mov_b64 exec, 1
        v_mov_b32 v3, {K1_EP + 8}
        v_mov_b32 v4, 1
        ds_add_u32 v3, v4
        """)
    else:
        a(f"""
        s_cmp_lg_u32 s{sW}, 5
        s_cbranch_scc1 L2_fwait
        s_mov_b32 s48, {WS_FLG}
        v_lshlrev_b32 v3, {KSH + 2}, v2
        s_mov_b32 s49, 0
        L2_fpoll:
        """)
        for q in range(4): a(f"buffer_load_dword v{S+q}, v3, s[{WS}:{WS+3}], s48 offen offset:{q << KSH} sc1")
        a(f"""
        s_add_u32 s49, s49, 1
        s_waitcnt vmcnt(0)
        v_xor_b32 v{S}, s{sEP}, v{S}
        v_xor_b32 v{S+1}, s{sEP}, v{S+1}
        v_xor_b32 v{S+2}, s{sEP}, v{S+2}
        v_xor_b32 v{S+3}, s{sEP}, v{S+3}
        v_or3_b32 v4, v{S}, v{S+1}, v{S+2}
        v_or_b32 v4, v4, v{S+3}
        v_cmp_ne_u32 vcc, 0, v4
        s_cmp_gt_u32 s49, 0x40000
        s_cbranch_scc1 L2_fgot
        s_and_b64 exec, exec, vcc
        s_cbranch_scc1 L2_fpoll
        L2_fgot:
        s_mov_b64 exec, 1
        v_mov_b32 v3, {K1_EP + 8}
        v_mov_b32 v4, 4
        ds_write_b32 v3, v4
        L2_fwait:
        s_mov_b64 exec, 1
        v_mov_b32 v3, {K1_EP + 8}
        """)
    a(f"""
    L2_fspin:
    ds_read_b32 v4, v3
    s_waitcnt lgkmcnt(0)
    v_readfirstlane_b32 s49, v4
    s_cmp_lt_u32 s49, 4
    s_cbranch_scc1 L2_fspin
    s_mov_b64 exec, -1
    @S2
    s_lshl_b32 s13, s13, 10
    s_add_u32 s62, s13, {WS_KV}
    """)
    for i in range(6):
        a(f"s_add_u32 m0, s13, {i*4096}\ns_add_u32 s48, s62, {i*4096}\nbuffer_load_dwordx4 v{LN16}, s[{WS}:{WS+3}], s48 offen sc1 lds")
    a(f"""
    L2_noflag:
    {'' if '--nobarA' in sys.argv else 's_barrier'}
    @T6
    s_mov_b32 s49, 0
    L2_qpoll:
    buffer_load_dwordx4 {vr(Q,4)}, v{LN16}, s[{WS}:{WS+3}], s46 offen sc1
    buffer_load_dwordx4 {vr(S,4)}, v7, s[{WS}:{WS+3}], s12 offen sc1
    s_add_u32 s49, s49, 1
    s_waitcnt vmcnt(0)
    v_cmp_ne_u32 vcc, s{sEP}, v{Q+3}
    v_cmp_ne_u32 s[62:63], s{sEP}, v{S+3}
    s_cmp_gt_u32 s49, 0x40000
    s_cbranch_scc1 L2_qgot
    s_or_b64 exec, vcc, s[62:63]
    s_cbranch_scc1 L2_qpoll
    L2_qgot:
    s_mov_b64 exec, -1
    s_mov_b32 s62, 0xff00ff00
    s_mov_b32 s63, s62
    v_cndmask_b32 v{Q+3}, v{S}, v{S+1}, s[62:63]
    s_waitcnt lgkmcnt(0)
    s_barrier
    @S3
    ds_read_b128 {vr(KF,4)}, v{KA}
    ds_read_b128 {vr(KF+4,4)}, v{KA} offset:{TILE}
    ds_read_b128 {vr(VF,4)}, v{VA}
    ds_read_b128 {vr(VF+4,4)}, v{VA} offset:544
    s_waitcnt lgkmcnt(3)
    {MF32} {vr(S,16)}, {vr(KF,4)}, {vr(Q,4)}, 0
    s_waitcnt lgkmcnt(2)
    {MF32} {vr(S+16,16)}, {vr(KF+4,4)}, {vr(Q,4)}, 0
    s_nop 9
    v_max3_f32 v{M}, v{S}, v{S+1}, v{S+2}
    """)
    for r in range(3, 31, 2): a(f"v_max3_f32 v{M}, v{S+r}, v{S+r+1}, v{M}")
    a(f"""
    v_max_f32 v{M}, v{S+31}, v{M}
    v_mov_b32 v3, v{M}
    s_nop 1
    v_permlane32_swap_b32 v{M}, v3
    v_max_f32 v{M}, v{M}, v3
    v_sub_f32 v{C}, {hex(f2u(-SHIFT))}, v{M}
    """)
    for r in range(1, 16): a(f"v_mov_b32 v{C+r}, v{C}")
    a(f"""
    @S4
    @S13
    @T1
    s_nop 1
    {MF32} {vr(S,16)}, {vr(KF,4)}, {vr(Q,4)}, {vr(C,16)}
    s_waitcnt lgkmcnt(0)
    s_nop 10
    """)
    base = 0
    nwo = 0
    NPT = 2 if '--npt2' in sys.argv else 3
    queue = [dma(i) for i in range(3, 17)]
    queue[-1][1] = "s_add_u32 s48, s47, s60"
    ffn = [[f"buffer_load_dwordx4 {vr(FWR+4*i,4)}, v1, s[{FA if i == 0 else FB}:{(FA if i == 0 else FB)+3}], s{65+i} offen"] for i in range(3)]
    wol = [(["s_add_u32 s50, s50, 4096"] if (f and f % 4 == 0) else []) + [f"buffer_load_dwordx4 {vr(WO + 4*f, 4)}, v{LN16}, s[{WS}:{WS+3}], s50 offen offset:{(f & 3)*1024} sc1"] for f in range(32)]
    xw = [[f"buffer_load_dword v{XRES+r}, v0, s[{X}:{X+3}], s44 offen offset:{r*1024}"] for r in range(4)] + [[f"buffer_load_dwordx4 {vr(WRV,4)}, v{WRO}, s[{WR_}:{WR_+3}], 0 offen"]]
    SCH = [x.split("=")[1] for x in sys.argv if x.startswith("--sch=")]
    SCH = SCH[0] if SCH else "E"
    if SCH == "A":
        queue += wol + xw + ffn
        cnt = lambda t: 2 if t < 7 or 10 <= t <= 26 else 1 if t in (27, 29, 31) else 0
    elif SCH == "B":
        queue += wol + xw + ffn
        cnt = lambda t: 2 if t <= 23 else 1
    elif SCH == "C":
        queue += xw + wol[:4] + ffn[:1] + wol[4:5] + ffn[1:2] + wol[5:6] + ffn[2:] + wol[6:]
        cnt = lambda t: 2
    elif SCH == "D":
        queue += wol + xw + ffn
        cnt = lambda t: 2 if t <= 23 else 1 if t in (58, 60, 62) else 0
    elif SCH == "E":
        queue += wol + xw + ffn
        cnt = lambda t: 2 if t <= 24 else 1 if t in (25, 52, 56, 60) else 0
    elif SCH == "F":
        queue += wol + xw + ffn
        cnt = lambda t: 2 if t <= 23 else 1 if t in (61, 62, 63) else 0
    nissued = 0
    if '--noprio' not in sys.argv: a('s_setprio 1')
    if '--vmask' in sys.argv: a('s_mov_b32 s100, 0xffff\ns_mov_b32 s101, 0xffff' if DIAG else 's_mov_b32 s70, 0xffff\ns_mov_b32 s71, 0xffff')
    for t in range(64):
        cur, nxt = t & 1, (t + 1) & 1
        Sc, Sn = S + 16*cur, S + 16*nxt
        e = [f"v_exp_f32 v{Sc+i}, v{Sc+i}" for i in range(16)]
        n_ = cnt(t); side = sum(queue[:n_], []); queue = queue[n_:]
        if t == BAR_TILE: a(f"s_waitcnt vmcnt({nissued - 14})\ns_barrier")
        nissued += sum(1 for x in side if x.startswith("buffer"))
        if (t + 2 - base) * TILE + TILE > 65535:
            a(f"v_add_u32 v{KA}, {(t - base)*TILE}, v{KA}\nv_add_u32 v{VA}, {(t - base)*TILE}, v{VA}")
            base = t
        after = {i: [] for i in range(16)}
        side = [x for x in side if x]
        grp, curg = [], []
        for x in side:
            curg.append(x)
            if x.startswith("buffer"): grp.append(curg); curg = []
        if t > 0: after[1].append(f"{SMF} {vr(O,16)}, {vr(VF+8*nxt+4,4)}, {vr(Sn+8,8)}, v{IDX}")
        va = f"ds_read_b128 {vr(VF+8*nxt,4)}, v{VA} offset:{(t+1-base)*TILE}"
        vb = f"ds_read_b128 {vr(VF+8*nxt+4,4)}, v{VA} offset:{(t+1-base)*TILE+544}"
        VM = "--vmask" in sys.argv and t >= 1
        VQ = "--vq1" in sys.argv
        if t < 63:
            if VM: after[1] += ["s_mov_b64 exec, s[70:71]" if not DIAG else "s_mov_b64 exec, s[100:101]", va, vb, "s_mov_b64 exec, -1"]
            elif VQ: after[1] += [va, vb]
            else: after[1].append(va)
            after[5].append(f"{MF32} {vr(Sn,16)}, {vr(KF+4*nxt,4)}, {vr(Q,4)}, {vr(C,16)}")
        if t < 62: after[5].append(f"ds_read_b128 {vr(KF+4*cur,4)}, v{KA} offset:{(t+2-base)*TILE}")
        after[11].append(f"{SMF} {vr(O,16)}, {vr(VF+8*cur,4)}, {vr(Sc,8)}, v{IDX}")
        after[11].append("s_waitcnt lgkmcnt(0)")
        if t < 63 and not VM and not VQ: after[11].append(vb)
        for g, slot in zip(grp, (1, 5, 11) if len(grp) == 3 else (5, 11)): after[slot] += g
        assert len(grp) <= 3
        for i in range(16):
            a(e[i])
            for x in after[i]: a(x)
    a(f"""
    @S8
    @S14
    s_nop 1
    {SMF} {vr(O,16)}, {vr(VF+12,4)}, {vr(S+24,8)}, v{IDX}
    s_mov_b32 s48, {hex(f2u(2.0**110))}
    v_and_b32 v4, 7, v5
    v_mul_u32_u24 v4, 1040, v4
    v_lshrrev_b32 v7, 3, v5
    v_lshl_add_u32 v4, v7, 5, v4
    v_lshl_add_u32 v4, v6, 3, v4
    s_lshl_b32 s49, s{sW}, 7
    s_add_u32 s49, s49, {OB}
    v_add_u32 v4, s49, v4
    v_and_b32 v1, 7, v2
    v_mul_u32_u24 v0, 1040, v1
    v_lshrrev_b32 v7, 4, v2
    v_mul_f32 v3, 0, v{O}
    """)
    for r in range(1, 8): a(f"v_fma_f32 v3, v{O+r}, 0, v3")
    a(f"""
    v_add_f32 v3, v3, v{O+8}
    v_cmp_ngt_f32 vcc, s48, v3
    v_rcp_f32 v3, v{O+8}
    s_cmp_lg_u64 vcc, 0
    s_cbranch_scc1 L2_slow
    L2_epi:
    """)
    for r in range(8): a(f"v_mul_f32 v{O+r}, v3, v{O+r}")
    for r in range(4): a(f"v_cvt_pk_bf16_f32 v{O+r}, v{O+2*r}, v{O+2*r+1}")
    BA, PA = 101, 102
    a(f"""
    ds_write_b64 v4, {vr(O,2)}
    ds_write_b64 v4, {vr(O+2,2)} offset:16
    v_lshl_add_u32 v{BA}, v7, 5, v0
    v_and_b32 v3, 8, v2
    v_lshl_add_u32 v{BA}, v3, 1, v{BA}
    v_add_u32 v{BA}, {OB}, v{BA}
    v_cmp_ne_u32 vcc, 0, v3
    v_mov_b32 v{IDX}, 0x4444
    v_mov_b32 v3, 0xeeee
    s_and_b32 s49, s{sW}, 3
    s_lshl_b32 s49, s49, 12
    s_add_u32 s49, s49, {PART}
    v_add_u32 v{PA}, s49, v{LN16}
    v_cndmask_b32 v{IDX}, v{IDX}, v3, vcc
    s_waitcnt vmcnt(3)
    s_cmp_lt_u32 s{sW}, 4
    {'' if '--xnoold' in X_ else 's_cbranch_scc1 L2_old'}
    L2_join:
    @S7
    """)
    HF, T, WF8, TOK = 60, 68, 52, 106
    ACC = O
    BF = [Q, 28, 32, 36]
    for j in range(4):
        a(f"v_lshlrev_b32 v{HF+2*j}, 16, v{XRES+j}\nv_and_b32 v{HF+2*j+1}, 0xffff0000, v{XRES+j}")
        a(f"v_lshlrev_b32 v{WF8+2*j}, 16, v{WRV+j}\nv_and_b32 v{WF8+2*j+1}, 0xffff0000, v{WRV+j}")
    a(f"v_add_f32 v{T+3}, v{WF8}, v{WF8+1}")
    for j in range(2, 8): a(f"v_add_f32 v{T+3}, v{T+3}, v{WF8+j}")
    a(f"""
    v_mov_b32 v7, 0x3f803f80
    v_lshrrev_b32 v{TOK}, 10, v{XO}
    v_lshlrev_b32 v4, 5, v{TOK}
    v_add_u32 v4, {RED}, v4
    v_lshrrev_b32 v3, 5, v2
    v_lshl_add_u32 v3, v3, 9, v4
    s_lshl_b32 s49, s{sW}, 2
    v_add_u32 v3, s49, v3
    v_add_u32 v0, s45, v{LN16}
    s_add_u32 s49, s44, {WS_H}
    s_cmp_ge_u32 s{sW}, 4
    s_cselect_b64 s[62:63], -1, 0
    s_waitcnt lgkmcnt(0)
    s_barrier
    @S9
    @T2
    s_mov_b64 exec, s[62:63]
    """)
    for i in range(4): a(f"ds_read_b128 {vr(ACC+4*i,4)}, v{PA} offset:{1024*i}")
    a("s_mov_b64 exec, -1")
    for s_ in range(4): a(f"ds_read_b128 {vr(BF[s_],4)}, v{BA} offset:{(s_+4)*128}")
    for s_ in range(4):
        a(f"s_waitcnt lgkmcnt({3 - s_})")
        for i in range(4):
            a(f"{SM16} {vr(ACC+4*i,4)}, {vr(BF[s_],4)}, {vr(WO+32*s_+8*i,8)}, v{IDX}")
    a("s_waitcnt vmcnt(0)")
    for i in range(3): a(f"ds_write_b128 v0, {vr(FWR+4*i,4)} offset:{FW + i*8192}")
    A8, HB = 40, 48
    a("s_mov_b32 vcc_lo, 0x55555555\ns_mov_b32 vcc_hi, 0x55555555\ns_nop 1")
    for p in range(2):
        for r in range(4): a(f"v_permlane32_swap_b32 v{ACC+8*p+r}, v{ACC+8*p+4+r}")
    for r in range(4):
        for p in range(2): a(f"v_add_f32 v{HF+2*r+p}, v{HF+2*r+p}, v{ACC+8*p+r}")
    for r in range(4):
        for p in range(2): a(f"v_add_f32 v{HF+2*r+p}, v{HF+2*r+p}, v{ACC+8*p+4+r}")
    for r in range(4): a(f"v_cvt_pk_bf16_f32 v{A8+r}, v{HF+2*r}, v{HF+2*r+1}")
    X1, X2 = "quad_perm:[1,0,3,2] row_mask:0xf bank_mask:0xf", "quad_perm:[2,3,0,1] row_mask:0xf bank_mask:0xf"
    N = A8 + 4
    a(f"""
    s_nop 0
    v_cndmask_b32_dpp v{N}, v{A8+1}, v{A8}, vcc {X1}
    v_cndmask_b32_dpp v{N+2}, v{A8+3}, v{A8+2}, vcc {X1}
    s_not_b64 vcc, vcc
    v_cndmask_b32_dpp v{N+1}, v{A8}, v{A8+1}, vcc {X1}
    v_cndmask_b32_dpp v{N+3}, v{A8+2}, v{A8+3}, vcc {X1}
    s_mov_b32 vcc_lo, 0x33333333
    s_mov_b32 vcc_hi, 0x33333333
    v_cndmask_b32_dpp v{HB}, v{N+2}, v{N}, vcc {X2}
    v_cndmask_b32_dpp v{HB+1}, v{N+3}, v{N+1}, vcc {X2}
    s_not_b64 vcc, vcc
    v_cndmask_b32_dpp v{HB+2}, v{N}, v{N+2}, vcc {X2}
    v_cndmask_b32_dpp v{HB+3}, v{N+1}, v{N+3}, vcc {X2}
    buffer_store_dwordx4 {vr(HB,4)}, v{XO}, s[{WS}:{WS+3}], s49 offen sc0 sc1
    """)
    for j in range(4): a(f"v_lshlrev_b32 v{HF+2*j}, 16, v{HB+j}\nv_and_b32 v{HF+2*j+1}, 0xffff0000, v{HB+j}")
    a(f"v_add_f32 v{T}, v{HF}, v{HF+1}\nv_mul_f32 v{T+1}, v{HF}, v{HF}\nv_mul_f32 v{T+2}, v{HF}, v{WF8}")
    for j in range(1, 8):
        if j > 1: a(f"v_add_f32 v{T}, v{T}, v{HF+j}")
        a(f"v_fmac_f32 v{T+1}, v{HF+j}, v{HF+j}\nv_fmac_f32 v{T+2}, v{HF+j}, v{WF8+j}")
    a(f"""
    s_nop 0
    v_permlane32_swap_b32 v{T}, v{T+1}
    v_permlane32_swap_b32 v{T+2}, v{T+3}
    v_add_f32 v{T}, v{T}, v{T+1}
    v_add_f32 v{T+2}, v{T+2}, v{T+3}
    s_nop 0
    v_add_f32_dpp v{T}, v{T}, v{T} row_ror:8 row_mask:0xf bank_mask:0xf
    v_add_f32_dpp v{T+2}, v{T+2}, v{T+2} row_ror:8 row_mask:0xf bank_mask:0xf
    s_nop 0
    v_add_f32_dpp v{T}, v{T}, v{T} row_ror:4 row_mask:0xf bank_mask:0xf
    v_add_f32_dpp v{T+2}, v{T+2}, v{T+2} row_ror:4 row_mask:0xf bank_mask:0xf
    ds_write_b32 v3, v{T}
    ds_write_b32 v3, v{T+2} offset:256
    """)
    KR = 128
    def kloads():
        for q in range(4): a(f"buffer_load_dwordx2 {vr(KR+2*q,2)}, v8, s[{WS}:{WS+3}], s48 offen offset:{q << KSH} sc1")
    a(f"""
    s_waitcnt lgkmcnt(0)
    s_barrier
    @S11
    """)
    R_ = 108
    for q in (0, 2, 1, 3):
        a(f"ds_read_b128 {vr(R_+8*q,4)}, v4 offset:{q*256}\nds_read_b128 {vr(R_+8*q+4,4)}, v4 offset:{q*256+16}")
    def sum8(b):
        a(f"""
        v_add_f32 v{b}, v{b}, v{b+1}
        v_add_f32 v{b+2}, v{b+2}, v{b+3}
        v_add_f32 v{b+4}, v{b+4}, v{b+5}
        v_add_f32 v{b+6}, v{b+6}, v{b+7}
        v_add_f32 v{b}, v{b}, v{b+2}
        v_add_f32 v{b+4}, v{b+4}, v{b+6}
        v_add_f32 v{b}, v{b}, v{b+4}
        """)
    s1, s3, s2, s4 = R_, R_+8, R_+16, R_+24
    ST = 76
    OV = 80
    a("s_waitcnt lgkmcnt(4)")
    sum8(s1); sum8(s2)
    a(f"""
    v_mul_f32 v{ST}, {hex(f2u(1.0/512))}, v{s1}
    v_mul_f32 v{s2}, {hex(f2u(1.0/512))}, v{s2}
    v_fma_f32 v{s2}, -v{ST}, v{ST}, v{s2}
    v_max_f32 v{s2}, 0, v{s2}
    v_add_f32 v{s2}, {hex(f2u(EPS))}, v{s2}
    v_rsq_f32 v{ST+1}, v{s2}
    s_cmp_lg_u32 s{sW}, 0
    s_cbranch_scc1 L2_nokey
    s_waitcnt lgkmcnt(0)
    """)
    sum8(s3); sum8(s4)
    AF, BFR, STT, D, D2 = 140, 12, 204, 208, 212
    breg = lambda q: 12 + 4*q if q < 7 else 216 + 4*(q - 7)
    a(f"""
    v_fma_f32 v{s3}, -v{ST}, v{s4}, v{s3}
    s_lshl_b32 s48, s{sG}, 3
    v_add_u32 v4, s48, v{TOK}
    v_mul_f32 v{ST+2}, v{ST+1}, v{s3}
    v_mov_b32 v{ST+3}, s{sEP}
    v_lshlrev_b32 v0, 4, v4
    s_mov_b32 s48, {WS_ST}
    s_mov_b64 exec, 0x000f000f
    buffer_store_dwordx4 {vr(ST,4)}, v0, s[{WS}:{WS+3}], s48 offen sc0 sc1
    s_mov_b64 exec, -1
    v_ashrrev_i32 v3, 31, v{ST+2}
    v_or_b32 v3, 0x80000000, v3
    v_xor_b32 v3, v3, v{ST+2}
    v_and_b32 v3, 0xfffff800, v3
    v_sub_u32 v4, 2047, v4
    v_or_b32 v4, v3, v4
    s_lshl_b32 s48, s2, {KSH}
    s_add_u32 s48, s48, {WS_KEY}
    v_mov_b32_dpp v6, v4 quad_perm:[1,0,3,2] row_mask:0xf bank_mask:0xf
    v_mov_b32 v0, 0
    v_min_u32 v5, v4, v6
    v_max_u32 v4, v4, v6
    """)
    a(f"""
    s_nop 0
    v_mov_b32_dpp v3, v5 quad_perm:[2,3,0,1] row_mask:0xf bank_mask:0xf
    v_mov_b32_dpp v6, v4 quad_perm:[2,3,0,1] row_mask:0xf bank_mask:0xf
    v_max_u32 v5, v5, v3
    v_med3_u32 v5, v4, v5, v6
    v_max_u32 v4, v4, v6
    v_mov_b32 v3, v5
    v_mov_b32 v6, v4
    s_nop 0
    v_permlane16_swap_b32 v5, v3
    v_permlane16_swap_b32 v4, v6
    v_max_u32 v5, v5, v3
    v_med3_u32 v5, v4, v5, v6
    v_max_u32 v4, v4, v6
    """)
    a(f"""
    s_waitcnt vmcnt(1)
    s_barrier
    s_mov_b64 exec, 1
    buffer_store_dwordx2 v[4:5], v0, s[{WS}:{WS+3}], s48 offen sc0 sc1
    s_mov_b64 exec, -1
    @S5
    """)
    def outval():
        a(f"v_add_f32 v3, 1.0, v{ST+1}\nv_mul_f32 v6, v{ST}, v{ST+1}")
        for j in range(8): a(f"v_fma_f32 v{A8+j}, v{HF+j}, v3, -v6")
        for j in range(4): a(f"v_cvt_pk_bf16_f32 v{OV+j}, v{A8+2*j}, v{A8+2*j+1}")
    a(f"v_lshlrev_b32 v8, {KSH + 2}, v2\ns_mov_b32 s48, {WS_KEY}")
    if "--knoack" in sys.argv: kloads()
    ROWS = 40960
    a(f"""
    v_and_b32 v9, 15, v2
    v_lshrrev_b32 v11, 4, v2
    v_lshrrev_b32 v10, 2, v9
    v_lshl_add_u32 v10, v11, 7, v10
    v_lshlrev_b32 v10, 4, v10
    v_and_b32 v0, 1, v9
    v_lshl_add_u32 v10, v0, 3, v10
    v_and_b32 v3, 2, v9
    v_lshl_add_u32 v10, v3, 12, v10
    """)
    for q in range(7): a(f"ds_read_b64_tr_b16 {vr(AF+4*q,2)}, v10 offset:{FW + q*128}\nds_read_b64_tr_b16 {vr(AF+4*q+2,2)}, v10 offset:{FW + q*128 + 64}")
    outval()
    a("s_waitcnt lgkmcnt(0)")
    for q in range(7, 14): a(f"ds_read_b64_tr_b16 {vr(AF+4*q,2)}, v10 offset:{FW + q*128}\nds_read_b64_tr_b16 {vr(AF+4*q+2,2)}, v10 offset:{FW + q*128 + 64}")
    a(f"v_mov_b32 v252, v7\nv_mov_b32 v253, v7\nv_mov_b32 v254, v7\nv_mov_b32 v255, v7\ns_waitcnt lgkmcnt(4)")
    for q in range(14, 16): a(f"ds_read_b64_tr_b16 {vr(AF+4*q,2)}, v10 offset:{FW + q*128}\nds_read_b64_tr_b16 {vr(AF+4*q+2,2)}, v10 offset:{FW + q*128 + 64}")
    if "--knoack" not in sys.argv: a("s_waitcnt vmcnt(0)"); kloads()
    a(f"""
    v_cmp_eq_u32 s[10:11], 1, v0
    v_mul_u32_u24 v10, 1040, v0
    v_lshl_add_u32 v10, v11, 8, v10
    v_lshlrev_b32 v{R_}, 4, v0
    v_lshl_add_u32 v{R_}, v11, 3, v{R_}
    s_mov_b32 s49, 0
    s_mov_b32 s46, 0
    s_mov_b32 s47, 0
    s_mov_b32 s51, {WS_ST}
    s_waitcnt lgkmcnt(0)
    """)
    for q in range(16): a(f"{MF16} {vr(D2,4)}, {vr(AF+4*q,4)}, v[252:255], {'0' if q == 0 else vr(D2,4)}")
    a(f"""
    L2_kpoll:
    s_waitcnt vmcnt(0)
    v_min_u32 v0, v{KR}, v{KR+2}
    v_min3_u32 v0, v{KR+4}, v{KR+6}, v0
    v_cmp_eq_u32 s[62:63], 0, v0
    s_add_u32 s49, s49, 1
    s_cmp_gt_u32 s49, 0x40000
    s_cselect_b64 s[62:63], 0, s[62:63]
    v_max_u32 v4, v{KR}, v{KR+2}
    v_min_u32 v5, v{KR}, v{KR+2}
    v_max3_u32 v5, v5, v{KR+1}, v{KR+3}
    v_med3_u32 v5, v4, v5, v{KR+4}
    v_max_u32 v4, v4, v{KR+4}
    v_med3_u32 v5, v4, v5, v{KR+6}
    v_max_u32 v4, v4, v{KR+6}
    v_max3_u32 v5, v5, v{KR+5}, v{KR+7}
    s_mov_b64 exec, s[62:63]
    s_cbranch_execz L2_klast
    """)
    kloads()
    a("L2_klast:\ns_mov_b64 exec, -1")
    for dpp in ("quad_perm:[1,0,3,2]", "quad_perm:[2,3,0,1]", "row_half_mirror", "row_mirror"):
        a(f"""
        v_mov_b32_dpp v3, v5 {dpp} row_mask:0xf bank_mask:0xf
        v_mov_b32_dpp v6, v4 {dpp} row_mask:0xf bank_mask:0xf
        v_max_u32 v5, v5, v3
        v_med3_u32 v5, v4, v5, v6
        v_max_u32 v4, v4, v6
        s_nop 0
        """)
    for sw in ("v_permlane16_swap_b32", "v_permlane32_swap_b32"):
        a(f"""
        v_mov_b32 v3, v5
        v_mov_b32 v6, v4
        s_nop 0
        {sw} v5, v3
        {sw} v4, v6
        v_max_u32 v5, v5, v3
        v_med3_u32 v5, v4, v5, v6
        v_max_u32 v4, v4, v6
        """)
    a(f"""
    v_readfirstlane_b32 s53, v5
    v_readfirstlane_b32 s52, v4
    v_cndmask_b32 v3, v4, v5, s[10:11]
    v_not_b32 v3, v3
    s_cmp_eq_u64 s[52:53], s[46:47]
    s_cbranch_scc1 L2_ksame
    s_mov_b64 s[46:47], s[52:53]
    s_cmp_ge_u32 s2, 176
    s_cbranch_scc1 L2_ksame
    s_andn2_b32 s54, 0x7ff, s52
    s_andn2_b32 s55, 0x7ff, s53
    s_lshl_b32 s54, s54, 10
    s_lshl_b32 s55, s55, 10
    s_add_u32 s54, s54, {WS_H}
    s_add_u32 s55, s55, {WS_H}
    s_mov_b32 m0, {ROWS}
    v_and_b32 v3, 0x7ff, v3
    buffer_load_dwordx4 v{LN16}, s[{WS}:{WS+3}], s54 offen sc1 lds
    s_mov_b32 m0, {ROWS + 1040}
    v_lshlrev_b32 v9, 4, v3
    buffer_load_dwordx4 v{LN16}, s[{WS}:{WS+3}], s55 offen sc1 lds
    buffer_load_dwordx4 {vr(STT,4)}, v9, s[{WS}:{WS+3}], s51 offen sc1
    L2_ksame:
    s_cmp_lg_u64 s[62:63], 0
    s_cbranch_scc1 L2_kpoll
    @S6
    v_mov_b32 v0, {CNT + 16}
    ds_write_b64 v0, v[4:5]
    s_cmp_ge_u32 s2, 176
    s_cbranch_scc1 L2_bc
    s_cmp_ge_u32 s64, 172
    s_cselect_b32 s48, 0x100000, s64
    s_lshl_b32 s48, s48, {ASH}
    s_add_u32 s48, s48, {WS_ACT}
    s_waitcnt vmcnt(1)
    """)
    for q in range(12): a(f"ds_read_b128 {vr(breg(q),4)}, v10 offset:{ROWS + q*16}")
    for q in range(16):
        a(f"s_waitcnt lgkmcnt({min(11, 15 - q)})")
        a(f"{MF16} {vr(D,4)}, {vr(AF+4*q,4)}, {vr(breg(q),4)}, {'0' if q == 0 else vr(D,4)}")
        if q < 4: a(f"ds_read_b128 {vr(breg(q+12),4)}, v10 offset:{ROWS + (q+12)*16}")
    E = R_ + 8
    a(f"""
    L2_stw:
    s_waitcnt vmcnt(0)
    v_cmp_ne_u32 vcc, s{sEP}, v{STT+3}
    s_nop 2
    s_cbranch_vccnz L2_stre
    L2_stok:
    s_nop 1
    """)
    for r in range(4): a(f"v_fma_f32 v{D+r}, -v{STT}, v{D2+r}, v{D+r}")
    for r in range(4): a(f"v_mul_f32 v{D+r}, v{D+r}, v{STT+1}")
    for r in range(4): a(f"v_mov_b32 v{E+4+r}, v{D+r}")
    for r in range(4): a(f"v_mul_f32 v{E+r}, {hex(f2u(-LOG2E))}, v{D+r}")
    for r in range(4): a(f"v_exp_f32 v{E+r}, v{E+r}")
    for r in range(4): a(f"v_permlane32_swap_b32 v{D+r}, v{E+4+r}")
    for r in range(4): a(f"v_add_f32 v{E+r}, 1.0, v{E+r}")
    for r in range(4): a(f"v_rcp_f32 v{E+r}, v{E+r}")
    for r in range(4): a(f"v_mul_f32 v{D+r}, v{D+r}, v{E+4+r}")
    for r in range(4): a(f"v_mul_f32 v{D+r}, v{D+r}, v{E+r}")
    a(f"""
    v_cvt_pk_bf16_f32 v{R_+2}, v{D}, v{D+1}
    v_cvt_pk_bf16_f32 v{R_+3}, v{D+2}, v{D+3}
    s_mov_b64 exec, 0x00030003
    buffer_store_dwordx2 {vr(R_+2,2)}, v{R_}, s[{WS}:{WS+3}], s48 offen sc0 sc1
    s_mov_b64 exec, -1
    @S10
    s_branch L2_bc
    L2_stre:
    s_add_u32 s49, s49, 1
    s_cmp_gt_u32 s49, 0x40000
    s_cbranch_scc1 L2_stok
    buffer_load_dwordx4 {vr(STT,4)}, v9, s[{WS}:{WS+3}], s51 offen sc1
    s_branch L2_stw
    L2_nokey:
    """)
    outval()
    a("s_waitcnt vmcnt(0)\ns_barrier")
    BFR = 164
    a(f"""
    L2_bc:
    v_and_b32 v9, 15, v2
    v_lshrrev_b32 v10, 2, v9
    v_lshrrev_b32 v11, 4, v2
    v_lshl_add_u32 v10, v11, 3, v10
    v_lshlrev_b32 v10, 4, v10
    v_and_b32 v8, 1, v9
    v_lshl_add_u32 v10, v8, 3, v10
    s_mul_i32 s49, s45, 3
    v_add_u32 v10, s49, v10
    """)
    for s_ in range(6):
        a(f"ds_read_b64_tr_b16 {vr(AF+4*s_,2)}, v10 offset:{FW + s_*512}\nds_read_b64_tr_b16 {vr(AF+4*s_+2,2)}, v10 offset:{FW + s_*512 + 64}")
    a(f"""
    v_mov_b32 v0, {CNT + 16}
    s_lshl_b32 s48, s{sG}, 3
    v_add_u32 v8, s48, v{TOK}
    s_waitcnt lgkmcnt(0)
    s_barrier
    ds_read_b64 v[4:5], v0
    s_waitcnt lgkmcnt(0)
    v_not_b32 v4, v4
    v_not_b32 v5, v5
    v_and_b32 v4, 0x7ff, v4
    v_and_b32 v5, 0x7ff, v5
    v_cmp_ne_u32 vcc, v4, v8
    v_cmp_ne_u32 s[62:63], v5, v8
    s_and_b64 exec, vcc, s[62:63]
    buffer_store_dwordx4 {vr(OV,4)}, v{XO}, s[{OUT}:{OUT+3}], s44 offen {OSC}
    s_mov_b64 exec, -1
    s_sub_u32 s48, s2, 176
    s_cmp_lt_u32 s48, 64
    s_cbranch_scc1 L2_st2
    L2_fin:
    @D0 15 {WS} {sW}
    s_endpgm
    """)
    a("L2_st2:")
    a(f"""
    v_and_b32 v6, 8, v2
    v_cmp_ne_u32 vcc, 0, v6
    s_mov_b32 s48, {WS_H}
    s_mov_b32 s51, {WS_ST}
    v_cndmask_b32 v3, v4, v5, vcc
    v_lshlrev_b32 v12, 10, v3
    v_lshl_add_u32 v12, v1, 1, v12
    v_add_u32 v12, s61, v12
    v_lshlrev_b32 v18, 4, v3
    buffer_load_ushort v13, v12, s[{WS}:{WS+3}], s48 offen sc1
    v_and_b32 v6, 1, v2
    v_lshlrev_b32 v0, {ASH}, v11
    v_lshl_add_u32 v0, v6, 4, v0
    s_mul_i32 s48, s{sW}, {24 << ASH}
    s_add_u32 s48, s48, {WS_ACT}
    s_mov_b32 s49, 0
    L2_apoll:
    buffer_load_dwordx4 {vr(STT,4)}, v18, s[{WS}:{WS+3}], s51 offen sc1
    """)
    for s_ in range(6):
        a(f"buffer_load_dwordx4 {vr(BFR+4*s_,4)}, v0, s[{WS}:{WS+3}], s48 offen offset:{s_*(4 << ASH)} sc1")
    a(f"s_add_u32 s49, s49, 1\ns_waitcnt vmcnt(0)\nv_max3_u32 v3, v{BFR}, v{BFR+1}, v{BFR+2}")
    for q in range(3, 23, 2): a(f"v_max3_u32 v3, v{BFR+q}, v{BFR+q+1}, v3")
    a(f"""
    v_max_u32 v3, v{BFR+23}, v3
    v_cmp_eq_u32 vcc, -1, v3
    v_cmp_ne_u32 s[62:63], s{sEP}, v{STT+3}
    s_cmp_gt_u32 s49, 0x40000
    s_cbranch_scc1 L2_agot
    s_or_b64 {'exec' if '--amask' in sys.argv else 'vcc'}, vcc, s[62:63]
    s_cbranch_scc0 L2_agot
    {SLEEP}
    s_branch L2_apoll
    L2_agot:
    s_mov_b64 exec, -1
    @S10
    """)
    for s_ in range(6): a(f"{MF16} {vr(D,4)}, {vr(AF+4*s_,4)}, {vr(BFR+4*s_,4)}, {'0' if s_ == 0 else vr(D,4)}")
    a(f"""
    v_and_b32 v3, 1, v11
    v_lshlrev_b32 v0, 5, v6
    v_lshl_add_u32 v0, v3, 4, v0
    s_lshl_b32 s48, s{sW}, 6
    s_add_u32 s48, s48, {FR}
    v_add_u32 v0, s48, v0
    v_lshlrev_b32 v10, 2, v9
    v_lshl_add_u32 v10, v11, 7, v10
    v_add_u32 v10, {FR}, v10
    ds_write_b128 v0, {vr(D,4)}
    s_waitcnt lgkmcnt(0)
    s_barrier
    s_cmp_lg_u32 s{sW}, 0
    s_cbranch_scc1 L2_fin
    ds_read2_b32 v[14:15], v10 offset0:0 offset1:16
    v_mul_f32 v16, {hex(f2u(-LOG2E))}, v{STT+2}
    v_exp_f32 v16, v16
    v_lshlrev_b32 v13, 16, v13
    v_add_f32 v16, 1.0, v16
    v_rcp_f32 v16, v16
    v_sub_f32 v17, v13, v{STT}
    v_fma_f32 v13, v17, v{STT+1}, v13
    s_waitcnt lgkmcnt(0)
    v_add_f32 v14, v14, v15
    v_mov_b32 v15, v14
    s_nop 1
    v_permlane32_swap_b32 v14, v15
    v_add_f32 v14, v14, v15
    v_mov_b32 v15, v14
    s_nop 1
    v_permlane16_swap_b32 v14, v15
    v_add_f32 v14, v14, v15
    v_fma_f32 v14, v14, v16, v13
    v_cvt_pk_bf16_f32 v14, v14, v14
    s_mov_b64 exec, 0xffff
    buffer_store_short v14, v12, s[{OUT}:{OUT+3}], 0 offen {OSC}
    @Q {WS}
    @D0 15 {WS} {sW}
    L2_end:
    s_endpgm
    """)
    AB = 12
    def wl(reg, sb, f):
        a(f"buffer_load_dwordx4 {vr(reg,4)}, v{LN16}, s[{WS}:{WS+3}], s{sb} offen offset:{(f & 3)*1024} sc1")
        if f % 4 == 3: a(f"s_add_u32 s{sb}, s{sb}, 4096")
    NE = 10
    breg = lambda f: 40 + 4*f if f < NE else WO + 4*(f - NE)
    a(f"""
    L2_old:
    s_setprio 0
    v_mov_b32 v3, {CNT}
    v_mov_b32 v4, 1
    s_waitcnt lgkmcnt(0)
    s_mov_b64 exec, 1
    ds_add_u32 v3, v4
    s_mov_b64 exec, -1
    s_add_u32 s48, s51, {4*65536}
    v_mov_b32 v7, {1024 + 528}
    """)
    for i in range(4): a(f"ds_read_b128 {vr(ACC+4*i,4)}, v7\nds_read_b128 {vr(AB+4*i,4)}, v7")
    for f in range(NE): wl(breg(f), 48, f)
    a(f"""
    L2_spin:
    ds_read_b32 v4, v3
    s_waitcnt lgkmcnt(0)
    v_readfirstlane_b32 s49, v4
    s_cmp_ge_u32 s49, 4
    s_cbranch_scc1 L2_go
    s_sleep 2
    s_branch L2_spin
    L2_go:
    """)
    for s_ in range(4): a(f"ds_read_b128 {vr(BF[s_],4)}, v{BA} offset:{s_*128}")
    def half(acc, reg, after):
        for s_ in range(4):
            for i in range(4):
                f = 8*s_ + 2*i
                after(f, 0)
                a(f"{SM16} {vr(acc+4*i,4)}, {vr(BF[s_],4)}, {vr(reg(f),8)}, v{IDX}")
                after(f, 1)
    a(f"s_add_u32 s49, s51, {32768 + ((32 - NE)//4)*4096}\ns_waitcnt lgkmcnt(0)")
    def aftA(f, post):
        if not post: return
        for slot in (f, f + 1):
            if slot < 32 - NE: wl(WO + 4*slot, 48, slot + NE)
            else: wl(WO + 4*slot, 49, slot)
    half(ACC, lambda f: WO + 4*f, aftA)
    a(f"s_add_u32 s49, s51, 32768")
    def aftB(f, post):
        if not post:
            done = max(0, f - NE)
            a(f"s_waitcnt vmcnt({min(63, (31 - (f + 1)) + NE + done)})"); return
        for g in (f, f + 1):
            if g >= NE: wl(WO + 4*(g - NE), 49, g - NE)
    half(AB, breg, aftB)
    a("s_nop 5")
    for i in range(4): a(f"ds_write_b128 v{PA}, {vr(AB+4*i,4)} offset:{1024*i}")
    a("s_waitcnt vmcnt(0)\ns_setprio 1\ns_branch L2_join")
    a(f"""
    L2_slow:
    v_mov_b32 v{KA}, v{LN16}
    v_mov_b32 v{M}, 0xff7fffff
    s_mov_b32 s{sN}, 64
    L2_maxloop:
    ds_read_b128 {vr(KF,4)}, v{KA}
    v_add_u32 v{KA}, {TILE}, v{KA}
    s_waitcnt lgkmcnt(0)
    {MF32} {vr(S,16)}, {vr(KF,4)}, {vr(Q,4)}, 0
    s_sub_u32 s{sN}, s{sN}, 1
    s_nop 10
    """)
    for r in range(8): a(f"v_max3_f32 v{M}, v{S+2*r}, v{S+2*r+1}, v{M}")
    a(f"""
    s_cmp_lg_u32 s{sN}, 0
    s_cbranch_scc1 L2_maxloop
    v_mov_b32 v3, v{M}
    v_mov_b32 v{KA}, v{LN16}
    v_mov_b32 v{VA}, v{VA0}
    v_permlane32_swap_b32 v{M}, v3
    v_max_f32 v{M}, v{M}, v3
    """)
    for r in range(16): a(f"v_sub_f32 v{C+r}, 0, v{M}\nv_mov_b32 v{O+r}, 0")
    a(f"""
    s_mov_b32 s{sN}, 64
    L2_slowloop:
    ds_read_b128 {vr(KF,4)}, v{KA}
    ds_read_b128 {vr(VF,4)}, v{VA}
    ds_read_b128 {vr(VF+4,4)}, v{VA} offset:544
    v_add_u32 v{KA}, {TILE}, v{KA}
    v_add_u32 v{VA}, {TILE}, v{VA}
    s_waitcnt lgkmcnt(0)
    {MF32} {vr(S,16)}, {vr(KF,4)}, {vr(Q,4)}, {vr(C,16)}
    s_sub_u32 s{sN}, s{sN}, 1
    s_nop 10
    """)
    for i in range(16): a(f"v_exp_f32 v{S+i}, v{S+i}")
    a(f"""
    s_nop 1
    {SMF} {vr(O,16)}, {vr(VF,4)}, {vr(S,8)}, v{IDX}
    {SMF} {vr(O,16)}, {vr(VF+4,4)}, {vr(S+8,8)}, v{IDX}
    s_cmp_lg_u32 s{sN}, 0
    s_cbranch_scc1 L2_slowloop
    s_nop 11
    v_rcp_f32 v3, v{O+8}
    s_branch L2_epi
    """)
    k1_cold(a)
    return desc(KNAME, 256, 72)
def main():
    hdr = open("sequential_preLN__grouped_kv_mqa__moe_arch_mod__prompt.s.ref").read().split("\n")
    top = [l for l in hdr if l.startswith(";") and "@launch" not in l and "Override" not in l and "grid=ceil" not in l]
    a = Asm()
    k1(a)
    d = k2(a)
    out = "\n".join(top) + "\n"
    out += f"; @launch grid=(256,1,1) block=(512,1,1) lds={max(K1_LDS, K2_LDS)}\n"
    out += '.amdgcn_target "amdgcn-amd-amdhsa--gfx950"\n.text\n' + a.text() + '.section .rodata,"a"\n' + d
    sys.stdout.write(out)
main()
```

```python
import sys, struct
def f2u(x): return struct.unpack("<I", struct.pack("<f", x))[0]

WS_Q   = 0
WS_KV  = 2 << 20
WS_WO  = 3 << 20
WS_H   = 4 << 20

WS_ST  = (6 << 20) + 0x10000
WS_ACT = (6 << 20) + 0x20000
WS_KEY = WS_ACT + 0x10000
KSH = 7; ASH = 7; FSH = 4
for _x in sys.argv:
    if _x.startswith('--ksh='): KSH = int(_x.split('=')[1])
    if _x.startswith('--fsh='): FSH = int(_x.split('=')[1])
    if _x.startswith('--ash='): ASH = int(_x.split('=')[1])
WS_FLG = WS_KEY + 0x10000
WS_QB = 7 << 20
sEP = 68
KNAME = 'sequential_preLN__grouped_kv_mqa__moe_arch_mod__prompt_kernel'
WS_SIZE = 8 << 20
TILE = 2112
QSCALE = 0.25 * 1.4426950408889634
EPS = 1e-5
SHIFT = 96.0
for _x in sys.argv:
    if _x.startswith('--shift='): SHIFT = float(_x.split('=')[1])

class Asm:
    def __init__(self): self.l = []
    def __call__(self, s):
        for x in s.split("\n"):
            x = x.strip()
            if x.startswith("@S"): stamp(self, int(x[2:])); continue
            if x.startswith("@P"): padstore(self, *[int(t) for t in x[2:].split()]); continue
            if x.startswith("@Q"): padspin(self, *[int(t) for t in x[2:].split()]); continue
            if x.startswith("@T"): padstamp(self, int(x[2:])); continue
            if x.startswith("@D"): dump(self, *[int(t) for t in x[2:].split()]); continue
            if x: self.l.append(("" if x.endswith(":") else "    ") + x)
    def text(self): return "\n".join(self.l) + "\n"

def srd(a, d, p, size):
    a(f"s_mov_b32 s{d}, s{p}\ns_and_b32 s{d+1}, s{p+1}, 0xffff\ns_mov_b32 s{d+2}, {size}\ns_mov_b32 s{d+3}, 0x20000")
def vr(b, n): return f"v[{b}:{b+n-1}]"
def head(a, name):
    a(f".globl {name}\n.p2align 8\n.type {name},@function\n{name}:")
def desc(name, nv, ns):
    return f""".p2align 6
.amdhsa_kernel {name}
  .amdhsa_next_free_vgpr {nv}
  .amdhsa_next_free_sgpr {102 if (DIAG or PAD is not None or '--tsync' in sys.argv) else ns}
  .amdhsa_accum_offset {(nv+3)//4*4}
  .amdhsa_group_segment_fixed_size 0
  .amdhsa_kernarg_size 104
  .amdhsa_user_sgpr_count 2
  .amdhsa_user_sgpr_kernarg_segment_ptr 1
  .amdhsa_system_sgpr_workgroup_id_x 1
.end_amdhsa_kernel
"""
DIAG = "--diag" in sys.argv
WS_DIAG = 16 << 20
if DIAG: WS_SIZE = 32 << 20
LIGHT = '--light' in sys.argv
def stamp(a, i, force=False):
    if LIGHT and i != 0 and not force: return
    if DIAG: a(f"{'s_memtime' if i >= 13 else 's_memrealtime'} s[{70+2*i}:{71+2*i}]\ns_waitcnt lgkmcnt(0)")
DIAG2 = "--diag2" in sys.argv
D2SEL = {0: [(0, 1), (2, 0), (8, 0)], 1: [(0, 1), (1, 0), (3, 0), (4, 0), (8, 0), (10, 0), (12, 0)], 2: [(0, 1), (1, 0), (3, 0), (5, 0), (6, 0), (7, 0)]}
_dl = [0]
def dump(a, kidx, n, WS, sW):
    if not DIAG: return
    stamp(a, min(n - 1, 12), True)
    if DIAG2:
        _dl[0] += 1
        base = sum(len(D2SEL[k]) for k in range(kidx))
        a(f"s_and_b32 s98, s2, 15\ns_cmp_lg_u32 s98, 0\ns_cbranch_scc1 LD_{_dl[0]}\ns_load_dwordx2 s[98:99], s[0:1], 88\ns_mov_b64 exec, 1\nv_mov_b32 v1, 0\ns_waitcnt lgkmcnt(0)\ns_add_u32 s98, s98, {512*(2-kidx)}\ns_addc_u32 s99, s99, 0")
        for j, (i, inv) in enumerate(D2SEL[kidx]):
            a(f"v_mov_b32 v0, s{70+2*i}")
            if inv: a("v_not_b32 v0, v0")
            a(f"global_atomic_umax v1, v0, s[98:99] offset:{4*(base+j)}\ns_nop 1")
        a(f"LD_{_dl[0]}:")
        return
    a(f"s_mov_b64 exec, 1\ns_lshl_b32 s69, s2, 4\ns_add_u32 s69, s69, s{sW}\ns_lshl_b32 s69, s69, 6\ns_add_u32 s69, s69, {WS_DIAG + kidx * (1 << 20)}\nv_mov_b32 v1, 0")
    for i in range(n):
        a(f"v_mov_b32 v0, s{70+2*i}\nbuffer_store_dword v0, v1, s[{WS}:{WS+3}], s69 offen offset:{4*i}")
PAD = [int(x.split("=")[1]) for x in sys.argv if x.startswith("--pad=")]
PAD = PAD[0] if PAD else None
WS_PAD = (6 << 20)
def padstamp(a, k):
    if PAD == k: a("s_memrealtime s[94:95]\ns_waitcnt lgkmcnt(0)")
def padstore(a, k, WS, sW): pass
def padspin(a, WS):
    if PAD is None: return
    a(f"s_mov_b32 s97, 0\nLQ_spin:\ns_memrealtime s[92:93]\ns_waitcnt lgkmcnt(0)\ns_sub_u32 s98, s92, s94\ns_add_u32 s97, s97, 1\ns_cmp_gt_u32 s97, 100000\ns_cbranch_scc1 LQ_done\ns_cmp_lt_u32 s98, 6000\ns_cbranch_scc1 LQ_spin\nLQ_done:")
MF32 = "v_mfma_f32_32x32x16_bf16"
MF16 = "v_mfma_f32_16x16x32_bf16"

ZERO_KB = 8
K1_KV = 131072
K1_CS = 147456
K1_KC = K1_CS + 1024
K1_KP = K1_KC + 1024
K1_PS = K1_KP + 4096
K1_EP = K1_PS + 1024
K1_LDS = K1_EP + 64
QSC = 'sc1' if '--qsc1' in sys.argv else '' if '--qplain' in sys.argv else 'sc0 sc1'
CODE_SPAN = 18600
WOC = 1 if '--woc1' in sys.argv else 2
def rowstat(a, s, m, r):
    a(f"""
    v_add_f32 v{m}, v{s}, v{s+2}
    v_add_f32 v{r}, v{s+1}, v{s+3}
    v_mul_f32 v{m}, {hex(f2u(-1.0/512))}, v{m}
    v_mul_f32 v{r}, {hex(f2u(1.0/512))}, v{r}
    v_fma_f32 v{r}, -v{m}, v{m}, v{r}
    v_max_f32 v{r}, 0, v{r}
    """)
    if "--exactln" in sys.argv:
        a(f"v_add_f32 v{r}, {hex(f2u(EPS))}, v{r}\nv_rsq_f32 v{r}, v{r}")
        return
    a(f"""
    v_cvt_pk_bf16_f32 v{r}, v{m}, v{r}
    v_lshlrev_b32 v{m}, 16, v{r}
    v_and_b32 v{r}, 0xffff0000, v{r}
    v_add_f32 v{r}, {hex(f2u(EPS))}, v{r}
    v_cvt_pk_bf16_f32 v{r}, v{r}, v{r}
    v_and_b32 v{r}, 0xffff0000, v{r}
    v_sqrt_f32 v{r}, v{r}
    s_nop 0
    v_cvt_pk_bf16_f32 v{r}, v{r}, v{r}
    v_and_b32 v{r}, 0xffff0000, v{r}
    v_rcp_f32 v{r}, v{r}
    """)
def split_ab(a, src, dst, kind):
    a(f"v_and_b32 v11, 0xffff0000, v{src}\nv_sub_f32 v12, v{src}, v11")
    if kind == "m": a(f"v_cvt_pk_bf16_f32 v{dst}, v11, v12\nv_cvt_pk_bf16_f32 v{dst+1}, v11, 0")
    else: a(f"v_cvt_pk_bf16_f32 v{dst}, v11, v11\nv_cvt_pk_bf16_f32 v{dst+1}, v12, 0")
def k1(a):
    X, WQ, WKV, WO, WS = 16, 20, 24, 32, 36
    sW, sTG, sCG = 40, 41, 42
    DBG = 28
    ONES = 69
    VL = 13
    head(a, KNAME)
    a(f"""
    s_cmp_ge_u32 s2, 256
    s_cbranch_scc1 L2_end
    @S0
    @T0
    s_load_dwordx8 s[4:11], s[0:1], 0
    s_load_dwordx2 s[12:13], s[0:1], 32
    s_load_dwordx2 s[14:15], s[0:1], 96
    s_load_dwordx2 s[64:65], s[0:1], 88
    v_lshrrev_b32 v1, 6, v0
    v_and_b32 v2, 63, v0
    v_readfirstlane_b32 s{sW}, v1
    s_and_b32 s43, s2, 7
    s_lshr_b32 s44, s2, 3
    s_and_b32 s45, s44, 3
    s_lshl_b32 s{sTG}, s43, 2
    s_add_u32 s{sTG}, s{sTG}, s45
    s_lshr_b32 s{sCG}, s44, 2
    v_and_b32 v3, 15, v2
    v_lshrrev_b32 v4, 4, v2
    v_lshlrev_b32 v{VL}, 4, v2
    s_and_b32 s46, s{sW}, 3
    s_lshl_b32 s50, s46, 12
    s_and_b32 s58, s{sCG}, 3
    s_cmp_lt_u32 s{sW}, 4
    s_cbranch_scc1 L1_gemm
    """)
    VX, VW, WT, CS, WR, XR = 8, 12, 24, 70, 48, 32
    pass
    for i in range(4):
        a(f"v_add_u32 v7, {4*i}, v4\nv_xor_b32 v{VX+i}, v7, v3\nv_lshlrev_b32 v{VX+i}, 4, v{VX+i}\nv_lshl_add_u32 v{VX+i}, v7, 10, v{VX+i}")
    a(f"""
    v_lshrrev_b32 v7, 3, v2
    v_and_b32 v{VW}, 1, v4
    v_lshlrev_b32 v{VW}, 2, v{VW}
    v_and_b32 v14, 7, v2
    v_xor_b32 v{VW}, v{VW}, v14
    v_lshlrev_b32 v{VW}, 4, v{VW}
    v_lshl_add_u32 v{VW}, v7, 10, v{VW}
    s_lshl_b32 s48, s{sTG}, 16
    s_lshl_b32 s43, s46, 14
    s_add_u32 s48, s48, s43
    s_lshl_b32 s49, s46, 15
    s_lshl_b32 s43, s{sCG}, 7
    s_add_u32 s49, s49, s43
    {'s_mov_b32 s55, 0' if '--norot' in sys.argv else f's_add_u32 s55, s{sCG}, s{sTG}'}
    s_waitcnt lgkmcnt(0)
    """)
    srd(a, X, 4, 2 << 20)
    def chunk(c, sh): a(f"s_add_u32 s43, s55, {c}\ns_and_b32 s43, s43, 3\ns_lshl_b32 s43, s43, {sh}")
    def issx(c):
        chunk(c, 8); a("s_add_u32 s51, s48, s43")
        for i in range(4):
            a(f"s_add_u32 m0, s50, {c*16384 + i*1024}\ns_nop 0\nbuffer_load_dwordx4 v{VX+i}, s[{X}:{X+3}], s51 offen lds")
    def issw(c):
        chunk(c, 17); a("s_add_u32 s51, s49, s43")
        for i in range(4):
            a(f"s_add_u32 m0, s50, {65536 + c*16384 + i*1024}\ns_add_u32 s52, s51, {8*i*1024}\nbuffer_load_dwordx4 v{VW}, s[{WQ}:{WQ+3}], s52 offen lds")
    def isskv(c):
        chunk(c, 12)
        a(f"s_add_u32 m0, s61, {K1_KV + c*4096}\ns_add_u32 s52, s61, s43\nbuffer_load_dwordx4 v{VL}, s[{WKV}:{WKV+3}], s52 offen lds")
    issx(0)
    a(f"s_cmp_ge_u32 s{sCG}, 4\ns_cselect_b32 s8, s10, s8\ns_cselect_b32 s9, s11, s9\ns_lshl_b32 s61, s46, 10")
    srd(a, WKV, 8, 16 << 10)
    isskv(0); issx(1); isskv(1)
    srd(a, WQ, 6, 512 << 10)
    a(f"""
    v_mov_b32 v{ONES}, 0x3f803f80
    v_add_u32 v30, {K1_KC}, v{VL}
    s_lshl_b32 s43, s58, 8
    s_add_u32 s43, s43, {K1_PS}
    v_lshl_add_u32 v31, v3, 4, s43
    s_lshl_b32 s56, s{sTG}, 1
    s_lshr_b32 s43, s58, 1
    s_add_u32 s56, s56, s43
    s_mul_i32 s56, s56, {TILE}
    s_add_u32 s56, s56, {WS_KV}
    s_and_b32 s57, s58, 1
    s_lshl_b32 s43, s57, 8
    s_mul_i32 s44, s57, 544
    s_add_u32 s44, s44, 1024
    s_cmp_ge_u32 s{sCG}, 4
    s_cselect_b32 s43, s44, s43
    s_cselect_b64 s[62:63], -1, 0
    s_add_u32 s56, s56, s43
    v_and_b32 v14, 1, v4
    v_lshrrev_b32 v15, 1, v4
    v_lshlrev_b32 v26, 9, v14
    v_lshl_add_u32 v26, v15, 3, v26
    v_lshlrev_b32 v27, 8, v15
    v_lshl_add_u32 v27, v14, 3, v27
    v_cndmask_b32 v26, v26, v27, s[62:63]
    v_lshl_add_u32 v26, v3, 4, v26
    v_lshlrev_b32 v27, 4, v4
    v_lshlrev_b32 v28, 2, v3
    v_cndmask_b32 v27, v28, v27, s[62:63]
    v_cndmask_b32 v28, 0, 4, s[62:63]
    v_mov_b32 v29, 0x7fff0000
    v_mov_b32 v74, 0
    v_mov_b32 v75, 0
    v_mov_b32 v78, 0
    v_mov_b32 v79, 0
    """)
    srd(a, WS, 14, WS_SIZE); srd(a, DBG, 64, 256)
    a(f"v_mov_b32 v93, {K1_EP}\nv_mov_b32 v94, 0")
    size = [5, 5, 5, 5, 4, 4, 4, 4]
    for g in range(5):
        if g + 2 < 4: issx(g + 2); isskv(g + 2)
        else: issw(g - 2)
        a(f"s_waitcnt vmcnt({sum(size[g+1:g+3])})\ns_barrier")
    a(f"buffer_load_dword v66, v94, s[{DBG}:{DBG+3}], 0 offen sc1")
    issw(3)
    a(f"""
    s_cmp_eq_u32 s46, 0
    s_cbranch_scc1 L1_fin
    s_waitcnt vmcnt(9)
    s_barrier
    s_waitcnt vmcnt(5)
    s_barrier
    s_waitcnt vmcnt(0)
    v_readfirstlane_b32 s{sEP}, v66
    s_cmp_eq_u32 s{sEP}, 0
    s_cbranch_scc1 L1_tag
    L1_tagok0:
    ds_write_b32 v93, v66
    s_waitcnt lgkmcnt(0)
    s_barrier
    s_branch L2_start
    L1_fin:
    ds_read_b128 v[80:83], v31
    ds_read_b128 v[84:87], v30
    ds_read_b128 {vr(XR,4)}, v30 offset:1024
    ds_read_b128 {vr(XR+4,4)}, v30 offset:2048
    ds_read_b128 {vr(XR+8,4)}, v30 offset:3072
    ds_read_b128 {vr(XR+12,4)}, v30 offset:4096
    s_waitcnt lgkmcnt(4)
    """)
    rowstat(a, 80, 8, 9)
    a(f"""
    v_add_f32 v84, v84, v85
    v_add_f32 v86, v86, v87
    ds_bpermute_b32 v88, v27, v9
    v_add_u32 v27, v27, v28
    ds_bpermute_b32 v89, v27, v9
    v_add_u32 v27, v27, v28
    ds_bpermute_b32 v90, v27, v9
    v_add_u32 v27, v27, v28
    ds_bpermute_b32 v91, v27, v9
    v_add_f32 v84, v84, v86
    v_cndmask_b32 v85, v84, v8, s[62:63]
    v_cndmask_b32 v86, v8, v84, s[62:63]
    """)
    split_ab(a, 85, 72, "c"); split_ab(a, 86, 76, "m")
    a("s_waitcnt lgkmcnt(4)")
    for r in range(4):
        a(f"v_add_f32 v{XR+r}, v{XR+r}, v{XR+4+r}\nv_add_f32 v{XR+8+r}, v{XR+8+r}, v{XR+12+r}")
    for r in range(4): a(f"v_add_f32 v{XR+r}, v{XR+r}, v{XR+8+r}")
    a(f"""
    v_cmp_gt_u32 vcc, 4, v2
    v_lshlrev_b32 v12, 2, v2
    {MF16} {vr(XR,4)}, v[72:75], v[76:79], {vr(XR,4)}
    v_cndmask_b32 v14, 0, v{ONES}, vcc
    s_and_b64 s[62:63], s[62:63], 0xff
    s_waitcnt lgkmcnt(0)
    s_nop 4
    """)
    for r in range(4): a(f"v_mul_f32 v{XR+r}, v{88+r}, v{XR+r}")
    a(f"""
    v_cvt_pk_bf16_f32 v{XR}, v{XR}, v{XR+1}
    v_cvt_pk_bf16_f32 v{XR+1}, v{XR+2}, v{XR+3}
    buffer_store_dwordx2 {vr(XR,2)}, v26, s[{WS}:{WS+3}], s56 offen sc0 sc1
    v_cndmask_b32 v12, v29, v12, s[62:63]
    buffer_store_dword v14, v12, s[{WS}:{WS+3}], s56 offen offset:512 sc0 sc1
    s_lshl_b32 s43, s2, {FSH}
    s_add_u32 s43, s43, {WS_FLG}
    v_mov_b32 v7, 0
    s_waitcnt vmcnt(11)
    s_barrier
    s_waitcnt vmcnt(7)
    s_barrier
    {'s_waitcnt vmcnt(2)' if '--fb' in sys.argv else ''}
    {'s_barrier' if '--fb' in sys.argv else ''}
    s_waitcnt vmcnt(0)
    v_readfirstlane_b32 s{sEP}, v66
    s_cmp_eq_u32 s{sEP}, 0
    s_cbranch_scc1 L1_tag
    L1_tagok1:
    s_mov_b64 exec, 1
    buffer_store_dword v66, v7, s[{WS}:{WS+3}], s43 offen sc0 sc1
    s_mov_b64 exec, -1
    @S1
    {'' if '--fb' in sys.argv else 's_barrier'}
    s_branch L2_start
    """)
    D1 = 16
    XF, WF = 120, 32
    XA, WA, WB, WOD = 72, 68, 70, 80
    KX, KW = 92, 93
    SX, SXX, KC, KD = 14, 15, 71, 96
    KF = 104
    a(f"""
    L1_gemm:
    v_and_b32 v5, 31, v2
    v_lshrrev_b32 v6, 5, v2
    s_and_b32 s53, s{sW}, 1
    s_lshr_b32 s54, s{sW}, 1
    s_lshl_b32 s59, s2, 1
    s_add_u32 s59, s59, s53
    s_lshr_b32 s43, s59, 6
    s_lshl_b32 s47, s43, 7
    s_lshr_b32 s44, s59, 3
    s_and_b32 s44, s44, 7
    s_lshl_b32 s44, s44, 16
    s_add_u32 s47, s47, s44
    s_lshl_b32 s44, s53, 15
    s_add_u32 s47, s47, s44
    s_and_b32 s44, s59, 2
    s_lshl_b32 s44, s44, 5
    s_add_u32 s47, s47, s44
    s_and_b32 s44, s59, 4
    s_lshr_b32 s44, s44, 1
    s_add_u32 s47, s47, s44
    v_lshlrev_b32 v7, 2, v3
    v_lshl_add_u32 v7, v6, 14, v7
    v_and_b32 v8, 1, v4
    v_lshl_add_u32 v7, v8, 12, v7
    v_add_u32 v8, 8192, v7
    s_waitcnt lgkmcnt(0)
    """)
    if "--pf" in sys.argv:
        a(f"""
        s_lshr_b32 s43, s2, 3
        s_lshl_b32 s43, s43, 14
        s_lshl_b32 s44, s53, 13
        s_add_u32 s43, s43, s44
        s_lshl_b32 s44, s{sTG}, 16
        s_lshl_b32 s45, s{sCG}, 13
        s_add_u32 s44, s44, s45
        s_cmp_eq_u32 s{sW}, 3
        s_cselect_b32 s44, 0x400000, s44
        s_cmp_ge_u32 s{sW}, 2
        s_cselect_b32 s43, s44, s43
        s_cselect_b32 s{X}, s4, s6
        s_cselect_b32 s{X+1}, s5, s7
        s_mov_b32 s{X+2}, 0x80000
        s_cselect_b32 s{X+2}, 0x200000, s{X+2}
        s_and_b32 s{X+1}, s{X+1}, 0xffff
        s_mov_b32 s{X+3}, 0x20000
        v_lshlrev_b32 v9, 7, v2
        buffer_load_dword v252, v9, s[{X}:{X+3}], s43 offen
        """)
    srd(a, WO, 12, 512 << 10); srd(a, WS, 14, WS_SIZE); srd(a, DBG, 64, 256)
    a(f"s_cmp_ge_u32 s{sW}, 2\ns_cbranch_scc1 L1_nowo")
    for j in range(8):
        ro = (0, 1, 8, 9, 2, 3, 10, 11)[j]
        a(f"buffer_load_ushort v{WOD + j}, v{7 + ro//8}, s[{WO}:{WO+3}], s47 offen offset:{(ro & 3) * 1024}")
    a(f"""
    s_branch L1_noz
    L1_nowo:
    s_cmp_eq_u32 s{sW}, 2
    s_cbranch_scc1 L1_ini
    """)
    if "--tlb" in sys.argv:
        a(f"""
        s_load_dwordx8 s[16:23], s[0:1], 48
        s_load_dwordx2 s[24:25], s[0:1], 80
        v_lshlrev_b32 v9, 20, v2
        s_mov_b64 exec, 0xff
        buffer_load_dword v252, v9, s[{WS}:{WS+3}], 0 offen offset:2048
        s_mov_b64 exec, 1
        global_load_dword v253, v9, s[6:7]
        s_waitcnt lgkmcnt(0)
        global_load_dword v253, v9, s[16:17]
        global_load_dword v253, v9, s[18:19]
        global_load_dword v253, v9, s[20:21]
        global_load_dword v253, v9, s[22:23]
        global_load_dword v253, v9, s[24:25]
        s_mov_b64 exec, -1
        """)
    a(f"""
    s_cmp_lg_u32 s2, 0
    s_cbranch_scc1 L1_noz
    s_memrealtime s[44:45]
    v_mov_b32 v9, 0
    s_waitcnt lgkmcnt(0)
    s_or_b32 s44, s44, 1
    v_mov_b32 v{WOD}, s44
    s_mov_b64 exec, 1
    buffer_store_dword v{WOD}, v9, s[{DBG}:{DBG+3}], 0 offen sc0 sc1
    s_mov_b64 exec, -1
    s_branch L1_noz
    L1_ini:
    s_cmp_lt_u32 s2, 172
    s_cselect_b32 s44, -1, 0
    v_mov_b32 v{WOD}, s44
    v_mov_b32 v{WOD+1}, 0
    v_lshlrev_b32 v9, 2, v2
    s_lshl_b32 s43, s2, {ASH}
    s_add_u32 s43, s43, {WS_ACT}
    s_lshl_b32 s44, s2, {KSH}
    s_add_u32 s44, s44, {WS_KEY}
    s_mov_b64 exec, 0xff
    buffer_store_dword v{WOD}, v9, s[{WS}:{WS+3}], s43 offen sc0 sc1
    s_mov_b64 exec, 3
    buffer_store_dword v{WOD+1}, v9, s[{WS}:{WS+3}], s44 offen sc0 sc1
        s_mov_b64 exec, -1
    L1_noz:
    """)
    if "--cpf" in sys.argv:
        a(f"""
        s_getpc_b64 s[44:45]
        s_and_b32 s44, s44, 0xffffff00
        s_lshr_b32 s43, s2, 3
        s_lshl_b32 s43, s43, 2
        s_add_u32 s43, s43, s{sW}
        s_lshl_b32 s43, s43, 8
        v_lshl_add_u32 v9, v2, 2, s43
        v_min_u32 v9, {CODE_SPAN}, v9
        global_load_dword v252, v9, s[44:45]
        """)
    a(f"""
    s_lshl_b32 s43, s54, 1
    v_xor_b32 v12, s43, v3
    s_lshl_b32 s43, s53, 13
    v_lshlrev_b32 v9, 8, v5
    v_add_u32 v9, s43, v9
    """)
    for j in range(8):
        a(f"v_add_u32 v10, {2*j}, v6\nv_xor_b32 v10, v10, v12\nv_lshl_add_u32 v{XA+j}, v10, 4, v9")
    a(f"""
    v_lshrrev_b32 v9, 2, v3
    v_lshl_add_u32 v10, v6, 3, v9
    v_lshlrev_b32 v10, 7, v10
    v_lshrrev_b32 v11, 1, v9
    v_xor_b32 v11, s54, v11
    v_lshl_add_u32 v10, v11, 6, v10
    v_and_b32 v11, 1, v4
    v_lshl_add_u32 v10, v11, 5, v10
    v_and_b32 v11, 3, v3
    v_lshl_add_u32 v10, v11, 3, v10
    s_lshl_b32 s43, s54, 11
    s_add_u32 s44, s43, 0x10000
    s_sub_u32 s43, {0x10000 + 2048}, s43
    v_add_u32 v{WA}, s44, v10
    v_add_u32 v{WB}, s43, v10
    v_lshl_add_u32 v{KW}, v4, 3, v9
    v_lshlrev_b32 v{KW}, 5, v{KW}
    v_lshl_add_u32 v{KW}, v11, 3, v{KW}
    s_lshl_b32 s43, s46, 10
    s_add_u32 s43, s43, {K1_KV}
    v_add_u32 v{KW}, s43, v{KW}
    s_lshl_b32 s43, s46, 2
    v_add_u32 v{KX}, s43, v4
    v_xor_b32 v{KX}, v{KX}, v3
    v_lshlrev_b32 v{KX}, 4, v{KX}
    v_lshl_add_u32 v{KX}, v3, 8, v{KX}
    s_lshl_b32 s43, s58, 12
    v_add_u32 v{KX}, s43, v{KX}
    v_lshrrev_b32 v64, 3, v5
    v_lshlrev_b32 v64, 13, v64
    v_and_b32 v11, 7, v5
    v_lshl_add_u32 v64, v11, 4, v64
    v_lshl_add_u32 v64, v6, 9, v64
    s_lshl_b32 s60, s{sTG}, 16
    s_lshl_b32 s44, s53, 15
    s_add_u32 s60, s60, s44
    s_lshl_b32 s44, s{sCG}, 10
    s_add_u32 s60, s60, s44
    s_lshl_b32 s44, s54, 8
    s_add_u32 s60, s60, s44
    s_add_u32 s60, s60, {WS_Q}
    s_lshl_b32 s43, s53, 9
    s_add_u32 s43, s43, {K1_PS}
    v_lshl_add_u32 v67, v5, 4, s43
    s_lshl_b32 s43, s54, 3
    v_lshl_add_u32 v65, v6, 2, v67
    v_add_u32 v65, s43, v65
    s_lshl_b32 s43, s46, 2
    s_add_u32 s43, s43, {K1_KC}
    v_add_u32 v94, s43, v{VL}
    s_lshl_b32 s43, s46, 10
    s_add_u32 s43, s43, {K1_KP}
    v_add_u32 v95, s43, v{VL}
    s_lshl_b32 s59, s59, 10
    s_add_u32 s59, s59, {WS_WO}
    s_cmp_ge_u32 s{sW}, 2
    s_cselect_b32 s59, {WS_SIZE}, s59
    s_cmp_ge_u32 s{sCG}, 4
    s_cselect_b64 s[62:63], -1, 0
    v_mov_b32 v{ONES}, 0x3f803f80
    v_mov_b32 v{SX}, 0
    v_mov_b32 v{SXX}, 0
    v_mov_b32 v{KC}, 0
    v_mov_b32 v90, 0
    v_mov_b32 v91, 0
    v_mov_b32 v250, 0
    v_mov_b32 v251, 0
    """)
    def xreads(c):
        kx, kw = KF + 8*(c & 1), KF + 8*(c & 1) + 4
        for u in (0, 2, 4, 6): a(f"ds_read_b128 {vr(XF+32*c+4*u,4)}, v{XA+u} offset:{c*16384}")
        a(f"ds_read_b128 {vr(kx,4)}, v{KX} offset:{c*16384}")
        a(f"ds_read_b64_tr_b16 {vr(kw,2)}, v{KW} offset:{c*4096}\nds_read_b64_tr_b16 {vr(kw+2,2)}, v{KW} offset:{c*4096+128}")
        for u in (1, 3, 5, 7): a(f"ds_read_b128 {vr(XF+32*c+4*u,4)}, v{XA+u} offset:{c*16384}")
    def wread(ks):
        ar = WB if ks & 1 else WA
        off = (ks & ~1) * 2048
        a(f"ds_read_b64_tr_b16 {vr(WF+4*(ks&7),2)}, v{ar} offset:{off}\nds_read_b64_tr_b16 {vr(WF+4*(ks&7)+2,2)}, v{ar} offset:{off + 512}")
    def work(c):
        kx, kw = KF + 8*(c & 1), KF + 8*(c & 1) + 4
        for u in (0, 2, 4, 6):
            a(f"s_waitcnt lgkmcnt({10 - u//2})")
            for q in range(4): a(f"v_dot2c_f32_bf16 v{SX}, v{XF+32*c+4*u+q}, v{ONES}\nv_dot2c_f32_bf16 v{SXX}, v{XF+32*c+4*u+q}, v{XF+32*c+4*u+q}")
        a("s_waitcnt lgkmcnt(4)")
        for q in range(4): a(f"v_dot2c_f32_bf16 v{KC}, v{kw+q}, v{ONES}")
        a(f"{MF16} {vr(KD,4)}, {vr(kw,4)}, {vr(kx,4)}, {'0' if c == 0 else vr(KD,4)}")
        a(f"{MF16} {vr(KD+4,4)}, {vr(kx,4)}, {vr(kw,4)}, {'0' if c == 0 else vr(KD+4,4)}")
    for c in range(4):
        a("s_barrier")
        if c == 0: a("@T3")
        xreads(c)
        work(c)
        if c == WOC:
            a(f"""
            s_waitcnt vmcnt(0)
            v_lshl_or_b32 v{WOD}, v{WOD+1}, 16, v{WOD}
            v_lshl_or_b32 v{WOD+1}, v{WOD+3}, 16, v{WOD+2}
            v_lshl_or_b32 v{WOD+2}, v{WOD+5}, 16, v{WOD+4}
            v_lshl_or_b32 v{WOD+3}, v{WOD+7}, 16, v{WOD+6}
            buffer_store_dwordx4 {vr(WOD,4)}, v{VL}, s[{WS}:{WS+3}], s59 offen sc0 sc1
            """)
    a(f"""
    v_permlane32_swap_b32 v{SX}, v{SXX}
    s_nop 0
    ds_write_b32 v94, v{KC}
    v_add_f32 v{SX}, v{SX}, v{SXX}
    v_mov_b32 v7, {K1_EP}
    ds_write_b32 v65, v{SX}
    s_nop 1
    """)
    for r in range(4): a(f"v_cndmask_b32 v{KD+r}, v{KD+r}, v{KD+4+r}, s[62:63]")
    a(f"ds_write_b128 v95, {vr(KD,4)}\nds_write_b32 v7, v90 offset:8\nv_mov_b32 v{SXX}, 0\ns_waitcnt lgkmcnt(0)\ns_barrier\n@T4\n@S2")
    for ks in range(7): wread(ks)
    a("s_waitcnt lgkmcnt(12)")
    wread(7)
    for g in range(8):
        a(f"s_waitcnt lgkmcnt({8 if g < 7 else 0})")
        for ks in range(4*g, 4*g + 4):
            for q in range(4): a(f"v_dot2c_f32_bf16 v{SXX}, v{WF+4*(ks&7)+q}, v{ONES}")
        if g == 2: a("s_waitcnt vmcnt(0)")
        if g % 2 == 0 and g < 6: a("s_barrier")
        if g == 2: a("ds_read_b128 v[84:87], v67")
        if g == 4: a("@S10\nds_read_b32 v66, v7")
        if g == 2: a("@S6")
        if g == 0: a("@S5")
        if g == 6: a(f"v_readfirstlane_b32 s{sEP}, v66")
        for ks in range(4*g, 4*g + 4):
            a(f"{MF32} {vr(D1,16)}, {vr(WF+4*(ks&7),4)}, {vr(XF+4*ks,4)}, {'0' if ks == 0 else vr(D1,16)}")
            if ks + 8 < 32: wread(ks + 8)
            if ks == 16: rowstat(a, 84, 8, 9)
            if ks == 17: split_ab(a, 8, 88, "m"); a(f"v_mul_f32 v10, {hex(f2u(QSCALE))}, v9")
            if ks == 29: a("s_nop 0"); split_ab(a, SXX, 248, "c")
    a(f"""
    {MF32} {vr(D1,16)}, v[248:251], v[88:91], {vr(D1,16)}
    v_mov_b32 v35, v66
    v_mov_b32 v39, v66
    v_mov_b32 v43, v66
    v_lshrrev_b32 v44, 3, v5
    v_lshlrev_b32 v44, 12, v44
    v_and_b32 v11, 7, v5
    v_lshl_add_u32 v44, v11, 4, v44
    v_lshl_add_u32 v44, v6, 8, v44
    s_sub_u32 s61, s60, {WS_Q}
    s_lshr_b32 s61, s61, 1
    s_add_u32 s61, s61, {WS_QB}
    s_nop 0
    """)
    dst = [32, 33, 34, 36, 40, 41, 42, 37]
    for r in range(8):
        a(f"v_mul_f32 v{D1+2*r}, v10, v{D1+2*r}\nv_mul_f32 v{D1+2*r+1}, v10, v{D1+2*r+1}\nv_cvt_pk_bf16_f32 v{dst[r]}, v{D1+2*r}, v{D1+2*r+1}")
        if r == 2: a(f"buffer_store_dwordx4 v[32:35], v64, s[{WS}:{WS+3}], s60 offen {QSC}")
        if r == 6: a(f"buffer_store_dwordx4 v[40:43], v64, s[{WS}:{WS+3}], s60 offen offset:128 {QSC}")
    a(f"""
    buffer_store_dwordx4 v[36:39], v44, s[{WS}:{WS+3}], s61 offen {QSC}
    @T5
    @S1
    """)
def k1_cold(a):
    DBG = 28
    a(f"""
    L1_tag:
    s_mov_b32 s47, 0
    L1_tagl:
    buffer_load_dword v66, v94, s[{DBG}:{DBG+3}], 0 offen sc1
    s_add_u32 s47, s47, 1
    s_waitcnt vmcnt(0)
    v_readfirstlane_b32 s{sEP}, v66
    s_cmp_gt_u32 s47, 0x40000
    s_cbranch_scc1 L1_tagx
    s_cmp_eq_u32 s{sEP}, 0
    s_cbranch_scc1 L1_tagl
    L1_tagx:
    s_cmp_eq_u32 s46, 0
    s_cbranch_scc1 L1_tagok1
    s_branch L1_tagok0
    """)
KV_BYTES = 64 * TILE
OB = KV_BYTES
RED = OB + 8 * 1040
PART = RED + 1024
CNT = PART + 16384
K2_LDS = CNT + 64
FW = 0
FR = 32768
SMF = "v_smfmac_f32_32x32x32_bf16"
SM16 = "v_smfmac_f32_16x16x64_bf16"
LOG2E = 1.4426950408889634
KSLEEP = ''
for _x in sys.argv:
    if _x.startswith('--ksleep='): KSLEEP = 's_sleep ' + _x.split('=')[1]
OSC = 'sc0 sc1' if '--osc' in sys.argv else 'nt' if '--ont' in sys.argv else ''
SLEEP = 's_nop 0'
for _x in sys.argv:
    if _x.startswith('--sleep='): SLEEP = 's_sleep ' + _x.split('=')[1]
def k2(a):
    X, WR_, OUT, WS, FA, FB = 16, 20, 24, 28, 32, 36
    sW, sN, sG = 40, 43, 41
    Q, C, KF, VF, S, O = 8, 12, 28, 36, 52, 84
    IDX, KA, VA, LN16, XO, WRO, M, VA0 = 100, 101, 102, 103, 104, 105, 106, 107
    WO = 108; XRES, WRV, FWR = 236, 240, 244
    BAR_TILE = 10
    X_ = [x for x in sys.argv if x.startswith("--x")]
    a(f"""
    L2_start:
    s_load_dwordx8 s[52:59], s[0:1], 48
    s_load_dwordx2 s[8:9], s[0:1], 80
    v_lshlrev_b32 v{LN16}, 4, v2
    v_and_b32 v5, 31, v2
    v_lshrrev_b32 v6, 5, v2
    s_lshl_b32 s{sG}, s41, 3
    s_add_u32 s{sG}, s{sG}, s42
    s_lshl_b32 s44, s{sG}, 13
    s_lshl_b32 s45, s{sW}, 10
    s_add_u32 s46, s44, s45
    s_add_u32 s47, s45, {WS_KV}
    s_lshl_b32 s50, s{sW}, 16
    s_add_u32 s51, s50, {WS_WO}
    s_and_b32 s48, s{sW}, 4
    s_lshl_b32 s48, s48, 13
    s_add_u32 s50, s51, s48
    """)
    srd(a, WS, 14, WS_SIZE)
    def dma(i):
        return [f"s_add_u32 m0, s45, {i*8192}", f"s_add_u32 s48, s47, {i*8192}", f"buffer_load_dwordx4 v{LN16}, s[{WS}:{WS+3}], s48 offen sc1 lds"]
    a("s_waitcnt lgkmcnt(0)")
    srd(a, X, 4, 2 << 20); srd(a, WR_, 52, 1024); srd(a, OUT, 8, 2 << 20)
    a(f"""
    v_lshlrev_b32 v3, 8, v6
    v_lshl_add_u32 v3, v5, 4, v3
    v_and_b32 v4, 27, v5
    v_cmp_eq_u32 vcc, 16, v4
    v_mov_b32 v4, 528
    v_mov_b32 v7, 512
    v_cndmask_b32 v4, v4, v7, vcc
    v_cmp_gt_u32 vcc, 16, v5
    v_mov_b32 v{KA}, v{LN16}
    v_mov_b32 v{IDX}, 0xdddddddd
    v_cndmask_b32 v3, v4, v3, vcc
    v_add_u32 v{VA0}, 1024, v3
    v_mov_b32 v{VA}, v{VA0}
    v_and_b32 v3, 12, v2
    v_lshlrev_b32 v3, 2, v3
    v_lshl_add_u32 v3, v6, 6, v3
    s_lshl_b32 s49, s{sW}, 7
    v_add_u32 v{WRO}, s49, v3
    v_and_b32 v4, 16, v2
    v_lshlrev_b32 v4, 8, v4
    v_and_b32 v3, 15, v2
    v_lshl_add_u32 v0, v3, 2, v4
    v_lshl_add_u32 v0, v6, 6, v0
    v_add_u32 v0, s49, v0
    v_and_b32 v3, 3, v2
    v_lshl_add_u32 v4, v3, 10, v4
    v_add_u32 v{XO}, v4, v{WRO}
    s_and_b32 s48, s2, 7
    s_lshr_b32 s49, s2, 3
    s_mul_i32 s64, s48, 22
    s_add_u32 s64, s64, s49
    s_lshl_b32 s48, s48, 3
    s_add_u32 s48, s48, s49
    s_sub_u32 s61, s48, 22
    s_and_b32 s61, s61, 63
    s_lshl_b32 s61, s61, 4
    s_min_u32 s48, s64, 171
    s_lshl_b32 s48, s48, 4
    s_mul_i32 s49, s{sW}, {64*2752}
    s_add_u32 s48, s48, s49
    s_lshl_b32 s49, s{sW}, 16
    s_add_u32 s49, s49, s61
    s_add_u32 s66, s49, {512*1024}
    s_add_u32 s67, s49, {1024*1024}
    s_movk_i32 s60, 2752
    s_cmp_ge_u32 s2, 176
    s_cselect_b32 s65, s49, s48
    s_cselect_b32 s66, s66, s48
    s_cselect_b32 s67, s67, 0x200000
    s_cselect_b32 s60, 0x400, s60
    s_cselect_b32 s54, s58, s54
    s_cselect_b32 s55, s59, s55
    s_cselect_b32 s56, s58, s56
    s_cselect_b32 s57, s59, s57
    v_mul_u32_u24 v1, s60, v2
    """)
    srd(a, FA, 54, 512*2752); srd(a, FB, 56, 512*2752)
    a(f"""
    s_mov_b32 s60, {16*8192}
    s_cmp_lt_u32 s{sW}, 4
    s_cselect_b32 s60, s60, {WS_SIZE}
    v_mov_b32 v3, {CNT}
    """)
    for r in range(16): a(f"v_mov_b32 v{O+r}, 0")
    a(f"""
    ds_write_b32 v3, v{O}
    ds_write_b128 v3, {vr(O,4)} offset:16
    s_lshr_b32 s12, s46, 1
    s_add_u32 s12, s12, {WS_QB}
    s_add_u32 s46, s46, {WS_Q}
    v_lshrrev_b32 v7, 4, v2
    v_lshlrev_b32 v7, 7, v7
    v_and_b32 v4, 7, v2
    v_lshl_add_u32 v7, v4, 4, v7
    s_cmp_lt_u32 s{sW}, 4
    s_cbranch_scc1 L2_noflag
    s_sub_u32 s13, s{sW}, 4
    """)
    if "--fw1" not in sys.argv:
        a(f"""
        s_lshl_b32 s48, s13, {FSH + 6}
        s_add_u32 s48, s48, {WS_FLG}
        v_lshlrev_b32 v3, {FSH}, v2
        s_mov_b32 s49, 0
        L2_fpoll:
        buffer_load_dword v4, v3, s[{WS}:{WS+3}], s48 offen sc1
        s_add_u32 s49, s49, 1
        s_waitcnt vmcnt(0)
        v_cmp_ne_u32 vcc, s{sEP}, v4
        s_cmp_gt_u32 s49, 0x40000
        s_cbranch_scc1 L2_fgot
        s_and_b64 exec, exec, vcc
        s_cbranch_scc1 L2_fpoll
        L2_fgot:
        s_mov_b64 exec, 1
        v_mov_b32 v3, {K1_EP + 8}
        v_mov_b32 v4, 1
        ds_add_u32 v3, v4
        """)
    else:
        a(f"""
        s_cmp_lg_u32 s{sW}, 5
        s_cbranch_scc1 L2_fwait
        s_mov_b32 s48, {WS_FLG}
        v_lshlrev_b32 v3, {KSH + 2}, v2
        s_mov_b32 s49, 0
        L2_fpoll:
        """)
        for q in range(4): a(f"buffer_load_dword v{S+q}, v3, s[{WS}:{WS+3}], s48 offen offset:{q << KSH} sc1")
        a(f"""
        s_add_u32 s49, s49, 1
        s_waitcnt vmcnt(0)
        v_xor_b32 v{S}, s{sEP}, v{S}
        v_xor_b32 v{S+1}, s{sEP}, v{S+1}
        v_xor_b32 v{S+2}, s{sEP}, v{S+2}
        v_xor_b32 v{S+3}, s{sEP}, v{S+3}
        v_or3_b32 v4, v{S}, v{S+1}, v{S+2}
        v_or_b32 v4, v4, v{S+3}
        v_cmp_ne_u32 vcc, 0, v4
        s_cmp_gt_u32 s49, 0x40000
        s_cbranch_scc1 L2_fgot
        s_and_b64 exec, exec, vcc
        s_cbranch_scc1 L2_fpoll
        L2_fgot:
        s_mov_b64 exec, 1
        v_mov_b32 v3, {K1_EP + 8}
        v_mov_b32 v4, 4
        ds_write_b32 v3, v4
        L2_fwait:
        s_mov_b64 exec, 1
        v_mov_b32 v3, {K1_EP + 8}
        """)
    a(f"""
    L2_fspin:
    ds_read_b32 v4, v3
    s_waitcnt lgkmcnt(0)
    v_readfirstlane_b32 s49, v4
    s_cmp_lt_u32 s49, 4
    s_cbranch_scc1 L2_fspin
    s_mov_b64 exec, -1
    @S2
    s_lshl_b32 s13, s13, 10
    s_add_u32 s62, s13, {WS_KV}
    """)
    for i in range(6):
        a(f"s_add_u32 m0, s13, {i*4096}\ns_add_u32 s48, s62, {i*4096}\nbuffer_load_dwordx4 v{LN16}, s[{WS}:{WS+3}], s48 offen sc1 lds")
    a(f"""
    L2_noflag:
    {'' if '--nobarA' in sys.argv else 's_barrier'}
    @T6
    s_mov_b32 s49, 0
    L2_qpoll:
    buffer_load_dwordx4 {vr(Q,4)}, v{LN16}, s[{WS}:{WS+3}], s46 offen sc1
    buffer_load_dwordx4 {vr(S,4)}, v7, s[{WS}:{WS+3}], s12 offen sc1
    s_add_u32 s49, s49, 1
    s_waitcnt vmcnt(0)
    v_cmp_ne_u32 vcc, s{sEP}, v{Q+3}
    v_cmp_ne_u32 s[62:63], s{sEP}, v{S+3}
    s_cmp_gt_u32 s49, 0x40000
    s_cbranch_scc1 L2_qgot
    s_or_b64 exec, vcc, s[62:63]
    s_cbranch_scc1 L2_qpoll
    L2_qgot:
    s_mov_b64 exec, -1
    s_mov_b32 s62, 0xff00ff00
    s_mov_b32 s63, s62
    v_cndmask_b32 v{Q+3}, v{S}, v{S+1}, s[62:63]
    s_waitcnt lgkmcnt(0)
    s_barrier
    @S3
    ds_read_b128 {vr(KF,4)}, v{KA}
    ds_read_b128 {vr(KF+4,4)}, v{KA} offset:{TILE}
    ds_read_b128 {vr(VF,4)}, v{VA}
    ds_read_b128 {vr(VF+4,4)}, v{VA} offset:544
    s_waitcnt lgkmcnt(3)
    {MF32} {vr(S,16)}, {vr(KF,4)}, {vr(Q,4)}, 0
    s_waitcnt lgkmcnt(2)
    {MF32} {vr(S+16,16)}, {vr(KF+4,4)}, {vr(Q,4)}, 0
    s_nop 9
    v_max3_f32 v{M}, v{S}, v{S+1}, v{S+2}
    """)
    for r in range(3, 31, 2): a(f"v_max3_f32 v{M}, v{S+r}, v{S+r+1}, v{M}")
    a(f"""
    v_max_f32 v{M}, v{S+31}, v{M}
    v_mov_b32 v3, v{M}
    s_nop 1
    v_permlane32_swap_b32 v{M}, v3
    v_max_f32 v{M}, v{M}, v3
    v_sub_f32 v{C}, {hex(f2u(-SHIFT))}, v{M}
    """)
    for r in range(1, 16): a(f"v_mov_b32 v{C+r}, v{C}")
    a(f"""
    @S4
    @S13
    @T1
    s_nop 1
    {MF32} {vr(S,16)}, {vr(KF,4)}, {vr(Q,4)}, {vr(C,16)}
    s_waitcnt lgkmcnt(0)
    s_nop 10
    """)
    base = 0
    nwo = 0
    NPT = 2 if '--npt2' in sys.argv else 3
    queue = [dma(i) for i in range(3, 17)]
    queue[-1][1] = "s_add_u32 s48, s47, s60"
    ffn = [[f"buffer_load_dwordx4 {vr(FWR+4*i,4)}, v1, s[{FA if i == 0 else FB}:{(FA if i == 0 else FB)+3}], s{65+i} offen"] for i in range(3)]
    wol = [(["s_add_u32 s50, s50, 4096"] if (f and f % 4 == 0) else []) + [f"buffer_load_dwordx4 {vr(WO + 4*f, 4)}, v{LN16}, s[{WS}:{WS+3}], s50 offen offset:{(f & 3)*1024} sc1"] for f in range(32)]
    xw = [[f"buffer_load_dword v{XRES+r}, v0, s[{X}:{X+3}], s44 offen offset:{r*1024}"] for r in range(4)] + [[f"buffer_load_dwordx4 {vr(WRV,4)}, v{WRO}, s[{WR_}:{WR_+3}], 0 offen"]]
    SCH = [x.split("=")[1] for x in sys.argv if x.startswith("--sch=")]
    SCH = SCH[0] if SCH else "E"
    if SCH == "A":
        queue += wol + xw + ffn
        cnt = lambda t: 2 if t < 7 or 10 <= t <= 26 else 1 if t in (27, 29, 31) else 0
    elif SCH == "B":
        queue += wol + xw + ffn
        cnt = lambda t: 2 if t <= 23 else 1
    elif SCH == "C":
        queue += xw + wol[:4] + ffn[:1] + wol[4:5] + ffn[1:2] + wol[5:6] + ffn[2:] + wol[6:]
        cnt = lambda t: 2
    elif SCH == "D":
        queue += wol + xw + ffn
        cnt = lambda t: 2 if t <= 23 else 1 if t in (58, 60, 62) else 0
    elif SCH == "E":
        queue += wol + xw + ffn
        cnt = lambda t: 2 if t <= 24 else 1 if t in (25, 52, 56, 60) else 0
    elif SCH == "F":
        queue += wol + xw + ffn
        cnt = lambda t: 2 if t <= 23 else 1 if t in (61, 62, 63) else 0
    nissued = 0
    if '--noprio' not in sys.argv: a('s_setprio 1')
    if '--vmask' in sys.argv: a('s_mov_b32 s100, 0xffff\ns_mov_b32 s101, 0xffff' if DIAG else 's_mov_b32 s70, 0xffff\ns_mov_b32 s71, 0xffff')
    for t in range(64):
        cur, nxt = t & 1, (t + 1) & 1
        Sc, Sn = S + 16*cur, S + 16*nxt
        e = [f"v_exp_f32 v{Sc+i}, v{Sc+i}" for i in range(16)]
        n_ = cnt(t); side = sum(queue[:n_], []); queue = queue[n_:]
        if t == BAR_TILE: a(f"s_waitcnt vmcnt({nissued - 14})\ns_barrier")
        nissued += sum(1 for x in side if x.startswith("buffer"))
        if (t + 2 - base) * TILE + TILE > 65535:
            a(f"v_add_u32 v{KA}, {(t - base)*TILE}, v{KA}\nv_add_u32 v{VA}, {(t - base)*TILE}, v{VA}")
            base = t
        after = {i: [] for i in range(16)}
        side = [x for x in side if x]
        grp, curg = [], []
        for x in side:
            curg.append(x)
            if x.startswith("buffer"): grp.append(curg); curg = []
        if t > 0: after[1].append(f"{SMF} {vr(O,16)}, {vr(VF+8*nxt+4,4)}, {vr(Sn+8,8)}, v{IDX}")
        va = f"ds_read_b128 {vr(VF+8*nxt,4)}, v{VA} offset:{(t+1-base)*TILE}"
        vb = f"ds_read_b128 {vr(VF+8*nxt+4,4)}, v{VA} offset:{(t+1-base)*TILE+544}"
        VM = "--vmask" in sys.argv and t >= 1
        VQ = "--vq1" in sys.argv
        if t < 63:
            if VM: after[1] += ["s_mov_b64 exec, s[70:71]" if not DIAG else "s_mov_b64 exec, s[100:101]", va, vb, "s_mov_b64 exec, -1"]
            elif VQ: after[1] += [va, vb]
            else: after[1].append(va)
            after[5].append(f"{MF32} {vr(Sn,16)}, {vr(KF+4*nxt,4)}, {vr(Q,4)}, {vr(C,16)}")
        if t < 62: after[5].append(f"ds_read_b128 {vr(KF+4*cur,4)}, v{KA} offset:{(t+2-base)*TILE}")
        after[11].append(f"{SMF} {vr(O,16)}, {vr(VF+8*cur,4)}, {vr(Sc,8)}, v{IDX}")
        after[11].append("s_waitcnt lgkmcnt(0)")
        if t < 63 and not VM and not VQ: after[11].append(vb)
        for g, slot in zip(grp, (1, 5, 11) if len(grp) == 3 else (5, 11)): after[slot] += g
        assert len(grp) <= 3
        for i in range(16):
            a(e[i])
            for x in after[i]: a(x)
    a(f"""
    @S8
    @S14
    s_nop 1
    {SMF} {vr(O,16)}, {vr(VF+12,4)}, {vr(S+24,8)}, v{IDX}
    s_mov_b32 s48, {hex(f2u(2.0**110))}
    v_and_b32 v4, 7, v5
    v_mul_u32_u24 v4, 1040, v4
    v_lshrrev_b32 v7, 3, v5
    v_lshl_add_u32 v4, v7, 5, v4
    v_lshl_add_u32 v4, v6, 3, v4
    s_lshl_b32 s49, s{sW}, 7
    s_add_u32 s49, s49, {OB}
    v_add_u32 v4, s49, v4
    v_and_b32 v1, 7, v2
    v_mul_u32_u24 v0, 1040, v1
    v_lshrrev_b32 v7, 4, v2
    v_mul_f32 v3, 0, v{O}
    """)
    for r in range(1, 8): a(f"v_fma_f32 v3, v{O+r}, 0, v3")
    a(f"""
    v_add_f32 v3, v3, v{O+8}
    v_cmp_ngt_f32 vcc, s48, v3
    v_rcp_f32 v3, v{O+8}
    s_cmp_lg_u64 vcc, 0
    s_cbranch_scc1 L2_slow
    L2_epi:
    """)
    for r in range(8): a(f"v_mul_f32 v{O+r}, v3, v{O+r}")
    for r in range(4): a(f"v_cvt_pk_bf16_f32 v{O+r}, v{O+2*r}, v{O+2*r+1}")
    BA, PA = 101, 102
    a(f"""
    ds_write_b64 v4, {vr(O,2)}
    ds_write_b64 v4, {vr(O+2,2)} offset:16
    v_lshl_add_u32 v{BA}, v7, 5, v0
    v_and_b32 v3, 8, v2
    v_lshl_add_u32 v{BA}, v3, 1, v{BA}
    v_add_u32 v{BA}, {OB}, v{BA}
    v_cmp_ne_u32 vcc, 0, v3
    v_mov_b32 v{IDX}, 0x4444
    v_mov_b32 v3, 0xeeee
    s_and_b32 s49, s{sW}, 3
    s_lshl_b32 s49, s49, 12
    s_add_u32 s49, s49, {PART}
    v_add_u32 v{PA}, s49, v{LN16}
    v_cndmask_b32 v{IDX}, v{IDX}, v3, vcc
    s_waitcnt vmcnt(3)
    s_cmp_lt_u32 s{sW}, 4
    {'' if '--xnoold' in X_ else 's_cbranch_scc1 L2_old'}
    L2_join:
    @S7
    """)
    if "--tsync" in sys.argv:
        a(f"""
        s_mul_i32 s90, s2, 37
        s_and_b32 s90, s90, 63
        s_mul_i32 s90, s90, 80
        s_lshr_b32 s90, s90, 6
        s_add_u32 s90, s90, 4000
        s_mov_b32 s91, 0
        LT_spin:
        s_memrealtime s[92:93]
        s_waitcnt lgkmcnt(0)
        s_sub_u32 s92, s92, s{sEP}
        s_add_u32 s91, s91, 1
        s_cmp_gt_u32 s91, 100000
        s_cbranch_scc1 LT_done
        s_cmp_lt_u32 s92, s90
        s_cbranch_scc1 LT_spin
        LT_done:
        """)
    a(f"""
    """)
    HF, T, WF8, TOK = 60, 68, 52, 106
    ACC = O
    BF = [Q, 28, 32, 36]
    for j in range(4):
        a(f"v_lshlrev_b32 v{HF+2*j}, 16, v{XRES+j}\nv_and_b32 v{HF+2*j+1}, 0xffff0000, v{XRES+j}")
        a(f"v_lshlrev_b32 v{WF8+2*j}, 16, v{WRV+j}\nv_and_b32 v{WF8+2*j+1}, 0xffff0000, v{WRV+j}")
    a(f"v_add_f32 v{T+3}, v{WF8}, v{WF8+1}")
    for j in range(2, 8): a(f"v_add_f32 v{T+3}, v{T+3}, v{WF8+j}")
    a(f"""
    v_mov_b32 v7, 0x3f803f80
    v_lshrrev_b32 v{TOK}, 10, v{XO}
    v_lshlrev_b32 v4, 5, v{TOK}
    v_add_u32 v4, {RED}, v4
    v_lshrrev_b32 v3, 5, v2
    v_lshl_add_u32 v3, v3, 9, v4
    s_lshl_b32 s49, s{sW}, 2
    v_add_u32 v3, s49, v3
    v_add_u32 v0, s45, v{LN16}
    s_add_u32 s49, s44, {WS_H}
    s_cmp_ge_u32 s{sW}, 4
    s_cselect_b64 s[62:63], -1, 0
    s_waitcnt lgkmcnt(0)
    s_barrier
    @S9
    @T2
    s_mov_b64 exec, s[62:63]
    """)
    for i in range(4): a(f"ds_read_b128 {vr(ACC+4*i,4)}, v{PA} offset:{1024*i}")
    a("s_mov_b64 exec, -1")
    for s_ in range(4): a(f"ds_read_b128 {vr(BF[s_],4)}, v{BA} offset:{(s_+4)*128}")
    for s_ in range(4):
        a(f"s_waitcnt lgkmcnt({3 - s_})")
        for i in range(4):
            a(f"{SM16} {vr(ACC+4*i,4)}, {vr(BF[s_],4)}, {vr(WO+32*s_+8*i,8)}, v{IDX}")
    a("s_waitcnt vmcnt(0)")
    for i in range(3): a(f"ds_write_b128 v0, {vr(FWR+4*i,4)} offset:{FW + i*8192}")
    A8, HB = 40, 48
    a("s_mov_b32 vcc_lo, 0x55555555\ns_mov_b32 vcc_hi, 0x55555555\ns_nop 1")
    for p in range(2):
        for r in range(4): a(f"v_permlane32_swap_b32 v{ACC+8*p+r}, v{ACC+8*p+4+r}")
    for r in range(4):
        for p in range(2): a(f"v_add_f32 v{HF+2*r+p}, v{HF+2*r+p}, v{ACC+8*p+r}")
    for r in range(4):
        for p in range(2): a(f"v_add_f32 v{HF+2*r+p}, v{HF+2*r+p}, v{ACC+8*p+4+r}")
    for r in range(4): a(f"v_cvt_pk_bf16_f32 v{A8+r}, v{HF+2*r}, v{HF+2*r+1}")
    X1, X2 = "quad_perm:[1,0,3,2] row_mask:0xf bank_mask:0xf", "quad_perm:[2,3,0,1] row_mask:0xf bank_mask:0xf"
    N = A8 + 4
    a(f"""
    s_nop 0
    v_cndmask_b32_dpp v{N}, v{A8+1}, v{A8}, vcc {X1}
    v_cndmask_b32_dpp v{N+2}, v{A8+3}, v{A8+2}, vcc {X1}
    s_not_b64 vcc, vcc
    v_cndmask_b32_dpp v{N+1}, v{A8}, v{A8+1}, vcc {X1}
    v_cndmask_b32_dpp v{N+3}, v{A8+2}, v{A8+3}, vcc {X1}
    s_mov_b32 vcc_lo, 0x33333333
    s_mov_b32 vcc_hi, 0x33333333
    v_cndmask_b32_dpp v{HB}, v{N+2}, v{N}, vcc {X2}
    v_cndmask_b32_dpp v{HB+1}, v{N+3}, v{N+1}, vcc {X2}
    s_not_b64 vcc, vcc
    v_cndmask_b32_dpp v{HB+2}, v{N}, v{N+2}, vcc {X2}
    v_cndmask_b32_dpp v{HB+3}, v{N+1}, v{N+3}, vcc {X2}
    buffer_store_dwordx4 {vr(HB,4)}, v{XO}, s[{WS}:{WS+3}], s49 offen sc0 sc1
    """)
    for j in range(4): a(f"v_lshlrev_b32 v{HF+2*j}, 16, v{HB+j}\nv_and_b32 v{HF+2*j+1}, 0xffff0000, v{HB+j}")
    a(f"v_add_f32 v{T}, v{HF}, v{HF+1}\nv_mul_f32 v{T+1}, v{HF}, v{HF}\nv_mul_f32 v{T+2}, v{HF}, v{WF8}")
    for j in range(1, 8):
        if j > 1: a(f"v_add_f32 v{T}, v{T}, v{HF+j}")
        a(f"v_fmac_f32 v{T+1}, v{HF+j}, v{HF+j}\nv_fmac_f32 v{T+2}, v{HF+j}, v{WF8+j}")
    a(f"""
    s_nop 0
    v_permlane32_swap_b32 v{T}, v{T+1}
    v_permlane32_swap_b32 v{T+2}, v{T+3}
    v_add_f32 v{T}, v{T}, v{T+1}
    v_add_f32 v{T+2}, v{T+2}, v{T+3}
    s_nop 0
    v_add_f32_dpp v{T}, v{T}, v{T} row_ror:8 row_mask:0xf bank_mask:0xf
    v_add_f32_dpp v{T+2}, v{T+2}, v{T+2} row_ror:8 row_mask:0xf bank_mask:0xf
    s_nop 0
    v_add_f32_dpp v{T}, v{T}, v{T} row_ror:4 row_mask:0xf bank_mask:0xf
    v_add_f32_dpp v{T+2}, v{T+2}, v{T+2} row_ror:4 row_mask:0xf bank_mask:0xf
    ds_write_b32 v3, v{T}
    ds_write_b32 v3, v{T+2} offset:256
    """)
    KR = 128
    def kloads():
        for q in range(4): a(f"buffer_load_dwordx2 {vr(KR+2*q,2)}, v8, s[{WS}:{WS+3}], s48 offen offset:{q << KSH} sc1")
    a(f"""
    s_waitcnt lgkmcnt(0)
    s_barrier
    @S11
    """)
    R_ = 108
    for q in (0, 2, 1, 3):
        a(f"ds_read_b128 {vr(R_+8*q,4)}, v4 offset:{q*256}\nds_read_b128 {vr(R_+8*q+4,4)}, v4 offset:{q*256+16}")
    def sum8(b):
        a(f"""
        v_add_f32 v{b}, v{b}, v{b+1}
        v_add_f32 v{b+2}, v{b+2}, v{b+3}
        v_add_f32 v{b+4}, v{b+4}, v{b+5}
        v_add_f32 v{b+6}, v{b+6}, v{b+7}
        v_add_f32 v{b}, v{b}, v{b+2}
        v_add_f32 v{b+4}, v{b+4}, v{b+6}
        v_add_f32 v{b}, v{b}, v{b+4}
        """)
    s1, s3, s2, s4 = R_, R_+8, R_+16, R_+24
    ST = 76
    OV = 80
    a("s_waitcnt lgkmcnt(4)")
    sum8(s1); sum8(s2)
    a(f"""
    v_mul_f32 v{ST}, {hex(f2u(1.0/512))}, v{s1}
    v_mul_f32 v{s2}, {hex(f2u(1.0/512))}, v{s2}
    v_fma_f32 v{s2}, -v{ST}, v{ST}, v{s2}
    v_max_f32 v{s2}, 0, v{s2}
    v_add_f32 v{s2}, {hex(f2u(EPS))}, v{s2}
    v_rsq_f32 v{ST+1}, v{s2}
    s_cmp_lg_u32 s{sW}, 0
    s_cbranch_scc1 L2_nokey
    s_waitcnt lgkmcnt(0)
    """)
    sum8(s3); sum8(s4)
    AF, BFR, STT, D, D2 = 140, 12, 204, 208, 212
    breg = lambda q: 12 + 4*q if q < 7 else 216 + 4*(q - 7)
    a(f"""
    v_fma_f32 v{s3}, -v{ST}, v{s4}, v{s3}
    s_lshl_b32 s48, s{sG}, 3
    v_add_u32 v4, s48, v{TOK}
    v_mul_f32 v{ST+2}, v{ST+1}, v{s3}
    v_mov_b32 v{ST+3}, s{sEP}
    v_lshlrev_b32 v0, 4, v4
    s_mov_b32 s48, {WS_ST}
    s_mov_b64 exec, 0x000f000f
    buffer_store_dwordx4 {vr(ST,4)}, v0, s[{WS}:{WS+3}], s48 offen sc0 sc1
    s_mov_b64 exec, -1
    v_ashrrev_i32 v3, 31, v{ST+2}
    v_or_b32 v3, 0x80000000, v3
    v_xor_b32 v3, v3, v{ST+2}
    v_and_b32 v3, 0xfffff800, v3
    v_sub_u32 v4, 2047, v4
    v_or_b32 v4, v3, v4
    s_lshl_b32 s48, s2, {KSH}
    s_add_u32 s48, s48, {WS_KEY}
    v_mov_b32_dpp v6, v4 quad_perm:[1,0,3,2] row_mask:0xf bank_mask:0xf
    v_mov_b32 v0, 0
    v_min_u32 v5, v4, v6
    v_max_u32 v4, v4, v6
    """)
    a(f"""
    s_nop 0
    v_mov_b32_dpp v3, v5 quad_perm:[2,3,0,1] row_mask:0xf bank_mask:0xf
    v_mov_b32_dpp v6, v4 quad_perm:[2,3,0,1] row_mask:0xf bank_mask:0xf
    v_max_u32 v5, v5, v3
    v_med3_u32 v5, v4, v5, v6
    v_max_u32 v4, v4, v6
    v_mov_b32 v3, v5
    v_mov_b32 v6, v4
    s_nop 0
    v_permlane16_swap_b32 v5, v3
    v_permlane16_swap_b32 v4, v6
    v_max_u32 v5, v5, v3
    v_med3_u32 v5, v4, v5, v6
    v_max_u32 v4, v4, v6
    """)
    a(f"""
    s_waitcnt vmcnt(1)
    s_barrier
    s_mov_b64 exec, 1
    buffer_store_dwordx2 v[4:5], v0, s[{WS}:{WS+3}], s48 offen sc0 sc1
    s_mov_b64 exec, -1
    @S5
    """)
    def outval():
        a(f"v_add_f32 v3, 1.0, v{ST+1}\nv_mul_f32 v6, v{ST}, v{ST+1}")
        for j in range(8): a(f"v_fma_f32 v{A8+j}, v{HF+j}, v3, -v6")
        for j in range(4): a(f"v_cvt_pk_bf16_f32 v{OV+j}, v{A8+2*j}, v{A8+2*j+1}")
    a(f"v_lshlrev_b32 v8, {KSH + 2}, v2\ns_mov_b32 s48, {WS_KEY}")
    if "--knoack" in sys.argv: kloads()
    ROWS = 40960
    a(f"""
    v_and_b32 v9, 15, v2
    v_lshrrev_b32 v11, 4, v2
    v_lshrrev_b32 v10, 2, v9
    v_lshl_add_u32 v10, v11, 7, v10
    v_lshlrev_b32 v10, 4, v10
    v_and_b32 v0, 1, v9
    v_lshl_add_u32 v10, v0, 3, v10
    v_and_b32 v3, 2, v9
    v_lshl_add_u32 v10, v3, 12, v10
    """)
    for q in range(7): a(f"ds_read_b64_tr_b16 {vr(AF+4*q,2)}, v10 offset:{FW + q*128}\nds_read_b64_tr_b16 {vr(AF+4*q+2,2)}, v10 offset:{FW + q*128 + 64}")
    outval()
    a("s_waitcnt lgkmcnt(0)")
    for q in range(7, 14): a(f"ds_read_b64_tr_b16 {vr(AF+4*q,2)}, v10 offset:{FW + q*128}\nds_read_b64_tr_b16 {vr(AF+4*q+2,2)}, v10 offset:{FW + q*128 + 64}")
    a(f"v_mov_b32 v252, v7\nv_mov_b32 v253, v7\nv_mov_b32 v254, v7\nv_mov_b32 v255, v7\ns_waitcnt lgkmcnt(4)")
    for q in range(14, 16): a(f"ds_read_b64_tr_b16 {vr(AF+4*q,2)}, v10 offset:{FW + q*128}\nds_read_b64_tr_b16 {vr(AF+4*q+2,2)}, v10 offset:{FW + q*128 + 64}")
    if "--knoack" not in sys.argv: a("s_waitcnt vmcnt(0)"); kloads()
    a(f"""
    v_cmp_eq_u32 s[10:11], 1, v0
    v_mul_u32_u24 v10, 1040, v0
    v_lshl_add_u32 v10, v11, 8, v10
    v_lshlrev_b32 v{R_}, 4, v0
    v_lshl_add_u32 v{R_}, v11, 3, v{R_}
    s_mov_b32 s49, 0
    s_mov_b32 s46, 0
    s_mov_b32 s47, 0
    s_mov_b32 s51, {WS_ST}
    s_waitcnt lgkmcnt(0)
    """)
    for q in range(16): a(f"{MF16} {vr(D2,4)}, {vr(AF+4*q,4)}, v[252:255], {'0' if q == 0 else vr(D2,4)}")
    a(f"""
    L2_kpoll:
    s_waitcnt vmcnt(0)
    v_min_u32 v0, v{KR}, v{KR+2}
    v_min3_u32 v0, v{KR+4}, v{KR+6}, v0
    v_cmp_eq_u32 s[62:63], 0, v0
    s_add_u32 s49, s49, 1
    s_cmp_gt_u32 s49, 0x40000
    s_cselect_b64 s[62:63], 0, s[62:63]
    v_max_u32 v4, v{KR}, v{KR+2}
    v_min_u32 v5, v{KR}, v{KR+2}
    v_max3_u32 v5, v5, v{KR+1}, v{KR+3}
    v_med3_u32 v5, v4, v5, v{KR+4}
    v_max_u32 v4, v4, v{KR+4}
    v_med3_u32 v5, v4, v5, v{KR+6}
    v_max_u32 v4, v4, v{KR+6}
    v_max3_u32 v5, v5, v{KR+5}, v{KR+7}
    s_mov_b64 exec, s[62:63]
    s_cbranch_execz L2_klast
    """)
    kloads()
    a("L2_klast:\ns_mov_b64 exec, -1")
    for dpp in ("quad_perm:[1,0,3,2]", "quad_perm:[2,3,0,1]", "row_half_mirror", "row_mirror"):
        a(f"""
        v_mov_b32_dpp v3, v5 {dpp} row_mask:0xf bank_mask:0xf
        v_mov_b32_dpp v6, v4 {dpp} row_mask:0xf bank_mask:0xf
        v_max_u32 v5, v5, v3
        v_med3_u32 v5, v4, v5, v6
        v_max_u32 v4, v4, v6
        s_nop 0
        """)
    for sw in ("v_permlane16_swap_b32", "v_permlane32_swap_b32"):
        a(f"""
        v_mov_b32 v3, v5
        v_mov_b32 v6, v4
        s_nop 0
        {sw} v5, v3
        {sw} v4, v6
        v_max_u32 v5, v5, v3
        v_med3_u32 v5, v4, v5, v6
        v_max_u32 v4, v4, v6
        """)
    a(f"""
    v_readfirstlane_b32 s53, v5
    v_readfirstlane_b32 s52, v4
    v_cndmask_b32 v3, v4, v5, s[10:11]
    v_not_b32 v3, v3
    s_cmp_eq_u64 s[52:53], s[46:47]
    s_cbranch_scc1 L2_ksame
    s_mov_b64 s[46:47], s[52:53]
    s_cmp_ge_u32 s2, 176
    s_cbranch_scc1 L2_ksame
    s_andn2_b32 s54, 0x7ff, s52
    s_andn2_b32 s55, 0x7ff, s53
    s_lshl_b32 s54, s54, 10
    s_lshl_b32 s55, s55, 10
    s_add_u32 s54, s54, {WS_H}
    s_add_u32 s55, s55, {WS_H}
    s_mov_b32 m0, {ROWS}
    v_and_b32 v3, 0x7ff, v3
    buffer_load_dwordx4 v{LN16}, s[{WS}:{WS+3}], s54 offen sc1 lds
    s_mov_b32 m0, {ROWS + 1040}
    v_lshlrev_b32 v9, 4, v3
    buffer_load_dwordx4 v{LN16}, s[{WS}:{WS+3}], s55 offen sc1 lds
    buffer_load_dwordx4 {vr(STT,4)}, v9, s[{WS}:{WS+3}], s51 offen sc1
    L2_ksame:
    s_cmp_lg_u64 s[62:63], 0
    s_cbranch_scc1 L2_kpoll
    @S6
    v_mov_b32 v0, {CNT + 16}
    ds_write_b64 v0, v[4:5]
    s_cmp_ge_u32 s2, 176
    s_cbranch_scc1 L2_bc
    s_cmp_ge_u32 s64, 172
    s_cselect_b32 s48, 0x100000, s64
    s_lshl_b32 s48, s48, {ASH}
    s_add_u32 s48, s48, {WS_ACT}
    s_waitcnt vmcnt(1)
    """)
    for q in range(12): a(f"ds_read_b128 {vr(breg(q),4)}, v10 offset:{ROWS + q*16}")
    for q in range(16):
        a(f"s_waitcnt lgkmcnt({min(11, 15 - q)})")
        a(f"{MF16} {vr(D,4)}, {vr(AF+4*q,4)}, {vr(breg(q),4)}, {'0' if q == 0 else vr(D,4)}")
        if q < 4: a(f"ds_read_b128 {vr(breg(q+12),4)}, v10 offset:{ROWS + (q+12)*16}")
    E = R_ + 8
    a(f"""
    L2_stw:
    s_waitcnt vmcnt(0)
    v_cmp_ne_u32 vcc, s{sEP}, v{STT+3}
    s_nop 2
    s_cbranch_vccnz L2_stre
    L2_stok:
    s_nop 1
    """)
    for r in range(4): a(f"v_fma_f32 v{D+r}, -v{STT}, v{D2+r}, v{D+r}")
    for r in range(4): a(f"v_mul_f32 v{D+r}, v{D+r}, v{STT+1}")
    for r in range(4): a(f"v_mov_b32 v{E+4+r}, v{D+r}")
    for r in range(4): a(f"v_mul_f32 v{E+r}, {hex(f2u(-LOG2E))}, v{D+r}")
    for r in range(4): a(f"v_exp_f32 v{E+r}, v{E+r}")
    for r in range(4): a(f"v_permlane32_swap_b32 v{D+r}, v{E+4+r}")
    for r in range(4): a(f"v_add_f32 v{E+r}, 1.0, v{E+r}")
    for r in range(4): a(f"v_rcp_f32 v{E+r}, v{E+r}")
    for r in range(4): a(f"v_mul_f32 v{D+r}, v{D+r}, v{E+4+r}")
    for r in range(4): a(f"v_mul_f32 v{D+r}, v{D+r}, v{E+r}")
    a(f"""
    v_cvt_pk_bf16_f32 v{R_+2}, v{D}, v{D+1}
    v_cvt_pk_bf16_f32 v{R_+3}, v{D+2}, v{D+3}
    s_mov_b64 exec, 0x00030003
    buffer_store_dwordx2 {vr(R_+2,2)}, v{R_}, s[{WS}:{WS+3}], s48 offen sc0 sc1
    s_mov_b64 exec, -1
    @S10
    s_branch L2_bc
    L2_stre:
    s_add_u32 s49, s49, 1
    s_cmp_gt_u32 s49, 0x40000
    s_cbranch_scc1 L2_stok
    buffer_load_dwordx4 {vr(STT,4)}, v9, s[{WS}:{WS+3}], s51 offen sc1
    s_branch L2_stw
    L2_nokey:
    """)
    outval()
    a("s_waitcnt vmcnt(0)\ns_barrier")
    BFR = 164
    a(f"""
    L2_bc:
    v_and_b32 v9, 15, v2
    v_lshrrev_b32 v10, 2, v9
    v_lshrrev_b32 v11, 4, v2
    v_lshl_add_u32 v10, v11, 3, v10
    v_lshlrev_b32 v10, 4, v10
    v_and_b32 v8, 1, v9
    v_lshl_add_u32 v10, v8, 3, v10
    s_mul_i32 s49, s45, 3
    v_add_u32 v10, s49, v10
    """)
    for s_ in range(6):
        a(f"ds_read_b64_tr_b16 {vr(AF+4*s_,2)}, v10 offset:{FW + s_*512}\nds_read_b64_tr_b16 {vr(AF+4*s_+2,2)}, v10 offset:{FW + s_*512 + 64}")
    a(f"""
    v_mov_b32 v0, {CNT + 16}
    s_lshl_b32 s48, s{sG}, 3
    v_add_u32 v8, s48, v{TOK}
    s_waitcnt lgkmcnt(0)
    s_barrier
    ds_read_b64 v[4:5], v0
    s_waitcnt lgkmcnt(0)
    v_not_b32 v4, v4
    v_not_b32 v5, v5
    v_and_b32 v4, 0x7ff, v4
    v_and_b32 v5, 0x7ff, v5
    v_cmp_ne_u32 vcc, v4, v8
    v_cmp_ne_u32 s[62:63], v5, v8
    s_and_b64 exec, vcc, s[62:63]
    buffer_store_dwordx4 {vr(OV,4)}, v{XO}, s[{OUT}:{OUT+3}], s44 offen {OSC}
    s_mov_b64 exec, -1
    s_sub_u32 s48, s2, 176
    s_cmp_lt_u32 s48, 64
    s_cbranch_scc1 L2_st2
    L2_fin:
    @D0 15 {WS} {sW}
    s_endpgm
    """)
    a("L2_st2:")
    a(f"""
    v_and_b32 v6, 8, v2
    v_cmp_ne_u32 vcc, 0, v6
    s_mov_b32 s48, {WS_H}
    s_mov_b32 s51, {WS_ST}
    v_cndmask_b32 v3, v4, v5, vcc
    v_lshlrev_b32 v12, 10, v3
    v_lshl_add_u32 v12, v1, 1, v12
    v_add_u32 v12, s61, v12
    v_lshlrev_b32 v18, 4, v3
    buffer_load_ushort v13, v12, s[{WS}:{WS+3}], s48 offen sc1
    v_and_b32 v6, 1, v2
    v_lshlrev_b32 v0, {ASH}, v11
    v_lshl_add_u32 v0, v6, 4, v0
    s_mul_i32 s48, s{sW}, {24 << ASH}
    s_add_u32 s48, s48, {WS_ACT}
    s_mov_b32 s49, 0
    L2_apoll:
    buffer_load_dwordx4 {vr(STT,4)}, v18, s[{WS}:{WS+3}], s51 offen sc1
    """)
    for s_ in range(6):
        a(f"buffer_load_dwordx4 {vr(BFR+4*s_,4)}, v0, s[{WS}:{WS+3}], s48 offen offset:{s_*(4 << ASH)} sc1")
    a(f"s_add_u32 s49, s49, 1\ns_waitcnt vmcnt(0)\nv_max3_u32 v3, v{BFR}, v{BFR+1}, v{BFR+2}")
    for q in range(3, 23, 2): a(f"v_max3_u32 v3, v{BFR+q}, v{BFR+q+1}, v3")
    a(f"""
    v_max_u32 v3, v{BFR+23}, v3
    v_cmp_eq_u32 vcc, -1, v3
    v_cmp_ne_u32 s[62:63], s{sEP}, v{STT+3}
    s_cmp_gt_u32 s49, 0x40000
    s_cbranch_scc1 L2_agot
    s_or_b64 {'exec' if '--amask' in sys.argv else 'vcc'}, vcc, s[62:63]
    s_cbranch_scc0 L2_agot
    {SLEEP}
    s_branch L2_apoll
    L2_agot:
    s_mov_b64 exec, -1
    @S10
    """)
    for s_ in range(6): a(f"{MF16} {vr(D,4)}, {vr(AF+4*s_,4)}, {vr(BFR+4*s_,4)}, {'0' if s_ == 0 else vr(D,4)}")
    a(f"""
    v_and_b32 v3, 1, v11
    v_lshlrev_b32 v0, 5, v6
    v_lshl_add_u32 v0, v3, 4, v0
    s_lshl_b32 s48, s{sW}, 6
    s_add_u32 s48, s48, {FR}
    v_add_u32 v0, s48, v0
    v_lshlrev_b32 v10, 2, v9
    v_lshl_add_u32 v10, v11, 7, v10
    v_add_u32 v10, {FR}, v10
    ds_write_b128 v0, {vr(D,4)}
    s_waitcnt lgkmcnt(0)
    s_barrier
    s_cmp_lg_u32 s{sW}, 0
    s_cbranch_scc1 L2_fin
    ds_read2_b32 v[14:15], v10 offset0:0 offset1:16
    v_mul_f32 v16, {hex(f2u(-LOG2E))}, v{STT+2}
    v_exp_f32 v16, v16
    v_lshlrev_b32 v13, 16, v13
    v_add_f32 v16, 1.0, v16
    v_rcp_f32 v16, v16
    v_sub_f32 v17, v13, v{STT}
    v_fma_f32 v13, v17, v{STT+1}, v13
    s_waitcnt lgkmcnt(0)
    v_add_f32 v14, v14, v15
    v_mov_b32 v15, v14
    s_nop 1
    v_permlane32_swap_b32 v14, v15
    v_add_f32 v14, v14, v15
    v_mov_b32 v15, v14
    s_nop 1
    v_permlane16_swap_b32 v14, v15
    v_add_f32 v14, v14, v15
    v_fma_f32 v14, v14, v16, v13
    v_cvt_pk_bf16_f32 v14, v14, v14
    s_mov_b64 exec, 0xffff
    buffer_store_short v14, v12, s[{OUT}:{OUT+3}], 0 offen {OSC}
    @Q {WS}
    @D0 15 {WS} {sW}
    L2_end:
    s_endpgm
    """)
    AB = 12
    def wl(reg, sb, f):
        a(f"buffer_load_dwordx4 {vr(reg,4)}, v{LN16}, s[{WS}:{WS+3}], s{sb} offen offset:{(f & 3)*1024} sc1")
        if f % 4 == 3: a(f"s_add_u32 s{sb}, s{sb}, 4096")
    NE = 10
    breg = lambda f: 40 + 4*f if f < NE else WO + 4*(f - NE)
    a(f"""
    L2_old:
    s_setprio 0
    v_mov_b32 v3, {CNT}
    v_mov_b32 v4, 1
    s_waitcnt lgkmcnt(0)
    s_mov_b64 exec, 1
    ds_add_u32 v3, v4
    s_mov_b64 exec, -1
    s_add_u32 s48, s51, {4*65536}
    v_mov_b32 v7, {1024 + 528}
    """)
    for i in range(4): a(f"ds_read_b128 {vr(ACC+4*i,4)}, v7\nds_read_b128 {vr(AB+4*i,4)}, v7")
    for f in range(NE): wl(breg(f), 48, f)
    a(f"""
    L2_spin:
    ds_read_b32 v4, v3
    s_waitcnt lgkmcnt(0)
    v_readfirstlane_b32 s49, v4
    s_cmp_ge_u32 s49, 4
    s_cbranch_scc1 L2_go
    s_sleep 2
    s_branch L2_spin
    L2_go:
    """)
    for s_ in range(4): a(f"ds_read_b128 {vr(BF[s_],4)}, v{BA} offset:{s_*128}")
    def half(acc, reg, after):
        for s_ in range(4):
            for i in range(4):
                f = 8*s_ + 2*i
                after(f, 0)
                a(f"{SM16} {vr(acc+4*i,4)}, {vr(BF[s_],4)}, {vr(reg(f),8)}, v{IDX}")
                after(f, 1)
    a(f"s_add_u32 s49, s51, {32768 + ((32 - NE)//4)*4096}\ns_waitcnt lgkmcnt(0)")
    def aftA(f, post):
        if not post: return
        for slot in (f, f + 1):
            if slot < 32 - NE: wl(WO + 4*slot, 48, slot + NE)
            else: wl(WO + 4*slot, 49, slot)
    half(ACC, lambda f: WO + 4*f, aftA)
    a(f"s_add_u32 s49, s51, 32768")
    def aftB(f, post):
        if not post:
            done = max(0, f - NE)
            a(f"s_waitcnt vmcnt({min(63, (31 - (f + 1)) + NE + done)})"); return
        for g in (f, f + 1):
            if g >= NE: wl(WO + 4*(g - NE), 49, g - NE)
    half(AB, breg, aftB)
    a("s_nop 5")
    for i in range(4): a(f"ds_write_b128 v{PA}, {vr(AB+4*i,4)} offset:{1024*i}")
    a("s_waitcnt vmcnt(0)\ns_setprio 1\ns_branch L2_join")
    a(f"""
    L2_slow:
    v_mov_b32 v{KA}, v{LN16}
    v_mov_b32 v{M}, 0xff7fffff
    s_mov_b32 s{sN}, 64
    L2_maxloop:
    ds_read_b128 {vr(KF,4)}, v{KA}
    v_add_u32 v{KA}, {TILE}, v{KA}
    s_waitcnt lgkmcnt(0)
    {MF32} {vr(S,16)}, {vr(KF,4)}, {vr(Q,4)}, 0
    s_sub_u32 s{sN}, s{sN}, 1
    s_nop 10
    """)
    for r in range(8): a(f"v_max3_f32 v{M}, v{S+2*r}, v{S+2*r+1}, v{M}")
    a(f"""
    s_cmp_lg_u32 s{sN}, 0
    s_cbranch_scc1 L2_maxloop
    v_mov_b32 v3, v{M}
    v_mov_b32 v{KA}, v{LN16}
    v_mov_b32 v{VA}, v{VA0}
    v_permlane32_swap_b32 v{M}, v3
    v_max_f32 v{M}, v{M}, v3
    """)
    for r in range(16): a(f"v_sub_f32 v{C+r}, 0, v{M}\nv_mov_b32 v{O+r}, 0")
    a(f"""
    s_mov_b32 s{sN}, 64
    L2_slowloop:
    ds_read_b128 {vr(KF,4)}, v{KA}
    ds_read_b128 {vr(VF,4)}, v{VA}
    ds_read_b128 {vr(VF+4,4)}, v{VA} offset:544
    v_add_u32 v{KA}, {TILE}, v{KA}
    v_add_u32 v{VA}, {TILE}, v{VA}
    s_waitcnt lgkmcnt(0)
    {MF32} {vr(S,16)}, {vr(KF,4)}, {vr(Q,4)}, {vr(C,16)}
    s_sub_u32 s{sN}, s{sN}, 1
    s_nop 10
    """)
    for i in range(16): a(f"v_exp_f32 v{S+i}, v{S+i}")
    a(f"""
    s_nop 1
    {SMF} {vr(O,16)}, {vr(VF,4)}, {vr(S,8)}, v{IDX}
    {SMF} {vr(O,16)}, {vr(VF+4,4)}, {vr(S+8,8)}, v{IDX}
    s_cmp_lg_u32 s{sN}, 0
    s_cbranch_scc1 L2_slowloop
    s_nop 11
    v_rcp_f32 v3, v{O+8}
    s_branch L2_epi
    """)
    k1_cold(a)
    return desc(KNAME, 256, 72)
def main():
    hdr = open("sequential_preLN__grouped_kv_mqa__moe_arch_mod__prompt.s.ref").read().split("\n")
    top = [l for l in hdr if l.startswith(";") and "@launch" not in l and "Override" not in l and "grid=ceil" not in l]
    a = Asm()
    k1(a)
    d = k2(a)
    out = "\n".join(top) + "\n"
    out += f"; @launch grid=(256,1,1) block=(512,1,1) lds={max(K1_LDS, K2_LDS)}\n"
    out += '.amdgcn_target "amdgcn-amd-amdhsa--gfx950"\n.text\n' + a.text() + '.section .rodata,"a"\n' + d
    sys.stdout.write(out)
main()
```

```python
import sys, struct
def f2u(x): return struct.unpack("<I", struct.pack("<f", x))[0]

WS_Q   = 0
WS_KV  = 2 << 20
WS_WO  = 3 << 20
WS_H   = 4 << 20

WS_ST  = (6 << 20) + 0x10000
WS_ACT = (6 << 20) + 0x20000
WS_KEY = WS_ACT + 0x10000
KSH = 5; ASH = 7; FSH = 4
for _x in sys.argv:
    if _x.startswith('--ksh='): KSH = int(_x.split('=')[1])
    if _x.startswith('--fsh='): FSH = int(_x.split('=')[1])
    if _x.startswith('--ash='): ASH = int(_x.split('=')[1])
WS_FLG = WS_KEY + 0x10000
WS_QB = 7 << 20
sEP = 68
KNAME = 'sequential_preLN__grouped_kv_mqa__moe_arch_mod__prompt_kernel'
WS_SIZE = 8 << 20
TILE = 2112
QSCALE = 0.25 * 1.4426950408889634
EPS = 1e-5
SHIFT = 96.0
for _x in sys.argv:
    if _x.startswith('--shift='): SHIFT = float(_x.split('=')[1])

class Asm:
    def __init__(self): self.l = []
    def __call__(self, s):
        for x in s.split("\n"):
            x = x.strip()
            if x.startswith("@S"): stamp(self, int(x[2:])); continue
            if x.startswith("@P"): padstore(self, *[int(t) for t in x[2:].split()]); continue
            if x.startswith("@Q"): padspin(self, *[int(t) for t in x[2:].split()]); continue
            if x.startswith("@T"): padstamp(self, int(x[2:])); continue
            if x.startswith("@D"): dump(self, *[int(t) for t in x[2:].split()]); continue
            if x: self.l.append(("" if x.endswith(":") else "    ") + x)
    def text(self): return "\n".join(self.l) + "\n"

def srd(a, d, p, size):
    a(f"s_mov_b32 s{d}, s{p}\ns_and_b32 s{d+1}, s{p+1}, 0xffff\ns_mov_b32 s{d+2}, {size}\ns_mov_b32 s{d+3}, 0x20000")
def vr(b, n): return f"v[{b}:{b+n-1}]"
def head(a, name):
    a(f".globl {name}\n.p2align 8\n.type {name},@function\n{name}:")
def desc(name, nv, ns):
    return f""".p2align 6
.amdhsa_kernel {name}
  .amdhsa_next_free_vgpr {nv}
  .amdhsa_next_free_sgpr {102 if (DIAG or PAD is not None or '--tsync' in sys.argv) else ns}
  .amdhsa_accum_offset {(nv+3)//4*4}
  .amdhsa_group_segment_fixed_size 0
  .amdhsa_kernarg_size 104
  .amdhsa_user_sgpr_count 2
  .amdhsa_user_sgpr_kernarg_segment_ptr 1
  .amdhsa_system_sgpr_workgroup_id_x 1
.end_amdhsa_kernel
"""
DIAG = "--diag" in sys.argv
WS_DIAG = 16 << 20
if DIAG: WS_SIZE = 32 << 20
LIGHT = '--light' in sys.argv
def stamp(a, i, force=False):
    if LIGHT and i != 0 and not force: return
    if DIAG: a(f"{'s_memtime' if i >= 13 else 's_memrealtime'} s[{70+2*i}:{71+2*i}]\ns_waitcnt lgkmcnt(0)")
DIAG2 = "--diag2" in sys.argv
D2SEL = {0: [(0, 1), (2, 0), (8, 0)], 1: [(0, 1), (1, 0), (3, 0), (4, 0), (8, 0), (10, 0), (12, 0)], 2: [(0, 1), (1, 0), (3, 0), (5, 0), (6, 0), (7, 0)]}
_dl = [0]
def dump(a, kidx, n, WS, sW):
    if not DIAG: return
    stamp(a, min(n - 1, 12), True)
    if DIAG2:
        _dl[0] += 1
        base = sum(len(D2SEL[k]) for k in range(kidx))
        a(f"s_and_b32 s98, s2, 15\ns_cmp_lg_u32 s98, 0\ns_cbranch_scc1 LD_{_dl[0]}\ns_load_dwordx2 s[98:99], s[0:1], 88\ns_mov_b64 exec, 1\nv_mov_b32 v1, 0\ns_waitcnt lgkmcnt(0)\ns_add_u32 s98, s98, {512*(2-kidx)}\ns_addc_u32 s99, s99, 0")
        for j, (i, inv) in enumerate(D2SEL[kidx]):
            a(f"v_mov_b32 v0, s{70+2*i}")
            if inv: a("v_not_b32 v0, v0")
            a(f"global_atomic_umax v1, v0, s[98:99] offset:{4*(base+j)}\ns_nop 1")
        a(f"LD_{_dl[0]}:")
        return
    a(f"s_mov_b64 exec, 1\ns_lshl_b32 s69, s2, 4\ns_add_u32 s69, s69, s{sW}\ns_lshl_b32 s69, s69, 6\ns_add_u32 s69, s69, {WS_DIAG + kidx * (1 << 20)}\nv_mov_b32 v1, 0")
    for i in range(n):
        a(f"v_mov_b32 v0, s{70+2*i}\nbuffer_store_dword v0, v1, s[{WS}:{WS+3}], s69 offen offset:{4*i}")
PAD = [int(x.split("=")[1]) for x in sys.argv if x.startswith("--pad=")]
PAD = PAD[0] if PAD else None
WS_PAD = (6 << 20)
def padstamp(a, k):
    if PAD == k: a("s_memrealtime s[94:95]\ns_waitcnt lgkmcnt(0)")
def padstore(a, k, WS, sW): pass
def padspin(a, WS):
    if PAD is None: return
    a(f"s_mov_b32 s97, 0\nLQ_spin:\ns_memrealtime s[92:93]\ns_waitcnt lgkmcnt(0)\ns_sub_u32 s98, s92, s94\ns_add_u32 s97, s97, 1\ns_cmp_gt_u32 s97, 100000\ns_cbranch_scc1 LQ_done\ns_cmp_lt_u32 s98, 6000\ns_cbranch_scc1 LQ_spin\nLQ_done:")
MF32 = "v_mfma_f32_32x32x16_bf16"
MF16 = "v_mfma_f32_16x16x32_bf16"

ZERO_KB = 8
K1_KV = 131072
K1_CS = 147456
K1_KC = K1_CS + 1024
K1_KP = K1_KC + 1024
K1_PS = K1_KP + 4096
K1_EP = K1_PS + 1024
K1_LDS = K1_EP + 64
QSC = 'sc1' if '--qsc1' in sys.argv else '' if '--qplain' in sys.argv else 'sc0 sc1'
CODE_SPAN = 18600
WOC = 1 if '--woc1' in sys.argv else 2
def rowstat(a, s, m, r):
    a(f"""
    v_add_f32 v{m}, v{s}, v{s+2}
    v_add_f32 v{r}, v{s+1}, v{s+3}
    v_mul_f32 v{m}, {hex(f2u(-1.0/512))}, v{m}
    v_mul_f32 v{r}, {hex(f2u(1.0/512))}, v{r}
    v_fma_f32 v{r}, -v{m}, v{m}, v{r}
    v_max_f32 v{r}, 0, v{r}
    """)
    if "--exactln" in sys.argv:
        a(f"v_add_f32 v{r}, {hex(f2u(EPS))}, v{r}\nv_rsq_f32 v{r}, v{r}")
        return
    a(f"""
    v_cvt_pk_bf16_f32 v{r}, v{m}, v{r}
    v_lshlrev_b32 v{m}, 16, v{r}
    v_and_b32 v{r}, 0xffff0000, v{r}
    v_add_f32 v{r}, {hex(f2u(EPS))}, v{r}
    v_cvt_pk_bf16_f32 v{r}, v{r}, v{r}
    v_and_b32 v{r}, 0xffff0000, v{r}
    v_sqrt_f32 v{r}, v{r}
    s_nop 0
    v_cvt_pk_bf16_f32 v{r}, v{r}, v{r}
    v_and_b32 v{r}, 0xffff0000, v{r}
    v_rcp_f32 v{r}, v{r}
    """)
def split_ab(a, src, dst, kind):
    a(f"v_and_b32 v11, 0xffff0000, v{src}\nv_sub_f32 v12, v{src}, v11")
    if kind == "m": a(f"v_cvt_pk_bf16_f32 v{dst}, v11, v12\nv_cvt_pk_bf16_f32 v{dst+1}, v11, 0")
    else: a(f"v_cvt_pk_bf16_f32 v{dst}, v11, v11\nv_cvt_pk_bf16_f32 v{dst+1}, v12, 0")
def k1(a):
    X, WQ, WKV, WO, WS = 16, 20, 24, 32, 36
    sW, sTG, sCG = 40, 41, 42
    DBG = 28
    ONES = 69
    VL = 13
    head(a, KNAME)
    a(f"""
    s_cmp_ge_u32 s2, 256
    s_cbranch_scc1 L2_end
    @S0
    @T0
    s_load_dwordx8 s[4:11], s[0:1], 0
    s_load_dwordx2 s[12:13], s[0:1], 32
    s_load_dwordx2 s[14:15], s[0:1], 96
    s_load_dwordx2 s[64:65], s[0:1], 88
    v_lshrrev_b32 v1, 6, v0
    v_and_b32 v2, 63, v0
    v_readfirstlane_b32 s{sW}, v1
    s_and_b32 s43, s2, 7
    s_lshr_b32 s44, s2, 3
    s_and_b32 s45, s44, 3
    s_lshl_b32 s{sTG}, s43, 2
    s_add_u32 s{sTG}, s{sTG}, s45
    s_lshr_b32 s{sCG}, s44, 2
    v_and_b32 v3, 15, v2
    v_lshrrev_b32 v4, 4, v2
    v_lshlrev_b32 v{VL}, 4, v2
    s_and_b32 s46, s{sW}, 3
    s_lshl_b32 s50, s46, 12
    s_and_b32 s58, s{sCG}, 3
    s_cmp_lt_u32 s{sW}, 4
    s_cbranch_scc1 L1_gemm
    """)
    VX, VW, WT, CS, WR, XR = 8, 12, 24, 70, 48, 32
    pass
    for i in range(4):
        a(f"v_add_u32 v7, {4*i}, v4\nv_xor_b32 v{VX+i}, v7, v3\nv_lshlrev_b32 v{VX+i}, 4, v{VX+i}\nv_lshl_add_u32 v{VX+i}, v7, 10, v{VX+i}")
    a(f"""
    v_lshrrev_b32 v7, 3, v2
    v_and_b32 v{VW}, 1, v4
    v_lshlrev_b32 v{VW}, 2, v{VW}
    v_and_b32 v14, 7, v2
    v_xor_b32 v{VW}, v{VW}, v14
    v_lshlrev_b32 v{VW}, 4, v{VW}
    v_lshl_add_u32 v{VW}, v7, 10, v{VW}
    s_lshl_b32 s48, s{sTG}, 16
    s_lshl_b32 s43, s46, 14
    s_add_u32 s48, s48, s43
    s_lshl_b32 s49, s46, 15
    s_lshl_b32 s43, s{sCG}, 7
    s_add_u32 s49, s49, s43
    {'s_mov_b32 s55, 0' if '--norot' in sys.argv else f's_add_u32 s55, s{sCG}, s{sTG}'}
    s_waitcnt lgkmcnt(0)
    """)
    srd(a, X, 4, 2 << 20)
    def chunk(c, sh): a(f"s_add_u32 s43, s55, {c}\ns_and_b32 s43, s43, 3\ns_lshl_b32 s43, s43, {sh}")
    def issx(c):
        chunk(c, 8); a("s_add_u32 s51, s48, s43")
        for i in range(4):
            a(f"s_add_u32 m0, s50, {c*16384 + i*1024}\ns_nop 0\nbuffer_load_dwordx4 v{VX+i}, s[{X}:{X+3}], s51 offen lds")
    def issw(c):
        chunk(c, 17); a("s_add_u32 s51, s49, s43")
        for i in range(4):
            a(f"s_add_u32 m0, s50, {65536 + c*16384 + i*1024}\ns_add_u32 s52, s51, {8*i*1024}\nbuffer_load_dwordx4 v{VW}, s[{WQ}:{WQ+3}], s52 offen lds")
    def isskv(c):
        chunk(c, 12)
        a(f"s_add_u32 m0, s61, {K1_KV + c*4096}\ns_add_u32 s52, s61, s43\nbuffer_load_dwordx4 v{VL}, s[{WKV}:{WKV+3}], s52 offen lds")
    issx(0)
    a(f"s_cmp_ge_u32 s{sCG}, 4\ns_cselect_b32 s8, s10, s8\ns_cselect_b32 s9, s11, s9\ns_lshl_b32 s61, s46, 10")
    srd(a, WKV, 8, 16 << 10)
    isskv(0); issx(1); isskv(1)
    srd(a, WQ, 6, 512 << 10)
    a(f"""
    v_mov_b32 v{ONES}, 0x3f803f80
    v_add_u32 v30, {K1_KC}, v{VL}
    s_lshl_b32 s43, s58, 8
    s_add_u32 s43, s43, {K1_PS}
    v_lshl_add_u32 v31, v3, 4, s43
    s_lshl_b32 s56, s{sTG}, 1
    s_lshr_b32 s43, s58, 1
    s_add_u32 s56, s56, s43
    s_mul_i32 s56, s56, {TILE}
    s_add_u32 s56, s56, {WS_KV}
    s_and_b32 s57, s58, 1
    s_lshl_b32 s43, s57, 8
    s_mul_i32 s44, s57, 544
    s_add_u32 s44, s44, 1024
    s_cmp_ge_u32 s{sCG}, 4
    s_cselect_b32 s43, s44, s43
    s_cselect_b64 s[62:63], -1, 0
    s_add_u32 s56, s56, s43
    v_and_b32 v14, 1, v4
    v_lshrrev_b32 v15, 1, v4
    v_lshlrev_b32 v26, 9, v14
    v_lshl_add_u32 v26, v15, 3, v26
    v_lshlrev_b32 v27, 8, v15
    v_lshl_add_u32 v27, v14, 3, v27
    v_cndmask_b32 v26, v26, v27, s[62:63]
    v_lshl_add_u32 v26, v3, 4, v26
    v_lshlrev_b32 v27, 4, v4
    v_lshlrev_b32 v28, 2, v3
    v_cndmask_b32 v27, v28, v27, s[62:63]
    v_cndmask_b32 v28, 0, 4, s[62:63]
    v_mov_b32 v29, 0x7fff0000
    v_mov_b32 v74, 0
    v_mov_b32 v75, 0
    v_mov_b32 v78, 0
    v_mov_b32 v79, 0
    """)
    srd(a, WS, 14, WS_SIZE); srd(a, DBG, 64, 256)
    a(f"v_mov_b32 v93, {K1_EP}\nv_mov_b32 v94, 0")
    size = [5, 5, 5, 5, 4, 4, 4, 4]
    for g in range(5):
        if g + 2 < 4: issx(g + 2); isskv(g + 2)
        else: issw(g - 2)
        a(f"s_waitcnt vmcnt({sum(size[g+1:g+3])})\ns_barrier")
    a(f"buffer_load_dword v66, v94, s[{DBG}:{DBG+3}], 0 offen sc1")
    issw(3)
    a(f"""
    s_cmp_eq_u32 s46, 0
    s_cbranch_scc1 L1_fin
    s_waitcnt vmcnt(9)
    s_barrier
    s_waitcnt vmcnt(5)
    s_barrier
    s_waitcnt vmcnt(0)
    v_readfirstlane_b32 s{sEP}, v66
    s_cmp_eq_u32 s{sEP}, 0
    s_cbranch_scc1 L1_tag
    L1_tagok0:
    ds_write_b32 v93, v66
    s_waitcnt lgkmcnt(0)
    s_barrier
    s_branch L2_start
    L1_fin:
    ds_read_b128 v[80:83], v31
    ds_read_b128 v[84:87], v30
    ds_read_b128 {vr(XR,4)}, v30 offset:1024
    ds_read_b128 {vr(XR+4,4)}, v30 offset:2048
    ds_read_b128 {vr(XR+8,4)}, v30 offset:3072
    ds_read_b128 {vr(XR+12,4)}, v30 offset:4096
    s_waitcnt lgkmcnt(4)
    """)
    rowstat(a, 80, 8, 9)
    a(f"""
    v_add_f32 v84, v84, v85
    v_add_f32 v86, v86, v87
    ds_bpermute_b32 v88, v27, v9
    v_add_u32 v27, v27, v28
    ds_bpermute_b32 v89, v27, v9
    v_add_u32 v27, v27, v28
    ds_bpermute_b32 v90, v27, v9
    v_add_u32 v27, v27, v28
    ds_bpermute_b32 v91, v27, v9
    v_add_f32 v84, v84, v86
    v_cndmask_b32 v85, v84, v8, s[62:63]
    v_cndmask_b32 v86, v8, v84, s[62:63]
    """)
    split_ab(a, 85, 72, "c"); split_ab(a, 86, 76, "m")
    a("s_waitcnt lgkmcnt(4)")
    for r in range(4):
        a(f"v_add_f32 v{XR+r}, v{XR+r}, v{XR+4+r}\nv_add_f32 v{XR+8+r}, v{XR+8+r}, v{XR+12+r}")
    for r in range(4): a(f"v_add_f32 v{XR+r}, v{XR+r}, v{XR+8+r}")
    a(f"""
    v_cmp_gt_u32 vcc, 4, v2
    v_lshlrev_b32 v12, 2, v2
    {MF16} {vr(XR,4)}, v[72:75], v[76:79], {vr(XR,4)}
    v_cndmask_b32 v14, 0, v{ONES}, vcc
    s_and_b64 s[62:63], s[62:63], 0xff
    s_waitcnt lgkmcnt(0)
    s_nop 4
    """)
    for r in range(4): a(f"v_mul_f32 v{XR+r}, v{88+r}, v{XR+r}")
    a(f"""
    v_cvt_pk_bf16_f32 v{XR}, v{XR}, v{XR+1}
    v_cvt_pk_bf16_f32 v{XR+1}, v{XR+2}, v{XR+3}
    buffer_store_dwordx2 {vr(XR,2)}, v26, s[{WS}:{WS+3}], s56 offen sc0 sc1
    v_cndmask_b32 v12, v29, v12, s[62:63]
    buffer_store_dword v14, v12, s[{WS}:{WS+3}], s56 offen offset:512 sc0 sc1
    s_lshl_b32 s43, s2, {FSH}
    s_add_u32 s43, s43, {WS_FLG}
    v_mov_b32 v7, 0
    s_waitcnt vmcnt(11)
    s_barrier
    s_waitcnt vmcnt(7)
    s_barrier
    {'s_waitcnt vmcnt(2)' if '--fb' in sys.argv else ''}
    {'s_barrier' if '--fb' in sys.argv else ''}
    s_waitcnt vmcnt(0)
    v_readfirstlane_b32 s{sEP}, v66
    s_cmp_eq_u32 s{sEP}, 0
    s_cbranch_scc1 L1_tag
    L1_tagok1:
    s_mov_b64 exec, 1
    buffer_store_dword v66, v7, s[{WS}:{WS+3}], s43 offen sc0 sc1
    s_mov_b64 exec, -1
    @S1
    {'' if '--fb' in sys.argv else 's_barrier'}
    s_branch L2_start
    """)
    D1 = 16
    XF, WF = 120, 32
    XA, WA, WB, WOD = 72, 68, 70, 80
    KX, KW = 92, 93
    SX, SXX, KC, KD = 14, 15, 71, 96
    KF = 104
    a(f"""
    L1_gemm:
    v_and_b32 v5, 31, v2
    v_lshrrev_b32 v6, 5, v2
    s_and_b32 s53, s{sW}, 1
    s_lshr_b32 s54, s{sW}, 1
    s_lshl_b32 s59, s2, 1
    s_add_u32 s59, s59, s53
    s_lshr_b32 s43, s59, 6
    s_lshl_b32 s47, s43, 7
    s_lshr_b32 s44, s59, 3
    s_and_b32 s44, s44, 7
    s_lshl_b32 s44, s44, 16
    s_add_u32 s47, s47, s44
    s_lshl_b32 s44, s53, 15
    s_add_u32 s47, s47, s44
    s_and_b32 s44, s59, 2
    s_lshl_b32 s44, s44, 5
    s_add_u32 s47, s47, s44
    s_and_b32 s44, s59, 4
    s_lshr_b32 s44, s44, 1
    s_add_u32 s47, s47, s44
    v_lshlrev_b32 v7, 2, v3
    v_lshl_add_u32 v7, v6, 14, v7
    v_and_b32 v8, 1, v4
    v_lshl_add_u32 v7, v8, 12, v7
    v_add_u32 v8, 8192, v7
    s_waitcnt lgkmcnt(0)
    """)
    if "--pf" in sys.argv:
        a(f"""
        s_lshr_b32 s43, s2, 3
        s_lshl_b32 s43, s43, 14
        s_lshl_b32 s44, s53, 13
        s_add_u32 s43, s43, s44
        s_lshl_b32 s44, s{sTG}, 16
        s_lshl_b32 s45, s{sCG}, 13
        s_add_u32 s44, s44, s45
        s_cmp_eq_u32 s{sW}, 3
        s_cselect_b32 s44, 0x400000, s44
        s_cmp_ge_u32 s{sW}, 2
        s_cselect_b32 s43, s44, s43
        s_cselect_b32 s{X}, s4, s6
        s_cselect_b32 s{X+1}, s5, s7
        s_mov_b32 s{X+2}, 0x80000
        s_cselect_b32 s{X+2}, 0x200000, s{X+2}
        s_and_b32 s{X+1}, s{X+1}, 0xffff
        s_mov_b32 s{X+3}, 0x20000
        v_lshlrev_b32 v9, 7, v2
        buffer_load_dword v252, v9, s[{X}:{X+3}], s43 offen
        """)
    srd(a, WO, 12, 512 << 10); srd(a, WS, 14, WS_SIZE); srd(a, DBG, 64, 256)
    a(f"s_cmp_ge_u32 s{sW}, 2\ns_cbranch_scc1 L1_nowo")
    for j in range(8):
        ro = (0, 1, 8, 9, 2, 3, 10, 11)[j]
        a(f"buffer_load_ushort v{WOD + j}, v{7 + ro//8}, s[{WO}:{WO+3}], s47 offen offset:{(ro & 3) * 1024}")
    a(f"""
    s_branch L1_noz
    L1_nowo:
    s_cmp_eq_u32 s{sW}, 2
    s_cbranch_scc1 L1_ini
    """)
    if "--tlb" in sys.argv:
        a(f"""
        s_load_dwordx8 s[16:23], s[0:1], 48
        s_load_dwordx2 s[24:25], s[0:1], 80
        v_lshlrev_b32 v9, 20, v2
        s_mov_b64 exec, 0xff
        buffer_load_dword v252, v9, s[{WS}:{WS+3}], 0 offen offset:2048
        s_mov_b64 exec, 1
        global_load_dword v253, v9, s[6:7]
        s_waitcnt lgkmcnt(0)
        global_load_dword v253, v9, s[16:17]
        global_load_dword v253, v9, s[18:19]
        global_load_dword v253, v9, s[20:21]
        global_load_dword v253, v9, s[22:23]
        global_load_dword v253, v9, s[24:25]
        s_mov_b64 exec, -1
        """)
    a(f"""
    s_cmp_lg_u32 s2, 0
    s_cbranch_scc1 L1_noz
    s_memrealtime s[44:45]
    v_mov_b32 v9, 0
    s_waitcnt lgkmcnt(0)
    s_or_b32 s44, s44, 1
    v_mov_b32 v{WOD}, s44
    s_mov_b64 exec, 1
    buffer_store_dword v{WOD}, v9, s[{DBG}:{DBG+3}], 0 offen sc0 sc1
    s_mov_b64 exec, -1
    s_branch L1_noz
    L1_ini:
    s_cmp_lt_u32 s2, 172
    s_cselect_b32 s44, -1, 0
    v_mov_b32 v{WOD}, s44
    v_mov_b32 v{WOD+1}, 0
    v_lshlrev_b32 v9, 2, v2
    s_lshl_b32 s43, s2, {ASH}
    s_add_u32 s43, s43, {WS_ACT}
    s_lshl_b32 s44, s2, {KSH}
    s_add_u32 s44, s44, {WS_KEY}
    s_mov_b64 exec, 0xff
    buffer_store_dword v{WOD}, v9, s[{WS}:{WS+3}], s43 offen sc0 sc1
    s_mov_b64 exec, 3
    buffer_store_dword v{WOD+1}, v9, s[{WS}:{WS+3}], s44 offen sc0 sc1
        s_mov_b64 exec, -1
    L1_noz:
    """)
    if "--cpf" in sys.argv:
        a(f"""
        s_getpc_b64 s[44:45]
        s_and_b32 s44, s44, 0xffffff00
        s_lshr_b32 s43, s2, 3
        s_lshl_b32 s43, s43, 2
        s_add_u32 s43, s43, s{sW}
        s_lshl_b32 s43, s43, 8
        v_lshl_add_u32 v9, v2, 2, s43
        v_min_u32 v9, {CODE_SPAN}, v9
        global_load_dword v252, v9, s[44:45]
        """)
    a(f"""
    s_lshl_b32 s43, s54, 1
    v_xor_b32 v12, s43, v3
    s_lshl_b32 s43, s53, 13
    v_lshlrev_b32 v9, 8, v5
    v_add_u32 v9, s43, v9
    """)
    for j in range(8):
        a(f"v_add_u32 v10, {2*j}, v6\nv_xor_b32 v10, v10, v12\nv_lshl_add_u32 v{XA+j}, v10, 4, v9")
    a(f"""
    v_lshrrev_b32 v9, 2, v3
    v_lshl_add_u32 v10, v6, 3, v9
    v_lshlrev_b32 v10, 7, v10
    v_lshrrev_b32 v11, 1, v9
    v_xor_b32 v11, s54, v11
    v_lshl_add_u32 v10, v11, 6, v10
    v_and_b32 v11, 1, v4
    v_lshl_add_u32 v10, v11, 5, v10
    v_and_b32 v11, 3, v3
    v_lshl_add_u32 v10, v11, 3, v10
    s_lshl_b32 s43, s54, 11
    s_add_u32 s44, s43, 0x10000
    s_sub_u32 s43, {0x10000 + 2048}, s43
    v_add_u32 v{WA}, s44, v10
    v_add_u32 v{WB}, s43, v10
    v_lshl_add_u32 v{KW}, v4, 3, v9
    v_lshlrev_b32 v{KW}, 5, v{KW}
    v_lshl_add_u32 v{KW}, v11, 3, v{KW}
    s_lshl_b32 s43, s46, 10
    s_add_u32 s43, s43, {K1_KV}
    v_add_u32 v{KW}, s43, v{KW}
    s_lshl_b32 s43, s46, 2
    v_add_u32 v{KX}, s43, v4
    v_xor_b32 v{KX}, v{KX}, v3
    v_lshlrev_b32 v{KX}, 4, v{KX}
    v_lshl_add_u32 v{KX}, v3, 8, v{KX}
    s_lshl_b32 s43, s58, 12
    v_add_u32 v{KX}, s43, v{KX}
    v_lshrrev_b32 v64, 3, v5
    v_lshlrev_b32 v64, 13, v64
    v_and_b32 v11, 7, v5
    v_lshl_add_u32 v64, v11, 4, v64
    v_lshl_add_u32 v64, v6, 9, v64
    s_lshl_b32 s60, s{sTG}, 16
    s_lshl_b32 s44, s53, 15
    s_add_u32 s60, s60, s44
    s_lshl_b32 s44, s{sCG}, 10
    s_add_u32 s60, s60, s44
    s_lshl_b32 s44, s54, 8
    s_add_u32 s60, s60, s44
    s_add_u32 s60, s60, {WS_Q}
    s_lshl_b32 s43, s53, 9
    s_add_u32 s43, s43, {K1_PS}
    v_lshl_add_u32 v67, v5, 4, s43
    s_lshl_b32 s43, s54, 3
    v_lshl_add_u32 v65, v6, 2, v67
    v_add_u32 v65, s43, v65
    s_lshl_b32 s43, s46, 2
    s_add_u32 s43, s43, {K1_KC}
    v_add_u32 v94, s43, v{VL}
    s_lshl_b32 s43, s46, 10
    s_add_u32 s43, s43, {K1_KP}
    v_add_u32 v95, s43, v{VL}
    s_lshl_b32 s59, s59, 10
    s_add_u32 s59, s59, {WS_WO}
    s_cmp_ge_u32 s{sW}, 2
    s_cselect_b32 s59, {WS_SIZE}, s59
    s_cmp_ge_u32 s{sCG}, 4
    s_cselect_b64 s[62:63], -1, 0
    v_mov_b32 v{ONES}, 0x3f803f80
    v_mov_b32 v{SX}, 0
    v_mov_b32 v{SXX}, 0
    v_mov_b32 v{KC}, 0
    v_mov_b32 v90, 0
    v_mov_b32 v91, 0
    v_mov_b32 v250, 0
    v_mov_b32 v251, 0
    """)
    def xreads(c):
        kx, kw = KF + 8*(c & 1), KF + 8*(c & 1) + 4
        for u in (0, 2, 4, 6): a(f"ds_read_b128 {vr(XF+32*c+4*u,4)}, v{XA+u} offset:{c*16384}")
        a(f"ds_read_b128 {vr(kx,4)}, v{KX} offset:{c*16384}")
        a(f"ds_read_b64_tr_b16 {vr(kw,2)}, v{KW} offset:{c*4096}\nds_read_b64_tr_b16 {vr(kw+2,2)}, v{KW} offset:{c*4096+128}")
        for u in (1, 3, 5, 7): a(f"ds_read_b128 {vr(XF+32*c+4*u,4)}, v{XA+u} offset:{c*16384}")
    def wread(ks):
        ar = WB if ks & 1 else WA
        off = (ks & ~1) * 2048
        a(f"ds_read_b64_tr_b16 {vr(WF+4*(ks&7),2)}, v{ar} offset:{off}\nds_read_b64_tr_b16 {vr(WF+4*(ks&7)+2,2)}, v{ar} offset:{off + 512}")
    def work(c):
        kx, kw = KF + 8*(c & 1), KF + 8*(c & 1) + 4
        for u in (0, 2, 4, 6):
            a(f"s_waitcnt lgkmcnt({10 - u//2})")
            for q in range(4): a(f"v_dot2c_f32_bf16 v{SX}, v{XF+32*c+4*u+q}, v{ONES}\nv_dot2c_f32_bf16 v{SXX}, v{XF+32*c+4*u+q}, v{XF+32*c+4*u+q}")
        a("s_waitcnt lgkmcnt(4)")
        for q in range(4): a(f"v_dot2c_f32_bf16 v{KC}, v{kw+q}, v{ONES}")
        a(f"{MF16} {vr(KD,4)}, {vr(kw,4)}, {vr(kx,4)}, {'0' if c == 0 else vr(KD,4)}")
        a(f"{MF16} {vr(KD+4,4)}, {vr(kx,4)}, {vr(kw,4)}, {'0' if c == 0 else vr(KD+4,4)}")
    for c in range(4):
        a("s_barrier")
        if c == 0: a("@T3")
        xreads(c)
        work(c)
        if c == WOC:
            a(f"""
            s_waitcnt vmcnt(0)
            v_lshl_or_b32 v{WOD}, v{WOD+1}, 16, v{WOD}
            v_lshl_or_b32 v{WOD+1}, v{WOD+3}, 16, v{WOD+2}
            v_lshl_or_b32 v{WOD+2}, v{WOD+5}, 16, v{WOD+4}
            v_lshl_or_b32 v{WOD+3}, v{WOD+7}, 16, v{WOD+6}
            buffer_store_dwordx4 {vr(WOD,4)}, v{VL}, s[{WS}:{WS+3}], s59 offen sc0 sc1
            """)
    a(f"""
    v_permlane32_swap_b32 v{SX}, v{SXX}
    s_nop 0
    ds_write_b32 v94, v{KC}
    v_add_f32 v{SX}, v{SX}, v{SXX}
    v_mov_b32 v7, {K1_EP}
    ds_write_b32 v65, v{SX}
    s_nop 1
    """)
    for r in range(4): a(f"v_cndmask_b32 v{KD+r}, v{KD+r}, v{KD+4+r}, s[62:63]")
    a(f"ds_write_b128 v95, {vr(KD,4)}\nds_write_b32 v7, v90 offset:8\nv_mov_b32 v{SXX}, 0\ns_waitcnt lgkmcnt(0)\ns_barrier\n@T4\n@S2")
    for ks in range(7): wread(ks)
    a("s_waitcnt lgkmcnt(12)")
    wread(7)
    for g in range(8):
        a(f"s_waitcnt lgkmcnt({8 if g < 7 else 0})")
        for ks in range(4*g, 4*g + 4):
            for q in range(4): a(f"v_dot2c_f32_bf16 v{SXX}, v{WF+4*(ks&7)+q}, v{ONES}")
        if g == 2: a("s_waitcnt vmcnt(0)")
        if g % 2 == 0 and g < 6: a("s_barrier")
        if g == 2: a("ds_read_b128 v[84:87], v67")
        if g == 4: a("@S10\nds_read_b32 v66, v7")
        if g == 2: a("@S6")
        if g == 0: a("@S5")
        if g == 6: a(f"v_readfirstlane_b32 s{sEP}, v66")
        for ks in range(4*g, 4*g + 4):
            a(f"{MF32} {vr(D1,16)}, {vr(WF+4*(ks&7),4)}, {vr(XF+4*ks,4)}, {'0' if ks == 0 else vr(D1,16)}")
            if ks + 8 < 32: wread(ks + 8)
            if ks == 16: rowstat(a, 84, 8, 9)
            if ks == 17: split_ab(a, 8, 88, "m"); a(f"v_mul_f32 v10, {hex(f2u(QSCALE))}, v9")
            if ks == 29: a("s_nop 0"); split_ab(a, SXX, 248, "c")
    a(f"""
    {MF32} {vr(D1,16)}, v[248:251], v[88:91], {vr(D1,16)}
    v_mov_b32 v35, v66
    v_mov_b32 v39, v66
    v_mov_b32 v43, v66
    v_lshrrev_b32 v44, 3, v5
    v_lshlrev_b32 v44, 12, v44
    v_and_b32 v11, 7, v5
    v_lshl_add_u32 v44, v11, 4, v44
    v_lshl_add_u32 v44, v6, 8, v44
    s_sub_u32 s61, s60, {WS_Q}
    s_lshr_b32 s61, s61, 1
    s_add_u32 s61, s61, {WS_QB}
    s_nop 0
    """)
    dst = [32, 33, 34, 36, 40, 41, 42, 37]
    for r in range(8):
        a(f"v_mul_f32 v{D1+2*r}, v10, v{D1+2*r}\nv_mul_f32 v{D1+2*r+1}, v10, v{D1+2*r+1}\nv_cvt_pk_bf16_f32 v{dst[r]}, v{D1+2*r}, v{D1+2*r+1}")
        if r == 2: a(f"buffer_store_dwordx4 v[32:35], v64, s[{WS}:{WS+3}], s60 offen {QSC}")
        if r == 6: a(f"buffer_store_dwordx4 v[40:43], v64, s[{WS}:{WS+3}], s60 offen offset:128 {QSC}")
    a(f"""
    buffer_store_dwordx4 v[36:39], v44, s[{WS}:{WS+3}], s61 offen {QSC}
    @T5
    @S1
    """)
def k1_cold(a):
    DBG = 28
    a(f"""
    L1_tag:
    s_mov_b32 s47, 0
    L1_tagl:
    buffer_load_dword v66, v94, s[{DBG}:{DBG+3}], 0 offen sc1
    s_add_u32 s47, s47, 1
    s_waitcnt vmcnt(0)
    v_readfirstlane_b32 s{sEP}, v66
    s_cmp_gt_u32 s47, 0x40000
    s_cbranch_scc1 L1_tagx
    s_cmp_eq_u32 s{sEP}, 0
    s_cbranch_scc1 L1_tagl
    L1_tagx:
    s_cmp_eq_u32 s46, 0
    s_cbranch_scc1 L1_tagok1
    s_branch L1_tagok0
    """)
KV_BYTES = 64 * TILE
OB = KV_BYTES
RED = OB + 8 * 1040
PART = RED + 1024
CNT = PART + 16384
K2_LDS = CNT + 64
FW = 0
FR = 32768
SMF = "v_smfmac_f32_32x32x32_bf16"
SM16 = "v_smfmac_f32_16x16x64_bf16"
LOG2E = 1.4426950408889634
KMAP = '--nokmap' not in sys.argv
KSLEEP = ''
for _x in sys.argv:
    if _x.startswith('--ksleep='): KSLEEP = 's_sleep ' + _x.split('=')[1]
OSC = 'sc0 sc1' if '--osc' in sys.argv else 'nt' if '--ont' in sys.argv else ''
SLEEP = 's_nop 0'
for _x in sys.argv:
    if _x.startswith('--sleep='): SLEEP = 's_sleep ' + _x.split('=')[1]
def k2(a):
    X, WR_, OUT, WS, FA, FB = 16, 20, 24, 28, 32, 36
    sW, sN, sG = 40, 43, 41
    Q, C, KF, VF, S, O = 8, 12, 28, 36, 52, 84
    IDX, KA, VA, LN16, XO, WRO, M, VA0 = 100, 101, 102, 103, 104, 105, 106, 107
    WO = 108; XRES, WRV, FWR = 236, 240, 244
    BAR_TILE = 10
    X_ = [x for x in sys.argv if x.startswith("--x")]
    a(f"""
    L2_start:
    s_load_dwordx8 s[52:59], s[0:1], 48
    s_load_dwordx2 s[8:9], s[0:1], 80
    v_lshlrev_b32 v{LN16}, 4, v2
    v_and_b32 v5, 31, v2
    v_lshrrev_b32 v6, 5, v2
    s_lshl_b32 s{sG}, s41, 3
    s_add_u32 s{sG}, s{sG}, s42
    s_lshl_b32 s44, s{sG}, 13
    s_lshl_b32 s45, s{sW}, 10
    s_add_u32 s46, s44, s45
    s_add_u32 s47, s45, {WS_KV}
    s_lshl_b32 s50, s{sW}, 16
    s_add_u32 s51, s50, {WS_WO}
    s_and_b32 s48, s{sW}, 4
    s_lshl_b32 s48, s48, 13
    s_add_u32 s50, s51, s48
    """)
    srd(a, WS, 14, WS_SIZE)
    def dma(i):
        return [f"s_add_u32 m0, s45, {i*8192}", f"s_add_u32 s48, s47, {i*8192}", f"buffer_load_dwordx4 v{LN16}, s[{WS}:{WS+3}], s48 offen sc1 lds"]
    a("s_waitcnt lgkmcnt(0)")
    srd(a, X, 4, 2 << 20); srd(a, WR_, 52, 1024); srd(a, OUT, 8, 2 << 20)
    a(f"""
    v_lshlrev_b32 v3, 8, v6
    v_lshl_add_u32 v3, v5, 4, v3
    v_and_b32 v4, 27, v5
    v_cmp_eq_u32 vcc, 16, v4
    v_mov_b32 v4, 528
    v_mov_b32 v7, 512
    v_cndmask_b32 v4, v4, v7, vcc
    v_cmp_gt_u32 vcc, 16, v5
    v_mov_b32 v{KA}, v{LN16}
    v_mov_b32 v{IDX}, 0xdddddddd
    v_cndmask_b32 v3, v4, v3, vcc
    v_add_u32 v{VA0}, 1024, v3
    v_mov_b32 v{VA}, v{VA0}
    v_and_b32 v3, 12, v2
    v_lshlrev_b32 v3, 2, v3
    v_lshl_add_u32 v3, v6, 6, v3
    s_lshl_b32 s49, s{sW}, 7
    v_add_u32 v{WRO}, s49, v3
    v_and_b32 v4, 16, v2
    v_lshlrev_b32 v4, 8, v4
    v_and_b32 v3, 15, v2
    v_lshl_add_u32 v0, v3, 2, v4
    v_lshl_add_u32 v0, v6, 6, v0
    v_add_u32 v0, s49, v0
    v_and_b32 v3, 3, v2
    v_lshl_add_u32 v4, v3, 10, v4
    v_add_u32 v{XO}, v4, v{WRO}
    s_and_b32 s48, s2, 7
    s_lshr_b32 s49, s2, 3
    s_mul_i32 s64, s48, 22
    s_add_u32 s64, s64, s49
    s_lshl_b32 s48, s48, 3
    s_add_u32 s48, s48, s49
    s_sub_u32 s61, s48, 22
    s_and_b32 s61, s61, 63
    s_lshl_b32 s61, s61, 4
    s_min_u32 s48, s64, 171
    s_lshl_b32 s48, s48, 4
    s_mul_i32 s49, s{sW}, {64*2752}
    s_add_u32 s48, s48, s49
    s_lshl_b32 s49, s{sW}, 16
    s_add_u32 s49, s49, s61
    s_add_u32 s66, s49, {512*1024}
    s_add_u32 s67, s49, {1024*1024}
    s_movk_i32 s60, 2752
    s_cmp_ge_u32 s2, 176
    s_cselect_b32 s65, s49, s48
    s_cselect_b32 s66, s66, s48
    s_cselect_b32 s67, s67, 0x200000
    s_cselect_b32 s60, 0x400, s60
    s_cselect_b32 s54, s58, s54
    s_cselect_b32 s55, s59, s55
    s_cselect_b32 s56, s58, s56
    s_cselect_b32 s57, s59, s57
    v_mul_u32_u24 v1, s60, v2
    """)
    srd(a, FA, 54, 512*2752); srd(a, FB, 56, 512*2752)
    a(f"""
    s_mov_b32 s60, {16*8192}
    s_cmp_lt_u32 s{sW}, 4
    s_cselect_b32 s60, s60, {WS_SIZE}
    v_mov_b32 v3, {CNT}
    """)
    for r in range(16): a(f"v_mov_b32 v{O+r}, 0")
    a(f"""
    ds_write_b32 v3, v{O}
    ds_write_b128 v3, {vr(O,4)} offset:16
    s_lshr_b32 s12, s46, 1
    s_add_u32 s12, s12, {WS_QB}
    s_add_u32 s46, s46, {WS_Q}
    v_lshrrev_b32 v7, 4, v2
    v_lshlrev_b32 v7, 7, v7
    v_and_b32 v4, 7, v2
    v_lshl_add_u32 v7, v4, 4, v7
    s_cmp_lt_u32 s{sW}, 4
    s_cbranch_scc1 L2_noflag
    s_sub_u32 s13, s{sW}, 4
    """)
    if "--fw1" not in sys.argv:
        a(f"""
        s_lshl_b32 s48, s13, {FSH + 6}
        s_add_u32 s48, s48, {WS_FLG}
        v_lshlrev_b32 v3, {FSH}, v2
        s_mov_b32 s49, 0
        L2_fpoll:
        buffer_load_dword v4, v3, s[{WS}:{WS+3}], s48 offen sc1
        s_add_u32 s49, s49, 1
        s_waitcnt vmcnt(0)
        v_cmp_ne_u32 vcc, s{sEP}, v4
        s_cmp_gt_u32 s49, 0x40000
        s_cbranch_scc1 L2_fgot
        s_and_b64 exec, exec, vcc
        s_cbranch_scc1 L2_fpoll
        L2_fgot:
        s_mov_b64 exec, 1
        v_mov_b32 v3, {K1_EP + 8}
        v_mov_b32 v4, 1
        ds_add_u32 v3, v4
        """)
    else:
        a(f"""
        s_cmp_lg_u32 s{sW}, 5
        s_cbranch_scc1 L2_fwait
        s_mov_b32 s48, {WS_FLG}
        v_lshlrev_b32 v3, {KSH + 2}, v2
        s_mov_b32 s49, 0
        L2_fpoll:
        """)
        for q in range(4): a(f"buffer_load_dword v{S+q}, v3, s[{WS}:{WS+3}], s48 offen offset:{q << KSH} sc1")
        a(f"""
        s_add_u32 s49, s49, 1
        s_waitcnt vmcnt(0)
        v_xor_b32 v{S}, s{sEP}, v{S}
        v_xor_b32 v{S+1}, s{sEP}, v{S+1}
        v_xor_b32 v{S+2}, s{sEP}, v{S+2}
        v_xor_b32 v{S+3}, s{sEP}, v{S+3}
        v_or3_b32 v4, v{S}, v{S+1}, v{S+2}
        v_or_b32 v4, v4, v{S+3}
        v_cmp_ne_u32 vcc, 0, v4
        s_cmp_gt_u32 s49, 0x40000
        s_cbranch_scc1 L2_fgot
        s_and_b64 exec, exec, vcc
        s_cbranch_scc1 L2_fpoll
        L2_fgot:
        s_mov_b64 exec, 1
        v_mov_b32 v3, {K1_EP + 8}
        v_mov_b32 v4, 4
        ds_write_b32 v3, v4
        L2_fwait:
        s_mov_b64 exec, 1
        v_mov_b32 v3, {K1_EP + 8}
        """)
    a(f"""
    L2_fspin:
    ds_read_b32 v4, v3
    s_waitcnt lgkmcnt(0)
    v_readfirstlane_b32 s49, v4
    s_cmp_lt_u32 s49, 4
    s_cbranch_scc1 L2_fspin
    s_mov_b64 exec, -1
    @S2
    s_lshl_b32 s13, s13, 10
    s_add_u32 s62, s13, {WS_KV}
    """)
    for i in range(6):
        a(f"s_add_u32 m0, s13, {i*4096}\ns_add_u32 s48, s62, {i*4096}\nbuffer_load_dwordx4 v{LN16}, s[{WS}:{WS+3}], s48 offen sc1 lds")
    a(f"""
    L2_noflag:
    {'' if '--nobarA' in sys.argv else 's_barrier'}
    @T6
    s_mov_b32 s49, 0
    L2_qpoll:
    buffer_load_dwordx4 {vr(Q,4)}, v{LN16}, s[{WS}:{WS+3}], s46 offen sc1
    buffer_load_dwordx4 {vr(S,4)}, v7, s[{WS}:{WS+3}], s12 offen sc1
    s_add_u32 s49, s49, 1
    s_waitcnt vmcnt(0)
    v_cmp_ne_u32 vcc, s{sEP}, v{Q+3}
    v_cmp_ne_u32 s[62:63], s{sEP}, v{S+3}
    s_cmp_gt_u32 s49, 0x40000
    s_cbranch_scc1 L2_qgot
    s_or_b64 exec, vcc, s[62:63]
    s_cbranch_scc1 L2_qpoll
    L2_qgot:
    s_mov_b64 exec, -1
    s_mov_b32 s62, 0xff00ff00
    s_mov_b32 s63, s62
    v_cndmask_b32 v{Q+3}, v{S}, v{S+1}, s[62:63]
    s_waitcnt lgkmcnt(0)
    s_barrier
    @S3
    ds_read_b128 {vr(KF,4)}, v{KA}
    ds_read_b128 {vr(KF+4,4)}, v{KA} offset:{TILE}
    ds_read_b128 {vr(VF,4)}, v{VA}
    ds_read_b128 {vr(VF+4,4)}, v{VA} offset:544
    s_waitcnt lgkmcnt(3)
    {MF32} {vr(S,16)}, {vr(KF,4)}, {vr(Q,4)}, 0
    s_waitcnt lgkmcnt(2)
    {MF32} {vr(S+16,16)}, {vr(KF+4,4)}, {vr(Q,4)}, 0
    s_nop 9
    v_max3_f32 v{M}, v{S}, v{S+1}, v{S+2}
    """)
    for r in range(3, 31, 2): a(f"v_max3_f32 v{M}, v{S+r}, v{S+r+1}, v{M}")
    a(f"""
    v_max_f32 v{M}, v{S+31}, v{M}
    v_mov_b32 v3, v{M}
    s_nop 1
    v_permlane32_swap_b32 v{M}, v3
    v_max_f32 v{M}, v{M}, v3
    v_sub_f32 v{C}, {hex(f2u(-SHIFT))}, v{M}
    """)
    for r in range(1, 16): a(f"v_mov_b32 v{C+r}, v{C}")
    a(f"""
    @S4
    @S13
    @T1
    s_nop 1
    {MF32} {vr(S,16)}, {vr(KF,4)}, {vr(Q,4)}, {vr(C,16)}
    s_waitcnt lgkmcnt(0)
    s_nop 10
    """)
    base = 0
    nwo = 0
    NPT = 2 if '--npt2' in sys.argv else 3
    queue = [dma(i) for i in range(3, 17)]
    queue[-1][1] = "s_add_u32 s48, s47, s60"
    ffn = [[f"buffer_load_dwordx4 {vr(FWR+4*i,4)}, v1, s[{FA if i == 0 else FB}:{(FA if i == 0 else FB)+3}], s{65+i} offen"] for i in range(3)]
    wol = [(["s_add_u32 s50, s50, 4096"] if (f and f % 4 == 0) else []) + [f"buffer_load_dwordx4 {vr(WO + 4*f, 4)}, v{LN16}, s[{WS}:{WS+3}], s50 offen offset:{(f & 3)*1024} sc1"] for f in range(32)]
    xw = [[f"buffer_load_dword v{XRES+r}, v0, s[{X}:{X+3}], s44 offen offset:{r*1024}"] for r in range(4)] + [[f"buffer_load_dwordx4 {vr(WRV,4)}, v{WRO}, s[{WR_}:{WR_+3}], 0 offen"]]
    SCH = [x.split("=")[1] for x in sys.argv if x.startswith("--sch=")]
    SCH = SCH[0] if SCH else "E"
    if SCH == "A":
        queue += wol + xw + ffn
        cnt = lambda t: 2 if t < 7 or 10 <= t <= 26 else 1 if t in (27, 29, 31) else 0
    elif SCH == "B":
        queue += wol + xw + ffn
        cnt = lambda t: 2 if t <= 23 else 1
    elif SCH == "C":
        queue += xw + wol[:4] + ffn[:1] + wol[4:5] + ffn[1:2] + wol[5:6] + ffn[2:] + wol[6:]
        cnt = lambda t: 2
    elif SCH == "D":
        queue += wol + xw + ffn
        cnt = lambda t: 2 if t <= 23 else 1 if t in (58, 60, 62) else 0
    elif SCH == "E":
        queue += wol + xw + ffn
        cnt = lambda t: 2 if t <= 24 else 1 if t in (25, 52, 56, 60) else 0
    elif SCH == "F":
        queue += wol + xw + ffn
        cnt = lambda t: 2 if t <= 23 else 1 if t in (61, 62, 63) else 0
    nissued = 0
    if '--noprio' not in sys.argv: a('s_setprio 1')
    if '--vmask' in sys.argv: a('s_mov_b32 s100, 0xffff\ns_mov_b32 s101, 0xffff' if DIAG else 's_mov_b32 s70, 0xffff\ns_mov_b32 s71, 0xffff')
    for t in range(64):
        cur, nxt = t & 1, (t + 1) & 1
        Sc, Sn = S + 16*cur, S + 16*nxt
        e = [f"v_exp_f32 v{Sc+i}, v{Sc+i}" for i in range(16)]
        n_ = cnt(t); side = sum(queue[:n_], []); queue = queue[n_:]
        if t == BAR_TILE: a(f"s_waitcnt vmcnt({nissued - 14})\ns_barrier")
        nissued += sum(1 for x in side if x.startswith("buffer"))
        if (t + 2 - base) * TILE + TILE > 65535:
            a(f"v_add_u32 v{KA}, {(t - base)*TILE}, v{KA}\nv_add_u32 v{VA}, {(t - base)*TILE}, v{VA}")
            base = t
        after = {i: [] for i in range(16)}
        side = [x for x in side if x]
        grp, curg = [], []
        for x in side:
            curg.append(x)
            if x.startswith("buffer"): grp.append(curg); curg = []
        if t > 0: after[1].append(f"{SMF} {vr(O,16)}, {vr(VF+8*nxt+4,4)}, {vr(Sn+8,8)}, v{IDX}")
        va = f"ds_read_b128 {vr(VF+8*nxt,4)}, v{VA} offset:{(t+1-base)*TILE}"
        vb = f"ds_read_b128 {vr(VF+8*nxt+4,4)}, v{VA} offset:{(t+1-base)*TILE+544}"
        VM = "--vmask" in sys.argv and t >= 1
        VQ = "--vq1" in sys.argv
        if t < 63:
            if VM: after[1] += ["s_mov_b64 exec, s[70:71]" if not DIAG else "s_mov_b64 exec, s[100:101]", va, vb, "s_mov_b64 exec, -1"]
            elif VQ: after[1] += [va, vb]
            else: after[1].append(va)
            after[5].append(f"{MF32} {vr(Sn,16)}, {vr(KF+4*nxt,4)}, {vr(Q,4)}, {vr(C,16)}")
        if t < 62: after[5].append(f"ds_read_b128 {vr(KF+4*cur,4)}, v{KA} offset:{(t+2-base)*TILE}")
        after[11].append(f"{SMF} {vr(O,16)}, {vr(VF+8*cur,4)}, {vr(Sc,8)}, v{IDX}")
        after[11].append("s_waitcnt lgkmcnt(0)")
        if t < 63 and not VM and not VQ: after[11].append(vb)
        for g, slot in zip(grp, (1, 5, 11) if len(grp) == 3 else (5, 11)): after[slot] += g
        assert len(grp) <= 3
        for i in range(16):
            a(e[i])
            for x in after[i]: a(x)
    a(f"""
    @S8
    @S14
    s_nop 1
    {SMF} {vr(O,16)}, {vr(VF+12,4)}, {vr(S+24,8)}, v{IDX}
    s_mov_b32 s48, {hex(f2u(2.0**110))}
    v_and_b32 v4, 7, v5
    v_mul_u32_u24 v4, 1040, v4
    v_lshrrev_b32 v7, 3, v5
    v_lshl_add_u32 v4, v7, 5, v4
    v_lshl_add_u32 v4, v6, 3, v4
    s_lshl_b32 s49, s{sW}, 7
    s_add_u32 s49, s49, {OB}
    v_add_u32 v4, s49, v4
    v_and_b32 v1, 7, v2
    v_mul_u32_u24 v0, 1040, v1
    v_lshrrev_b32 v7, 4, v2
    v_mul_f32 v3, 0, v{O}
    """)
    for r in range(1, 8): a(f"v_fma_f32 v3, v{O+r}, 0, v3")
    a(f"""
    v_add_f32 v3, v3, v{O+8}
    v_cmp_ngt_f32 vcc, s48, v3
    v_rcp_f32 v3, v{O+8}
    s_cmp_lg_u64 vcc, 0
    s_cbranch_scc1 L2_slow
    L2_epi:
    """)
    for r in range(8): a(f"v_mul_f32 v{O+r}, v3, v{O+r}")
    for r in range(4): a(f"v_cvt_pk_bf16_f32 v{O+r}, v{O+2*r}, v{O+2*r+1}")
    BA, PA = 101, 102
    a(f"""
    ds_write_b64 v4, {vr(O,2)}
    ds_write_b64 v4, {vr(O+2,2)} offset:16
    v_lshl_add_u32 v{BA}, v7, 5, v0
    v_and_b32 v3, 8, v2
    v_lshl_add_u32 v{BA}, v3, 1, v{BA}
    v_add_u32 v{BA}, {OB}, v{BA}
    v_cmp_ne_u32 vcc, 0, v3
    v_mov_b32 v{IDX}, 0x4444
    v_mov_b32 v3, 0xeeee
    s_and_b32 s49, s{sW}, 3
    s_lshl_b32 s49, s49, 12
    s_add_u32 s49, s49, {PART}
    v_add_u32 v{PA}, s49, v{LN16}
    v_cndmask_b32 v{IDX}, v{IDX}, v3, vcc
    s_waitcnt vmcnt(3)
    s_cmp_lt_u32 s{sW}, 4
    {'' if '--xnoold' in X_ else 's_cbranch_scc1 L2_old'}
    L2_join:
    @S7
    """)
    if "--tsync" in sys.argv:
        a(f"""
        s_mul_i32 s90, s2, 37
        s_and_b32 s90, s90, 63
        s_mul_i32 s90, s90, 80
        s_lshr_b32 s90, s90, 6
        s_add_u32 s90, s90, 4000
        s_mov_b32 s91, 0
        LT_spin:
        s_memrealtime s[92:93]
        s_waitcnt lgkmcnt(0)
        s_sub_u32 s92, s92, s{sEP}
        s_add_u32 s91, s91, 1
        s_cmp_gt_u32 s91, 100000
        s_cbranch_scc1 LT_done
        s_cmp_lt_u32 s92, s90
        s_cbranch_scc1 LT_spin
        LT_done:
        """)
    a(f"""
    """)
    HF, T, WF8, TOK = 60, 68, 52, 106
    ACC = O
    BF = [Q, 28, 32, 36]
    for j in range(4):
        a(f"v_lshlrev_b32 v{HF+2*j}, 16, v{XRES+j}\nv_and_b32 v{HF+2*j+1}, 0xffff0000, v{XRES+j}")
        a(f"v_lshlrev_b32 v{WF8+2*j}, 16, v{WRV+j}\nv_and_b32 v{WF8+2*j+1}, 0xffff0000, v{WRV+j}")
    a(f"v_add_f32 v{T+3}, v{WF8}, v{WF8+1}")
    for j in range(2, 8): a(f"v_add_f32 v{T+3}, v{T+3}, v{WF8+j}")
    a(f"""
    v_mov_b32 v7, 0x3f803f80
    v_lshrrev_b32 v{TOK}, 10, v{XO}
    v_lshlrev_b32 v4, 5, v{TOK}
    v_add_u32 v4, {RED}, v4
    v_lshrrev_b32 v3, 5, v2
    v_lshl_add_u32 v3, v3, 9, v4
    s_lshl_b32 s49, s{sW}, 2
    v_add_u32 v3, s49, v3
    v_add_u32 v0, s45, v{LN16}
    s_add_u32 s49, s44, {WS_H}
    s_cmp_ge_u32 s{sW}, 4
    s_cselect_b64 s[62:63], -1, 0
    s_waitcnt lgkmcnt(0)
    s_barrier
    @S9
    @T2
    s_mov_b64 exec, s[62:63]
    """)
    for i in range(4): a(f"ds_read_b128 {vr(ACC+4*i,4)}, v{PA} offset:{1024*i}")
    a("s_mov_b64 exec, -1")
    for s_ in range(4): a(f"ds_read_b128 {vr(BF[s_],4)}, v{BA} offset:{(s_+4)*128}")
    for s_ in range(4):
        a(f"s_waitcnt lgkmcnt({3 - s_})")
        for i in range(4):
            a(f"{SM16} {vr(ACC+4*i,4)}, {vr(BF[s_],4)}, {vr(WO+32*s_+8*i,8)}, v{IDX}")
    a("s_waitcnt vmcnt(0)")
    for i in range(3): a(f"ds_write_b128 v0, {vr(FWR+4*i,4)} offset:{FW + i*8192}")
    A8, HB = 40, 48
    a("s_mov_b32 vcc_lo, 0x55555555\ns_mov_b32 vcc_hi, 0x55555555\ns_nop 1")
    for p in range(2):
        for r in range(4): a(f"v_permlane32_swap_b32 v{ACC+8*p+r}, v{ACC+8*p+4+r}")
    for r in range(4):
        for p in range(2): a(f"v_add_f32 v{HF+2*r+p}, v{HF+2*r+p}, v{ACC+8*p+r}")
    for r in range(4):
        for p in range(2): a(f"v_add_f32 v{HF+2*r+p}, v{HF+2*r+p}, v{ACC+8*p+4+r}")
    for r in range(4): a(f"v_cvt_pk_bf16_f32 v{A8+r}, v{HF+2*r}, v{HF+2*r+1}")
    X1, X2 = "quad_perm:[1,0,3,2] row_mask:0xf bank_mask:0xf", "quad_perm:[2,3,0,1] row_mask:0xf bank_mask:0xf"
    N = A8 + 4
    a(f"""
    s_nop 0
    v_cndmask_b32_dpp v{N}, v{A8+1}, v{A8}, vcc {X1}
    v_cndmask_b32_dpp v{N+2}, v{A8+3}, v{A8+2}, vcc {X1}
    s_not_b64 vcc, vcc
    v_cndmask_b32_dpp v{N+1}, v{A8}, v{A8+1}, vcc {X1}
    v_cndmask_b32_dpp v{N+3}, v{A8+2}, v{A8+3}, vcc {X1}
    s_mov_b32 vcc_lo, 0x33333333
    s_mov_b32 vcc_hi, 0x33333333
    v_cndmask_b32_dpp v{HB}, v{N+2}, v{N}, vcc {X2}
    v_cndmask_b32_dpp v{HB+1}, v{N+3}, v{N+1}, vcc {X2}
    s_not_b64 vcc, vcc
    v_cndmask_b32_dpp v{HB+2}, v{N}, v{N+2}, vcc {X2}
    v_cndmask_b32_dpp v{HB+3}, v{N+1}, v{N+3}, vcc {X2}
    buffer_store_dwordx4 {vr(HB,4)}, v{XO}, s[{WS}:{WS+3}], s49 offen sc0 sc1
    """)
    for j in range(4): a(f"v_lshlrev_b32 v{HF+2*j}, 16, v{HB+j}\nv_and_b32 v{HF+2*j+1}, 0xffff0000, v{HB+j}")
    a(f"v_add_f32 v{T}, v{HF}, v{HF+1}\nv_mul_f32 v{T+1}, v{HF}, v{HF}\nv_mul_f32 v{T+2}, v{HF}, v{WF8}")
    for j in range(1, 8):
        if j > 1: a(f"v_add_f32 v{T}, v{T}, v{HF+j}")
        a(f"v_fmac_f32 v{T+1}, v{HF+j}, v{HF+j}\nv_fmac_f32 v{T+2}, v{HF+j}, v{WF8+j}")
    a(f"""
    s_nop 0
    v_permlane32_swap_b32 v{T}, v{T+1}
    v_permlane32_swap_b32 v{T+2}, v{T+3}
    v_add_f32 v{T}, v{T}, v{T+1}
    v_add_f32 v{T+2}, v{T+2}, v{T+3}
    s_nop 0
    v_add_f32_dpp v{T}, v{T}, v{T} row_ror:8 row_mask:0xf bank_mask:0xf
    v_add_f32_dpp v{T+2}, v{T+2}, v{T+2} row_ror:8 row_mask:0xf bank_mask:0xf
    s_nop 0
    v_add_f32_dpp v{T}, v{T}, v{T} row_ror:4 row_mask:0xf bank_mask:0xf
    v_add_f32_dpp v{T+2}, v{T+2}, v{T+2} row_ror:4 row_mask:0xf bank_mask:0xf
    ds_write_b32 v3, v{T}
    ds_write_b32 v3, v{T+2} offset:256
    """)
    KR = 128
    def kloads():
        if KMAP:
            for q in range(4): a(f"buffer_load_dwordx2 {vr(KR+2*q,2)}, v8, s[{WS}:{WS+3}], s{56+q} offen sc1")
        else:
            for q in range(4): a(f"buffer_load_dwordx2 {vr(KR+2*q,2)}, v8, s[{WS}:{WS+3}], s48 offen offset:{q << KSH} sc1")
    a(f"""
    s_waitcnt lgkmcnt(0)
    s_barrier
    @S11
    """)
    R_ = 108
    for q in (0, 2, 1, 3):
        a(f"ds_read_b128 {vr(R_+8*q,4)}, v4 offset:{q*256}\nds_read_b128 {vr(R_+8*q+4,4)}, v4 offset:{q*256+16}")
    def sum8(b):
        a(f"""
        v_add_f32 v{b}, v{b}, v{b+1}
        v_add_f32 v{b+2}, v{b+2}, v{b+3}
        v_add_f32 v{b+4}, v{b+4}, v{b+5}
        v_add_f32 v{b+6}, v{b+6}, v{b+7}
        v_add_f32 v{b}, v{b}, v{b+2}
        v_add_f32 v{b+4}, v{b+4}, v{b+6}
        v_add_f32 v{b}, v{b}, v{b+4}
        """)
    s1, s3, s2, s4 = R_, R_+8, R_+16, R_+24
    ST = 76
    OV = 80
    a("s_waitcnt lgkmcnt(4)")
    sum8(s1); sum8(s2)
    a(f"""
    v_mul_f32 v{ST}, {hex(f2u(1.0/512))}, v{s1}
    v_mul_f32 v{s2}, {hex(f2u(1.0/512))}, v{s2}
    v_fma_f32 v{s2}, -v{ST}, v{ST}, v{s2}
    v_max_f32 v{s2}, 0, v{s2}
    v_add_f32 v{s2}, {hex(f2u(EPS))}, v{s2}
    v_rsq_f32 v{ST+1}, v{s2}
    s_cmp_lg_u32 s{sW}, 0
    s_cbranch_scc1 L2_nokey
    s_waitcnt lgkmcnt(0)
    """)
    sum8(s3); sum8(s4)
    AF, BFR, STT, D, D2 = 140, 12, 204, 208, 212
    breg = lambda q: 12 + 4*q if q < 7 else 216 + 4*(q - 7)
    a(f"""
    v_fma_f32 v{s3}, -v{ST}, v{s4}, v{s3}
    s_lshl_b32 s48, s{sG}, 3
    v_add_u32 v4, s48, v{TOK}
    v_mul_f32 v{ST+2}, v{ST+1}, v{s3}
    v_mov_b32 v{ST+3}, s{sEP}
    v_lshlrev_b32 v0, 4, v4
    s_mov_b32 s48, {WS_ST}
    s_mov_b64 exec, 0x000f000f
    buffer_store_dwordx4 {vr(ST,4)}, v0, s[{WS}:{WS+3}], s48 offen sc0 sc1
    s_mov_b64 exec, -1
    v_ashrrev_i32 v3, 31, v{ST+2}
    v_or_b32 v3, 0x80000000, v3
    v_xor_b32 v3, v3, v{ST+2}
    v_and_b32 v3, 0xfffff800, v3
    v_sub_u32 v4, 2047, v4
    v_or_b32 v4, v3, v4
    s_lshl_b32 s48, s2, {KSH}
    s_add_u32 s48, s48, {WS_KEY}
    v_mov_b32_dpp v6, v4 quad_perm:[1,0,3,2] row_mask:0xf bank_mask:0xf
    v_mov_b32 v0, 0
    v_min_u32 v5, v4, v6
    v_max_u32 v4, v4, v6
    """)
    a(f"""
    s_nop 0
    v_mov_b32_dpp v3, v5 quad_perm:[2,3,0,1] row_mask:0xf bank_mask:0xf
    v_mov_b32_dpp v6, v4 quad_perm:[2,3,0,1] row_mask:0xf bank_mask:0xf
    v_max_u32 v5, v5, v3
    v_med3_u32 v5, v4, v5, v6
    v_max_u32 v4, v4, v6
    v_mov_b32 v3, v5
    v_mov_b32 v6, v4
    s_nop 0
    v_permlane16_swap_b32 v5, v3
    v_permlane16_swap_b32 v4, v6
    v_max_u32 v5, v5, v3
    v_med3_u32 v5, v4, v5, v6
    v_max_u32 v4, v4, v6
    """)
    a(f"""
    s_waitcnt vmcnt(1)
    s_barrier
    s_mov_b64 exec, 1
    buffer_store_dwordx2 v[4:5], v0, s[{WS}:{WS+3}], s48 offen sc0 sc1
    s_mov_b64 exec, -1
    @S5
    """)
    def outval():
        a(f"v_add_f32 v3, 1.0, v{ST+1}\nv_mul_f32 v6, v{ST}, v{ST+1}")
        for j in range(8): a(f"v_fma_f32 v{A8+j}, v{HF+j}, v3, -v6")
        for j in range(4): a(f"v_cvt_pk_bf16_f32 v{OV+j}, v{A8+2*j}, v{A8+2*j+1}")
    a(f"v_lshlrev_b32 v8, {KSH + (0 if KMAP else 2)}, v2\ns_mov_b32 s48, {WS_KEY}")
    if KMAP:
        for q in range(4): a(f"s_mov_b32 s{56+q}, {WS_KEY + (64*q << KSH)}")
    if "--knoack" in sys.argv: kloads()
    ROWS = 40960
    a(f"""
    v_and_b32 v9, 15, v2
    v_lshrrev_b32 v11, 4, v2
    v_lshrrev_b32 v10, 2, v9
    v_lshl_add_u32 v10, v11, 7, v10
    v_lshlrev_b32 v10, 4, v10
    v_and_b32 v0, 1, v9
    v_lshl_add_u32 v10, v0, 3, v10
    v_and_b32 v3, 2, v9
    v_lshl_add_u32 v10, v3, 12, v10
    """)
    for q in range(7): a(f"ds_read_b64_tr_b16 {vr(AF+4*q,2)}, v10 offset:{FW + q*128}\nds_read_b64_tr_b16 {vr(AF+4*q+2,2)}, v10 offset:{FW + q*128 + 64}")
    outval()
    a("s_waitcnt lgkmcnt(0)")
    for q in range(7, 14): a(f"ds_read_b64_tr_b16 {vr(AF+4*q,2)}, v10 offset:{FW + q*128}\nds_read_b64_tr_b16 {vr(AF+4*q+2,2)}, v10 offset:{FW + q*128 + 64}")
    a(f"v_mov_b32 v252, v7\nv_mov_b32 v253, v7\nv_mov_b32 v254, v7\nv_mov_b32 v255, v7\ns_waitcnt lgkmcnt(4)")
    for q in range(14, 16): a(f"ds_read_b64_tr_b16 {vr(AF+4*q,2)}, v10 offset:{FW + q*128}\nds_read_b64_tr_b16 {vr(AF+4*q+2,2)}, v10 offset:{FW + q*128 + 64}")
    if "--knoack" not in sys.argv: a("s_waitcnt vmcnt(0)"); kloads()
    a(f"""
    v_cmp_eq_u32 s[10:11], 1, v0
    v_mul_u32_u24 v10, 1040, v0
    v_lshl_add_u32 v10, v11, 8, v10
    v_lshlrev_b32 v{R_}, 4, v0
    v_lshl_add_u32 v{R_}, v11, 3, v{R_}
    s_mov_b32 s49, 0
    s_mov_b32 s46, 0
    s_mov_b32 s47, 0
    s_mov_b32 s51, {WS_ST}
    s_waitcnt lgkmcnt(0)
    """)
    for q in range(16): a(f"{MF16} {vr(D2,4)}, {vr(AF+4*q,4)}, v[252:255], {'0' if q == 0 else vr(D2,4)}")
    a(f"""
    L2_kpoll:
    s_waitcnt vmcnt(0)
    v_min_u32 v0, v{KR}, v{KR+2}
    v_min3_u32 v0, v{KR+4}, v{KR+6}, v0
    v_cmp_eq_u32 s[62:63], 0, v0
    s_add_u32 s49, s49, 1
    s_cmp_gt_u32 s49, 0x40000
    s_cselect_b64 s[62:63], 0, s[62:63]
    v_max_u32 v4, v{KR}, v{KR+2}
    v_min_u32 v5, v{KR}, v{KR+2}
    v_max3_u32 v5, v5, v{KR+1}, v{KR+3}
    v_med3_u32 v5, v4, v5, v{KR+4}
    v_max_u32 v4, v4, v{KR+4}
    v_med3_u32 v5, v4, v5, v{KR+6}
    v_max_u32 v4, v4, v{KR+6}
    v_max3_u32 v5, v5, v{KR+5}, v{KR+7}
    s_mov_b64 exec, s[62:63]
    s_cbranch_execz L2_klast
    """)
    kloads()
    a("L2_klast:\ns_mov_b64 exec, -1")
    for dpp in ("quad_perm:[1,0,3,2]", "quad_perm:[2,3,0,1]", "row_half_mirror", "row_mirror"):
        a(f"""
        v_mov_b32_dpp v3, v5 {dpp} row_mask:0xf bank_mask:0xf
        v_mov_b32_dpp v6, v4 {dpp} row_mask:0xf bank_mask:0xf
        v_max_u32 v5, v5, v3
        v_med3_u32 v5, v4, v5, v6
        v_max_u32 v4, v4, v6
        s_nop 0
        """)
    for sw in ("v_permlane16_swap_b32", "v_permlane32_swap_b32"):
        a(f"""
        v_mov_b32 v3, v5
        v_mov_b32 v6, v4
        s_nop 0
        {sw} v5, v3
        {sw} v4, v6
        v_max_u32 v5, v5, v3
        v_med3_u32 v5, v4, v5, v6
        v_max_u32 v4, v4, v6
        """)
    a(f"""
    v_readfirstlane_b32 s53, v5
    v_readfirstlane_b32 s52, v4
    v_cndmask_b32 v3, v4, v5, s[10:11]
    v_not_b32 v3, v3
    s_cmp_eq_u64 s[52:53], s[46:47]
    s_cbranch_scc1 L2_ksame
    s_mov_b64 s[46:47], s[52:53]
    s_cmp_ge_u32 s2, 176
    s_cbranch_scc1 L2_ksame
    s_andn2_b32 s54, 0x7ff, s52
    s_andn2_b32 s55, 0x7ff, s53
    s_lshl_b32 s54, s54, 10
    s_lshl_b32 s55, s55, 10
    s_add_u32 s54, s54, {WS_H}
    s_add_u32 s55, s55, {WS_H}
    s_mov_b32 m0, {ROWS}
    v_and_b32 v3, 0x7ff, v3
    buffer_load_dwordx4 v{LN16}, s[{WS}:{WS+3}], s54 offen sc1 lds
    s_mov_b32 m0, {ROWS + 1040}
    v_lshlrev_b32 v9, 4, v3
    buffer_load_dwordx4 v{LN16}, s[{WS}:{WS+3}], s55 offen sc1 lds
    buffer_load_dwordx4 {vr(STT,4)}, v9, s[{WS}:{WS+3}], s51 offen sc1
    L2_ksame:
    s_cmp_lg_u64 s[62:63], 0
    s_cbranch_scc1 L2_kpoll
    @S6
    v_mov_b32 v0, {CNT + 16}
    ds_write_b64 v0, v[4:5]
    s_cmp_ge_u32 s2, 176
    s_cbranch_scc1 L2_bc
    s_cmp_ge_u32 s64, 172
    s_cselect_b32 s48, 0x100000, s64
    s_lshl_b32 s48, s48, {ASH}
    s_add_u32 s48, s48, {WS_ACT}
    s_waitcnt vmcnt(1)
    """)
    for q in range(12): a(f"ds_read_b128 {vr(breg(q),4)}, v10 offset:{ROWS + q*16}")
    for q in range(16):
        a(f"s_waitcnt lgkmcnt({min(11, 15 - q)})")
        a(f"{MF16} {vr(D,4)}, {vr(AF+4*q,4)}, {vr(breg(q),4)}, {'0' if q == 0 else vr(D,4)}")
        if q < 4: a(f"ds_read_b128 {vr(breg(q+12),4)}, v10 offset:{ROWS + (q+12)*16}")
    E = R_ + 8
    a(f"""
    L2_stw:
    s_waitcnt vmcnt(0)
    v_cmp_ne_u32 vcc, s{sEP}, v{STT+3}
    s_nop 2
    s_cbranch_vccnz L2_stre
    L2_stok:
    s_nop 1
    """)
    for r in range(4): a(f"v_fma_f32 v{D+r}, -v{STT}, v{D2+r}, v{D+r}")
    for r in range(4): a(f"v_mul_f32 v{D+r}, v{D+r}, v{STT+1}")
    for r in range(4): a(f"v_mov_b32 v{E+4+r}, v{D+r}")
    for r in range(4): a(f"v_mul_f32 v{E+r}, {hex(f2u(-LOG2E))}, v{D+r}")
    for r in range(4): a(f"v_exp_f32 v{E+r}, v{E+r}")
    for r in range(4): a(f"v_permlane32_swap_b32 v{D+r}, v{E+4+r}")
    for r in range(4): a(f"v_add_f32 v{E+r}, 1.0, v{E+r}")
    for r in range(4): a(f"v_rcp_f32 v{E+r}, v{E+r}")
    for r in range(4): a(f"v_mul_f32 v{D+r}, v{D+r}, v{E+4+r}")
    for r in range(4): a(f"v_mul_f32 v{D+r}, v{D+r}, v{E+r}")
    a(f"""
    v_cvt_pk_bf16_f32 v{R_+2}, v{D}, v{D+1}
    v_cvt_pk_bf16_f32 v{R_+3}, v{D+2}, v{D+3}
    s_mov_b64 exec, 0x00030003
    buffer_store_dwordx2 {vr(R_+2,2)}, v{R_}, s[{WS}:{WS+3}], s48 offen sc0 sc1
    s_mov_b64 exec, -1
    @S10
    s_branch L2_bc
    L2_stre:
    s_add_u32 s49, s49, 1
    s_cmp_gt_u32 s49, 0x40000
    s_cbranch_scc1 L2_stok
    buffer_load_dwordx4 {vr(STT,4)}, v9, s[{WS}:{WS+3}], s51 offen sc1
    s_branch L2_stw
    L2_nokey:
    """)
    outval()
    a("s_waitcnt vmcnt(0)\ns_barrier")
    BFR = 164
    a(f"""
    L2_bc:
    v_and_b32 v9, 15, v2
    v_lshrrev_b32 v10, 2, v9
    v_lshrrev_b32 v11, 4, v2
    v_lshl_add_u32 v10, v11, 3, v10
    v_lshlrev_b32 v10, 4, v10
    v_and_b32 v8, 1, v9
    v_lshl_add_u32 v10, v8, 3, v10
    s_mul_i32 s49, s45, 3
    v_add_u32 v10, s49, v10
    """)
    for s_ in range(6):
        a(f"ds_read_b64_tr_b16 {vr(AF+4*s_,2)}, v10 offset:{FW + s_*512}\nds_read_b64_tr_b16 {vr(AF+4*s_+2,2)}, v10 offset:{FW + s_*512 + 64}")
    a(f"""
    v_mov_b32 v0, {CNT + 16}
    s_lshl_b32 s48, s{sG}, 3
    v_add_u32 v8, s48, v{TOK}
    s_waitcnt lgkmcnt(0)
    s_barrier
    ds_read_b64 v[4:5], v0
    s_waitcnt lgkmcnt(0)
    v_not_b32 v4, v4
    v_not_b32 v5, v5
    v_and_b32 v4, 0x7ff, v4
    v_and_b32 v5, 0x7ff, v5
    v_cmp_ne_u32 vcc, v4, v8
    v_cmp_ne_u32 s[62:63], v5, v8
    s_and_b64 exec, vcc, s[62:63]
    buffer_store_dwordx4 {vr(OV,4)}, v{XO}, s[{OUT}:{OUT+3}], s44 offen {OSC}
    s_mov_b64 exec, -1
    s_sub_u32 s48, s2, 176
    s_cmp_lt_u32 s48, 64
    s_cbranch_scc1 L2_st2
    L2_fin:
    @D0 15 {WS} {sW}
    s_endpgm
    """)
    a("L2_st2:")
    a(f"""
    v_and_b32 v6, 8, v2
    v_cmp_ne_u32 vcc, 0, v6
    s_mov_b32 s48, {WS_H}
    s_mov_b32 s51, {WS_ST}
    v_cndmask_b32 v3, v4, v5, vcc
    v_lshlrev_b32 v12, 10, v3
    v_lshl_add_u32 v12, v1, 1, v12
    v_add_u32 v12, s61, v12
    v_lshlrev_b32 v18, 4, v3
    buffer_load_ushort v13, v12, s[{WS}:{WS+3}], s48 offen sc1
    v_and_b32 v6, 1, v2
    v_lshlrev_b32 v0, {ASH}, v11
    v_lshl_add_u32 v0, v6, 4, v0
    s_mul_i32 s48, s{sW}, {24 << ASH}
    s_add_u32 s48, s48, {WS_ACT}
    s_mov_b32 s49, 0
    L2_apoll:
    buffer_load_dwordx4 {vr(STT,4)}, v18, s[{WS}:{WS+3}], s51 offen sc1
    """)
    for s_ in range(6):
        a(f"buffer_load_dwordx4 {vr(BFR+4*s_,4)}, v0, s[{WS}:{WS+3}], s48 offen offset:{s_*(4 << ASH)} sc1")
    a(f"s_add_u32 s49, s49, 1\ns_waitcnt vmcnt(0)\nv_max3_u32 v3, v{BFR}, v{BFR+1}, v{BFR+2}")
    for q in range(3, 23, 2): a(f"v_max3_u32 v3, v{BFR+q}, v{BFR+q+1}, v3")
    a(f"""
    v_max_u32 v3, v{BFR+23}, v3
    v_cmp_eq_u32 vcc, -1, v3
    v_cmp_ne_u32 s[62:63], s{sEP}, v{STT+3}
    s_cmp_gt_u32 s49, 0x40000
    s_cbranch_scc1 L2_agot
    s_or_b64 {'exec' if '--amask' in sys.argv else 'vcc'}, vcc, s[62:63]
    s_cbranch_scc0 L2_agot
    {SLEEP}
    s_branch L2_apoll
    L2_agot:
    s_mov_b64 exec, -1
    @S10
    """)
    for s_ in range(6): a(f"{MF16} {vr(D,4)}, {vr(AF+4*s_,4)}, {vr(BFR+4*s_,4)}, {'0' if s_ == 0 else vr(D,4)}")
    a(f"""
    v_and_b32 v3, 1, v11
    v_lshlrev_b32 v0, 5, v6
    v_lshl_add_u32 v0, v3, 4, v0
    s_lshl_b32 s48, s{sW}, 6
    s_add_u32 s48, s48, {FR}
    v_add_u32 v0, s48, v0
    v_lshlrev_b32 v10, 2, v9
    v_lshl_add_u32 v10, v11, 7, v10
    v_add_u32 v10, {FR}, v10
    ds_write_b128 v0, {vr(D,4)}
    s_waitcnt lgkmcnt(0)
    s_barrier
    s_cmp_lg_u32 s{sW}, 0
    s_cbranch_scc1 L2_fin
    ds_read2_b32 v[14:15], v10 offset0:0 offset1:16
    v_mul_f32 v16, {hex(f2u(-LOG2E))}, v{STT+2}
    v_exp_f32 v16, v16
    v_lshlrev_b32 v13, 16, v13
    v_add_f32 v16, 1.0, v16
    v_rcp_f32 v16, v16
    v_sub_f32 v17, v13, v{STT}
    v_fma_f32 v13, v17, v{STT+1}, v13
    s_waitcnt lgkmcnt(0)
    v_add_f32 v14, v14, v15
    v_mov_b32 v15, v14
    s_nop 1
    v_permlane32_swap_b32 v14, v15
    v_add_f32 v14, v14, v15
    v_mov_b32 v15, v14
    s_nop 1
    v_permlane16_swap_b32 v14, v15
    v_add_f32 v14, v14, v15
    v_fma_f32 v14, v14, v16, v13
    v_cvt_pk_bf16_f32 v14, v14, v14
    s_mov_b64 exec, 0xffff
    buffer_store_short v14, v12, s[{OUT}:{OUT+3}], 0 offen {OSC}
    @Q {WS}
    @D0 15 {WS} {sW}
    L2_end:
    s_endpgm
    """)
    AB = 12
    def wl(reg, sb, f):
        a(f"buffer_load_dwordx4 {vr(reg,4)}, v{LN16}, s[{WS}:{WS+3}], s{sb} offen offset:{(f & 3)*1024} sc1")
        if f % 4 == 3: a(f"s_add_u32 s{sb}, s{sb}, 4096")
    NE = 10
    breg = lambda f: 40 + 4*f if f < NE else WO + 4*(f - NE)
    a(f"""
    L2_old:
    s_setprio 0
    v_mov_b32 v3, {CNT}
    v_mov_b32 v4, 1
    s_waitcnt lgkmcnt(0)
    s_mov_b64 exec, 1
    ds_add_u32 v3, v4
    s_mov_b64 exec, -1
    s_add_u32 s48, s51, {4*65536}
    v_mov_b32 v7, {1024 + 528}
    """)
    for i in range(4): a(f"ds_read_b128 {vr(ACC+4*i,4)}, v7\nds_read_b128 {vr(AB+4*i,4)}, v7")
    for f in range(NE): wl(breg(f), 48, f)
    a(f"""
    L2_spin:
    ds_read_b32 v4, v3
    s_waitcnt lgkmcnt(0)
    v_readfirstlane_b32 s49, v4
    s_cmp_ge_u32 s49, 4
    s_cbranch_scc1 L2_go
    s_sleep 2
    s_branch L2_spin
    L2_go:
    """)
    for s_ in range(4): a(f"ds_read_b128 {vr(BF[s_],4)}, v{BA} offset:{s_*128}")
    def half(acc, reg, after):
        for s_ in range(4):
            for i in range(4):
                f = 8*s_ + 2*i
                after(f, 0)
                a(f"{SM16} {vr(acc+4*i,4)}, {vr(BF[s_],4)}, {vr(reg(f),8)}, v{IDX}")
                after(f, 1)
    a(f"s_add_u32 s49, s51, {32768 + ((32 - NE)//4)*4096}\ns_waitcnt lgkmcnt(0)")
    def aftA(f, post):
        if not post: return
        for slot in (f, f + 1):
            if slot < 32 - NE: wl(WO + 4*slot, 48, slot + NE)
            else: wl(WO + 4*slot, 49, slot)
    half(ACC, lambda f: WO + 4*f, aftA)
    a(f"s_add_u32 s49, s51, 32768")
    def aftB(f, post):
        if not post:
            done = max(0, f - NE)
            a(f"s_waitcnt vmcnt({min(63, (31 - (f + 1)) + NE + done)})"); return
        for g in (f, f + 1):
            if g >= NE: wl(WO + 4*(g - NE), 49, g - NE)
    half(AB, breg, aftB)
    a("s_nop 5")
    for i in range(4): a(f"ds_write_b128 v{PA}, {vr(AB+4*i,4)} offset:{1024*i}")
    a("s_waitcnt vmcnt(0)\ns_setprio 1\ns_branch L2_join")
    a(f"""
    L2_slow:
    v_mov_b32 v{KA}, v{LN16}
    v_mov_b32 v{M}, 0xff7fffff
    s_mov_b32 s{sN}, 64
    L2_maxloop:
    ds_read_b128 {vr(KF,4)}, v{KA}
    v_add_u32 v{KA}, {TILE}, v{KA}
    s_waitcnt lgkmcnt(0)
    {MF32} {vr(S,16)}, {vr(KF,4)}, {vr(Q,4)}, 0
    s_sub_u32 s{sN}, s{sN}, 1
    s_nop 10
    """)
    for r in range(8): a(f"v_max3_f32 v{M}, v{S+2*r}, v{S+2*r+1}, v{M}")
    a(f"""
    s_cmp_lg_u32 s{sN}, 0
    s_cbranch_scc1 L2_maxloop
    v_mov_b32 v3, v{M}
    v_mov_b32 v{KA}, v{LN16}
    v_mov_b32 v{VA}, v{VA0}
    v_permlane32_swap_b32 v{M}, v3
    v_max_f32 v{M}, v{M}, v3
    """)
    for r in range(16): a(f"v_sub_f32 v{C+r}, 0, v{M}\nv_mov_b32 v{O+r}, 0")
    a(f"""
    s_mov_b32 s{sN}, 64
    L2_slowloop:
    ds_read_b128 {vr(KF,4)}, v{KA}
    ds_read_b128 {vr(VF,4)}, v{VA}
    ds_read_b128 {vr(VF+4,4)}, v{VA} offset:544
    v_add_u32 v{KA}, {TILE}, v{KA}
    v_add_u32 v{VA}, {TILE}, v{VA}
    s_waitcnt lgkmcnt(0)
    {MF32} {vr(S,16)}, {vr(KF,4)}, {vr(Q,4)}, {vr(C,16)}
    s_sub_u32 s{sN}, s{sN}, 1
    s_nop 10
    """)
    for i in range(16): a(f"v_exp_f32 v{S+i}, v{S+i}")
    a(f"""
    s_nop 1
    {SMF} {vr(O,16)}, {vr(VF,4)}, {vr(S,8)}, v{IDX}
    {SMF} {vr(O,16)}, {vr(VF+4,4)}, {vr(S+8,8)}, v{IDX}
    s_cmp_lg_u32 s{sN}, 0
    s_cbranch_scc1 L2_slowloop
    s_nop 11
    v_rcp_f32 v3, v{O+8}
    s_branch L2_epi
    """)
    k1_cold(a)
    return desc(KNAME, 256, 72)
def main():
    hdr = open("sequential_preLN__grouped_kv_mqa__moe_arch_mod__prompt.s.ref").read().split("\n")
    top = [l for l in hdr if l.startswith(";") and "@launch" not in l and "Override" not in l and "grid=ceil" not in l]
    a = Asm()
    k1(a)
    d = k2(a)
    out = "\n".join(top) + "\n"
    out += f"; @launch grid=(256,1,1) block=(512,1,1) lds={max(K1_LDS, K2_LDS)}\n"
    out += '.amdgcn_target "amdgcn-amd-amdhsa--gfx950"\n.text\n' + a.text() + '.section .rodata,"a"\n' + d
    sys.stdout.write(out)
main()
```

```python
import sys, struct
def f2u(x): return struct.unpack("<I", struct.pack("<f", x))[0]

WS_Q   = 0
WS_KV  = 2 << 20
WS_WO  = 3 << 20
WS_H   = 4 << 20

WS_ST  = (6 << 20) + 0x10000
WS_ACT = (6 << 20) + 0x20000
WS_KEY = WS_ACT + 0x10000
KSH = 5; ASH = 7; FSH = 4
for _x in sys.argv:
    if _x.startswith('--ksh='): KSH = int(_x.split('=')[1])
    if _x.startswith('--fsh='): FSH = int(_x.split('=')[1])
    if _x.startswith('--ash='): ASH = int(_x.split('=')[1])
WS_FLG = WS_KEY + 0x10000
WS_QB = 7 << 20
sEP = 68
KNAME = 'sequential_preLN__grouped_kv_mqa__moe_arch_mod__prompt_kernel'
WS_SIZE = 8 << 20
TILE = 2112
QSCALE = 0.25 * 1.4426950408889634
EPS = 1e-5
SHIFT = 96.0
for _x in sys.argv:
    if _x.startswith('--shift='): SHIFT = float(_x.split('=')[1])

class Asm:
    def __init__(self): self.l = []
    def __call__(self, s):
        for x in s.split("\n"):
            x = x.strip()
            if x.startswith("@S"): stamp(self, int(x[2:])); continue
            if x.startswith("@P"): padstore(self, *[int(t) for t in x[2:].split()]); continue
            if x.startswith("@Q"): padspin(self, *[int(t) for t in x[2:].split()]); continue
            if x.startswith("@T"): padstamp(self, int(x[2:])); continue
            if x.startswith("@D"): dump(self, *[int(t) for t in x[2:].split()]); continue
            if x: self.l.append(("" if x.endswith(":") else "    ") + x)
    def text(self): return "\n".join(self.l) + "\n"

def srd(a, d, p, size):
    a(f"s_mov_b32 s{d}, s{p}\ns_and_b32 s{d+1}, s{p+1}, 0xffff\ns_mov_b32 s{d+2}, {size}\ns_mov_b32 s{d+3}, 0x20000")
def vr(b, n): return f"v[{b}:{b+n-1}]"
def head(a, name):
    a(f".globl {name}\n.p2align 8\n.type {name},@function\n{name}:")
def desc(name, nv, ns):
    return f""".p2align 6
.amdhsa_kernel {name}
  .amdhsa_next_free_vgpr {nv}
  .amdhsa_next_free_sgpr {102 if (DIAG or PAD is not None or '--tsync' in sys.argv) else ns}
  .amdhsa_accum_offset {(nv+3)//4*4}
  .amdhsa_group_segment_fixed_size 0
  .amdhsa_kernarg_size 104
  .amdhsa_user_sgpr_count 2
  .amdhsa_user_sgpr_kernarg_segment_ptr 1
  .amdhsa_system_sgpr_workgroup_id_x 1
.end_amdhsa_kernel
"""
DIAG = "--diag" in sys.argv
WS_DIAG = 16 << 20
if DIAG: WS_SIZE = 32 << 20
LIGHT = '--light' in sys.argv
def stamp(a, i, force=False):
    if LIGHT and i != 0 and not force: return
    if DIAG: a(f"{'s_memtime' if i >= 13 else 's_memrealtime'} s[{70+2*i}:{71+2*i}]\ns_waitcnt lgkmcnt(0)")
DIAG2 = "--diag2" in sys.argv
D2SEL = {0: [(0, 1), (2, 0), (8, 0)], 1: [(0, 1), (1, 0), (3, 0), (4, 0), (8, 0), (10, 0), (12, 0)], 2: [(0, 1), (1, 0), (3, 0), (5, 0), (6, 0), (7, 0)]}
_dl = [0]
def dump(a, kidx, n, WS, sW):
    if not DIAG: return
    stamp(a, min(n - 1, 12), True)
    if DIAG2:
        _dl[0] += 1
        base = sum(len(D2SEL[k]) for k in range(kidx))
        a(f"s_and_b32 s98, s2, 15\ns_cmp_lg_u32 s98, 0\ns_cbranch_scc1 LD_{_dl[0]}\ns_load_dwordx2 s[98:99], s[0:1], 88\ns_mov_b64 exec, 1\nv_mov_b32 v1, 0\ns_waitcnt lgkmcnt(0)\ns_add_u32 s98, s98, {512*(2-kidx)}\ns_addc_u32 s99, s99, 0")
        for j, (i, inv) in enumerate(D2SEL[kidx]):
            a(f"v_mov_b32 v0, s{70+2*i}")
            if inv: a("v_not_b32 v0, v0")
            a(f"global_atomic_umax v1, v0, s[98:99] offset:{4*(base+j)}\ns_nop 1")
        a(f"LD_{_dl[0]}:")
        return
    a(f"s_mov_b64 exec, 1\ns_lshl_b32 s69, s2, 4\ns_add_u32 s69, s69, s{sW}\ns_lshl_b32 s69, s69, 6\ns_add_u32 s69, s69, {WS_DIAG + kidx * (1 << 20)}\nv_mov_b32 v1, 0")
    for i in range(n):
        a(f"v_mov_b32 v0, s{70+2*i}\nbuffer_store_dword v0, v1, s[{WS}:{WS+3}], s69 offen offset:{4*i}")
PAD = [int(x.split("=")[1]) for x in sys.argv if x.startswith("--pad=")]
PAD = PAD[0] if PAD else None
WS_PAD = (6 << 20)
def padstamp(a, k):
    if PAD == k: a("s_memrealtime s[94:95]\ns_waitcnt lgkmcnt(0)")
def padstore(a, k, WS, sW): pass
def padspin(a, WS):
    if PAD is None: return
    a(f"s_mov_b32 s97, 0\nLQ_spin:\ns_memrealtime s[92:93]\ns_waitcnt lgkmcnt(0)\ns_sub_u32 s98, s92, s94\ns_add_u32 s97, s97, 1\ns_cmp_gt_u32 s97, 100000\ns_cbranch_scc1 LQ_done\ns_cmp_lt_u32 s98, 6000\ns_cbranch_scc1 LQ_spin\nLQ_done:")
MF32 = "v_mfma_f32_32x32x16_bf16"
MF16 = "v_mfma_f32_16x16x32_bf16"

ZERO_KB = 8
K1_KV = 131072
K1_CS = 147456
K1_KC = K1_CS + 1024
K1_KP = K1_KC + 1024
K1_PS = K1_KP + 4096
K1_EP = K1_PS + 1024
K1_LDS = K1_EP + 64
QSC = 'sc1' if '--qsc1' in sys.argv else '' if '--qplain' in sys.argv else 'sc0 sc1'
CODE_SPAN = 18600
NSPL = 4
for _x in sys.argv:
    if _x.startswith('--nspl='): NSPL = int(_x.split('=')[1])
WOC = 1 if '--woc1' in sys.argv else 2
def rowstat(a, s, m, r):
    a(f"""
    v_add_f32 v{m}, v{s}, v{s+2}
    v_add_f32 v{r}, v{s+1}, v{s+3}
    v_mul_f32 v{m}, {hex(f2u(-1.0/512))}, v{m}
    v_mul_f32 v{r}, {hex(f2u(1.0/512))}, v{r}
    v_fma_f32 v{r}, -v{m}, v{m}, v{r}
    v_max_f32 v{r}, 0, v{r}
    """)
    if "--exactln" in sys.argv:
        a(f"v_add_f32 v{r}, {hex(f2u(EPS))}, v{r}\nv_rsq_f32 v{r}, v{r}")
        return
    a(f"""
    v_cvt_pk_bf16_f32 v{r}, v{m}, v{r}
    v_lshlrev_b32 v{m}, 16, v{r}
    v_and_b32 v{r}, 0xffff0000, v{r}
    v_add_f32 v{r}, {hex(f2u(EPS))}, v{r}
    v_cvt_pk_bf16_f32 v{r}, v{r}, v{r}
    v_and_b32 v{r}, 0xffff0000, v{r}
    v_sqrt_f32 v{r}, v{r}
    s_nop 0
    v_cvt_pk_bf16_f32 v{r}, v{r}, v{r}
    v_and_b32 v{r}, 0xffff0000, v{r}
    v_rcp_f32 v{r}, v{r}
    """)
def split_ab(a, src, dst, kind):
    a(f"v_and_b32 v11, 0xffff0000, v{src}\nv_sub_f32 v12, v{src}, v11")
    if kind == "m": a(f"v_cvt_pk_bf16_f32 v{dst}, v11, v12\nv_cvt_pk_bf16_f32 v{dst+1}, v11, 0")
    else: a(f"v_cvt_pk_bf16_f32 v{dst}, v11, v11\nv_cvt_pk_bf16_f32 v{dst+1}, v12, 0")
def k1(a):
    X, WQ, WKV, WO, WS = 16, 20, 24, 32, 36
    sW, sTG, sCG = 40, 41, 42
    DBG = 28
    ONES = 69
    VL = 13
    head(a, KNAME)
    a(f"""
    s_cmp_ge_u32 s2, 256
    s_cbranch_scc1 L2_end
    @S0
    @T0
    s_load_dwordx8 s[4:11], s[0:1], 0
    s_load_dwordx2 s[12:13], s[0:1], 32
    s_load_dwordx2 s[14:15], s[0:1], 96
    s_load_dwordx2 s[64:65], s[0:1], 88
    v_lshrrev_b32 v1, 6, v0
    v_and_b32 v2, 63, v0
    v_readfirstlane_b32 s{sW}, v1
    s_and_b32 s43, s2, 7
    s_lshr_b32 s44, s2, 3
    s_and_b32 s45, s44, 3
    s_lshl_b32 s{sTG}, s43, 2
    s_add_u32 s{sTG}, s{sTG}, s45
    s_lshr_b32 s{sCG}, s44, 2
    v_and_b32 v3, 15, v2
    v_lshrrev_b32 v4, 4, v2
    v_lshlrev_b32 v{VL}, 4, v2
    s_and_b32 s46, s{sW}, 3
    s_lshl_b32 s50, s46, 12
    s_and_b32 s58, s{sCG}, 3
    s_cmp_lt_u32 s{sW}, 4
    s_cbranch_scc1 L1_gemm
    """)
    VX, VW, XR = 16, 22, 32
    pass
    for i in range(4):
        a(f"v_add_u32 v7, {4*i}, v4\nv_xor_b32 v{VX+i}, v7, v3\nv_lshlrev_b32 v{VX+i}, 4, v{VX+i}\nv_lshl_add_u32 v{VX+i}, v7, 10, v{VX+i}")
    a(f"""
    v_lshrrev_b32 v7, 3, v2
    v_and_b32 v{VW}, 1, v4
    v_lshlrev_b32 v{VW}, 2, v{VW}
    v_and_b32 v14, 7, v2
    v_xor_b32 v{VW}, v{VW}, v14
    v_lshlrev_b32 v{VW}, 4, v{VW}
    v_lshl_add_u32 v{VW}, v7, 10, v{VW}
    s_lshl_b32 s48, s{sTG}, 16
    s_lshl_b32 s43, s46, 14
    s_add_u32 s48, s48, s43
    s_lshl_b32 s49, s46, 15
    s_lshl_b32 s43, s{sCG}, 7
    s_add_u32 s49, s49, s43
    {'s_mov_b32 s55, 0' if '--norot' in sys.argv else f's_add_u32 s55, s{sCG}, s{sTG}'}
    s_waitcnt lgkmcnt(0)
    """)
    srd(a, X, 4, 2 << 20)
    def chunk(c, sh): a(f"s_add_u32 s43, s55, {c}\ns_and_b32 s43, s43, 3\ns_lshl_b32 s43, s43, {sh}")
    def issx(c):
        chunk(c, 8); a("s_add_u32 s51, s48, s43")
        for i in range(4):
            a(f"s_add_u32 m0, s50, {c*16384 + i*1024}\ns_nop 0\nbuffer_load_dwordx4 v{VX+i}, s[{X}:{X+3}], s51 offen lds")
    def issw(c):
        chunk(c, 17); a("s_add_u32 s51, s49, s43")
        for i in range(4):
            a(f"s_add_u32 m0, s50, {65536 + c*16384 + i*1024}\ns_add_u32 s52, s51, {8*i*1024}\nbuffer_load_dwordx4 v{VW}, s[{WQ}:{WQ+3}], s52 offen lds")
    def isskv(c):
        chunk(c, 12)
        a(f"s_add_u32 m0, s61, {K1_KV + c*4096}\ns_add_u32 s52, s61, s43\nbuffer_load_dwordx4 v{VL}, s[{WKV}:{WKV+3}], s52 offen lds")
    issx(0)
    a(f"s_cmp_ge_u32 s{sCG}, 4\ns_cselect_b32 s8, s10, s8\ns_cselect_b32 s9, s11, s9\ns_lshl_b32 s61, s46, 10")
    srd(a, WKV, 8, 16 << 10)
    isskv(0); issx(1); isskv(1)
    srd(a, WQ, 6, 512 << 10)
    a(f"""
    v_mov_b32 v{ONES}, 0x3f803f80
    v_add_u32 v30, {K1_KP}, v{VL}
    s_lshl_b32 s43, s58, 8
    s_add_u32 s43, s43, {K1_PS}
    v_lshl_add_u32 v31, v3, 4, s43
    s_lshl_b32 s56, s{sTG}, 1
    s_lshr_b32 s43, s58, 1
    s_add_u32 s56, s56, s43
    s_mul_i32 s56, s56, {TILE}
    s_add_u32 s56, s56, {WS_KV}
    s_and_b32 s57, s58, 1
    s_lshl_b32 s43, s57, 8
    s_mul_i32 s44, s57, 544
    s_add_u32 s44, s44, 1024
    s_cmp_ge_u32 s{sCG}, 4
    s_cselect_b32 s43, s44, s43
    s_cselect_b64 s[62:63], -1, 0
    s_add_u32 s56, s56, s43
    v_and_b32 v14, 1, v4
    v_lshrrev_b32 v15, 1, v4
    v_lshlrev_b32 v26, 9, v14
    v_lshl_add_u32 v26, v15, 3, v26
    v_lshlrev_b32 v27, 8, v15
    v_lshl_add_u32 v27, v14, 3, v27
    v_cndmask_b32 v26, v26, v27, s[62:63]
    v_lshl_add_u32 v26, v3, 4, v26
    s_lshl_b32 s43, s58, 12
    s_lshl_b32 s44, s46, 14
    s_add_u32 s43, s43, s44
    v_lshl_add_u32 v10, v3, 8, s43
    v_xor_b32 v11, v4, v3
    v_lshl_add_u32 v96, v11, 4, v10
    v_xor_b32 v97, 64, v96
    v_xor_b32 v98, 0x80, v96
    v_xor_b32 v99, 0xc0, v96
    v_lshrrev_b32 v9, 2, v3
    v_lshl_add_u32 v95, v4, 3, v9
    v_lshlrev_b32 v95, 5, v95
    v_and_b32 v11, 3, v3
    v_lshl_add_u32 v95, v11, 3, v95
    s_add_u32 s43, s50, {K1_KV}
    v_add_u32 v95, s43, v95
    v_add_u32 v24, s61, v30
    """)
    srd(a, WS, 14, WS_SIZE); srd(a, DBG, 64, 256)
    a(f"v_mov_b32 v93, {K1_EP}\nv_mov_b32 v94, 0")
    size = [5, 5, 5, 5, 4, 4, 4, 4]
    KFX, KFW, KD, UP = 100, 116, 132, 140
    for g in range(5):
        if g == 4:
            for u in range(4): a(f"ds_read_b128 {vr(KFX+4*u,4)}, v{96+u}")
            for u in range(4): a(f"ds_read_b64_tr_b16 {vr(KFW+4*u,2)}, v95 offset:{u*1024}\nds_read_b64_tr_b16 {vr(KFW+4*u+2,2)}, v95 offset:{u*1024+128}")
        if g + 2 < 4: issx(g + 2); isskv(g + 2)
        elif g < 4: issw(g - 2)
        if g == 4:
            a("s_waitcnt lgkmcnt(8)")
            for q in range(16): a(f"v_lshlrev_b32 v{UP+2*q}, 16, v{KFX+q}\nv_and_b32 v{UP+2*q+1}, 0xffff0000, v{KFX+q}")
            issw(2)
        a(f"s_waitcnt vmcnt({sum(size[g+1:g+3])})\ns_barrier")
    if "--nojprio" not in sys.argv: a("s_setprio 2")
    a(f"ds_read_b128 v[80:83], v31\nbuffer_load_dword v66, v94, s[{DBG}:{DBG+3}], 0 offen sc1")
    a("s_waitcnt lgkmcnt(0)")
    rowstat(a, 80, 8, 9)
    def norm(qs):
        for q in qs: a(f"v_add_f32 v{UP+2*q}, v{UP+2*q}, v8\nv_add_f32 v{UP+2*q+1}, v{UP+2*q+1}, v8\nv_cvt_pk_bf16_f32 v{KFX+q}, v{UP+2*q}, v{UP+2*q+1}")
        for q in qs: a(f"v_lshlrev_b32 v{UP+2*q}, 16, v{KFX+q}\nv_and_b32 v{UP+2*q+1}, 0xffff0000, v{KFX+q}\nv_mul_f32 v{UP+2*q}, v{UP+2*q}, v9\nv_mul_f32 v{UP+2*q+1}, v{UP+2*q+1}, v9\nv_cvt_pk_bf16_f32 v{KFX+q}, v{UP+2*q}, v{UP+2*q+1}")
    if "--nojw1" not in sys.argv:
        norm(range(0, 16))
        a(f"s_cmp_ge_u32 s{sCG}, 4\ns_cbranch_scc1 L1_vm")
        for u in range(4): a(f"{MF16} {vr(KD,4)}, {vr(KFW+4*u,4)}, {vr(KFX+4*u,4)}, {'0' if u == 0 else vr(KD,4)}")
        a("L1_km:")
        issw(3)
        a(f"""
        ds_write_b128 v24, {vr(KD,4)}
        s_waitcnt vmcnt(9) lgkmcnt(0)
        s_barrier
        s_cmp_eq_u32 s46, 0
        s_cbranch_scc1 L1_fin
        s_waitcnt vmcnt(4)
        L1_find:
        v_readfirstlane_b32 s{sEP}, v66
        s_cmp_eq_u32 s{sEP}, 0
        s_cbranch_scc1 L1_tag
        L1_tagok:
        ds_write_b32 v93, v66
        s_waitcnt lgkmcnt(0)
        s_barrier
        s_lshl_b32 s43, s2, {FSH}
        s_add_u32 s43, s43, {WS_FLG}
        s_cmp_eq_u32 s46, 0
        s_cselect_b32 s43, s43, {WS_SIZE}
        s_waitcnt vmcnt(0)
        s_mov_b64 exec, 1
        buffer_store_dword v66, v94, s[{WS}:{WS+3}], s43 offen sc0 sc1
        s_mov_b64 exec, -1
        @S1
        s_barrier
        s_branch L2_start
        L1_vm:
        """)
        for u in range(4): a(f"{MF16} {vr(KD,4)}, {vr(KFX+4*u,4)}, {vr(KFW+4*u,4)}, {'0' if u == 0 else vr(KD,4)}")
        a(f"""
        s_branch L1_km
        L1_fin:
        ds_read_b128 {vr(XR+4,4)}, v30 offset:1024
        ds_read_b128 {vr(XR+8,4)}, v30 offset:2048
        ds_read_b128 {vr(XR+12,4)}, v30 offset:3072
        s_waitcnt lgkmcnt(0)
        """)
        for r in range(4):
            a(f"v_add_f32 v{XR+r}, v{KD+r}, v{XR+4+r}\nv_add_f32 v{XR+8+r}, v{XR+8+r}, v{XR+12+r}")
        for r in range(4): a(f"v_add_f32 v{XR+r}, v{XR+r}, v{XR+8+r}")
        a(f"""
        v_cvt_pk_bf16_f32 v{XR}, v{XR}, v{XR+1}
        v_cvt_pk_bf16_f32 v{XR+1}, v{XR+2}, v{XR+3}
        buffer_store_dwordx2 {vr(XR,2)}, v26, s[{WS}:{WS+3}], s56 offen sc0 sc1
        s_waitcnt vmcnt(5)
        s_branch L1_find
        """)
    else:
        norm(range(0, NSPL))
        issw(3)
        a("s_waitcnt vmcnt(9)\ns_barrier")
        norm(range(NSPL, 16))
        a(f"s_cmp_ge_u32 s{sCG}, 4\ns_cbranch_scc1 L1_vm")
        for u in range(4): a(f"{MF16} {vr(KD,4)}, {vr(KFW+4*u,4)}, {vr(KFX+4*u,4)}, {'0' if u == 0 else vr(KD,4)}")
        a(f"""
        L1_km:
        s_waitcnt vmcnt(4)
        v_readfirstlane_b32 s{sEP}, v66
        s_cmp_eq_u32 s{sEP}, 0
        s_cbranch_scc1 L1_tag
        L1_tagok:
        s_nop 3
        ds_write_b128 v24, {vr(KD,4)}
        ds_write_b32 v93, v66
        s_waitcnt lgkmcnt(0)
        s_barrier
        s_cmp_eq_u32 s46, 0
        s_cbranch_scc1 L1_fin
        s_waitcnt vmcnt(0)
        s_barrier
        s_branch L2_start
        L1_vm:
        """)
        for u in range(4): a(f"{MF16} {vr(KD,4)}, {vr(KFX+4*u,4)}, {vr(KFW+4*u,4)}, {'0' if u == 0 else vr(KD,4)}")
        a(f"""
        s_branch L1_km
        L1_fin:
        ds_read_b128 {vr(XR+4,4)}, v30 offset:1024
        ds_read_b128 {vr(XR+8,4)}, v30 offset:2048
        ds_read_b128 {vr(XR+12,4)}, v30 offset:3072
        s_lshl_b32 s43, s2, {FSH}
        s_add_u32 s43, s43, {WS_FLG}
        s_waitcnt lgkmcnt(0)
        """)
        for r in range(4):
            a(f"v_add_f32 v{XR+r}, v{KD+r}, v{XR+4+r}\nv_add_f32 v{XR+8+r}, v{XR+8+r}, v{XR+12+r}")
        for r in range(4): a(f"v_add_f32 v{XR+r}, v{XR+r}, v{XR+8+r}")
        a(f"""
        v_cvt_pk_bf16_f32 v{XR}, v{XR}, v{XR+1}
        v_cvt_pk_bf16_f32 v{XR+1}, v{XR+2}, v{XR+3}
        buffer_store_dwordx2 {vr(XR,2)}, v26, s[{WS}:{WS+3}], s56 offen sc0 sc1
        s_waitcnt vmcnt(1)
        s_barrier
        s_waitcnt vmcnt(0)
        s_mov_b64 exec, 1
        buffer_store_dword v66, v94, s[{WS}:{WS+3}], s43 offen sc0 sc1
        s_mov_b64 exec, -1
        @S1
        s_branch L2_start
        """)
    D1 = 16
    XF, WF = 120, 32
    XA, WA, WB, WOD = 72, 68, 70, 80
    KX, KW = 92, 93
    SX, SXX, KC, KD = 14, 15, 71, 96
    KF = 104
    a(f"""
    L1_gemm:
    v_and_b32 v5, 31, v2
    v_lshrrev_b32 v6, 5, v2
    s_and_b32 s53, s{sW}, 1
    s_lshr_b32 s54, s{sW}, 1
    s_lshl_b32 s59, s2, 1
    s_add_u32 s59, s59, s53
    s_lshr_b32 s43, s59, 6
    s_lshl_b32 s47, s43, 7
    s_lshr_b32 s44, s59, 3
    s_and_b32 s44, s44, 7
    s_lshl_b32 s44, s44, 16
    s_add_u32 s47, s47, s44
    s_lshl_b32 s44, s53, 15
    s_add_u32 s47, s47, s44
    s_and_b32 s44, s59, 2
    s_lshl_b32 s44, s44, 5
    s_add_u32 s47, s47, s44
    s_and_b32 s44, s59, 4
    s_lshr_b32 s44, s44, 1
    s_add_u32 s47, s47, s44
    v_lshlrev_b32 v7, 2, v3
    v_lshl_add_u32 v7, v6, 14, v7
    v_and_b32 v8, 1, v4
    v_lshl_add_u32 v7, v8, 12, v7
    v_add_u32 v8, 8192, v7
    s_waitcnt lgkmcnt(0)
    """)
    if "--pf" in sys.argv:
        a(f"""
        s_lshr_b32 s43, s2, 3
        s_lshl_b32 s43, s43, 14
        s_lshl_b32 s44, s53, 13
        s_add_u32 s43, s43, s44
        s_lshl_b32 s44, s{sTG}, 16
        s_lshl_b32 s45, s{sCG}, 13
        s_add_u32 s44, s44, s45
        s_cmp_eq_u32 s{sW}, 3
        s_cselect_b32 s44, 0x400000, s44
        s_cmp_ge_u32 s{sW}, 2
        s_cselect_b32 s43, s44, s43
        s_cselect_b32 s{X}, s4, s6
        s_cselect_b32 s{X+1}, s5, s7
        s_mov_b32 s{X+2}, 0x80000
        s_cselect_b32 s{X+2}, 0x200000, s{X+2}
        s_and_b32 s{X+1}, s{X+1}, 0xffff
        s_mov_b32 s{X+3}, 0x20000
        v_lshlrev_b32 v9, 7, v2
        buffer_load_dword v252, v9, s[{X}:{X+3}], s43 offen
        """)
    srd(a, WO, 12, 512 << 10); srd(a, WS, 14, WS_SIZE); srd(a, DBG, 64, 256)
    a(f"s_cmp_ge_u32 s{sW}, 2\ns_cbranch_scc1 L1_nowo")
    for j in range(8):
        ro = (0, 1, 8, 9, 2, 3, 10, 11)[j]
        a(f"buffer_load_ushort v{WOD + j}, v{7 + ro//8}, s[{WO}:{WO+3}], s47 offen offset:{(ro & 3) * 1024}")
    a(f"""
    s_branch L1_noz
    L1_nowo:
    s_cmp_eq_u32 s{sW}, 2
    s_cbranch_scc1 L1_ini
    """)
    if "--tlb" in sys.argv:
        a(f"""
        s_load_dwordx8 s[16:23], s[0:1], 48
        s_load_dwordx2 s[24:25], s[0:1], 80
        v_lshlrev_b32 v9, 20, v2
        s_mov_b64 exec, 0xff
        buffer_load_dword v252, v9, s[{WS}:{WS+3}], 0 offen offset:2048
        s_mov_b64 exec, 1
        global_load_dword v253, v9, s[6:7]
        s_waitcnt lgkmcnt(0)
        global_load_dword v253, v9, s[16:17]
        global_load_dword v253, v9, s[18:19]
        global_load_dword v253, v9, s[20:21]
        global_load_dword v253, v9, s[22:23]
        global_load_dword v253, v9, s[24:25]
        s_mov_b64 exec, -1
        """)
    a(f"""
    s_cmp_lg_u32 s2, 0
    s_cbranch_scc1 L1_noz
    s_memrealtime s[44:45]
    v_mov_b32 v9, 0
    s_waitcnt lgkmcnt(0)
    s_or_b32 s44, s44, 1
    v_mov_b32 v{WOD}, s44
    s_mov_b64 exec, 1
    buffer_store_dword v{WOD}, v9, s[{DBG}:{DBG+3}], 0 offen sc0 sc1
    s_mov_b64 exec, -1
    s_branch L1_noz
    L1_ini:
    s_cmp_lt_u32 s2, 172
    s_cselect_b32 s44, -1, 0
    v_mov_b32 v{WOD}, s44
    v_mov_b32 v{WOD+1}, 0
    v_lshlrev_b32 v9, 2, v2
    s_lshl_b32 s43, s2, {ASH}
    s_add_u32 s43, s43, {WS_ACT}
    s_lshl_b32 s44, s2, {KSH}
    s_add_u32 s44, s44, {WS_KEY}
    s_lshr_b32 s45, s2, 1
    s_mul_i32 s45, s45, {TILE}
    s_and_b32 s48, s2, 1
    s_mul_i32 s48, s48, 544
    s_add_u32 s45, s45, s48
    s_add_u32 s45, s45, {WS_KV + 1024 + 512}
    s_cmp_lt_u32 s2, 128
    s_cselect_b32 s45, s45, {WS_SIZE}
    v_cmp_gt_u32 vcc, 4, v2
    v_mov_b32 v{WOD+2}, 0x3f803f80
    s_mov_b64 exec, 0xff
    v_cndmask_b32 v{WOD+2}, 0, v{WOD+2}, vcc
    buffer_store_dword v{WOD}, v9, s[{WS}:{WS+3}], s43 offen sc0 sc1
    buffer_store_dword v{WOD+2}, v9, s[{WS}:{WS+3}], s45 offen sc0 sc1
    s_mov_b64 exec, 3
    buffer_store_dword v{WOD+1}, v9, s[{WS}:{WS+3}], s44 offen sc0 sc1
        s_mov_b64 exec, -1
    L1_noz:
    """)
    if "--cpf" in sys.argv:
        a(f"""
        s_getpc_b64 s[44:45]
        s_and_b32 s44, s44, 0xffffff00
        s_lshr_b32 s43, s2, 3
        s_lshl_b32 s43, s43, 2
        s_add_u32 s43, s43, s{sW}
        s_lshl_b32 s43, s43, 8
        v_lshl_add_u32 v9, v2, 2, s43
        v_min_u32 v9, {CODE_SPAN}, v9
        global_load_dword v252, v9, s[44:45]
        """)
    a(f"""
    s_lshl_b32 s43, s54, 1
    v_xor_b32 v12, s43, v3
    s_lshl_b32 s43, s53, 13
    v_lshlrev_b32 v9, 8, v5
    v_add_u32 v9, s43, v9
    """)
    for j in range(8):
        a(f"v_add_u32 v10, {2*j}, v6\nv_xor_b32 v10, v10, v12\nv_lshl_add_u32 v{XA+j}, v10, 4, v9")
    a(f"""
    v_lshrrev_b32 v9, 2, v3
    v_lshl_add_u32 v10, v6, 3, v9
    v_lshlrev_b32 v10, 7, v10
    v_lshrrev_b32 v11, 1, v9
    v_xor_b32 v11, s54, v11
    v_lshl_add_u32 v10, v11, 6, v10
    v_and_b32 v11, 1, v4
    v_lshl_add_u32 v10, v11, 5, v10
    v_and_b32 v11, 3, v3
    v_lshl_add_u32 v10, v11, 3, v10
    s_lshl_b32 s43, s54, 11
    s_add_u32 s44, s43, 0x10000
    s_sub_u32 s43, {0x10000 + 2048}, s43
    v_add_u32 v{WA}, s44, v10
    v_add_u32 v{WB}, s43, v10
    v_lshrrev_b32 v64, 3, v5
    v_lshlrev_b32 v64, 13, v64
    v_and_b32 v11, 7, v5
    v_lshl_add_u32 v64, v11, 4, v64
    v_lshl_add_u32 v64, v6, 9, v64
    s_lshl_b32 s60, s{sTG}, 16
    s_lshl_b32 s44, s53, 15
    s_add_u32 s60, s60, s44
    s_lshl_b32 s44, s{sCG}, 10
    s_add_u32 s60, s60, s44
    s_lshl_b32 s44, s54, 8
    s_add_u32 s60, s60, s44
    s_add_u32 s60, s60, {WS_Q}
    s_lshl_b32 s43, s53, 9
    s_add_u32 s43, s43, {K1_PS}
    v_lshl_add_u32 v67, v5, 4, s43
    s_lshl_b32 s43, s54, 3
    v_lshl_add_u32 v65, v6, 2, v67
    v_add_u32 v65, s43, v65
    s_lshl_b32 s59, s59, 10
    s_add_u32 s59, s59, {WS_WO}
    s_cmp_ge_u32 s{sW}, 2
    s_cselect_b32 s59, {WS_SIZE}, s59
    v_mov_b32 v{ONES}, 0x3f803f80
    v_mov_b32 v{SX}, 0
    v_mov_b32 v{SXX}, 0
    v_mov_b32 v90, 0
    v_mov_b32 v91, 0
    v_mov_b32 v250, 0
    v_mov_b32 v251, 0
    """)
    def xreads(c):
        for u in (0, 2, 4, 6, 1, 3, 5, 7): a(f"ds_read_b128 {vr(XF+32*c+4*u,4)}, v{XA+u} offset:{c*16384}")
    def wread(ks):
        ar = WB if ks & 1 else WA
        off = (ks & ~1) * 2048
        a(f"ds_read_b64_tr_b16 {vr(WF+4*(ks&7),2)}, v{ar} offset:{off}\nds_read_b64_tr_b16 {vr(WF+4*(ks&7)+2,2)}, v{ar} offset:{off + 512}")
    def work(c):
        for u in (0, 2, 4, 6):
            a(f"s_waitcnt lgkmcnt({7 - u//2})")
            for q in range(4): a(f"v_dot2c_f32_bf16 v{SX}, v{XF+32*c+4*u+q}, v{ONES}\nv_dot2c_f32_bf16 v{SXX}, v{XF+32*c+4*u+q}, v{XF+32*c+4*u+q}")
    for c in range(4):
        a("s_barrier")
        if c == 0: a("@T3")
        xreads(c)
        work(c)
        if c == WOC:
            a(f"""
            s_waitcnt vmcnt(0)
            v_lshl_or_b32 v{WOD}, v{WOD+1}, 16, v{WOD}
            v_lshl_or_b32 v{WOD+1}, v{WOD+3}, 16, v{WOD+2}
            v_lshl_or_b32 v{WOD+2}, v{WOD+5}, 16, v{WOD+4}
            v_lshl_or_b32 v{WOD+3}, v{WOD+7}, 16, v{WOD+6}
            buffer_store_dwordx4 {vr(WOD,4)}, v{VL}, s[{WS}:{WS+3}], s59 offen sc0 sc1
            """)
    a(f"""
    v_mov_b32 v7, {K1_EP}
    s_nop 1
    v_permlane32_swap_b32 v{SX}, v{SXX}
    ds_write_b32 v7, v90 offset:8
    v_add_f32 v{SX}, v{SX}, v{SXX}
    ds_write_b32 v65, v{SX}
    v_mov_b32 v{SXX}, 0
    s_waitcnt lgkmcnt(0)
    s_barrier
    @T4
    @S2
    """)
    for ks in range(7): wread(ks)
    a("s_waitcnt lgkmcnt(12)")
    wread(7)
    LATE = "--nojw1" not in sys.argv
    for g in range(8):
        a(f"s_waitcnt lgkmcnt({0 if (g == 7 or (LATE and g == 1)) else 8})")
        for ks in range(4*g, 4*g + 4):
            for q in range(4): a(f"v_dot2c_f32_bf16 v{SXX}, v{WF+4*(ks&7)+q}, v{ONES}")
        if g == 2: a("s_waitcnt vmcnt(0)")
        if g % 2 == 0 and g < 6 and not (LATE and g == 0): a("s_barrier")
        if g == 2: a("ds_read_b128 v[84:87], v67")
        if g == 4: a("@S10\nds_read_b32 v66, v7")
        if g == 2: a("@S6")
        if g == 6: a(f"v_readfirstlane_b32 s{sEP}, v66")
        for ks in range(4*g, 4*g + 4):
            a(f"{MF32} {vr(D1,16)}, {vr(WF+4*(ks&7),4)}, {vr(XF+4*ks,4)}, {'0' if ks == 0 else vr(D1,16)}")
            if ks + 8 < 32 and not (LATE and g < 2): wread(ks + 8)
            if ks == 16: rowstat(a, 84, 8, 9)
            if ks == 17: split_ab(a, 8, 88, "m"); a(f"v_mul_f32 v10, {hex(f2u(QSCALE))}, v9")
            if ks == 29: a("s_nop 0"); split_ab(a, SXX, 248, "c")
        if LATE and g == 1:
            a("s_barrier\n@S5")
            for ks in range(8, 15): wread(ks)
            a("s_waitcnt lgkmcnt(12)")
            wread(15)
    a(f"""
    {MF32} {vr(D1,16)}, v[248:251], v[88:91], {vr(D1,16)}
    v_mov_b32 v35, v66
    v_mov_b32 v39, v66
    v_mov_b32 v43, v66
    v_lshrrev_b32 v44, 3, v5
    v_lshlrev_b32 v44, 12, v44
    v_and_b32 v11, 7, v5
    v_lshl_add_u32 v44, v11, 4, v44
    v_lshl_add_u32 v44, v6, 8, v44
    s_sub_u32 s61, s60, {WS_Q}
    s_lshr_b32 s61, s61, 1
    s_add_u32 s61, s61, {WS_QB}
    s_nop 0
    """)
    dst = [32, 33, 34, 36, 40, 41, 42, 37]
    for r in range(8):
        a(f"v_mul_f32 v{D1+2*r}, v10, v{D1+2*r}\nv_mul_f32 v{D1+2*r+1}, v10, v{D1+2*r+1}\nv_cvt_pk_bf16_f32 v{dst[r]}, v{D1+2*r}, v{D1+2*r+1}")
        if r == 2: a(f"buffer_store_dwordx4 v[32:35], v64, s[{WS}:{WS+3}], s60 offen {QSC}")
        if r == 6: a(f"buffer_store_dwordx4 v[40:43], v64, s[{WS}:{WS+3}], s60 offen offset:128 {QSC}")
    a(f"""
    buffer_store_dwordx4 v[36:39], v44, s[{WS}:{WS+3}], s61 offen {QSC}
    @T5
    @S1
    """)
def k1_cold(a):
    DBG = 28
    a(f"""
    L1_tag:
    s_mov_b32 s47, 0
    L1_tagl:
    buffer_load_dword v66, v94, s[{DBG}:{DBG+3}], 0 offen sc1
    s_add_u32 s47, s47, 1
    s_waitcnt vmcnt(0)
    v_readfirstlane_b32 s{sEP}, v66
    s_cmp_gt_u32 s47, 0x40000
    s_cbranch_scc1 L1_tagx
    s_cmp_eq_u32 s{sEP}, 0
    s_cbranch_scc1 L1_tagl
    L1_tagx:
    s_branch L1_tagok
    """)
KV_BYTES = 64 * TILE
OB = KV_BYTES
RED = OB + 8 * 1040
PART = RED + 1024
CNT = PART + 16384
K2_LDS = CNT + 64
FW = 0
FR = 32768
SMF = "v_smfmac_f32_32x32x32_bf16"
SM16 = "v_smfmac_f32_16x16x64_bf16"
LOG2E = 1.4426950408889634
KMAP = '--nokmap' not in sys.argv
KSLEEP = ''
for _x in sys.argv:
    if _x.startswith('--ksleep='): KSLEEP = 's_sleep ' + _x.split('=')[1]
OSC = 'sc0 sc1' if '--osc' in sys.argv else 'nt' if '--ont' in sys.argv else ''
SLEEP = 's_nop 0'
for _x in sys.argv:
    if _x.startswith('--sleep='): SLEEP = 's_sleep ' + _x.split('=')[1]
def k2(a):
    X, WR_, OUT, WS, FA, FB = 16, 20, 24, 28, 32, 36
    sW, sN, sG = 40, 43, 41
    Q, C, KF, VF, S, O = 8, 12, 28, 36, 52, 84
    IDX, KA, VA, LN16, XO, WRO, M, VA0 = 100, 101, 102, 103, 104, 105, 106, 107
    WO = 108; XRES, WRV, FWR = 236, 240, 244
    BAR_TILE = 10
    X_ = [x for x in sys.argv if x.startswith("--x")]
    a(f"""
    L2_start:
    s_setprio 0
    s_load_dwordx8 s[52:59], s[0:1], 48
    s_load_dwordx2 s[8:9], s[0:1], 80
    v_lshlrev_b32 v{LN16}, 4, v2
    v_and_b32 v5, 31, v2
    v_lshrrev_b32 v6, 5, v2
    s_lshl_b32 s{sG}, s41, 3
    s_add_u32 s{sG}, s{sG}, s42
    s_lshl_b32 s44, s{sG}, 13
    s_lshl_b32 s45, s{sW}, 10
    s_add_u32 s46, s44, s45
    s_add_u32 s47, s45, {WS_KV}
    s_lshl_b32 s50, s{sW}, 16
    s_add_u32 s51, s50, {WS_WO}
    s_and_b32 s48, s{sW}, 4
    s_lshl_b32 s48, s48, 13
    s_add_u32 s50, s51, s48
    """)
    srd(a, WS, 14, WS_SIZE)
    def dma(i):
        return [f"s_add_u32 m0, s45, {i*8192}", f"s_add_u32 s48, s47, {i*8192}", f"buffer_load_dwordx4 v{LN16}, s[{WS}:{WS+3}], s48 offen sc1 lds"]
    a("s_waitcnt lgkmcnt(0)")
    srd(a, X, 4, 2 << 20); srd(a, WR_, 52, 1024); srd(a, OUT, 8, 2 << 20)
    a(f"""
    v_lshlrev_b32 v3, 8, v6
    v_lshl_add_u32 v3, v5, 4, v3
    v_and_b32 v4, 27, v5
    v_cmp_eq_u32 vcc, 16, v4
    v_mov_b32 v4, 528
    v_mov_b32 v7, 512
    v_cndmask_b32 v4, v4, v7, vcc
    v_cmp_gt_u32 vcc, 16, v5
    v_mov_b32 v{KA}, v{LN16}
    v_mov_b32 v{IDX}, 0xdddddddd
    v_cndmask_b32 v3, v4, v3, vcc
    v_add_u32 v{VA0}, 1024, v3
    v_mov_b32 v{VA}, v{VA0}
    v_and_b32 v3, 12, v2
    v_lshlrev_b32 v3, 2, v3
    v_lshl_add_u32 v3, v6, 6, v3
    s_lshl_b32 s49, s{sW}, 7
    v_add_u32 v{WRO}, s49, v3
    v_and_b32 v4, 16, v2
    v_lshlrev_b32 v4, 8, v4
    v_and_b32 v3, 15, v2
    v_lshl_add_u32 v0, v3, 2, v4
    v_lshl_add_u32 v0, v6, 6, v0
    v_add_u32 v0, s49, v0
    v_and_b32 v3, 3, v2
    v_lshl_add_u32 v4, v3, 10, v4
    v_add_u32 v{XO}, v4, v{WRO}
    s_and_b32 s48, s2, 7
    s_lshr_b32 s49, s2, 3
    s_mul_i32 s64, s48, 22
    s_add_u32 s64, s64, s49
    s_lshl_b32 s48, s48, 3
    s_add_u32 s48, s48, s49
    s_sub_u32 s61, s48, 22
    s_and_b32 s61, s61, 63
    s_lshl_b32 s61, s61, 4
    s_min_u32 s48, s64, 171
    s_lshl_b32 s48, s48, 4
    s_mul_i32 s49, s{sW}, {64*2752}
    s_add_u32 s48, s48, s49
    s_lshl_b32 s49, s{sW}, 16
    s_add_u32 s49, s49, s61
    s_add_u32 s66, s49, {512*1024}
    s_add_u32 s67, s49, {1024*1024}
    s_movk_i32 s60, 2752
    s_cmp_ge_u32 s2, 176
    s_cselect_b32 s65, s49, s48
    s_cselect_b32 s66, s66, s48
    s_cselect_b32 s67, s67, 0x200000
    s_cselect_b32 s60, 0x400, s60
    s_cselect_b32 s54, s58, s54
    s_cselect_b32 s55, s59, s55
    s_cselect_b32 s56, s58, s56
    s_cselect_b32 s57, s59, s57
    v_mul_u32_u24 v1, s60, v2
    """)
    srd(a, FA, 54, 512*2752); srd(a, FB, 56, 512*2752)
    a(f"""
    s_mov_b32 s60, {16*8192}
    s_cmp_lt_u32 s{sW}, 4
    s_cselect_b32 s60, s60, {WS_SIZE}
    v_mov_b32 v3, {CNT}
    """)
    for r in range(16): a(f"v_mov_b32 v{O+r}, 0")
    a(f"""
    ds_write_b32 v3, v{O}
    ds_write_b128 v3, {vr(O,4)} offset:16
    s_lshr_b32 s12, s46, 1
    s_add_u32 s12, s12, {WS_QB}
    s_add_u32 s46, s46, {WS_Q}
    v_lshrrev_b32 v7, 4, v2
    v_lshlrev_b32 v7, 7, v7
    v_and_b32 v4, 7, v2
    v_lshl_add_u32 v7, v4, 4, v7
    s_cmp_lt_u32 s{sW}, 4
    s_cbranch_scc1 L2_noflag
    s_sub_u32 s13, s{sW}, 4
    """)
    if "--fw1" not in sys.argv:
        a(f"""
        s_lshl_b32 s48, s13, {FSH + 6}
        s_add_u32 s48, s48, {WS_FLG}
        v_lshlrev_b32 v3, {FSH}, v2
        s_mov_b32 s49, 0
        L2_fpoll:
        buffer_load_dword v4, v3, s[{WS}:{WS+3}], s48 offen sc1
        s_add_u32 s49, s49, 1
        s_waitcnt vmcnt(0)
        v_cmp_ne_u32 vcc, s{sEP}, v4
        s_cmp_gt_u32 s49, 0x40000
        s_cbranch_scc1 L2_fgot
        s_and_b64 exec, exec, vcc
        s_cbranch_scc1 L2_fpoll
        L2_fgot:
        s_mov_b64 exec, 1
        v_mov_b32 v3, {K1_EP + 8}
        v_mov_b32 v4, 1
        ds_add_u32 v3, v4
        """)
    else:
        a(f"""
        s_cmp_lg_u32 s{sW}, 5
        s_cbranch_scc1 L2_fwait
        s_mov_b32 s48, {WS_FLG}
        v_lshlrev_b32 v3, {KSH + 2}, v2
        s_mov_b32 s49, 0
        L2_fpoll:
        """)
        for q in range(4): a(f"buffer_load_dword v{S+q}, v3, s[{WS}:{WS+3}], s48 offen offset:{q << KSH} sc1")
        a(f"""
        s_add_u32 s49, s49, 1
        s_waitcnt vmcnt(0)
        v_xor_b32 v{S}, s{sEP}, v{S}
        v_xor_b32 v{S+1}, s{sEP}, v{S+1}
        v_xor_b32 v{S+2}, s{sEP}, v{S+2}
        v_xor_b32 v{S+3}, s{sEP}, v{S+3}
        v_or3_b32 v4, v{S}, v{S+1}, v{S+2}
        v_or_b32 v4, v4, v{S+3}
        v_cmp_ne_u32 vcc, 0, v4
        s_cmp_gt_u32 s49, 0x40000
        s_cbranch_scc1 L2_fgot
        s_and_b64 exec, exec, vcc
        s_cbranch_scc1 L2_fpoll
        L2_fgot:
        s_mov_b64 exec, 1
        v_mov_b32 v3, {K1_EP + 8}
        v_mov_b32 v4, 4
        ds_write_b32 v3, v4
        L2_fwait:
        s_mov_b64 exec, 1
        v_mov_b32 v3, {K1_EP + 8}
        """)
    a(f"""
    L2_fspin:
    ds_read_b32 v4, v3
    s_waitcnt lgkmcnt(0)
    v_readfirstlane_b32 s49, v4
    s_cmp_lt_u32 s49, 4
    s_cbranch_scc1 L2_fspin
    s_mov_b64 exec, -1
    @S2
    s_lshl_b32 s13, s13, 10
    s_add_u32 s62, s13, {WS_KV}
    """)
    for i in range(6):
        a(f"s_add_u32 m0, s13, {i*4096}\ns_add_u32 s48, s62, {i*4096}\nbuffer_load_dwordx4 v{LN16}, s[{WS}:{WS+3}], s48 offen sc1 lds")
    a(f"""
    L2_noflag:
    {'' if '--nobarA' in sys.argv else 's_barrier'}
    @T6
    s_mov_b32 s49, 0
    L2_qpoll:
    buffer_load_dwordx4 {vr(Q,4)}, v{LN16}, s[{WS}:{WS+3}], s46 offen sc1
    buffer_load_dwordx4 {vr(S,4)}, v7, s[{WS}:{WS+3}], s12 offen sc1
    s_add_u32 s49, s49, 1
    s_waitcnt vmcnt(0)
    v_cmp_ne_u32 vcc, s{sEP}, v{Q+3}
    v_cmp_ne_u32 s[62:63], s{sEP}, v{S+3}
    s_cmp_gt_u32 s49, 0x40000
    s_cbranch_scc1 L2_qgot
    s_or_b64 exec, vcc, s[62:63]
    s_cbranch_scc1 L2_qpoll
    L2_qgot:
    s_mov_b64 exec, -1
    s_mov_b32 s62, 0xff00ff00
    s_mov_b32 s63, s62
    v_cndmask_b32 v{Q+3}, v{S}, v{S+1}, s[62:63]
    s_waitcnt lgkmcnt(0)
    s_barrier
    @S3
    ds_read_b128 {vr(KF,4)}, v{KA}
    ds_read_b128 {vr(KF+4,4)}, v{KA} offset:{TILE}
    ds_read_b128 {vr(VF,4)}, v{VA}
    ds_read_b128 {vr(VF+4,4)}, v{VA} offset:544
    s_waitcnt lgkmcnt(3)
    {MF32} {vr(S,16)}, {vr(KF,4)}, {vr(Q,4)}, 0
    s_waitcnt lgkmcnt(2)
    {MF32} {vr(S+16,16)}, {vr(KF+4,4)}, {vr(Q,4)}, 0
    s_nop 9
    v_max3_f32 v{M}, v{S}, v{S+1}, v{S+2}
    """)
    for r in range(3, 31, 2): a(f"v_max3_f32 v{M}, v{S+r}, v{S+r+1}, v{M}")
    a(f"""
    v_max_f32 v{M}, v{S+31}, v{M}
    v_mov_b32 v3, v{M}
    s_nop 1
    v_permlane32_swap_b32 v{M}, v3
    v_max_f32 v{M}, v{M}, v3
    v_sub_f32 v{C}, {hex(f2u(-SHIFT))}, v{M}
    """)
    for r in range(1, 16): a(f"v_mov_b32 v{C+r}, v{C}")
    a(f"""
    @S4
    @S13
    @T1
    s_nop 1
    {MF32} {vr(S,16)}, {vr(KF,4)}, {vr(Q,4)}, {vr(C,16)}
    s_waitcnt lgkmcnt(0)
    s_nop 10
    """)
    base = 0
    nwo = 0
    NPT = 2 if '--npt2' in sys.argv else 3
    queue = [dma(i) for i in range(3, 17)]
    queue[-1][1] = "s_add_u32 s48, s47, s60"
    ffn = [[f"buffer_load_dwordx4 {vr(FWR+4*i,4)}, v1, s[{FA if i == 0 else FB}:{(FA if i == 0 else FB)+3}], s{65+i} offen"] for i in range(3)]
    wol = [(["s_add_u32 s50, s50, 4096"] if (f and f % 4 == 0) else []) + [f"buffer_load_dwordx4 {vr(WO + 4*f, 4)}, v{LN16}, s[{WS}:{WS+3}], s50 offen offset:{(f & 3)*1024} sc1"] for f in range(32)]
    xw = [[f"buffer_load_dword v{XRES+r}, v0, s[{X}:{X+3}], s44 offen offset:{r*1024}"] for r in range(4)] + [[f"buffer_load_dwordx4 {vr(WRV,4)}, v{WRO}, s[{WR_}:{WR_+3}], 0 offen"]]
    SCH = [x.split("=")[1] for x in sys.argv if x.startswith("--sch=")]
    SCH = SCH[0] if SCH else "E"
    if SCH == "A":
        queue += wol + xw + ffn
        cnt = lambda t: 2 if t < 7 or 10 <= t <= 26 else 1 if t in (27, 29, 31) else 0
    elif SCH == "B":
        queue += wol + xw + ffn
        cnt = lambda t: 2 if t <= 23 else 1
    elif SCH == "C":
        queue += xw + wol[:4] + ffn[:1] + wol[4:5] + ffn[1:2] + wol[5:6] + ffn[2:] + wol[6:]
        cnt = lambda t: 2
    elif SCH == "D":
        queue += wol + xw + ffn
        cnt = lambda t: 2 if t <= 23 else 1 if t in (58, 60, 62) else 0
    elif SCH == "E":
        queue += wol + xw + ffn
        cnt = lambda t: 2 if t <= 24 else 1 if t in (25, 52, 56, 60) else 0
    elif SCH == "F":
        queue += wol + xw + ffn
        cnt = lambda t: 2 if t <= 23 else 1 if t in (61, 62, 63) else 0
    nissued = 0
    if '--noprio' not in sys.argv: a('s_setprio 1')
    if '--vmask' in sys.argv: a('s_mov_b32 s100, 0xffff\ns_mov_b32 s101, 0xffff' if DIAG else 's_mov_b32 s70, 0xffff\ns_mov_b32 s71, 0xffff')
    for t in range(64):
        cur, nxt = t & 1, (t + 1) & 1
        Sc, Sn = S + 16*cur, S + 16*nxt
        e = [f"v_exp_f32 v{Sc+i}, v{Sc+i}" for i in range(16)]
        n_ = cnt(t); side = sum(queue[:n_], []); queue = queue[n_:]
        if t == BAR_TILE: a(f"s_waitcnt vmcnt({nissued - 14})\ns_barrier")
        nissued += sum(1 for x in side if x.startswith("buffer"))
        if (t + 2 - base) * TILE + TILE > 65535:
            a(f"v_add_u32 v{KA}, {(t - base)*TILE}, v{KA}\nv_add_u32 v{VA}, {(t - base)*TILE}, v{VA}")
            base = t
        after = {i: [] for i in range(16)}
        side = [x for x in side if x]
        grp, curg = [], []
        for x in side:
            curg.append(x)
            if x.startswith("buffer"): grp.append(curg); curg = []
        if t > 0: after[1].append(f"{SMF} {vr(O,16)}, {vr(VF+8*nxt+4,4)}, {vr(Sn+8,8)}, v{IDX}")
        va = f"ds_read_b128 {vr(VF+8*nxt,4)}, v{VA} offset:{(t+1-base)*TILE}"
        vb = f"ds_read_b128 {vr(VF+8*nxt+4,4)}, v{VA} offset:{(t+1-base)*TILE+544}"
        VM = "--vmask" in sys.argv and t >= 1
        VQ = "--vq1" in sys.argv
        if t < 63:
            if VM: after[1] += ["s_mov_b64 exec, s[70:71]" if not DIAG else "s_mov_b64 exec, s[100:101]", va, vb, "s_mov_b64 exec, -1"]
            elif VQ: after[1] += [va, vb]
            else: after[1].append(va)
            after[5].append(f"{MF32} {vr(Sn,16)}, {vr(KF+4*nxt,4)}, {vr(Q,4)}, {vr(C,16)}")
        if t < 62: after[5].append(f"ds_read_b128 {vr(KF+4*cur,4)}, v{KA} offset:{(t+2-base)*TILE}")
        after[11].append(f"{SMF} {vr(O,16)}, {vr(VF+8*cur,4)}, {vr(Sc,8)}, v{IDX}")
        after[11].append("s_waitcnt lgkmcnt(0)")
        if t < 63 and not VM and not VQ: after[11].append(vb)
        for g, slot in zip(grp, (1, 5, 11) if len(grp) == 3 else (5, 11)): after[slot] += g
        assert len(grp) <= 3
        for i in range(16):
            a(e[i])
            for x in after[i]: a(x)
    a(f"""
    @S8
    @S14
    s_nop 1
    {SMF} {vr(O,16)}, {vr(VF+12,4)}, {vr(S+24,8)}, v{IDX}
    s_mov_b32 s48, {hex(f2u(2.0**110))}
    s_mov_b32 s12, {hex(f2u(2.0**-104))}
    v_and_b32 v4, 7, v5
    v_mul_u32_u24 v4, 1040, v4
    v_lshrrev_b32 v7, 3, v5
    v_lshl_add_u32 v4, v7, 5, v4
    v_lshl_add_u32 v4, v6, 3, v4
    s_lshl_b32 s49, s{sW}, 7
    s_add_u32 s49, s49, {OB}
    v_add_u32 v4, s49, v4
    v_and_b32 v1, 7, v2
    v_mul_u32_u24 v0, 1040, v1
    v_lshrrev_b32 v7, 4, v2
    v_mul_f32 v3, 0, v{O}
    """)
    for r in range(1, 8): a(f"v_fma_f32 v3, v{O+r}, 0, v3")
    a(f"""
    v_add_f32 v3, v3, v{O+8}
    v_cmp_ngt_f32 vcc, s48, v3
    v_cmp_gt_f32 s[62:63], s12, v3
    v_rcp_f32 v3, v{O+8}
    s_or_b64 vcc, vcc, s[62:63]
    s_cbranch_scc1 L2_slow
    L2_epi:
    """)
    for r in range(8): a(f"v_mul_f32 v{O+r}, v3, v{O+r}")
    for r in range(4): a(f"v_cvt_pk_bf16_f32 v{O+r}, v{O+2*r}, v{O+2*r+1}")
    BA, PA = 101, 102
    a(f"""
    ds_write_b64 v4, {vr(O,2)}
    ds_write_b64 v4, {vr(O+2,2)} offset:16
    v_lshl_add_u32 v{BA}, v7, 5, v0
    v_and_b32 v3, 8, v2
    v_lshl_add_u32 v{BA}, v3, 1, v{BA}
    v_add_u32 v{BA}, {OB}, v{BA}
    v_cmp_ne_u32 vcc, 0, v3
    v_mov_b32 v{IDX}, 0x4444
    v_mov_b32 v3, 0xeeee
    s_and_b32 s49, s{sW}, 3
    s_lshl_b32 s49, s49, 12
    s_add_u32 s49, s49, {PART}
    v_add_u32 v{PA}, s49, v{LN16}
    v_cndmask_b32 v{IDX}, v{IDX}, v3, vcc
    s_waitcnt vmcnt(3)
    s_cmp_lt_u32 s{sW}, 4
    {'' if '--xnoold' in X_ else 's_cbranch_scc1 L2_old'}
    L2_join:
    @S7
    """)
    if "--tsync" in sys.argv:
        a(f"""
        s_mul_i32 s90, s2, 37
        s_and_b32 s90, s90, 63
        s_mul_i32 s90, s90, 80
        s_lshr_b32 s90, s90, 6
        s_add_u32 s90, s90, 4000
        s_mov_b32 s91, 0
        LT_spin:
        s_memrealtime s[92:93]
        s_waitcnt lgkmcnt(0)
        s_sub_u32 s92, s92, s{sEP}
        s_add_u32 s91, s91, 1
        s_cmp_gt_u32 s91, 100000
        s_cbranch_scc1 LT_done
        s_cmp_lt_u32 s92, s90
        s_cbranch_scc1 LT_spin
        LT_done:
        """)
    a(f"""
    """)
    HF, T, WF8, TOK = 60, 68, 52, 106
    ACC = O
    BF = [Q, 28, 32, 36]
    for j in range(4):
        a(f"v_lshlrev_b32 v{HF+2*j}, 16, v{XRES+j}\nv_and_b32 v{HF+2*j+1}, 0xffff0000, v{XRES+j}")
        a(f"v_lshlrev_b32 v{WF8+2*j}, 16, v{WRV+j}\nv_and_b32 v{WF8+2*j+1}, 0xffff0000, v{WRV+j}")
    a(f"v_add_f32 v{T+3}, v{WF8}, v{WF8+1}")
    for j in range(2, 8): a(f"v_add_f32 v{T+3}, v{T+3}, v{WF8+j}")
    a(f"""
    v_mov_b32 v7, 0x3f803f80
    v_lshrrev_b32 v{TOK}, 10, v{XO}
    v_lshlrev_b32 v4, 5, v{TOK}
    v_add_u32 v4, {RED}, v4
    v_lshrrev_b32 v3, 5, v2
    v_lshl_add_u32 v3, v3, 9, v4
    s_lshl_b32 s49, s{sW}, 2
    v_add_u32 v3, s49, v3
    v_add_u32 v0, s45, v{LN16}
    s_add_u32 s49, s44, {WS_H}
    s_cmp_ge_u32 s{sW}, 4
    s_cselect_b64 s[62:63], -1, 0
    s_waitcnt lgkmcnt(0)
    s_barrier
    @S9
    @T2
    s_mov_b64 exec, s[62:63]
    """)
    for i in range(4): a(f"ds_read_b128 {vr(ACC+4*i,4)}, v{PA} offset:{1024*i}")
    a("s_mov_b64 exec, -1")
    for s_ in range(4): a(f"ds_read_b128 {vr(BF[s_],4)}, v{BA} offset:{(s_+4)*128}")
    for s_ in range(4):
        a(f"s_waitcnt lgkmcnt({3 - s_})")
        for i in range(4):
            a(f"{SM16} {vr(ACC+4*i,4)}, {vr(BF[s_],4)}, {vr(WO+32*s_+8*i,8)}, v{IDX}")
    a("s_waitcnt vmcnt(0)")
    for i in range(3): a(f"ds_write_b128 v0, {vr(FWR+4*i,4)} offset:{FW + i*8192}")
    A8, HB = 40, 48
    a("s_mov_b32 vcc_lo, 0x55555555\ns_mov_b32 vcc_hi, 0x55555555\ns_nop 1")
    for p in range(2):
        for r in range(4): a(f"v_permlane32_swap_b32 v{ACC+8*p+r}, v{ACC+8*p+4+r}")
    for r in range(4):
        for p in range(2): a(f"v_add_f32 v{HF+2*r+p}, v{HF+2*r+p}, v{ACC+8*p+r}")
    for r in range(4):
        for p in range(2): a(f"v_add_f32 v{HF+2*r+p}, v{HF+2*r+p}, v{ACC+8*p+4+r}")
    for r in range(4): a(f"v_cvt_pk_bf16_f32 v{A8+r}, v{HF+2*r}, v{HF+2*r+1}")
    X1, X2 = "quad_perm:[1,0,3,2] row_mask:0xf bank_mask:0xf", "quad_perm:[2,3,0,1] row_mask:0xf bank_mask:0xf"
    N = A8 + 4
    a(f"""
    s_nop 0
    v_cndmask_b32_dpp v{N}, v{A8+1}, v{A8}, vcc {X1}
    v_cndmask_b32_dpp v{N+2}, v{A8+3}, v{A8+2}, vcc {X1}
    s_not_b64 vcc, vcc
    v_cndmask_b32_dpp v{N+1}, v{A8}, v{A8+1}, vcc {X1}
    v_cndmask_b32_dpp v{N+3}, v{A8+2}, v{A8+3}, vcc {X1}
    s_mov_b32 vcc_lo, 0x33333333
    s_mov_b32 vcc_hi, 0x33333333
    v_cndmask_b32_dpp v{HB}, v{N+2}, v{N}, vcc {X2}
    v_cndmask_b32_dpp v{HB+1}, v{N+3}, v{N+1}, vcc {X2}
    s_not_b64 vcc, vcc
    v_cndmask_b32_dpp v{HB+2}, v{N}, v{N+2}, vcc {X2}
    v_cndmask_b32_dpp v{HB+3}, v{N+1}, v{N+3}, vcc {X2}
    buffer_store_dwordx4 {vr(HB,4)}, v{XO}, s[{WS}:{WS+3}], s49 offen sc0 sc1
    """)
    for j in range(4): a(f"v_lshlrev_b32 v{HF+2*j}, 16, v{HB+j}\nv_and_b32 v{HF+2*j+1}, 0xffff0000, v{HB+j}")
    a(f"v_add_f32 v{T}, v{HF}, v{HF+1}\nv_mul_f32 v{T+1}, v{HF}, v{HF}\nv_mul_f32 v{T+2}, v{HF}, v{WF8}")
    for j in range(1, 8):
        if j > 1: a(f"v_add_f32 v{T}, v{T}, v{HF+j}")
        a(f"v_fmac_f32 v{T+1}, v{HF+j}, v{HF+j}\nv_fmac_f32 v{T+2}, v{HF+j}, v{WF8+j}")
    a(f"""
    s_nop 0
    v_permlane32_swap_b32 v{T}, v{T+1}
    v_permlane32_swap_b32 v{T+2}, v{T+3}
    v_add_f32 v{T}, v{T}, v{T+1}
    v_add_f32 v{T+2}, v{T+2}, v{T+3}
    s_nop 0
    v_add_f32_dpp v{T}, v{T}, v{T} row_ror:8 row_mask:0xf bank_mask:0xf
    v_add_f32_dpp v{T+2}, v{T+2}, v{T+2} row_ror:8 row_mask:0xf bank_mask:0xf
    s_nop 0
    v_add_f32_dpp v{T}, v{T}, v{T} row_ror:4 row_mask:0xf bank_mask:0xf
    v_add_f32_dpp v{T+2}, v{T+2}, v{T+2} row_ror:4 row_mask:0xf bank_mask:0xf
    ds_write_b32 v3, v{T}
    ds_write_b32 v3, v{T+2} offset:256
    """)
    KR = 128
    def kloads():
        if KMAP:
            for q in range(4): a(f"buffer_load_dwordx2 {vr(KR+2*q,2)}, v8, s[{WS}:{WS+3}], s{56+q} offen sc1")
        else:
            for q in range(4): a(f"buffer_load_dwordx2 {vr(KR+2*q,2)}, v8, s[{WS}:{WS+3}], s48 offen offset:{q << KSH} sc1")
    a(f"""
    s_waitcnt lgkmcnt(0)
    s_barrier
    @S11
    """)
    R_ = 108
    for q in (0, 2, 1, 3):
        a(f"ds_read_b128 {vr(R_+8*q,4)}, v4 offset:{q*256}\nds_read_b128 {vr(R_+8*q+4,4)}, v4 offset:{q*256+16}")
    def sum8(b):
        a(f"""
        v_add_f32 v{b}, v{b}, v{b+1}
        v_add_f32 v{b+2}, v{b+2}, v{b+3}
        v_add_f32 v{b+4}, v{b+4}, v{b+5}
        v_add_f32 v{b+6}, v{b+6}, v{b+7}
        v_add_f32 v{b}, v{b}, v{b+2}
        v_add_f32 v{b+4}, v{b+4}, v{b+6}
        v_add_f32 v{b}, v{b}, v{b+4}
        """)
    s1, s3, s2, s4 = R_, R_+8, R_+16, R_+24
    ST = 76
    OV = 80
    a("s_waitcnt lgkmcnt(4)")
    sum8(s1); sum8(s2)
    a(f"""
    v_mul_f32 v{ST}, {hex(f2u(1.0/512))}, v{s1}
    v_mul_f32 v{s2}, {hex(f2u(1.0/512))}, v{s2}
    v_fma_f32 v{s2}, -v{ST}, v{ST}, v{s2}
    v_max_f32 v{s2}, 0, v{s2}
    v_add_f32 v{s2}, {hex(f2u(EPS))}, v{s2}
    v_rsq_f32 v{ST+1}, v{s2}
    s_cmp_lg_u32 s{sW}, 0
    s_cbranch_scc1 L2_nokey
    s_waitcnt lgkmcnt(0)
    """)
    sum8(s3); sum8(s4)
    AF, BFR, STT, D, D2 = 140, 12, 204, 208, 212
    breg = lambda q: 12 + 4*q if q < 7 else 216 + 4*(q - 7)
    a(f"""
    v_fma_f32 v{s3}, -v{ST}, v{s4}, v{s3}
    s_lshl_b32 s48, s{sG}, 3
    v_add_u32 v4, s48, v{TOK}
    v_mul_f32 v{ST+2}, v{ST+1}, v{s3}
    v_mov_b32 v{ST+3}, s{sEP}
    v_lshlrev_b32 v0, 4, v4
    s_mov_b32 s48, {WS_ST}
    s_mov_b64 exec, 0x000f000f
    buffer_store_dwordx4 {vr(ST,4)}, v0, s[{WS}:{WS+3}], s48 offen sc0 sc1
    s_mov_b64 exec, -1
    v_ashrrev_i32 v3, 31, v{ST+2}
    v_or_b32 v3, 0x80000000, v3
    v_xor_b32 v3, v3, v{ST+2}
    v_and_b32 v3, 0xfffff800, v3
    v_sub_u32 v4, 2047, v4
    v_or_b32 v4, v3, v4
    s_lshl_b32 s48, s2, {KSH}
    s_add_u32 s48, s48, {WS_KEY}
    v_mov_b32_dpp v6, v4 quad_perm:[1,0,3,2] row_mask:0xf bank_mask:0xf
    v_mov_b32 v0, 0
    v_min_u32 v5, v4, v6
    v_max_u32 v4, v4, v6
    """)
    a(f"""
    s_nop 0
    v_mov_b32_dpp v3, v5 quad_perm:[2,3,0,1] row_mask:0xf bank_mask:0xf
    v_mov_b32_dpp v6, v4 quad_perm:[2,3,0,1] row_mask:0xf bank_mask:0xf
    v_max_u32 v5, v5, v3
    v_med3_u32 v5, v4, v5, v6
    v_max_u32 v4, v4, v6
    v_mov_b32 v3, v5
    v_mov_b32 v6, v4
    s_nop 0
    v_permlane16_swap_b32 v5, v3
    v_permlane16_swap_b32 v4, v6
    v_max_u32 v5, v5, v3
    v_med3_u32 v5, v4, v5, v6
    v_max_u32 v4, v4, v6
    """)
    a(f"""
    s_waitcnt vmcnt(1)
    s_barrier
    s_mov_b64 exec, 1
    buffer_store_dwordx2 v[4:5], v0, s[{WS}:{WS+3}], s48 offen sc0 sc1
    s_mov_b64 exec, -1
    @S5
    """)
    def outval():
        a(f"v_add_f32 v3, 1.0, v{ST+1}\nv_mul_f32 v6, v{ST}, v{ST+1}")
        for j in range(8): a(f"v_fma_f32 v{A8+j}, v{HF+j}, v3, -v6")
        for j in range(4): a(f"v_cvt_pk_bf16_f32 v{OV+j}, v{A8+2*j}, v{A8+2*j+1}")
    a(f"v_lshlrev_b32 v8, {KSH + (0 if KMAP else 2)}, v2\ns_mov_b32 s48, {WS_KEY}")
    if KMAP:
        for q in range(4): a(f"s_mov_b32 s{56+q}, {WS_KEY + (64*q << KSH)}")
    if "--knoack" in sys.argv: kloads()
    ROWS = 40960
    a(f"""
    v_and_b32 v9, 15, v2
    v_lshrrev_b32 v11, 4, v2
    v_lshrrev_b32 v10, 2, v9
    v_lshl_add_u32 v10, v11, 7, v10
    v_lshlrev_b32 v10, 4, v10
    v_and_b32 v0, 1, v9
    v_lshl_add_u32 v10, v0, 3, v10
    v_and_b32 v3, 2, v9
    v_lshl_add_u32 v10, v3, 12, v10
    """)
    for q in range(7): a(f"ds_read_b64_tr_b16 {vr(AF+4*q,2)}, v10 offset:{FW + q*128}\nds_read_b64_tr_b16 {vr(AF+4*q+2,2)}, v10 offset:{FW + q*128 + 64}")
    outval()
    a("s_waitcnt lgkmcnt(0)")
    for q in range(7, 14): a(f"ds_read_b64_tr_b16 {vr(AF+4*q,2)}, v10 offset:{FW + q*128}\nds_read_b64_tr_b16 {vr(AF+4*q+2,2)}, v10 offset:{FW + q*128 + 64}")
    a(f"v_mov_b32 v252, v7\nv_mov_b32 v253, v7\nv_mov_b32 v254, v7\nv_mov_b32 v255, v7\ns_waitcnt lgkmcnt(4)")
    for q in range(14, 16): a(f"ds_read_b64_tr_b16 {vr(AF+4*q,2)}, v10 offset:{FW + q*128}\nds_read_b64_tr_b16 {vr(AF+4*q+2,2)}, v10 offset:{FW + q*128 + 64}")
    if "--knoack" not in sys.argv: a("s_waitcnt vmcnt(0)"); kloads()
    a(f"""
    v_cmp_eq_u32 s[10:11], 1, v0
    v_mul_u32_u24 v10, 1040, v0
    v_lshl_add_u32 v10, v11, 8, v10
    v_lshlrev_b32 v{R_}, 4, v0
    v_lshl_add_u32 v{R_}, v11, 3, v{R_}
    s_mov_b32 s49, 0
    s_mov_b32 s46, 0
    s_mov_b32 s47, 0
    s_mov_b32 s51, {WS_ST}
    s_waitcnt lgkmcnt(0)
    """)
    for q in range(16): a(f"{MF16} {vr(D2,4)}, {vr(AF+4*q,4)}, v[252:255], {'0' if q == 0 else vr(D2,4)}")
    a(f"""
    L2_kpoll:
    s_waitcnt vmcnt(0)
    v_min_u32 v0, v{KR}, v{KR+2}
    v_min3_u32 v0, v{KR+4}, v{KR+6}, v0
    v_cmp_eq_u32 s[62:63], 0, v0
    s_add_u32 s49, s49, 1
    s_cmp_gt_u32 s49, 0x40000
    s_cselect_b64 s[62:63], 0, s[62:63]
    v_max_u32 v4, v{KR}, v{KR+2}
    v_min_u32 v5, v{KR}, v{KR+2}
    v_max3_u32 v5, v5, v{KR+1}, v{KR+3}
    v_med3_u32 v5, v4, v5, v{KR+4}
    v_max_u32 v4, v4, v{KR+4}
    v_med3_u32 v5, v4, v5, v{KR+6}
    v_max_u32 v4, v4, v{KR+6}
    v_max3_u32 v5, v5, v{KR+5}, v{KR+7}
    s_mov_b64 exec, s[62:63]
    s_cbranch_execz L2_klast
    """)
    kloads()
    a("L2_klast:\ns_mov_b64 exec, -1")
    for dpp in ("quad_perm:[1,0,3,2]", "quad_perm:[2,3,0,1]", "row_half_mirror", "row_mirror"):
        a(f"""
        v_mov_b32_dpp v3, v5 {dpp} row_mask:0xf bank_mask:0xf
        v_mov_b32_dpp v6, v4 {dpp} row_mask:0xf bank_mask:0xf
        v_max_u32 v5, v5, v3
        v_med3_u32 v5, v4, v5, v6
        v_max_u32 v4, v4, v6
        s_nop 0
        """)
    for sw in ("v_permlane16_swap_b32", "v_permlane32_swap_b32"):
        a(f"""
        v_mov_b32 v3, v5
        v_mov_b32 v6, v4
        s_nop 0
        {sw} v5, v3
        {sw} v4, v6
        v_max_u32 v5, v5, v3
        v_med3_u32 v5, v4, v5, v6
        v_max_u32 v4, v4, v6
        """)
    a(f"""
    v_readfirstlane_b32 s53, v5
    v_readfirstlane_b32 s52, v4
    v_cndmask_b32 v3, v4, v5, s[10:11]
    v_not_b32 v3, v3
    s_cmp_eq_u64 s[52:53], s[46:47]
    s_cbranch_scc1 L2_ksame
    s_mov_b64 s[46:47], s[52:53]
    s_cmp_ge_u32 s2, 176
    s_cbranch_scc1 L2_ksame
    s_andn2_b32 s54, 0x7ff, s52
    s_andn2_b32 s55, 0x7ff, s53
    s_lshl_b32 s54, s54, 10
    s_lshl_b32 s55, s55, 10
    s_add_u32 s54, s54, {WS_H}
    s_add_u32 s55, s55, {WS_H}
    s_mov_b32 m0, {ROWS}
    v_and_b32 v3, 0x7ff, v3
    buffer_load_dwordx4 v{LN16}, s[{WS}:{WS+3}], s54 offen sc1 lds
    s_mov_b32 m0, {ROWS + 1040}
    v_lshlrev_b32 v9, 4, v3
    buffer_load_dwordx4 v{LN16}, s[{WS}:{WS+3}], s55 offen sc1 lds
    buffer_load_dwordx4 {vr(STT,4)}, v9, s[{WS}:{WS+3}], s51 offen sc1
    L2_ksame:
    s_cmp_lg_u64 s[62:63], 0
    s_cbranch_scc1 L2_kpoll
    @S6
    v_mov_b32 v0, {CNT + 16}
    ds_write_b64 v0, v[4:5]
    s_cmp_ge_u32 s2, 176
    s_cbranch_scc1 L2_bc
    s_cmp_ge_u32 s64, 172
    s_cselect_b32 s48, 0x100000, s64
    s_lshl_b32 s48, s48, {ASH}
    s_add_u32 s48, s48, {WS_ACT}
    s_waitcnt vmcnt(1)
    """)
    for q in range(12): a(f"ds_read_b128 {vr(breg(q),4)}, v10 offset:{ROWS + q*16}")
    for q in range(16):
        a(f"s_waitcnt lgkmcnt({min(11, 15 - q)})")
        a(f"{MF16} {vr(D,4)}, {vr(AF+4*q,4)}, {vr(breg(q),4)}, {'0' if q == 0 else vr(D,4)}")
        if q < 4: a(f"ds_read_b128 {vr(breg(q+12),4)}, v10 offset:{ROWS + (q+12)*16}")
    E = R_ + 8
    a(f"""
    L2_stw:
    s_waitcnt vmcnt(0)
    v_cmp_ne_u32 vcc, s{sEP}, v{STT+3}
    s_nop 2
    s_cbranch_vccnz L2_stre
    L2_stok:
    s_nop 1
    """)
    for r in range(4): a(f"v_fma_f32 v{D+r}, -v{STT}, v{D2+r}, v{D+r}")
    for r in range(4): a(f"v_mul_f32 v{D+r}, v{D+r}, v{STT+1}")
    for r in range(4): a(f"v_mov_b32 v{E+4+r}, v{D+r}")
    for r in range(4): a(f"v_mul_f32 v{E+r}, {hex(f2u(-LOG2E))}, v{D+r}")
    for r in range(4): a(f"v_exp_f32 v{E+r}, v{E+r}")
    for r in range(4): a(f"v_permlane32_swap_b32 v{D+r}, v{E+4+r}")
    for r in range(4): a(f"v_add_f32 v{E+r}, 1.0, v{E+r}")
    for r in range(4): a(f"v_rcp_f32 v{E+r}, v{E+r}")
    for r in range(4): a(f"v_mul_f32 v{D+r}, v{D+r}, v{E+4+r}")
    for r in range(4): a(f"v_mul_f32 v{D+r}, v{D+r}, v{E+r}")
    a(f"""
    v_cvt_pk_bf16_f32 v{R_+2}, v{D}, v{D+1}
    v_cvt_pk_bf16_f32 v{R_+3}, v{D+2}, v{D+3}
    s_mov_b64 exec, 0x00030003
    buffer_store_dwordx2 {vr(R_+2,2)}, v{R_}, s[{WS}:{WS+3}], s48 offen sc0 sc1
    s_mov_b64 exec, -1
    @S10
    s_branch L2_bc
    L2_stre:
    s_add_u32 s49, s49, 1
    s_cmp_gt_u32 s49, 0x40000
    s_cbranch_scc1 L2_stok
    buffer_load_dwordx4 {vr(STT,4)}, v9, s[{WS}:{WS+3}], s51 offen sc1
    s_branch L2_stw
    L2_nokey:
    """)
    outval()
    a("s_waitcnt vmcnt(0)\ns_barrier")
    BFR = 164
    a(f"""
    L2_bc:
    v_and_b32 v9, 15, v2
    v_lshrrev_b32 v10, 2, v9
    v_lshrrev_b32 v11, 4, v2
    v_lshl_add_u32 v10, v11, 3, v10
    v_lshlrev_b32 v10, 4, v10
    v_and_b32 v8, 1, v9
    v_lshl_add_u32 v10, v8, 3, v10
    s_mul_i32 s49, s45, 3
    v_add_u32 v10, s49, v10
    """)
    for s_ in range(6):
        a(f"ds_read_b64_tr_b16 {vr(AF+4*s_,2)}, v10 offset:{FW + s_*512}\nds_read_b64_tr_b16 {vr(AF+4*s_+2,2)}, v10 offset:{FW + s_*512 + 64}")
    a(f"""
    v_mov_b32 v0, {CNT + 16}
    s_lshl_b32 s48, s{sG}, 3
    v_add_u32 v8, s48, v{TOK}
    s_waitcnt lgkmcnt(0)
    s_barrier
    ds_read_b64 v[4:5], v0
    s_waitcnt lgkmcnt(0)
    v_not_b32 v4, v4
    v_not_b32 v5, v5
    v_and_b32 v4, 0x7ff, v4
    v_and_b32 v5, 0x7ff, v5
    v_cmp_ne_u32 vcc, v4, v8
    v_cmp_ne_u32 s[62:63], v5, v8
    s_and_b64 exec, vcc, s[62:63]
    buffer_store_dwordx4 {vr(OV,4)}, v{XO}, s[{OUT}:{OUT+3}], s44 offen {OSC}
    s_mov_b64 exec, -1
    s_sub_u32 s48, s2, 176
    s_cmp_lt_u32 s48, 64
    s_cbranch_scc1 L2_st2
    L2_fin:
    @D0 15 {WS} {sW}
    s_endpgm
    """)
    a("L2_st2:")
    a(f"""
    v_and_b32 v6, 8, v2
    v_cmp_ne_u32 vcc, 0, v6
    s_mov_b32 s48, {WS_H}
    s_mov_b32 s51, {WS_ST}
    v_cndmask_b32 v3, v4, v5, vcc
    v_lshlrev_b32 v12, 10, v3
    v_lshl_add_u32 v12, v1, 1, v12
    v_add_u32 v12, s61, v12
    v_lshlrev_b32 v18, 4, v3
    buffer_load_ushort v13, v12, s[{WS}:{WS+3}], s48 offen sc1
    v_and_b32 v6, 1, v2
    v_lshlrev_b32 v0, {ASH}, v11
    v_lshl_add_u32 v0, v6, 4, v0
    s_mul_i32 s48, s{sW}, {24 << ASH}
    s_add_u32 s48, s48, {WS_ACT}
    s_mov_b32 s49, 0
    L2_apoll:
    buffer_load_dwordx4 {vr(STT,4)}, v18, s[{WS}:{WS+3}], s51 offen sc1
    """)
    for s_ in range(6):
        a(f"buffer_load_dwordx4 {vr(BFR+4*s_,4)}, v0, s[{WS}:{WS+3}], s48 offen offset:{s_*(4 << ASH)} sc1")
    a(f"s_add_u32 s49, s49, 1\ns_waitcnt vmcnt(0)\nv_max3_u32 v3, v{BFR}, v{BFR+1}, v{BFR+2}")
    for q in range(3, 23, 2): a(f"v_max3_u32 v3, v{BFR+q}, v{BFR+q+1}, v3")
    a(f"""
    v_max_u32 v3, v{BFR+23}, v3
    v_cmp_eq_u32 vcc, -1, v3
    v_cmp_ne_u32 s[62:63], s{sEP}, v{STT+3}
    s_cmp_gt_u32 s49, 0x40000
    s_cbranch_scc1 L2_agot
    s_or_b64 {'exec' if '--amask' in sys.argv else 'vcc'}, vcc, s[62:63]
    s_cbranch_scc0 L2_agot
    {SLEEP}
    s_branch L2_apoll
    L2_agot:
    s_mov_b64 exec, -1
    @S10
    """)
    for s_ in range(6): a(f"{MF16} {vr(D,4)}, {vr(AF+4*s_,4)}, {vr(BFR+4*s_,4)}, {'0' if s_ == 0 else vr(D,4)}")
    a(f"""
    v_and_b32 v3, 1, v11
    v_lshlrev_b32 v0, 5, v6
    v_lshl_add_u32 v0, v3, 4, v0
    s_lshl_b32 s48, s{sW}, 6
    s_add_u32 s48, s48, {FR}
    v_add_u32 v0, s48, v0
    v_lshlrev_b32 v10, 2, v9
    v_lshl_add_u32 v10, v11, 7, v10
    v_add_u32 v10, {FR}, v10
    ds_write_b128 v0, {vr(D,4)}
    s_waitcnt lgkmcnt(0)
    s_barrier
    s_cmp_lg_u32 s{sW}, 0
    s_cbranch_scc1 L2_fin
    ds_read2_b32 v[14:15], v10 offset0:0 offset1:16
    v_mul_f32 v16, {hex(f2u(-LOG2E))}, v{STT+2}
    v_exp_f32 v16, v16
    v_lshlrev_b32 v13, 16, v13
    v_add_f32 v16, 1.0, v16
    v_rcp_f32 v16, v16
    v_sub_f32 v17, v13, v{STT}
    v_fma_f32 v13, v17, v{STT+1}, v13
    s_waitcnt lgkmcnt(0)
    v_add_f32 v14, v14, v15
    v_mov_b32 v15, v14
    s_nop 1
    v_permlane32_swap_b32 v14, v15
    v_add_f32 v14, v14, v15
    v_mov_b32 v15, v14
    s_nop 1
    v_permlane16_swap_b32 v14, v15
    v_add_f32 v14, v14, v15
    v_fma_f32 v14, v14, v16, v13
    v_cvt_pk_bf16_f32 v14, v14, v14
    s_mov_b64 exec, 0xffff
    buffer_store_short v14, v12, s[{OUT}:{OUT+3}], 0 offen {OSC}
    @Q {WS}
    @D0 15 {WS} {sW}
    L2_end:
    s_endpgm
    """)
    AB = 12
    def wl(reg, sb, f):
        a(f"buffer_load_dwordx4 {vr(reg,4)}, v{LN16}, s[{WS}:{WS+3}], s{sb} offen offset:{(f & 3)*1024} sc1")
        if f % 4 == 3: a(f"s_add_u32 s{sb}, s{sb}, 4096")
    NE = 10
    breg = lambda f: 40 + 4*f if f < NE else WO + 4*(f - NE)
    a(f"""
    L2_old:
    s_setprio 0
    v_mov_b32 v3, {CNT}
    v_mov_b32 v4, 1
    s_waitcnt lgkmcnt(0)
    s_mov_b64 exec, 1
    ds_add_u32 v3, v4
    s_mov_b64 exec, -1
    s_add_u32 s48, s51, {4*65536}
    v_mov_b32 v7, {1024 + 528}
    """)
    for i in range(4): a(f"ds_read_b128 {vr(ACC+4*i,4)}, v7\nds_read_b128 {vr(AB+4*i,4)}, v7")
    for f in range(NE): wl(breg(f), 48, f)
    a(f"""
    L2_spin:
    ds_read_b32 v4, v3
    s_waitcnt lgkmcnt(0)
    v_readfirstlane_b32 s49, v4
    s_cmp_ge_u32 s49, 4
    s_cbranch_scc1 L2_go
    s_sleep 2
    s_branch L2_spin
    L2_go:
    """)
    for s_ in range(4): a(f"ds_read_b128 {vr(BF[s_],4)}, v{BA} offset:{s_*128}")
    def half(acc, reg, after):
        for s_ in range(4):
            for i in range(4):
                f = 8*s_ + 2*i
                after(f, 0)
                a(f"{SM16} {vr(acc+4*i,4)}, {vr(BF[s_],4)}, {vr(reg(f),8)}, v{IDX}")
                after(f, 1)
    a(f"s_add_u32 s49, s51, {32768 + ((32 - NE)//4)*4096}\ns_waitcnt lgkmcnt(0)")
    def aftA(f, post):
        if not post: return
        for slot in (f, f + 1):
            if slot < 32 - NE: wl(WO + 4*slot, 48, slot + NE)
            else: wl(WO + 4*slot, 49, slot)
    half(ACC, lambda f: WO + 4*f, aftA)
    a(f"s_add_u32 s49, s51, 32768")
    def aftB(f, post):
        if not post:
            done = max(0, f - NE)
            a(f"s_waitcnt vmcnt({min(63, (31 - (f + 1)) + NE + done)})"); return
        for g in (f, f + 1):
            if g >= NE: wl(WO + 4*(g - NE), 49, g - NE)
    half(AB, breg, aftB)
    a("s_nop 5")
    for i in range(4): a(f"ds_write_b128 v{PA}, {vr(AB+4*i,4)} offset:{1024*i}")
    a("s_waitcnt vmcnt(0)\ns_setprio 1\ns_branch L2_join")
    a(f"""
    L2_slow:
    v_mov_b32 v{KA}, v{LN16}
    v_mov_b32 v{M}, 0xff7fffff
    s_mov_b32 s{sN}, 64
    L2_maxloop:
    ds_read_b128 {vr(KF,4)}, v{KA}
    v_add_u32 v{KA}, {TILE}, v{KA}
    s_waitcnt lgkmcnt(0)
    {MF32} {vr(S,16)}, {vr(KF,4)}, {vr(Q,4)}, 0
    s_sub_u32 s{sN}, s{sN}, 1
    s_nop 10
    """)
    for r in range(8): a(f"v_max3_f32 v{M}, v{S+2*r}, v{S+2*r+1}, v{M}")
    a(f"""
    s_cmp_lg_u32 s{sN}, 0
    s_cbranch_scc1 L2_maxloop
    v_mov_b32 v3, v{M}
    v_mov_b32 v{KA}, v{LN16}
    v_mov_b32 v{VA}, v{VA0}
    v_permlane32_swap_b32 v{M}, v3
    v_max_f32 v{M}, v{M}, v3
    """)
    for r in range(16): a(f"v_mov_b32 v{O+r}, 0")
    a(f"""
    s_mov_b32 s{sN}, 64
    L2_slowloop:
    ds_read_b128 {vr(KF,4)}, v{KA}
    ds_read_b128 {vr(VF,4)}, v{VA}
    ds_read_b128 {vr(VF+4,4)}, v{VA} offset:544
    v_add_u32 v{KA}, {TILE}, v{KA}
    v_add_u32 v{VA}, {TILE}, v{VA}
    s_waitcnt lgkmcnt(0)
    {MF32} {vr(S,16)}, {vr(KF,4)}, {vr(Q,4)}, 0
    s_sub_u32 s{sN}, s{sN}, 1
    s_nop 10
    """)
    for i in range(16): a(f"v_sub_f32 v{S+i}, v{S+i}, v{M}")
    for i in range(16): a(f"v_exp_f32 v{S+i}, v{S+i}")
    a(f"""
    s_nop 1
    {SMF} {vr(O,16)}, {vr(VF,4)}, {vr(S,8)}, v{IDX}
    {SMF} {vr(O,16)}, {vr(VF+4,4)}, {vr(S+8,8)}, v{IDX}
    s_cmp_lg_u32 s{sN}, 0
    s_cbranch_scc1 L2_slowloop
    s_nop 11
    v_rcp_f32 v3, v{O+8}
    s_branch L2_epi
    """)
    k1_cold(a)
    return desc(KNAME, 256, 72)

NOTES = """;
"""
def main():
    hdr = open("sequential_preLN__grouped_kv_mqa__moe_arch_mod__prompt.s.ref").read().split("\n")
    top = [l for l in hdr if l.startswith(";") and "@launch" not in l and "Override" not in l and "grid=ceil" not in l]
    a = Asm()
    k1(a)
    d = k2(a)
    out = "\n".join(top) + "\n"
    out += f"; @launch grid=(256,1,1) block=(512,1,1) lds={max(K1_LDS, K2_LDS)}\n"
    out += NOTES
    out += '.amdgcn_target "amdgcn-amd-amdhsa--gfx950"\n.text\n' + a.text() + '.section .rodata,"a"\n' + d
    sys.stdout.write(out)
main()
```

```python
import sys, struct
def f2u(x): return struct.unpack("<I", struct.pack("<f", x))[0]

WS_Q   = 0
WS_KV  = 2 << 20
WS_WO  = 3 << 20
WS_H   = 4 << 20

WS_ST  = (6 << 20) + 0x10000
WS_ACT = (6 << 20) + 0x20000
WS_KEY = WS_ACT + 0x10000
KSH = 5; ASH = 7; FSH = 4
for _x in sys.argv:
    if _x.startswith('--ksh='): KSH = int(_x.split('=')[1])
    if _x.startswith('--fsh='): FSH = int(_x.split('=')[1])
    if _x.startswith('--ash='): ASH = int(_x.split('=')[1])
WS_FLG = WS_KEY + 0x10000
WS_QB = 7 << 20
sEP = 68
KNAME = 'sequential_preLN__grouped_kv_mqa__moe_arch_mod__prompt_kernel'
WS_SIZE = 8 << 20
TILE = 2112
QSCALE = 0.25 * 1.4426950408889634
EPS = 1e-5
SHIFT = 96.0
for _x in sys.argv:
    if _x.startswith('--shift='): SHIFT = float(_x.split('=')[1])

class Asm:
    def __init__(self): self.l = []
    def __call__(self, s):
        for x in s.split("\n"):
            x = x.strip()
            if x.startswith("@S"): stamp(self, int(x[2:])); continue
            if x.startswith("@P"): padstore(self, *[int(t) for t in x[2:].split()]); continue
            if x.startswith("@Q"): padspin(self, *[int(t) for t in x[2:].split()]); continue
            if x.startswith("@T"): padstamp(self, int(x[2:])); continue
            if x.startswith("@D"): dump(self, *[int(t) for t in x[2:].split()]); continue
            if x: self.l.append(("" if x.endswith(":") else "    ") + x)
    def text(self): return "\n".join(self.l) + "\n"

def srd(a, d, p, size):
    a(f"s_mov_b32 s{d}, s{p}\ns_and_b32 s{d+1}, s{p+1}, 0xffff\ns_mov_b32 s{d+2}, {size}\ns_mov_b32 s{d+3}, 0x20000")
def vr(b, n): return f"v[{b}:{b+n-1}]"
def head(a, name):
    a(f".globl {name}\n.p2align 8\n.type {name},@function\n{name}:")
def desc(name, nv, ns):
    return f""".p2align 6
.amdhsa_kernel {name}
  .amdhsa_next_free_vgpr {nv}
  .amdhsa_next_free_sgpr {102 if (DIAG or PAD is not None or '--tsync' in sys.argv) else ns}
  .amdhsa_accum_offset {(nv+3)//4*4}
  .amdhsa_group_segment_fixed_size 0
  .amdhsa_kernarg_size 104
  .amdhsa_user_sgpr_count 2
  .amdhsa_user_sgpr_kernarg_segment_ptr 1
  .amdhsa_system_sgpr_workgroup_id_x 1
.end_amdhsa_kernel
"""
DIAG = "--diag" in sys.argv
WS_DIAG = 16 << 20
if DIAG: WS_SIZE = 32 << 20
LIGHT = '--light' in sys.argv
def stamp(a, i, force=False):
    if LIGHT and i != 0 and not force: return
    if DIAG: a(f"{'s_memtime' if i >= 13 else 's_memrealtime'} s[{70+2*i}:{71+2*i}]\ns_waitcnt lgkmcnt(0)")
DIAG2 = "--diag2" in sys.argv
D2SEL = {0: [(0, 1), (2, 0), (8, 0)], 1: [(0, 1), (1, 0), (3, 0), (4, 0), (8, 0), (10, 0), (12, 0)], 2: [(0, 1), (1, 0), (3, 0), (5, 0), (6, 0), (7, 0)]}
_dl = [0]
def dump(a, kidx, n, WS, sW):
    if not DIAG: return
    stamp(a, min(n - 1, 12), True)
    if DIAG2:
        _dl[0] += 1
        base = sum(len(D2SEL[k]) for k in range(kidx))
        a(f"s_and_b32 s98, s2, 15\ns_cmp_lg_u32 s98, 0\ns_cbranch_scc1 LD_{_dl[0]}\ns_load_dwordx2 s[98:99], s[0:1], 88\ns_mov_b64 exec, 1\nv_mov_b32 v1, 0\ns_waitcnt lgkmcnt(0)\ns_add_u32 s98, s98, {512*(2-kidx)}\ns_addc_u32 s99, s99, 0")
        for j, (i, inv) in enumerate(D2SEL[kidx]):
            a(f"v_mov_b32 v0, s{70+2*i}")
            if inv: a("v_not_b32 v0, v0")
            a(f"global_atomic_umax v1, v0, s[98:99] offset:{4*(base+j)}\ns_nop 1")
        a(f"LD_{_dl[0]}:")
        return
    a(f"s_mov_b64 exec, 1\ns_lshl_b32 s69, s2, 4\ns_add_u32 s69, s69, s{sW}\ns_lshl_b32 s69, s69, 6\ns_add_u32 s69, s69, {WS_DIAG + kidx * (1 << 20)}\nv_mov_b32 v1, 0")
    for i in range(n):
        a(f"v_mov_b32 v0, s{70+2*i}\nbuffer_store_dword v0, v1, s[{WS}:{WS+3}], s69 offen offset:{4*i}")
PAD = [int(x.split("=")[1]) for x in sys.argv if x.startswith("--pad=")]
PAD = PAD[0] if PAD else None
WS_PAD = (6 << 20)
def padstamp(a, k):
    if PAD == k: a("s_memrealtime s[94:95]\ns_waitcnt lgkmcnt(0)")
def padstore(a, k, WS, sW): pass
def padspin(a, WS):
    if PAD is None: return
    a(f"s_mov_b32 s97, 0\nLQ_spin:\ns_memrealtime s[92:93]\ns_waitcnt lgkmcnt(0)\ns_sub_u32 s98, s92, s94\ns_add_u32 s97, s97, 1\ns_cmp_gt_u32 s97, 100000\ns_cbranch_scc1 LQ_done\ns_cmp_lt_u32 s98, 6000\ns_cbranch_scc1 LQ_spin\nLQ_done:")
MF32 = "v_mfma_f32_32x32x16_bf16"
MF16 = "v_mfma_f32_16x16x32_bf16"

ZERO_KB = 8
K1_KV = 131072
K1_CS = 147456
K1_KC = K1_CS + 1024
K1_KP = K1_KC + 1024
K1_PS = K1_KP + 4096
K1_EP = K1_PS + 1024
K1_LDS = K1_EP + 64
QSC = 'sc1' if '--qsc1' in sys.argv else '' if '--qplain' in sys.argv else 'sc0 sc1'
CODE_SPAN = 18600
WOC = 1 if '--woc1' in sys.argv else 2
def rowstat(a, s, m, r):
    a(f"""
    v_add_f32 v{m}, v{s}, v{s+2}
    v_add_f32 v{r}, v{s+1}, v{s+3}
    v_mul_f32 v{m}, {hex(f2u(-1.0/512))}, v{m}
    v_mul_f32 v{r}, {hex(f2u(1.0/512))}, v{r}
    v_fma_f32 v{r}, -v{m}, v{m}, v{r}
    v_max_f32 v{r}, 0, v{r}
    """)
    if "--exactln" in sys.argv:
        a(f"v_add_f32 v{r}, {hex(f2u(EPS))}, v{r}\nv_rsq_f32 v{r}, v{r}")
        return
    a(f"""
    v_cvt_pk_bf16_f32 v{r}, v{m}, v{r}
    v_lshlrev_b32 v{m}, 16, v{r}
    v_and_b32 v{r}, 0xffff0000, v{r}
    v_add_f32 v{r}, {hex(f2u(EPS))}, v{r}
    v_cvt_pk_bf16_f32 v{r}, v{r}, v{r}
    v_and_b32 v{r}, 0xffff0000, v{r}
    v_sqrt_f32 v{r}, v{r}
    s_nop 0
    v_cvt_pk_bf16_f32 v{r}, v{r}, v{r}
    v_and_b32 v{r}, 0xffff0000, v{r}
    v_rcp_f32 v{r}, v{r}
    """)
def split_ab(a, src, dst, kind):
    a(f"v_and_b32 v11, 0xffff0000, v{src}\nv_sub_f32 v12, v{src}, v11")
    if kind == "m": a(f"v_cvt_pk_bf16_f32 v{dst}, v11, v12\nv_cvt_pk_bf16_f32 v{dst+1}, v11, 0")
    else: a(f"v_cvt_pk_bf16_f32 v{dst}, v11, v11\nv_cvt_pk_bf16_f32 v{dst+1}, v12, 0")
def k1(a):
    X, WQ, WKV, WO, WS = 16, 20, 24, 32, 36
    sW, sTG, sCG = 40, 41, 42
    DBG = 28
    ONES = 69
    VL = 13
    head(a, KNAME)
    a(f"""
    s_cmp_ge_u32 s2, 256
    s_cbranch_scc1 L2_end
    @S0
    @T0
    s_load_dwordx8 s[4:11], s[0:1], 0
    s_load_dwordx2 s[12:13], s[0:1], 32
    s_load_dwordx2 s[14:15], s[0:1], 96
    s_load_dwordx2 s[64:65], s[0:1], 88
    v_lshrrev_b32 v1, 6, v0
    v_and_b32 v2, 63, v0
    v_readfirstlane_b32 s{sW}, v1
    s_and_b32 s43, s2, 7
    s_lshr_b32 s44, s2, 3
    s_and_b32 s45, s44, 3
    s_lshl_b32 s{sTG}, s43, 2
    s_add_u32 s{sTG}, s{sTG}, s45
    s_lshr_b32 s{sCG}, s44, 2
    v_and_b32 v3, 15, v2
    v_lshrrev_b32 v4, 4, v2
    v_lshlrev_b32 v{VL}, 4, v2
    s_and_b32 s46, s{sW}, 3
    s_lshl_b32 s50, s46, 12
    s_and_b32 s58, s{sCG}, 3
    s_cmp_lt_u32 s{sW}, 4
    s_cbranch_scc1 L1_gemm
    """)
    VX, VW, WT, CS, WR, XR = 8, 12, 24, 70, 48, 32
    pass
    for i in range(4):
        a(f"v_add_u32 v7, {4*i}, v4\nv_xor_b32 v{VX+i}, v7, v3\nv_lshlrev_b32 v{VX+i}, 4, v{VX+i}\nv_lshl_add_u32 v{VX+i}, v7, 10, v{VX+i}")
    a(f"""
    v_lshrrev_b32 v7, 3, v2
    v_and_b32 v{VW}, 1, v4
    v_lshlrev_b32 v{VW}, 2, v{VW}
    v_and_b32 v14, 7, v2
    v_xor_b32 v{VW}, v{VW}, v14
    v_lshlrev_b32 v{VW}, 4, v{VW}
    v_lshl_add_u32 v{VW}, v7, 10, v{VW}
    s_lshl_b32 s48, s{sTG}, 16
    s_lshl_b32 s43, s46, 14
    s_add_u32 s48, s48, s43
    s_lshl_b32 s49, s46, 15
    s_lshl_b32 s43, s{sCG}, 7
    s_add_u32 s49, s49, s43
    {'s_mov_b32 s55, 0' if '--norot' in sys.argv else f's_add_u32 s55, s{sCG}, s{sTG}'}
    s_waitcnt lgkmcnt(0)
    """)
    srd(a, X, 4, 2 << 20)
    def chunk(c, sh): a(f"s_add_u32 s43, s55, {c}\ns_and_b32 s43, s43, 3\ns_lshl_b32 s43, s43, {sh}")
    def issx(c):
        chunk(c, 8); a("s_add_u32 s51, s48, s43")
        for i in range(4):
            a(f"s_add_u32 m0, s50, {c*16384 + i*1024}\ns_nop 0\nbuffer_load_dwordx4 v{VX+i}, s[{X}:{X+3}], s51 offen lds")
    def issw(c):
        chunk(c, 17); a("s_add_u32 s51, s49, s43")
        for i in range(4):
            a(f"s_add_u32 m0, s50, {65536 + c*16384 + i*1024}\ns_add_u32 s52, s51, {8*i*1024}\nbuffer_load_dwordx4 v{VW}, s[{WQ}:{WQ+3}], s52 offen lds")
    def isskv(c):
        chunk(c, 12)
        a(f"s_add_u32 m0, s61, {K1_KV + c*4096}\ns_add_u32 s52, s61, s43\nbuffer_load_dwordx4 v{VL}, s[{WKV}:{WKV+3}], s52 offen lds")
    issx(0)
    a(f"s_cmp_ge_u32 s{sCG}, 4\ns_cselect_b32 s8, s10, s8\ns_cselect_b32 s9, s11, s9\ns_lshl_b32 s61, s46, 10")
    srd(a, WKV, 8, 16 << 10)
    isskv(0); issx(1); isskv(1)
    srd(a, WQ, 6, 512 << 10)
    a(f"""
    v_mov_b32 v{ONES}, 0x3f803f80
    v_add_u32 v30, {K1_KC}, v{VL}
    s_lshl_b32 s43, s58, 8
    s_add_u32 s43, s43, {K1_PS}
    v_lshl_add_u32 v31, v3, 4, s43
    s_lshl_b32 s56, s{sTG}, 1
    s_lshr_b32 s43, s58, 1
    s_add_u32 s56, s56, s43
    s_mul_i32 s56, s56, {TILE}
    s_add_u32 s56, s56, {WS_KV}
    s_and_b32 s57, s58, 1
    s_lshl_b32 s43, s57, 8
    s_mul_i32 s44, s57, 544
    s_add_u32 s44, s44, 1024
    s_cmp_ge_u32 s{sCG}, 4
    s_cselect_b32 s43, s44, s43
    s_cselect_b64 s[62:63], -1, 0
    s_add_u32 s56, s56, s43
    v_and_b32 v14, 1, v4
    v_lshrrev_b32 v15, 1, v4
    v_lshlrev_b32 v26, 9, v14
    v_lshl_add_u32 v26, v15, 3, v26
    v_lshlrev_b32 v27, 8, v15
    v_lshl_add_u32 v27, v14, 3, v27
    v_cndmask_b32 v26, v26, v27, s[62:63]
    v_lshl_add_u32 v26, v3, 4, v26
    v_lshlrev_b32 v27, 4, v4
    v_lshlrev_b32 v28, 2, v3
    v_cndmask_b32 v27, v28, v27, s[62:63]
    v_cndmask_b32 v28, 0, 4, s[62:63]
    v_mov_b32 v29, 0x7fff0000
    v_mov_b32 v74, 0
    v_mov_b32 v75, 0
    v_mov_b32 v78, 0
    v_mov_b32 v79, 0
    """)
    srd(a, WS, 14, WS_SIZE); srd(a, DBG, 64, 256)
    a(f"v_mov_b32 v93, {K1_EP}\nv_mov_b32 v94, 0")
    size = [5, 5, 5, 5, 4, 4, 4, 4]
    for g in range(5):
        if g + 2 < 4: issx(g + 2); isskv(g + 2)
        else: issw(g - 2)
        a(f"s_waitcnt vmcnt({sum(size[g+1:g+3])})\ns_barrier")
    a(f"buffer_load_dword v66, v94, s[{DBG}:{DBG+3}], 0 offen sc1")
    issw(3)
    a(f"""
    s_cmp_eq_u32 s46, 0
    s_cbranch_scc1 L1_fin
    s_waitcnt vmcnt(9)
    s_barrier
    s_waitcnt vmcnt(5)
    s_barrier
    s_waitcnt vmcnt(0)
    v_readfirstlane_b32 s{sEP}, v66
    s_cmp_eq_u32 s{sEP}, 0
    s_cbranch_scc1 L1_tag
    L1_tagok0:
    ds_write_b32 v93, v66
    s_waitcnt lgkmcnt(0)
    s_barrier
    s_branch L2_start
    L1_fin:
    ds_read_b128 v[80:83], v31
    ds_read_b128 v[84:87], v30
    ds_read_b128 {vr(XR,4)}, v30 offset:1024
    ds_read_b128 {vr(XR+4,4)}, v30 offset:2048
    ds_read_b128 {vr(XR+8,4)}, v30 offset:3072
    ds_read_b128 {vr(XR+12,4)}, v30 offset:4096
    s_waitcnt lgkmcnt(4)
    """)
    rowstat(a, 80, 8, 9)
    a(f"""
    v_add_f32 v84, v84, v85
    v_add_f32 v86, v86, v87
    ds_bpermute_b32 v88, v27, v9
    v_add_u32 v27, v27, v28
    ds_bpermute_b32 v89, v27, v9
    v_add_u32 v27, v27, v28
    ds_bpermute_b32 v90, v27, v9
    v_add_u32 v27, v27, v28
    ds_bpermute_b32 v91, v27, v9
    v_add_f32 v84, v84, v86
    v_cndmask_b32 v85, v84, v8, s[62:63]
    v_cndmask_b32 v86, v8, v84, s[62:63]
    """)
    split_ab(a, 85, 72, "c"); split_ab(a, 86, 76, "m")
    a("s_waitcnt lgkmcnt(4)")
    for r in range(4):
        a(f"v_add_f32 v{XR+r}, v{XR+r}, v{XR+4+r}\nv_add_f32 v{XR+8+r}, v{XR+8+r}, v{XR+12+r}")
    for r in range(4): a(f"v_add_f32 v{XR+r}, v{XR+r}, v{XR+8+r}")
    a(f"""
    v_cmp_gt_u32 vcc, 4, v2
    v_lshlrev_b32 v12, 2, v2
    {MF16} {vr(XR,4)}, v[72:75], v[76:79], {vr(XR,4)}
    v_cndmask_b32 v14, 0, v{ONES}, vcc
    s_and_b64 s[62:63], s[62:63], 0xff
    s_waitcnt lgkmcnt(0)
    s_nop 4
    """)
    for r in range(4): a(f"v_mul_f32 v{XR+r}, v{88+r}, v{XR+r}")
    a(f"""
    v_cvt_pk_bf16_f32 v{XR}, v{XR}, v{XR+1}
    v_cvt_pk_bf16_f32 v{XR+1}, v{XR+2}, v{XR+3}
    buffer_store_dwordx2 {vr(XR,2)}, v26, s[{WS}:{WS+3}], s56 offen sc0 sc1
    v_cndmask_b32 v12, v29, v12, s[62:63]
    buffer_store_dword v14, v12, s[{WS}:{WS+3}], s56 offen offset:512 sc0 sc1
    s_lshl_b32 s43, s2, {FSH}
    s_add_u32 s43, s43, {WS_FLG}
    v_mov_b32 v7, 0
    s_waitcnt vmcnt(11)
    s_barrier
    s_waitcnt vmcnt(7)
    s_barrier
    {'s_waitcnt vmcnt(2)' if '--fb' in sys.argv else ''}
    {'s_barrier' if '--fb' in sys.argv else ''}
    s_waitcnt vmcnt(0)
    v_readfirstlane_b32 s{sEP}, v66
    s_cmp_eq_u32 s{sEP}, 0
    s_cbranch_scc1 L1_tag
    L1_tagok1:
    s_mov_b64 exec, 1
    buffer_store_dword v66, v7, s[{WS}:{WS+3}], s43 offen sc0 sc1
    s_mov_b64 exec, -1
    @S1
    {'' if '--fb' in sys.argv else 's_barrier'}
    s_branch L2_start
    """)
    D1 = 16
    XF, WF = 120, 32
    XA, WA, WB, WOD = 72, 68, 70, 80
    KX, KW = 92, 93
    SX, SXX, KC, KD = 14, 15, 71, 96
    KF = 104
    a(f"""
    L1_gemm:
    v_and_b32 v5, 31, v2
    v_lshrrev_b32 v6, 5, v2
    s_and_b32 s53, s{sW}, 1
    s_lshr_b32 s54, s{sW}, 1
    s_lshl_b32 s59, s2, 1
    s_add_u32 s59, s59, s53
    s_lshr_b32 s43, s59, 6
    s_lshl_b32 s47, s43, 7
    s_lshr_b32 s44, s59, 3
    s_and_b32 s44, s44, 7
    s_lshl_b32 s44, s44, 16
    s_add_u32 s47, s47, s44
    s_lshl_b32 s44, s53, 15
    s_add_u32 s47, s47, s44
    s_and_b32 s44, s59, 2
    s_lshl_b32 s44, s44, 5
    s_add_u32 s47, s47, s44
    s_and_b32 s44, s59, 4
    s_lshr_b32 s44, s44, 1
    s_add_u32 s47, s47, s44
    v_lshlrev_b32 v7, 2, v3
    v_lshl_add_u32 v7, v6, 14, v7
    v_and_b32 v8, 1, v4
    v_lshl_add_u32 v7, v8, 12, v7
    v_add_u32 v8, 8192, v7
    s_waitcnt lgkmcnt(0)
    """)
    if "--pf" in sys.argv:
        a(f"""
        s_lshr_b32 s43, s2, 3
        s_lshl_b32 s43, s43, 14
        s_lshl_b32 s44, s53, 13
        s_add_u32 s43, s43, s44
        s_lshl_b32 s44, s{sTG}, 16
        s_lshl_b32 s45, s{sCG}, 13
        s_add_u32 s44, s44, s45
        s_cmp_eq_u32 s{sW}, 3
        s_cselect_b32 s44, 0x400000, s44
        s_cmp_ge_u32 s{sW}, 2
        s_cselect_b32 s43, s44, s43
        s_cselect_b32 s{X}, s4, s6
        s_cselect_b32 s{X+1}, s5, s7
        s_mov_b32 s{X+2}, 0x80000
        s_cselect_b32 s{X+2}, 0x200000, s{X+2}
        s_and_b32 s{X+1}, s{X+1}, 0xffff
        s_mov_b32 s{X+3}, 0x20000
        v_lshlrev_b32 v9, 7, v2
        buffer_load_dword v252, v9, s[{X}:{X+3}], s43 offen
        """)
    srd(a, WO, 12, 512 << 10); srd(a, WS, 14, WS_SIZE); srd(a, DBG, 64, 256)
    a(f"s_cmp_ge_u32 s{sW}, 2\ns_cbranch_scc1 L1_nowo")
    for j in range(8):
        ro = (0, 1, 8, 9, 2, 3, 10, 11)[j]
        a(f"buffer_load_ushort v{WOD + j}, v{7 + ro//8}, s[{WO}:{WO+3}], s47 offen offset:{(ro & 3) * 1024}")
    a(f"""
    s_branch L1_noz
    L1_nowo:
    s_cmp_eq_u32 s{sW}, 2
    s_cbranch_scc1 L1_ini
    """)
    if "--tlb" in sys.argv:
        a(f"""
        s_load_dwordx8 s[16:23], s[0:1], 48
        s_load_dwordx2 s[24:25], s[0:1], 80
        v_lshlrev_b32 v9, 20, v2
        s_mov_b64 exec, 0xff
        buffer_load_dword v252, v9, s[{WS}:{WS+3}], 0 offen offset:2048
        s_mov_b64 exec, 1
        global_load_dword v253, v9, s[6:7]
        s_waitcnt lgkmcnt(0)
        global_load_dword v253, v9, s[16:17]
        global_load_dword v253, v9, s[18:19]
        global_load_dword v253, v9, s[20:21]
        global_load_dword v253, v9, s[22:23]
        global_load_dword v253, v9, s[24:25]
        s_mov_b64 exec, -1
        """)
    a(f"""
    s_cmp_lg_u32 s2, 0
    s_cbranch_scc1 L1_noz
    s_memrealtime s[44:45]
    v_mov_b32 v9, 0
    s_waitcnt lgkmcnt(0)
    s_or_b32 s44, s44, 1
    v_mov_b32 v{WOD}, s44
    s_mov_b64 exec, 1
    buffer_store_dword v{WOD}, v9, s[{DBG}:{DBG+3}], 0 offen sc0 sc1
    s_mov_b64 exec, -1
    s_branch L1_noz
    L1_ini:
    s_cmp_lt_u32 s2, 172
    s_cselect_b32 s44, -1, 0
    v_mov_b32 v{WOD}, s44
    v_mov_b32 v{WOD+1}, 0
    v_lshlrev_b32 v9, 2, v2
    s_lshl_b32 s43, s2, {ASH}
    s_add_u32 s43, s43, {WS_ACT}
    s_lshl_b32 s44, s2, {KSH}
    s_add_u32 s44, s44, {WS_KEY}
    s_mov_b64 exec, 0xff
    buffer_store_dword v{WOD}, v9, s[{WS}:{WS+3}], s43 offen sc0 sc1
    s_mov_b64 exec, 3
    buffer_store_dword v{WOD+1}, v9, s[{WS}:{WS+3}], s44 offen sc0 sc1
        s_mov_b64 exec, -1
    L1_noz:
    """)
    if "--cpf" in sys.argv:
        a(f"""
        s_getpc_b64 s[44:45]
        s_and_b32 s44, s44, 0xffffff00
        s_lshr_b32 s43, s2, 3
        s_lshl_b32 s43, s43, 2
        s_add_u32 s43, s43, s{sW}
        s_lshl_b32 s43, s43, 8
        v_lshl_add_u32 v9, v2, 2, s43
        v_min_u32 v9, {CODE_SPAN}, v9
        global_load_dword v252, v9, s[44:45]
        """)
    a(f"""
    s_lshl_b32 s43, s54, 1
    v_xor_b32 v12, s43, v3
    s_lshl_b32 s43, s53, 13
    v_lshlrev_b32 v9, 8, v5
    v_add_u32 v9, s43, v9
    """)
    for j in range(8):
        a(f"v_add_u32 v10, {2*j}, v6\nv_xor_b32 v10, v10, v12\nv_lshl_add_u32 v{XA+j}, v10, 4, v9")
    a(f"""
    v_lshrrev_b32 v9, 2, v3
    v_lshl_add_u32 v10, v6, 3, v9
    v_lshlrev_b32 v10, 7, v10
    v_lshrrev_b32 v11, 1, v9
    v_xor_b32 v11, s54, v11
    v_lshl_add_u32 v10, v11, 6, v10
    v_and_b32 v11, 1, v4
    v_lshl_add_u32 v10, v11, 5, v10
    v_and_b32 v11, 3, v3
    v_lshl_add_u32 v10, v11, 3, v10
    s_lshl_b32 s43, s54, 11
    s_add_u32 s44, s43, 0x10000
    s_sub_u32 s43, {0x10000 + 2048}, s43
    v_add_u32 v{WA}, s44, v10
    v_add_u32 v{WB}, s43, v10
    v_lshl_add_u32 v{KW}, v4, 3, v9
    v_lshlrev_b32 v{KW}, 5, v{KW}
    v_lshl_add_u32 v{KW}, v11, 3, v{KW}
    s_lshl_b32 s43, s46, 10
    s_add_u32 s43, s43, {K1_KV}
    v_add_u32 v{KW}, s43, v{KW}
    s_lshl_b32 s43, s46, 2
    v_add_u32 v{KX}, s43, v4
    v_xor_b32 v{KX}, v{KX}, v3
    v_lshlrev_b32 v{KX}, 4, v{KX}
    v_lshl_add_u32 v{KX}, v3, 8, v{KX}
    s_lshl_b32 s43, s58, 12
    v_add_u32 v{KX}, s43, v{KX}
    v_lshrrev_b32 v64, 3, v5
    v_lshlrev_b32 v64, 13, v64
    v_and_b32 v11, 7, v5
    v_lshl_add_u32 v64, v11, 4, v64
    v_lshl_add_u32 v64, v6, 9, v64
    s_lshl_b32 s60, s{sTG}, 16
    s_lshl_b32 s44, s53, 15
    s_add_u32 s60, s60, s44
    s_lshl_b32 s44, s{sCG}, 10
    s_add_u32 s60, s60, s44
    s_lshl_b32 s44, s54, 8
    s_add_u32 s60, s60, s44
    s_add_u32 s60, s60, {WS_Q}
    s_lshl_b32 s43, s53, 9
    s_add_u32 s43, s43, {K1_PS}
    v_lshl_add_u32 v67, v5, 4, s43
    s_lshl_b32 s43, s54, 3
    v_lshl_add_u32 v65, v6, 2, v67
    v_add_u32 v65, s43, v65
    s_lshl_b32 s43, s46, 2
    s_add_u32 s43, s43, {K1_KC}
    v_add_u32 v94, s43, v{VL}
    s_lshl_b32 s43, s46, 10
    s_add_u32 s43, s43, {K1_KP}
    v_add_u32 v95, s43, v{VL}
    s_lshl_b32 s59, s59, 10
    s_add_u32 s59, s59, {WS_WO}
    s_cmp_ge_u32 s{sW}, 2
    s_cselect_b32 s59, {WS_SIZE}, s59
    s_cmp_ge_u32 s{sCG}, 4
    s_cselect_b64 s[62:63], -1, 0
    v_mov_b32 v{ONES}, 0x3f803f80
    v_mov_b32 v{SX}, 0
    v_mov_b32 v{SXX}, 0
    v_mov_b32 v{KC}, 0
    v_mov_b32 v90, 0
    v_mov_b32 v91, 0
    v_mov_b32 v250, 0
    v_mov_b32 v251, 0
    """)
    def xreads(c):
        kx, kw = KF + 8*(c & 1), KF + 8*(c & 1) + 4
        for u in (0, 2, 4, 6): a(f"ds_read_b128 {vr(XF+32*c+4*u,4)}, v{XA+u} offset:{c*16384}")
        a(f"ds_read_b128 {vr(kx,4)}, v{KX} offset:{c*16384}")
        a(f"ds_read_b64_tr_b16 {vr(kw,2)}, v{KW} offset:{c*4096}\nds_read_b64_tr_b16 {vr(kw+2,2)}, v{KW} offset:{c*4096+128}")
        for u in (1, 3, 5, 7): a(f"ds_read_b128 {vr(XF+32*c+4*u,4)}, v{XA+u} offset:{c*16384}")
    def wread(ks):
        ar = WB if ks & 1 else WA
        off = (ks & ~1) * 2048
        a(f"ds_read_b64_tr_b16 {vr(WF+4*(ks&7),2)}, v{ar} offset:{off}\nds_read_b64_tr_b16 {vr(WF+4*(ks&7)+2,2)}, v{ar} offset:{off + 512}")
    def work(c):
        kx, kw = KF + 8*(c & 1), KF + 8*(c & 1) + 4
        for u in (0, 2, 4, 6):
            a(f"s_waitcnt lgkmcnt({10 - u//2})")
            for q in range(4): a(f"v_dot2c_f32_bf16 v{SX}, v{XF+32*c+4*u+q}, v{ONES}\nv_dot2c_f32_bf16 v{SXX}, v{XF+32*c+4*u+q}, v{XF+32*c+4*u+q}")
        a("s_waitcnt lgkmcnt(4)")
        for q in range(4): a(f"v_dot2c_f32_bf16 v{KC}, v{kw+q}, v{ONES}")
        a(f"{MF16} {vr(KD,4)}, {vr(kw,4)}, {vr(kx,4)}, {'0' if c == 0 else vr(KD,4)}")
        a(f"{MF16} {vr(KD+4,4)}, {vr(kx,4)}, {vr(kw,4)}, {'0' if c == 0 else vr(KD+4,4)}")
    for c in range(4):
        a("s_barrier")
        if c == 0: a("@T3")
        xreads(c)
        work(c)
        if c == WOC:
            a(f"""
            s_waitcnt vmcnt(0)
            v_lshl_or_b32 v{WOD}, v{WOD+1}, 16, v{WOD}
            v_lshl_or_b32 v{WOD+1}, v{WOD+3}, 16, v{WOD+2}
            v_lshl_or_b32 v{WOD+2}, v{WOD+5}, 16, v{WOD+4}
            v_lshl_or_b32 v{WOD+3}, v{WOD+7}, 16, v{WOD+6}
            buffer_store_dwordx4 {vr(WOD,4)}, v{VL}, s[{WS}:{WS+3}], s59 offen sc0 sc1
            """)
    a(f"""
    v_permlane32_swap_b32 v{SX}, v{SXX}
    s_nop 0
    ds_write_b32 v94, v{KC}
    v_add_f32 v{SX}, v{SX}, v{SXX}
    v_mov_b32 v7, {K1_EP}
    ds_write_b32 v65, v{SX}
    s_nop 1
    """)
    for r in range(4): a(f"v_cndmask_b32 v{KD+r}, v{KD+r}, v{KD+4+r}, s[62:63]")
    a(f"ds_write_b128 v95, {vr(KD,4)}\nds_write_b32 v7, v90 offset:8\nv_mov_b32 v{SXX}, 0\ns_waitcnt lgkmcnt(0)\ns_barrier\n@T4\n@S2")
    for ks in range(7): wread(ks)
    a("s_waitcnt lgkmcnt(12)")
    wread(7)
    for g in range(8):
        a(f"s_waitcnt lgkmcnt({8 if g < 7 else 0})")
        for ks in range(4*g, 4*g + 4):
            for q in range(4): a(f"v_dot2c_f32_bf16 v{SXX}, v{WF+4*(ks&7)+q}, v{ONES}")
        if g == 2: a("s_waitcnt vmcnt(0)")
        if g % 2 == 0 and g < 6: a("s_barrier")
        if g == 2: a("ds_read_b128 v[84:87], v67")
        if g == 4: a("@S10\nds_read_b32 v66, v7")
        if g == 2: a("@S6")
        if g == 0: a("@S5")
        if g == 6: a(f"v_readfirstlane_b32 s{sEP}, v66")
        for ks in range(4*g, 4*g + 4):
            a(f"{MF32} {vr(D1,16)}, {vr(WF+4*(ks&7),4)}, {vr(XF+4*ks,4)}, {'0' if ks == 0 else vr(D1,16)}")
            if ks + 8 < 32: wread(ks + 8)
            if ks == 16: rowstat(a, 84, 8, 9)
            if ks == 17: split_ab(a, 8, 88, "m"); a(f"v_mul_f32 v10, {hex(f2u(QSCALE))}, v9")
            if ks == 29: a("s_nop 0"); split_ab(a, SXX, 248, "c")
    a(f"""
    {MF32} {vr(D1,16)}, v[248:251], v[88:91], {vr(D1,16)}
    v_mov_b32 v35, v66
    v_mov_b32 v39, v66
    v_mov_b32 v43, v66
    v_lshrrev_b32 v44, 3, v5
    v_lshlrev_b32 v44, 12, v44
    v_and_b32 v11, 7, v5
    v_lshl_add_u32 v44, v11, 4, v44
    v_lshl_add_u32 v44, v6, 8, v44
    s_sub_u32 s61, s60, {WS_Q}
    s_lshr_b32 s61, s61, 1
    s_add_u32 s61, s61, {WS_QB}
    s_nop 0
    """)
    dst = [32, 33, 34, 36, 40, 41, 42, 37]
    for r in range(8):
        a(f"v_mul_f32 v{D1+2*r}, v10, v{D1+2*r}\nv_mul_f32 v{D1+2*r+1}, v10, v{D1+2*r+1}\nv_cvt_pk_bf16_f32 v{dst[r]}, v{D1+2*r}, v{D1+2*r+1}")
        if r == 2: a(f"buffer_store_dwordx4 v[32:35], v64, s[{WS}:{WS+3}], s60 offen {QSC}")
        if r == 6: a(f"buffer_store_dwordx4 v[40:43], v64, s[{WS}:{WS+3}], s60 offen offset:128 {QSC}")
    a(f"""
    buffer_store_dwordx4 v[36:39], v44, s[{WS}:{WS+3}], s61 offen {QSC}
    @T5
    @S1
    """)
def k1_cold(a):
    DBG = 28
    a(f"""
    L1_tag:
    s_mov_b32 s47, 0
    L1_tagl:
    buffer_load_dword v66, v94, s[{DBG}:{DBG+3}], 0 offen sc1
    s_add_u32 s47, s47, 1
    s_waitcnt vmcnt(0)
    v_readfirstlane_b32 s{sEP}, v66
    s_cmp_gt_u32 s47, 0x40000
    s_cbranch_scc1 L1_tagx
    s_cmp_eq_u32 s{sEP}, 0
    s_cbranch_scc1 L1_tagl
    L1_tagx:
    s_cmp_eq_u32 s46, 0
    s_cbranch_scc1 L1_tagok1
    s_branch L1_tagok0
    """)
KV_BYTES = 64 * TILE
OB = KV_BYTES
RED = OB + 8 * 1040
PART = RED + 1024
CNT = PART + 16384
K2_LDS = CNT + 64
FW = 0
FR = 32768
SMF = "v_smfmac_f32_32x32x32_bf16"
SM16 = "v_smfmac_f32_16x16x64_bf16"
LOG2E = 1.4426950408889634
KMAP = '--nokmap' not in sys.argv
KSLEEP = ''
for _x in sys.argv:
    if _x.startswith('--ksleep='): KSLEEP = 's_sleep ' + _x.split('=')[1]
OSC = 'sc0 sc1' if '--osc' in sys.argv else 'nt' if '--ont' in sys.argv else ''
SLEEP = 's_nop 0'
for _x in sys.argv:
    if _x.startswith('--sleep='): SLEEP = 's_sleep ' + _x.split('=')[1]
def k2(a):
    X, WR_, OUT, WS, FA, FB = 16, 20, 24, 28, 32, 36
    sW, sN, sG = 40, 43, 41
    Q, C, KF, VF, S, O = 8, 12, 28, 36, 52, 84
    IDX, KA, VA, LN16, XO, WRO, M, VA0 = 100, 101, 102, 103, 104, 105, 106, 107
    WO = 108; XRES, WRV, FWR = 236, 240, 244
    BAR_TILE = 10
    X_ = [x for x in sys.argv if x.startswith("--x")]
    a(f"""
    L2_start:
    s_load_dwordx8 s[52:59], s[0:1], 48
    s_load_dwordx2 s[8:9], s[0:1], 80
    v_lshlrev_b32 v{LN16}, 4, v2
    v_and_b32 v5, 31, v2
    v_lshrrev_b32 v6, 5, v2
    s_lshl_b32 s{sG}, s41, 3
    s_add_u32 s{sG}, s{sG}, s42
    s_lshl_b32 s44, s{sG}, 13
    s_lshl_b32 s45, s{sW}, 10
    s_add_u32 s46, s44, s45
    s_add_u32 s47, s45, {WS_KV}
    s_lshl_b32 s50, s{sW}, 16
    s_add_u32 s51, s50, {WS_WO}
    s_and_b32 s48, s{sW}, 4
    s_lshl_b32 s48, s48, 13
    s_add_u32 s50, s51, s48
    """)
    srd(a, WS, 14, WS_SIZE)
    def dma(i):
        return [f"s_add_u32 m0, s45, {i*8192}", f"s_add_u32 s48, s47, {i*8192}", f"buffer_load_dwordx4 v{LN16}, s[{WS}:{WS+3}], s48 offen sc1 lds"]
    a("s_waitcnt lgkmcnt(0)")
    srd(a, X, 4, 2 << 20); srd(a, WR_, 52, 1024); srd(a, OUT, 8, 2 << 20)
    a(f"""
    v_lshlrev_b32 v3, 8, v6
    v_lshl_add_u32 v3, v5, 4, v3
    v_and_b32 v4, 27, v5
    v_cmp_eq_u32 vcc, 16, v4
    v_mov_b32 v4, 528
    v_mov_b32 v7, 512
    v_cndmask_b32 v4, v4, v7, vcc
    v_cmp_gt_u32 vcc, 16, v5
    v_mov_b32 v{KA}, v{LN16}
    v_mov_b32 v{IDX}, 0xdddddddd
    v_cndmask_b32 v3, v4, v3, vcc
    v_add_u32 v{VA0}, 1024, v3
    v_mov_b32 v{VA}, v{VA0}
    v_and_b32 v3, 12, v2
    v_lshlrev_b32 v3, 2, v3
    v_lshl_add_u32 v3, v6, 6, v3
    s_lshl_b32 s49, s{sW}, 7
    v_add_u32 v{WRO}, s49, v3
    v_and_b32 v4, 16, v2
    v_lshlrev_b32 v4, 8, v4
    v_and_b32 v3, 15, v2
    v_lshl_add_u32 v0, v3, 2, v4
    v_lshl_add_u32 v0, v6, 6, v0
    v_add_u32 v0, s49, v0
    v_and_b32 v3, 3, v2
    v_lshl_add_u32 v4, v3, 10, v4
    v_add_u32 v{XO}, v4, v{WRO}
    s_and_b32 s48, s2, 7
    s_lshr_b32 s49, s2, 3
    s_mul_i32 s64, s48, 22
    s_add_u32 s64, s64, s49
    s_lshl_b32 s48, s48, 3
    s_add_u32 s48, s48, s49
    s_sub_u32 s61, s48, 22
    s_and_b32 s61, s61, 63
    s_lshl_b32 s61, s61, 4
    s_min_u32 s48, s64, 171
    s_lshl_b32 s48, s48, 4
    s_mul_i32 s49, s{sW}, {64*2752}
    s_add_u32 s48, s48, s49
    s_lshl_b32 s49, s{sW}, 16
    s_add_u32 s49, s49, s61
    s_add_u32 s66, s49, {512*1024}
    s_add_u32 s67, s49, {1024*1024}
    s_movk_i32 s60, 2752
    s_cmp_ge_u32 s2, 176
    s_cselect_b32 s65, s49, s48
    s_cselect_b32 s66, s66, s48
    s_cselect_b32 s67, s67, 0x200000
    s_cselect_b32 s60, 0x400, s60
    s_cselect_b32 s54, s58, s54
    s_cselect_b32 s55, s59, s55
    s_cselect_b32 s56, s58, s56
    s_cselect_b32 s57, s59, s57
    v_mul_u32_u24 v1, s60, v2
    """)
    srd(a, FA, 54, 512*2752); srd(a, FB, 56, 512*2752)
    a(f"""
    s_mov_b32 s60, {16*8192}
    s_cmp_lt_u32 s{sW}, 4
    s_cselect_b32 s60, s60, {WS_SIZE}
    v_mov_b32 v3, {CNT}
    """)
    for r in range(16): a(f"v_mov_b32 v{O+r}, 0")
    a(f"""
    ds_write_b32 v3, v{O}
    ds_write_b128 v3, {vr(O,4)} offset:16
    s_lshr_b32 s12, s46, 1
    s_add_u32 s12, s12, {WS_QB}
    s_add_u32 s46, s46, {WS_Q}
    v_lshrrev_b32 v7, 4, v2
    v_lshlrev_b32 v7, 7, v7
    v_and_b32 v4, 7, v2
    v_lshl_add_u32 v7, v4, 4, v7
    s_cmp_lt_u32 s{sW}, 4
    s_cbranch_scc1 L2_noflag
    s_sub_u32 s13, s{sW}, 4
    """)
    if "--fw1" not in sys.argv:
        a(f"""
        s_lshl_b32 s48, s13, {FSH + 6}
        s_add_u32 s48, s48, {WS_FLG}
        v_lshlrev_b32 v3, {FSH}, v2
        s_mov_b32 s49, 0
        L2_fpoll:
        buffer_load_dword v4, v3, s[{WS}:{WS+3}], s48 offen sc1
        s_add_u32 s49, s49, 1
        s_waitcnt vmcnt(0)
        v_cmp_ne_u32 vcc, s{sEP}, v4
        s_cmp_gt_u32 s49, 0x40000
        s_cbranch_scc1 L2_fgot
        s_and_b64 exec, exec, vcc
        s_cbranch_scc1 L2_fpoll
        L2_fgot:
        s_mov_b64 exec, 1
        v_mov_b32 v3, {K1_EP + 8}
        v_mov_b32 v4, 1
        ds_add_u32 v3, v4
        """)
    else:
        a(f"""
        s_cmp_lg_u32 s{sW}, 5
        s_cbranch_scc1 L2_fwait
        s_mov_b32 s48, {WS_FLG}
        v_lshlrev_b32 v3, {KSH + 2}, v2
        s_mov_b32 s49, 0
        L2_fpoll:
        """)
        for q in range(4): a(f"buffer_load_dword v{S+q}, v3, s[{WS}:{WS+3}], s48 offen offset:{q << KSH} sc1")
        a(f"""
        s_add_u32 s49, s49, 1
        s_waitcnt vmcnt(0)
        v_xor_b32 v{S}, s{sEP}, v{S}
        v_xor_b32 v{S+1}, s{sEP}, v{S+1}
        v_xor_b32 v{S+2}, s{sEP}, v{S+2}
        v_xor_b32 v{S+3}, s{sEP}, v{S+3}
        v_or3_b32 v4, v{S}, v{S+1}, v{S+2}
        v_or_b32 v4, v4, v{S+3}
        v_cmp_ne_u32 vcc, 0, v4
        s_cmp_gt_u32 s49, 0x40000
        s_cbranch_scc1 L2_fgot
        s_and_b64 exec, exec, vcc
        s_cbranch_scc1 L2_fpoll
        L2_fgot:
        s_mov_b64 exec, 1
        v_mov_b32 v3, {K1_EP + 8}
        v_mov_b32 v4, 4
        ds_write_b32 v3, v4
        L2_fwait:
        s_mov_b64 exec, 1
        v_mov_b32 v3, {K1_EP + 8}
        """)
    a(f"""
    L2_fspin:
    ds_read_b32 v4, v3
    s_waitcnt lgkmcnt(0)
    v_readfirstlane_b32 s49, v4
    s_cmp_lt_u32 s49, 4
    s_cbranch_scc1 L2_fspin
    s_mov_b64 exec, -1
    @S2
    s_lshl_b32 s13, s13, 10
    s_add_u32 s62, s13, {WS_KV}
    """)
    for i in range(6):
        a(f"s_add_u32 m0, s13, {i*4096}\ns_add_u32 s48, s62, {i*4096}\nbuffer_load_dwordx4 v{LN16}, s[{WS}:{WS+3}], s48 offen sc1 lds")
    a(f"""
    L2_noflag:
    {'' if '--nobarA' in sys.argv else 's_barrier'}
    @T6
    s_mov_b32 s49, 0
    L2_qpoll:
    buffer_load_dwordx4 {vr(Q,4)}, v{LN16}, s[{WS}:{WS+3}], s46 offen sc1
    buffer_load_dwordx4 {vr(S,4)}, v7, s[{WS}:{WS+3}], s12 offen sc1
    s_add_u32 s49, s49, 1
    s_waitcnt vmcnt(0)
    v_cmp_ne_u32 vcc, s{sEP}, v{Q+3}
    v_cmp_ne_u32 s[62:63], s{sEP}, v{S+3}
    s_cmp_gt_u32 s49, 0x40000
    s_cbranch_scc1 L2_qgot
    s_or_b64 exec, vcc, s[62:63]
    s_cbranch_scc1 L2_qpoll
    L2_qgot:
    s_mov_b64 exec, -1
    s_mov_b32 s62, 0xff00ff00
    s_mov_b32 s63, s62
    v_cndmask_b32 v{Q+3}, v{S}, v{S+1}, s[62:63]
    s_waitcnt lgkmcnt(0)
    s_barrier
    @S3
    ds_read_b128 {vr(KF,4)}, v{KA}
    ds_read_b128 {vr(KF+4,4)}, v{KA} offset:{TILE}
    ds_read_b128 {vr(VF,4)}, v{VA}
    ds_read_b128 {vr(VF+4,4)}, v{VA} offset:544
    s_waitcnt lgkmcnt(3)
    {MF32} {vr(S,16)}, {vr(KF,4)}, {vr(Q,4)}, 0
    s_waitcnt lgkmcnt(2)
    {MF32} {vr(S+16,16)}, {vr(KF+4,4)}, {vr(Q,4)}, 0
    s_nop 9
    v_max3_f32 v{M}, v{S}, v{S+1}, v{S+2}
    """)
    for r in range(3, 31, 2): a(f"v_max3_f32 v{M}, v{S+r}, v{S+r+1}, v{M}")
    a(f"""
    v_max_f32 v{M}, v{S+31}, v{M}
    v_mov_b32 v3, v{M}
    s_nop 1
    v_permlane32_swap_b32 v{M}, v3
    v_max_f32 v{M}, v{M}, v3
    v_sub_f32 v{C}, {hex(f2u(-SHIFT))}, v{M}
    """)
    for r in range(1, 16): a(f"v_mov_b32 v{C+r}, v{C}")
    a(f"""
    @S4
    @S13
    @T1
    s_nop 1
    {MF32} {vr(S,16)}, {vr(KF,4)}, {vr(Q,4)}, {vr(C,16)}
    s_waitcnt lgkmcnt(0)
    s_nop 10
    """)
    base = 0
    nwo = 0
    NPT = 2 if '--npt2' in sys.argv else 3
    queue = [dma(i) for i in range(3, 17)]
    queue[-1][1] = "s_add_u32 s48, s47, s60"
    ffn = [[f"buffer_load_dwordx4 {vr(FWR+4*i,4)}, v1, s[{FA if i == 0 else FB}:{(FA if i == 0 else FB)+3}], s{65+i} offen"] for i in range(3)]
    wol = [(["s_add_u32 s50, s50, 4096"] if (f and f % 4 == 0) else []) + [f"buffer_load_dwordx4 {vr(WO + 4*f, 4)}, v{LN16}, s[{WS}:{WS+3}], s50 offen offset:{(f & 3)*1024} sc1"] for f in range(32)]
    xw = [[f"buffer_load_dword v{XRES+r}, v0, s[{X}:{X+3}], s44 offen offset:{r*1024}"] for r in range(4)] + [[f"buffer_load_dwordx4 {vr(WRV,4)}, v{WRO}, s[{WR_}:{WR_+3}], 0 offen"]]
    SCH = [x.split("=")[1] for x in sys.argv if x.startswith("--sch=")]
    SCH = SCH[0] if SCH else "E"
    if SCH == "A":
        queue += wol + xw + ffn
        cnt = lambda t: 2 if t < 7 or 10 <= t <= 26 else 1 if t in (27, 29, 31) else 0
    elif SCH == "B":
        queue += wol + xw + ffn
        cnt = lambda t: 2 if t <= 23 else 1
    elif SCH == "C":
        queue += xw + wol[:4] + ffn[:1] + wol[4:5] + ffn[1:2] + wol[5:6] + ffn[2:] + wol[6:]
        cnt = lambda t: 2
    elif SCH == "D":
        queue += wol + xw + ffn
        cnt = lambda t: 2 if t <= 23 else 1 if t in (58, 60, 62) else 0
    elif SCH == "E":
        queue += wol + xw + ffn
        cnt = lambda t: 2 if t <= 24 else 1 if t in (25, 52, 56, 60) else 0
    elif SCH == "F":
        queue += wol + xw + ffn
        cnt = lambda t: 2 if t <= 23 else 1 if t in (61, 62, 63) else 0
    nissued = 0
    if '--noprio' not in sys.argv: a('s_setprio 1')
    if '--vmask' in sys.argv: a('s_mov_b32 s100, 0xffff\ns_mov_b32 s101, 0xffff' if DIAG else 's_mov_b32 s70, 0xffff\ns_mov_b32 s71, 0xffff')
    for t in range(64):
        cur, nxt = t & 1, (t + 1) & 1
        Sc, Sn = S + 16*cur, S + 16*nxt
        e = [f"v_exp_f32 v{Sc+i}, v{Sc+i}" for i in range(16)]
        n_ = cnt(t); side = sum(queue[:n_], []); queue = queue[n_:]
        if t == BAR_TILE: a(f"s_waitcnt vmcnt({nissued - 14})\ns_barrier")
        nissued += sum(1 for x in side if x.startswith("buffer"))
        if (t + 2 - base) * TILE + TILE > 65535:
            a(f"v_add_u32 v{KA}, {(t - base)*TILE}, v{KA}\nv_add_u32 v{VA}, {(t - base)*TILE}, v{VA}")
            base = t
        after = {i: [] for i in range(16)}
        side = [x for x in side if x]
        grp, curg = [], []
        for x in side:
            curg.append(x)
            if x.startswith("buffer"): grp.append(curg); curg = []
        if t > 0: after[1].append(f"{SMF} {vr(O,16)}, {vr(VF+8*nxt+4,4)}, {vr(Sn+8,8)}, v{IDX}")
        va = f"ds_read_b128 {vr(VF+8*nxt,4)}, v{VA} offset:{(t+1-base)*TILE}"
        vb = f"ds_read_b128 {vr(VF+8*nxt+4,4)}, v{VA} offset:{(t+1-base)*TILE+544}"
        VM = "--vmask" in sys.argv and t >= 1
        VQ = "--vq1" in sys.argv
        if t < 63:
            if VM: after[1] += ["s_mov_b64 exec, s[70:71]" if not DIAG else "s_mov_b64 exec, s[100:101]", va, vb, "s_mov_b64 exec, -1"]
            elif VQ: after[1] += [va, vb]
            else: after[1].append(va)
            after[5].append(f"{MF32} {vr(Sn,16)}, {vr(KF+4*nxt,4)}, {vr(Q,4)}, {vr(C,16)}")
        if t < 62: after[5].append(f"ds_read_b128 {vr(KF+4*cur,4)}, v{KA} offset:{(t+2-base)*TILE}")
        after[11].append(f"{SMF} {vr(O,16)}, {vr(VF+8*cur,4)}, {vr(Sc,8)}, v{IDX}")
        after[11].append("s_waitcnt lgkmcnt(0)")
        if t < 63 and not VM and not VQ: after[11].append(vb)
        for g, slot in zip(grp, (1, 5, 11) if len(grp) == 3 else (5, 11)): after[slot] += g
        assert len(grp) <= 3
        for i in range(16):
            a(e[i])
            for x in after[i]: a(x)
    a(f"""
    @S8
    @S14
    s_nop 1
    {SMF} {vr(O,16)}, {vr(VF+12,4)}, {vr(S+24,8)}, v{IDX}
    s_mov_b32 s48, {hex(f2u(2.0**110))}
    s_mov_b32 s12, {hex(f2u(2.0**-104))}
    v_and_b32 v4, 7, v5
    v_mul_u32_u24 v4, 1040, v4
    v_lshrrev_b32 v7, 3, v5
    v_lshl_add_u32 v4, v7, 5, v4
    v_lshl_add_u32 v4, v6, 3, v4
    s_lshl_b32 s49, s{sW}, 7
    s_add_u32 s49, s49, {OB}
    v_add_u32 v4, s49, v4
    v_and_b32 v1, 7, v2
    v_mul_u32_u24 v0, 1040, v1
    v_lshrrev_b32 v7, 4, v2
    v_mul_f32 v3, 0, v{O}
    """)
    for r in range(1, 8): a(f"v_fma_f32 v3, v{O+r}, 0, v3")
    a(f"""
    v_add_f32 v3, v3, v{O+8}
    v_cmp_ngt_f32 vcc, s48, v3
    v_cmp_gt_f32 s[62:63], s12, v3
    v_rcp_f32 v3, v{O+8}
    s_or_b64 vcc, vcc, s[62:63]
    s_cbranch_scc1 L2_slow
    L2_epi:
    """)
    for r in range(8): a(f"v_mul_f32 v{O+r}, v3, v{O+r}")
    for r in range(4): a(f"v_cvt_pk_bf16_f32 v{O+r}, v{O+2*r}, v{O+2*r+1}")
    BA, PA = 101, 102
    a(f"""
    ds_write_b64 v4, {vr(O,2)}
    ds_write_b64 v4, {vr(O+2,2)} offset:16
    v_lshl_add_u32 v{BA}, v7, 5, v0
    v_and_b32 v3, 8, v2
    v_lshl_add_u32 v{BA}, v3, 1, v{BA}
    v_add_u32 v{BA}, {OB}, v{BA}
    v_cmp_ne_u32 vcc, 0, v3
    v_mov_b32 v{IDX}, 0x4444
    v_mov_b32 v3, 0xeeee
    s_and_b32 s49, s{sW}, 3
    s_lshl_b32 s49, s49, 12
    s_add_u32 s49, s49, {PART}
    v_add_u32 v{PA}, s49, v{LN16}
    v_cndmask_b32 v{IDX}, v{IDX}, v3, vcc
    s_waitcnt vmcnt(3)
    s_cmp_lt_u32 s{sW}, 4
    {'' if '--xnoold' in X_ else 's_cbranch_scc1 L2_old'}
    L2_join:
    @S7
    """)
    if "--tsync" in sys.argv:
        a(f"""
        s_mul_i32 s90, s2, 37
        s_and_b32 s90, s90, 63
        s_mul_i32 s90, s90, 80
        s_lshr_b32 s90, s90, 6
        s_add_u32 s90, s90, 4000
        s_mov_b32 s91, 0
        LT_spin:
        s_memrealtime s[92:93]
        s_waitcnt lgkmcnt(0)
        s_sub_u32 s92, s92, s{sEP}
        s_add_u32 s91, s91, 1
        s_cmp_gt_u32 s91, 100000
        s_cbranch_scc1 LT_done
        s_cmp_lt_u32 s92, s90
        s_cbranch_scc1 LT_spin
        LT_done:
        """)
    a(f"""
    """)
    HF, T, WF8, TOK = 60, 68, 52, 106
    ACC = O
    BF = [Q, 28, 32, 36]
    for j in range(4):
        a(f"v_lshlrev_b32 v{HF+2*j}, 16, v{XRES+j}\nv_and_b32 v{HF+2*j+1}, 0xffff0000, v{XRES+j}")
        a(f"v_lshlrev_b32 v{WF8+2*j}, 16, v{WRV+j}\nv_and_b32 v{WF8+2*j+1}, 0xffff0000, v{WRV+j}")
    a(f"v_add_f32 v{T+3}, v{WF8}, v{WF8+1}")
    for j in range(2, 8): a(f"v_add_f32 v{T+3}, v{T+3}, v{WF8+j}")
    a(f"""
    v_mov_b32 v7, 0x3f803f80
    v_lshrrev_b32 v{TOK}, 10, v{XO}
    v_lshlrev_b32 v4, 5, v{TOK}
    v_add_u32 v4, {RED}, v4
    v_lshrrev_b32 v3, 5, v2
    v_lshl_add_u32 v3, v3, 9, v4
    s_lshl_b32 s49, s{sW}, 2
    v_add_u32 v3, s49, v3
    v_add_u32 v0, s45, v{LN16}
    s_add_u32 s49, s44, {WS_H}
    s_cmp_ge_u32 s{sW}, 4
    s_cselect_b64 s[62:63], -1, 0
    s_waitcnt lgkmcnt(0)
    s_barrier
    @S9
    @T2
    s_mov_b64 exec, s[62:63]
    """)
    for i in range(4): a(f"ds_read_b128 {vr(ACC+4*i,4)}, v{PA} offset:{1024*i}")
    a("s_mov_b64 exec, -1")
    for s_ in range(4): a(f"ds_read_b128 {vr(BF[s_],4)}, v{BA} offset:{(s_+4)*128}")
    for s_ in range(4):
        a(f"s_waitcnt lgkmcnt({3 - s_})")
        for i in range(4):
            a(f"{SM16} {vr(ACC+4*i,4)}, {vr(BF[s_],4)}, {vr(WO+32*s_+8*i,8)}, v{IDX}")
    a("s_waitcnt vmcnt(0)")
    for i in range(3): a(f"ds_write_b128 v0, {vr(FWR+4*i,4)} offset:{FW + i*8192}")
    A8, HB = 40, 48
    a("s_mov_b32 vcc_lo, 0x55555555\ns_mov_b32 vcc_hi, 0x55555555\ns_nop 1")
    for p in range(2):
        for r in range(4): a(f"v_permlane32_swap_b32 v{ACC+8*p+r}, v{ACC+8*p+4+r}")
    for r in range(4):
        for p in range(2): a(f"v_add_f32 v{HF+2*r+p}, v{HF+2*r+p}, v{ACC+8*p+r}")
    for r in range(4):
        for p in range(2): a(f"v_add_f32 v{HF+2*r+p}, v{HF+2*r+p}, v{ACC+8*p+4+r}")
    for r in range(4): a(f"v_cvt_pk_bf16_f32 v{A8+r}, v{HF+2*r}, v{HF+2*r+1}")
    X1, X2 = "quad_perm:[1,0,3,2] row_mask:0xf bank_mask:0xf", "quad_perm:[2,3,0,1] row_mask:0xf bank_mask:0xf"
    N = A8 + 4
    a(f"""
    s_nop 0
    v_cndmask_b32_dpp v{N}, v{A8+1}, v{A8}, vcc {X1}
    v_cndmask_b32_dpp v{N+2}, v{A8+3}, v{A8+2}, vcc {X1}
    s_not_b64 vcc, vcc
    v_cndmask_b32_dpp v{N+1}, v{A8}, v{A8+1}, vcc {X1}
    v_cndmask_b32_dpp v{N+3}, v{A8+2}, v{A8+3}, vcc {X1}
    s_mov_b32 vcc_lo, 0x33333333
    s_mov_b32 vcc_hi, 0x33333333
    v_cndmask_b32_dpp v{HB}, v{N+2}, v{N}, vcc {X2}
    v_cndmask_b32_dpp v{HB+1}, v{N+3}, v{N+1}, vcc {X2}
    s_not_b64 vcc, vcc
    v_cndmask_b32_dpp v{HB+2}, v{N}, v{N+2}, vcc {X2}
    v_cndmask_b32_dpp v{HB+3}, v{N+1}, v{N+3}, vcc {X2}
    buffer_store_dwordx4 {vr(HB,4)}, v{XO}, s[{WS}:{WS+3}], s49 offen sc0 sc1
    """)
    for j in range(4): a(f"v_lshlrev_b32 v{HF+2*j}, 16, v{HB+j}\nv_and_b32 v{HF+2*j+1}, 0xffff0000, v{HB+j}")
    a(f"v_add_f32 v{T}, v{HF}, v{HF+1}\nv_mul_f32 v{T+1}, v{HF}, v{HF}\nv_mul_f32 v{T+2}, v{HF}, v{WF8}")
    for j in range(1, 8):
        if j > 1: a(f"v_add_f32 v{T}, v{T}, v{HF+j}")
        a(f"v_fmac_f32 v{T+1}, v{HF+j}, v{HF+j}\nv_fmac_f32 v{T+2}, v{HF+j}, v{WF8+j}")
    a(f"""
    s_nop 0
    v_permlane32_swap_b32 v{T}, v{T+1}
    v_permlane32_swap_b32 v{T+2}, v{T+3}
    v_add_f32 v{T}, v{T}, v{T+1}
    v_add_f32 v{T+2}, v{T+2}, v{T+3}
    s_nop 0
    v_add_f32_dpp v{T}, v{T}, v{T} row_ror:8 row_mask:0xf bank_mask:0xf
    v_add_f32_dpp v{T+2}, v{T+2}, v{T+2} row_ror:8 row_mask:0xf bank_mask:0xf
    s_nop 0
    v_add_f32_dpp v{T}, v{T}, v{T} row_ror:4 row_mask:0xf bank_mask:0xf
    v_add_f32_dpp v{T+2}, v{T+2}, v{T+2} row_ror:4 row_mask:0xf bank_mask:0xf
    ds_write_b32 v3, v{T}
    ds_write_b32 v3, v{T+2} offset:256
    """)
    KR = 128
    def kloads():
        if KMAP:
            for q in range(4): a(f"buffer_load_dwordx2 {vr(KR+2*q,2)}, v8, s[{WS}:{WS+3}], s{56+q} offen sc1")
        else:
            for q in range(4): a(f"buffer_load_dwordx2 {vr(KR+2*q,2)}, v8, s[{WS}:{WS+3}], s48 offen offset:{q << KSH} sc1")
    a(f"""
    s_waitcnt lgkmcnt(0)
    s_barrier
    @S11
    """)
    R_ = 108
    for q in (0, 2, 1, 3):
        a(f"ds_read_b128 {vr(R_+8*q,4)}, v4 offset:{q*256}\nds_read_b128 {vr(R_+8*q+4,4)}, v4 offset:{q*256+16}")
    def sum8(b):
        a(f"""
        v_add_f32 v{b}, v{b}, v{b+1}
        v_add_f32 v{b+2}, v{b+2}, v{b+3}
        v_add_f32 v{b+4}, v{b+4}, v{b+5}
        v_add_f32 v{b+6}, v{b+6}, v{b+7}
        v_add_f32 v{b}, v{b}, v{b+2}
        v_add_f32 v{b+4}, v{b+4}, v{b+6}
        v_add_f32 v{b}, v{b}, v{b+4}
        """)
    s1, s3, s2, s4 = R_, R_+8, R_+16, R_+24
    ST = 76
    OV = 80
    a("s_waitcnt lgkmcnt(4)")
    sum8(s1); sum8(s2)
    a(f"""
    v_mul_f32 v{ST}, {hex(f2u(1.0/512))}, v{s1}
    v_mul_f32 v{s2}, {hex(f2u(1.0/512))}, v{s2}
    v_fma_f32 v{s2}, -v{ST}, v{ST}, v{s2}
    v_max_f32 v{s2}, 0, v{s2}
    v_add_f32 v{s2}, {hex(f2u(EPS))}, v{s2}
    v_rsq_f32 v{ST+1}, v{s2}
    s_cmp_lg_u32 s{sW}, 0
    s_cbranch_scc1 L2_nokey
    s_waitcnt lgkmcnt(0)
    """)
    sum8(s3); sum8(s4)
    AF, BFR, STT, D, D2 = 140, 12, 204, 208, 212
    breg = lambda q: 12 + 4*q if q < 7 else 216 + 4*(q - 7)
    a(f"""
    v_fma_f32 v{s3}, -v{ST}, v{s4}, v{s3}
    s_lshl_b32 s48, s{sG}, 3
    v_add_u32 v4, s48, v{TOK}
    v_mul_f32 v{ST+2}, v{ST+1}, v{s3}
    v_mov_b32 v{ST+3}, s{sEP}
    v_lshlrev_b32 v0, 4, v4
    s_mov_b32 s48, {WS_ST}
    s_mov_b64 exec, 0x000f000f
    buffer_store_dwordx4 {vr(ST,4)}, v0, s[{WS}:{WS+3}], s48 offen sc0 sc1
    s_mov_b64 exec, -1
    v_ashrrev_i32 v3, 31, v{ST+2}
    v_or_b32 v3, 0x80000000, v3
    v_xor_b32 v3, v3, v{ST+2}
    v_and_b32 v3, 0xfffff800, v3
    v_sub_u32 v4, 2047, v4
    v_or_b32 v4, v3, v4
    s_lshl_b32 s48, s2, {KSH}
    s_add_u32 s48, s48, {WS_KEY}
    v_mov_b32_dpp v6, v4 quad_perm:[1,0,3,2] row_mask:0xf bank_mask:0xf
    v_mov_b32 v0, 0
    v_min_u32 v5, v4, v6
    v_max_u32 v4, v4, v6
    """)
    a(f"""
    s_nop 0
    v_mov_b32_dpp v3, v5 quad_perm:[2,3,0,1] row_mask:0xf bank_mask:0xf
    v_mov_b32_dpp v6, v4 quad_perm:[2,3,0,1] row_mask:0xf bank_mask:0xf
    v_max_u32 v5, v5, v3
    v_med3_u32 v5, v4, v5, v6
    v_max_u32 v4, v4, v6
    v_mov_b32 v3, v5
    v_mov_b32 v6, v4
    s_nop 0
    v_permlane16_swap_b32 v5, v3
    v_permlane16_swap_b32 v4, v6
    v_max_u32 v5, v5, v3
    v_med3_u32 v5, v4, v5, v6
    v_max_u32 v4, v4, v6
    """)
    a(f"""
    s_waitcnt vmcnt(1)
    s_barrier
    s_mov_b64 exec, 1
    buffer_store_dwordx2 v[4:5], v0, s[{WS}:{WS+3}], s48 offen sc0 sc1
    s_mov_b64 exec, -1
    @S5
    """)
    def outval():
        a(f"v_add_f32 v3, 1.0, v{ST+1}\nv_mul_f32 v6, v{ST}, v{ST+1}")
        for j in range(8): a(f"v_fma_f32 v{A8+j}, v{HF+j}, v3, -v6")
        for j in range(4): a(f"v_cvt_pk_bf16_f32 v{OV+j}, v{A8+2*j}, v{A8+2*j+1}")
    a(f"v_lshlrev_b32 v8, {KSH + (0 if KMAP else 2)}, v2\ns_mov_b32 s48, {WS_KEY}")
    if KMAP:
        for q in range(4): a(f"s_mov_b32 s{56+q}, {WS_KEY + (64*q << KSH)}")
    if "--knoack" in sys.argv: kloads()
    ROWS = 40960
    a(f"""
    v_and_b32 v9, 15, v2
    v_lshrrev_b32 v11, 4, v2
    v_lshrrev_b32 v10, 2, v9
    v_lshl_add_u32 v10, v11, 7, v10
    v_lshlrev_b32 v10, 4, v10
    v_and_b32 v0, 1, v9
    v_lshl_add_u32 v10, v0, 3, v10
    v_and_b32 v3, 2, v9
    v_lshl_add_u32 v10, v3, 12, v10
    """)
    for q in range(7): a(f"ds_read_b64_tr_b16 {vr(AF+4*q,2)}, v10 offset:{FW + q*128}\nds_read_b64_tr_b16 {vr(AF+4*q+2,2)}, v10 offset:{FW + q*128 + 64}")
    outval()
    a("s_waitcnt lgkmcnt(0)")
    for q in range(7, 14): a(f"ds_read_b64_tr_b16 {vr(AF+4*q,2)}, v10 offset:{FW + q*128}\nds_read_b64_tr_b16 {vr(AF+4*q+2,2)}, v10 offset:{FW + q*128 + 64}")
    a(f"v_mov_b32 v252, v7\nv_mov_b32 v253, v7\nv_mov_b32 v254, v7\nv_mov_b32 v255, v7\ns_waitcnt lgkmcnt(4)")
    for q in range(14, 16): a(f"ds_read_b64_tr_b16 {vr(AF+4*q,2)}, v10 offset:{FW + q*128}\nds_read_b64_tr_b16 {vr(AF+4*q+2,2)}, v10 offset:{FW + q*128 + 64}")
    if "--knoack" not in sys.argv: a("s_waitcnt vmcnt(0)"); kloads()
    a(f"""
    v_cmp_eq_u32 s[10:11], 1, v0
    v_mul_u32_u24 v10, 1040, v0
    v_lshl_add_u32 v10, v11, 8, v10
    v_lshlrev_b32 v{R_}, 4, v0
    v_lshl_add_u32 v{R_}, v11, 3, v{R_}
    s_mov_b32 s49, 0
    s_mov_b32 s46, 0
    s_mov_b32 s47, 0
    s_mov_b32 s51, {WS_ST}
    s_waitcnt lgkmcnt(0)
    """)
    for q in range(16): a(f"{MF16} {vr(D2,4)}, {vr(AF+4*q,4)}, v[252:255], {'0' if q == 0 else vr(D2,4)}")
    a(f"""
    L2_kpoll:
    s_waitcnt vmcnt(0)
    v_min_u32 v0, v{KR}, v{KR+2}
    v_min3_u32 v0, v{KR+4}, v{KR+6}, v0
    v_cmp_eq_u32 s[62:63], 0, v0
    s_add_u32 s49, s49, 1
    s_cmp_gt_u32 s49, 0x40000
    s_cselect_b64 s[62:63], 0, s[62:63]
    v_max_u32 v4, v{KR}, v{KR+2}
    v_min_u32 v5, v{KR}, v{KR+2}
    v_max3_u32 v5, v5, v{KR+1}, v{KR+3}
    v_med3_u32 v5, v4, v5, v{KR+4}
    v_max_u32 v4, v4, v{KR+4}
    v_med3_u32 v5, v4, v5, v{KR+6}
    v_max_u32 v4, v4, v{KR+6}
    v_max3_u32 v5, v5, v{KR+5}, v{KR+7}
    s_mov_b64 exec, s[62:63]
    s_cbranch_execz L2_klast
    """)
    kloads()
    a("L2_klast:\ns_mov_b64 exec, -1")
    for dpp in ("quad_perm:[1,0,3,2]", "quad_perm:[2,3,0,1]", "row_half_mirror", "row_mirror"):
        a(f"""
        v_mov_b32_dpp v3, v5 {dpp} row_mask:0xf bank_mask:0xf
        v_mov_b32_dpp v6, v4 {dpp} row_mask:0xf bank_mask:0xf
        v_max_u32 v5, v5, v3
        v_med3_u32 v5, v4, v5, v6
        v_max_u32 v4, v4, v6
        s_nop 0
        """)
    for sw in ("v_permlane16_swap_b32", "v_permlane32_swap_b32"):
        a(f"""
        v_mov_b32 v3, v5
        v_mov_b32 v6, v4
        s_nop 0
        {sw} v5, v3
        {sw} v4, v6
        v_max_u32 v5, v5, v3
        v_med3_u32 v5, v4, v5, v6
        v_max_u32 v4, v4, v6
        """)
    a(f"""
    v_readfirstlane_b32 s53, v5
    v_readfirstlane_b32 s52, v4
    v_cndmask_b32 v3, v4, v5, s[10:11]
    v_not_b32 v3, v3
    s_cmp_eq_u64 s[52:53], s[46:47]
    s_cbranch_scc1 L2_ksame
    s_mov_b64 s[46:47], s[52:53]
    s_cmp_ge_u32 s2, 176
    s_cbranch_scc1 L2_ksame
    s_andn2_b32 s54, 0x7ff, s52
    s_andn2_b32 s55, 0x7ff, s53
    s_lshl_b32 s54, s54, 10
    s_lshl_b32 s55, s55, 10
    s_add_u32 s54, s54, {WS_H}
    s_add_u32 s55, s55, {WS_H}
    s_mov_b32 m0, {ROWS}
    v_and_b32 v3, 0x7ff, v3
    buffer_load_dwordx4 v{LN16}, s[{WS}:{WS+3}], s54 offen sc1 lds
    s_mov_b32 m0, {ROWS + 1040}
    v_lshlrev_b32 v9, 4, v3
    buffer_load_dwordx4 v{LN16}, s[{WS}:{WS+3}], s55 offen sc1 lds
    buffer_load_dwordx4 {vr(STT,4)}, v9, s[{WS}:{WS+3}], s51 offen sc1
    L2_ksame:
    s_cmp_lg_u64 s[62:63], 0
    s_cbranch_scc1 L2_kpoll
    @S6
    v_mov_b32 v0, {CNT + 16}
    ds_write_b64 v0, v[4:5]
    s_cmp_ge_u32 s2, 176
    s_cbranch_scc1 L2_bc
    s_cmp_ge_u32 s64, 172
    s_cselect_b32 s48, 0x100000, s64
    s_lshl_b32 s48, s48, {ASH}
    s_add_u32 s48, s48, {WS_ACT}
    s_waitcnt vmcnt(1)
    """)
    for q in range(12): a(f"ds_read_b128 {vr(breg(q),4)}, v10 offset:{ROWS + q*16}")
    for q in range(16):
        a(f"s_waitcnt lgkmcnt({min(11, 15 - q)})")
        a(f"{MF16} {vr(D,4)}, {vr(AF+4*q,4)}, {vr(breg(q),4)}, {'0' if q == 0 else vr(D,4)}")
        if q < 4: a(f"ds_read_b128 {vr(breg(q+12),4)}, v10 offset:{ROWS + (q+12)*16}")
    E = R_ + 8
    a(f"""
    L2_stw:
    s_waitcnt vmcnt(0)
    v_cmp_ne_u32 vcc, s{sEP}, v{STT+3}
    s_nop 2
    s_cbranch_vccnz L2_stre
    L2_stok:
    s_nop 1
    """)
    for r in range(4): a(f"v_fma_f32 v{D+r}, -v{STT}, v{D2+r}, v{D+r}")
    for r in range(4): a(f"v_mul_f32 v{D+r}, v{D+r}, v{STT+1}")
    for r in range(4): a(f"v_mov_b32 v{E+4+r}, v{D+r}")
    for r in range(4): a(f"v_mul_f32 v{E+r}, {hex(f2u(-LOG2E))}, v{D+r}")
    for r in range(4): a(f"v_exp_f32 v{E+r}, v{E+r}")
    for r in range(4): a(f"v_permlane32_swap_b32 v{D+r}, v{E+4+r}")
    for r in range(4): a(f"v_add_f32 v{E+r}, 1.0, v{E+r}")
    for r in range(4): a(f"v_rcp_f32 v{E+r}, v{E+r}")
    for r in range(4): a(f"v_mul_f32 v{D+r}, v{D+r}, v{E+4+r}")
    for r in range(4): a(f"v_mul_f32 v{D+r}, v{D+r}, v{E+r}")
    a(f"""
    v_cvt_pk_bf16_f32 v{R_+2}, v{D}, v{D+1}
    v_cvt_pk_bf16_f32 v{R_+3}, v{D+2}, v{D+3}
    s_mov_b64 exec, 0x00030003
    buffer_store_dwordx2 {vr(R_+2,2)}, v{R_}, s[{WS}:{WS+3}], s48 offen sc0 sc1
    s_mov_b64 exec, -1
    @S10
    s_branch L2_bc
    L2_stre:
    s_add_u32 s49, s49, 1
    s_cmp_gt_u32 s49, 0x40000
    s_cbranch_scc1 L2_stok
    buffer_load_dwordx4 {vr(STT,4)}, v9, s[{WS}:{WS+3}], s51 offen sc1
    s_branch L2_stw
    L2_nokey:
    """)
    outval()
    a("s_waitcnt vmcnt(0)\ns_barrier")
    BFR = 164
    a(f"""
    L2_bc:
    v_and_b32 v9, 15, v2
    v_lshrrev_b32 v10, 2, v9
    v_lshrrev_b32 v11, 4, v2
    v_lshl_add_u32 v10, v11, 3, v10
    v_lshlrev_b32 v10, 4, v10
    v_and_b32 v8, 1, v9
    v_lshl_add_u32 v10, v8, 3, v10
    s_mul_i32 s49, s45, 3
    v_add_u32 v10, s49, v10
    """)
    for s_ in range(6):
        a(f"ds_read_b64_tr_b16 {vr(AF+4*s_,2)}, v10 offset:{FW + s_*512}\nds_read_b64_tr_b16 {vr(AF+4*s_+2,2)}, v10 offset:{FW + s_*512 + 64}")
    a(f"""
    v_mov_b32 v0, {CNT + 16}
    s_lshl_b32 s48, s{sG}, 3
    v_add_u32 v8, s48, v{TOK}
    s_waitcnt lgkmcnt(0)
    s_barrier
    ds_read_b64 v[4:5], v0
    s_waitcnt lgkmcnt(0)
    v_not_b32 v4, v4
    v_not_b32 v5, v5
    v_and_b32 v4, 0x7ff, v4
    v_and_b32 v5, 0x7ff, v5
    v_cmp_ne_u32 vcc, v4, v8
    v_cmp_ne_u32 s[62:63], v5, v8
    s_and_b64 exec, vcc, s[62:63]
    buffer_store_dwordx4 {vr(OV,4)}, v{XO}, s[{OUT}:{OUT+3}], s44 offen {OSC}
    s_mov_b64 exec, -1
    s_sub_u32 s48, s2, 176
    s_cmp_lt_u32 s48, 64
    s_cbranch_scc1 L2_st2
    L2_fin:
    @D0 15 {WS} {sW}
    s_endpgm
    """)
    a("L2_st2:")
    a(f"""
    v_and_b32 v6, 8, v2
    v_cmp_ne_u32 vcc, 0, v6
    s_mov_b32 s48, {WS_H}
    s_mov_b32 s51, {WS_ST}
    v_cndmask_b32 v3, v4, v5, vcc
    v_lshlrev_b32 v12, 10, v3
    v_lshl_add_u32 v12, v1, 1, v12
    v_add_u32 v12, s61, v12
    v_lshlrev_b32 v18, 4, v3
    buffer_load_ushort v13, v12, s[{WS}:{WS+3}], s48 offen sc1
    v_and_b32 v6, 1, v2
    v_lshlrev_b32 v0, {ASH}, v11
    v_lshl_add_u32 v0, v6, 4, v0
    s_mul_i32 s48, s{sW}, {24 << ASH}
    s_add_u32 s48, s48, {WS_ACT}
    s_mov_b32 s49, 0
    L2_apoll:
    buffer_load_dwordx4 {vr(STT,4)}, v18, s[{WS}:{WS+3}], s51 offen sc1
    """)
    for s_ in range(6):
        a(f"buffer_load_dwordx4 {vr(BFR+4*s_,4)}, v0, s[{WS}:{WS+3}], s48 offen offset:{s_*(4 << ASH)} sc1")
    a(f"s_add_u32 s49, s49, 1\ns_waitcnt vmcnt(0)\nv_max3_u32 v3, v{BFR}, v{BFR+1}, v{BFR+2}")
    for q in range(3, 23, 2): a(f"v_max3_u32 v3, v{BFR+q}, v{BFR+q+1}, v3")
    a(f"""
    v_max_u32 v3, v{BFR+23}, v3
    v_cmp_eq_u32 vcc, -1, v3
    v_cmp_ne_u32 s[62:63], s{sEP}, v{STT+3}
    s_cmp_gt_u32 s49, 0x40000
    s_cbranch_scc1 L2_agot
    s_or_b64 {'exec' if '--amask' in sys.argv else 'vcc'}, vcc, s[62:63]
    s_cbranch_scc0 L2_agot
    {SLEEP}
    s_branch L2_apoll
    L2_agot:
    s_mov_b64 exec, -1
    @S10
    """)
    for s_ in range(6): a(f"{MF16} {vr(D,4)}, {vr(AF+4*s_,4)}, {vr(BFR+4*s_,4)}, {'0' if s_ == 0 else vr(D,4)}")
    a(f"""
    v_and_b32 v3, 1, v11
    v_lshlrev_b32 v0, 5, v6
    v_lshl_add_u32 v0, v3, 4, v0
    s_lshl_b32 s48, s{sW}, 6
    s_add_u32 s48, s48, {FR}
    v_add_u32 v0, s48, v0
    v_lshlrev_b32 v10, 2, v9
    v_lshl_add_u32 v10, v11, 7, v10
    v_add_u32 v10, {FR}, v10
    ds_write_b128 v0, {vr(D,4)}
    s_waitcnt lgkmcnt(0)
    s_barrier
    s_cmp_lg_u32 s{sW}, 0
    s_cbranch_scc1 L2_fin
    ds_read2_b32 v[14:15], v10 offset0:0 offset1:16
    v_mul_f32 v16, {hex(f2u(-LOG2E))}, v{STT+2}
    v_exp_f32 v16, v16
    v_lshlrev_b32 v13, 16, v13
    v_add_f32 v16, 1.0, v16
    v_rcp_f32 v16, v16
    v_sub_f32 v17, v13, v{STT}
    v_fma_f32 v13, v17, v{STT+1}, v13
    s_waitcnt lgkmcnt(0)
    v_add_f32 v14, v14, v15
    v_mov_b32 v15, v14
    s_nop 1
    v_permlane32_swap_b32 v14, v15
    v_add_f32 v14, v14, v15
    v_mov_b32 v15, v14
    s_nop 1
    v_permlane16_swap_b32 v14, v15
    v_add_f32 v14, v14, v15
    v_fma_f32 v14, v14, v16, v13
    v_cvt_pk_bf16_f32 v14, v14, v14
    s_mov_b64 exec, 0xffff
    buffer_store_short v14, v12, s[{OUT}:{OUT+3}], 0 offen {OSC}
    @Q {WS}
    @D0 15 {WS} {sW}
    L2_end:
    s_endpgm
    """)
    AB = 12
    def wl(reg, sb, f):
        a(f"buffer_load_dwordx4 {vr(reg,4)}, v{LN16}, s[{WS}:{WS+3}], s{sb} offen offset:{(f & 3)*1024} sc1")
        if f % 4 == 3: a(f"s_add_u32 s{sb}, s{sb}, 4096")
    NE = 10
    breg = lambda f: 40 + 4*f if f < NE else WO + 4*(f - NE)
    a(f"""
    L2_old:
    s_setprio 0
    v_mov_b32 v3, {CNT}
    v_mov_b32 v4, 1
    s_waitcnt lgkmcnt(0)
    s_mov_b64 exec, 1
    ds_add_u32 v3, v4
    s_mov_b64 exec, -1
    s_add_u32 s48, s51, {4*65536}
    v_mov_b32 v7, {1024 + 528}
    """)
    for i in range(4): a(f"ds_read_b128 {vr(ACC+4*i,4)}, v7\nds_read_b128 {vr(AB+4*i,4)}, v7")
    for f in range(NE): wl(breg(f), 48, f)
    a(f"""
    L2_spin:
    ds_read_b32 v4, v3
    s_waitcnt lgkmcnt(0)
    v_readfirstlane_b32 s49, v4
    s_cmp_ge_u32 s49, 4
    s_cbranch_scc1 L2_go
    s_sleep 2
    s_branch L2_spin
    L2_go:
    """)
    for s_ in range(4): a(f"ds_read_b128 {vr(BF[s_],4)}, v{BA} offset:{s_*128}")
    def half(acc, reg, after):
        for s_ in range(4):
            for i in range(4):
                f = 8*s_ + 2*i
                after(f, 0)
                a(f"{SM16} {vr(acc+4*i,4)}, {vr(BF[s_],4)}, {vr(reg(f),8)}, v{IDX}")
                after(f, 1)
    a(f"s_add_u32 s49, s51, {32768 + ((32 - NE)//4)*4096}\ns_waitcnt lgkmcnt(0)")
    def aftA(f, post):
        if not post: return
        for slot in (f, f + 1):
            if slot < 32 - NE: wl(WO + 4*slot, 48, slot + NE)
            else: wl(WO + 4*slot, 49, slot)
    half(ACC, lambda f: WO + 4*f, aftA)
    a(f"s_add_u32 s49, s51, 32768")
    def aftB(f, post):
        if not post:
            done = max(0, f - NE)
            a(f"s_waitcnt vmcnt({min(63, (31 - (f + 1)) + NE + done)})"); return
        for g in (f, f + 1):
            if g >= NE: wl(WO + 4*(g - NE), 49, g - NE)
    half(AB, breg, aftB)
    a("s_nop 5")
    for i in range(4): a(f"ds_write_b128 v{PA}, {vr(AB+4*i,4)} offset:{1024*i}")
    a("s_waitcnt vmcnt(0)\ns_setprio 1\ns_branch L2_join")
    a(f"""
    L2_slow:
    v_mov_b32 v{KA}, v{LN16}
    v_mov_b32 v{M}, 0xff7fffff
    s_mov_b32 s{sN}, 64
    L2_maxloop:
    ds_read_b128 {vr(KF,4)}, v{KA}
    v_add_u32 v{KA}, {TILE}, v{KA}
    s_waitcnt lgkmcnt(0)
    {MF32} {vr(S,16)}, {vr(KF,4)}, {vr(Q,4)}, 0
    s_sub_u32 s{sN}, s{sN}, 1
    s_nop 10
    """)
    for r in range(8): a(f"v_max3_f32 v{M}, v{S+2*r}, v{S+2*r+1}, v{M}")
    a(f"""
    s_cmp_lg_u32 s{sN}, 0
    s_cbranch_scc1 L2_maxloop
    v_mov_b32 v3, v{M}
    v_mov_b32 v{KA}, v{LN16}
    v_mov_b32 v{VA}, v{VA0}
    v_permlane32_swap_b32 v{M}, v3
    v_max_f32 v{M}, v{M}, v3
    """)
    for r in range(16): a(f"v_mov_b32 v{O+r}, 0")
    a(f"""
    s_mov_b32 s{sN}, 64
    L2_slowloop:
    ds_read_b128 {vr(KF,4)}, v{KA}
    ds_read_b128 {vr(VF,4)}, v{VA}
    ds_read_b128 {vr(VF+4,4)}, v{VA} offset:544
    v_add_u32 v{KA}, {TILE}, v{KA}
    v_add_u32 v{VA}, {TILE}, v{VA}
    s_waitcnt lgkmcnt(0)
    {MF32} {vr(S,16)}, {vr(KF,4)}, {vr(Q,4)}, 0
    s_sub_u32 s{sN}, s{sN}, 1
    s_nop 10
    """)
    for i in range(16): a(f"v_sub_f32 v{S+i}, v{S+i}, v{M}")
    for i in range(16): a(f"v_exp_f32 v{S+i}, v{S+i}")
    a(f"""
    s_nop 1
    {SMF} {vr(O,16)}, {vr(VF,4)}, {vr(S,8)}, v{IDX}
    {SMF} {vr(O,16)}, {vr(VF+4,4)}, {vr(S+8,8)}, v{IDX}
    s_cmp_lg_u32 s{sN}, 0
    s_cbranch_scc1 L2_slowloop
    s_nop 11
    v_rcp_f32 v3, v{O+8}
    s_branch L2_epi
    """)
    k1_cold(a)
    return desc(KNAME, 256, 72)

NOTES = """;
"""
def main():
    hdr = open("sequential_preLN__grouped_kv_mqa__moe_arch_mod__prompt.s.ref").read().split("\n")
    top = [l for l in hdr if l.startswith(";") and "@launch" not in l and "Override" not in l and "grid=ceil" not in l]
    a = Asm()
    k1(a)
    d = k2(a)
    out = "\n".join(top) + "\n"
    out += f"; @launch grid=(256,1,1) block=(512,1,1) lds={max(K1_LDS, K2_LDS)}\n"
    out += NOTES
    out += '.amdgcn_target "amdgcn-amd-amdhsa--gfx950"\n.text\n' + a.text() + '.section .rodata,"a"\n' + d
    sys.stdout.write(out)
main()
```

```python
import sys, struct
def f2u(x): return struct.unpack("<I", struct.pack("<f", x))[0]

WS_Q   = 0
WS_KV  = 2 << 20
WS_WO  = 3 << 20
WS_H   = 4 << 20

WS_ST  = (6 << 20) + 0x10000
WS_ACT = (6 << 20) + 0x20000
WS_KEY = WS_ACT + 0x10000
KSH = 5; ASH = 7; FSH = 4
for _x in sys.argv:
    if _x.startswith('--ksh='): KSH = int(_x.split('=')[1])
    if _x.startswith('--fsh='): FSH = int(_x.split('=')[1])
    if _x.startswith('--ash='): ASH = int(_x.split('=')[1])
WS_FLG = WS_KEY + 0x10000
WS_QB = 7 << 20
sEP = 68
KNAME = 'sequential_preLN__grouped_kv_mqa__moe_arch_mod__prompt_kernel'
WS_SIZE = 8 << 20
TILE = 2112
QSCALE = 0.25 * 1.4426950408889634
EPS = 1e-5
SHIFT = 96.0
for _x in sys.argv:
    if _x.startswith('--shift='): SHIFT = float(_x.split('=')[1])

class Asm:
    def __init__(self): self.l = []
    def __call__(self, s):
        for x in s.split("\n"):
            x = x.strip()
            if x.startswith("@S"): stamp(self, int(x[2:])); continue
            if x.startswith("@P"): padstore(self, *[int(t) for t in x[2:].split()]); continue
            if x.startswith("@Q"): padspin(self, *[int(t) for t in x[2:].split()]); continue
            if x.startswith("@T"): padstamp(self, int(x[2:])); continue
            if x.startswith("@D"): dump(self, *[int(t) for t in x[2:].split()]); continue
            if x: self.l.append(("" if x.endswith(":") else "    ") + x)
    def text(self): return "\n".join(self.l) + "\n"

def srd(a, d, p, size):
    a(f"s_mov_b32 s{d}, s{p}\ns_and_b32 s{d+1}, s{p+1}, 0xffff\ns_mov_b32 s{d+2}, {size}\ns_mov_b32 s{d+3}, 0x20000")
def vr(b, n): return f"v[{b}:{b+n-1}]"
def head(a, name):
    a(f".globl {name}\n.p2align 8\n.type {name},@function\n{name}:")
def desc(name, nv, ns):
    return f""".p2align 6
.amdhsa_kernel {name}
  .amdhsa_next_free_vgpr {nv}
  .amdhsa_next_free_sgpr {102 if (DIAG or PAD is not None or '--tsync' in sys.argv) else ns}
  .amdhsa_accum_offset {(nv+3)//4*4}
  .amdhsa_group_segment_fixed_size 0
  .amdhsa_kernarg_size 104
  .amdhsa_user_sgpr_count 2
  .amdhsa_user_sgpr_kernarg_segment_ptr 1
  .amdhsa_system_sgpr_workgroup_id_x 1
.end_amdhsa_kernel
"""
DIAG = "--diag" in sys.argv
WS_DIAG = 16 << 20
if DIAG: WS_SIZE = 32 << 20
LIGHT = '--light' in sys.argv
def stamp(a, i, force=False):
    if LIGHT and i != 0 and not force: return
    if DIAG: a(f"{'s_memtime' if i >= 13 else 's_memrealtime'} s[{70+2*i}:{71+2*i}]\ns_waitcnt lgkmcnt(0)")
DIAG2 = "--diag2" in sys.argv
D2SEL = {0: [(0, 1), (2, 0), (8, 0)], 1: [(0, 1), (1, 0), (3, 0), (4, 0), (8, 0), (10, 0), (12, 0)], 2: [(0, 1), (1, 0), (3, 0), (5, 0), (6, 0), (7, 0)]}
_dl = [0]
def dump(a, kidx, n, WS, sW):
    if not DIAG: return
    stamp(a, min(n - 1, 12), True)
    if DIAG2:
        _dl[0] += 1
        base = sum(len(D2SEL[k]) for k in range(kidx))
        a(f"s_and_b32 s98, s2, 15\ns_cmp_lg_u32 s98, 0\ns_cbranch_scc1 LD_{_dl[0]}\ns_load_dwordx2 s[98:99], s[0:1], 88\ns_mov_b64 exec, 1\nv_mov_b32 v1, 0\ns_waitcnt lgkmcnt(0)\ns_add_u32 s98, s98, {512*(2-kidx)}\ns_addc_u32 s99, s99, 0")
        for j, (i, inv) in enumerate(D2SEL[kidx]):
            a(f"v_mov_b32 v0, s{70+2*i}")
            if inv: a("v_not_b32 v0, v0")
            a(f"global_atomic_umax v1, v0, s[98:99] offset:{4*(base+j)}\ns_nop 1")
        a(f"LD_{_dl[0]}:")
        return
    a(f"s_mov_b64 exec, 1\ns_lshl_b32 s69, s2, 4\ns_add_u32 s69, s69, s{sW}\ns_lshl_b32 s69, s69, 6\ns_add_u32 s69, s69, {WS_DIAG + kidx * (1 << 20)}\nv_mov_b32 v1, 0")
    for i in range(n):
        a(f"v_mov_b32 v0, s{70+2*i}\nbuffer_store_dword v0, v1, s[{WS}:{WS+3}], s69 offen offset:{4*i}")
PAD = [int(x.split("=")[1]) for x in sys.argv if x.startswith("--pad=")]
PAD = PAD[0] if PAD else None
WS_PAD = (6 << 20)
def padstamp(a, k):
    if PAD == k: a("s_memrealtime s[94:95]\ns_waitcnt lgkmcnt(0)")
def padstore(a, k, WS, sW): pass
def padspin(a, WS):
    if PAD is None: return
    a(f"s_mov_b32 s97, 0\nLQ_spin:\ns_memrealtime s[92:93]\ns_waitcnt lgkmcnt(0)\ns_sub_u32 s98, s92, s94\ns_add_u32 s97, s97, 1\ns_cmp_gt_u32 s97, 100000\ns_cbranch_scc1 LQ_done\ns_cmp_lt_u32 s98, 6000\ns_cbranch_scc1 LQ_spin\nLQ_done:")
MF32 = "v_mfma_f32_32x32x16_bf16"
MF16 = "v_mfma_f32_16x16x32_bf16"

ZERO_KB = 8
K1_KV = 131072
K1_CS = 147456
K1_KC = K1_CS + 1024
K1_KP = K1_KC + 1024
K1_PS = K1_KP + 4096
K1_EP = K1_PS + 1024
K1_LDS = K1_EP + 64
QSC = 'sc1' if '--qsc1' in sys.argv else '' if '--qplain' in sys.argv else 'sc0 sc1'
CODE_SPAN = 18600
WOC = 1 if '--woc1' in sys.argv else 2
def rowstat(a, s, m, r):
    a(f"""
    v_add_f32 v{m}, v{s}, v{s+2}
    v_add_f32 v{r}, v{s+1}, v{s+3}
    v_mul_f32 v{m}, {hex(f2u(-1.0/512))}, v{m}
    v_mul_f32 v{r}, {hex(f2u(1.0/512))}, v{r}
    v_fma_f32 v{r}, -v{m}, v{m}, v{r}
    v_max_f32 v{r}, 0, v{r}
    """)
    if "--exactln" in sys.argv:
        a(f"v_add_f32 v{r}, {hex(f2u(EPS))}, v{r}\nv_rsq_f32 v{r}, v{r}")
        return
    a(f"""
    v_cvt_pk_bf16_f32 v{r}, v{m}, v{r}
    v_lshlrev_b32 v{m}, 16, v{r}
    v_and_b32 v{r}, 0xffff0000, v{r}
    v_add_f32 v{r}, {hex(f2u(EPS))}, v{r}
    v_cvt_pk_bf16_f32 v{r}, v{r}, v{r}
    v_and_b32 v{r}, 0xffff0000, v{r}
    v_sqrt_f32 v{r}, v{r}
    s_nop 0
    v_cvt_pk_bf16_f32 v{r}, v{r}, v{r}
    v_and_b32 v{r}, 0xffff0000, v{r}
    v_rcp_f32 v{r}, v{r}
    """)
def split_ab(a, src, dst, kind):
    a(f"v_and_b32 v11, 0xffff0000, v{src}\nv_sub_f32 v12, v{src}, v11")
    if kind == "m": a(f"v_cvt_pk_bf16_f32 v{dst}, v11, v12\nv_cvt_pk_bf16_f32 v{dst+1}, v11, 0")
    else: a(f"v_cvt_pk_bf16_f32 v{dst}, v11, v11\nv_cvt_pk_bf16_f32 v{dst+1}, v12, 0")
def k1(a):
    X, WQ, WKV, WO, WS = 16, 20, 24, 32, 36
    sW, sTG, sCG = 40, 41, 42
    DBG = 28
    ONES = 69
    VL = 13
    head(a, KNAME)
    a(f"""
    s_cmp_ge_u32 s2, 256
    s_cbranch_scc1 L2_end
    @S0
    @T0
    s_load_dwordx8 s[4:11], s[0:1], 0
    s_load_dwordx2 s[12:13], s[0:1], 32
    s_load_dwordx2 s[14:15], s[0:1], 96
    s_load_dwordx2 s[64:65], s[0:1], 88
    v_lshrrev_b32 v1, 6, v0
    v_and_b32 v2, 63, v0
    v_readfirstlane_b32 s{sW}, v1
    s_and_b32 s43, s2, 7
    s_lshr_b32 s44, s2, 3
    s_and_b32 s45, s44, 3
    s_lshl_b32 s{sTG}, s43, 2
    s_add_u32 s{sTG}, s{sTG}, s45
    s_lshr_b32 s{sCG}, s44, 2
    v_and_b32 v3, 15, v2
    v_lshrrev_b32 v4, 4, v2
    v_lshlrev_b32 v{VL}, 4, v2
    s_and_b32 s46, s{sW}, 3
    s_lshl_b32 s50, s46, 12
    s_and_b32 s58, s{sCG}, 3
    s_cmp_lt_u32 s{sW}, 4
    s_cbranch_scc1 L1_gemm
    """)
    VX, VW, WT, CS, WR, XR = 8, 12, 24, 70, 48, 32
    pass
    for i in range(4):
        a(f"v_add_u32 v7, {4*i}, v4\nv_xor_b32 v{VX+i}, v7, v3\nv_lshlrev_b32 v{VX+i}, 4, v{VX+i}\nv_lshl_add_u32 v{VX+i}, v7, 10, v{VX+i}")
    a(f"""
    v_lshrrev_b32 v7, 3, v2
    v_and_b32 v{VW}, 1, v4
    v_lshlrev_b32 v{VW}, 2, v{VW}
    v_and_b32 v14, 7, v2
    v_xor_b32 v{VW}, v{VW}, v14
    v_lshlrev_b32 v{VW}, 4, v{VW}
    v_lshl_add_u32 v{VW}, v7, 10, v{VW}
    s_lshl_b32 s48, s{sTG}, 16
    s_lshl_b32 s43, s46, 14
    s_add_u32 s48, s48, s43
    s_lshl_b32 s49, s46, 15
    s_lshl_b32 s43, s{sCG}, 7
    s_add_u32 s49, s49, s43
    {'s_mov_b32 s55, 0' if '--norot' in sys.argv else f's_add_u32 s55, s{sCG}, s{sTG}'}
    s_waitcnt lgkmcnt(0)
    """)
    srd(a, X, 4, 2 << 20)
    def chunk(c, sh): a(f"s_add_u32 s43, s55, {c}\ns_and_b32 s43, s43, 3\ns_lshl_b32 s43, s43, {sh}")
    def issx(c):
        chunk(c, 8); a("s_add_u32 s51, s48, s43")
        for i in range(4):
            a(f"s_add_u32 m0, s50, {c*16384 + i*1024}\ns_nop 0\nbuffer_load_dwordx4 v{VX+i}, s[{X}:{X+3}], s51 offen lds")
    def issw(c):
        chunk(c, 17); a("s_add_u32 s51, s49, s43")
        for i in range(4):
            a(f"s_add_u32 m0, s50, {65536 + c*16384 + i*1024}\ns_add_u32 s52, s51, {8*i*1024}\nbuffer_load_dwordx4 v{VW}, s[{WQ}:{WQ+3}], s52 offen lds")
    def isskv(c):
        chunk(c, 12)
        a(f"s_add_u32 m0, s61, {K1_KV + c*4096}\ns_add_u32 s52, s61, s43\nbuffer_load_dwordx4 v{VL}, s[{WKV}:{WKV+3}], s52 offen lds")
    issx(0)
    a(f"s_cmp_ge_u32 s{sCG}, 4\ns_cselect_b32 s8, s10, s8\ns_cselect_b32 s9, s11, s9\ns_lshl_b32 s61, s46, 10")
    srd(a, WKV, 8, 16 << 10)
    isskv(0); issx(1); isskv(1)
    srd(a, WQ, 6, 512 << 10)
    a(f"""
    v_mov_b32 v{ONES}, 0x3f803f80
    v_add_u32 v30, {K1_KC}, v{VL}
    s_lshl_b32 s43, s58, 8
    s_add_u32 s43, s43, {K1_PS}
    v_lshl_add_u32 v31, v3, 4, s43
    s_lshl_b32 s56, s{sTG}, 1
    s_lshr_b32 s43, s58, 1
    s_add_u32 s56, s56, s43
    s_mul_i32 s56, s56, {TILE}
    s_add_u32 s56, s56, {WS_KV}
    s_and_b32 s57, s58, 1
    s_lshl_b32 s43, s57, 8
    s_mul_i32 s44, s57, 544
    s_add_u32 s44, s44, 1024
    s_cmp_ge_u32 s{sCG}, 4
    s_cselect_b32 s43, s44, s43
    s_cselect_b64 s[62:63], -1, 0
    s_add_u32 s56, s56, s43
    v_and_b32 v14, 1, v4
    v_lshrrev_b32 v15, 1, v4
    v_lshlrev_b32 v26, 9, v14
    v_lshl_add_u32 v26, v15, 3, v26
    v_lshlrev_b32 v27, 8, v15
    v_lshl_add_u32 v27, v14, 3, v27
    v_cndmask_b32 v26, v26, v27, s[62:63]
    v_lshl_add_u32 v26, v3, 4, v26
    v_lshlrev_b32 v27, 4, v4
    v_lshlrev_b32 v28, 2, v3
    v_cndmask_b32 v27, v28, v27, s[62:63]
    v_cndmask_b32 v28, 0, 4, s[62:63]
    v_mov_b32 v29, 0x7fff0000
    v_mov_b32 v74, 0
    v_mov_b32 v75, 0
    v_mov_b32 v78, 0
    v_mov_b32 v79, 0
    """)
    srd(a, WS, 14, WS_SIZE); srd(a, DBG, 64, 256)
    a(f"v_mov_b32 v93, {K1_EP}\nv_mov_b32 v94, 0")
    size = [5, 5, 5, 5, 4, 4, 4, 4]
    for g in range(5):
        if g + 2 < 4: issx(g + 2); isskv(g + 2)
        else: issw(g - 2)
        a(f"s_waitcnt vmcnt({sum(size[g+1:g+3])})\ns_barrier")
    a(f"buffer_load_dword v66, v94, s[{DBG}:{DBG+3}], 0 offen sc1")
    issw(3)
    a(f"""
    s_cmp_eq_u32 s46, 0
    s_cbranch_scc1 L1_fin
    s_waitcnt vmcnt(9)
    s_barrier
    s_waitcnt vmcnt(5)
    s_barrier
    s_waitcnt vmcnt(0)
    v_readfirstlane_b32 s{sEP}, v66
    s_cmp_eq_u32 s{sEP}, 0
    s_cbranch_scc1 L1_tag
    L1_tagok0:
    ds_write_b32 v93, v66
    s_waitcnt lgkmcnt(0)
    s_barrier
    s_branch L2_start
    L1_fin:
    ds_read_b128 v[80:83], v31
    ds_read_b128 v[84:87], v30
    ds_read_b128 {vr(XR,4)}, v30 offset:1024
    ds_read_b128 {vr(XR+4,4)}, v30 offset:2048
    ds_read_b128 {vr(XR+8,4)}, v30 offset:3072
    ds_read_b128 {vr(XR+12,4)}, v30 offset:4096
    s_waitcnt lgkmcnt(4)
    """)
    rowstat(a, 80, 8, 9)
    a(f"""
    v_add_f32 v84, v84, v85
    v_add_f32 v86, v86, v87
    ds_bpermute_b32 v88, v27, v9
    v_add_u32 v27, v27, v28
    ds_bpermute_b32 v89, v27, v9
    v_add_u32 v27, v27, v28
    ds_bpermute_b32 v90, v27, v9
    v_add_u32 v27, v27, v28
    ds_bpermute_b32 v91, v27, v9
    v_add_f32 v84, v84, v86
    v_cndmask_b32 v85, v84, v8, s[62:63]
    v_cndmask_b32 v86, v8, v84, s[62:63]
    """)
    split_ab(a, 85, 72, "c"); split_ab(a, 86, 76, "m")
    a("s_waitcnt lgkmcnt(4)")
    for r in range(4):
        a(f"v_add_f32 v{XR+r}, v{XR+r}, v{XR+4+r}\nv_add_f32 v{XR+8+r}, v{XR+8+r}, v{XR+12+r}")
    for r in range(4): a(f"v_add_f32 v{XR+r}, v{XR+r}, v{XR+8+r}")
    a(f"""
    v_cmp_gt_u32 vcc, 4, v2
    v_lshlrev_b32 v12, 2, v2
    {MF16} {vr(XR,4)}, v[72:75], v[76:79], {vr(XR,4)}
    v_cndmask_b32 v14, 0, v{ONES}, vcc
    s_and_b64 s[62:63], s[62:63], 0xff
    s_waitcnt lgkmcnt(0)
    s_nop 4
    """)
    for r in range(4): a(f"v_mul_f32 v{XR+r}, v{88+r}, v{XR+r}")
    a(f"""
    v_cvt_pk_bf16_f32 v{XR}, v{XR}, v{XR+1}
    v_cvt_pk_bf16_f32 v{XR+1}, v{XR+2}, v{XR+3}
    buffer_store_dwordx2 {vr(XR,2)}, v26, s[{WS}:{WS+3}], s56 offen sc0 sc1
    v_cndmask_b32 v12, v29, v12, s[62:63]
    buffer_store_dword v14, v12, s[{WS}:{WS+3}], s56 offen offset:512 sc0 sc1
    s_lshl_b32 s43, s2, {FSH}
    s_add_u32 s43, s43, {WS_FLG}
    v_mov_b32 v7, 0
    s_waitcnt vmcnt(11)
    s_barrier
    s_waitcnt vmcnt(7)
    s_barrier
    {'s_waitcnt vmcnt(2)' if '--fb' in sys.argv else ''}
    {'s_barrier' if '--fb' in sys.argv else ''}
    s_waitcnt vmcnt(0)
    v_readfirstlane_b32 s{sEP}, v66
    s_cmp_eq_u32 s{sEP}, 0
    s_cbranch_scc1 L1_tag
    L1_tagok1:
    s_mov_b64 exec, 1
    buffer_store_dword v66, v7, s[{WS}:{WS+3}], s43 offen sc0 sc1
    s_mov_b64 exec, -1
    @S1
    {'' if '--fb' in sys.argv else 's_barrier'}
    s_branch L2_start
    """)
    D1 = 16
    XF, WF = 120, 32
    XA, WA, WB, WOD = 72, 68, 70, 80
    KX, KW = 92, 93
    SX, SXX, KC, KD = 14, 15, 71, 96
    KF = 104
    a(f"""
    L1_gemm:
    v_and_b32 v5, 31, v2
    v_lshrrev_b32 v6, 5, v2
    s_and_b32 s53, s{sW}, 1
    s_lshr_b32 s54, s{sW}, 1
    s_lshl_b32 s59, s2, 1
    s_add_u32 s59, s59, s53
    s_lshr_b32 s43, s59, 6
    s_lshl_b32 s47, s43, 7
    s_lshr_b32 s44, s59, 3
    s_and_b32 s44, s44, 7
    s_lshl_b32 s44, s44, 16
    s_add_u32 s47, s47, s44
    s_lshl_b32 s44, s53, 15
    s_add_u32 s47, s47, s44
    s_and_b32 s44, s59, 2
    s_lshl_b32 s44, s44, 5
    s_add_u32 s47, s47, s44
    s_and_b32 s44, s59, 4
    s_lshr_b32 s44, s44, 1
    s_add_u32 s47, s47, s44
    v_lshlrev_b32 v7, 2, v3
    v_lshl_add_u32 v7, v6, 14, v7
    v_and_b32 v8, 1, v4
    v_lshl_add_u32 v7, v8, 12, v7
    v_add_u32 v8, 8192, v7
    s_waitcnt lgkmcnt(0)
    """)
    if "--pf" in sys.argv:
        a(f"""
        s_lshr_b32 s43, s2, 3
        s_lshl_b32 s43, s43, 14
        s_lshl_b32 s44, s53, 13
        s_add_u32 s43, s43, s44
        s_lshl_b32 s44, s{sTG}, 16
        s_lshl_b32 s45, s{sCG}, 13
        s_add_u32 s44, s44, s45
        s_cmp_eq_u32 s{sW}, 3
        s_cselect_b32 s44, 0x400000, s44
        s_cmp_ge_u32 s{sW}, 2
        s_cselect_b32 s43, s44, s43
        s_cselect_b32 s{X}, s4, s6
        s_cselect_b32 s{X+1}, s5, s7
        s_mov_b32 s{X+2}, 0x80000
        s_cselect_b32 s{X+2}, 0x200000, s{X+2}
        s_and_b32 s{X+1}, s{X+1}, 0xffff
        s_mov_b32 s{X+3}, 0x20000
        v_lshlrev_b32 v9, 7, v2
        buffer_load_dword v252, v9, s[{X}:{X+3}], s43 offen
        """)
    srd(a, WO, 12, 512 << 10); srd(a, WS, 14, WS_SIZE); srd(a, DBG, 64, 256)
    a(f"s_cmp_ge_u32 s{sW}, 2\ns_cbranch_scc1 L1_nowo")
    for j in range(8):
        ro = (0, 1, 8, 9, 2, 3, 10, 11)[j]
        a(f"buffer_load_ushort v{WOD + j}, v{7 + ro//8}, s[{WO}:{WO+3}], s47 offen offset:{(ro & 3) * 1024}")
    a(f"""
    s_branch L1_noz
    L1_nowo:
    s_cmp_eq_u32 s{sW}, 2
    s_cbranch_scc1 L1_ini
    """)
    if "--tlb" in sys.argv:
        a(f"""
        s_load_dwordx8 s[16:23], s[0:1], 48
        s_load_dwordx2 s[24:25], s[0:1], 80
        v_lshlrev_b32 v9, 20, v2
        s_mov_b64 exec, 0xff
        buffer_load_dword v252, v9, s[{WS}:{WS+3}], 0 offen offset:2048
        s_mov_b64 exec, 1
        global_load_dword v253, v9, s[6:7]
        s_waitcnt lgkmcnt(0)
        global_load_dword v253, v9, s[16:17]
        global_load_dword v253, v9, s[18:19]
        global_load_dword v253, v9, s[20:21]
        global_load_dword v253, v9, s[22:23]
        global_load_dword v253, v9, s[24:25]
        s_mov_b64 exec, -1
        """)
    a(f"""
    s_cmp_lg_u32 s2, 0
    s_cbranch_scc1 L1_noz
    s_memrealtime s[44:45]
    v_mov_b32 v9, 0
    s_waitcnt lgkmcnt(0)
    s_or_b32 s44, s44, 1
    v_mov_b32 v{WOD}, s44
    s_mov_b64 exec, 1
    buffer_store_dword v{WOD}, v9, s[{DBG}:{DBG+3}], 0 offen sc0 sc1
    s_mov_b64 exec, -1
    s_branch L1_noz
    L1_ini:
    s_cmp_lt_u32 s2, 172
    s_cselect_b32 s44, -1, 0
    v_mov_b32 v{WOD}, s44
    v_mov_b32 v{WOD+1}, 0
    v_lshlrev_b32 v9, 2, v2
    s_lshl_b32 s43, s2, {ASH}
    s_add_u32 s43, s43, {WS_ACT}
    s_lshl_b32 s44, s2, {KSH}
    s_add_u32 s44, s44, {WS_KEY}
    s_mov_b64 exec, 0xff
    buffer_store_dword v{WOD}, v9, s[{WS}:{WS+3}], s43 offen sc0 sc1
    s_mov_b64 exec, 3
    buffer_store_dword v{WOD+1}, v9, s[{WS}:{WS+3}], s44 offen sc0 sc1
        s_mov_b64 exec, -1
    L1_noz:
    """)
    if "--cpf" in sys.argv:
        a(f"""
        s_getpc_b64 s[44:45]
        s_and_b32 s44, s44, 0xffffff00
        s_lshr_b32 s43, s2, 3
        s_lshl_b32 s43, s43, 2
        s_add_u32 s43, s43, s{sW}
        s_lshl_b32 s43, s43, 8
        v_lshl_add_u32 v9, v2, 2, s43
        v_min_u32 v9, {CODE_SPAN}, v9
        global_load_dword v252, v9, s[44:45]
        """)
    a(f"""
    s_lshl_b32 s43, s54, 1
    v_xor_b32 v12, s43, v3
    s_lshl_b32 s43, s53, 13
    v_lshlrev_b32 v9, 8, v5
    v_add_u32 v9, s43, v9
    """)
    for j in range(8):
        a(f"v_add_u32 v10, {2*j}, v6\nv_xor_b32 v10, v10, v12\nv_lshl_add_u32 v{XA+j}, v10, 4, v9")
    a(f"""
    v_lshrrev_b32 v9, 2, v3
    v_lshl_add_u32 v10, v6, 3, v9
    v_lshlrev_b32 v10, 7, v10
    v_lshrrev_b32 v11, 1, v9
    v_xor_b32 v11, s54, v11
    v_lshl_add_u32 v10, v11, 6, v10
    v_and_b32 v11, 1, v4
    v_lshl_add_u32 v10, v11, 5, v10
    v_and_b32 v11, 3, v3
    v_lshl_add_u32 v10, v11, 3, v10
    s_lshl_b32 s43, s54, 11
    s_add_u32 s44, s43, 0x10000
    s_sub_u32 s43, {0x10000 + 2048}, s43
    v_add_u32 v{WA}, s44, v10
    v_add_u32 v{WB}, s43, v10
    v_lshl_add_u32 v{KW}, v4, 3, v9
    v_lshlrev_b32 v{KW}, 5, v{KW}
    v_lshl_add_u32 v{KW}, v11, 3, v{KW}
    s_lshl_b32 s43, s46, 10
    s_add_u32 s43, s43, {K1_KV}
    v_add_u32 v{KW}, s43, v{KW}
    s_lshl_b32 s43, s46, 2
    v_add_u32 v{KX}, s43, v4
    v_xor_b32 v{KX}, v{KX}, v3
    v_lshlrev_b32 v{KX}, 4, v{KX}
    v_lshl_add_u32 v{KX}, v3, 8, v{KX}
    s_lshl_b32 s43, s58, 12
    v_add_u32 v{KX}, s43, v{KX}
    v_lshrrev_b32 v64, 3, v5
    v_lshlrev_b32 v64, 13, v64
    v_and_b32 v11, 7, v5
    v_lshl_add_u32 v64, v11, 4, v64
    v_lshl_add_u32 v64, v6, 9, v64
    s_lshl_b32 s60, s{sTG}, 16
    s_lshl_b32 s44, s53, 15
    s_add_u32 s60, s60, s44
    s_lshl_b32 s44, s{sCG}, 10
    s_add_u32 s60, s60, s44
    s_lshl_b32 s44, s54, 8
    s_add_u32 s60, s60, s44
    s_add_u32 s60, s60, {WS_Q}
    s_lshl_b32 s43, s53, 9
    s_add_u32 s43, s43, {K1_PS}
    v_lshl_add_u32 v67, v5, 4, s43
    s_lshl_b32 s43, s54, 3
    v_lshl_add_u32 v65, v6, 2, v67
    v_add_u32 v65, s43, v65
    s_lshl_b32 s43, s46, 2
    s_add_u32 s43, s43, {K1_KC}
    v_add_u32 v94, s43, v{VL}
    s_lshl_b32 s43, s46, 10
    s_add_u32 s43, s43, {K1_KP}
    v_add_u32 v95, s43, v{VL}
    s_lshl_b32 s59, s59, 10
    s_add_u32 s59, s59, {WS_WO}
    s_cmp_ge_u32 s{sW}, 2
    s_cselect_b32 s59, {WS_SIZE}, s59
    s_cmp_ge_u32 s{sCG}, 4
    s_cselect_b64 s[62:63], -1, 0
    v_mov_b32 v{ONES}, 0x3f803f80
    v_mov_b32 v{SX}, 0
    v_mov_b32 v{SXX}, 0
    v_mov_b32 v{KC}, 0
    v_mov_b32 v90, 0
    v_mov_b32 v91, 0
    v_mov_b32 v250, 0
    v_mov_b32 v251, 0
    """)
    def xreads(c):
        kx, kw = KF + 8*(c & 1), KF + 8*(c & 1) + 4
        for u in (0, 2, 4, 6): a(f"ds_read_b128 {vr(XF+32*c+4*u,4)}, v{XA+u} offset:{c*16384}")
        a(f"ds_read_b128 {vr(kx,4)}, v{KX} offset:{c*16384}")
        a(f"ds_read_b64_tr_b16 {vr(kw,2)}, v{KW} offset:{c*4096}\nds_read_b64_tr_b16 {vr(kw+2,2)}, v{KW} offset:{c*4096+128}")
        for u in (1, 3, 5, 7): a(f"ds_read_b128 {vr(XF+32*c+4*u,4)}, v{XA+u} offset:{c*16384}")
    def wread(ks):
        ar = WB if ks & 1 else WA
        off = (ks & ~1) * 2048
        a(f"ds_read_b64_tr_b16 {vr(WF+4*(ks&7),2)}, v{ar} offset:{off}\nds_read_b64_tr_b16 {vr(WF+4*(ks&7)+2,2)}, v{ar} offset:{off + 512}")
    def work(c):
        kx, kw = KF + 8*(c & 1), KF + 8*(c & 1) + 4
        for u in (0, 2, 4, 6):
            a(f"s_waitcnt lgkmcnt({10 - u//2})")
            for q in range(4): a(f"v_dot2c_f32_bf16 v{SX}, v{XF+32*c+4*u+q}, v{ONES}\nv_dot2c_f32_bf16 v{SXX}, v{XF+32*c+4*u+q}, v{XF+32*c+4*u+q}")
        a("s_waitcnt lgkmcnt(4)")
        for q in range(4): a(f"v_dot2c_f32_bf16 v{KC}, v{kw+q}, v{ONES}")
        a(f"{MF16} {vr(KD,4)}, {vr(kw,4)}, {vr(kx,4)}, {'0' if c == 0 else vr(KD,4)}")
        a(f"{MF16} {vr(KD+4,4)}, {vr(kx,4)}, {vr(kw,4)}, {'0' if c == 0 else vr(KD+4,4)}")
    for c in range(4):
        a("s_barrier")
        if c == 0: a("@T3")
        xreads(c)
        work(c)
        if c == WOC:
            a(f"""
            s_waitcnt vmcnt(0)
            v_lshl_or_b32 v{WOD}, v{WOD+1}, 16, v{WOD}
            v_lshl_or_b32 v{WOD+1}, v{WOD+3}, 16, v{WOD+2}
            v_lshl_or_b32 v{WOD+2}, v{WOD+5}, 16, v{WOD+4}
            v_lshl_or_b32 v{WOD+3}, v{WOD+7}, 16, v{WOD+6}
            buffer_store_dwordx4 {vr(WOD,4)}, v{VL}, s[{WS}:{WS+3}], s59 offen sc0 sc1
            """)
    a(f"""
    v_permlane32_swap_b32 v{SX}, v{SXX}
    s_nop 0
    ds_write_b32 v94, v{KC}
    v_add_f32 v{SX}, v{SX}, v{SXX}
    v_mov_b32 v7, {K1_EP}
    ds_write_b32 v65, v{SX}
    s_nop 1
    """)
    for r in range(4): a(f"v_cndmask_b32 v{KD+r}, v{KD+r}, v{KD+4+r}, s[62:63]")
    a(f"ds_write_b128 v95, {vr(KD,4)}\nds_write_b32 v7, v90 offset:8\nv_mov_b32 v{SXX}, 0\ns_waitcnt lgkmcnt(0)\ns_barrier\n@T4\n@S2")
    for ks in range(7): wread(ks)
    a("s_waitcnt lgkmcnt(12)")
    wread(7)
    for g in range(8):
        a(f"s_waitcnt lgkmcnt({8 if g < 7 else 0})")
        for ks in range(4*g, 4*g + 4):
            for q in range(4): a(f"v_dot2c_f32_bf16 v{SXX}, v{WF+4*(ks&7)+q}, v{ONES}")
        if g == 2: a("s_waitcnt vmcnt(0)")
        if g % 2 == 0 and g < 6: a("s_barrier")
        if g == 2: a("ds_read_b128 v[84:87], v67")
        if g == 4: a("@S10\nds_read_b32 v66, v7")
        if g == 2: a("@S6")
        if g == 0: a("@S5")
        if g == 6: a(f"v_readfirstlane_b32 s{sEP}, v66")
        for ks in range(4*g, 4*g + 4):
            a(f"{MF32} {vr(D1,16)}, {vr(WF+4*(ks&7),4)}, {vr(XF+4*ks,4)}, {'0' if ks == 0 else vr(D1,16)}")
            if ks + 8 < 32: wread(ks + 8)
            if ks == 16: rowstat(a, 84, 8, 9)
            if ks == 17: split_ab(a, 8, 88, "m"); a(f"v_mul_f32 v10, {hex(f2u(QSCALE))}, v9")
            if ks == 29: a("s_nop 0"); split_ab(a, SXX, 248, "c")
    a(f"""
    {MF32} {vr(D1,16)}, v[248:251], v[88:91], {vr(D1,16)}
    v_mov_b32 v35, v66
    v_mov_b32 v39, v66
    v_mov_b32 v43, v66
    v_lshrrev_b32 v44, 3, v5
    v_lshlrev_b32 v44, 12, v44
    v_and_b32 v11, 7, v5
    v_lshl_add_u32 v44, v11, 4, v44
    v_lshl_add_u32 v44, v6, 8, v44
    s_sub_u32 s61, s60, {WS_Q}
    s_lshr_b32 s61, s61, 1
    s_add_u32 s61, s61, {WS_QB}
    s_nop 0
    """)
    dst = [32, 33, 34, 36, 40, 41, 42, 37]
    for r in range(8):
        a(f"v_mul_f32 v{D1+2*r}, v10, v{D1+2*r}\nv_mul_f32 v{D1+2*r+1}, v10, v{D1+2*r+1}\nv_cvt_pk_bf16_f32 v{dst[r]}, v{D1+2*r}, v{D1+2*r+1}")
        if r == 2: a(f"buffer_store_dwordx4 v[32:35], v64, s[{WS}:{WS+3}], s60 offen {QSC}")
        if r == 6: a(f"buffer_store_dwordx4 v[40:43], v64, s[{WS}:{WS+3}], s60 offen offset:128 {QSC}")
    a(f"""
    buffer_store_dwordx4 v[36:39], v44, s[{WS}:{WS+3}], s61 offen {QSC}
    @T5
    @S1
    """)
def k1_cold(a):
    DBG = 28
    a(f"""
    L1_tag:
    s_mov_b32 s47, 0
    L1_tagl:
    buffer_load_dword v66, v94, s[{DBG}:{DBG+3}], 0 offen sc1
    s_add_u32 s47, s47, 1
    s_waitcnt vmcnt(0)
    v_readfirstlane_b32 s{sEP}, v66
    s_cmp_gt_u32 s47, 0x40000
    s_cbranch_scc1 L1_tagx
    s_cmp_eq_u32 s{sEP}, 0
    s_cbranch_scc1 L1_tagl
    L1_tagx:
    s_cmp_eq_u32 s46, 0
    s_cbranch_scc1 L1_tagok1
    s_branch L1_tagok0
    """)
KV_BYTES = 64 * TILE
OB = KV_BYTES
RED = OB + 8 * 1040
PART = RED + 1024
CNT = PART + 16384
K2_LDS = CNT + 64
FW = 0
FR = 32768
SMF = "v_smfmac_f32_32x32x32_bf16"
SM16 = "v_smfmac_f32_16x16x64_bf16"
LOG2E = 1.4426950408889634
KMAP = '--nokmap' not in sys.argv
KSLEEP = ''
for _x in sys.argv:
    if _x.startswith('--ksleep='): KSLEEP = 's_sleep ' + _x.split('=')[1]
OSC = 'sc0 sc1' if '--osc' in sys.argv else 'nt' if '--ont' in sys.argv else ''
SLEEP = 's_nop 0'
for _x in sys.argv:
    if _x.startswith('--sleep='): SLEEP = 's_sleep ' + _x.split('=')[1]
def k2(a):
    X, WR_, OUT, WS, FA, FB = 16, 20, 24, 28, 32, 36
    sW, sN, sG = 40, 43, 41
    Q, C, KF, VF, S, O = 8, 12, 28, 36, 52, 84
    IDX, KA, VA, LN16, XO, WRO, M, VA0 = 100, 101, 102, 103, 104, 105, 106, 107
    WO = 108; XRES, WRV, FWR = 236, 240, 244
    BAR_TILE = 10
    X_ = [x for x in sys.argv if x.startswith("--x")]
    a(f"""
    L2_start:
    s_setprio 0
    s_load_dwordx8 s[52:59], s[0:1], 48
    s_load_dwordx2 s[8:9], s[0:1], 80
    v_lshlrev_b32 v{LN16}, 4, v2
    v_and_b32 v5, 31, v2
    v_lshrrev_b32 v6, 5, v2
    s_lshl_b32 s{sG}, s41, 3
    s_add_u32 s{sG}, s{sG}, s42
    s_lshl_b32 s44, s{sG}, 13
    s_lshl_b32 s45, s{sW}, 10
    s_add_u32 s46, s44, s45
    s_add_u32 s47, s45, {WS_KV}
    s_lshl_b32 s50, s{sW}, 16
    s_add_u32 s51, s50, {WS_WO}
    s_and_b32 s48, s{sW}, 4
    s_lshl_b32 s48, s48, 13
    s_add_u32 s50, s51, s48
    """)
    srd(a, WS, 14, WS_SIZE)
    def dma(i):
        return [f"s_add_u32 m0, s45, {i*8192}", f"s_add_u32 s48, s47, {i*8192}", f"buffer_load_dwordx4 v{LN16}, s[{WS}:{WS+3}], s48 offen sc1 lds"]
    a("s_waitcnt lgkmcnt(0)")
    srd(a, X, 4, 2 << 20); srd(a, WR_, 52, 1024); srd(a, OUT, 8, 2 << 20)
    a(f"""
    v_lshlrev_b32 v3, 8, v6
    v_lshl_add_u32 v3, v5, 4, v3
    v_and_b32 v4, 27, v5
    v_cmp_eq_u32 vcc, 16, v4
    v_mov_b32 v4, 528
    v_mov_b32 v7, 512
    v_cndmask_b32 v4, v4, v7, vcc
    v_cmp_gt_u32 vcc, 16, v5
    v_mov_b32 v{KA}, v{LN16}
    v_mov_b32 v{IDX}, 0xdddddddd
    v_cndmask_b32 v3, v4, v3, vcc
    v_add_u32 v{VA0}, 1024, v3
    v_mov_b32 v{VA}, v{VA0}
    v_and_b32 v3, 12, v2
    v_lshlrev_b32 v3, 2, v3
    v_lshl_add_u32 v3, v6, 6, v3
    s_lshl_b32 s49, s{sW}, 7
    v_add_u32 v{WRO}, s49, v3
    v_and_b32 v4, 16, v2
    v_lshlrev_b32 v4, 8, v4
    v_and_b32 v3, 15, v2
    v_lshl_add_u32 v0, v3, 2, v4
    v_lshl_add_u32 v0, v6, 6, v0
    v_add_u32 v0, s49, v0
    v_and_b32 v3, 3, v2
    v_lshl_add_u32 v4, v3, 10, v4
    v_add_u32 v{XO}, v4, v{WRO}
    s_and_b32 s48, s2, 7
    s_lshr_b32 s49, s2, 3
    s_mul_i32 s64, s48, 22
    s_add_u32 s64, s64, s49
    s_lshl_b32 s48, s48, 3
    s_add_u32 s48, s48, s49
    s_sub_u32 s61, s48, 22
    s_and_b32 s61, s61, 63
    s_lshl_b32 s61, s61, 4
    s_min_u32 s48, s64, 171
    s_lshl_b32 s48, s48, 4
    s_mul_i32 s49, s{sW}, {64*2752}
    s_add_u32 s48, s48, s49
    s_lshl_b32 s49, s{sW}, 16
    s_add_u32 s49, s49, s61
    s_add_u32 s66, s49, {512*1024}
    s_add_u32 s67, s49, {1024*1024}
    s_movk_i32 s60, 2752
    s_cmp_ge_u32 s2, 176
    s_cselect_b32 s65, s49, s48
    s_cselect_b32 s66, s66, s48
    s_cselect_b32 s67, s67, 0x200000
    s_cselect_b32 s60, 0x400, s60
    s_cselect_b32 s54, s58, s54
    s_cselect_b32 s55, s59, s55
    s_cselect_b32 s56, s58, s56
    s_cselect_b32 s57, s59, s57
    v_mul_u32_u24 v1, s60, v2
    """)
    srd(a, FA, 54, 512*2752); srd(a, FB, 56, 512*2752)
    a(f"""
    s_mov_b32 s60, {16*8192}
    s_cmp_lt_u32 s{sW}, 4
    s_cselect_b32 s60, s60, {WS_SIZE}
    v_mov_b32 v3, {CNT}
    """)
    for r in range(16): a(f"v_mov_b32 v{O+r}, 0")
    a(f"""
    ds_write_b32 v3, v{O}
    ds_write_b128 v3, {vr(O,4)} offset:16
    s_lshr_b32 s12, s46, 1
    s_add_u32 s12, s12, {WS_QB}
    s_add_u32 s46, s46, {WS_Q}
    v_lshrrev_b32 v7, 4, v2
    v_lshlrev_b32 v7, 7, v7
    v_and_b32 v4, 7, v2
    v_lshl_add_u32 v7, v4, 4, v7
    s_cmp_lt_u32 s{sW}, 4
    s_cbranch_scc1 L2_noflag
    s_sub_u32 s13, s{sW}, 4
    """)
    if "--fw1" not in sys.argv:
        a(f"""
        s_lshl_b32 s48, s13, {FSH + 6}
        s_add_u32 s48, s48, {WS_FLG}
        v_lshlrev_b32 v3, {FSH}, v2
        s_mov_b32 s49, 0
        L2_fpoll:
        buffer_load_dword v4, v3, s[{WS}:{WS+3}], s48 offen sc1
        s_add_u32 s49, s49, 1
        s_waitcnt vmcnt(0)
        v_cmp_ne_u32 vcc, s{sEP}, v4
        s_cmp_gt_u32 s49, 0x40000
        s_cbranch_scc1 L2_fgot
        s_and_b64 exec, exec, vcc
        s_cbranch_scc1 L2_fpoll
        L2_fgot:
        s_mov_b64 exec, 1
        v_mov_b32 v3, {K1_EP + 8}
        v_mov_b32 v4, 1
        ds_add_u32 v3, v4
        """)
    else:
        a(f"""
        s_cmp_lg_u32 s{sW}, 5
        s_cbranch_scc1 L2_fwait
        s_mov_b32 s48, {WS_FLG}
        v_lshlrev_b32 v3, {KSH + 2}, v2
        s_mov_b32 s49, 0
        L2_fpoll:
        """)
        for q in range(4): a(f"buffer_load_dword v{S+q}, v3, s[{WS}:{WS+3}], s48 offen offset:{q << KSH} sc1")
        a(f"""
        s_add_u32 s49, s49, 1
        s_waitcnt vmcnt(0)
        v_xor_b32 v{S}, s{sEP}, v{S}
        v_xor_b32 v{S+1}, s{sEP}, v{S+1}
        v_xor_b32 v{S+2}, s{sEP}, v{S+2}
        v_xor_b32 v{S+3}, s{sEP}, v{S+3}
        v_or3_b32 v4, v{S}, v{S+1}, v{S+2}
        v_or_b32 v4, v4, v{S+3}
        v_cmp_ne_u32 vcc, 0, v4
        s_cmp_gt_u32 s49, 0x40000
        s_cbranch_scc1 L2_fgot
        s_and_b64 exec, exec, vcc
        s_cbranch_scc1 L2_fpoll
        L2_fgot:
        s_mov_b64 exec, 1
        v_mov_b32 v3, {K1_EP + 8}
        v_mov_b32 v4, 4
        ds_write_b32 v3, v4
        L2_fwait:
        s_mov_b64 exec, 1
        v_mov_b32 v3, {K1_EP + 8}
        """)
    a(f"""
    L2_fspin:
    ds_read_b32 v4, v3
    s_waitcnt lgkmcnt(0)
    v_readfirstlane_b32 s49, v4
    s_cmp_lt_u32 s49, 4
    s_cbranch_scc1 L2_fspin
    s_mov_b64 exec, -1
    @S2
    s_lshl_b32 s13, s13, 10
    s_add_u32 s62, s13, {WS_KV}
    """)
    for i in range(6):
        a(f"s_add_u32 m0, s13, {i*4096}\ns_add_u32 s48, s62, {i*4096}\nbuffer_load_dwordx4 v{LN16}, s[{WS}:{WS+3}], s48 offen sc1 lds")
    a(f"""
    L2_noflag:
    {'' if '--nobarA' in sys.argv else 's_barrier'}
    @T6
    s_mov_b32 s49, 0
    L2_qpoll:
    buffer_load_dwordx4 {vr(Q,4)}, v{LN16}, s[{WS}:{WS+3}], s46 offen sc1
    buffer_load_dwordx4 {vr(S,4)}, v7, s[{WS}:{WS+3}], s12 offen sc1
    s_add_u32 s49, s49, 1
    s_waitcnt vmcnt(0)
    v_cmp_ne_u32 vcc, s{sEP}, v{Q+3}
    v_cmp_ne_u32 s[62:63], s{sEP}, v{S+3}
    s_cmp_gt_u32 s49, 0x40000
    s_cbranch_scc1 L2_qgot
    s_or_b64 exec, vcc, s[62:63]
    s_cbranch_scc1 L2_qpoll
    L2_qgot:
    s_mov_b64 exec, -1
    s_mov_b32 s62, 0xff00ff00
    s_mov_b32 s63, s62
    v_cndmask_b32 v{Q+3}, v{S}, v{S+1}, s[62:63]
    s_waitcnt lgkmcnt(0)
    s_barrier
    @S3
    ds_read_b128 {vr(KF,4)}, v{KA}
    ds_read_b128 {vr(KF+4,4)}, v{KA} offset:{TILE}
    ds_read_b128 {vr(VF,4)}, v{VA}
    ds_read_b128 {vr(VF+4,4)}, v{VA} offset:544
    s_waitcnt lgkmcnt(3)
    {MF32} {vr(S,16)}, {vr(KF,4)}, {vr(Q,4)}, 0
    s_waitcnt lgkmcnt(2)
    {MF32} {vr(S+16,16)}, {vr(KF+4,4)}, {vr(Q,4)}, 0
    s_nop 9
    v_max3_f32 v{M}, v{S}, v{S+1}, v{S+2}
    """)
    for r in range(3, 31, 2): a(f"v_max3_f32 v{M}, v{S+r}, v{S+r+1}, v{M}")
    a(f"""
    v_max_f32 v{M}, v{S+31}, v{M}
    v_mov_b32 v3, v{M}
    s_nop 1
    v_permlane32_swap_b32 v{M}, v3
    v_max_f32 v{M}, v{M}, v3
    v_sub_f32 v{C}, {hex(f2u(-SHIFT))}, v{M}
    """)
    for r in range(1, 16): a(f"v_mov_b32 v{C+r}, v{C}")
    a(f"""
    @S4
    @S13
    @T1
    s_nop 1
    {MF32} {vr(S,16)}, {vr(KF,4)}, {vr(Q,4)}, {vr(C,16)}
    s_waitcnt lgkmcnt(0)
    s_nop 10
    """)
    base = 0
    nwo = 0
    NPT = 2 if '--npt2' in sys.argv else 3
    queue = [dma(i) for i in range(3, 17)]
    queue[-1][1] = "s_add_u32 s48, s47, s60"
    ffn = [[f"buffer_load_dwordx4 {vr(FWR+4*i,4)}, v1, s[{FA if i == 0 else FB}:{(FA if i == 0 else FB)+3}], s{65+i} offen"] for i in range(3)]
    wol = [(["s_add_u32 s50, s50, 4096"] if (f and f % 4 == 0) else []) + [f"buffer_load_dwordx4 {vr(WO + 4*f, 4)}, v{LN16}, s[{WS}:{WS+3}], s50 offen offset:{(f & 3)*1024} sc1"] for f in range(32)]
    xw = [[f"buffer_load_dword v{XRES+r}, v0, s[{X}:{X+3}], s44 offen offset:{r*1024}"] for r in range(4)] + [[f"buffer_load_dwordx4 {vr(WRV,4)}, v{WRO}, s[{WR_}:{WR_+3}], 0 offen"]]
    SCH = [x.split("=")[1] for x in sys.argv if x.startswith("--sch=")]
    SCH = SCH[0] if SCH else "E"
    if SCH == "A":
        queue += wol + xw + ffn
        cnt = lambda t: 2 if t < 7 or 10 <= t <= 26 else 1 if t in (27, 29, 31) else 0
    elif SCH == "B":
        queue += wol + xw + ffn
        cnt = lambda t: 2 if t <= 23 else 1
    elif SCH == "C":
        queue += xw + wol[:4] + ffn[:1] + wol[4:5] + ffn[1:2] + wol[5:6] + ffn[2:] + wol[6:]
        cnt = lambda t: 2
    elif SCH == "D":
        queue += wol + xw + ffn
        cnt = lambda t: 2 if t <= 23 else 1 if t in (58, 60, 62) else 0
    elif SCH == "E":
        queue += wol + xw + ffn
        cnt = lambda t: 2 if t <= 24 else 1 if t in (25, 52, 56, 60) else 0
    elif SCH == "F":
        queue += wol + xw + ffn
        cnt = lambda t: 2 if t <= 23 else 1 if t in (61, 62, 63) else 0
    nissued = 0
    if '--noprio' not in sys.argv: a('s_setprio 1')
    for _x in sys.argv:
        if _x.startswith('--al='): a('.p2align 6\n' + 's_nop 0\n' * int(_x.split('=')[1]))
    if '--vmask' in sys.argv: a('s_mov_b32 s100, 0xffff\ns_mov_b32 s101, 0xffff' if DIAG else 's_mov_b32 s70, 0xffff\ns_mov_b32 s71, 0xffff')
    for t in range(64):
        cur, nxt = t & 1, (t + 1) & 1
        Sc, Sn = S + 16*cur, S + 16*nxt
        e = [f"v_exp_f32 v{Sc+i}, v{Sc+i}" for i in range(16)]
        n_ = cnt(t); side = sum(queue[:n_], []); queue = queue[n_:]
        if t == BAR_TILE: a(f"s_waitcnt vmcnt({nissued - 14})\ns_barrier")
        nissued += sum(1 for x in side if x.startswith("buffer"))
        if (t + 2 - base) * TILE + TILE > 65535:
            a(f"v_add_u32 v{KA}, {(t - base)*TILE}, v{KA}\nv_add_u32 v{VA}, {(t - base)*TILE}, v{VA}")
            base = t
        after = {i: [] for i in range(16)}
        side = [x for x in side if x]
        grp, curg = [], []
        for x in side:
            curg.append(x)
            if x.startswith("buffer"): grp.append(curg); curg = []
        if t > 0: after[1].append(f"{SMF} {vr(O,16)}, {vr(VF+8*nxt+4,4)}, {vr(Sn+8,8)}, v{IDX}")
        va = f"ds_read_b128 {vr(VF+8*nxt,4)}, v{VA} offset:{(t+1-base)*TILE}"
        vb = f"ds_read_b128 {vr(VF+8*nxt+4,4)}, v{VA} offset:{(t+1-base)*TILE+544}"
        VM = "--vmask" in sys.argv and t >= 1
        VQ = "--vq1" in sys.argv
        if t < 63:
            if VM: after[1] += ["s_mov_b64 exec, s[70:71]" if not DIAG else "s_mov_b64 exec, s[100:101]", va, vb, "s_mov_b64 exec, -1"]
            elif VQ: after[1] += [va, vb]
            else: after[1].append(va)
            after[5].append(f"{MF32} {vr(Sn,16)}, {vr(KF+4*nxt,4)}, {vr(Q,4)}, {vr(C,16)}")
        if t < 62: after[5].append(f"ds_read_b128 {vr(KF+4*cur,4)}, v{KA} offset:{(t+2-base)*TILE}")
        after[11].append(f"{SMF} {vr(O,16)}, {vr(VF+8*cur,4)}, {vr(Sc,8)}, v{IDX}")
        after[11].append("s_waitcnt lgkmcnt(0)")
        if t < 63 and not VM and not VQ: after[11].append(vb)
        for g, slot in zip(grp, (1, 5, 11) if len(grp) == 3 else (5, 11)): after[slot] += g
        assert len(grp) <= 3
        for i in range(16):
            a(e[i])
            for x in after[i]: a(x)
    a(f"""
    @S8
    @S14
    s_nop 1
    {SMF} {vr(O,16)}, {vr(VF+12,4)}, {vr(S+24,8)}, v{IDX}
    s_mov_b32 s48, {hex(f2u(2.0**110))}
    s_mov_b32 s12, {hex(f2u(2.0**-104))}
    v_and_b32 v4, 7, v5
    v_mul_u32_u24 v4, 1040, v4
    v_lshrrev_b32 v7, 3, v5
    v_lshl_add_u32 v4, v7, 5, v4
    v_lshl_add_u32 v4, v6, 3, v4
    s_lshl_b32 s49, s{sW}, 7
    s_add_u32 s49, s49, {OB}
    v_add_u32 v4, s49, v4
    v_and_b32 v1, 7, v2
    v_mul_u32_u24 v0, 1040, v1
    v_lshrrev_b32 v7, 4, v2
    v_mul_f32 v3, 0, v{O}
    """)
    for r in range(1, 8): a(f"v_fma_f32 v3, v{O+r}, 0, v3")
    a(f"""
    v_add_f32 v3, v3, v{O+8}
    v_cmp_ngt_f32 vcc, s48, v3
    v_cmp_gt_f32 s[62:63], s12, v3
    v_rcp_f32 v3, v{O+8}
    s_or_b64 vcc, vcc, s[62:63]
    s_cbranch_scc1 L2_slow
    L2_epi:
    """)
    for r in range(8): a(f"v_mul_f32 v{O+r}, v3, v{O+r}")
    for r in range(4): a(f"v_cvt_pk_bf16_f32 v{O+r}, v{O+2*r}, v{O+2*r+1}")
    BA, PA = 101, 102
    a(f"""
    ds_write_b64 v4, {vr(O,2)}
    ds_write_b64 v4, {vr(O+2,2)} offset:16
    v_lshl_add_u32 v{BA}, v7, 5, v0
    v_and_b32 v3, 8, v2
    v_lshl_add_u32 v{BA}, v3, 1, v{BA}
    v_add_u32 v{BA}, {OB}, v{BA}
    v_cmp_ne_u32 vcc, 0, v3
    v_mov_b32 v{IDX}, 0x4444
    v_mov_b32 v3, 0xeeee
    s_and_b32 s49, s{sW}, 3
    s_lshl_b32 s49, s49, 12
    s_add_u32 s49, s49, {PART}
    v_add_u32 v{PA}, s49, v{LN16}
    v_cndmask_b32 v{IDX}, v{IDX}, v3, vcc
    s_waitcnt vmcnt(3)
    s_cmp_lt_u32 s{sW}, 4
    {'' if '--xnoold' in X_ else 's_cbranch_scc1 L2_old'}
    L2_join:
    @S7
    """)
    if "--tsync" in sys.argv:
        a(f"""
        s_mul_i32 s90, s2, 37
        s_and_b32 s90, s90, 63
        s_mul_i32 s90, s90, 80
        s_lshr_b32 s90, s90, 6
        s_add_u32 s90, s90, 4000
        s_mov_b32 s91, 0
        LT_spin:
        s_memrealtime s[92:93]
        s_waitcnt lgkmcnt(0)
        s_sub_u32 s92, s92, s{sEP}
        s_add_u32 s91, s91, 1
        s_cmp_gt_u32 s91, 100000
        s_cbranch_scc1 LT_done
        s_cmp_lt_u32 s92, s90
        s_cbranch_scc1 LT_spin
        LT_done:
        """)
    a(f"""
    """)
    HF, T, WF8, TOK = 60, 68, 52, 106
    ACC = O
    BF = [Q, 28, 32, 36]
    for j in range(4):
        a(f"v_lshlrev_b32 v{HF+2*j}, 16, v{XRES+j}\nv_and_b32 v{HF+2*j+1}, 0xffff0000, v{XRES+j}")
        a(f"v_lshlrev_b32 v{WF8+2*j}, 16, v{WRV+j}\nv_and_b32 v{WF8+2*j+1}, 0xffff0000, v{WRV+j}")
    a(f"v_add_f32 v{T+3}, v{WF8}, v{WF8+1}")
    for j in range(2, 8): a(f"v_add_f32 v{T+3}, v{T+3}, v{WF8+j}")
    a(f"""
    v_mov_b32 v7, 0x3f803f80
    v_lshrrev_b32 v{TOK}, 10, v{XO}
    v_lshlrev_b32 v4, 5, v{TOK}
    v_add_u32 v4, {RED}, v4
    v_lshrrev_b32 v3, 5, v2
    v_lshl_add_u32 v3, v3, 9, v4
    s_lshl_b32 s49, s{sW}, 2
    v_add_u32 v3, s49, v3
    v_add_u32 v0, s45, v{LN16}
    s_add_u32 s49, s44, {WS_H}
    s_cmp_ge_u32 s{sW}, 4
    s_cselect_b64 s[62:63], -1, 0
    s_waitcnt lgkmcnt(0)
    s_barrier
    @S9
    @T2
    s_mov_b64 exec, s[62:63]
    """)
    for i in range(4): a(f"ds_read_b128 {vr(ACC+4*i,4)}, v{PA} offset:{1024*i}")
    a("s_mov_b64 exec, -1")
    for s_ in range(4): a(f"ds_read_b128 {vr(BF[s_],4)}, v{BA} offset:{(s_+4)*128}")
    for s_ in range(4):
        a(f"s_waitcnt lgkmcnt({3 - s_})")
        for i in range(4):
            a(f"{SM16} {vr(ACC+4*i,4)}, {vr(BF[s_],4)}, {vr(WO+32*s_+8*i,8)}, v{IDX}")
    a("s_waitcnt vmcnt(0)")
    for i in range(3): a(f"ds_write_b128 v0, {vr(FWR+4*i,4)} offset:{FW + i*8192}")
    A8, HB = 40, 48
    a("s_mov_b32 vcc_lo, 0x55555555\ns_mov_b32 vcc_hi, 0x55555555\ns_nop 1")
    for p in range(2):
        for r in range(4): a(f"v_permlane32_swap_b32 v{ACC+8*p+r}, v{ACC+8*p+4+r}")
    for r in range(4):
        for p in range(2): a(f"v_add_f32 v{HF+2*r+p}, v{HF+2*r+p}, v{ACC+8*p+r}")
    for r in range(4):
        for p in range(2): a(f"v_add_f32 v{HF+2*r+p}, v{HF+2*r+p}, v{ACC+8*p+4+r}")
    for r in range(4): a(f"v_cvt_pk_bf16_f32 v{A8+r}, v{HF+2*r}, v{HF+2*r+1}")
    X1, X2 = "quad_perm:[1,0,3,2] row_mask:0xf bank_mask:0xf", "quad_perm:[2,3,0,1] row_mask:0xf bank_mask:0xf"
    N = A8 + 4
    a(f"""
    s_nop 0
    v_cndmask_b32_dpp v{N}, v{A8+1}, v{A8}, vcc {X1}
    v_cndmask_b32_dpp v{N+2}, v{A8+3}, v{A8+2}, vcc {X1}
    s_not_b64 vcc, vcc
    v_cndmask_b32_dpp v{N+1}, v{A8}, v{A8+1}, vcc {X1}
    v_cndmask_b32_dpp v{N+3}, v{A8+2}, v{A8+3}, vcc {X1}
    s_mov_b32 vcc_lo, 0x33333333
    s_mov_b32 vcc_hi, 0x33333333
    v_cndmask_b32_dpp v{HB}, v{N+2}, v{N}, vcc {X2}
    v_cndmask_b32_dpp v{HB+1}, v{N+3}, v{N+1}, vcc {X2}
    s_not_b64 vcc, vcc
    v_cndmask_b32_dpp v{HB+2}, v{N}, v{N+2}, vcc {X2}
    v_cndmask_b32_dpp v{HB+3}, v{N+1}, v{N+3}, vcc {X2}
    buffer_store_dwordx4 {vr(HB,4)}, v{XO}, s[{WS}:{WS+3}], s49 offen sc0 sc1
    """)
    for j in range(4): a(f"v_lshlrev_b32 v{HF+2*j}, 16, v{HB+j}\nv_and_b32 v{HF+2*j+1}, 0xffff0000, v{HB+j}")
    a(f"v_add_f32 v{T}, v{HF}, v{HF+1}\nv_mul_f32 v{T+1}, v{HF}, v{HF}\nv_mul_f32 v{T+2}, v{HF}, v{WF8}")
    for j in range(1, 8):
        if j > 1: a(f"v_add_f32 v{T}, v{T}, v{HF+j}")
        a(f"v_fmac_f32 v{T+1}, v{HF+j}, v{HF+j}\nv_fmac_f32 v{T+2}, v{HF+j}, v{WF8+j}")
    a(f"""
    s_nop 0
    v_permlane32_swap_b32 v{T}, v{T+1}
    v_permlane32_swap_b32 v{T+2}, v{T+3}
    v_add_f32 v{T}, v{T}, v{T+1}
    v_add_f32 v{T+2}, v{T+2}, v{T+3}
    s_nop 0
    v_add_f32_dpp v{T}, v{T}, v{T} row_ror:8 row_mask:0xf bank_mask:0xf
    v_add_f32_dpp v{T+2}, v{T+2}, v{T+2} row_ror:8 row_mask:0xf bank_mask:0xf
    s_nop 0
    v_add_f32_dpp v{T}, v{T}, v{T} row_ror:4 row_mask:0xf bank_mask:0xf
    v_add_f32_dpp v{T+2}, v{T+2}, v{T+2} row_ror:4 row_mask:0xf bank_mask:0xf
    ds_write_b32 v3, v{T}
    ds_write_b32 v3, v{T+2} offset:256
    """)
    KR = 128
    def kloads():
        if KMAP:
            for q in range(4): a(f"buffer_load_dwordx2 {vr(KR+2*q,2)}, v8, s[{WS}:{WS+3}], s{56+q} offen sc1")
        else:
            for q in range(4): a(f"buffer_load_dwordx2 {vr(KR+2*q,2)}, v8, s[{WS}:{WS+3}], s48 offen offset:{q << KSH} sc1")
    a(f"""
    s_waitcnt lgkmcnt(0)
    s_barrier
    @S11
    """)
    R_ = 108
    for q in (0, 2, 1, 3):
        a(f"ds_read_b128 {vr(R_+8*q,4)}, v4 offset:{q*256}\nds_read_b128 {vr(R_+8*q+4,4)}, v4 offset:{q*256+16}")
    def sum8(b):
        a(f"""
        v_add_f32 v{b}, v{b}, v{b+1}
        v_add_f32 v{b+2}, v{b+2}, v{b+3}
        v_add_f32 v{b+4}, v{b+4}, v{b+5}
        v_add_f32 v{b+6}, v{b+6}, v{b+7}
        v_add_f32 v{b}, v{b}, v{b+2}
        v_add_f32 v{b+4}, v{b+4}, v{b+6}
        v_add_f32 v{b}, v{b}, v{b+4}
        """)
    s1, s3, s2, s4 = R_, R_+8, R_+16, R_+24
    ST = 76
    OV = 80
    a("s_waitcnt lgkmcnt(4)")
    sum8(s1); sum8(s2)
    a(f"""
    v_mul_f32 v{ST}, {hex(f2u(1.0/512))}, v{s1}
    v_mul_f32 v{s2}, {hex(f2u(1.0/512))}, v{s2}
    v_fma_f32 v{s2}, -v{ST}, v{ST}, v{s2}
    v_max_f32 v{s2}, 0, v{s2}
    v_add_f32 v{s2}, {hex(f2u(EPS))}, v{s2}
    v_rsq_f32 v{ST+1}, v{s2}
    s_cmp_lg_u32 s{sW}, 0
    s_cbranch_scc1 L2_nokey
    s_waitcnt lgkmcnt(0)
    """)
    sum8(s3); sum8(s4)
    AF, BFR, STT, D, D2 = 140, 12, 204, 208, 212
    breg = lambda q: 12 + 4*q if q < 7 else 216 + 4*(q - 7)
    a(f"""
    v_fma_f32 v{s3}, -v{ST}, v{s4}, v{s3}
    s_lshl_b32 s48, s{sG}, 3
    v_add_u32 v4, s48, v{TOK}
    v_mul_f32 v{ST+2}, v{ST+1}, v{s3}
    v_mov_b32 v{ST+3}, s{sEP}
    v_lshlrev_b32 v0, 4, v4
    s_mov_b32 s48, {WS_ST}
    s_mov_b64 exec, 0x000f000f
    buffer_store_dwordx4 {vr(ST,4)}, v0, s[{WS}:{WS+3}], s48 offen sc0 sc1
    s_mov_b64 exec, -1
    v_ashrrev_i32 v3, 31, v{ST+2}
    v_or_b32 v3, 0x80000000, v3
    v_xor_b32 v3, v3, v{ST+2}
    v_and_b32 v3, 0xfffff800, v3
    v_sub_u32 v4, 2047, v4
    v_or_b32 v4, v3, v4
    s_lshl_b32 s48, s2, {KSH}
    s_add_u32 s48, s48, {WS_KEY}
    v_mov_b32_dpp v6, v4 quad_perm:[1,0,3,2] row_mask:0xf bank_mask:0xf
    v_mov_b32 v0, 0
    v_min_u32 v5, v4, v6
    v_max_u32 v4, v4, v6
    """)
    a(f"""
    s_nop 0
    v_mov_b32_dpp v3, v5 quad_perm:[2,3,0,1] row_mask:0xf bank_mask:0xf
    v_mov_b32_dpp v6, v4 quad_perm:[2,3,0,1] row_mask:0xf bank_mask:0xf
    v_max_u32 v5, v5, v3
    v_med3_u32 v5, v4, v5, v6
    v_max_u32 v4, v4, v6
    v_mov_b32 v3, v5
    v_mov_b32 v6, v4
    s_nop 0
    v_permlane16_swap_b32 v5, v3
    v_permlane16_swap_b32 v4, v6
    v_max_u32 v5, v5, v3
    v_med3_u32 v5, v4, v5, v6
    v_max_u32 v4, v4, v6
    """)
    a(f"""
    s_waitcnt vmcnt(1)
    s_barrier
    s_mov_b64 exec, 1
    buffer_store_dwordx2 v[4:5], v0, s[{WS}:{WS+3}], s48 offen sc0 sc1
    s_mov_b64 exec, -1
    @S5
    """)
    def outval():
        a(f"v_add_f32 v3, 1.0, v{ST+1}\nv_mul_f32 v6, v{ST}, v{ST+1}")
        for j in range(8): a(f"v_fma_f32 v{A8+j}, v{HF+j}, v3, -v6")
        for j in range(4): a(f"v_cvt_pk_bf16_f32 v{OV+j}, v{A8+2*j}, v{A8+2*j+1}")
    a(f"v_lshlrev_b32 v8, {KSH + (0 if KMAP else 2)}, v2\ns_mov_b32 s48, {WS_KEY}")
    if KMAP:
        for q in range(4): a(f"s_mov_b32 s{56+q}, {WS_KEY + (64*q << KSH)}")
    if "--knoack" in sys.argv: kloads()
    ROWS = 40960
    a(f"""
    v_and_b32 v9, 15, v2
    v_lshrrev_b32 v11, 4, v2
    v_lshrrev_b32 v10, 2, v9
    v_lshl_add_u32 v10, v11, 7, v10
    v_lshlrev_b32 v10, 4, v10
    v_and_b32 v0, 1, v9
    v_lshl_add_u32 v10, v0, 3, v10
    v_and_b32 v3, 2, v9
    v_lshl_add_u32 v10, v3, 12, v10
    """)
    for q in range(7): a(f"ds_read_b64_tr_b16 {vr(AF+4*q,2)}, v10 offset:{FW + q*128}\nds_read_b64_tr_b16 {vr(AF+4*q+2,2)}, v10 offset:{FW + q*128 + 64}")
    outval()
    a("s_waitcnt lgkmcnt(0)")
    for q in range(7, 14): a(f"ds_read_b64_tr_b16 {vr(AF+4*q,2)}, v10 offset:{FW + q*128}\nds_read_b64_tr_b16 {vr(AF+4*q+2,2)}, v10 offset:{FW + q*128 + 64}")
    a(f"v_mov_b32 v252, v7\nv_mov_b32 v253, v7\nv_mov_b32 v254, v7\nv_mov_b32 v255, v7\ns_waitcnt lgkmcnt(4)")
    for q in range(14, 16): a(f"ds_read_b64_tr_b16 {vr(AF+4*q,2)}, v10 offset:{FW + q*128}\nds_read_b64_tr_b16 {vr(AF+4*q+2,2)}, v10 offset:{FW + q*128 + 64}")
    if "--knoack" not in sys.argv: a("s_waitcnt vmcnt(0)"); kloads()
    a(f"""
    v_cmp_eq_u32 s[10:11], 1, v0
    v_mul_u32_u24 v10, 1040, v0
    v_lshl_add_u32 v10, v11, 8, v10
    v_lshlrev_b32 v{R_}, 4, v0
    v_lshl_add_u32 v{R_}, v11, 3, v{R_}
    s_mov_b32 s49, 0
    s_mov_b32 s46, 0
    s_mov_b32 s47, 0
    s_mov_b32 s51, {WS_ST}
    s_waitcnt lgkmcnt(0)
    """)
    for q in range(16): a(f"{MF16} {vr(D2,4)}, {vr(AF+4*q,4)}, v[252:255], {'0' if q == 0 else vr(D2,4)}")
    a(f"""
    L2_kpoll:
    s_waitcnt vmcnt(0)
    v_min_u32 v0, v{KR}, v{KR+2}
    v_min3_u32 v0, v{KR+4}, v{KR+6}, v0
    v_cmp_eq_u32 s[62:63], 0, v0
    s_add_u32 s49, s49, 1
    s_cmp_gt_u32 s49, 0x40000
    s_cselect_b64 s[62:63], 0, s[62:63]
    v_max_u32 v4, v{KR}, v{KR+2}
    v_min_u32 v5, v{KR}, v{KR+2}
    v_max3_u32 v5, v5, v{KR+1}, v{KR+3}
    v_med3_u32 v5, v4, v5, v{KR+4}
    v_max_u32 v4, v4, v{KR+4}
    v_med3_u32 v5, v4, v5, v{KR+6}
    v_max_u32 v4, v4, v{KR+6}
    v_max3_u32 v5, v5, v{KR+5}, v{KR+7}
    s_mov_b64 exec, s[62:63]
    s_cbranch_execz L2_klast
    """)
    kloads()
    a("L2_klast:\ns_mov_b64 exec, -1")
    for dpp in ("quad_perm:[1,0,3,2]", "quad_perm:[2,3,0,1]", "row_half_mirror", "row_mirror"):
        a(f"""
        v_mov_b32_dpp v3, v5 {dpp} row_mask:0xf bank_mask:0xf
        v_mov_b32_dpp v6, v4 {dpp} row_mask:0xf bank_mask:0xf
        v_max_u32 v5, v5, v3
        v_med3_u32 v5, v4, v5, v6
        v_max_u32 v4, v4, v6
        s_nop 0
        """)
    for sw in ("v_permlane16_swap_b32", "v_permlane32_swap_b32"):
        a(f"""
        v_mov_b32 v3, v5
        v_mov_b32 v6, v4
        s_nop 0
        {sw} v5, v3
        {sw} v4, v6
        v_max_u32 v5, v5, v3
        v_med3_u32 v5, v4, v5, v6
        v_max_u32 v4, v4, v6
        """)
    a(f"""
    v_readfirstlane_b32 s53, v5
    v_readfirstlane_b32 s52, v4
    v_cndmask_b32 v3, v4, v5, s[10:11]
    v_not_b32 v3, v3
    s_cmp_eq_u64 s[52:53], s[46:47]
    s_cbranch_scc1 L2_ksame
    s_mov_b64 s[46:47], s[52:53]
    s_cmp_ge_u32 s2, 176
    s_cbranch_scc1 L2_ksame
    s_andn2_b32 s54, 0x7ff, s52
    s_andn2_b32 s55, 0x7ff, s53
    s_lshl_b32 s54, s54, 10
    s_lshl_b32 s55, s55, 10
    s_add_u32 s54, s54, {WS_H}
    s_add_u32 s55, s55, {WS_H}
    s_mov_b32 m0, {ROWS}
    v_and_b32 v3, 0x7ff, v3
    buffer_load_dwordx4 v{LN16}, s[{WS}:{WS+3}], s54 offen sc1 lds
    s_mov_b32 m0, {ROWS + 1040}
    v_lshlrev_b32 v9, 4, v3
    buffer_load_dwordx4 v{LN16}, s[{WS}:{WS+3}], s55 offen sc1 lds
    buffer_load_dwordx4 {vr(STT,4)}, v9, s[{WS}:{WS+3}], s51 offen sc1
    L2_ksame:
    s_cmp_lg_u64 s[62:63], 0
    s_cbranch_scc1 L2_kpoll
    @S6
    v_mov_b32 v0, {CNT + 16}
    ds_write_b64 v0, v[4:5]
    s_cmp_ge_u32 s2, 176
    s_cbranch_scc1 L2_bc
    s_cmp_ge_u32 s64, 172
    s_cselect_b32 s48, 0x100000, s64
    s_lshl_b32 s48, s48, {ASH}
    s_add_u32 s48, s48, {WS_ACT}
    s_waitcnt vmcnt(1)
    """)
    for q in range(12): a(f"ds_read_b128 {vr(breg(q),4)}, v10 offset:{ROWS + q*16}")
    for q in range(16):
        a(f"s_waitcnt lgkmcnt({min(11, 15 - q)})")
        a(f"{MF16} {vr(D,4)}, {vr(AF+4*q,4)}, {vr(breg(q),4)}, {'0' if q == 0 else vr(D,4)}")
        if q < 4: a(f"ds_read_b128 {vr(breg(q+12),4)}, v10 offset:{ROWS + (q+12)*16}")
    E = R_ + 8
    a(f"""
    L2_stw:
    s_waitcnt vmcnt(0)
    v_cmp_ne_u32 vcc, s{sEP}, v{STT+3}
    s_nop 2
    s_cbranch_vccnz L2_stre
    L2_stok:
    s_nop 1
    """)
    for r in range(4): a(f"v_fma_f32 v{D+r}, -v{STT}, v{D2+r}, v{D+r}")
    for r in range(4): a(f"v_mul_f32 v{D+r}, v{D+r}, v{STT+1}")
    for r in range(4): a(f"v_mov_b32 v{E+4+r}, v{D+r}")
    for r in range(4): a(f"v_mul_f32 v{E+r}, {hex(f2u(-LOG2E))}, v{D+r}")
    for r in range(4): a(f"v_exp_f32 v{E+r}, v{E+r}")
    for r in range(4): a(f"v_permlane32_swap_b32 v{D+r}, v{E+4+r}")
    for r in range(4): a(f"v_add_f32 v{E+r}, 1.0, v{E+r}")
    for r in range(4): a(f"v_rcp_f32 v{E+r}, v{E+r}")
    for r in range(4): a(f"v_mul_f32 v{D+r}, v{D+r}, v{E+4+r}")
    for r in range(4): a(f"v_mul_f32 v{D+r}, v{D+r}, v{E+r}")
    a(f"""
    v_cvt_pk_bf16_f32 v{R_+2}, v{D}, v{D+1}
    v_cvt_pk_bf16_f32 v{R_+3}, v{D+2}, v{D+3}
    s_mov_b64 exec, 0x00030003
    buffer_store_dwordx2 {vr(R_+2,2)}, v{R_}, s[{WS}:{WS+3}], s48 offen sc0 sc1
    s_mov_b64 exec, -1
    @S10
    s_branch L2_bc
    L2_stre:
    s_add_u32 s49, s49, 1
    s_cmp_gt_u32 s49, 0x40000
    s_cbranch_scc1 L2_stok
    buffer_load_dwordx4 {vr(STT,4)}, v9, s[{WS}:{WS+3}], s51 offen sc1
    s_branch L2_stw
    L2_nokey:
    """)
    outval()
    a("s_waitcnt vmcnt(0)\ns_barrier")
    BFR = 164
    a(f"""
    L2_bc:
    v_and_b32 v9, 15, v2
    v_lshrrev_b32 v10, 2, v9
    v_lshrrev_b32 v11, 4, v2
    v_lshl_add_u32 v10, v11, 3, v10
    v_lshlrev_b32 v10, 4, v10
    v_and_b32 v8, 1, v9
    v_lshl_add_u32 v10, v8, 3, v10
    s_mul_i32 s49, s45, 3
    v_add_u32 v10, s49, v10
    """)
    for s_ in range(6):
        a(f"ds_read_b64_tr_b16 {vr(AF+4*s_,2)}, v10 offset:{FW + s_*512}\nds_read_b64_tr_b16 {vr(AF+4*s_+2,2)}, v10 offset:{FW + s_*512 + 64}")
    a(f"""
    v_mov_b32 v0, {CNT + 16}
    s_lshl_b32 s48, s{sG}, 3
    v_add_u32 v8, s48, v{TOK}
    s_waitcnt lgkmcnt(0)
    s_barrier
    ds_read_b64 v[4:5], v0
    s_waitcnt lgkmcnt(0)
    v_not_b32 v4, v4
    v_not_b32 v5, v5
    v_and_b32 v4, 0x7ff, v4
    v_and_b32 v5, 0x7ff, v5
    v_cmp_ne_u32 vcc, v4, v8
    v_cmp_ne_u32 s[62:63], v5, v8
    s_and_b64 exec, vcc, s[62:63]
    buffer_store_dwordx4 {vr(OV,4)}, v{XO}, s[{OUT}:{OUT+3}], s44 offen {OSC}
    s_mov_b64 exec, -1
    s_sub_u32 s48, s2, 176
    s_cmp_lt_u32 s48, 64
    s_cbranch_scc1 L2_st2
    L2_fin:
    @D0 15 {WS} {sW}
    s_endpgm
    """)
    a("L2_st2:")
    a(f"""
    v_and_b32 v6, 8, v2
    v_cmp_ne_u32 vcc, 0, v6
    s_mov_b32 s48, {WS_H}
    s_mov_b32 s51, {WS_ST}
    v_cndmask_b32 v3, v4, v5, vcc
    v_lshlrev_b32 v12, 10, v3
    v_lshl_add_u32 v12, v1, 1, v12
    v_add_u32 v12, s61, v12
    v_lshlrev_b32 v18, 4, v3
    buffer_load_ushort v13, v12, s[{WS}:{WS+3}], s48 offen sc1
    v_and_b32 v6, 1, v2
    v_lshlrev_b32 v0, {ASH}, v11
    v_lshl_add_u32 v0, v6, 4, v0
    s_mul_i32 s48, s{sW}, {24 << ASH}
    s_add_u32 s48, s48, {WS_ACT}
    s_mov_b32 s49, 0
    L2_apoll:
    buffer_load_dwordx4 {vr(STT,4)}, v18, s[{WS}:{WS+3}], s51 offen sc1
    """)
    for s_ in range(6):
        a(f"buffer_load_dwordx4 {vr(BFR+4*s_,4)}, v0, s[{WS}:{WS+3}], s48 offen offset:{s_*(4 << ASH)} sc1")
    a(f"s_add_u32 s49, s49, 1\ns_waitcnt vmcnt(0)\nv_max3_u32 v3, v{BFR}, v{BFR+1}, v{BFR+2}")
    for q in range(3, 23, 2): a(f"v_max3_u32 v3, v{BFR+q}, v{BFR+q+1}, v3")
    a(f"""
    v_max_u32 v3, v{BFR+23}, v3
    v_cmp_eq_u32 vcc, -1, v3
    v_cmp_ne_u32 s[62:63], s{sEP}, v{STT+3}
    s_cmp_gt_u32 s49, 0x40000
    s_cbranch_scc1 L2_agot
    s_or_b64 {'exec' if '--amask' in sys.argv else 'vcc'}, vcc, s[62:63]
    s_cbranch_scc0 L2_agot
    {SLEEP}
    s_branch L2_apoll
    L2_agot:
    s_mov_b64 exec, -1
    @S10
    """)
    for s_ in range(6): a(f"{MF16} {vr(D,4)}, {vr(AF+4*s_,4)}, {vr(BFR+4*s_,4)}, {'0' if s_ == 0 else vr(D,4)}")
    a(f"""
    v_and_b32 v3, 1, v11
    v_lshlrev_b32 v0, 5, v6
    v_lshl_add_u32 v0, v3, 4, v0
    s_lshl_b32 s48, s{sW}, 6
    s_add_u32 s48, s48, {FR}
    v_add_u32 v0, s48, v0
    v_lshlrev_b32 v10, 2, v9
    v_lshl_add_u32 v10, v11, 7, v10
    v_add_u32 v10, {FR}, v10
    ds_write_b128 v0, {vr(D,4)}
    s_waitcnt lgkmcnt(0)
    s_barrier
    s_cmp_lg_u32 s{sW}, 0
    s_cbranch_scc1 L2_fin
    ds_read2_b32 v[14:15], v10 offset0:0 offset1:16
    v_mul_f32 v16, {hex(f2u(-LOG2E))}, v{STT+2}
    v_exp_f32 v16, v16
    v_lshlrev_b32 v13, 16, v13
    v_add_f32 v16, 1.0, v16
    v_rcp_f32 v16, v16
    v_sub_f32 v17, v13, v{STT}
    v_fma_f32 v13, v17, v{STT+1}, v13
    s_waitcnt lgkmcnt(0)
    v_add_f32 v14, v14, v15
    v_mov_b32 v15, v14
    s_nop 1
    v_permlane32_swap_b32 v14, v15
    v_add_f32 v14, v14, v15
    v_mov_b32 v15, v14
    s_nop 1
    v_permlane16_swap_b32 v14, v15
    v_add_f32 v14, v14, v15
    v_fma_f32 v14, v14, v16, v13
    v_cvt_pk_bf16_f32 v14, v14, v14
    s_mov_b64 exec, 0xffff
    buffer_store_short v14, v12, s[{OUT}:{OUT+3}], 0 offen {OSC}
    @Q {WS}
    @D0 15 {WS} {sW}
    L2_end:
    s_endpgm
    """)
    AB = 12
    def wl(reg, sb, f):
        a(f"buffer_load_dwordx4 {vr(reg,4)}, v{LN16}, s[{WS}:{WS+3}], s{sb} offen offset:{(f & 3)*1024} sc1")
        if f % 4 == 3: a(f"s_add_u32 s{sb}, s{sb}, 4096")
    NE = 10
    breg = lambda f: 40 + 4*f if f < NE else WO + 4*(f - NE)
    a(f"""
    L2_old:
    s_setprio 0
    v_mov_b32 v3, {CNT}
    v_mov_b32 v4, 1
    s_waitcnt lgkmcnt(0)
    s_mov_b64 exec, 1
    ds_add_u32 v3, v4
    s_mov_b64 exec, -1
    s_add_u32 s48, s51, {4*65536}
    v_mov_b32 v7, {1024 + 528}
    """)
    for i in range(4): a(f"ds_read_b128 {vr(ACC+4*i,4)}, v7\nds_read_b128 {vr(AB+4*i,4)}, v7")
    for f in range(NE): wl(breg(f), 48, f)
    a(f"""
    L2_spin:
    ds_read_b32 v4, v3
    s_waitcnt lgkmcnt(0)
    v_readfirstlane_b32 s49, v4
    s_cmp_ge_u32 s49, 4
    s_cbranch_scc1 L2_go
    s_sleep 2
    s_branch L2_spin
    L2_go:
    """)
    for s_ in range(4): a(f"ds_read_b128 {vr(BF[s_],4)}, v{BA} offset:{s_*128}")
    def half(acc, reg, after):
        for s_ in range(4):
            for i in range(4):
                f = 8*s_ + 2*i
                after(f, 0)
                a(f"{SM16} {vr(acc+4*i,4)}, {vr(BF[s_],4)}, {vr(reg(f),8)}, v{IDX}")
                after(f, 1)
    a(f"s_add_u32 s49, s51, {32768 + ((32 - NE)//4)*4096}\ns_waitcnt lgkmcnt(0)")
    def aftA(f, post):
        if not post: return
        for slot in (f, f + 1):
            if slot < 32 - NE: wl(WO + 4*slot, 48, slot + NE)
            else: wl(WO + 4*slot, 49, slot)
    half(ACC, lambda f: WO + 4*f, aftA)
    a(f"s_add_u32 s49, s51, 32768")
    def aftB(f, post):
        if not post:
            done = max(0, f - NE)
            a(f"s_waitcnt vmcnt({min(63, (31 - (f + 1)) + NE + done)})"); return
        for g in (f, f + 1):
            if g >= NE: wl(WO + 4*(g - NE), 49, g - NE)
    half(AB, breg, aftB)
    a("s_nop 5")
    for i in range(4): a(f"ds_write_b128 v{PA}, {vr(AB+4*i,4)} offset:{1024*i}")
    a("s_waitcnt vmcnt(0)\ns_setprio 1\ns_branch L2_join")
    a(f"""
    L2_slow:
    v_mov_b32 v{KA}, v{LN16}
    v_mov_b32 v{M}, 0xff7fffff
    s_mov_b32 s{sN}, 64
    L2_maxloop:
    ds_read_b128 {vr(KF,4)}, v{KA}
    v_add_u32 v{KA}, {TILE}, v{KA}
    s_waitcnt lgkmcnt(0)
    {MF32} {vr(S,16)}, {vr(KF,4)}, {vr(Q,4)}, 0
    s_sub_u32 s{sN}, s{sN}, 1
    s_nop 10
    """)
    for r in range(8): a(f"v_max3_f32 v{M}, v{S+2*r}, v{S+2*r+1}, v{M}")
    a(f"""
    s_cmp_lg_u32 s{sN}, 0
    s_cbranch_scc1 L2_maxloop
    v_mov_b32 v3, v{M}
    v_mov_b32 v{KA}, v{LN16}
    v_mov_b32 v{VA}, v{VA0}
    v_permlane32_swap_b32 v{M}, v3
    v_max_f32 v{M}, v{M}, v3
    """)
    for r in range(16): a(f"v_mov_b32 v{O+r}, 0")
    a(f"""
    s_mov_b32 s{sN}, 64
    L2_slowloop:
    ds_read_b128 {vr(KF,4)}, v{KA}
    ds_read_b128 {vr(VF,4)}, v{VA}
    ds_read_b128 {vr(VF+4,4)}, v{VA} offset:544
    v_add_u32 v{KA}, {TILE}, v{KA}
    v_add_u32 v{VA}, {TILE}, v{VA}
    s_waitcnt lgkmcnt(0)
    {MF32} {vr(S,16)}, {vr(KF,4)}, {vr(Q,4)}, 0
    s_sub_u32 s{sN}, s{sN}, 1
    s_nop 10
    """)
    for i in range(16): a(f"v_sub_f32 v{S+i}, v{S+i}, v{M}")
    for i in range(16): a(f"v_exp_f32 v{S+i}, v{S+i}")
    a(f"""
    s_nop 1
    {SMF} {vr(O,16)}, {vr(VF,4)}, {vr(S,8)}, v{IDX}
    {SMF} {vr(O,16)}, {vr(VF+4,4)}, {vr(S+8,8)}, v{IDX}
    s_cmp_lg_u32 s{sN}, 0
    s_cbranch_scc1 L2_slowloop
    s_nop 11
    v_rcp_f32 v3, v{O+8}
    s_branch L2_epi
    """)
    k1_cold(a)
    return desc(KNAME, 256, 72)

NOTES = """;
"""
def main():
    hdr = open("sequential_preLN__grouped_kv_mqa__moe_arch_mod__prompt.s.ref").read().split("\n")
    top = [l for l in hdr if l.startswith(";") and "@launch" not in l and "Override" not in l and "grid=ceil" not in l]
    a = Asm()
    k1(a)
    d = k2(a)
    out = "\n".join(top) + "\n"
    out += f"; @launch grid=(256,1,1) block=(512,1,1) lds={max(K1_LDS, K2_LDS)}\n"
    out += NOTES
    out += '.amdgcn_target "amdgcn-amd-amdhsa--gfx950"\n.text\n' + a.text() + '.section .rodata,"a"\n' + d
    sys.stdout.write(out)
main()
```

```python
import sys, struct
def f2u(x): return struct.unpack("<I", struct.pack("<f", x))[0]

WS_Q   = 0
WS_KV  = 2 << 20
WS_WO  = 3 << 20
WS_H   = 4 << 20

WS_ST  = (6 << 20) + 0x10000
WS_ACT = (6 << 20) + 0x20000
WS_KEY = WS_ACT + 0x10000
KSH = 5; ASH = 7; FSH = 4
for _x in sys.argv:
    if _x.startswith('--ksh='): KSH = int(_x.split('=')[1])
    if _x.startswith('--fsh='): FSH = int(_x.split('=')[1])
    if _x.startswith('--ash='): ASH = int(_x.split('=')[1])
WS_FLG = WS_KEY + 0x10000
WS_QB = 7 << 20
sEP = 68
KNAME = 'sequential_preLN__grouped_kv_mqa__moe_arch_mod__prompt_kernel'
WS_SIZE = 8 << 20
TILE = 2112
QSCALE = 0.25 * 1.4426950408889634
EPS = 1e-5
SHIFT = 96.0
for _x in sys.argv:
    if _x.startswith('--shift='): SHIFT = float(_x.split('=')[1])

class Asm:
    def __init__(self): self.l = []
    def __call__(self, s):
        for x in s.split("\n"):
            x = x.strip()
            if x.startswith("@S"): stamp(self, int(x[2:])); continue
            if x.startswith("@P"): padstore(self, *[int(t) for t in x[2:].split()]); continue
            if x.startswith("@Q"): padspin(self, *[int(t) for t in x[2:].split()]); continue
            if x.startswith("@T"): padstamp(self, int(x[2:])); continue
            if x.startswith("@D"): dump(self, *[int(t) for t in x[2:].split()]); continue
            if x: self.l.append(("" if x.endswith(":") else "    ") + x)
    def text(self): return "\n".join(self.l) + "\n"

def srd(a, d, p, size):
    a(f"s_mov_b32 s{d}, s{p}\ns_and_b32 s{d+1}, s{p+1}, 0xffff\ns_mov_b32 s{d+2}, {size}\ns_mov_b32 s{d+3}, 0x20000")
def vr(b, n): return f"v[{b}:{b+n-1}]"
def head(a, name):
    a(f".globl {name}\n.p2align 8\n.type {name},@function\n{name}:")
def desc(name, nv, ns):
    return f""".p2align 6
.amdhsa_kernel {name}
  .amdhsa_next_free_vgpr {nv}
  .amdhsa_next_free_sgpr {102 if (DIAG or PAD is not None or '--tsync' in sys.argv) else ns}
  .amdhsa_accum_offset {(nv+3)//4*4}
  .amdhsa_group_segment_fixed_size 0
  .amdhsa_kernarg_size 104
  .amdhsa_user_sgpr_count 2
  .amdhsa_user_sgpr_kernarg_segment_ptr 1
  .amdhsa_system_sgpr_workgroup_id_x 1
.end_amdhsa_kernel
"""
DIAG = "--diag" in sys.argv
WS_DIAG = 16 << 20
if DIAG: WS_SIZE = 32 << 20
LIGHT = '--light' in sys.argv
def stamp(a, i, force=False):
    if LIGHT and i != 0 and not force: return
    if DIAG: a(f"{'s_memtime' if i >= 13 else 's_memrealtime'} s[{70+2*i}:{71+2*i}]\ns_waitcnt lgkmcnt(0)")
DIAG2 = "--diag2" in sys.argv
D2SEL = {0: [(0, 1), (2, 0), (8, 0)], 1: [(0, 1), (1, 0), (3, 0), (4, 0), (8, 0), (10, 0), (12, 0)], 2: [(0, 1), (1, 0), (3, 0), (5, 0), (6, 0), (7, 0)]}
_dl = [0]
def dump(a, kidx, n, WS, sW):
    if not DIAG: return
    stamp(a, min(n - 1, 12), True)
    if DIAG2:
        _dl[0] += 1
        base = sum(len(D2SEL[k]) for k in range(kidx))
        a(f"s_and_b32 s98, s2, 15\ns_cmp_lg_u32 s98, 0\ns_cbranch_scc1 LD_{_dl[0]}\ns_load_dwordx2 s[98:99], s[0:1], 88\ns_mov_b64 exec, 1\nv_mov_b32 v1, 0\ns_waitcnt lgkmcnt(0)\ns_add_u32 s98, s98, {512*(2-kidx)}\ns_addc_u32 s99, s99, 0")
        for j, (i, inv) in enumerate(D2SEL[kidx]):
            a(f"v_mov_b32 v0, s{70+2*i}")
            if inv: a("v_not_b32 v0, v0")
            a(f"global_atomic_umax v1, v0, s[98:99] offset:{4*(base+j)}\ns_nop 1")
        a(f"LD_{_dl[0]}:")
        return
    a(f"s_mov_b64 exec, 1\ns_lshl_b32 s69, s2, 4\ns_add_u32 s69, s69, s{sW}\ns_lshl_b32 s69, s69, 6\ns_add_u32 s69, s69, {WS_DIAG + kidx * (1 << 20)}\nv_mov_b32 v1, 0")
    for i in range(n):
        a(f"v_mov_b32 v0, s{70+2*i}\nbuffer_store_dword v0, v1, s[{WS}:{WS+3}], s69 offen offset:{4*i}")
PAD = [int(x.split("=")[1]) for x in sys.argv if x.startswith("--pad=")]
PAD = PAD[0] if PAD else None
WS_PAD = (6 << 20)
def padstamp(a, k):
    if PAD == k: a("s_memrealtime s[94:95]\ns_waitcnt lgkmcnt(0)")
def padstore(a, k, WS, sW): pass
def padspin(a, WS):
    if PAD is None: return
    a(f"s_mov_b32 s97, 0\nLQ_spin:\ns_memrealtime s[92:93]\ns_waitcnt lgkmcnt(0)\ns_sub_u32 s98, s92, s94\ns_add_u32 s97, s97, 1\ns_cmp_gt_u32 s97, 100000\ns_cbranch_scc1 LQ_done\ns_cmp_lt_u32 s98, 6000\ns_cbranch_scc1 LQ_spin\nLQ_done:")
MF32 = "v_mfma_f32_32x32x16_bf16"
MF16 = "v_mfma_f32_16x16x32_bf16"

ZERO_KB = 8
K1_KV = 131072
K1_CS = 147456
K1_KC = K1_CS + 1024
K1_KP = K1_KC + 1024
K1_PS = K1_KP + 4096
K1_EP = K1_PS + 1024
K1_LDS = K1_EP + 64
QSC = 'sc1' if '--qsc1' in sys.argv else '' if '--qplain' in sys.argv else 'sc0 sc1'
CODE_SPAN = 18600
NSPL = 4
for _x in sys.argv:
    if _x.startswith('--nspl='): NSPL = int(_x.split('=')[1])
WOC = 1 if '--woc1' in sys.argv else 2
def rowstat(a, s, m, r):
    a(f"""
    v_add_f32 v{m}, v{s}, v{s+2}
    v_add_f32 v{r}, v{s+1}, v{s+3}
    v_mul_f32 v{m}, {hex(f2u(-1.0/512))}, v{m}
    v_mul_f32 v{r}, {hex(f2u(1.0/512))}, v{r}
    v_fma_f32 v{r}, -v{m}, v{m}, v{r}
    v_max_f32 v{r}, 0, v{r}
    """)
    if "--exactln" in sys.argv:
        a(f"v_add_f32 v{r}, {hex(f2u(EPS))}, v{r}\nv_rsq_f32 v{r}, v{r}")
        return
    a(f"""
    v_cvt_pk_bf16_f32 v{r}, v{m}, v{r}
    v_lshlrev_b32 v{m}, 16, v{r}
    v_and_b32 v{r}, 0xffff0000, v{r}
    v_add_f32 v{r}, {hex(f2u(EPS))}, v{r}
    v_cvt_pk_bf16_f32 v{r}, v{r}, v{r}
    v_and_b32 v{r}, 0xffff0000, v{r}
    v_sqrt_f32 v{r}, v{r}
    s_nop 0
    v_cvt_pk_bf16_f32 v{r}, v{r}, v{r}
    v_and_b32 v{r}, 0xffff0000, v{r}
    v_rcp_f32 v{r}, v{r}
    """)
def split_ab(a, src, dst, kind):
    a(f"v_and_b32 v11, 0xffff0000, v{src}\nv_sub_f32 v12, v{src}, v11")
    if kind == "m": a(f"v_cvt_pk_bf16_f32 v{dst}, v11, v12\nv_cvt_pk_bf16_f32 v{dst+1}, v11, 0")
    else: a(f"v_cvt_pk_bf16_f32 v{dst}, v11, v11\nv_cvt_pk_bf16_f32 v{dst+1}, v12, 0")
def k1(a):
    X, WQ, WKV, WO, WS = 16, 20, 24, 32, 36
    sW, sTG, sCG = 40, 41, 42
    DBG = 28
    ONES = 69
    VL = 13
    head(a, KNAME)
    a(f"""
    s_cmp_ge_u32 s2, 256
    s_cbranch_scc1 L2_end
    @S0
    @T0
    s_load_dwordx8 s[4:11], s[0:1], 0
    s_load_dwordx2 s[12:13], s[0:1], 32
    s_load_dwordx2 s[14:15], s[0:1], 96
    s_load_dwordx2 s[64:65], s[0:1], 88
    v_lshrrev_b32 v1, 6, v0
    v_and_b32 v2, 63, v0
    v_readfirstlane_b32 s{sW}, v1
    s_and_b32 s43, s2, 7
    s_lshr_b32 s44, s2, 3
    s_and_b32 s45, s44, 3
    s_lshl_b32 s{sTG}, s43, 2
    s_add_u32 s{sTG}, s{sTG}, s45
    s_lshr_b32 s{sCG}, s44, 2
    v_and_b32 v3, 15, v2
    v_lshrrev_b32 v4, 4, v2
    v_lshlrev_b32 v{VL}, 4, v2
    s_and_b32 s46, s{sW}, 3
    s_lshl_b32 s50, s46, 12
    s_and_b32 s58, s{sCG}, 3
    s_cmp_lt_u32 s{sW}, 4
    s_cbranch_scc1 L1_gemm
    """)
    VX, VW, XR = 16, 22, 32
    pass
    for i in range(4):
        a(f"v_add_u32 v7, {4*i}, v4\nv_xor_b32 v{VX+i}, v7, v3\nv_lshlrev_b32 v{VX+i}, 4, v{VX+i}\nv_lshl_add_u32 v{VX+i}, v7, 10, v{VX+i}")
    a(f"""
    v_lshrrev_b32 v7, 3, v2
    v_and_b32 v{VW}, 1, v4
    v_lshlrev_b32 v{VW}, 2, v{VW}
    v_and_b32 v14, 7, v2
    v_xor_b32 v{VW}, v{VW}, v14
    v_lshlrev_b32 v{VW}, 4, v{VW}
    v_lshl_add_u32 v{VW}, v7, 10, v{VW}
    s_lshl_b32 s48, s{sTG}, 16
    s_lshl_b32 s43, s46, 14
    s_add_u32 s48, s48, s43
    s_lshl_b32 s49, s46, 15
    s_lshl_b32 s43, s{sCG}, 7
    s_add_u32 s49, s49, s43
    {'s_mov_b32 s55, 0' if '--norot' in sys.argv else f's_add_u32 s55, s{sCG}, s{sTG}'}
    s_waitcnt lgkmcnt(0)
    """)
    srd(a, X, 4, 2 << 20)
    def chunk(c, sh): a(f"s_add_u32 s43, s55, {c}\ns_and_b32 s43, s43, 3\ns_lshl_b32 s43, s43, {sh}")
    def issx(c):
        chunk(c, 8); a("s_add_u32 s51, s48, s43")
        for i in range(4):
            a(f"s_add_u32 m0, s50, {c*16384 + i*1024}\ns_nop 0\nbuffer_load_dwordx4 v{VX+i}, s[{X}:{X+3}], s51 offen lds")
    def issw(c):
        chunk(c, 17); a("s_add_u32 s51, s49, s43")
        for i in range(4):
            a(f"s_add_u32 m0, s50, {65536 + c*16384 + i*1024}\ns_add_u32 s52, s51, {8*i*1024}\nbuffer_load_dwordx4 v{VW}, s[{WQ}:{WQ+3}], s52 offen lds")
    def isskv(c):
        chunk(c, 12)
        a(f"s_add_u32 m0, s61, {K1_KV + c*4096}\ns_add_u32 s52, s61, s43\nbuffer_load_dwordx4 v{VL}, s[{WKV}:{WKV+3}], s52 offen lds")
    issx(0)
    a(f"s_cmp_ge_u32 s{sCG}, 4\ns_cselect_b32 s8, s10, s8\ns_cselect_b32 s9, s11, s9\ns_lshl_b32 s61, s46, 10")
    srd(a, WKV, 8, 16 << 10)
    isskv(0); issx(1); isskv(1)
    srd(a, WQ, 6, 512 << 10)
    a(f"""
    v_mov_b32 v{ONES}, 0x3f803f80
    v_add_u32 v30, {K1_KP}, v{VL}
    s_lshl_b32 s43, s58, 8
    s_add_u32 s43, s43, {K1_PS}
    v_lshl_add_u32 v31, v3, 4, s43
    s_lshl_b32 s56, s{sTG}, 1
    s_lshr_b32 s43, s58, 1
    s_add_u32 s56, s56, s43
    s_mul_i32 s56, s56, {TILE}
    s_add_u32 s56, s56, {WS_KV}
    s_and_b32 s57, s58, 1
    s_lshl_b32 s43, s57, 8
    s_mul_i32 s44, s57, 544
    s_add_u32 s44, s44, 1024
    s_cmp_ge_u32 s{sCG}, 4
    s_cselect_b32 s43, s44, s43
    s_cselect_b64 s[62:63], -1, 0
    s_add_u32 s56, s56, s43
    v_and_b32 v14, 1, v4
    v_lshrrev_b32 v15, 1, v4
    v_lshlrev_b32 v26, 9, v14
    v_lshl_add_u32 v26, v15, 3, v26
    v_lshlrev_b32 v27, 8, v15
    v_lshl_add_u32 v27, v14, 3, v27
    v_cndmask_b32 v26, v26, v27, s[62:63]
    v_lshl_add_u32 v26, v3, 4, v26
    s_lshl_b32 s43, s58, 12
    s_lshl_b32 s44, s46, 14
    s_add_u32 s43, s43, s44
    v_lshl_add_u32 v10, v3, 8, s43
    v_xor_b32 v11, v4, v3
    v_lshl_add_u32 v96, v11, 4, v10
    v_xor_b32 v97, 64, v96
    v_xor_b32 v98, 0x80, v96
    v_xor_b32 v99, 0xc0, v96
    v_lshrrev_b32 v9, 2, v3
    v_lshl_add_u32 v95, v4, 3, v9
    v_lshlrev_b32 v95, 5, v95
    v_and_b32 v11, 3, v3
    v_lshl_add_u32 v95, v11, 3, v95
    s_add_u32 s43, s50, {K1_KV}
    v_add_u32 v95, s43, v95
    v_add_u32 v24, s61, v30
    """)
    srd(a, WS, 14, WS_SIZE); srd(a, DBG, 64, 256)
    a(f"v_mov_b32 v93, {K1_EP}\nv_mov_b32 v94, 0")
    size = [5, 5, 5, 5, 4, 4, 4, 4]
    KFX, KFW, KD, UP = 100, 116, 132, 140
    for g in range(5):
        if g == 4:
            for u in range(4): a(f"ds_read_b128 {vr(KFX+4*u,4)}, v{96+u}")
            for u in range(4): a(f"ds_read_b64_tr_b16 {vr(KFW+4*u,2)}, v95 offset:{u*1024}\nds_read_b64_tr_b16 {vr(KFW+4*u+2,2)}, v95 offset:{u*1024+128}")
        if g + 2 < 4: issx(g + 2); isskv(g + 2)
        elif g < 4: issw(g - 2)
        if g == 4:
            a("s_waitcnt lgkmcnt(8)")
            for q in range(16): a(f"v_lshlrev_b32 v{UP+2*q}, 16, v{KFX+q}\nv_and_b32 v{UP+2*q+1}, 0xffff0000, v{KFX+q}")
            issw(2)
        a(f"s_waitcnt vmcnt({sum(size[g+1:g+3])})\ns_barrier")
    if "--nojprio" not in sys.argv: a("s_setprio 2")
    a(f"ds_read_b128 v[80:83], v31\nbuffer_load_dword v66, v94, s[{DBG}:{DBG+3}], 0 offen sc1")
    a("s_waitcnt lgkmcnt(0)")
    rowstat(a, 80, 8, 9)
    def norm(qs):
        for q in qs: a(f"v_add_f32 v{UP+2*q}, v{UP+2*q}, v8\nv_add_f32 v{UP+2*q+1}, v{UP+2*q+1}, v8\nv_cvt_pk_bf16_f32 v{KFX+q}, v{UP+2*q}, v{UP+2*q+1}")
        for q in qs: a(f"v_lshlrev_b32 v{UP+2*q}, 16, v{KFX+q}\nv_and_b32 v{UP+2*q+1}, 0xffff0000, v{KFX+q}\nv_mul_f32 v{UP+2*q}, v{UP+2*q}, v9\nv_mul_f32 v{UP+2*q+1}, v{UP+2*q+1}, v9\nv_cvt_pk_bf16_f32 v{KFX+q}, v{UP+2*q}, v{UP+2*q+1}")
    if "--nojw1" not in sys.argv:
        norm(range(0, 16))
        a(f"s_cmp_ge_u32 s{sCG}, 4\ns_cbranch_scc1 L1_vm")
        for u in range(4): a(f"{MF16} {vr(KD,4)}, {vr(KFW+4*u,4)}, {vr(KFX+4*u,4)}, {'0' if u == 0 else vr(KD,4)}")
        a("L1_km:")
        issw(3)
        a(f"""
        ds_write_b128 v24, {vr(KD,4)}
        s_waitcnt vmcnt(9) lgkmcnt(0)
        s_barrier
        s_cmp_eq_u32 s46, 0
        s_cbranch_scc1 L1_fin
        s_waitcnt vmcnt(4)
        L1_find:
        v_readfirstlane_b32 s{sEP}, v66
        s_cmp_eq_u32 s{sEP}, 0
        s_cbranch_scc1 L1_tag
        L1_tagok:
        ds_write_b32 v93, v66
        s_waitcnt lgkmcnt(0)
        s_barrier
        s_lshl_b32 s43, s2, {FSH}
        s_add_u32 s43, s43, {WS_FLG}
        s_cmp_eq_u32 s46, 0
        s_cselect_b32 s43, s43, {WS_SIZE}
        s_waitcnt vmcnt(0)
        s_mov_b64 exec, 1
        buffer_store_dword v66, v94, s[{WS}:{WS+3}], s43 offen sc0 sc1
        s_mov_b64 exec, -1
        @S1
        s_barrier
        s_branch L2_start
        L1_vm:
        """)
        for u in range(4): a(f"{MF16} {vr(KD,4)}, {vr(KFX+4*u,4)}, {vr(KFW+4*u,4)}, {'0' if u == 0 else vr(KD,4)}")
        a(f"""
        s_branch L1_km
        L1_fin:
        ds_read_b128 {vr(XR+4,4)}, v30 offset:1024
        ds_read_b128 {vr(XR+8,4)}, v30 offset:2048
        ds_read_b128 {vr(XR+12,4)}, v30 offset:3072
        s_waitcnt lgkmcnt(0)
        """)
        for r in range(4):
            a(f"v_add_f32 v{XR+r}, v{KD+r}, v{XR+4+r}\nv_add_f32 v{XR+8+r}, v{XR+8+r}, v{XR+12+r}")
        for r in range(4): a(f"v_add_f32 v{XR+r}, v{XR+r}, v{XR+8+r}")
        a(f"""
        v_cvt_pk_bf16_f32 v{XR}, v{XR}, v{XR+1}
        v_cvt_pk_bf16_f32 v{XR+1}, v{XR+2}, v{XR+3}
        buffer_store_dwordx2 {vr(XR,2)}, v26, s[{WS}:{WS+3}], s56 offen sc0 sc1
        s_waitcnt vmcnt(5)
        s_branch L1_find
        """)
    else:
        norm(range(0, NSPL))
        issw(3)
        a("s_waitcnt vmcnt(9)\ns_barrier")
        norm(range(NSPL, 16))
        a(f"s_cmp_ge_u32 s{sCG}, 4\ns_cbranch_scc1 L1_vm")
        for u in range(4): a(f"{MF16} {vr(KD,4)}, {vr(KFW+4*u,4)}, {vr(KFX+4*u,4)}, {'0' if u == 0 else vr(KD,4)}")
        a(f"""
        L1_km:
        s_waitcnt vmcnt(4)
        v_readfirstlane_b32 s{sEP}, v66
        s_cmp_eq_u32 s{sEP}, 0
        s_cbranch_scc1 L1_tag
        L1_tagok:
        s_nop 3
        ds_write_b128 v24, {vr(KD,4)}
        ds_write_b32 v93, v66
        s_waitcnt lgkmcnt(0)
        s_barrier
        s_cmp_eq_u32 s46, 0
        s_cbranch_scc1 L1_fin
        s_waitcnt vmcnt(0)
        s_barrier
        s_branch L2_start
        L1_vm:
        """)
        for u in range(4): a(f"{MF16} {vr(KD,4)}, {vr(KFX+4*u,4)}, {vr(KFW+4*u,4)}, {'0' if u == 0 else vr(KD,4)}")
        a(f"""
        s_branch L1_km
        L1_fin:
        ds_read_b128 {vr(XR+4,4)}, v30 offset:1024
        ds_read_b128 {vr(XR+8,4)}, v30 offset:2048
        ds_read_b128 {vr(XR+12,4)}, v30 offset:3072
        s_lshl_b32 s43, s2, {FSH}
        s_add_u32 s43, s43, {WS_FLG}
        s_waitcnt lgkmcnt(0)
        """)
        for r in range(4):
            a(f"v_add_f32 v{XR+r}, v{KD+r}, v{XR+4+r}\nv_add_f32 v{XR+8+r}, v{XR+8+r}, v{XR+12+r}")
        for r in range(4): a(f"v_add_f32 v{XR+r}, v{XR+r}, v{XR+8+r}")
        a(f"""
        v_cvt_pk_bf16_f32 v{XR}, v{XR}, v{XR+1}
        v_cvt_pk_bf16_f32 v{XR+1}, v{XR+2}, v{XR+3}
        buffer_store_dwordx2 {vr(XR,2)}, v26, s[{WS}:{WS+3}], s56 offen sc0 sc1
        s_waitcnt vmcnt(1)
        s_barrier
        s_waitcnt vmcnt(0)
        s_mov_b64 exec, 1
        buffer_store_dword v66, v94, s[{WS}:{WS+3}], s43 offen sc0 sc1
        s_mov_b64 exec, -1
        @S1
        s_branch L2_start
        """)
    D1 = 16
    XF, WF = 120, 32
    XA, WA, WB, WOD = 72, 68, 70, 80
    KX, KW = 92, 93
    SX, SXX, KC, KD = 14, 15, 71, 96
    KF = 104
    a(f"""
    L1_gemm:
    v_and_b32 v5, 31, v2
    v_lshrrev_b32 v6, 5, v2
    s_and_b32 s53, s{sW}, 1
    s_lshr_b32 s54, s{sW}, 1
    s_lshl_b32 s59, s2, 1
    s_add_u32 s59, s59, s53
    s_lshr_b32 s43, s59, 6
    s_lshl_b32 s47, s43, 7
    s_lshr_b32 s44, s59, 3
    s_and_b32 s44, s44, 7
    s_lshl_b32 s44, s44, 16
    s_add_u32 s47, s47, s44
    s_lshl_b32 s44, s53, 15
    s_add_u32 s47, s47, s44
    s_and_b32 s44, s59, 2
    s_lshl_b32 s44, s44, 5
    s_add_u32 s47, s47, s44
    s_and_b32 s44, s59, 4
    s_lshr_b32 s44, s44, 1
    s_add_u32 s47, s47, s44
    v_lshlrev_b32 v7, 2, v3
    v_lshl_add_u32 v7, v6, 14, v7
    v_and_b32 v8, 1, v4
    v_lshl_add_u32 v7, v8, 12, v7
    v_add_u32 v8, 8192, v7
    s_waitcnt lgkmcnt(0)
    """)
    if "--pf" in sys.argv:
        a(f"""
        s_lshr_b32 s43, s2, 3
        s_lshl_b32 s43, s43, 14
        s_lshl_b32 s44, s53, 13
        s_add_u32 s43, s43, s44
        s_lshl_b32 s44, s{sTG}, 16
        s_lshl_b32 s45, s{sCG}, 13
        s_add_u32 s44, s44, s45
        s_cmp_eq_u32 s{sW}, 3
        s_cselect_b32 s44, 0x400000, s44
        s_cmp_ge_u32 s{sW}, 2
        s_cselect_b32 s43, s44, s43
        s_cselect_b32 s{X}, s4, s6
        s_cselect_b32 s{X+1}, s5, s7
        s_mov_b32 s{X+2}, 0x80000
        s_cselect_b32 s{X+2}, 0x200000, s{X+2}
        s_and_b32 s{X+1}, s{X+1}, 0xffff
        s_mov_b32 s{X+3}, 0x20000
        v_lshlrev_b32 v9, 7, v2
        buffer_load_dword v252, v9, s[{X}:{X+3}], s43 offen
        """)
    srd(a, WO, 12, 512 << 10); srd(a, WS, 14, WS_SIZE); srd(a, DBG, 64, 256)
    a(f"s_cmp_ge_u32 s{sW}, 2\ns_cbranch_scc1 L1_nowo")
    for j in range(8):
        ro = (0, 1, 8, 9, 2, 3, 10, 11)[j]
        a(f"buffer_load_ushort v{WOD + j}, v{7 + ro//8}, s[{WO}:{WO+3}], s47 offen offset:{(ro & 3) * 1024}")
    a(f"""
    s_branch L1_noz
    L1_nowo:
    s_cmp_eq_u32 s{sW}, 2
    s_cbranch_scc1 L1_ini
    """)
    if "--tlb" in sys.argv:
        a(f"""
        s_load_dwordx8 s[16:23], s[0:1], 48
        s_load_dwordx2 s[24:25], s[0:1], 80
        v_lshlrev_b32 v9, 20, v2
        s_mov_b64 exec, 0xff
        buffer_load_dword v252, v9, s[{WS}:{WS+3}], 0 offen offset:2048
        s_mov_b64 exec, 1
        global_load_dword v253, v9, s[6:7]
        s_waitcnt lgkmcnt(0)
        global_load_dword v253, v9, s[16:17]
        global_load_dword v253, v9, s[18:19]
        global_load_dword v253, v9, s[20:21]
        global_load_dword v253, v9, s[22:23]
        global_load_dword v253, v9, s[24:25]
        s_mov_b64 exec, -1
        """)
    a(f"""
    s_cmp_lg_u32 s2, 0
    s_cbranch_scc1 L1_noz
    s_memrealtime s[44:45]
    v_mov_b32 v9, 0
    s_waitcnt lgkmcnt(0)
    s_or_b32 s44, s44, 1
    v_mov_b32 v{WOD}, s44
    s_mov_b64 exec, 1
    buffer_store_dword v{WOD}, v9, s[{DBG}:{DBG+3}], 0 offen sc0 sc1
    s_mov_b64 exec, -1
    s_branch L1_noz
    L1_ini:
    s_cmp_lt_u32 s2, 172
    s_cselect_b32 s44, -1, 0
    v_mov_b32 v{WOD}, s44
    v_mov_b32 v{WOD+1}, 0
    v_lshlrev_b32 v9, 2, v2
    s_lshl_b32 s43, s2, {ASH}
    s_add_u32 s43, s43, {WS_ACT}
    s_lshl_b32 s44, s2, {KSH}
    s_add_u32 s44, s44, {WS_KEY}
    s_lshr_b32 s45, s2, 1
    s_mul_i32 s45, s45, {TILE}
    s_and_b32 s48, s2, 1
    s_mul_i32 s48, s48, 544
    s_add_u32 s45, s45, s48
    s_add_u32 s45, s45, {WS_KV + 1024 + 512}
    s_cmp_lt_u32 s2, 128
    s_cselect_b32 s45, s45, {WS_SIZE}
    v_cmp_gt_u32 vcc, 4, v2
    v_mov_b32 v{WOD+2}, 0x3f803f80
    s_mov_b64 exec, 0xff
    v_cndmask_b32 v{WOD+2}, 0, v{WOD+2}, vcc
    buffer_store_dword v{WOD}, v9, s[{WS}:{WS+3}], s43 offen sc0 sc1
    buffer_store_dword v{WOD+2}, v9, s[{WS}:{WS+3}], s45 offen sc0 sc1
    s_mov_b64 exec, 3
    buffer_store_dword v{WOD+1}, v9, s[{WS}:{WS+3}], s44 offen sc0 sc1
        s_mov_b64 exec, -1
    L1_noz:
    """)
    if "--cpf" in sys.argv:
        a(f"""
        s_getpc_b64 s[44:45]
        s_and_b32 s44, s44, 0xffffff00
        s_lshr_b32 s43, s2, 3
        s_lshl_b32 s43, s43, 2
        s_add_u32 s43, s43, s{sW}
        s_lshl_b32 s43, s43, 8
        v_lshl_add_u32 v9, v2, 2, s43
        v_min_u32 v9, {CODE_SPAN}, v9
        global_load_dword v252, v9, s[44:45]
        """)
    a(f"""
    s_lshl_b32 s43, s54, 1
    v_xor_b32 v12, s43, v3
    s_lshl_b32 s43, s53, 13
    v_lshlrev_b32 v9, 8, v5
    v_add_u32 v9, s43, v9
    """)
    for j in range(8):
        a(f"v_add_u32 v10, {2*j}, v6\nv_xor_b32 v10, v10, v12\nv_lshl_add_u32 v{XA+j}, v10, 4, v9")
    a(f"""
    v_lshrrev_b32 v9, 2, v3
    v_lshl_add_u32 v10, v6, 3, v9
    v_lshlrev_b32 v10, 7, v10
    v_lshrrev_b32 v11, 1, v9
    v_xor_b32 v11, s54, v11
    v_lshl_add_u32 v10, v11, 6, v10
    v_and_b32 v11, 1, v4
    v_lshl_add_u32 v10, v11, 5, v10
    v_and_b32 v11, 3, v3
    v_lshl_add_u32 v10, v11, 3, v10
    s_lshl_b32 s43, s54, 11
    s_add_u32 s44, s43, 0x10000
    s_sub_u32 s43, {0x10000 + 2048}, s43
    v_add_u32 v{WA}, s44, v10
    v_add_u32 v{WB}, s43, v10
    v_lshrrev_b32 v64, 3, v5
    v_lshlrev_b32 v64, 13, v64
    v_and_b32 v11, 7, v5
    v_lshl_add_u32 v64, v11, 4, v64
    v_lshl_add_u32 v64, v6, 9, v64
    s_lshl_b32 s60, s{sTG}, 16
    s_lshl_b32 s44, s53, 15
    s_add_u32 s60, s60, s44
    s_lshl_b32 s44, s{sCG}, 10
    s_add_u32 s60, s60, s44
    s_lshl_b32 s44, s54, 8
    s_add_u32 s60, s60, s44
    s_add_u32 s60, s60, {WS_Q}
    s_lshl_b32 s43, s53, 9
    s_add_u32 s43, s43, {K1_PS}
    v_lshl_add_u32 v67, v5, 4, s43
    s_lshl_b32 s43, s54, 3
    v_lshl_add_u32 v65, v6, 2, v67
    v_add_u32 v65, s43, v65
    s_lshl_b32 s59, s59, 10
    s_add_u32 s59, s59, {WS_WO}
    s_cmp_ge_u32 s{sW}, 2
    s_cselect_b32 s59, {WS_SIZE}, s59
    v_mov_b32 v{ONES}, 0x3f803f80
    v_mov_b32 v{SX}, 0
    v_mov_b32 v{SXX}, 0
    v_mov_b32 v90, 0
    v_mov_b32 v91, 0
    v_mov_b32 v250, 0
    v_mov_b32 v251, 0
    """)
    def xreads(c):
        for u in (0, 2, 4, 6, 1, 3, 5, 7): a(f"ds_read_b128 {vr(XF+32*c+4*u,4)}, v{XA+u} offset:{c*16384}")
    def wread(ks):
        ar = WB if ks & 1 else WA
        off = (ks & ~1) * 2048
        a(f"ds_read_b64_tr_b16 {vr(WF+4*(ks&7),2)}, v{ar} offset:{off}\nds_read_b64_tr_b16 {vr(WF+4*(ks&7)+2,2)}, v{ar} offset:{off + 512}")
    def work(c):
        for u in (0, 2, 4, 6):
            a(f"s_waitcnt lgkmcnt({7 - u//2})")
            for q in range(4): a(f"v_dot2c_f32_bf16 v{SX}, v{XF+32*c+4*u+q}, v{ONES}\nv_dot2c_f32_bf16 v{SXX}, v{XF+32*c+4*u+q}, v{XF+32*c+4*u+q}")
    for c in range(4):
        a("s_barrier")
        if c == 0: a("@T3")
        xreads(c)
        work(c)
        if c == WOC:
            a(f"""
            s_waitcnt vmcnt(0)
            v_lshl_or_b32 v{WOD}, v{WOD+1}, 16, v{WOD}
            v_lshl_or_b32 v{WOD+1}, v{WOD+3}, 16, v{WOD+2}
            v_lshl_or_b32 v{WOD+2}, v{WOD+5}, 16, v{WOD+4}
            v_lshl_or_b32 v{WOD+3}, v{WOD+7}, 16, v{WOD+6}
            buffer_store_dwordx4 {vr(WOD,4)}, v{VL}, s[{WS}:{WS+3}], s59 offen sc0 sc1
            """)
    a(f"""
    v_mov_b32 v7, {K1_EP}
    s_nop 1
    v_permlane32_swap_b32 v{SX}, v{SXX}
    ds_write_b32 v7, v90 offset:8
    v_add_f32 v{SX}, v{SX}, v{SXX}
    ds_write_b32 v65, v{SX}
    v_mov_b32 v{SXX}, 0
    s_waitcnt lgkmcnt(0)
    s_barrier
    @T4
    @S2
    """)
    for ks in range(7): wread(ks)
    a("s_waitcnt lgkmcnt(12)")
    wread(7)
    LATE = "--nojw1" not in sys.argv
    for g in range(8):
        a(f"s_waitcnt lgkmcnt({0 if (g == 7 or (LATE and g == 1)) else 8})")
        for ks in range(4*g, 4*g + 4):
            for q in range(4): a(f"v_dot2c_f32_bf16 v{SXX}, v{WF+4*(ks&7)+q}, v{ONES}")
        if g == 2: a("s_waitcnt vmcnt(0)")
        if g % 2 == 0 and g < 6 and not (LATE and g == 0): a("s_barrier")
        if g == 2: a("ds_read_b128 v[84:87], v67")
        if g == 4: a("@S10\nds_read_b32 v66, v7")
        if g == 2: a("@S6")
        if g == 6: a(f"v_readfirstlane_b32 s{sEP}, v66")
        for ks in range(4*g, 4*g + 4):
            a(f"{MF32} {vr(D1,16)}, {vr(WF+4*(ks&7),4)}, {vr(XF+4*ks,4)}, {'0' if ks == 0 else vr(D1,16)}")
            if ks + 8 < 32 and not (LATE and g < 2): wread(ks + 8)
            if ks == 16: rowstat(a, 84, 8, 9)
            if ks == 17: split_ab(a, 8, 88, "m"); a(f"v_mul_f32 v10, {hex(f2u(QSCALE))}, v9")
            if ks == 29: a("s_nop 0"); split_ab(a, SXX, 248, "c")
        if LATE and g == 1:
            a("s_barrier\n@S5")
            for ks in range(8, 15): wread(ks)
            a("s_waitcnt lgkmcnt(12)")
            wread(15)
    a(f"""
    {MF32} {vr(D1,16)}, v[248:251], v[88:91], {vr(D1,16)}
    v_mov_b32 v35, v66
    v_mov_b32 v39, v66
    v_mov_b32 v43, v66
    v_lshrrev_b32 v44, 3, v5
    v_lshlrev_b32 v44, 12, v44
    v_and_b32 v11, 7, v5
    v_lshl_add_u32 v44, v11, 4, v44
    v_lshl_add_u32 v44, v6, 8, v44
    s_sub_u32 s61, s60, {WS_Q}
    s_lshr_b32 s61, s61, 1
    s_add_u32 s61, s61, {WS_QB}
    s_nop 0
    """)
    dst = [32, 33, 34, 36, 40, 41, 42, 37]
    for r in range(8):
        a(f"v_mul_f32 v{D1+2*r}, v10, v{D1+2*r}\nv_mul_f32 v{D1+2*r+1}, v10, v{D1+2*r+1}\nv_cvt_pk_bf16_f32 v{dst[r]}, v{D1+2*r}, v{D1+2*r+1}")
        if r == 2: a(f"buffer_store_dwordx4 v[32:35], v64, s[{WS}:{WS+3}], s60 offen {QSC}")
        if r == 6: a(f"buffer_store_dwordx4 v[40:43], v64, s[{WS}:{WS+3}], s60 offen offset:128 {QSC}")
    a(f"""
    buffer_store_dwordx4 v[36:39], v44, s[{WS}:{WS+3}], s61 offen {QSC}
    @T5
    @S1
    """)
def k1_cold(a):
    DBG = 28
    a(f"""
    L1_tag:
    s_mov_b32 s47, 0
    L1_tagl:
    buffer_load_dword v66, v94, s[{DBG}:{DBG+3}], 0 offen sc1
    s_add_u32 s47, s47, 1
    s_waitcnt vmcnt(0)
    v_readfirstlane_b32 s{sEP}, v66
    s_cmp_gt_u32 s47, 0x40000
    s_cbranch_scc1 L1_tagx
    s_cmp_eq_u32 s{sEP}, 0
    s_cbranch_scc1 L1_tagl
    L1_tagx:
    s_branch L1_tagok
    """)
KV_BYTES = 64 * TILE
OB = KV_BYTES
RED = OB + 8 * 1040
PART = RED + 1024
CNT = PART + 16384
K2_LDS = CNT + 64
FW = 0
FR = 32768
SMF = "v_smfmac_f32_32x32x32_bf16"
SM16 = "v_smfmac_f32_16x16x64_bf16"
LOG2E = 1.4426950408889634
KMAP = '--nokmap' not in sys.argv
KSLEEP = ''
for _x in sys.argv:
    if _x.startswith('--ksleep='): KSLEEP = 's_sleep ' + _x.split('=')[1]
OSC = 'sc0 sc1' if '--osc' in sys.argv else 'nt' if '--ont' in sys.argv else ''
SLEEP = 's_nop 0'
for _x in sys.argv:
    if _x.startswith('--sleep='): SLEEP = 's_sleep ' + _x.split('=')[1]
def k2(a):
    X, WR_, OUT, WS, FA, FB = 16, 20, 24, 28, 32, 36
    sW, sN, sG = 40, 43, 41
    Q, C, KF, VF, S, O = 8, 12, 28, 36, 52, 84
    IDX, KA, VA, LN16, XO, WRO, M, VA0 = 100, 101, 102, 103, 104, 105, 106, 107
    WO = 108; XRES, WRV, FWR = 236, 240, 244
    BAR_TILE = 10
    X_ = [x for x in sys.argv if x.startswith("--x")]
    a(f"""
    L2_start:
    s_setprio 0
    s_load_dwordx8 s[52:59], s[0:1], 48
    s_load_dwordx2 s[8:9], s[0:1], 80
    v_lshlrev_b32 v{LN16}, 4, v2
    v_and_b32 v5, 31, v2
    v_lshrrev_b32 v6, 5, v2
    s_lshl_b32 s{sG}, s41, 3
    s_add_u32 s{sG}, s{sG}, s42
    s_lshl_b32 s44, s{sG}, 13
    s_lshl_b32 s45, s{sW}, 10
    s_add_u32 s46, s44, s45
    s_add_u32 s47, s45, {WS_KV}
    s_lshl_b32 s50, s{sW}, 16
    s_add_u32 s51, s50, {WS_WO}
    s_and_b32 s48, s{sW}, 4
    s_lshl_b32 s48, s48, 13
    s_add_u32 s50, s51, s48
    """)
    srd(a, WS, 14, WS_SIZE)
    def dma(i):
        return [f"s_add_u32 m0, s45, {i*8192}", f"s_add_u32 s48, s47, {i*8192}", f"buffer_load_dwordx4 v{LN16}, s[{WS}:{WS+3}], s48 offen sc1 lds"]
    a("s_waitcnt lgkmcnt(0)")
    srd(a, X, 4, 2 << 20); srd(a, WR_, 52, 1024); srd(a, OUT, 8, 2 << 20)
    a(f"""
    v_lshlrev_b32 v3, 8, v6
    v_lshl_add_u32 v3, v5, 4, v3
    v_and_b32 v4, 27, v5
    v_cmp_eq_u32 vcc, 16, v4
    v_mov_b32 v4, 528
    v_mov_b32 v7, 512
    v_cndmask_b32 v4, v4, v7, vcc
    v_cmp_gt_u32 vcc, 16, v5
    v_mov_b32 v{KA}, v{LN16}
    v_mov_b32 v{IDX}, 0xdddddddd
    v_cndmask_b32 v3, v4, v3, vcc
    v_add_u32 v{VA0}, 1024, v3
    v_mov_b32 v{VA}, v{VA0}
    v_and_b32 v3, 12, v2
    v_lshlrev_b32 v3, 2, v3
    v_lshl_add_u32 v3, v6, 6, v3
    s_lshl_b32 s49, s{sW}, 7
    v_add_u32 v{WRO}, s49, v3
    v_and_b32 v4, 16, v2
    v_lshlrev_b32 v4, 8, v4
    v_and_b32 v3, 15, v2
    v_lshl_add_u32 v0, v3, 2, v4
    v_lshl_add_u32 v0, v6, 6, v0
    v_add_u32 v0, s49, v0
    v_and_b32 v3, 3, v2
    v_lshl_add_u32 v4, v3, 10, v4
    v_add_u32 v{XO}, v4, v{WRO}
    s_and_b32 s48, s2, 7
    s_lshr_b32 s49, s2, 3
    s_mul_i32 s64, s48, 22
    s_add_u32 s64, s64, s49
    s_lshl_b32 s48, s48, 3
    s_add_u32 s48, s48, s49
    s_sub_u32 s61, s48, 22
    s_and_b32 s61, s61, 63
    s_lshl_b32 s61, s61, 4
    s_min_u32 s48, s64, 171
    s_lshl_b32 s48, s48, 4
    s_mul_i32 s49, s{sW}, {64*2752}
    s_add_u32 s48, s48, s49
    s_lshl_b32 s49, s{sW}, 16
    s_add_u32 s49, s49, s61
    s_add_u32 s66, s49, {512*1024}
    s_add_u32 s67, s49, {1024*1024}
    s_movk_i32 s60, 2752
    s_cmp_ge_u32 s2, 176
    s_cselect_b32 s65, s49, s48
    s_cselect_b32 s66, s66, s48
    s_cselect_b32 s67, s67, 0x200000
    s_cselect_b32 s60, 0x400, s60
    s_cselect_b32 s54, s58, s54
    s_cselect_b32 s55, s59, s55
    s_cselect_b32 s56, s58, s56
    s_cselect_b32 s57, s59, s57
    v_mul_u32_u24 v1, s60, v2
    """)
    srd(a, FA, 54, 512*2752); srd(a, FB, 56, 512*2752)
    a(f"""
    s_mov_b32 s60, {16*8192}
    s_cmp_lt_u32 s{sW}, 4
    s_cselect_b32 s60, s60, {WS_SIZE}
    v_mov_b32 v3, {CNT}
    """)
    for r in range(16): a(f"v_mov_b32 v{O+r}, 0")
    a(f"""
    ds_write_b32 v3, v{O}
    ds_write_b128 v3, {vr(O,4)} offset:16
    s_lshr_b32 s12, s46, 1
    s_add_u32 s12, s12, {WS_QB}
    s_add_u32 s46, s46, {WS_Q}
    v_lshrrev_b32 v7, 4, v2
    v_lshlrev_b32 v7, 7, v7
    v_and_b32 v4, 7, v2
    v_lshl_add_u32 v7, v4, 4, v7
    s_cmp_lt_u32 s{sW}, 4
    s_cbranch_scc1 L2_noflag
    s_sub_u32 s13, s{sW}, 4
    """)
    if "--fw1" not in sys.argv:
        a(f"""
        s_lshl_b32 s48, s13, {FSH + 6}
        s_add_u32 s48, s48, {WS_FLG}
        v_lshlrev_b32 v3, {FSH}, v2
        s_mov_b32 s49, 0
        L2_fpoll:
        buffer_load_dword v4, v3, s[{WS}:{WS+3}], s48 offen sc1
        s_add_u32 s49, s49, 1
        s_waitcnt vmcnt(0)
        v_cmp_ne_u32 vcc, s{sEP}, v4
        s_cmp_gt_u32 s49, 0x40000
        s_cbranch_scc1 L2_fgot
        s_and_b64 exec, exec, vcc
        s_cbranch_scc1 L2_fpoll
        L2_fgot:
        s_mov_b64 exec, 1
        v_mov_b32 v3, {K1_EP + 8}
        v_mov_b32 v4, 1
        ds_add_u32 v3, v4
        """)
    else:
        a(f"""
        s_cmp_lg_u32 s{sW}, 5
        s_cbranch_scc1 L2_fwait
        s_mov_b32 s48, {WS_FLG}
        v_lshlrev_b32 v3, {KSH + 2}, v2
        s_mov_b32 s49, 0
        L2_fpoll:
        """)
        for q in range(4): a(f"buffer_load_dword v{S+q}, v3, s[{WS}:{WS+3}], s48 offen offset:{q << KSH} sc1")
        a(f"""
        s_add_u32 s49, s49, 1
        s_waitcnt vmcnt(0)
        v_xor_b32 v{S}, s{sEP}, v{S}
        v_xor_b32 v{S+1}, s{sEP}, v{S+1}
        v_xor_b32 v{S+2}, s{sEP}, v{S+2}
        v_xor_b32 v{S+3}, s{sEP}, v{S+3}
        v_or3_b32 v4, v{S}, v{S+1}, v{S+2}
        v_or_b32 v4, v4, v{S+3}
        v_cmp_ne_u32 vcc, 0, v4
        s_cmp_gt_u32 s49, 0x40000
        s_cbranch_scc1 L2_fgot
        s_and_b64 exec, exec, vcc
        s_cbranch_scc1 L2_fpoll
        L2_fgot:
        s_mov_b64 exec, 1
        v_mov_b32 v3, {K1_EP + 8}
        v_mov_b32 v4, 4
        ds_write_b32 v3, v4
        L2_fwait:
        s_mov_b64 exec, 1
        v_mov_b32 v3, {K1_EP + 8}
        """)
    a(f"""
    L2_fspin:
    ds_read_b32 v4, v3
    s_waitcnt lgkmcnt(0)
    v_readfirstlane_b32 s49, v4
    s_cmp_lt_u32 s49, 4
    s_cbranch_scc1 L2_fspin
    s_mov_b64 exec, -1
    @S2
    s_lshl_b32 s13, s13, 10
    s_add_u32 s62, s13, {WS_KV}
    """)
    for i in range(6):
        a(f"s_add_u32 m0, s13, {i*4096}\ns_add_u32 s48, s62, {i*4096}\nbuffer_load_dwordx4 v{LN16}, s[{WS}:{WS+3}], s48 offen sc1 lds")
    a(f"""
    L2_noflag:
    {'' if '--nobarA' in sys.argv else 's_barrier'}
    @T6
    s_mov_b32 s49, 0
    L2_qpoll:
    buffer_load_dwordx4 {vr(Q,4)}, v{LN16}, s[{WS}:{WS+3}], s46 offen sc1
    buffer_load_dwordx4 {vr(S,4)}, v7, s[{WS}:{WS+3}], s12 offen sc1
    s_add_u32 s49, s49, 1
    s_waitcnt vmcnt(0)
    v_cmp_ne_u32 vcc, s{sEP}, v{Q+3}
    v_cmp_ne_u32 s[62:63], s{sEP}, v{S+3}
    s_cmp_gt_u32 s49, 0x40000
    s_cbranch_scc1 L2_qgot
    s_or_b64 exec, vcc, s[62:63]
    s_cbranch_scc1 L2_qpoll
    L2_qgot:
    s_mov_b64 exec, -1
    s_mov_b32 s62, 0xff00ff00
    s_mov_b32 s63, s62
    v_cndmask_b32 v{Q+3}, v{S}, v{S+1}, s[62:63]
    s_waitcnt lgkmcnt(0)
    s_barrier
    @S3
    ds_read_b128 {vr(KF,4)}, v{KA}
    ds_read_b128 {vr(KF+4,4)}, v{KA} offset:{TILE}
    ds_read_b128 {vr(VF,4)}, v{VA}
    ds_read_b128 {vr(VF+4,4)}, v{VA} offset:544
    s_waitcnt lgkmcnt(3)
    {MF32} {vr(S,16)}, {vr(KF,4)}, {vr(Q,4)}, 0
    s_waitcnt lgkmcnt(2)
    {MF32} {vr(S+16,16)}, {vr(KF+4,4)}, {vr(Q,4)}, 0
    s_nop 9
    v_max3_f32 v{M}, v{S}, v{S+1}, v{S+2}
    """)
    for r in range(3, 31, 2): a(f"v_max3_f32 v{M}, v{S+r}, v{S+r+1}, v{M}")
    a(f"""
    v_max_f32 v{M}, v{S+31}, v{M}
    v_mov_b32 v3, v{M}
    s_nop 1
    v_permlane32_swap_b32 v{M}, v3
    v_max_f32 v{M}, v{M}, v3
    v_sub_f32 v{C}, {hex(f2u(-SHIFT))}, v{M}
    """)
    for r in range(1, 16): a(f"v_mov_b32 v{C+r}, v{C}")
    a(f"""
    @S4
    @S13
    @T1
    s_nop 1
    {MF32} {vr(S,16)}, {vr(KF,4)}, {vr(Q,4)}, {vr(C,16)}
    s_waitcnt lgkmcnt(0)
    s_nop 10
    """)
    base = 0
    nwo = 0
    NPT = 2 if '--npt2' in sys.argv else 3
    queue = [dma(i) for i in range(3, 17)]
    queue[-1][1] = "s_add_u32 s48, s47, s60"
    ffn = [[f"buffer_load_dwordx4 {vr(FWR+4*i,4)}, v1, s[{FA if i == 0 else FB}:{(FA if i == 0 else FB)+3}], s{65+i} offen"] for i in range(3)]
    wol = [(["s_add_u32 s50, s50, 4096"] if (f and f % 4 == 0) else []) + [f"buffer_load_dwordx4 {vr(WO + 4*f, 4)}, v{LN16}, s[{WS}:{WS+3}], s50 offen offset:{(f & 3)*1024} sc1"] for f in range(32)]
    xw = [[f"buffer_load_dword v{XRES+r}, v0, s[{X}:{X+3}], s44 offen offset:{r*1024}"] for r in range(4)] + [[f"buffer_load_dwordx4 {vr(WRV,4)}, v{WRO}, s[{WR_}:{WR_+3}], 0 offen"]]
    SCH = [x.split("=")[1] for x in sys.argv if x.startswith("--sch=")]
    SCH = SCH[0] if SCH else "E"
    if SCH == "A":
        queue += wol + xw + ffn
        cnt = lambda t: 2 if t < 7 or 10 <= t <= 26 else 1 if t in (27, 29, 31) else 0
    elif SCH == "B":
        queue += wol + xw + ffn
        cnt = lambda t: 2 if t <= 23 else 1
    elif SCH == "C":
        queue += xw + wol[:4] + ffn[:1] + wol[4:5] + ffn[1:2] + wol[5:6] + ffn[2:] + wol[6:]
        cnt = lambda t: 2
    elif SCH == "D":
        queue += wol + xw + ffn
        cnt = lambda t: 2 if t <= 23 else 1 if t in (58, 60, 62) else 0
    elif SCH == "E":
        queue += wol + xw + ffn
        cnt = lambda t: 2 if t <= 24 else 1 if t in (25, 52, 56, 60) else 0
    elif SCH == "F":
        queue += wol + xw + ffn
        cnt = lambda t: 2 if t <= 23 else 1 if t in (61, 62, 63) else 0
    nissued = 0
    if '--noprio' not in sys.argv: a('s_setprio 1')
    for _x in sys.argv:
        if _x.startswith('--al='): a('.p2align 6\n' + 's_nop 0\n' * int(_x.split('=')[1]))
    if '--vmask' in sys.argv: a('s_mov_b32 s100, 0xffff\ns_mov_b32 s101, 0xffff' if DIAG else 's_mov_b32 s70, 0xffff\ns_mov_b32 s71, 0xffff')
    for t in range(64):
        cur, nxt = t & 1, (t + 1) & 1
        Sc, Sn = S + 16*cur, S + 16*nxt
        e = [f"v_exp_f32 v{Sc+i}, v{Sc+i}" for i in range(16)]
        n_ = cnt(t); side = sum(queue[:n_], []); queue = queue[n_:]
        if t == BAR_TILE: a(f"s_waitcnt vmcnt({nissued - 14})\ns_barrier")
        nissued += sum(1 for x in side if x.startswith("buffer"))
        if (t + 2 - base) * TILE + TILE > 65535:
            a(f"v_add_u32 v{KA}, {(t - base)*TILE}, v{KA}\nv_add_u32 v{VA}, {(t - base)*TILE}, v{VA}")
            base = t
        after = {i: [] for i in range(16)}
        side = [x for x in side if x]
        grp, curg = [], []
        for x in side:
            curg.append(x)
            if x.startswith("buffer"): grp.append(curg); curg = []
        if t > 0: after[1].append(f"{SMF} {vr(O,16)}, {vr(VF+8*nxt+4,4)}, {vr(Sn+8,8)}, v{IDX}")
        va = f"ds_read_b128 {vr(VF+8*nxt,4)}, v{VA} offset:{(t+1-base)*TILE}"
        vb = f"ds_read_b128 {vr(VF+8*nxt+4,4)}, v{VA} offset:{(t+1-base)*TILE+544}"
        VM = "--vmask" in sys.argv and t >= 1
        VQ = "--vq1" in sys.argv
        if t < 63:
            if VM: after[1] += ["s_mov_b64 exec, s[70:71]" if not DIAG else "s_mov_b64 exec, s[100:101]", va, vb, "s_mov_b64 exec, -1"]
            elif VQ: after[1] += [va, vb]
            else: after[1].append(va)
            after[5].append(f"{MF32} {vr(Sn,16)}, {vr(KF+4*nxt,4)}, {vr(Q,4)}, {vr(C,16)}")
        if t < 62: after[5].append(f"ds_read_b128 {vr(KF+4*cur,4)}, v{KA} offset:{(t+2-base)*TILE}")
        after[11].append(f"{SMF} {vr(O,16)}, {vr(VF+8*cur,4)}, {vr(Sc,8)}, v{IDX}")
        after[11].append("s_waitcnt lgkmcnt(0)")
        if t < 63 and not VM and not VQ: after[11].append(vb)
        for g, slot in zip(grp, (1, 5, 11) if len(grp) == 3 else (5, 11)): after[slot] += g
        assert len(grp) <= 3
        for i in range(16):
            a(e[i])
            for x in after[i]: a(x)
    a(f"""
    @S8
    @S14
    s_nop 1
    {SMF} {vr(O,16)}, {vr(VF+12,4)}, {vr(S+24,8)}, v{IDX}
    s_mov_b32 s48, {hex(f2u(2.0**110))}
    s_mov_b32 s12, {hex(f2u(2.0**-104))}
    v_and_b32 v4, 7, v5
    v_mul_u32_u24 v4, 1040, v4
    v_lshrrev_b32 v7, 3, v5
    v_lshl_add_u32 v4, v7, 5, v4
    v_lshl_add_u32 v4, v6, 3, v4
    s_lshl_b32 s49, s{sW}, 7
    s_add_u32 s49, s49, {OB}
    v_add_u32 v4, s49, v4
    v_and_b32 v1, 7, v2
    v_mul_u32_u24 v0, 1040, v1
    v_lshrrev_b32 v7, 4, v2
    v_mul_f32 v3, 0, v{O}
    """)
    for r in range(1, 8): a(f"v_fma_f32 v3, v{O+r}, 0, v3")
    a(f"""
    v_add_f32 v3, v3, v{O+8}
    v_cmp_ngt_f32 vcc, s48, v3
    v_cmp_gt_f32 s[62:63], s12, v3
    v_rcp_f32 v3, v{O+8}
    s_or_b64 vcc, vcc, s[62:63]
    s_cbranch_scc1 L2_slow
    L2_epi:
    """)
    for r in range(8): a(f"v_mul_f32 v{O+r}, v3, v{O+r}")
    for r in range(4): a(f"v_cvt_pk_bf16_f32 v{O+r}, v{O+2*r}, v{O+2*r+1}")
    BA, PA = 101, 102
    a(f"""
    ds_write_b64 v4, {vr(O,2)}
    ds_write_b64 v4, {vr(O+2,2)} offset:16
    v_lshl_add_u32 v{BA}, v7, 5, v0
    v_and_b32 v3, 8, v2
    v_lshl_add_u32 v{BA}, v3, 1, v{BA}
    v_add_u32 v{BA}, {OB}, v{BA}
    v_cmp_ne_u32 vcc, 0, v3
    v_mov_b32 v{IDX}, 0x4444
    v_mov_b32 v3, 0xeeee
    s_and_b32 s49, s{sW}, 3
    s_lshl_b32 s49, s49, 12
    s_add_u32 s49, s49, {PART}
    v_add_u32 v{PA}, s49, v{LN16}
    v_cndmask_b32 v{IDX}, v{IDX}, v3, vcc
    s_waitcnt vmcnt(3)
    s_cmp_lt_u32 s{sW}, 4
    {'' if '--xnoold' in X_ else 's_cbranch_scc1 L2_old'}
    L2_join:
    @S7
    """)
    if "--tsync" in sys.argv:
        a(f"""
        s_mul_i32 s90, s2, 37
        s_and_b32 s90, s90, 63
        s_mul_i32 s90, s90, 80
        s_lshr_b32 s90, s90, 6
        s_add_u32 s90, s90, 4000
        s_mov_b32 s91, 0
        LT_spin:
        s_memrealtime s[92:93]
        s_waitcnt lgkmcnt(0)
        s_sub_u32 s92, s92, s{sEP}
        s_add_u32 s91, s91, 1
        s_cmp_gt_u32 s91, 100000
        s_cbranch_scc1 LT_done
        s_cmp_lt_u32 s92, s90
        s_cbranch_scc1 LT_spin
        LT_done:
        """)
    a(f"""
    """)
    HF, T, WF8, TOK = 60, 68, 52, 106
    ACC = O
    BF = [Q, 28, 32, 36]
    for j in range(4):
        a(f"v_lshlrev_b32 v{HF+2*j}, 16, v{XRES+j}\nv_and_b32 v{HF+2*j+1}, 0xffff0000, v{XRES+j}")
        a(f"v_lshlrev_b32 v{WF8+2*j}, 16, v{WRV+j}\nv_and_b32 v{WF8+2*j+1}, 0xffff0000, v{WRV+j}")
    a(f"v_add_f32 v{T+3}, v{WF8}, v{WF8+1}")
    for j in range(2, 8): a(f"v_add_f32 v{T+3}, v{T+3}, v{WF8+j}")
    a(f"""
    v_mov_b32 v7, 0x3f803f80
    v_lshrrev_b32 v{TOK}, 10, v{XO}
    v_lshlrev_b32 v4, 5, v{TOK}
    v_add_u32 v4, {RED}, v4
    v_lshrrev_b32 v3, 5, v2
    v_lshl_add_u32 v3, v3, 9, v4
    s_lshl_b32 s49, s{sW}, 2
    v_add_u32 v3, s49, v3
    v_add_u32 v0, s45, v{LN16}
    s_add_u32 s49, s44, {WS_H}
    s_cmp_ge_u32 s{sW}, 4
    s_cselect_b64 s[62:63], -1, 0
    s_waitcnt lgkmcnt(0)
    s_barrier
    @S9
    @T2
    s_mov_b64 exec, s[62:63]
    """)
    for i in range(4): a(f"ds_read_b128 {vr(ACC+4*i,4)}, v{PA} offset:{1024*i}")
    a("s_mov_b64 exec, -1")
    for s_ in range(4): a(f"ds_read_b128 {vr(BF[s_],4)}, v{BA} offset:{(s_+4)*128}")
    for s_ in range(4):
        a(f"s_waitcnt lgkmcnt({3 - s_})")
        for i in range(4):
            a(f"{SM16} {vr(ACC+4*i,4)}, {vr(BF[s_],4)}, {vr(WO+32*s_+8*i,8)}, v{IDX}")
    a("s_waitcnt vmcnt(0)")
    for i in range(3): a(f"ds_write_b128 v0, {vr(FWR+4*i,4)} offset:{FW + i*8192}")
    A8, HB = 40, 48
    a("s_mov_b32 vcc_lo, 0x55555555\ns_mov_b32 vcc_hi, 0x55555555\ns_nop 1")
    for p in range(2):
        for r in range(4): a(f"v_permlane32_swap_b32 v{ACC+8*p+r}, v{ACC+8*p+4+r}")
    for r in range(4):
        for p in range(2): a(f"v_add_f32 v{HF+2*r+p}, v{HF+2*r+p}, v{ACC+8*p+r}")
    for r in range(4):
        for p in range(2): a(f"v_add_f32 v{HF+2*r+p}, v{HF+2*r+p}, v{ACC+8*p+4+r}")
    for r in range(4): a(f"v_cvt_pk_bf16_f32 v{A8+r}, v{HF+2*r}, v{HF+2*r+1}")
    X1, X2 = "quad_perm:[1,0,3,2] row_mask:0xf bank_mask:0xf", "quad_perm:[2,3,0,1] row_mask:0xf bank_mask:0xf"
    N = A8 + 4
    a(f"""
    s_nop 0
    v_cndmask_b32_dpp v{N}, v{A8+1}, v{A8}, vcc {X1}
    v_cndmask_b32_dpp v{N+2}, v{A8+3}, v{A8+2}, vcc {X1}
    s_not_b64 vcc, vcc
    v_cndmask_b32_dpp v{N+1}, v{A8}, v{A8+1}, vcc {X1}
    v_cndmask_b32_dpp v{N+3}, v{A8+2}, v{A8+3}, vcc {X1}
    s_mov_b32 vcc_lo, 0x33333333
    s_mov_b32 vcc_hi, 0x33333333
    v_cndmask_b32_dpp v{HB}, v{N+2}, v{N}, vcc {X2}
    v_cndmask_b32_dpp v{HB+1}, v{N+3}, v{N+1}, vcc {X2}
    s_not_b64 vcc, vcc
    v_cndmask_b32_dpp v{HB+2}, v{N}, v{N+2}, vcc {X2}
    v_cndmask_b32_dpp v{HB+3}, v{N+1}, v{N+3}, vcc {X2}
    buffer_store_dwordx4 {vr(HB,4)}, v{XO}, s[{WS}:{WS+3}], s49 offen sc0 sc1
    """)
    for j in range(4): a(f"v_lshlrev_b32 v{HF+2*j}, 16, v{HB+j}\nv_and_b32 v{HF+2*j+1}, 0xffff0000, v{HB+j}")
    a(f"v_add_f32 v{T}, v{HF}, v{HF+1}\nv_mul_f32 v{T+1}, v{HF}, v{HF}\nv_mul_f32 v{T+2}, v{HF}, v{WF8}")
    for j in range(1, 8):
        if j > 1: a(f"v_add_f32 v{T}, v{T}, v{HF+j}")
        a(f"v_fmac_f32 v{T+1}, v{HF+j}, v{HF+j}\nv_fmac_f32 v{T+2}, v{HF+j}, v{WF8+j}")
    a(f"""
    s_nop 0
    v_permlane32_swap_b32 v{T}, v{T+1}
    v_permlane32_swap_b32 v{T+2}, v{T+3}
    v_add_f32 v{T}, v{T}, v{T+1}
    v_add_f32 v{T+2}, v{T+2}, v{T+3}
    s_nop 0
    v_add_f32_dpp v{T}, v{T}, v{T} row_ror:8 row_mask:0xf bank_mask:0xf
    v_add_f32_dpp v{T+2}, v{T+2}, v{T+2} row_ror:8 row_mask:0xf bank_mask:0xf
    s_nop 0
    v_add_f32_dpp v{T}, v{T}, v{T} row_ror:4 row_mask:0xf bank_mask:0xf
    v_add_f32_dpp v{T+2}, v{T+2}, v{T+2} row_ror:4 row_mask:0xf bank_mask:0xf
    ds_write_b32 v3, v{T}
    ds_write_b32 v3, v{T+2} offset:256
    """)
    KR = 128
    def kloads():
        if KMAP:
            for q in range(4): a(f"buffer_load_dwordx2 {vr(KR+2*q,2)}, v8, s[{WS}:{WS+3}], s{56+q} offen sc1")
        else:
            for q in range(4): a(f"buffer_load_dwordx2 {vr(KR+2*q,2)}, v8, s[{WS}:{WS+3}], s48 offen offset:{q << KSH} sc1")
    a(f"""
    s_waitcnt lgkmcnt(0)
    s_barrier
    @S11
    """)
    R_ = 108
    for q in (0, 2, 1, 3):
        a(f"ds_read_b128 {vr(R_+8*q,4)}, v4 offset:{q*256}\nds_read_b128 {vr(R_+8*q+4,4)}, v4 offset:{q*256+16}")
    def sum8(b):
        a(f"""
        v_add_f32 v{b}, v{b}, v{b+1}
        v_add_f32 v{b+2}, v{b+2}, v{b+3}
        v_add_f32 v{b+4}, v{b+4}, v{b+5}
        v_add_f32 v{b+6}, v{b+6}, v{b+7}
        v_add_f32 v{b}, v{b}, v{b+2}
        v_add_f32 v{b+4}, v{b+4}, v{b+6}
        v_add_f32 v{b}, v{b}, v{b+4}
        """)
    s1, s3, s2, s4 = R_, R_+8, R_+16, R_+24
    ST = 76
    OV = 80
    a("s_waitcnt lgkmcnt(4)")
    sum8(s1); sum8(s2)
    a(f"""
    v_mul_f32 v{ST}, {hex(f2u(1.0/512))}, v{s1}
    v_mul_f32 v{s2}, {hex(f2u(1.0/512))}, v{s2}
    v_fma_f32 v{s2}, -v{ST}, v{ST}, v{s2}
    v_max_f32 v{s2}, 0, v{s2}
    v_add_f32 v{s2}, {hex(f2u(EPS))}, v{s2}
    v_rsq_f32 v{ST+1}, v{s2}
    s_cmp_lg_u32 s{sW}, 0
    s_cbranch_scc1 L2_nokey
    s_waitcnt lgkmcnt(0)
    """)
    sum8(s3); sum8(s4)
    AF, BFR, STT, D, D2 = 140, 12, 204, 208, 212
    breg = lambda q: 12 + 4*q if q < 7 else 216 + 4*(q - 7)
    a(f"""
    v_fma_f32 v{s3}, -v{ST}, v{s4}, v{s3}
    s_lshl_b32 s48, s{sG}, 3
    v_add_u32 v4, s48, v{TOK}
    v_mul_f32 v{ST+2}, v{ST+1}, v{s3}
    v_mov_b32 v{ST+3}, s{sEP}
    v_lshlrev_b32 v0, 4, v4
    s_mov_b32 s48, {WS_ST}
    s_mov_b64 exec, 0x000f000f
    buffer_store_dwordx4 {vr(ST,4)}, v0, s[{WS}:{WS+3}], s48 offen sc0 sc1
    s_mov_b64 exec, -1
    v_ashrrev_i32 v3, 31, v{ST+2}
    v_or_b32 v3, 0x80000000, v3
    v_xor_b32 v3, v3, v{ST+2}
    v_and_b32 v3, 0xfffff800, v3
    v_sub_u32 v4, 2047, v4
    v_or_b32 v4, v3, v4
    s_lshl_b32 s48, s2, {KSH}
    s_add_u32 s48, s48, {WS_KEY}
    v_mov_b32_dpp v6, v4 quad_perm:[1,0,3,2] row_mask:0xf bank_mask:0xf
    v_mov_b32 v0, 0
    v_min_u32 v5, v4, v6
    v_max_u32 v4, v4, v6
    """)
    a(f"""
    s_nop 0
    v_mov_b32_dpp v3, v5 quad_perm:[2,3,0,1] row_mask:0xf bank_mask:0xf
    v_mov_b32_dpp v6, v4 quad_perm:[2,3,0,1] row_mask:0xf bank_mask:0xf
    v_max_u32 v5, v5, v3
    v_med3_u32 v5, v4, v5, v6
    v_max_u32 v4, v4, v6
    v_mov_b32 v3, v5
    v_mov_b32 v6, v4
    s_nop 0
    v_permlane16_swap_b32 v5, v3
    v_permlane16_swap_b32 v4, v6
    v_max_u32 v5, v5, v3
    v_med3_u32 v5, v4, v5, v6
    v_max_u32 v4, v4, v6
    """)
    a(f"""
    s_waitcnt vmcnt(1)
    s_barrier
    s_mov_b64 exec, 1
    buffer_store_dwordx2 v[4:5], v0, s[{WS}:{WS+3}], s48 offen sc0 sc1
    s_mov_b64 exec, -1
    @S5
    """)
    def outval():
        a(f"v_add_f32 v3, 1.0, v{ST+1}\nv_mul_f32 v6, v{ST}, v{ST+1}")
        for j in range(8): a(f"v_fma_f32 v{A8+j}, v{HF+j}, v3, -v6")
        for j in range(4): a(f"v_cvt_pk_bf16_f32 v{OV+j}, v{A8+2*j}, v{A8+2*j+1}")
    a(f"v_lshlrev_b32 v8, {KSH + (0 if KMAP else 2)}, v2\ns_mov_b32 s48, {WS_KEY}")
    if KMAP:
        for q in range(4): a(f"s_mov_b32 s{56+q}, {WS_KEY + (64*q << KSH)}")
    if "--knoack" in sys.argv: kloads()
    ROWS = 40960
    a(f"""
    v_and_b32 v9, 15, v2
    v_lshrrev_b32 v11, 4, v2
    v_lshrrev_b32 v10, 2, v9
    v_lshl_add_u32 v10, v11, 7, v10
    v_lshlrev_b32 v10, 4, v10
    v_and_b32 v0, 1, v9
    v_lshl_add_u32 v10, v0, 3, v10
    v_and_b32 v3, 2, v9
    v_lshl_add_u32 v10, v3, 12, v10
    """)
    for q in range(7): a(f"ds_read_b64_tr_b16 {vr(AF+4*q,2)}, v10 offset:{FW + q*128}\nds_read_b64_tr_b16 {vr(AF+4*q+2,2)}, v10 offset:{FW + q*128 + 64}")
    outval()
    a("s_waitcnt lgkmcnt(0)")
    for q in range(7, 14): a(f"ds_read_b64_tr_b16 {vr(AF+4*q,2)}, v10 offset:{FW + q*128}\nds_read_b64_tr_b16 {vr(AF+4*q+2,2)}, v10 offset:{FW + q*128 + 64}")
    a(f"v_mov_b32 v252, v7\nv_mov_b32 v253, v7\nv_mov_b32 v254, v7\nv_mov_b32 v255, v7\ns_waitcnt lgkmcnt(4)")
    for q in range(14, 16): a(f"ds_read_b64_tr_b16 {vr(AF+4*q,2)}, v10 offset:{FW + q*128}\nds_read_b64_tr_b16 {vr(AF+4*q+2,2)}, v10 offset:{FW + q*128 + 64}")
    if "--knoack" not in sys.argv: a("s_waitcnt vmcnt(0)"); kloads()
    a(f"""
    v_cmp_eq_u32 s[10:11], 1, v0
    v_mul_u32_u24 v10, 1040, v0
    v_lshl_add_u32 v10, v11, 8, v10
    v_lshlrev_b32 v{R_}, 4, v0
    v_lshl_add_u32 v{R_}, v11, 3, v{R_}
    s_mov_b32 s49, 0
    s_mov_b32 s46, 0
    s_mov_b32 s47, 0
    s_mov_b32 s51, {WS_ST}
    s_waitcnt lgkmcnt(0)
    """)
    for q in range(16): a(f"{MF16} {vr(D2,4)}, {vr(AF+4*q,4)}, v[252:255], {'0' if q == 0 else vr(D2,4)}")
    a(f"""
    L2_kpoll:
    s_waitcnt vmcnt(0)
    v_min_u32 v0, v{KR}, v{KR+2}
    v_min3_u32 v0, v{KR+4}, v{KR+6}, v0
    v_cmp_eq_u32 s[62:63], 0, v0
    s_add_u32 s49, s49, 1
    s_cmp_gt_u32 s49, 0x40000
    s_cselect_b64 s[62:63], 0, s[62:63]
    v_max_u32 v4, v{KR}, v{KR+2}
    v_min_u32 v5, v{KR}, v{KR+2}
    v_max3_u32 v5, v5, v{KR+1}, v{KR+3}
    v_med3_u32 v5, v4, v5, v{KR+4}
    v_max_u32 v4, v4, v{KR+4}
    v_med3_u32 v5, v4, v5, v{KR+6}
    v_max_u32 v4, v4, v{KR+6}
    v_max3_u32 v5, v5, v{KR+5}, v{KR+7}
    s_mov_b64 exec, s[62:63]
    s_cbranch_execz L2_klast
    """)
    kloads()
    a("L2_klast:\ns_mov_b64 exec, -1")
    for dpp in ("quad_perm:[1,0,3,2]", "quad_perm:[2,3,0,1]", "row_half_mirror", "row_mirror"):
        a(f"""
        v_mov_b32_dpp v3, v5 {dpp} row_mask:0xf bank_mask:0xf
        v_mov_b32_dpp v6, v4 {dpp} row_mask:0xf bank_mask:0xf
        v_max_u32 v5, v5, v3
        v_med3_u32 v5, v4, v5, v6
        v_max_u32 v4, v4, v6
        s_nop 0
        """)
    for sw in ("v_permlane16_swap_b32", "v_permlane32_swap_b32"):
        a(f"""
        v_mov_b32 v3, v5
        v_mov_b32 v6, v4
        s_nop 0
        {sw} v5, v3
        {sw} v4, v6
        v_max_u32 v5, v5, v3
        v_med3_u32 v5, v4, v5, v6
        v_max_u32 v4, v4, v6
        """)
    a(f"""
    v_readfirstlane_b32 s53, v5
    v_readfirstlane_b32 s52, v4
    v_cndmask_b32 v3, v4, v5, s[10:11]
    v_not_b32 v3, v3
    s_cmp_eq_u64 s[52:53], s[46:47]
    s_cbranch_scc1 L2_ksame
    s_mov_b64 s[46:47], s[52:53]
    s_cmp_ge_u32 s2, 176
    s_cbranch_scc1 L2_ksame
    s_andn2_b32 s54, 0x7ff, s52
    s_andn2_b32 s55, 0x7ff, s53
    s_lshl_b32 s54, s54, 10
    s_lshl_b32 s55, s55, 10
    s_add_u32 s54, s54, {WS_H}
    s_add_u32 s55, s55, {WS_H}
    s_mov_b32 m0, {ROWS}
    v_and_b32 v3, 0x7ff, v3
    buffer_load_dwordx4 v{LN16}, s[{WS}:{WS+3}], s54 offen sc1 lds
    s_mov_b32 m0, {ROWS + 1040}
    v_lshlrev_b32 v9, 4, v3
    buffer_load_dwordx4 v{LN16}, s[{WS}:{WS+3}], s55 offen sc1 lds
    buffer_load_dwordx4 {vr(STT,4)}, v9, s[{WS}:{WS+3}], s51 offen sc1
    L2_ksame:
    s_cmp_lg_u64 s[62:63], 0
    s_cbranch_scc1 L2_kpoll
    @S6
    v_mov_b32 v0, {CNT + 16}
    ds_write_b64 v0, v[4:5]
    s_cmp_ge_u32 s2, 176
    s_cbranch_scc1 L2_bc
    s_cmp_ge_u32 s64, 172
    s_cselect_b32 s48, 0x100000, s64
    s_lshl_b32 s48, s48, {ASH}
    s_add_u32 s48, s48, {WS_ACT}
    s_waitcnt vmcnt(1)
    """)
    for q in range(12): a(f"ds_read_b128 {vr(breg(q),4)}, v10 offset:{ROWS + q*16}")
    for q in range(16):
        a(f"s_waitcnt lgkmcnt({min(11, 15 - q)})")
        a(f"{MF16} {vr(D,4)}, {vr(AF+4*q,4)}, {vr(breg(q),4)}, {'0' if q == 0 else vr(D,4)}")
        if q < 4: a(f"ds_read_b128 {vr(breg(q+12),4)}, v10 offset:{ROWS + (q+12)*16}")
    E = R_ + 8
    a(f"""
    L2_stw:
    s_waitcnt vmcnt(0)
    v_cmp_ne_u32 vcc, s{sEP}, v{STT+3}
    s_nop 2
    s_cbranch_vccnz L2_stre
    L2_stok:
    s_nop 1
    """)
    for r in range(4): a(f"v_fma_f32 v{D+r}, -v{STT}, v{D2+r}, v{D+r}")
    for r in range(4): a(f"v_mul_f32 v{D+r}, v{D+r}, v{STT+1}")
    for r in range(4): a(f"v_mov_b32 v{E+4+r}, v{D+r}")
    for r in range(4): a(f"v_mul_f32 v{E+r}, {hex(f2u(-LOG2E))}, v{D+r}")
    for r in range(4): a(f"v_exp_f32 v{E+r}, v{E+r}")
    for r in range(4): a(f"v_permlane32_swap_b32 v{D+r}, v{E+4+r}")
    for r in range(4): a(f"v_add_f32 v{E+r}, 1.0, v{E+r}")
    for r in range(4): a(f"v_rcp_f32 v{E+r}, v{E+r}")
    for r in range(4): a(f"v_mul_f32 v{D+r}, v{D+r}, v{E+4+r}")
    for r in range(4): a(f"v_mul_f32 v{D+r}, v{D+r}, v{E+r}")
    a(f"""
    v_cvt_pk_bf16_f32 v{R_+2}, v{D}, v{D+1}
    v_cvt_pk_bf16_f32 v{R_+3}, v{D+2}, v{D+3}
    s_mov_b64 exec, 0x00030003
    buffer_store_dwordx2 {vr(R_+2,2)}, v{R_}, s[{WS}:{WS+3}], s48 offen sc0 sc1
    s_mov_b64 exec, -1
    @S10
    s_branch L2_bc
    L2_stre:
    s_add_u32 s49, s49, 1
    s_cmp_gt_u32 s49, 0x40000
    s_cbranch_scc1 L2_stok
    buffer_load_dwordx4 {vr(STT,4)}, v9, s[{WS}:{WS+3}], s51 offen sc1
    s_branch L2_stw
    L2_nokey:
    """)
    outval()
    a("s_waitcnt vmcnt(0)\ns_barrier")
    BFR = 164
    a(f"""
    L2_bc:
    v_and_b32 v9, 15, v2
    v_lshrrev_b32 v10, 2, v9
    v_lshrrev_b32 v11, 4, v2
    v_lshl_add_u32 v10, v11, 3, v10
    v_lshlrev_b32 v10, 4, v10
    v_and_b32 v8, 1, v9
    v_lshl_add_u32 v10, v8, 3, v10
    s_mul_i32 s49, s45, 3
    v_add_u32 v10, s49, v10
    """)
    for s_ in range(6):
        a(f"ds_read_b64_tr_b16 {vr(AF+4*s_,2)}, v10 offset:{FW + s_*512}\nds_read_b64_tr_b16 {vr(AF+4*s_+2,2)}, v10 offset:{FW + s_*512 + 64}")
    a(f"""
    v_mov_b32 v0, {CNT + 16}
    s_lshl_b32 s48, s{sG}, 3
    v_add_u32 v8, s48, v{TOK}
    s_waitcnt lgkmcnt(0)
    s_barrier
    ds_read_b64 v[4:5], v0
    s_waitcnt lgkmcnt(0)
    v_not_b32 v4, v4
    v_not_b32 v5, v5
    v_and_b32 v4, 0x7ff, v4
    v_and_b32 v5, 0x7ff, v5
    v_cmp_ne_u32 vcc, v4, v8
    v_cmp_ne_u32 s[62:63], v5, v8
    s_and_b64 exec, vcc, s[62:63]
    buffer_store_dwordx4 {vr(OV,4)}, v{XO}, s[{OUT}:{OUT+3}], s44 offen {OSC}
    s_mov_b64 exec, -1
    s_sub_u32 s48, s2, 176
    s_cmp_lt_u32 s48, 64
    s_cbranch_scc1 L2_st2
    L2_fin:
    @D0 15 {WS} {sW}
    s_endpgm
    """)
    a("L2_st2:")
    a(f"""
    v_and_b32 v6, 8, v2
    v_cmp_ne_u32 vcc, 0, v6
    s_mov_b32 s48, {WS_H}
    s_mov_b32 s51, {WS_ST}
    v_cndmask_b32 v3, v4, v5, vcc
    v_lshlrev_b32 v12, 10, v3
    v_lshl_add_u32 v12, v1, 1, v12
    v_add_u32 v12, s61, v12
    v_lshlrev_b32 v18, 4, v3
    buffer_load_ushort v13, v12, s[{WS}:{WS+3}], s48 offen sc1
    v_and_b32 v6, 1, v2
    v_lshlrev_b32 v0, {ASH}, v11
    v_lshl_add_u32 v0, v6, 4, v0
    s_mul_i32 s48, s{sW}, {24 << ASH}
    s_add_u32 s48, s48, {WS_ACT}
    s_mov_b32 s49, 0
    L2_apoll:
    buffer_load_dwordx4 {vr(STT,4)}, v18, s[{WS}:{WS+3}], s51 offen sc1
    """)
    for s_ in range(6):
        a(f"buffer_load_dwordx4 {vr(BFR+4*s_,4)}, v0, s[{WS}:{WS+3}], s48 offen offset:{s_*(4 << ASH)} sc1")
    a(f"s_add_u32 s49, s49, 1\ns_waitcnt vmcnt(0)\nv_max3_u32 v3, v{BFR}, v{BFR+1}, v{BFR+2}")
    for q in range(3, 23, 2): a(f"v_max3_u32 v3, v{BFR+q}, v{BFR+q+1}, v3")
    a(f"""
    v_max_u32 v3, v{BFR+23}, v3
    v_cmp_eq_u32 vcc, -1, v3
    v_cmp_ne_u32 s[62:63], s{sEP}, v{STT+3}
    s_cmp_gt_u32 s49, 0x40000
    s_cbranch_scc1 L2_agot
    s_or_b64 {'exec' if '--amask' in sys.argv else 'vcc'}, vcc, s[62:63]
    s_cbranch_scc0 L2_agot
    {SLEEP}
    s_branch L2_apoll
    L2_agot:
    s_mov_b64 exec, -1
    @S10
    """)
    for s_ in range(6): a(f"{MF16} {vr(D,4)}, {vr(AF+4*s_,4)}, {vr(BFR+4*s_,4)}, {'0' if s_ == 0 else vr(D,4)}")
    a(f"""
    v_and_b32 v3, 1, v11
    v_lshlrev_b32 v0, 5, v6
    v_lshl_add_u32 v0, v3, 4, v0
    s_lshl_b32 s48, s{sW}, 6
    s_add_u32 s48, s48, {FR}
    v_add_u32 v0, s48, v0
    v_lshlrev_b32 v10, 2, v9
    v_lshl_add_u32 v10, v11, 7, v10
    v_add_u32 v10, {FR}, v10
    ds_write_b128 v0, {vr(D,4)}
    s_waitcnt lgkmcnt(0)
    s_barrier
    s_cmp_lg_u32 s{sW}, 0
    s_cbranch_scc1 L2_fin
    ds_read2_b32 v[14:15], v10 offset0:0 offset1:16
    v_mul_f32 v16, {hex(f2u(-LOG2E))}, v{STT+2}
    v_exp_f32 v16, v16
    v_lshlrev_b32 v13, 16, v13
    v_add_f32 v16, 1.0, v16
    v_rcp_f32 v16, v16
    v_sub_f32 v17, v13, v{STT}
    v_fma_f32 v13, v17, v{STT+1}, v13
    s_waitcnt lgkmcnt(0)
    v_add_f32 v14, v14, v15
    v_mov_b32 v15, v14
    s_nop 1
    v_permlane32_swap_b32 v14, v15
    v_add_f32 v14, v14, v15
    v_mov_b32 v15, v14
    s_nop 1
    v_permlane16_swap_b32 v14, v15
    v_add_f32 v14, v14, v15
    v_fma_f32 v14, v14, v16, v13
    v_cvt_pk_bf16_f32 v14, v14, v14
    s_mov_b64 exec, 0xffff
    buffer_store_short v14, v12, s[{OUT}:{OUT+3}], 0 offen {OSC}
    @Q {WS}
    @D0 15 {WS} {sW}
    L2_end:
    s_endpgm
    """)
    AB = 12
    def wl(reg, sb, f):
        a(f"buffer_load_dwordx4 {vr(reg,4)}, v{LN16}, s[{WS}:{WS+3}], s{sb} offen offset:{(f & 3)*1024} sc1")
        if f % 4 == 3: a(f"s_add_u32 s{sb}, s{sb}, 4096")
    NE = 10
    breg = lambda f: 40 + 4*f if f < NE else WO + 4*(f - NE)
    a(f"""
    L2_old:
    s_setprio 0
    v_mov_b32 v3, {CNT}
    v_mov_b32 v4, 1
    s_waitcnt lgkmcnt(0)
    s_mov_b64 exec, 1
    ds_add_u32 v3, v4
    s_mov_b64 exec, -1
    s_add_u32 s48, s51, {4*65536}
    v_mov_b32 v7, {1024 + 528}
    """)
    for i in range(4): a(f"ds_read_b128 {vr(ACC+4*i,4)}, v7\nds_read_b128 {vr(AB+4*i,4)}, v7")
    for f in range(NE): wl(breg(f), 48, f)
    a(f"""
    L2_spin:
    ds_read_b32 v4, v3
    s_waitcnt lgkmcnt(0)
    v_readfirstlane_b32 s49, v4
    s_cmp_ge_u32 s49, 4
    s_cbranch_scc1 L2_go
    s_sleep 2
    s_branch L2_spin
    L2_go:
    """)
    for s_ in range(4): a(f"ds_read_b128 {vr(BF[s_],4)}, v{BA} offset:{s_*128}")
    def half(acc, reg, after):
        for s_ in range(4):
            for i in range(4):
                f = 8*s_ + 2*i
                after(f, 0)
                a(f"{SM16} {vr(acc+4*i,4)}, {vr(BF[s_],4)}, {vr(reg(f),8)}, v{IDX}")
                after(f, 1)
    a(f"s_add_u32 s49, s51, {32768 + ((32 - NE)//4)*4096}\ns_waitcnt lgkmcnt(0)")
    def aftA(f, post):
        if not post: return
        for slot in (f, f + 1):
            if slot < 32 - NE: wl(WO + 4*slot, 48, slot + NE)
            else: wl(WO + 4*slot, 49, slot)
    half(ACC, lambda f: WO + 4*f, aftA)
    a(f"s_add_u32 s49, s51, 32768")
    def aftB(f, post):
        if not post:
            done = max(0, f - NE)
            a(f"s_waitcnt vmcnt({min(63, (31 - (f + 1)) + NE + done)})"); return
        for g in (f, f + 1):
            if g >= NE: wl(WO + 4*(g - NE), 49, g - NE)
    half(AB, breg, aftB)
    a("s_nop 5")
    for i in range(4): a(f"ds_write_b128 v{PA}, {vr(AB+4*i,4)} offset:{1024*i}")
    a("s_waitcnt vmcnt(0)\ns_setprio 1\ns_branch L2_join")
    a(f"""
    L2_slow:
    v_mov_b32 v{KA}, v{LN16}
    v_mov_b32 v{M}, 0xff7fffff
    s_mov_b32 s{sN}, 64
    L2_maxloop:
    ds_read_b128 {vr(KF,4)}, v{KA}
    v_add_u32 v{KA}, {TILE}, v{KA}
    s_waitcnt lgkmcnt(0)
    {MF32} {vr(S,16)}, {vr(KF,4)}, {vr(Q,4)}, 0
    s_sub_u32 s{sN}, s{sN}, 1
    s_nop 10
    """)
    for r in range(8): a(f"v_max3_f32 v{M}, v{S+2*r}, v{S+2*r+1}, v{M}")
    a(f"""
    s_cmp_lg_u32 s{sN}, 0
    s_cbranch_scc1 L2_maxloop
    v_mov_b32 v3, v{M}
    v_mov_b32 v{KA}, v{LN16}
    v_mov_b32 v{VA}, v{VA0}
    v_permlane32_swap_b32 v{M}, v3
    v_max_f32 v{M}, v{M}, v3
    """)
    for r in range(16): a(f"v_mov_b32 v{O+r}, 0")
    a(f"""
    s_mov_b32 s{sN}, 64
    L2_slowloop:
    ds_read_b128 {vr(KF,4)}, v{KA}
    ds_read_b128 {vr(VF,4)}, v{VA}
    ds_read_b128 {vr(VF+4,4)}, v{VA} offset:544
    v_add_u32 v{KA}, {TILE}, v{KA}
    v_add_u32 v{VA}, {TILE}, v{VA}
    s_waitcnt lgkmcnt(0)
    {MF32} {vr(S,16)}, {vr(KF,4)}, {vr(Q,4)}, 0
    s_sub_u32 s{sN}, s{sN}, 1
    s_nop 10
    """)
    for i in range(16): a(f"v_sub_f32 v{S+i}, v{S+i}, v{M}")
    for i in range(16): a(f"v_exp_f32 v{S+i}, v{S+i}")
    a(f"""
    s_nop 1
    {SMF} {vr(O,16)}, {vr(VF,4)}, {vr(S,8)}, v{IDX}
    {SMF} {vr(O,16)}, {vr(VF+4,4)}, {vr(S+8,8)}, v{IDX}
    s_cmp_lg_u32 s{sN}, 0
    s_cbranch_scc1 L2_slowloop
    s_nop 11
    v_rcp_f32 v3, v{O+8}
    s_branch L2_epi
    """)
    k1_cold(a)
    return desc(KNAME, 256, 72)

NOTES = """;
"""
def main():
    hdr = open("sequential_preLN__grouped_kv_mqa__moe_arch_mod__prompt.s.ref").read().split("\n")
    top = [l for l in hdr if l.startswith(";") and "@launch" not in l and "Override" not in l and "grid=ceil" not in l]
    a = Asm()
    k1(a)
    d = k2(a)
    out = "\n".join(top) + "\n"
    out += f"; @launch grid=(256,1,1) block=(512,1,1) lds={max(K1_LDS, K2_LDS)}\n"
    out += NOTES
    out += '.amdgcn_target "amdgcn-amd-amdhsa--gfx950"\n.text\n' + a.text() + '.section .rodata,"a"\n' + d
    sys.stdout.write(out)
main()
```

```python
import sys, struct
def f2u(x): return struct.unpack("<I", struct.pack("<f", x))[0]

WS_Q   = 0
WS_KV  = 2 << 20
WS_WO  = 3 << 20
WS_H   = 4 << 20

WS_ST  = (6 << 20) + 0x10000
WS_ACT = (6 << 20) + 0x20000
WS_KEY = WS_ACT + 0x10000
KSH = 5; ASH = 7; FSH = 4
for _x in sys.argv:
    if _x.startswith('--ksh='): KSH = int(_x.split('=')[1])
    if _x.startswith('--fsh='): FSH = int(_x.split('=')[1])
    if _x.startswith('--ash='): ASH = int(_x.split('=')[1])
WS_FLG = WS_KEY + 0x10000
WS_QB = 7 << 20
sEP = 68
KNAME = 'sequential_preLN__grouped_kv_mqa__moe_arch_mod__prompt_kernel'
WS_SIZE = 8 << 20
TILE = 2112
QSCALE = 0.25 * 1.4426950408889634
EPS = 1e-5
SHIFT = 96.0
for _x in sys.argv:
    if _x.startswith('--shift='): SHIFT = float(_x.split('=')[1])

class Asm:
    def __init__(self): self.l = []
    def __call__(self, s):
        for x in s.split("\n"):
            x = x.strip()
            if x.startswith("@S"): stamp(self, int(x[2:])); continue
            if x.startswith("@P"): padstore(self, *[int(t) for t in x[2:].split()]); continue
            if x.startswith("@Q"): padspin(self, *[int(t) for t in x[2:].split()]); continue
            if x.startswith("@T"): padstamp(self, int(x[2:])); continue
            if x.startswith("@D"): dump(self, *[int(t) for t in x[2:].split()]); continue
            if x: self.l.append(("" if x.endswith(":") else "    ") + x)
    def text(self): return "\n".join(self.l) + "\n"

def srd(a, d, p, size):
    a(f"s_mov_b32 s{d}, s{p}\ns_and_b32 s{d+1}, s{p+1}, 0xffff\ns_mov_b32 s{d+2}, {size}\ns_mov_b32 s{d+3}, 0x20000")
def vr(b, n): return f"v[{b}:{b+n-1}]"
def head(a, name):
    a(f".globl {name}\n.p2align 8\n.type {name},@function\n{name}:")
def desc(name, nv, ns):
    return f""".p2align 6
.amdhsa_kernel {name}
  .amdhsa_next_free_vgpr {nv}
  .amdhsa_next_free_sgpr {102 if (DIAG or PAD is not None or '--tsync' in sys.argv) else ns}
  .amdhsa_accum_offset {(nv+3)//4*4}
  .amdhsa_group_segment_fixed_size 0
  .amdhsa_kernarg_size 104
  .amdhsa_user_sgpr_count 2
  .amdhsa_user_sgpr_kernarg_segment_ptr 1
  .amdhsa_system_sgpr_workgroup_id_x 1
.end_amdhsa_kernel
"""
DIAG = "--diag" in sys.argv
WS_DIAG = 16 << 20
if DIAG: WS_SIZE = 32 << 20
LIGHT = '--light' in sys.argv
def stamp(a, i, force=False):
    if LIGHT and i != 0 and not force: return
    if DIAG: a(f"{'s_memtime' if i >= 13 else 's_memrealtime'} s[{70+2*i}:{71+2*i}]\ns_waitcnt lgkmcnt(0)")
DIAG2 = "--diag2" in sys.argv
D2SEL = {0: [(0, 1), (2, 0), (8, 0)], 1: [(0, 1), (1, 0), (3, 0), (4, 0), (8, 0), (10, 0), (12, 0)], 2: [(0, 1), (1, 0), (3, 0), (5, 0), (6, 0), (7, 0)]}
_dl = [0]
def dump(a, kidx, n, WS, sW):
    if not DIAG: return
    stamp(a, min(n - 1, 12), True)
    if DIAG2:
        _dl[0] += 1
        base = sum(len(D2SEL[k]) for k in range(kidx))
        a(f"s_and_b32 s98, s2, 15\ns_cmp_lg_u32 s98, 0\ns_cbranch_scc1 LD_{_dl[0]}\ns_load_dwordx2 s[98:99], s[0:1], 88\ns_mov_b64 exec, 1\nv_mov_b32 v1, 0\ns_waitcnt lgkmcnt(0)\ns_add_u32 s98, s98, {512*(2-kidx)}\ns_addc_u32 s99, s99, 0")
        for j, (i, inv) in enumerate(D2SEL[kidx]):
            a(f"v_mov_b32 v0, s{70+2*i}")
            if inv: a("v_not_b32 v0, v0")
            a(f"global_atomic_umax v1, v0, s[98:99] offset:{4*(base+j)}\ns_nop 1")
        a(f"LD_{_dl[0]}:")
        return
    a(f"s_mov_b64 exec, 1\ns_lshl_b32 s69, s2, 4\ns_add_u32 s69, s69, s{sW}\ns_lshl_b32 s69, s69, 6\ns_add_u32 s69, s69, {WS_DIAG + kidx * (1 << 20)}\nv_mov_b32 v1, 0")
    for i in range(n):
        a(f"v_mov_b32 v0, s{70+2*i}\nbuffer_store_dword v0, v1, s[{WS}:{WS+3}], s69 offen offset:{4*i}")
PAD = [int(x.split("=")[1]) for x in sys.argv if x.startswith("--pad=")]
PAD = PAD[0] if PAD else None
WS_PAD = (6 << 20)
def padstamp(a, k):
    if PAD == k: a("s_memrealtime s[94:95]\ns_waitcnt lgkmcnt(0)")
def padstore(a, k, WS, sW): pass
def padspin(a, WS):
    if PAD is None: return
    a(f"s_mov_b32 s97, 0\nLQ_spin:\ns_memrealtime s[92:93]\ns_waitcnt lgkmcnt(0)\ns_sub_u32 s98, s92, s94\ns_add_u32 s97, s97, 1\ns_cmp_gt_u32 s97, 100000\ns_cbranch_scc1 LQ_done\ns_cmp_lt_u32 s98, 6000\ns_cbranch_scc1 LQ_spin\nLQ_done:")
MF32 = "v_mfma_f32_32x32x16_bf16"
MF16 = "v_mfma_f32_16x16x32_bf16"

ZERO_KB = 8
K1_KV = 131072
K1_CS = 147456
K1_KC = K1_CS + 1024
K1_KP = K1_KC + 1024
K1_PS = K1_KP + 4096
K1_EP = K1_PS + 1024
K1_LDS = K1_EP + 64
QSC = 'sc1' if '--qsc1' in sys.argv else '' if '--qplain' in sys.argv else 'sc0 sc1'
CODE_SPAN = 18600
NSPL = 4
for _x in sys.argv:
    if _x.startswith('--nspl='): NSPL = int(_x.split('=')[1])
WOC = 1 if '--woc1' in sys.argv else 2
def rowstat(a, s, m, r):
    a(f"""
    v_add_f32 v{m}, v{s}, v{s+2}
    v_add_f32 v{r}, v{s+1}, v{s+3}
    v_mul_f32 v{m}, {hex(f2u(-1.0/512))}, v{m}
    v_mul_f32 v{r}, {hex(f2u(1.0/512))}, v{r}
    v_fma_f32 v{r}, -v{m}, v{m}, v{r}
    v_max_f32 v{r}, 0, v{r}
    """)
    if "--exactln" in sys.argv:
        a(f"v_add_f32 v{r}, {hex(f2u(EPS))}, v{r}\nv_rsq_f32 v{r}, v{r}")
        return
    a(f"""
    v_cvt_pk_bf16_f32 v{r}, v{m}, v{r}
    v_lshlrev_b32 v{m}, 16, v{r}
    v_and_b32 v{r}, 0xffff0000, v{r}
    v_add_f32 v{r}, {hex(f2u(EPS))}, v{r}
    v_cvt_pk_bf16_f32 v{r}, v{r}, v{r}
    v_and_b32 v{r}, 0xffff0000, v{r}
    v_sqrt_f32 v{r}, v{r}
    s_nop 0
    v_cvt_pk_bf16_f32 v{r}, v{r}, v{r}
    v_and_b32 v{r}, 0xffff0000, v{r}
    v_rcp_f32 v{r}, v{r}
    """)
def split_ab(a, src, dst, kind):
    a(f"v_and_b32 v11, 0xffff0000, v{src}\nv_sub_f32 v12, v{src}, v11")
    if kind == "m": a(f"v_cvt_pk_bf16_f32 v{dst}, v11, v12\nv_cvt_pk_bf16_f32 v{dst+1}, v11, 0")
    else: a(f"v_cvt_pk_bf16_f32 v{dst}, v11, v11\nv_cvt_pk_bf16_f32 v{dst+1}, v12, 0")
def k1(a):
    X, WQ, WKV, WO, WS = 16, 20, 24, 32, 36
    sW, sTG, sCG = 40, 41, 42
    DBG = 28
    ONES = 69
    VL = 13
    head(a, KNAME)
    a(f"""
    s_cmp_ge_u32 s2, 256
    s_cbranch_scc1 L2_end
    @S0
    @T0
    s_load_dwordx8 s[4:11], s[0:1], 0
    s_load_dwordx2 s[12:13], s[0:1], 32
    s_load_dwordx2 s[14:15], s[0:1], 96
    s_load_dwordx2 s[64:65], s[0:1], 88
    v_lshrrev_b32 v1, 6, v0
    v_and_b32 v2, 63, v0
    v_readfirstlane_b32 s{sW}, v1
    s_and_b32 s43, s2, 7
    s_lshr_b32 s44, s2, 3
    s_and_b32 s45, s44, 3
    s_lshl_b32 s{sTG}, s43, 2
    s_add_u32 s{sTG}, s{sTG}, s45
    s_lshr_b32 s{sCG}, s44, 2
    v_and_b32 v3, 15, v2
    v_lshrrev_b32 v4, 4, v2
    v_lshlrev_b32 v{VL}, 4, v2
    s_and_b32 s46, s{sW}, 3
    s_lshl_b32 s50, s46, 12
    s_and_b32 s58, s{sCG}, 3
    s_cmp_lt_u32 s{sW}, 4
    s_cbranch_scc1 L1_gemm
    """)
    VX, VW, XR = 16, 22, 32
    pass
    for i in range(4):
        a(f"v_add_u32 v7, {4*i}, v4\nv_xor_b32 v{VX+i}, v7, v3\nv_lshlrev_b32 v{VX+i}, 4, v{VX+i}\nv_lshl_add_u32 v{VX+i}, v7, 10, v{VX+i}")
    a(f"""
    v_lshrrev_b32 v7, 3, v2
    v_and_b32 v{VW}, 1, v4
    v_lshlrev_b32 v{VW}, 2, v{VW}
    v_and_b32 v14, 7, v2
    v_xor_b32 v{VW}, v{VW}, v14
    v_lshlrev_b32 v{VW}, 4, v{VW}
    v_lshl_add_u32 v{VW}, v7, 10, v{VW}
    s_lshl_b32 s48, s{sTG}, 16
    s_lshl_b32 s43, s46, 14
    s_add_u32 s48, s48, s43
    s_lshl_b32 s49, s46, 15
    s_lshl_b32 s43, s{sCG}, 7
    s_add_u32 s49, s49, s43
    {'s_mov_b32 s55, 0' if '--norot' in sys.argv else f's_add_u32 s55, s{sCG}, s{sTG}'}
    s_waitcnt lgkmcnt(0)
    """)
    srd(a, X, 4, 2 << 20)
    def chunk(c, sh): a(f"s_add_u32 s43, s55, {c}\ns_and_b32 s43, s43, 3\ns_lshl_b32 s43, s43, {sh}")
    def issx(c):
        chunk(c, 8); a("s_add_u32 s51, s48, s43")
        for i in range(4):
            a(f"s_add_u32 m0, s50, {c*16384 + i*1024}\ns_nop 0\nbuffer_load_dwordx4 v{VX+i}, s[{X}:{X+3}], s51 offen lds")
    def issw(c):
        chunk(c, 17); a("s_add_u32 s51, s49, s43")
        for i in range(4):
            a(f"s_add_u32 m0, s50, {65536 + c*16384 + i*1024}\ns_add_u32 s52, s51, {8*i*1024}\nbuffer_load_dwordx4 v{VW}, s[{WQ}:{WQ+3}], s52 offen lds")
    def isskv(c):
        chunk(c, 12)
        a(f"s_add_u32 m0, s61, {K1_KV + c*4096}\ns_add_u32 s52, s61, s43\nbuffer_load_dwordx4 v{VL}, s[{WKV}:{WKV+3}], s52 offen lds")
    issx(0)
    a(f"s_cmp_ge_u32 s{sCG}, 4\ns_cselect_b32 s8, s10, s8\ns_cselect_b32 s9, s11, s9\ns_lshl_b32 s61, s46, 10")
    srd(a, WKV, 8, 16 << 10)
    isskv(0); issx(1); isskv(1)
    srd(a, WQ, 6, 512 << 10)
    a(f"""
    v_mov_b32 v{ONES}, 0x3f803f80
    v_add_u32 v30, {K1_KP}, v{VL}
    s_lshl_b32 s43, s58, 8
    s_add_u32 s43, s43, {K1_PS}
    v_lshl_add_u32 v31, v3, 4, s43
    s_lshl_b32 s56, s{sTG}, 1
    s_lshr_b32 s43, s58, 1
    s_add_u32 s56, s56, s43
    s_mul_i32 s56, s56, {TILE}
    s_add_u32 s56, s56, {WS_KV}
    s_and_b32 s57, s58, 1
    s_lshl_b32 s43, s57, 8
    s_mul_i32 s44, s57, 544
    s_add_u32 s44, s44, 1024
    s_cmp_ge_u32 s{sCG}, 4
    s_cselect_b32 s43, s44, s43
    s_cselect_b64 s[62:63], -1, 0
    s_add_u32 s56, s56, s43
    v_and_b32 v14, 1, v4
    v_lshrrev_b32 v15, 1, v4
    v_lshlrev_b32 v26, 9, v14
    v_lshl_add_u32 v26, v15, 3, v26
    v_lshlrev_b32 v27, 8, v15
    v_lshl_add_u32 v27, v14, 3, v27
    v_cndmask_b32 v26, v26, v27, s[62:63]
    v_lshl_add_u32 v26, v3, 4, v26
    s_lshl_b32 s43, s58, 12
    s_lshl_b32 s44, s46, 14
    s_add_u32 s43, s43, s44
    v_lshl_add_u32 v10, v3, 8, s43
    v_xor_b32 v11, v4, v3
    v_lshl_add_u32 v96, v11, 4, v10
    v_xor_b32 v97, 64, v96
    v_xor_b32 v98, 0x80, v96
    v_xor_b32 v99, 0xc0, v96
    v_lshrrev_b32 v9, 2, v3
    v_lshl_add_u32 v95, v4, 3, v9
    v_lshlrev_b32 v95, 5, v95
    v_and_b32 v11, 3, v3
    v_lshl_add_u32 v95, v11, 3, v95
    s_add_u32 s43, s50, {K1_KV}
    v_add_u32 v95, s43, v95
    v_add_u32 v24, s61, v30
    """)
    srd(a, WS, 14, WS_SIZE); srd(a, DBG, 64, 256)
    a(f"v_mov_b32 v93, {K1_EP}\nv_mov_b32 v94, 0")
    size = [5, 5, 5, 5, 4, 4, 4, 4]
    KFX, KFW, KD, UP = 100, 116, 132, 140
    for g in range(5):
        if g == 4:
            for u in range(4): a(f"ds_read_b128 {vr(KFX+4*u,4)}, v{96+u}")
            for u in range(4): a(f"ds_read_b64_tr_b16 {vr(KFW+4*u,2)}, v95 offset:{u*1024}\nds_read_b64_tr_b16 {vr(KFW+4*u+2,2)}, v95 offset:{u*1024+128}")
        if g + 2 < 4: issx(g + 2); isskv(g + 2)
        elif g < 4: issw(g - 2)
        if g == 4:
            a("s_waitcnt lgkmcnt(8)")
            for q in range(16): a(f"v_lshlrev_b32 v{UP+2*q}, 16, v{KFX+q}\nv_and_b32 v{UP+2*q+1}, 0xffff0000, v{KFX+q}")
            issw(2)
        a(f"s_waitcnt vmcnt({sum(size[g+1:g+3])})\ns_barrier")
    if "--nojprio" not in sys.argv: a("s_setprio 2")
    a(f"ds_read_b128 v[80:83], v31\nbuffer_load_dword v66, v94, s[{DBG}:{DBG+3}], 0 offen sc1")
    a("s_waitcnt lgkmcnt(0)")
    rowstat(a, 80, 8, 9)
    def norm(qs):
        for q in qs: a(f"v_add_f32 v{UP+2*q}, v{UP+2*q}, v8\nv_add_f32 v{UP+2*q+1}, v{UP+2*q+1}, v8\nv_cvt_pk_bf16_f32 v{KFX+q}, v{UP+2*q}, v{UP+2*q+1}")
        for q in qs: a(f"v_lshlrev_b32 v{UP+2*q}, 16, v{KFX+q}\nv_and_b32 v{UP+2*q+1}, 0xffff0000, v{KFX+q}\nv_mul_f32 v{UP+2*q}, v{UP+2*q}, v9\nv_mul_f32 v{UP+2*q+1}, v{UP+2*q+1}, v9\nv_cvt_pk_bf16_f32 v{KFX+q}, v{UP+2*q}, v{UP+2*q+1}")
    if "--nojw1" not in sys.argv:
        norm(range(0, 16))
        a(f"s_cmp_ge_u32 s{sCG}, 4\ns_cbranch_scc1 L1_vm")
        for u in range(4): a(f"{MF16} {vr(KD,4)}, {vr(KFW+4*u,4)}, {vr(KFX+4*u,4)}, {'0' if u == 0 else vr(KD,4)}")
        a("L1_km:")
        issw(3)
        a(f"""
        ds_write_b128 v24, {vr(KD,4)}
        s_waitcnt vmcnt(9) lgkmcnt(0)
        s_barrier
        s_cmp_eq_u32 s46, 0
        s_cbranch_scc1 L1_fin
        s_waitcnt vmcnt(4)
        L1_find:
        v_readfirstlane_b32 s{sEP}, v66
        s_cmp_eq_u32 s{sEP}, 0
        s_cbranch_scc1 L1_tag
        L1_tagok:
        ds_write_b32 v93, v66
        s_waitcnt lgkmcnt(0)
        s_barrier
        s_lshl_b32 s43, s2, {FSH}
        s_add_u32 s43, s43, {WS_FLG}
        s_cmp_eq_u32 s46, 0
        s_cselect_b32 s43, s43, {WS_SIZE}
        s_waitcnt vmcnt(0)
        s_mov_b64 exec, 1
        buffer_store_dword v66, v94, s[{WS}:{WS+3}], s43 offen sc0 sc1
        s_mov_b64 exec, -1
        @S1
        s_barrier
        s_branch L2_start
        L1_vm:
        """)
        for u in range(4): a(f"{MF16} {vr(KD,4)}, {vr(KFX+4*u,4)}, {vr(KFW+4*u,4)}, {'0' if u == 0 else vr(KD,4)}")
        a(f"""
        s_branch L1_km
        L1_fin:
        ds_read_b128 {vr(XR+4,4)}, v30 offset:1024
        ds_read_b128 {vr(XR+8,4)}, v30 offset:2048
        ds_read_b128 {vr(XR+12,4)}, v30 offset:3072
        s_waitcnt lgkmcnt(0)
        """)
        for r in range(4):
            a(f"v_add_f32 v{XR+r}, v{KD+r}, v{XR+4+r}\nv_add_f32 v{XR+8+r}, v{XR+8+r}, v{XR+12+r}")
        for r in range(4): a(f"v_add_f32 v{XR+r}, v{XR+r}, v{XR+8+r}")
        a(f"""
        v_cvt_pk_bf16_f32 v{XR}, v{XR}, v{XR+1}
        v_cvt_pk_bf16_f32 v{XR+1}, v{XR+2}, v{XR+3}
        buffer_store_dwordx2 {vr(XR,2)}, v26, s[{WS}:{WS+3}], s56 offen sc0 sc1
        s_waitcnt vmcnt(5)
        s_branch L1_find
        """)
    else:
        norm(range(0, NSPL))
        issw(3)
        a("s_waitcnt vmcnt(9)\ns_barrier")
        norm(range(NSPL, 16))
        a(f"s_cmp_ge_u32 s{sCG}, 4\ns_cbranch_scc1 L1_vm")
        for u in range(4): a(f"{MF16} {vr(KD,4)}, {vr(KFW+4*u,4)}, {vr(KFX+4*u,4)}, {'0' if u == 0 else vr(KD,4)}")
        a(f"""
        L1_km:
        s_waitcnt vmcnt(4)
        v_readfirstlane_b32 s{sEP}, v66
        s_cmp_eq_u32 s{sEP}, 0
        s_cbranch_scc1 L1_tag
        L1_tagok:
        s_nop 3
        ds_write_b128 v24, {vr(KD,4)}
        ds_write_b32 v93, v66
        s_waitcnt lgkmcnt(0)
        s_barrier
        s_cmp_eq_u32 s46, 0
        s_cbranch_scc1 L1_fin
        s_waitcnt vmcnt(0)
        s_barrier
        s_branch L2_start
        L1_vm:
        """)
        for u in range(4): a(f"{MF16} {vr(KD,4)}, {vr(KFX+4*u,4)}, {vr(KFW+4*u,4)}, {'0' if u == 0 else vr(KD,4)}")
        a(f"""
        s_branch L1_km
        L1_fin:
        ds_read_b128 {vr(XR+4,4)}, v30 offset:1024
        ds_read_b128 {vr(XR+8,4)}, v30 offset:2048
        ds_read_b128 {vr(XR+12,4)}, v30 offset:3072
        s_lshl_b32 s43, s2, {FSH}
        s_add_u32 s43, s43, {WS_FLG}
        s_waitcnt lgkmcnt(0)
        """)
        for r in range(4):
            a(f"v_add_f32 v{XR+r}, v{KD+r}, v{XR+4+r}\nv_add_f32 v{XR+8+r}, v{XR+8+r}, v{XR+12+r}")
        for r in range(4): a(f"v_add_f32 v{XR+r}, v{XR+r}, v{XR+8+r}")
        a(f"""
        v_cvt_pk_bf16_f32 v{XR}, v{XR}, v{XR+1}
        v_cvt_pk_bf16_f32 v{XR+1}, v{XR+2}, v{XR+3}
        buffer_store_dwordx2 {vr(XR,2)}, v26, s[{WS}:{WS+3}], s56 offen sc0 sc1
        s_waitcnt vmcnt(1)
        s_barrier
        s_waitcnt vmcnt(0)
        s_mov_b64 exec, 1
        buffer_store_dword v66, v94, s[{WS}:{WS+3}], s43 offen sc0 sc1
        s_mov_b64 exec, -1
        @S1
        s_branch L2_start
        """)
    D1 = 16
    XF, WF = 120, 32
    XA, WA, WB, WOD = 72, 68, 70, 80
    KX, KW = 92, 93
    SX, SXX, KC, KD = 14, 15, 71, 96
    KF = 104
    a(f"""
    L1_gemm:
    v_and_b32 v5, 31, v2
    v_lshrrev_b32 v6, 5, v2
    s_and_b32 s53, s{sW}, 1
    s_lshr_b32 s54, s{sW}, 1
    s_lshl_b32 s59, s2, 1
    s_add_u32 s59, s59, s53
    s_lshr_b32 s43, s59, 6
    s_lshl_b32 s47, s43, 7
    s_lshr_b32 s44, s59, 3
    s_and_b32 s44, s44, 7
    s_lshl_b32 s44, s44, 16
    s_add_u32 s47, s47, s44
    s_lshl_b32 s44, s53, 15
    s_add_u32 s47, s47, s44
    s_and_b32 s44, s59, 2
    s_lshl_b32 s44, s44, 5
    s_add_u32 s47, s47, s44
    s_and_b32 s44, s59, 4
    s_lshr_b32 s44, s44, 1
    s_add_u32 s47, s47, s44
    v_lshlrev_b32 v7, 2, v3
    v_lshl_add_u32 v7, v6, 14, v7
    v_and_b32 v8, 1, v4
    v_lshl_add_u32 v7, v8, 12, v7
    v_add_u32 v8, 8192, v7
    s_waitcnt lgkmcnt(0)
    """)
    if "--pf" in sys.argv:
        a(f"""
        s_lshr_b32 s43, s2, 3
        s_lshl_b32 s43, s43, 14
        s_lshl_b32 s44, s53, 13
        s_add_u32 s43, s43, s44
        s_lshl_b32 s44, s{sTG}, 16
        s_lshl_b32 s45, s{sCG}, 13
        s_add_u32 s44, s44, s45
        s_cmp_eq_u32 s{sW}, 3
        s_cselect_b32 s44, 0x400000, s44
        s_cmp_ge_u32 s{sW}, 2
        s_cselect_b32 s43, s44, s43
        s_cselect_b32 s{X}, s4, s6
        s_cselect_b32 s{X+1}, s5, s7
        s_mov_b32 s{X+2}, 0x80000
        s_cselect_b32 s{X+2}, 0x200000, s{X+2}
        s_and_b32 s{X+1}, s{X+1}, 0xffff
        s_mov_b32 s{X+3}, 0x20000
        v_lshlrev_b32 v9, 7, v2
        buffer_load_dword v252, v9, s[{X}:{X+3}], s43 offen
        """)
    srd(a, WO, 12, 512 << 10); srd(a, WS, 14, WS_SIZE); srd(a, DBG, 64, 256)
    a(f"s_cmp_ge_u32 s{sW}, 2\ns_cbranch_scc1 L1_nowo")
    for j in range(8):
        ro = (0, 1, 8, 9, 2, 3, 10, 11)[j]
        a(f"buffer_load_ushort v{WOD + j}, v{7 + ro//8}, s[{WO}:{WO+3}], s47 offen offset:{(ro & 3) * 1024}")
    a(f"""
    s_branch L1_noz
    L1_nowo:
    s_cmp_eq_u32 s{sW}, 2
    s_cbranch_scc1 L1_ini
    """)
    if "--tlb" in sys.argv:
        a(f"""
        s_load_dwordx8 s[16:23], s[0:1], 48
        s_load_dwordx2 s[24:25], s[0:1], 80
        v_lshlrev_b32 v9, 20, v2
        s_mov_b64 exec, 0xff
        buffer_load_dword v252, v9, s[{WS}:{WS+3}], 0 offen offset:2048
        s_mov_b64 exec, 1
        global_load_dword v253, v9, s[6:7]
        s_waitcnt lgkmcnt(0)
        global_load_dword v253, v9, s[16:17]
        global_load_dword v253, v9, s[18:19]
        global_load_dword v253, v9, s[20:21]
        global_load_dword v253, v9, s[22:23]
        global_load_dword v253, v9, s[24:25]
        s_mov_b64 exec, -1
        """)
    a(f"""
    s_cmp_lg_u32 s2, 0
    s_cbranch_scc1 L1_noz
    s_memrealtime s[44:45]
    v_mov_b32 v9, 0
    s_waitcnt lgkmcnt(0)
    s_or_b32 s44, s44, 1
    v_mov_b32 v{WOD}, s44
    s_mov_b64 exec, 1
    buffer_store_dword v{WOD}, v9, s[{DBG}:{DBG+3}], 0 offen sc0 sc1
    s_mov_b64 exec, -1
    s_branch L1_noz
    L1_ini:
    s_cmp_lt_u32 s2, 172
    s_cselect_b32 s44, -1, 0
    v_mov_b32 v{WOD}, s44
    v_mov_b32 v{WOD+1}, 0
    v_lshlrev_b32 v9, 2, v2
    s_lshl_b32 s43, s2, {ASH}
    s_add_u32 s43, s43, {WS_ACT}
    s_lshl_b32 s44, s2, {KSH}
    s_add_u32 s44, s44, {WS_KEY}
    s_lshr_b32 s45, s2, 1
    s_mul_i32 s45, s45, {TILE}
    s_and_b32 s48, s2, 1
    s_mul_i32 s48, s48, 544
    s_add_u32 s45, s45, s48
    s_add_u32 s45, s45, {WS_KV + 1024 + 512}
    s_cmp_lt_u32 s2, 128
    s_cselect_b32 s45, s45, {WS_SIZE}
    v_cmp_gt_u32 vcc, 4, v2
    v_mov_b32 v{WOD+2}, 0x3f803f80
    s_mov_b64 exec, 0xff
    v_cndmask_b32 v{WOD+2}, 0, v{WOD+2}, vcc
    buffer_store_dword v{WOD}, v9, s[{WS}:{WS+3}], s43 offen sc0 sc1
    buffer_store_dword v{WOD+2}, v9, s[{WS}:{WS+3}], s45 offen sc0 sc1
    s_mov_b64 exec, 3
    buffer_store_dword v{WOD+1}, v9, s[{WS}:{WS+3}], s44 offen sc0 sc1
        s_mov_b64 exec, -1
    L1_noz:
    """)
    if "--cpf" in sys.argv:
        a(f"""
        s_getpc_b64 s[44:45]
        L1_pc:
        s_add_u32 s44, s44, L2_qgot-L1_pc
        s_addc_u32 s45, s45, 0
        s_lshr_b32 s43, s2, 3
        s_lshl_b32 s43, s43, 2
        s_add_u32 s43, s43, s{sW}
        s_lshl_b32 s43, s43, 7
        v_and_b32 v9, 31, v2
        v_lshl_add_u32 v9, v9, 2, s43
        v_min_u32 v9, L2_slow-L2_qgot, v9
        global_load_dword v252, v9, s[44:45]
        """)
    a(f"""
    s_lshl_b32 s43, s54, 1
    v_xor_b32 v12, s43, v3
    s_lshl_b32 s43, s53, 13
    v_lshlrev_b32 v9, 8, v5
    v_add_u32 v9, s43, v9
    """)
    for j in range(8):
        a(f"v_add_u32 v10, {2*j}, v6\nv_xor_b32 v10, v10, v12\nv_lshl_add_u32 v{XA+j}, v10, 4, v9")
    a(f"""
    v_lshrrev_b32 v9, 2, v3
    v_lshl_add_u32 v10, v6, 3, v9
    v_lshlrev_b32 v10, 7, v10
    v_lshrrev_b32 v11, 1, v9
    v_xor_b32 v11, s54, v11
    v_lshl_add_u32 v10, v11, 6, v10
    v_and_b32 v11, 1, v4
    v_lshl_add_u32 v10, v11, 5, v10
    v_and_b32 v11, 3, v3
    v_lshl_add_u32 v10, v11, 3, v10
    s_lshl_b32 s43, s54, 11
    s_add_u32 s44, s43, 0x10000
    s_sub_u32 s43, {0x10000 + 2048}, s43
    v_add_u32 v{WA}, s44, v10
    v_add_u32 v{WB}, s43, v10
    v_lshrrev_b32 v64, 3, v5
    v_lshlrev_b32 v64, 13, v64
    v_and_b32 v11, 7, v5
    v_lshl_add_u32 v64, v11, 4, v64
    v_lshl_add_u32 v64, v6, 9, v64
    s_lshl_b32 s60, s{sTG}, 16
    s_lshl_b32 s44, s53, 15
    s_add_u32 s60, s60, s44
    s_lshl_b32 s44, s{sCG}, 10
    s_add_u32 s60, s60, s44
    s_lshl_b32 s44, s54, 8
    s_add_u32 s60, s60, s44
    s_add_u32 s60, s60, {WS_Q}
    s_lshl_b32 s43, s53, 9
    s_add_u32 s43, s43, {K1_PS}
    v_lshl_add_u32 v67, v5, 4, s43
    s_lshl_b32 s43, s54, 3
    v_lshl_add_u32 v65, v6, 2, v67
    v_add_u32 v65, s43, v65
    s_lshl_b32 s59, s59, 10
    s_add_u32 s59, s59, {WS_WO}
    s_cmp_ge_u32 s{sW}, 2
    s_cselect_b32 s59, {WS_SIZE}, s59
    v_mov_b32 v{ONES}, 0x3f803f80
    v_mov_b32 v{SX}, 0
    v_mov_b32 v{SXX}, 0
    v_mov_b32 v90, 0
    v_mov_b32 v91, 0
    v_mov_b32 v250, 0
    v_mov_b32 v251, 0
    """)
    def xreads(c):
        for u in (0, 2, 4, 6, 1, 3, 5, 7): a(f"ds_read_b128 {vr(XF+32*c+4*u,4)}, v{XA+u} offset:{c*16384}")
    def wread(ks):
        ar = WB if ks & 1 else WA
        off = (ks & ~1) * 2048
        a(f"ds_read_b64_tr_b16 {vr(WF+4*(ks&7),2)}, v{ar} offset:{off}\nds_read_b64_tr_b16 {vr(WF+4*(ks&7)+2,2)}, v{ar} offset:{off + 512}")
    def work(c):
        for u in (0, 2, 4, 6):
            a(f"s_waitcnt lgkmcnt({7 - u//2})")
            for q in range(4): a(f"v_dot2c_f32_bf16 v{SX}, v{XF+32*c+4*u+q}, v{ONES}\nv_dot2c_f32_bf16 v{SXX}, v{XF+32*c+4*u+q}, v{XF+32*c+4*u+q}")
    for c in range(4):
        a("s_barrier")
        if c == 0: a("@T3")
        xreads(c)
        work(c)
        if c == WOC:
            a(f"""
            s_waitcnt vmcnt(0)
            v_lshl_or_b32 v{WOD}, v{WOD+1}, 16, v{WOD}
            v_lshl_or_b32 v{WOD+1}, v{WOD+3}, 16, v{WOD+2}
            v_lshl_or_b32 v{WOD+2}, v{WOD+5}, 16, v{WOD+4}
            v_lshl_or_b32 v{WOD+3}, v{WOD+7}, 16, v{WOD+6}
            buffer_store_dwordx4 {vr(WOD,4)}, v{VL}, s[{WS}:{WS+3}], s59 offen sc0 sc1
            """)
    a(f"""
    v_mov_b32 v7, {K1_EP}
    s_nop 1
    v_permlane32_swap_b32 v{SX}, v{SXX}
    ds_write_b32 v7, v90 offset:8
    v_add_f32 v{SX}, v{SX}, v{SXX}
    ds_write_b32 v65, v{SX}
    v_mov_b32 v{SXX}, 0
    s_waitcnt lgkmcnt(0)
    s_barrier
    @T4
    @S2
    """)
    for ks in range(7): wread(ks)
    a("s_waitcnt lgkmcnt(12)")
    wread(7)
    LATE = "--nojw1" not in sys.argv
    for g in range(8):
        a(f"s_waitcnt lgkmcnt({0 if (g == 7 or (LATE and g == 1)) else 8})")
        for ks in range(4*g, 4*g + 4):
            for q in range(4): a(f"v_dot2c_f32_bf16 v{SXX}, v{WF+4*(ks&7)+q}, v{ONES}")
        if g == 2: a("s_waitcnt vmcnt(0)")
        if g % 2 == 0 and g < 6 and not (LATE and g == 0): a("s_barrier")
        if g == 2: a("ds_read_b128 v[84:87], v67")
        if g == 4: a("@S10\nds_read_b32 v66, v7")
        if g == 2: a("@S6")
        if g == 6: a(f"v_readfirstlane_b32 s{sEP}, v66")
        for ks in range(4*g, 4*g + 4):
            a(f"{MF32} {vr(D1,16)}, {vr(WF+4*(ks&7),4)}, {vr(XF+4*ks,4)}, {'0' if ks == 0 else vr(D1,16)}")
            if ks + 8 < 32 and not (LATE and g < 2): wread(ks + 8)
            if ks == 16: rowstat(a, 84, 8, 9)
            if ks == 17: split_ab(a, 8, 88, "m"); a(f"v_mul_f32 v10, {hex(f2u(QSCALE))}, v9")
            if ks == 29: a("s_nop 0"); split_ab(a, SXX, 248, "c")
        if LATE and g == 1:
            a("s_barrier\n@S5")
            for ks in range(8, 15): wread(ks)
            a("s_waitcnt lgkmcnt(12)")
            wread(15)
    a(f"""
    {MF32} {vr(D1,16)}, v[248:251], v[88:91], {vr(D1,16)}
    v_mov_b32 v35, v66
    v_mov_b32 v39, v66
    v_mov_b32 v43, v66
    v_lshrrev_b32 v44, 3, v5
    v_lshlrev_b32 v44, 12, v44
    v_and_b32 v11, 7, v5
    v_lshl_add_u32 v44, v11, 4, v44
    v_lshl_add_u32 v44, v6, 8, v44
    s_sub_u32 s61, s60, {WS_Q}
    s_lshr_b32 s61, s61, 1
    s_add_u32 s61, s61, {WS_QB}
    s_nop 0
    """)
    dst = [32, 33, 34, 36, 40, 41, 42, 37]
    for r in range(8):
        a(f"v_mul_f32 v{D1+2*r}, v10, v{D1+2*r}\nv_mul_f32 v{D1+2*r+1}, v10, v{D1+2*r+1}\nv_cvt_pk_bf16_f32 v{dst[r]}, v{D1+2*r}, v{D1+2*r+1}")
        if r == 2: a(f"buffer_store_dwordx4 v[32:35], v64, s[{WS}:{WS+3}], s60 offen {QSC}")
        if r == 6: a(f"buffer_store_dwordx4 v[40:43], v64, s[{WS}:{WS+3}], s60 offen offset:128 {QSC}")
    a(f"""
    buffer_store_dwordx4 v[36:39], v44, s[{WS}:{WS+3}], s61 offen {QSC}
    @T5
    @S1
    """)
def k1_cold(a):
    DBG = 28
    a(f"""
    L1_tag:
    s_mov_b32 s47, 0
    L1_tagl:
    buffer_load_dword v66, v94, s[{DBG}:{DBG+3}], 0 offen sc1
    s_add_u32 s47, s47, 1
    s_waitcnt vmcnt(0)
    v_readfirstlane_b32 s{sEP}, v66
    s_cmp_gt_u32 s47, 0x40000
    s_cbranch_scc1 L1_tagx
    s_cmp_eq_u32 s{sEP}, 0
    s_cbranch_scc1 L1_tagl
    L1_tagx:
    s_branch L1_tagok
    """)
KV_BYTES = 64 * TILE
OB = KV_BYTES
RED = OB + 8 * 1040
PART = RED + 1024
CNT = PART + 16384
K2_LDS = CNT + 64
FW = 0
FR = 32768
SMF = "v_smfmac_f32_32x32x32_bf16"
SM16 = "v_smfmac_f32_16x16x64_bf16"
LOG2E = 1.4426950408889634
KPRE = ''
ASLEEP = 's_sleep 5' if '--asleep' in sys.argv else ''
APRE = ''
for _x in sys.argv:
    if _x.startswith('--kpre='): KPRE = 's_sleep ' + _x.split('=')[1]
    if _x.startswith('--apre='): APRE = 's_sleep ' + _x.split('=')[1]
FSLEEP = ''
for _x in sys.argv:
    if _x.startswith('--fsleep='): FSLEEP = 's_sleep ' + _x.split('=')[1]
KMAP = '--nokmap' not in sys.argv
KSLEEP = ''
for _x in sys.argv:
    if _x.startswith('--ksleep='): KSLEEP = 's_sleep ' + _x.split('=')[1]
OSC = 'sc0 sc1' if '--osc' in sys.argv else 'nt' if '--ont' in sys.argv else ''
SLEEP = 's_nop 0'
for _x in sys.argv:
    if _x.startswith('--sleep='): SLEEP = 's_sleep ' + _x.split('=')[1]
def k2(a):
    X, WR_, OUT, WS, FA, FB = 16, 20, 24, 28, 32, 36
    sW, sN, sG = 40, 43, 41
    Q, C, KF, VF, S, O = 8, 12, 28, 36, 52, 84
    IDX, KA, VA, LN16, XO, WRO, M, VA0 = 100, 101, 102, 103, 104, 105, 106, 107
    WO = 108; XRES, WRV, FWR = 236, 240, 244
    BAR_TILE = 10
    X_ = [x for x in sys.argv if x.startswith("--x")]
    a(f"""
    L2_start:
    s_setprio 0
    s_load_dwordx8 s[52:59], s[0:1], 48
    s_load_dwordx2 s[8:9], s[0:1], 80
    v_lshlrev_b32 v{LN16}, 4, v2
    v_and_b32 v5, 31, v2
    v_lshrrev_b32 v6, 5, v2
    s_lshl_b32 s{sG}, s41, 3
    s_add_u32 s{sG}, s{sG}, s42
    s_lshl_b32 s44, s{sG}, 13
    s_lshl_b32 s45, s{sW}, 10
    s_add_u32 s46, s44, s45
    s_add_u32 s47, s45, {WS_KV}
    s_lshl_b32 s50, s{sW}, 16
    s_add_u32 s51, s50, {WS_WO}
    s_and_b32 s48, s{sW}, 4
    s_lshl_b32 s48, s48, 13
    s_add_u32 s50, s51, s48
    """)
    srd(a, WS, 14, WS_SIZE)
    def dma(i):
        return [f"s_add_u32 m0, s45, {i*8192}", f"s_add_u32 s48, s47, {i*8192}", f"buffer_load_dwordx4 v{LN16}, s[{WS}:{WS+3}], s48 offen sc1 lds"]
    a("s_waitcnt lgkmcnt(0)")
    srd(a, X, 4, 2 << 20); srd(a, WR_, 52, 1024); srd(a, OUT, 8, 2 << 20)
    a(f"""
    v_lshlrev_b32 v3, 8, v6
    v_lshl_add_u32 v3, v5, 4, v3
    v_and_b32 v4, 27, v5
    v_cmp_eq_u32 vcc, 16, v4
    v_mov_b32 v4, 528
    v_mov_b32 v7, 512
    v_cndmask_b32 v4, v4, v7, vcc
    v_cmp_gt_u32 vcc, 16, v5
    v_mov_b32 v{KA}, v{LN16}
    v_mov_b32 v{IDX}, 0xdddddddd
    v_cndmask_b32 v3, v4, v3, vcc
    v_add_u32 v{VA0}, 1024, v3
    v_mov_b32 v{VA}, v{VA0}
    v_and_b32 v3, 12, v2
    v_lshlrev_b32 v3, 2, v3
    v_lshl_add_u32 v3, v6, 6, v3
    s_lshl_b32 s49, s{sW}, 7
    v_add_u32 v{WRO}, s49, v3
    v_and_b32 v4, 16, v2
    v_lshlrev_b32 v4, 8, v4
    v_and_b32 v3, 15, v2
    v_lshl_add_u32 v0, v3, 2, v4
    v_lshl_add_u32 v0, v6, 6, v0
    v_add_u32 v0, s49, v0
    v_and_b32 v3, 3, v2
    v_lshl_add_u32 v4, v3, 10, v4
    v_add_u32 v{XO}, v4, v{WRO}
    s_and_b32 s48, s2, 7
    s_lshr_b32 s49, s2, 3
    s_mul_i32 s64, s48, 22
    s_add_u32 s64, s64, s49
    s_lshl_b32 s48, s48, 3
    s_add_u32 s48, s48, s49
    {'s_sub_u32 s61, s2, 176' if '--dspread' in sys.argv else 's_sub_u32 s61, s48, 22'}
    s_and_b32 s61, s61, 63
    s_lshl_b32 s61, s61, 4
    s_min_u32 s48, s64, 171
    s_lshl_b32 s48, s48, 4
    s_mul_i32 s49, s{sW}, {64*2752}
    s_add_u32 s48, s48, s49
    s_lshl_b32 s49, s{sW}, 16
    s_add_u32 s49, s49, s61
    s_add_u32 s66, s49, {512*1024}
    s_add_u32 s67, s49, {1024*1024}
    s_movk_i32 s60, 2752
    s_cmp_ge_u32 s2, 176
    s_cselect_b32 s65, s49, s48
    s_cselect_b32 s66, s66, s48
    s_cselect_b32 s67, s67, 0x200000
    s_cselect_b32 s60, 0x400, s60
    s_cselect_b32 s54, s58, s54
    s_cselect_b32 s55, s59, s55
    s_cselect_b32 s56, s58, s56
    s_cselect_b32 s57, s59, s57
    v_mul_u32_u24 v1, s60, v2
    """)
    srd(a, FA, 54, 512*2752); srd(a, FB, 56, 512*2752)
    if "--nodpf" not in sys.argv:
        srd(a, 4, 58, 512*2752)
        a(f"""
        s_lshr_b32 s11, s2, 3
        s_lshl_b32 s11, s11, 3
        s_add_u32 s11, s11, s{sW}
        s_lshl_b32 s11, s11, 13
        s_and_b32 s48, s2, 7
        s_lshl_b32 s48, s48, 7
        s_add_u32 s11, s11, s48
        v_lshrrev_b32 v3, 3, v2
        v_and_b32 v4, 7, v2
        v_lshlrev_b32 v4, 4, v4
        v_lshl_add_u32 v{FWR}, v3, 10, v4
        """)
    a(f"""
    s_mov_b32 s60, {16*8192}
    s_cmp_lt_u32 s{sW}, 4
    s_cselect_b32 s60, s60, {WS_SIZE}
    v_mov_b32 v3, {CNT}
    """)
    for r in range(16): a(f"v_mov_b32 v{O+r}, 0")
    a(f"""
    ds_write_b32 v3, v{O}
    ds_write_b128 v3, {vr(O,4)} offset:16
    s_lshr_b32 s12, s46, 1
    s_add_u32 s12, s12, {WS_QB}
    s_add_u32 s46, s46, {WS_Q}
    v_lshrrev_b32 v7, 4, v2
    v_lshlrev_b32 v7, 7, v7
    v_and_b32 v4, 7, v2
    v_lshl_add_u32 v7, v4, 4, v7
    s_cmp_lt_u32 s{sW}, 4
    s_cbranch_scc1 L2_noflag
    s_sub_u32 s13, s{sW}, 4
    """)
    if "--fw1" not in sys.argv:
        a(f"""
        s_lshl_b32 s48, s13, {FSH + 6}
        s_add_u32 s48, s48, {WS_FLG}
        v_lshlrev_b32 v3, {FSH}, v2
        s_mov_b32 s49, 0
        L2_fpoll:
        buffer_load_dword v4, v3, s[{WS}:{WS+3}], s48 offen sc1
        s_add_u32 s49, s49, 1
        s_waitcnt vmcnt(0)
        v_cmp_ne_u32 vcc, s{sEP}, v4
        s_cmp_gt_u32 s49, 0x40000
        s_cbranch_scc1 L2_fgot
        s_and_b64 exec, exec, vcc
        s_cbranch_scc0 L2_fgot
        {FSLEEP}
        s_branch L2_fpoll
        L2_fgot:
        s_mov_b64 exec, 1
        v_mov_b32 v3, {K1_EP + 8}
        v_mov_b32 v4, 1
        ds_add_u32 v3, v4
        """)
    else:
        a(f"""
        s_cmp_lg_u32 s{sW}, 5
        s_cbranch_scc1 L2_fwait
        s_mov_b32 s48, {WS_FLG}
        v_lshlrev_b32 v3, {KSH + 2}, v2
        s_mov_b32 s49, 0
        L2_fpoll:
        """)
        for q in range(4): a(f"buffer_load_dword v{S+q}, v3, s[{WS}:{WS+3}], s48 offen offset:{q << KSH} sc1")
        a(f"""
        s_add_u32 s49, s49, 1
        s_waitcnt vmcnt(0)
        v_xor_b32 v{S}, s{sEP}, v{S}
        v_xor_b32 v{S+1}, s{sEP}, v{S+1}
        v_xor_b32 v{S+2}, s{sEP}, v{S+2}
        v_xor_b32 v{S+3}, s{sEP}, v{S+3}
        v_or3_b32 v4, v{S}, v{S+1}, v{S+2}
        v_or_b32 v4, v4, v{S+3}
        v_cmp_ne_u32 vcc, 0, v4
        s_cmp_gt_u32 s49, 0x40000
        s_cbranch_scc1 L2_fgot
        s_and_b64 exec, exec, vcc
        s_cbranch_scc1 L2_fpoll
        L2_fgot:
        s_mov_b64 exec, 1
        v_mov_b32 v3, {K1_EP + 8}
        v_mov_b32 v4, 4
        ds_write_b32 v3, v4
        L2_fwait:
        s_mov_b64 exec, 1
        v_mov_b32 v3, {K1_EP + 8}
        """)
    a(f"""
    L2_fspin:
    ds_read_b32 v4, v3
    s_waitcnt lgkmcnt(0)
    v_readfirstlane_b32 s49, v4
    s_cmp_lt_u32 s49, 4
    s_cbranch_scc1 L2_fspin
    s_mov_b64 exec, -1
    @S2
    s_lshl_b32 s13, s13, 10
    s_add_u32 s62, s13, {WS_KV}
    """)
    for i in range(6):
        a(f"s_add_u32 m0, s13, {i*4096}\ns_add_u32 s48, s62, {i*4096}\nbuffer_load_dwordx4 v{LN16}, s[{WS}:{WS+3}], s48 offen sc1 lds")
    a(f"""
    L2_noflag:
    {'' if '--nobarA' in sys.argv else 's_barrier'}
    @T6
    s_mov_b32 s49, 0
    L2_qpoll:
    buffer_load_dwordx4 {vr(Q,4)}, v{LN16}, s[{WS}:{WS+3}], s46 offen sc1
    buffer_load_dwordx4 {vr(S,4)}, v7, s[{WS}:{WS+3}], s12 offen sc1
    s_add_u32 s49, s49, 1
    s_waitcnt vmcnt(0)
    v_cmp_ne_u32 vcc, s{sEP}, v{Q+3}
    v_cmp_ne_u32 s[62:63], s{sEP}, v{S+3}
    s_cmp_gt_u32 s49, 0x40000
    s_cbranch_scc1 L2_qgot
    s_or_b64 exec, vcc, s[62:63]
    s_cbranch_scc1 L2_qpoll
    L2_qgot:
    s_mov_b64 exec, -1
    s_mov_b32 s62, 0xff00ff00
    s_mov_b32 s63, s62
    v_cndmask_b32 v{Q+3}, v{S}, v{S+1}, s[62:63]
    s_waitcnt lgkmcnt(0)
    s_barrier
    @S3
    ds_read_b128 {vr(KF,4)}, v{KA}
    ds_read_b128 {vr(KF+4,4)}, v{KA} offset:{TILE}
    ds_read_b128 {vr(VF,4)}, v{VA}
    ds_read_b128 {vr(VF+4,4)}, v{VA} offset:544
    s_waitcnt lgkmcnt(3)
    {MF32} {vr(S,16)}, {vr(KF,4)}, {vr(Q,4)}, 0
    s_waitcnt lgkmcnt(2)
    {MF32} {vr(S+16,16)}, {vr(KF+4,4)}, {vr(Q,4)}, 0
    s_nop 9
    v_max3_f32 v{M}, v{S}, v{S+1}, v{S+2}
    """)
    for r in range(3, 31, 2): a(f"v_max3_f32 v{M}, v{S+r}, v{S+r+1}, v{M}")
    a(f"""
    v_max_f32 v{M}, v{S+31}, v{M}
    v_mov_b32 v3, v{M}
    s_nop 1
    v_permlane32_swap_b32 v{M}, v3
    v_max_f32 v{M}, v{M}, v3
    v_sub_f32 v{C}, {hex(f2u(-SHIFT))}, v{M}
    """)
    for r in range(1, 16): a(f"v_mov_b32 v{C+r}, v{C}")
    a(f"""
    @S4
    @S13
    @T1
    s_nop 1
    {MF32} {vr(S,16)}, {vr(KF,4)}, {vr(Q,4)}, {vr(C,16)}
    s_waitcnt lgkmcnt(0)
    s_nop 10
    """)
    base = 0
    nwo = 0
    NPT = 2 if '--npt2' in sys.argv else 3
    queue = [dma(i) for i in range(3, 17)]
    queue[-1][1] = "s_add_u32 s48, s47, s60"
    ffn = [[f"buffer_load_dwordx4 {vr(FWR+4*i,4)}, v1, s[{FA if i == 0 else FB}:{(FA if i == 0 else FB)+3}], s{65+i} offen"] for i in range(3)]
    wol = [(["s_add_u32 s50, s50, 4096"] if (f and f % 4 == 0) else []) + [f"buffer_load_dwordx4 {vr(WO + 4*f, 4)}, v{LN16}, s[{WS}:{WS+3}], s50 offen offset:{(f & 3)*1024} sc1"] for f in range(32)]
    xw = [[f"buffer_load_dword v{XRES+r}, v0, s[{X}:{X+3}], s44 offen offset:{r*1024}"] for r in range(4)] + [[f"buffer_load_dwordx4 {vr(WRV,4)}, v{WRO}, s[{WR_}:{WR_+3}], 0 offen"]]
    SCH = [x.split("=")[1] for x in sys.argv if x.startswith("--sch=")]
    SCH = SCH[0] if SCH else "E"
    if SCH == "A":
        queue += wol + xw + ffn
        cnt = lambda t: 2 if t < 7 or 10 <= t <= 26 else 1 if t in (27, 29, 31) else 0
    elif SCH == "B":
        queue += wol + xw + ffn
        cnt = lambda t: 2 if t <= 23 else 1
    elif SCH == "C":
        queue += xw + wol[:4] + ffn[:1] + wol[4:5] + ffn[1:2] + wol[5:6] + ffn[2:] + wol[6:]
        cnt = lambda t: 2
    elif SCH == "D":
        queue += wol + xw + ffn
        cnt = lambda t: 2 if t <= 23 else 1 if t in (58, 60, 62) else 0
    elif SCH == "E":
        if "--nodpf" in sys.argv:
            queue += wol + xw + ffn
            cnt = lambda t: 2 if t <= 24 else 1 if t in (25, 52, 56, 60) else 0
        else:
            queue += wol + xw + [[f"buffer_load_dwordx4 {vr(FWR+8,4)}, v{FWR}, s[4:7], s11 offen"]] + ffn
            cnt = lambda t: 2 if t <= 25 else 1 if t in (52, 56, 60) else 0
    elif SCH[0] == "G":
        tl = [int(x) for x in SCH[1:].split(",")]
        queue += wol + xw + ffn
        cnt = lambda t: 2 if t <= 24 else 1 if (t == 25 or t in tl) else 0
    elif SCH == "F":
        queue += wol + xw + ffn
        cnt = lambda t: 2 if t <= 23 else 1 if t in (61, 62, 63) else 0
    nissued = 0
    if '--noprio' not in sys.argv: a('s_setprio 1')
    for _x in sys.argv:
        if _x.startswith('--al='): a('.p2align 6\n' + 's_nop 0\n' * int(_x.split('=')[1]))
    if '--vmask' in sys.argv: a('s_mov_b32 s100, 0xffff\ns_mov_b32 s101, 0xffff' if DIAG else 's_mov_b32 s70, 0xffff\ns_mov_b32 s71, 0xffff')
    for t in range(64):
        cur, nxt = t & 1, (t + 1) & 1
        Sc, Sn = S + 16*cur, S + 16*nxt
        e = [f"v_exp_f32 v{Sc+i}, v{Sc+i}" for i in range(16)]
        n_ = cnt(t); side = sum(queue[:n_], []); queue = queue[n_:]
        if t == BAR_TILE: a(f"s_waitcnt vmcnt({nissued - 14})\ns_barrier")
        nissued += sum(1 for x in side if x.startswith("buffer"))
        if (t + 2 - base) * TILE + TILE > 65535:
            a(f"v_add_u32 v{KA}, {(t - base)*TILE}, v{KA}\nv_add_u32 v{VA}, {(t - base)*TILE}, v{VA}")
            base = t
        after = {i: [] for i in range(16)}
        side = [x for x in side if x]
        grp, curg = [], []
        for x in side:
            curg.append(x)
            if x.startswith("buffer"): grp.append(curg); curg = []
        if t > 0: after[1].append(f"{SMF} {vr(O,16)}, {vr(VF+8*nxt+4,4)}, {vr(Sn+8,8)}, v{IDX}")
        va = f"ds_read_b128 {vr(VF+8*nxt,4)}, v{VA} offset:{(t+1-base)*TILE}"
        vb = f"ds_read_b128 {vr(VF+8*nxt+4,4)}, v{VA} offset:{(t+1-base)*TILE+544}"
        VM = "--vmask" in sys.argv and t >= 1
        VQ = "--vq1" in sys.argv
        if t < 63:
            if VM: after[1] += ["s_mov_b64 exec, s[70:71]" if not DIAG else "s_mov_b64 exec, s[100:101]", va, vb, "s_mov_b64 exec, -1"]
            elif VQ: after[1] += [va, vb]
            else: after[1].append(va)
            after[5].append(f"{MF32} {vr(Sn,16)}, {vr(KF+4*nxt,4)}, {vr(Q,4)}, {vr(C,16)}")
        if t < 62: after[5].append(f"ds_read_b128 {vr(KF+4*cur,4)}, v{KA} offset:{(t+2-base)*TILE}")
        after[11].append(f"{SMF} {vr(O,16)}, {vr(VF+8*cur,4)}, {vr(Sc,8)}, v{IDX}")
        after[11].append("s_waitcnt lgkmcnt(0)")
        if t < 63 and not VM and not VQ: after[11].append(vb)
        for g, slot in zip(grp, (1, 5, 11) if len(grp) == 3 else (5, 11)): after[slot] += g
        assert len(grp) <= 3
        for i in range(16):
            a(e[i])
            for x in after[i]: a(x)
    a(f"""
    @S8
    @S14
    s_nop 1
    {SMF} {vr(O,16)}, {vr(VF+12,4)}, {vr(S+24,8)}, v{IDX}
    s_mov_b32 s48, {hex(f2u(2.0**110))}
    s_mov_b32 s12, {hex(f2u(2.0**-104))}
    v_and_b32 v4, 7, v5
    v_mul_u32_u24 v4, 1040, v4
    v_lshrrev_b32 v7, 3, v5
    v_lshl_add_u32 v4, v7, 5, v4
    v_lshl_add_u32 v4, v6, 3, v4
    s_lshl_b32 s49, s{sW}, 7
    s_add_u32 s49, s49, {OB}
    v_add_u32 v4, s49, v4
    v_and_b32 v1, 7, v2
    v_mul_u32_u24 v0, 1040, v1
    v_lshrrev_b32 v7, 4, v2
    v_mul_f32 v3, 0, v{O}
    """)
    for r in range(1, 8): a(f"v_fma_f32 v3, v{O+r}, 0, v3")
    a(f"""
    v_add_f32 v3, v3, v{O+8}
    v_cmp_ngt_f32 vcc, s48, v3
    v_cmp_gt_f32 s[62:63], s12, v3
    v_rcp_f32 v3, v{O+8}
    s_or_b64 vcc, vcc, s[62:63]
    s_cbranch_scc1 L2_slow
    L2_epi:
    """)
    for r in range(8): a(f"v_mul_f32 v{O+r}, v3, v{O+r}")
    for r in range(4): a(f"v_cvt_pk_bf16_f32 v{O+r}, v{O+2*r}, v{O+2*r+1}")
    BA, PA = 101, 102
    a(f"""
    ds_write_b64 v4, {vr(O,2)}
    ds_write_b64 v4, {vr(O+2,2)} offset:16
    v_lshl_add_u32 v{BA}, v7, 5, v0
    v_and_b32 v3, 8, v2
    v_lshl_add_u32 v{BA}, v3, 1, v{BA}
    v_add_u32 v{BA}, {OB}, v{BA}
    v_cmp_ne_u32 vcc, 0, v3
    v_mov_b32 v{IDX}, 0x4444
    v_mov_b32 v3, 0xeeee
    s_and_b32 s49, s{sW}, 3
    s_lshl_b32 s49, s49, 12
    s_add_u32 s49, s49, {PART}
    v_add_u32 v{PA}, s49, v{LN16}
    v_cndmask_b32 v{IDX}, v{IDX}, v3, vcc
    s_waitcnt vmcnt(3)
    s_cmp_lt_u32 s{sW}, 4
    {'' if '--xnoold' in X_ else 's_cbranch_scc1 L2_old'}
    L2_join:
    @S7
    """)
    if "--tsync" in sys.argv:
        a(f"""
        s_mul_i32 s90, s2, 37
        s_and_b32 s90, s90, 63
        s_mul_i32 s90, s90, 80
        s_lshr_b32 s90, s90, 6
        s_add_u32 s90, s90, 4000
        s_mov_b32 s91, 0
        LT_spin:
        s_memrealtime s[92:93]
        s_waitcnt lgkmcnt(0)
        s_sub_u32 s92, s92, s{sEP}
        s_add_u32 s91, s91, 1
        s_cmp_gt_u32 s91, 100000
        s_cbranch_scc1 LT_done
        s_cmp_lt_u32 s92, s90
        s_cbranch_scc1 LT_spin
        LT_done:
        """)
    a(f"""
    """)
    HF, T, WF8, TOK = 60, 68, 52, 106
    ACC = O
    BF = [Q, 28, 32, 36]
    for j in range(4):
        a(f"v_lshlrev_b32 v{HF+2*j}, 16, v{XRES+j}\nv_and_b32 v{HF+2*j+1}, 0xffff0000, v{XRES+j}")
        a(f"v_lshlrev_b32 v{WF8+2*j}, 16, v{WRV+j}\nv_and_b32 v{WF8+2*j+1}, 0xffff0000, v{WRV+j}")
    a(f"v_add_f32 v{T+3}, v{WF8}, v{WF8+1}")
    for j in range(2, 8): a(f"v_add_f32 v{T+3}, v{T+3}, v{WF8+j}")
    a(f"""
    v_mov_b32 v7, 0x3f803f80
    v_lshrrev_b32 v{TOK}, 10, v{XO}
    v_lshlrev_b32 v4, 5, v{TOK}
    v_add_u32 v4, {RED}, v4
    v_lshrrev_b32 v3, 5, v2
    v_lshl_add_u32 v3, v3, 9, v4
    s_lshl_b32 s49, s{sW}, 2
    v_add_u32 v3, s49, v3
    v_add_u32 v0, s45, v{LN16}
    s_add_u32 s49, s44, {WS_H}
    s_cmp_ge_u32 s{sW}, 4
    s_cselect_b64 s[62:63], -1, 0
    s_waitcnt lgkmcnt(0)
    s_barrier
    @S9
    @T2
    s_mov_b64 exec, s[62:63]
    """)
    for i in range(4): a(f"ds_read_b128 {vr(ACC+4*i,4)}, v{PA} offset:{1024*i}")
    a("s_mov_b64 exec, -1")
    for s_ in range(4): a(f"ds_read_b128 {vr(BF[s_],4)}, v{BA} offset:{(s_+4)*128}")
    for s_ in range(4):
        a(f"s_waitcnt lgkmcnt({3 - s_})")
        for i in range(4):
            a(f"{SM16} {vr(ACC+4*i,4)}, {vr(BF[s_],4)}, {vr(WO+32*s_+8*i,8)}, v{IDX}")
    a("s_waitcnt vmcnt(0)")
    for i in range(3): a(f"ds_write_b128 v0, {vr(FWR+4*i,4)} offset:{FW + i*8192}")
    A8, HB = 40, 48
    a("s_mov_b32 vcc_lo, 0x55555555\ns_mov_b32 vcc_hi, 0x55555555\ns_nop 1")
    for p in range(2):
        for r in range(4): a(f"v_permlane32_swap_b32 v{ACC+8*p+r}, v{ACC+8*p+4+r}")
    for r in range(4):
        for p in range(2): a(f"v_add_f32 v{HF+2*r+p}, v{HF+2*r+p}, v{ACC+8*p+r}")
    for r in range(4):
        for p in range(2): a(f"v_add_f32 v{HF+2*r+p}, v{HF+2*r+p}, v{ACC+8*p+4+r}")
    for r in range(4): a(f"v_cvt_pk_bf16_f32 v{A8+r}, v{HF+2*r}, v{HF+2*r+1}")
    X1, X2 = "quad_perm:[1,0,3,2] row_mask:0xf bank_mask:0xf", "quad_perm:[2,3,0,1] row_mask:0xf bank_mask:0xf"
    N = A8 + 4
    a(f"""
    s_nop 0
    v_cndmask_b32_dpp v{N}, v{A8+1}, v{A8}, vcc {X1}
    v_cndmask_b32_dpp v{N+2}, v{A8+3}, v{A8+2}, vcc {X1}
    s_not_b64 vcc, vcc
    v_cndmask_b32_dpp v{N+1}, v{A8}, v{A8+1}, vcc {X1}
    v_cndmask_b32_dpp v{N+3}, v{A8+2}, v{A8+3}, vcc {X1}
    s_mov_b32 vcc_lo, 0x33333333
    s_mov_b32 vcc_hi, 0x33333333
    v_cndmask_b32_dpp v{HB}, v{N+2}, v{N}, vcc {X2}
    v_cndmask_b32_dpp v{HB+1}, v{N+3}, v{N+1}, vcc {X2}
    s_not_b64 vcc, vcc
    v_cndmask_b32_dpp v{HB+2}, v{N}, v{N+2}, vcc {X2}
    v_cndmask_b32_dpp v{HB+3}, v{N+1}, v{N+3}, vcc {X2}
    buffer_store_dwordx4 {vr(HB,4)}, v{XO}, s[{WS}:{WS+3}], s49 offen sc0 sc1
    """)
    for j in range(4): a(f"v_lshlrev_b32 v{HF+2*j}, 16, v{HB+j}\nv_and_b32 v{HF+2*j+1}, 0xffff0000, v{HB+j}")
    a(f"v_add_f32 v{T}, v{HF}, v{HF+1}\nv_mul_f32 v{T+1}, v{HF}, v{HF}\nv_mul_f32 v{T+2}, v{HF}, v{WF8}")
    for j in range(1, 8):
        if j > 1: a(f"v_add_f32 v{T}, v{T}, v{HF+j}")
        a(f"v_fmac_f32 v{T+1}, v{HF+j}, v{HF+j}\nv_fmac_f32 v{T+2}, v{HF+j}, v{WF8+j}")
    a(f"""
    s_nop 0
    v_permlane32_swap_b32 v{T}, v{T+1}
    v_permlane32_swap_b32 v{T+2}, v{T+3}
    v_add_f32 v{T}, v{T}, v{T+1}
    v_add_f32 v{T+2}, v{T+2}, v{T+3}
    s_nop 0
    v_add_f32_dpp v{T}, v{T}, v{T} row_ror:8 row_mask:0xf bank_mask:0xf
    v_add_f32_dpp v{T+2}, v{T+2}, v{T+2} row_ror:8 row_mask:0xf bank_mask:0xf
    s_nop 0
    v_add_f32_dpp v{T}, v{T}, v{T} row_ror:4 row_mask:0xf bank_mask:0xf
    v_add_f32_dpp v{T+2}, v{T+2}, v{T+2} row_ror:4 row_mask:0xf bank_mask:0xf
    ds_write_b32 v3, v{T}
    ds_write_b32 v3, v{T+2} offset:256
    """)
    KR = 128
    def kloads():
        if KMAP:
            for q in range(4): a(f"buffer_load_dwordx2 {vr(KR+2*q,2)}, v8, s[{WS}:{WS+3}], s{56+q} offen sc1")
        else:
            for q in range(4): a(f"buffer_load_dwordx2 {vr(KR+2*q,2)}, v8, s[{WS}:{WS+3}], s48 offen offset:{q << KSH} sc1")
    a(f"""
    s_waitcnt lgkmcnt(0)
    s_barrier
    @S11
    """)
    R_ = 108
    for q in (0, 2, 1, 3):
        a(f"ds_read_b128 {vr(R_+8*q,4)}, v4 offset:{q*256}\nds_read_b128 {vr(R_+8*q+4,4)}, v4 offset:{q*256+16}")
    def sum8(b):
        a(f"""
        v_add_f32 v{b}, v{b}, v{b+1}
        v_add_f32 v{b+2}, v{b+2}, v{b+3}
        v_add_f32 v{b+4}, v{b+4}, v{b+5}
        v_add_f32 v{b+6}, v{b+6}, v{b+7}
        v_add_f32 v{b}, v{b}, v{b+2}
        v_add_f32 v{b+4}, v{b+4}, v{b+6}
        v_add_f32 v{b}, v{b}, v{b+4}
        """)
    s1, s3, s2, s4 = R_, R_+8, R_+16, R_+24
    ST = 76
    OV = 80
    a("s_waitcnt lgkmcnt(4)")
    sum8(s1); sum8(s2)
    a(f"""
    v_mul_f32 v{ST}, {hex(f2u(1.0/512))}, v{s1}
    v_mul_f32 v{s2}, {hex(f2u(1.0/512))}, v{s2}
    v_fma_f32 v{s2}, -v{ST}, v{ST}, v{s2}
    v_max_f32 v{s2}, 0, v{s2}
    v_add_f32 v{s2}, {hex(f2u(EPS))}, v{s2}
    v_rsq_f32 v{ST+1}, v{s2}
    s_cmp_lg_u32 s{sW}, 0
    s_cbranch_scc1 L2_nokey
    s_waitcnt lgkmcnt(0)
    """)
    sum8(s3); sum8(s4)
    AF, BFR, STT, D, D2 = 140, 12, 204, 208, 212
    breg = lambda q: 12 + 4*q if q < 7 else 216 + 4*(q - 7)
    a(f"""
    v_fma_f32 v{s3}, -v{ST}, v{s4}, v{s3}
    s_lshl_b32 s48, s{sG}, 3
    v_add_u32 v4, s48, v{TOK}
    v_mul_f32 v{ST+2}, v{ST+1}, v{s3}
    v_mov_b32 v{ST+3}, s{sEP}
    v_lshlrev_b32 v0, 4, v4
    s_mov_b32 s48, {WS_ST}
    s_mov_b64 exec, 0x000f000f
    buffer_store_dwordx4 {vr(ST,4)}, v0, s[{WS}:{WS+3}], s48 offen sc0 sc1
    s_mov_b64 exec, -1
    v_ashrrev_i32 v3, 31, v{ST+2}
    v_or_b32 v3, 0x80000000, v3
    v_xor_b32 v3, v3, v{ST+2}
    v_and_b32 v3, 0xfffff800, v3
    v_sub_u32 v4, 2047, v4
    v_or_b32 v4, v3, v4
    s_lshl_b32 s48, s2, {KSH}
    s_add_u32 s48, s48, {WS_KEY}
    v_mov_b32_dpp v6, v4 quad_perm:[1,0,3,2] row_mask:0xf bank_mask:0xf
    v_mov_b32 v0, 0
    v_min_u32 v5, v4, v6
    v_max_u32 v4, v4, v6
    """)
    a(f"""
    s_nop 0
    v_mov_b32_dpp v3, v5 quad_perm:[2,3,0,1] row_mask:0xf bank_mask:0xf
    v_mov_b32_dpp v6, v4 quad_perm:[2,3,0,1] row_mask:0xf bank_mask:0xf
    v_max_u32 v5, v5, v3
    v_med3_u32 v5, v4, v5, v6
    v_max_u32 v4, v4, v6
    v_mov_b32 v3, v5
    v_mov_b32 v6, v4
    s_nop 0
    v_permlane16_swap_b32 v5, v3
    v_permlane16_swap_b32 v4, v6
    v_max_u32 v5, v5, v3
    v_med3_u32 v5, v4, v5, v6
    v_max_u32 v4, v4, v6
    """)
    a(f"""
    s_waitcnt vmcnt(1)
    s_barrier
    s_mov_b64 exec, 1
    buffer_store_dwordx2 v[4:5], v0, s[{WS}:{WS+3}], s48 offen sc0 sc1
    s_mov_b64 exec, -1
    @S5
    """)
    def outval():
        a(f"v_add_f32 v3, 1.0, v{ST+1}\nv_mul_f32 v6, v{ST}, v{ST+1}")
        for j in range(8): a(f"v_fma_f32 v{A8+j}, v{HF+j}, v3, -v6")
        for j in range(4): a(f"v_cvt_pk_bf16_f32 v{OV+j}, v{A8+2*j}, v{A8+2*j+1}")
    a(f"v_lshlrev_b32 v8, {KSH + (0 if KMAP else 2)}, v2\ns_mov_b32 s48, {WS_KEY}")
    if KMAP:
        for q in range(4): a(f"s_mov_b32 s{56+q}, {WS_KEY + (64*q << KSH)}")
    if "--knoack" in sys.argv: kloads()
    ROWS = 40960
    a(f"""
    v_and_b32 v9, 15, v2
    v_lshrrev_b32 v11, 4, v2
    v_lshrrev_b32 v10, 2, v9
    v_lshl_add_u32 v10, v11, 7, v10
    v_lshlrev_b32 v10, 4, v10
    v_and_b32 v0, 1, v9
    v_lshl_add_u32 v10, v0, 3, v10
    v_and_b32 v3, 2, v9
    v_lshl_add_u32 v10, v3, 12, v10
    """)
    for q in range(7): a(f"ds_read_b64_tr_b16 {vr(AF+4*q,2)}, v10 offset:{FW + q*128}\nds_read_b64_tr_b16 {vr(AF+4*q+2,2)}, v10 offset:{FW + q*128 + 64}")
    outval()
    a("s_waitcnt lgkmcnt(0)")
    for q in range(7, 14): a(f"ds_read_b64_tr_b16 {vr(AF+4*q,2)}, v10 offset:{FW + q*128}\nds_read_b64_tr_b16 {vr(AF+4*q+2,2)}, v10 offset:{FW + q*128 + 64}")
    a(f"v_mov_b32 v252, v7\nv_mov_b32 v253, v7\nv_mov_b32 v254, v7\nv_mov_b32 v255, v7\ns_waitcnt lgkmcnt(4)")
    for q in range(14, 16): a(f"ds_read_b64_tr_b16 {vr(AF+4*q,2)}, v10 offset:{FW + q*128}\nds_read_b64_tr_b16 {vr(AF+4*q+2,2)}, v10 offset:{FW + q*128 + 64}")
    if "--knoack" not in sys.argv: a("s_waitcnt vmcnt(0)\n" + KPRE); kloads()
    a(f"""
    v_cmp_eq_u32 s[10:11], 1, v0
    v_mul_u32_u24 v10, 1040, v0
    v_lshl_add_u32 v10, v11, 8, v10
    v_lshlrev_b32 v{R_}, 4, v0
    v_lshl_add_u32 v{R_}, v11, 3, v{R_}
    s_mov_b32 s49, 0
    s_mov_b32 s46, 0
    s_mov_b32 s47, 0
    s_mov_b32 s51, {WS_ST}
    s_waitcnt lgkmcnt(0)
    """)
    for q in range(16): a(f"{MF16} {vr(D2,4)}, {vr(AF+4*q,4)}, v[252:255], {'0' if q == 0 else vr(D2,4)}")
    a(f"""
    L2_kpoll:
    s_waitcnt vmcnt(0)
    v_min_u32 v0, v{KR}, v{KR+2}
    v_min3_u32 v0, v{KR+4}, v{KR+6}, v0
    v_cmp_eq_u32 s[62:63], 0, v0
    s_add_u32 s49, s49, 1
    s_cmp_gt_u32 s49, 0x40000
    s_cselect_b64 s[62:63], 0, s[62:63]
    v_max_u32 v4, v{KR}, v{KR+2}
    v_min_u32 v5, v{KR}, v{KR+2}
    v_max3_u32 v5, v5, v{KR+1}, v{KR+3}
    v_med3_u32 v5, v4, v5, v{KR+4}
    v_max_u32 v4, v4, v{KR+4}
    v_med3_u32 v5, v4, v5, v{KR+6}
    v_max_u32 v4, v4, v{KR+6}
    v_max3_u32 v5, v5, v{KR+5}, v{KR+7}
    s_mov_b64 exec, s[62:63]
    s_cbranch_execz L2_klast
    {KSLEEP}
    """)
    kloads()
    a("L2_klast:\ns_mov_b64 exec, -1")
    for dpp in ("quad_perm:[1,0,3,2]", "quad_perm:[2,3,0,1]", "row_half_mirror", "row_mirror"):
        a(f"""
        v_mov_b32_dpp v3, v5 {dpp} row_mask:0xf bank_mask:0xf
        v_mov_b32_dpp v6, v4 {dpp} row_mask:0xf bank_mask:0xf
        v_max_u32 v5, v5, v3
        v_med3_u32 v5, v4, v5, v6
        v_max_u32 v4, v4, v6
        s_nop 0
        """)
    for sw in ("v_permlane16_swap_b32", "v_permlane32_swap_b32"):
        a(f"""
        v_mov_b32 v3, v5
        v_mov_b32 v6, v4
        s_nop 0
        {sw} v5, v3
        {sw} v4, v6
        v_max_u32 v5, v5, v3
        v_med3_u32 v5, v4, v5, v6
        v_max_u32 v4, v4, v6
        """)
    a(f"""
    v_readfirstlane_b32 s53, v5
    v_readfirstlane_b32 s52, v4
    v_cndmask_b32 v3, v4, v5, s[10:11]
    v_not_b32 v3, v3
    s_cmp_eq_u64 s[52:53], s[46:47]
    s_cbranch_scc1 L2_ksame
    s_mov_b64 s[46:47], s[52:53]
    s_cmp_ge_u32 s2, 176
    s_cbranch_scc1 L2_ksame
    s_andn2_b32 s54, 0x7ff, s52
    s_andn2_b32 s55, 0x7ff, s53
    s_lshl_b32 s54, s54, 10
    s_lshl_b32 s55, s55, 10
    s_add_u32 s54, s54, {WS_H}
    s_add_u32 s55, s55, {WS_H}
    s_mov_b32 m0, {ROWS}
    v_and_b32 v3, 0x7ff, v3
    buffer_load_dwordx4 v{LN16}, s[{WS}:{WS+3}], s54 offen sc1 lds
    s_mov_b32 m0, {ROWS + 1040}
    v_lshlrev_b32 v9, 4, v3
    buffer_load_dwordx4 v{LN16}, s[{WS}:{WS+3}], s55 offen sc1 lds
    buffer_load_dwordx4 {vr(STT,4)}, v9, s[{WS}:{WS+3}], s51 offen sc1
    L2_ksame:
    s_cmp_lg_u64 s[62:63], 0
    s_cbranch_scc1 L2_kpoll
    @S6
    v_mov_b32 v0, {CNT + 16}
    ds_write_b64 v0, v[4:5]
    s_cmp_ge_u32 s2, 176
    s_cbranch_scc1 L2_bc
    s_cmp_ge_u32 s64, 172
    s_cselect_b32 s48, 0x100000, s64
    s_lshl_b32 s48, s48, {ASH}
    s_add_u32 s48, s48, {WS_ACT}
    s_waitcnt vmcnt(1)
    """)
    for q in range(12): a(f"ds_read_b128 {vr(breg(q),4)}, v10 offset:{ROWS + q*16}")
    for q in range(16):
        a(f"s_waitcnt lgkmcnt({min(11, 15 - q)})")
        a(f"{MF16} {vr(D,4)}, {vr(AF+4*q,4)}, {vr(breg(q),4)}, {'0' if q == 0 else vr(D,4)}")
        if q < 4: a(f"ds_read_b128 {vr(breg(q+12),4)}, v10 offset:{ROWS + (q+12)*16}")
    E = R_ + 8
    a(f"""
    L2_stw:
    s_waitcnt vmcnt(0)
    v_cmp_ne_u32 vcc, s{sEP}, v{STT+3}
    s_nop 2
    s_cbranch_vccnz L2_stre
    L2_stok:
    s_nop 1
    """)
    for r in range(4): a(f"v_fma_f32 v{D+r}, -v{STT}, v{D2+r}, v{D+r}")
    for r in range(4): a(f"v_mul_f32 v{D+r}, v{D+r}, v{STT+1}")
    for r in range(4): a(f"v_mov_b32 v{E+4+r}, v{D+r}")
    for r in range(4): a(f"v_mul_f32 v{E+r}, {hex(f2u(-LOG2E))}, v{D+r}")
    for r in range(4): a(f"v_exp_f32 v{E+r}, v{E+r}")
    for r in range(4): a(f"v_permlane32_swap_b32 v{D+r}, v{E+4+r}")
    for r in range(4): a(f"v_add_f32 v{E+r}, 1.0, v{E+r}")
    for r in range(4): a(f"v_rcp_f32 v{E+r}, v{E+r}")
    for r in range(4): a(f"v_mul_f32 v{D+r}, v{D+r}, v{E+4+r}")
    for r in range(4): a(f"v_mul_f32 v{D+r}, v{D+r}, v{E+r}")
    a(f"""
    v_cvt_pk_bf16_f32 v{R_+2}, v{D}, v{D+1}
    v_cvt_pk_bf16_f32 v{R_+3}, v{D+2}, v{D+3}
    s_mov_b64 exec, 0x00030003
    buffer_store_dwordx2 {vr(R_+2,2)}, v{R_}, s[{WS}:{WS+3}], s48 offen sc0 sc1
    s_mov_b64 exec, -1
    @S10
    s_branch L2_bc
    L2_stre:
    s_add_u32 s49, s49, 1
    s_cmp_gt_u32 s49, 0x40000
    s_cbranch_scc1 L2_stok
    buffer_load_dwordx4 {vr(STT,4)}, v9, s[{WS}:{WS+3}], s51 offen sc1
    s_branch L2_stw
    L2_nokey:
    """)
    outval()
    a("s_waitcnt vmcnt(0)\ns_barrier")
    BFR = 164
    a(f"""
    L2_bc:
    v_and_b32 v9, 15, v2
    v_lshrrev_b32 v10, 2, v9
    v_lshrrev_b32 v11, 4, v2
    v_lshl_add_u32 v10, v11, 3, v10
    v_lshlrev_b32 v10, 4, v10
    v_and_b32 v8, 1, v9
    v_lshl_add_u32 v10, v8, 3, v10
    s_mul_i32 s49, s45, 3
    v_add_u32 v10, s49, v10
    """)
    for s_ in range(6):
        a(f"ds_read_b64_tr_b16 {vr(AF+4*s_,2)}, v10 offset:{FW + s_*512}\nds_read_b64_tr_b16 {vr(AF+4*s_+2,2)}, v10 offset:{FW + s_*512 + 64}")
    a(f"""
    v_mov_b32 v0, {CNT + 16}
    s_lshl_b32 s48, s{sG}, 3
    v_add_u32 v8, s48, v{TOK}
    s_waitcnt lgkmcnt(0)
    s_barrier
    ds_read_b64 v[4:5], v0
    s_waitcnt lgkmcnt(0)
    v_not_b32 v4, v4
    v_not_b32 v5, v5
    v_and_b32 v4, 0x7ff, v4
    v_and_b32 v5, 0x7ff, v5
    v_cmp_ne_u32 vcc, v4, v8
    v_cmp_ne_u32 s[62:63], v5, v8
    s_and_b64 exec, vcc, s[62:63]
    buffer_store_dwordx4 {vr(OV,4)}, v{XO}, s[{OUT}:{OUT+3}], s44 offen {OSC}
    s_mov_b64 exec, -1
    s_sub_u32 s48, s2, 176
    s_cmp_lt_u32 s48, 64
    s_cbranch_scc1 L2_st2
    L2_fin:
    @D0 15 {WS} {sW}
    s_endpgm
    """)
    a("L2_st2:")
    a(f"""
    v_and_b32 v6, 8, v2
    v_cmp_ne_u32 vcc, 0, v6
    s_mov_b32 s48, {WS_H}
    s_mov_b32 s51, {WS_ST}
    v_cndmask_b32 v3, v4, v5, vcc
    v_lshlrev_b32 v12, 10, v3
    v_lshl_add_u32 v12, v1, 1, v12
    v_add_u32 v12, s61, v12
    v_lshlrev_b32 v18, 4, v3
    buffer_load_ushort v13, v12, s[{WS}:{WS+3}], s48 offen sc1
    v_and_b32 v6, 1, v2
    v_lshlrev_b32 v0, {ASH}, v11
    v_lshl_add_u32 v0, v6, 4, v0
    s_mul_i32 s48, s{sW}, {24 << ASH}
    s_add_u32 s48, s48, {WS_ACT}
    s_mov_b32 s49, 0
    L2_spoll:
    buffer_load_dwordx4 {vr(STT,4)}, v18, s[{WS}:{WS+3}], s51 offen sc1
    s_add_u32 s49, s49, 1
    s_waitcnt vmcnt(0)
    v_cmp_ne_u32 vcc, s{sEP}, v{STT+3}
    s_cmp_gt_u32 s49, 0x40000
    s_cbranch_scc1 L2_sgot
    s_cbranch_vccnz L2_spoll
    L2_sgot:
    v_mul_f32 v16, {hex(f2u(-LOG2E))}, v{STT+2}
    v_exp_f32 v16, v16
    v_lshlrev_b32 v13, 16, v13
    v_add_f32 v16, 1.0, v16
    v_rcp_f32 v16, v16
    v_sub_f32 v17, v13, v{STT}
    v_fma_f32 v13, v17, v{STT+1}, v13
    v_and_b32 v3, 1, v11
    v_lshlrev_b32 v19, 5, v6
    v_lshl_add_u32 v19, v3, 4, v19
    s_lshl_b32 s50, s{sW}, 6
    s_add_u32 s50, s50, {FR}
    v_add_u32 v19, s50, v19
    v_lshlrev_b32 v10, 2, v9
    v_lshl_add_u32 v10, v11, 7, v10
    v_add_u32 v10, {FR}, v10
    {APRE}
    """)
    if "--a1" in sys.argv:
        a(f"""
        s_lshr_b32 s50, s2, 1
        s_and_b32 s50, s50, 15
        s_lshl_b32 s50, s50, {ASH}
        s_add_u32 s50, s50, s48
        s_mov_b64 exec, 1
        L2_a1:
        buffer_load_dword v3, v0, s[{WS}:{WS+3}], s50 offen sc1
        s_add_u32 s49, s49, 1
        s_waitcnt vmcnt(0)
        v_cmp_eq_u32 vcc, -1, v3
        s_cmp_gt_u32 s49, 0x40000
        s_cbranch_scc1 L2_a1x
        s_cbranch_vccnz L2_a1
        L2_a1x:
        s_mov_b64 exec, -1
        """)
    a(f"""
    L2_apoll:
    {ASLEEP}
    """)
    for s_ in range(6):
        a(f"buffer_load_dwordx4 {vr(BFR+4*s_,4)}, v0, s[{WS}:{WS+3}], s48 offen offset:{s_*(4 << ASH)} sc1")
    a(f"s_add_u32 s49, s49, 1\ns_waitcnt vmcnt(0)\nv_max3_u32 v3, v{BFR}, v{BFR+1}, v{BFR+2}")
    for q in range(3, 23, 2): a(f"v_max3_u32 v3, v{BFR+q}, v{BFR+q+1}, v3")
    a(f"""
    v_max_u32 v3, v{BFR+23}, v3
    v_cmp_eq_u32 vcc, -1, v3
    s_cmp_gt_u32 s49, 0x40000
    s_cbranch_scc1 L2_agot
    s_cbranch_vccnz L2_apoll
    L2_agot:
    s_mov_b64 exec, -1
    @S10
    """)
    for s_ in range(6): a(f"{MF16} {vr(D,4)}, {vr(AF+4*s_,4)}, {vr(BFR+4*s_,4)}, {'0' if s_ == 0 else vr(D,4)}")
    a(f"""
    s_nop 7
    ds_write_b128 v19, {vr(D,4)}
    s_waitcnt lgkmcnt(0)
    s_barrier
    s_cmp_lg_u32 s{sW}, 0
    s_cbranch_scc1 L2_fin
    ds_read2_b32 v[14:15], v10 offset0:0 offset1:16
    s_waitcnt lgkmcnt(0)
    v_add_f32 v14, v14, v15
    v_mov_b32 v15, v14
    s_nop 1
    v_permlane32_swap_b32 v14, v15
    v_add_f32 v14, v14, v15
    v_mov_b32 v15, v14
    s_nop 1
    v_permlane16_swap_b32 v14, v15
    v_add_f32 v14, v14, v15
    v_fma_f32 v14, v14, v16, v13
    v_cvt_pk_bf16_f32 v14, v14, v14
    s_mov_b64 exec, 0xffff
    buffer_store_short v14, v12, s[{OUT}:{OUT+3}], 0 offen {OSC}
    @Q {WS}
    @D0 15 {WS} {sW}
    L2_end:
    s_endpgm
    """)
    AB = 12
    def wl(reg, sb, f):
        a(f"buffer_load_dwordx4 {vr(reg,4)}, v{LN16}, s[{WS}:{WS+3}], s{sb} offen offset:{(f & 3)*1024} sc1")
        if f % 4 == 3: a(f"s_add_u32 s{sb}, s{sb}, 4096")
    NE = 10
    breg = lambda f: 40 + 4*f if f < NE else WO + 4*(f - NE)
    a(f"""
    L2_old:
    s_setprio 0
    v_mov_b32 v3, {CNT}
    v_mov_b32 v4, 1
    s_waitcnt lgkmcnt(0)
    s_mov_b64 exec, 1
    ds_add_u32 v3, v4
    s_mov_b64 exec, -1
    s_add_u32 s48, s51, {4*65536}
    v_mov_b32 v7, {1024 + 528}
    """)
    for i in range(4): a(f"ds_read_b128 {vr(ACC+4*i,4)}, v7\nds_read_b128 {vr(AB+4*i,4)}, v7")
    for f in range(NE): wl(breg(f), 48, f)
    a(f"""
    L2_spin:
    ds_read_b32 v4, v3
    s_waitcnt lgkmcnt(0)
    v_readfirstlane_b32 s49, v4
    s_cmp_ge_u32 s49, 4
    s_cbranch_scc1 L2_go
    s_sleep 2
    s_branch L2_spin
    L2_go:
    """)
    for s_ in range(4): a(f"ds_read_b128 {vr(BF[s_],4)}, v{BA} offset:{s_*128}")
    def half(acc, reg, after):
        for s_ in range(4):
            for i in range(4):
                f = 8*s_ + 2*i
                after(f, 0)
                a(f"{SM16} {vr(acc+4*i,4)}, {vr(BF[s_],4)}, {vr(reg(f),8)}, v{IDX}")
                after(f, 1)
    a(f"s_add_u32 s49, s51, {32768 + ((32 - NE)//4)*4096}\ns_waitcnt lgkmcnt(0)")
    def aftA(f, post):
        if not post: return
        for slot in (f, f + 1):
            if slot < 32 - NE: wl(WO + 4*slot, 48, slot + NE)
            else: wl(WO + 4*slot, 49, slot)
    half(ACC, lambda f: WO + 4*f, aftA)
    a(f"s_add_u32 s49, s51, 32768")
    def aftB(f, post):
        if not post:
            done = max(0, f - NE)
            a(f"s_waitcnt vmcnt({min(63, (31 - (f + 1)) + NE + done)})"); return
        for g in (f, f + 1):
            if g >= NE: wl(WO + 4*(g - NE), 49, g - NE)
    half(AB, breg, aftB)
    a("s_nop 5")
    for i in range(4): a(f"ds_write_b128 v{PA}, {vr(AB+4*i,4)} offset:{1024*i}")
    a("s_waitcnt vmcnt(0)\ns_setprio 1\ns_branch L2_join")
    a(f"""
    L2_slow:
    v_mov_b32 v{KA}, v{LN16}
    v_mov_b32 v{M}, 0xff7fffff
    s_mov_b32 s{sN}, 64
    L2_maxloop:
    ds_read_b128 {vr(KF,4)}, v{KA}
    v_add_u32 v{KA}, {TILE}, v{KA}
    s_waitcnt lgkmcnt(0)
    {MF32} {vr(S,16)}, {vr(KF,4)}, {vr(Q,4)}, 0
    s_sub_u32 s{sN}, s{sN}, 1
    s_nop 10
    """)
    for r in range(8): a(f"v_max3_f32 v{M}, v{S+2*r}, v{S+2*r+1}, v{M}")
    a(f"""
    s_cmp_lg_u32 s{sN}, 0
    s_cbranch_scc1 L2_maxloop
    v_mov_b32 v3, v{M}
    v_mov_b32 v{KA}, v{LN16}
    v_mov_b32 v{VA}, v{VA0}
    v_permlane32_swap_b32 v{M}, v3
    v_max_f32 v{M}, v{M}, v3
    """)
    for r in range(16): a(f"v_mov_b32 v{O+r}, 0")
    a(f"""
    s_mov_b32 s{sN}, 64
    L2_slowloop:
    ds_read_b128 {vr(KF,4)}, v{KA}
    ds_read_b128 {vr(VF,4)}, v{VA}
    ds_read_b128 {vr(VF+4,4)}, v{VA} offset:544
    v_add_u32 v{KA}, {TILE}, v{KA}
    v_add_u32 v{VA}, {TILE}, v{VA}
    s_waitcnt lgkmcnt(0)
    {MF32} {vr(S,16)}, {vr(KF,4)}, {vr(Q,4)}, 0
    s_sub_u32 s{sN}, s{sN}, 1
    s_nop 10
    """)
    for i in range(16): a(f"v_sub_f32 v{S+i}, v{S+i}, v{M}")
    for i in range(16): a(f"v_exp_f32 v{S+i}, v{S+i}")
    a(f"""
    s_nop 1
    {SMF} {vr(O,16)}, {vr(VF,4)}, {vr(S,8)}, v{IDX}
    {SMF} {vr(O,16)}, {vr(VF+4,4)}, {vr(S+8,8)}, v{IDX}
    s_cmp_lg_u32 s{sN}, 0
    s_cbranch_scc1 L2_slowloop
    s_nop 11
    v_rcp_f32 v3, v{O+8}
    s_branch L2_epi
    """)
    k1_cold(a)
    return desc(KNAME, 256, 72)

NOTES = """;
"""
def main():
    hdr = open("sequential_preLN__grouped_kv_mqa__moe_arch_mod__prompt.s.ref").read().split("\n")
    top = [l for l in hdr if l.startswith(";") and "@launch" not in l and "Override" not in l and "grid=ceil" not in l]
    a = Asm()
    k1(a)
    d = k2(a)
    out = "\n".join(top) + "\n"
    out += f"; @launch grid=(256,1,1) block=(512,1,1) lds={max(K1_LDS, K2_LDS)}\n"
    out += NOTES
    out += '.amdgcn_target "amdgcn-amd-amdhsa--gfx950"\n.text\n' + a.text() + '.section .rodata,"a"\n' + d
    sys.stdout.write(out)
main()
```
